```python
import torch

def _softmax(x, axis=-1):
    return torch.softmax(x, dim=axis)
def _gelu(x):
    return torch.nn.functional.gelu(x, approximate="tanh")
def _silu(x):
    return torch.nn.functional.silu(x)
def _sigmoid(x):
    return torch.sigmoid(x)
def _layernorm(x, axis=-1, eps=1e-5):
    m = x.mean(dim=axis, keepdim=True)
    v = x.var(dim=axis, keepdim=True, unbiased=False)
    return (x - m) / torch.sqrt(v + eps)
def _scatter_add(tgt, idx, src, axis=0):
    return tgt.clone().index_add_(axis, idx, src)
def _segment_sum(src, seg, n):
    out = torch.zeros((n,) + src.shape[1:], dtype=src.dtype)
    return out.index_add_(0, seg, src)
def _pad(x, pw):
    flat = tuple(v for pair in reversed(pw) for v in pair)
    return torch.nn.functional.pad(x, flat)

kernel_name = 'sequential_preLN__compressed_kv_cla__moe_arch_mod__prompt'

def setup_inputs():

    _w = (lambda a: (lambda t: t.to(torch.bfloat16) if t.is_floating_point() else t)(torch.as_tensor(a)))
    def _A_setup():
        B, H, Sq, Sk, D, M = 1, 32, 2048, 2048, 128, 1024
        Dc = 4 * D
        return {
            "x": _w((lambda *s: torch.randn(*s, dtype=torch.bfloat16) * 0.1)(B, Sq, M)),
            "c_kv": _w((lambda *s: torch.randn(*s, dtype=torch.bfloat16) * 1.6)(B, Sk, Dc)),
            "w_q": _w((lambda *s: torch.randn(*s, dtype=torch.bfloat16) * 0.8)(M, H, D) * (M ** -0.5)),
            "w_uk": _w((lambda *s: torch.randn(*s, dtype=torch.bfloat16) * 0.8)(Dc, H, D) * (Dc ** -0.5)),
            "w_uv": _w((lambda *s: torch.randn(*s, dtype=torch.bfloat16) * 1.6)(Dc, H, D) * (Dc ** -0.5)),
            "w_o": _w((lambda *s: torch.randn(*s, dtype=torch.bfloat16) * 1.6)(H, D, M) * ((H * D) ** -0.5)),
        }
    _A_in = _A_setup()

    def _B_setup():
        B, S, D, F, C = 1, 2048, 1024, 3584, 2
        return {
            "x": _w((lambda *s: torch.randn(*s, dtype=torch.bfloat16) * 0.1)(B, S, D)),
            "w_r": _w((lambda *s: torch.randn(*s, dtype=torch.bfloat16) * 0.2)(D)),
            "w_gate": _w((lambda *s: torch.randn(*s, dtype=torch.bfloat16) * 0.2)(D, F)),
            "w_up": _w((lambda *s: torch.randn(*s, dtype=torch.bfloat16) * 0.2)(D, F)),
            "w_down": _w((lambda *s: torch.randn(*s, dtype=torch.bfloat16) * 0.2)(F, D)),
        }
    _B_in = _B_setup()

    return {
        "A_x": _A_in["x"],
        "A_c_kv": _A_in["c_kv"],
        "A_w_q": _A_in["w_q"],
        "A_w_uk": _A_in["w_uk"],
        "A_w_uv": _A_in["w_uv"],
        "A_w_o": _A_in["w_o"],
        "B_x": _B_in["x"],
        "B_w_r": _B_in["w_r"],
        "B_w_gate": _B_in["w_gate"],
        "B_w_up": _B_in["w_up"],
        "B_w_down": _B_in["w_down"],
    }

def reference(A_x, A_c_kv, A_w_q, A_w_uk, A_w_uv, A_w_o, B_x, B_w_r, B_w_gate, B_w_up, B_w_down):
    def _A_ref(x, c_kv, w_q, w_uk, w_uv, w_o):
        B, Sq, M = x.shape[0], x.shape[1], x.shape[2]
        Sk = c_kv.shape[1]
        H, D = w_q.shape[1], w_q.shape[2]
        q = torch.einsum("bqm,mhd->bhqd", x, w_q)
        k = torch.einsum("bkc,chd->bhkd", c_kv, w_uk)
        v = torch.einsum("bkc,chd->bhkd", c_kv, w_uv)
        scores = torch.einsum("bhqd,bhkd->bhqk", q, k) * (D ** -0.5)
        off = Sk - Sq
        qi = torch.arange(Sq)[:, None]
        kj = torch.arange(Sk)[None, :]
        cmask = kj <= (qi + off)
        scores = torch.where(cmask[None, None], scores, -1e9)
        p = _softmax(scores, axis=-1)
        ctx = torch.einsum("bhqk,bhkd->bhqd", p, v)
        return torch.einsum("bhqd,hdm->bqm", ctx, w_o)

    def _B_ref(x, w_r, w_gate, w_up, w_down):
        B, S, D = x.shape
        C = 2
        r = x @ w_r
        idx = torch.argsort(-r, axis=-1)[:, :C]
        idx_e = (lambda x, n, axis: torch.repeat_interleave(x, n, dim=axis))(idx.reshape(B, C, 1), D, axis=2)
        x_sel = (lambda x, i, axis: torch.take_along_dim(x, i, dim=axis))(x, idx_e, axis=1)
        g = _silu(x_sel @ w_gate)
        u = x_sel @ w_up
        y = (g * u) @ w_down
        r_sel = _sigmoid((lambda x, i, axis: torch.take_along_dim(x, i, dim=axis))(r, idx, axis=1))
        y = y * r_sel.reshape(B, C, 1)
        b_off = (torch.arange(B) * S).reshape(B, 1)
        flat_idx = (idx + b_off).reshape(B * C)
        zero = (x * 0.0).reshape(B * S, D)
        upd = _scatter_add(zero, flat_idx, y.reshape(B * C, D), axis=0)
        return x + upd.reshape(B, S, D)

    x = A_x
    h = x + _A_ref(_layernorm(x, axis=-1), A_c_kv, A_w_q, A_w_uk, A_w_uv, A_w_o)
    h2 = h + _B_ref(_layernorm(h, axis=-1), B_w_r, B_w_gate, B_w_up, B_w_down)
    return h2
```

```python
class Asm:
    def __init__(self):
        self.lines = []
        self.launches = []
        self.kernels = []
        self._uid = 0

    def emit(self, s=""):
        for ln in s.split("\n"):
            ln = ln.strip()
            if not ln:
                continue
            if ln.endswith(":") or ln.startswith("."):
                self.lines.append(ln)
            else:
                self.lines.append("    " + ln)

    __call__ = emit

    def uid(self, base="L"):
        self._uid += 1
        return f"{base}_{self._uid}"

    def label(self, name):
        self.lines.append(f"{name}:")

    def begin_kernel(self, name):
        self.lines.append(f".globl {name}")
        self.lines.append(".p2align 8")
        self.lines.append(f".type {name},@function")
        self.lines.append(f"{name}:")

    def end_kernel(self, name, vgpr, agpr=0, sgpr=102):
        accum = max(4, (vgpr + 3) // 4 * 4)
        nfv = accum + agpr if agpr else vgpr
        assert accum <= 256 and nfv <= 512, (vgpr, agpr)
        self.kernels.append((name, nfv, accum, sgpr))

    def launch(self, name, grid, block, lds):
        self.launches.append((name, grid, block, lds))

    def srd(self, d, base, nbytes):
        self.emit(f"s_mov_b32 s{d}, s{base}")
        self.emit(f"s_and_b32 s{d+1}, s{base+1}, 0xffff")
        self.emit(f"s_mov_b32 s{d+2}, 0x{nbytes:x}")
        self.emit(f"s_mov_b32 s{d+3}, 0x00020000")

    def srd_off(self, d, base, off, nbytes):
        self.emit(f"s_add_u32 s{d}, s{base}, 0x{off:x}")
        self.emit(f"s_addc_u32 s{d+1}, s{base+1}, 0")
        self.emit(f"s_and_b32 s{d+1}, s{d+1}, 0xffff")
        self.emit(f"s_mov_b32 s{d+2}, 0x{nbytes:x}")
        self.emit(f"s_mov_b32 s{d+3}, 0x00020000")

    def text(self, header=""):
        out = []
        if header:
            out.append(header.rstrip("\n"))
        for (name, grid, block, lds) in self.launches:
            out.append(f"; @launch kernel={name} grid=({grid},1,1) block=({block},1,1) lds={lds}")
        out.append('.amdgcn_target "amdgcn-amd-amdhsa--gfx950"')
        out.append(".text")
        out += self.lines
        out.append('.section .rodata,"a"')
        for (name, nfv, accum, sgpr) in self.kernels:
            out.append(".p2align 6")
            out.append(f".amdhsa_kernel {name}")
            out.append(f"  .amdhsa_next_free_vgpr {nfv}")
            out.append(f"  .amdhsa_next_free_sgpr {sgpr}")
            out.append(f"  .amdhsa_accum_offset {accum}")
            out.append("  .amdhsa_group_segment_fixed_size 0")
            out.append("  .amdhsa_kernarg_size 112")
            out.append("  .amdhsa_user_sgpr_count 2")
            out.append("  .amdhsa_user_sgpr_kernarg_segment_ptr 1")
            out.append("  .amdhsa_system_sgpr_workgroup_id_x 1")
            out.append(".end_amdhsa_kernel")
        return "\n".join(out) + "\n"


def vr(b, n=1, p="v"):
    return f"{p}{b}" if n == 1 else f"{p}[{b}:{b+n-1}]"


def ar(b, n=1):
    return vr(b, n, "a")


def sr(b, n=1):
    return vr(b, n, "s")


def interleave(main, fill, start=0, per=1):
    raise NotImplementedError
```

```python
from asmlib import *

XN_OFF = 0x0000000
KF_OFF = 0x1000000
VF_OFF = 0x2000000
CTX_OFF = 0x3000000
H_OFF = 0x4000000
STATS_OFF = 0x4800000
KVC_OFF = STATS_OFF + 24576
ZERO_BYTES = 28672
PART_OFF = 0x4900000
SEL_OFF = 0x4C00000

ARG = dict(x=0, ckv=8, wq=16, wuk=24, wuv=32, wo=40, bx=48, wr=56, wg=64, wu=72, wd=80, out=88, dbg=96, ws=104)


def mfma16(d, a, b, c):
    return f"v_mfma_f32_16x16x32_bf16 {d}, {a}, {b}, {c}"


def weave(a, mf, fills, start=0, end=None):
    n = len(mf)
    if end is None:
        end = n
    span = max(1, end - start)
    fi = 0
    for m in range(n):
        a(mf[m])
        if m >= start:
            tgt = min(len(fills), ((m - start + 1) * len(fills) + span - 1) // span)
            while fi < tgt:
                a(fills[fi])
                fi += 1
    while fi < len(fills):
        a(fills[fi])
        fi += 1


def weave2(a, mf, streams):
    n = len(mf)
    idx = [0] * len(streams)
    for m in range(n):
        a(mf[m])
        for si, (fills, start, end) in enumerate(streams):
            if m >= start:
                span = max(1, end - start)
                tgt = min(len(fills), ((m - start + 1) * len(fills) + span - 1) // span)
                while idx[si] < tgt:
                    a(fills[idx[si]])
                    idx[si] += 1
    for si, (fills, start, end) in enumerate(streams):
        while idx[si] < len(fills):
            a(fills[idx[si]])
            idx[si] += 1


def ln_rows_half_wave(a, vx, vt, vo=None, keep=None):
    if vo is None:
        vo = vx
    f = vt
    src = keep if keep is not None else f
    s = vt + 32
    t = vt + 34
    q = vt + 36
    mb = vt + 38
    P = lambda r: f"v[{r}:{r+1}]"
    for i in range(16):
        a(f"v_lshlrev_b32 v{src+2*i}, 16, v{vx+i}")
        a(f"v_and_b32 v{src+2*i+1}, 0xffff0000, v{vx+i}")
    a(f"v_pk_add_f32 {P(s)}, {P(src)}, {P(src+2)}")
    a(f"v_pk_add_f32 {P(t)}, {P(src+4)}, {P(src+6)}")
    for i in range(8, 32, 4):
        a(f"v_pk_add_f32 {P(s)}, {P(s)}, {P(src+i)}")
        a(f"v_pk_add_f32 {P(t)}, {P(t)}, {P(src+i+2)}")
    a(f"v_pk_add_f32 {P(s)}, {P(s)}, {P(t)}")
    a(f"v_add_f32 v{s}, v{s}, v{s+1}")
    half_wave_sum(a, s, t)
    a(f"v_mul_f32 v{s}, 0xba800000, v{s}")
    a(f"v_mov_b32 v{s+1}, v{s}")
    a(f"v_pk_add_f32 {P(t)}, {P(src)}, {P(s)}")
    a(f"v_pk_add_f32 {P(mb)}, {P(src+2)}, {P(s)}")
    a(f"v_pk_mul_f32 {P(q)}, {P(t)}, {P(t)}")
    a(f"v_pk_fma_f32 {P(q)}, {P(mb)}, {P(mb)}, {P(q)}")
    for i in range(4, 32, 4):
        a(f"v_pk_add_f32 {P(t)}, {P(src+i)}, {P(s)}")
        a(f"v_pk_add_f32 {P(mb)}, {P(src+i+2)}, {P(s)}")
        a(f"v_pk_fma_f32 {P(q)}, {P(t)}, {P(t)}, {P(q)}")
        a(f"v_pk_fma_f32 {P(q)}, {P(mb)}, {P(mb)}, {P(q)}")
    a(f"v_add_f32 v{q}, v{q}, v{q+1}")
    half_wave_sum(a, q, t)
    a(f"v_mul_f32 v{q}, 0x3a800000, v{q}")
    a(f"v_cvt_pk_bf16_f32 v{mb}, v{s}, v{q}")
    a(f"v_and_b32 v{q}, 0xffff0000, v{mb}")
    a(f"v_lshlrev_b32 v{mb}, 16, v{mb}")
    a(f"v_add_f32 v{q}, 0x3727c5ac, v{q}")
    a(f"v_mov_b32 v{mb+1}, v{mb}")
    a(f"v_cvt_pk_bf16_f32 v{q}, v{q}, v{q}")
    a(f"v_and_b32 v{q}, 0xffff0000, v{q}")
    a(f"v_sqrt_f32 v{q}, v{q}")
    for i in range(0, 32, 2):
        a(f"v_pk_add_f32 {P(f+i)}, {P(src+i)}, {P(mb)}")
    a(f"v_cvt_pk_bf16_f32 v{q}, v{q}, v{q}")
    a(f"v_and_b32 v{q}, 0xffff0000, v{q}")
    a(f"v_rcp_f32 v{q}, v{q}")
    for i in range(16):
        a(f"v_cvt_pk_bf16_f32 v{vo+i}, v{f+2*i}, v{f+2*i+1}")
    a(f"v_mov_b32 v{q+1}, v{q}")
    for i in range(16):
        a(f"v_lshlrev_b32 v{f+2*i}, 16, v{vo+i}")
        a(f"v_and_b32 v{f+2*i+1}, 0xffff0000, v{vo+i}")
    for i in range(0, 32, 2):
        a(f"v_pk_mul_f32 {P(f+i)}, {P(f+i)}, {P(q)}")
    for i in range(16):
        a(f"v_cvt_pk_bf16_f32 v{vo+i}, v{f+2*i}, v{f+2*i+1}")


def half_wave_sum(a, s, t):
    a("s_nop 1")
    a(f"v_add_f32_dpp v{s}, v{s}, v{s} quad_perm:[1,0,3,2] row_mask:0xf bank_mask:0xf")
    a("s_nop 1")
    a(f"v_add_f32_dpp v{s}, v{s}, v{s} quad_perm:[2,3,0,1] row_mask:0xf bank_mask:0xf")
    a("s_nop 1")
    a(f"v_add_f32_dpp v{s}, v{s}, v{s} row_half_mirror row_mask:0xf bank_mask:0xf")
    a("s_nop 1")
    a(f"v_add_f32_dpp v{s}, v{s}, v{s} row_mirror row_mask:0xf bank_mask:0xf")
    a(f"v_mov_b32 v{t}, v{s}")
    a("s_nop 1")
    a(f"v_permlane16_swap_b32 v{s}, v{t}")
    a("s_nop 1")
    a(f"v_add_f32 v{s}, v{s}, v{t}")


PROF_OFF = 0x8000000
PROF = False


def stamp(a, i):
    if PROF:
        a(f"s_memrealtime s[{64+4*i}:{65+4*i}]")
        a(f"s_memtime s[{66+4*i}:{67+4*i}]")


def stamp_dump(a, kidx, n, ws_pair):
    if not PROF:
        return
    a("s_waitcnt vmcnt(0) lgkmcnt(0)")
    stamp(a, n)
    a("s_waitcnt lgkmcnt(0)")
    a.srd_off(96, ws_pair, PROF_OFF + kidx * 512 * 64, 512 * 64)
    a("s_lshl_b32 s100, s2, 6")
    a("v_mov_b32 v1, s100")
    for i in range(n + 1):
        a(f"v_mov_b32 v2, s{64+4*i}")
        a(f"buffer_store_dword v2, v1, s[96:99], 0 offen offset:{4*i}")
        a(f"v_mov_b32 v2, s{66+4*i}")
        a(f"buffer_store_dword v2, v1, s[96:99], 0 offen offset:{32+4*i}")


def ring_plan(DX, DW, nx=4, nw=4, nph=8, trips=4):
    order = []
    init = []
    for p in range(-64, 0):
        if p % 2 and (p - 1) // 2 + DW >= 0:
            init.append(("W", (p - 1) // 2 + DW))
        if p + DX >= 0:
            init.append(("X", p + DX))
    init.sort(key=lambda o: 0 if o == ("W", 0) else (1 if o == ("X", 0) else 2))
    order = list(init)

    def younger(op):
        i = order.index(op)
        return sum(nx if o[0] == "X" else nw for o in order[i + 1:])
    first = younger(("W", 0))
    waits = [99] * nph
    for p in range(nph * trips):
        n = younger(("X", p))
        if p % 2:
            n = min(n, younger(("W", (p - 1) // 2 + 1)))
        waits[p % nph] = min(waits[p % nph], n)
        if p % 2:
            order.append(("W", (p - 1) // 2 + DW))
        order.append(("X", p + DX))
    return init, first, waits


def zero_acc(a, base, n, vz, kind="a", init=True):
    if init:
        for r in range(4):
            a(f"v_mov_b32 v{vz+r}, 0")
        a("s_nop 1")
    for b in range(base, base + n, 16):
        a(f"v_mfma_f32_32x32x16_bf16 {kind}[{b}:{b+15}], v[{vz}:{vz+3}], v[{vz}:{vz+3}], 0")


TRACE_OFF = 0x9000000
TRACE = False


def tr_wrap(text):
    if not TRACE:
        return text
    rec = "s_mov_b64 exec, s[98:99]\nv_mov_b32 v0, s96\ns_mov_b64 exec, -1\ns_lshl_b64 s[98:99], s[98:99], 1"
    return "s_memtime s[96:97]\n" + text + "\n" + rec + "\ns_memtime s[96:97]\ns_waitcnt lgkmcnt(0)\n" + rec


def tr_init(a):
    if TRACE:
        a("s_mov_b64 s[98:99], 1")
        a("v_mov_b32 v0, 0")


def tr_dump(a, ws_pair, swave, vlane16):
    if TRACE:
        a.srd_off(96, ws_pair, TRACE_OFF, 256 * 1024)
        a("s_lshl_b32 s100, s2, 2")
        a(f"s_add_u32 s100, s100, s{swave}")
        a("s_lshl_b32 s100, s100, 8")
        a(f"v_lshrrev_b32 v2, 2, v{vlane16}")
        a("buffer_store_dword v0, v2, s[96:99], s100 offen")
```

```python
from common import *
import common, os
K1O = set(os.environ.get('K1O', '').split(','))


def gen_k1(a, name="k1_kernel"):
    a.begin_kernel(name)
    end = a.uid("k1_end")
    a("s_cmp_ge_u32 s2, 256")
    a(f"s_cbranch_scc1 {end}")
    stamp(a, 0)
    a(f"s_load_dwordx4 s[4:7], s[0:1], {ARG['x']}")
    a(f"s_load_dwordx4 s[8:11], s[0:1], {ARG['wuk']}")
    a(f"s_load_dwordx2 s[12:13], s[0:1], {ARG['ws']}")
    a(f"s_load_dwordx2 s[14:15], s[0:1], {ARG['wq']}")
    a("s_and_b32 s40, s2, 7")
    a("s_lshr_b32 s41, s2, 3")
    a("s_and_b32 s42, s41, 7")
    a("s_lshr_b32 s43, s41, 3")
    a("s_and_b32 s44, s43, 1")
    a("s_lshl_b32 s45, s40, 1")
    a("s_add_u32 s44, s44, s45")
    a("s_lshr_b32 s43, s43, 1")
    a("v_lshrrev_b32 v1, 6, v0")
    a("v_and_b32 v2, 63, v0")
    a("v_readfirstlane_b32 s46, v1")
    VX, VT = 40, 56
    a("v_lshrrev_b32 v100, 5, v2")
    a("v_lshl_add_u32 v100, v1, 1, v100")
    a("s_lshl_b32 s47, s2, 3")
    a("v_add_u32 v100, s47, v100")
    a("v_and_b32 v101, 31, v2")
    a("v_lshlrev_b32 v5, 11, v100")
    a("v_lshl_add_u32 v5, v101, 4, v5")
    a("v_lshlrev_b32 v38, 10, v2")
    a("v_lshrrev_b32 v6, 3, v2")
    a("v_lshlrev_b32 v6, 13, v6")
    a("v_and_b32 v7, 7, v2")
    a("v_lshl_add_u32 v6, v7, 7, v6")
    a("s_lshl_b32 s54, s41, 16")
    a("s_lshl_b32 s55, s46, 7")
    a("s_add_u32 s54, s54, s55")
    a("s_lshr_b32 s55, s41, 4")
    a("s_lshl_b32 s55, s55, 3")
    a("s_and_b32 s47, s41, 7")
    a("s_add_u32 s55, s55, s47")
    a("s_cmp_eq_u32 s46, 3")
    a("s_cselect_b32 s55, s41, s55")
    a("s_lshl_b32 s55, s55, 16")
    a("s_lshl_b32 s47, s40, 10")
    a("s_add_u32 s55, s55, s47")
    a("s_cmp_lt_u32 s46, 2")
    a("s_cselect_b32 s54, s54, s55")
    a("s_cselect_b64 vcc, -1, 0")
    a("s_sub_u32 s55, s46, 1")
    a("s_lshl_b32 s55, s55, 20")
    a("s_cmp_lt_u32 s46, 2")
    a("s_cselect_b32 s55, 256, s55")
    a("v_cndmask_b32 v38, v6, v38, vcc")
    a("s_waitcnt lgkmcnt(0)")
    a.srd(24, 4, 4 << 20)
    for i in range(4):
        a(f"buffer_load_dwordx4 v[{VX+4*i}:{VX+4*i+3}], v5, s[24:27], 0 offen offset:{i*512}{' nt' if 'ntx' in K1O else ''}")
    a("s_bitcmp1_b32 s41, 3")
    a("s_cselect_b64 s[56:57], s[10:11], s[8:9]")
    a("s_mov_b32 s58, 0x400000")
    a("s_cmp_eq_u32 s46, 3")
    a("s_cselect_b64 s[56:57], s[14:15], s[56:57]")
    a("s_cselect_b32 s58, 0x800000, s58")
    a("s_cmp_lt_u32 s46, 2")
    a("s_cselect_b64 s[56:57], s[6:7], s[56:57]")
    a("s_cselect_b32 s58, 0x200000, s58")
    a("s_and_b32 s57, s57, 0xffff")
    a("s_mov_b32 s59, 0x00020000")
    pf = "buffer_load_dword v39, v38, s[56:59], s54 offen" + (" nt" if "ntpf" in K1O else "") + "\ns_add_u32 s54, s54, s55"
    if "nowq" in K1O:
        a("s_cmp_eq_u32 s46, 3")
        a("s_cselect_b32 s58, 0, s58")
    if "nopf" in K1O:
        a("s_mov_b32 s58, 0")
    l = a.uid("k1_pf")
    a("s_cmp_eq_u32 s46, 3")
    a(f"s_cbranch_scc1 {l}")
    a(pf)
    a.label(l)
    a.srd(16, 6, 2 << 20)
    a("s_cmp_eq_u32 s43, 0")
    a("s_cselect_b32 s20, s8, s10")
    a("s_cselect_b32 s21, s9, s11")
    a("s_and_b32 s21, s21, 0xffff")
    a("s_mov_b32 s22, 0x400000")
    a("s_mov_b32 s23, 0x00020000")
    a.srd_off(28, 12, XN_OFF, 4 << 20)
    a.srd_off(32, 12, KF_OFF, 32 << 20)
    a.srd_off(36, 12, STATS_OFF, 3 * 2048 * 4)
    a("v_lshrrev_b32 v3, 3, v2")
    a("v_and_b32 v4, 7, v2")
    a("v_lshrrev_b32 v5, 1, v3")
    a("v_xor_b32 v6, v4, v5")
    a("v_xor_b32 v7, 4, v6")
    a("v_lshl_add_u32 v8, v1, 6, v3")
    a("v_lshlrev_b32 v8, 10, v8")
    a("s_lshl_b32 s47, s42, 18")
    a("v_add_u32 v8, s47, v8")
    a("v_lshl_add_u32 v10, v6, 4, v8")
    a("v_lshl_add_u32 v11, v7, 4, v8")
    XD = 10
    for i in range(7, -1, -1):
        a(f"v_add_u32 v{XD+i}, {i*8*1024 - (i%4)*1024}, v{10 + (i%2)}")
    WD = 18
    a("v_lshrrev_b32 v3, 5, v2")
    a("v_bfe_u32 v4, v2, 1, 4")
    a("v_and_b32 v5, 1, v2")
    a("v_lshl_add_u32 v8, v1, 4, v3")
    a("v_lshlrev_b32 v8, 13, v8")
    a("v_lshl_add_u32 v8, v5, 4, v8")
    a("s_lshl_b32 s47, s44, 9")
    a("v_add_u32 v8, s47, v8")
    a("v_xor_b32 v4, v4, v3")
    for i in range(8):
        fx = ((2 * i) & 3) | ((((2 * i) >> 3) & 1) << 2)
        a(f"v_xor_b32 v6, {fx}, v4")
        a(f"v_lshl_add_u32 v6, v6, 5, v8")
        a(f"v_add_u32 v{WD+i}, {2*i*8192 - (i%4)*1024}, v6")
    XB, WB = 0, 65536
    a("s_lshl_b32 s48, s46, 13")
    a("s_mov_b32 s49, 0")
    a("s_mov_b32 s50, 0")

    def dma(stage):
        out = []
        for op in range(2):
            for i in range(8):
                t = []
                if i % 4 == 0:
                    t.append(f"s_add_u32 m0, s48, {(XB if op == 0 else WB) + stage*32768 + i*1024}")
                    t.append("s_nop 0")
                if op == 0:
                    t.append(f"buffer_load_dwordx4 v{XD+i}, s[16:19], s49 offen offset:{(i%4)*1024} lds")
                else:
                    t.append(f"buffer_load_dwordx4 v{WD+i}, s[20:23], s50 offen offset:{(i%4)*1024} lds")
                out.append("\n".join(t))
        out.append("s_add_u32 s49, s49, 128\ns_add_u32 s50, s50, 0x80000")
        return out

    a("v_mov_b32 v3, v100")
    a("v_mov_b32 v4, v101")
    a("v_lshrrev_b32 v5, 4, v3")
    a("v_lshlrev_b32 v5, 10, v5")
    a("v_and_b32 v6, 15, v3")
    a("v_lshl_add_u32 v5, v6, 4, v5")
    a("v_and_b32 v6, 3, v4")
    a("v_lshl_add_u32 v5, v6, 8, v5")
    a("v_lshrrev_b32 v6, 2, v4")
    a("v_lshl_add_u32 v26, v6, 17, v5")
    a("v_and_b32 v3, 15, v2")
    a("v_lshrrev_b32 v4, 4, v2")
    a("v_lshrrev_b32 v5, 1, v3")
    a("v_xor_b32 v5, v5, v4")
    a("v_and_b32 v6, 1, v1")
    a("v_lshl_add_u32 v6, v6, 7, v3")
    a("v_lshlrev_b32 v6, 7, v6")
    a("v_lshl_add_u32 v28, v5, 4, v6")
    a("v_xor_b32 v29, 64, v28")
    a("v_lshrrev_b32 v5, 2, v3")
    a("v_and_b32 v6, 1, v4")
    a("v_lshl_add_u32 v6, v6, 2, v5")
    a("v_lshl_add_u32 v7, v4, 3, v5")
    a("v_lshlrev_b32 v7, 9, v7")
    a("v_lshrrev_b32 v8, 1, v1")
    a("v_lshl_add_u32 v7, v8, 8, v7")
    a("v_and_b32 v8, 3, v2")
    a("v_lshl_add_u32 v7, v8, 3, v7")
    a(f"v_add_u32 v7, {WB}, v7")
    WR = 30
    for j in range(8):
        a(f"v_xor_b32 v8, {j}, v6")
        a(f"v_lshl_add_u32 v{WR+j}, v8, 5, v7")
    for i in range(256):
        a(f"v_accvgpr_write_b32 a{i}, 0")
    skip = a.uid("k1_nostat")
    a("s_cmp_ge_u32 s2, 6")
    a(f"s_cbranch_scc1 {skip}")
    a("v_mov_b32 v124, 0\nv_mov_b32 v125, 0\nv_mov_b32 v126, 0\nv_mov_b32 v127, 0")
    a("s_lshl_b32 s47, s2, 12")
    a("v_lshlrev_b32 v3, 4, v0")
    a("buffer_store_dwordx4 v[124:127], v3, s[36:39], s47 offen")
    a.label(skip)
    stamp(a, 1)
    a("s_waitcnt vmcnt(0)")
    stamp(a, 2)
    for t in dma(0):
        a(t)
    ln_rows_half_wave(a, VX, VT)
    stamp(a, 3)
    for t in dma(1):
        a(t)
    a(pf)
    for i in range(4):
        a(f"v_add_u32 v27, {i*8*131072}, v26")
        a(f"buffer_store_dwordx4 v[{VX+4*i}:{VX+4*i+3}], v27, s[28:31], 0 offen")
    a("s_waitcnt vmcnt(21)")
    a("s_barrier")

    FX = [128, 192]
    FW = [160, 224]

    def reads(stage, sp, buf):
        out = []
        for i in range(8):
            out.append(f"ds_read_b128 v[{FX[buf]+4*i}:{FX[buf]+4*i+3}], v{28+sp} offset:{XB + stage*32768 + i*2048}")
            out.append(f"ds_read_b64_tr_b16 v[{FW[buf]+4*i}:{FW[buf]+4*i+1}], v{WR+i} offset:{stage*32768 + sp*16384}")
            out.append(f"ds_read_b64_tr_b16 v[{FW[buf]+4*i+2}:{FW[buf]+4*i+3}], v{WR+i} offset:{stage*32768 + sp*16384 + 2048}")
        return out

    def mfmas(buf, isv):
        out = []
        FA, FB = (FX, FW) if isv else (FW, FX)
        for i in range(8):
            for j in range(8):
                c = (i * 8 + j) * 4
                out.append(mfma16(f"a[{c}:{c+3}]", f"v[{FA[buf]+4*i}:{FA[buf]+4*i+3}]", f"v[{FB[buf]+4*j}:{FB[buf]+4*j+3}]", f"a[{c}:{c+3}]"))
        return out

    stamp(a, 4)
    for t in reads(0, 0, 0):
        a(t)
    a("s_mov_b32 s51, 0")
    lv = a.uid("k1_v")
    a("s_cmp_lg_u32 s43, 0")
    a(f"s_cbranch_scc1 {lv}")
    for isv in range(2):
        if isv:
            a.label(lv)
        loop = a.uid("k1_loop")
        a.label(loop)
        for st in range(2):
            a("s_waitcnt lgkmcnt(0)")
            RW = int(os.environ.get("K1RW", "48")); D0 = int(os.environ.get("K1D0", "0")); D1 = int(os.environ.get("K1D1", "64"))
            rd = (lambda x: []) if "nords" in K1O else (lambda x: x)
            dm = (lambda x: x[-1:]) if "nodma" in K1O else (lambda x: x)
            weave2(a, mfmas(0, isv), [(rd(reads(st, 1, 1)), 0, RW), ([pf] if st == 0 else [], 8, 9)])
            a(f"s_waitcnt vmcnt({1 if st == 0 else 0}) lgkmcnt(0)")
            a("s_barrier")
            if st == 0:
                a("s_cmp_ge_u32 s49, 1024")
                a("s_cselect_b32 s18, 0, s18")
                a("s_cselect_b32 s22, 0, s22")
            weave2(a, mfmas(1, isv), [(rd(reads(1 - st, 0, 0)), 0, RW), (dm(dma(st)), D0, D1)])
        a("s_add_u32 s51, s51, 1")
        a("s_cmp_lt_u32 s51, 4")
        a(f"s_cbranch_scc1 {loop}")
        stamp(a, 5)
        a("s_lshl_b32 s47, s44, 1")
        a("s_lshr_b32 s52, s46, 1")
        a("s_add_u32 s47, s47, s52")
        a("s_lshl_b32 s47, s47, 14")
        a("s_lshl_b32 s52, s42, 1")
        a("s_and_b32 s53, s46, 1")
        a("s_add_u32 s52, s52, s53")
        a("s_lshl_b32 s52, s52, 20")
        a("s_add_u32 s47, s47, s52")
        if isv:
            a(f"s_add_u32 s47, s47, 0x{VF_OFF-KF_OFF:x}")
        a("v_lshlrev_b32 v3, 4, v2")
        a("s_nop 7")
        n = 0
        for c in range(4):
            for j in range(8):
                t = 40 + (n % 4) * 12
                n += 1
                for hh in range(2):
                    cc = ((2 * c + hh) * 8 + j) * 4
                    for r in range(4):
                        a(f"v_accvgpr_read_b32 v{t+4+hh*4+r}, a{cc+r}")
                a(f"v_cvt_pk_bf16_f32 v{t}, v{t+4}, v{t+5}")
                a(f"v_cvt_pk_bf16_f32 v{t+1}, v{t+6}, v{t+7}")
                a(f"v_cvt_pk_bf16_f32 v{t+2}, v{t+8}, v{t+9}")
                a(f"v_cvt_pk_bf16_f32 v{t+3}, v{t+10}, v{t+11}")
                off = (c * 8192 + j * 1024) if isv else (j * 4096 + c * 1024)
                off = (off // 16384) * 0x80000 + off % 16384
                a(f"s_add_u32 s52, s47, {off & ~4095}")
                a(f"buffer_store_dwordx4 v[{t}:{t+3}], v3, s[32:35], s52 offen offset:{off & 4095}")
        stamp(a, 6)
        stamp_dump(a, 0, 7, 12)
        a("s_endpgm")
    a.label(end)
    a("s_endpgm")
    a.end_kernel(name, 256, 256)
    a.launch(name, 256, 256, 131072)
```

```python
from common import *
import common, os
from sched import Op, spread, schedule
import k2
from k2 import vq, aq, V_LANE16, V_VV, V_NINF, attention_phase, LDF

SPIN_MAX = 1 << 20
KO = set(os.environ.get('KO', '').split(','))
ENV = lambda k, d: int(os.environ.get(k, str(d)))

ZERO, ONE = 8, 9
XD, WD, XRD, WRD = 10, 18, 26, 28
QX, QWD, QWR = 36, 38, 42
VPF, VDUM, VPOLL, VXST, VLW, VLR = 50, 51, 52, 53, 54, 55
PT = 56
PK = 64
WRING = 98304


def spin_text(a, soff, target):
    ok, lp = a.uid("spin_ok"), a.uid("spin")
    return "\n".join([
        f"v_readfirstlane_b32 s31, v{VPOLL}", f"s_cmp_ge_u32 s31, {target}", f"s_cbranch_scc1 {ok}",
        f"s_mov_b32 s40, {SPIN_MAX}", f"{lp}:", "s_sleep 8",
        f"buffer_load_dword v{VPOLL}, v{ZERO}, s[24:27], {soff} offen sc1", "s_waitcnt vmcnt(0)",
        f"v_readfirstlane_b32 s31, v{VPOLL}", "s_sub_u32 s40, s40, 1", "s_cselect_b32 s31, -1, s31",
        f"s_cmp_lt_u32 s31, {target}", f"s_cbranch_scc1 {lp}", f"{ok}:"])


def one_lane(text):
    return f"s_mov_b64 exec, 1\n{text}\ns_mov_b64 exec, -1"


def gen_k12(a, name="k12_kernel"):
    a.begin_kernel(name)
    end = a.uid("k12_end")
    stubs = []

    def when(cmp_text, body, want, **kw):
        l, r = a.uid("k12_ool"), a.uid("k12_oolret")
        if "nosig" in KO and "s[24:27]" in body:
            body = "s_nop 0"
        stubs.append((l, body, r))
        return Op(f"{cmp_text}\ns_cbranch_scc1 {l}\n{r}:", "B", want, **kw)

    a("s_cmp_ge_u32 s2, 256")
    a(f"s_cbranch_scc1 {end}")
    stamp(a, 0)
    a(f"s_load_dwordx4 s[36:39], s[0:1], {ARG['x']}")
    a(f"s_load_dwordx4 s[40:43], s[0:1], {ARG['wuk']}")
    a(f"s_load_dwordx2 s[4:5], s[0:1], {ARG['wq']}")
    a(f"s_load_dwordx4 s[60:63], s[0:1], {ARG['dbg']}")
    a("s_and_b32 s58, s2, 7")
    a("s_lshr_b32 s59, s2, 3")
    a("s_and_b32 s45, s59, 7")
    a("s_lshr_b32 s57, s59, 3")
    a("s_and_b32 s44, s57, 1")
    a("s_lshl_b32 s52, s58, 1")
    a("s_add_u32 s44, s44, s52")
    a("s_lshr_b32 s57, s57, 1")
    W, LN_ = 2, 3
    a(f"v_lshrrev_b32 v{W}, 6, v0")
    a(f"v_and_b32 v{LN_}, 63, v0")
    a(f"v_readfirstlane_b32 s30, v{W}")
    a(f"v_lshlrev_b32 v{V_LANE16}, 4, v{LN_}")
    VX, VT = 64, 80
    TOK, L32 = 60, 61
    a(f"v_lshrrev_b32 v{TOK}, 5, v{LN_}")
    a(f"v_lshl_add_u32 v{TOK}, v{W}, 1, v{TOK}")
    a(f"v_and_b32 v{L32}, 31, v{LN_}")
    a(f"v_lshlrev_b32 v6, 11, v{TOK}")
    a(f"v_lshl_add_u32 v62, v{L32}, 4, v6")
    a("s_lshl_b32 s52, s2, 14")
    a(f"v_lshrrev_b32 v56, 3, v{LN_}")
    a(f"v_and_b32 v57, 7, v{LN_}")
    a("v_lshrrev_b32 v58, 1, v56")
    a("v_xor_b32 v6, v57, v58")
    a("v_xor_b32 v7, 4, v6")
    a(f"v_lshl_add_u32 v58, v{W}, 6, v56")
    a("v_lshlrev_b32 v58, 10, v58")
    a("s_lshl_b32 s47, s45, 18")
    a("v_add_u32 v58, s47, v58")
    a(f"v_lshl_add_u32 v{XD}, v6, 4, v58")
    a(f"v_lshl_add_u32 v{XD+1}, v7, 4, v58")
    for i in range(7, -1, -1):
        a(f"v_add_u32 v{XD+i}, {i*8*1024 - (i%4)*1024}, v{XD + (i%2)}")
    a(f"v_lshrrev_b32 v6, 5, v{LN_}")
    a(f"v_bfe_u32 v7, v{LN_}, 1, 4")
    a(f"v_and_b32 v59, 1, v{LN_}")
    a(f"v_lshl_add_u32 v58, v{W}, 4, v6")
    a("v_lshlrev_b32 v58, 13, v58")
    a("v_lshl_add_u32 v58, v59, 4, v58")
    a("s_lshl_b32 s47, s44, 9")
    a("v_add_u32 v58, s47, v58")
    a("v_xor_b32 v7, v7, v6")
    for i in range(8):
        fx = ((2 * i) & 3) | ((((2 * i) >> 3) & 1) << 2)
        a(f"v_xor_b32 v6, {fx}, v7")
        a(f"v_lshl_add_u32 v6, v6, 5, v58")
        a(f"v_add_u32 v{WD+i}, {2*i*8192 - (i%4)*1024}, v6")
    XB, WB = 0, 65536
    a("s_lshl_b32 s48, s30, 13")
    a("s_mov_b32 s49, 0")
    a("s_mov_b32 s50, 0")
    a("s_waitcnt lgkmcnt(0)")
    a.srd(24, 36, 4 << 20)
    for i in range(4):
        a(f"buffer_load_dwordx4 v[{VX+4*i}:{VX+4*i+3}], v62, s[24:27], s52 offen offset:{i*512} nt")
    a.srd(16, 38, 2 << 20)
    a("s_cmp_eq_u32 s57, 0")
    a("s_cselect_b32 s20, s40, s42")
    a("s_cselect_b32 s21, s41, s43")
    a("s_and_b32 s21, s21, 0xffff")
    a("s_mov_b32 s22, 0x400000")
    a("s_mov_b32 s23, 0x00020000")

    def dma_grp(stage, g):
        op, i0 = g // 2, (g % 2) * 4
        m = f"s_add_u32 m0, s48, {(XB if op == 0 else WB) + stage*32768 + i0*1024}"
        if op == 0:
            ld = [f"buffer_load_dwordx4 v{XD+i0+i}, s[16:19], s49 offen offset:{i*1024} lds" for i in range(4)]
        else:
            ld = [f"buffer_load_dwordx4 v{WD+i0+i}, s[20:23], s50 offen offset:{i*1024} nt lds" for i in range(4)]
        tr = {1: "s_add_u32 s49, s49, 128", 3: "s_add_u32 s50, s50, 0x80000"}.get(g)
        return m, ld, tr

    def emit_grp(m, ld, tr):
        a(m)
        a("s_nop 0")
        for t in ld:
            a(t)
        if tr:
            a(tr)

    def grp_sched(grps, lo, hi, after=()):
        ops, prev = [], list(after)
        tot = sum(len(g[1]) for g in grps)
        step = (hi - lo) / float(tot)
        k = 0
        for (m, ld, tr) in grps:
            mo = None
            if m:
                mo = Op(m, "S", lo + step * k - 1, lo=lo, after=prev)
                ops.append(mo)
            for t in ld:
                o = Op(t, "V", lo + 1 + step * k, lo=lo, after=prev, prev_gap=[mo] if mo else [])
                ops.append(o)
                prev = [o]
                k += 1
            if tr:
                for t in tr.split("\n"):
                    o = Op(t, "S", lo + step * k, after=prev)
                    ops.append(o)
                    prev = [o]
        return ops, prev

    for g in range(4):
        emit_grp(*dma_grp(0, g))
    if "nocode" not in KO:
        a("s_getpc_b64 s[40:41]")
        a("s_and_b32 s40, s40, 0xffffff00")
        a("s_and_b32 s41, s41, 0xffff")
        a("s_mov_b32 s42, 0x10000")
        a("s_mov_b32 s43, 0x00020000")
        a("s_lshl_b32 s52, s59, 11")
        a("s_lshl_b32 s31, s30, 9")
        a("s_add_u32 s52, s52, s31")
        a(f"v_and_b32 v6, 3, v{LN_}")
        a("v_lshlrev_b32 v6, 7, v6")
        a(f"buffer_load_dword v{VDUM}, v6, s[40:43], s52 offen")
    a("s_mov_b64 s[6:7], s[62:63]")
    a.srd_off(8, 6, XN_OFF, 4 << 20)
    a.srd(12, 4, 8 << 20)
    a.srd_off(32, 6, KF_OFF, 32 << 20)
    a.srd(24, 60, 256)
    a("s_lshl_b32 s28, s58, 2")
    a("s_and_b32 s31, s59, 3")
    a("s_add_u32 s28, s28, s31")
    a("s_lshr_b32 s29, s59, 2")
    a("s_lshl_b32 s42, s29, 7")
    a("s_sub_u32 s43, 1920, s42")
    a("s_lshl_b32 s31, s30, 5")
    a("s_add_u32 s38, s42, s31")
    a("s_add_u32 s39, s43, s31")
    a("s_lshl_b32 s60, s30, 12")
    a("s_mov_b32 s61, 0")
    a("s_mov_b32 s62, 0")
    a("s_lshl_b32 s47, s44, 1")
    a("s_lshr_b32 s52, s30, 1")
    a("s_add_u32 s47, s47, s52")
    a("s_lshl_b32 s47, s47, 14")
    a("s_lshl_b32 s52, s45, 1")
    a("s_and_b32 s53, s30, 1")
    a("s_add_u32 s52, s52, s53")
    a("s_lshl_b32 s52, s52, 20")
    a("s_add_u32 s47, s47, s52")
    a("s_lshl_b32 s52, s57, 24")
    a("s_add_u32 s47, s47, s52")
    assert VF_OFF - KF_OFF == 1 << 24
    a("s_lshl_b32 s54, s44, 8")
    a("s_lshr_b32 s55, s28, 1")
    a("s_lshl_b32 s55, s55, 8")
    a("s_and_b32 s53, s59, 3")
    a("s_add_u32 s53, s53, 1")
    a("s_cmp_eq_u32 s30, 0")
    a("s_cselect_b32 s53, s53, -1")
    a("s_cselect_b32 s46, 6, -1")
    a("v_lshlrev_b32 v6, 13, v56")
    a(f"v_lshl_add_u32 v{VPF}, v57, 7, v6")
    a("s_lshl_b32 s56, s30, 5")
    a("s_add_u32 s56, s56, s59")
    a("s_lshl_b32 s56, s56, 16")
    a("s_lshl_b32 s52, s58, 10")
    a("s_add_u32 s56, s56, s52")
    a("s_lshl_b32 s63, s30, 1")
    pf = f"buffer_load_dword v{VDUM}, v{VPF}, s[12:15], s56 offen"
    XL = 131072
    a(f"v_mul_u32_u24 v6, 2064, v{TOK}")
    a(f"v_lshl_add_u32 v6, v{L32}, 4, v6")
    a(f"v_add_u32 v{VLW}, {XL}, v6")
    a("v_mul_u32_u24 v7, 2064, v57")
    a("v_lshl_add_u32 v7, v56, 4, v7")
    a(f"v_lshl_add_u32 v7, v{W}, 9, v7")
    a(f"v_add_u32 v{VLR}, {XL}, v7")
    a("v_lshrrev_b32 v7, 2, v56")
    a(f"v_lshl_add_u32 v7, v{W}, 3, v7")
    a("v_lshlrev_b32 v7, 17, v7")
    a("v_and_b32 v6, 3, v56")
    a("v_lshl_add_u32 v7, v6, 8, v7")
    a("v_lshl_add_u32 v7, v57, 4, v7")
    a("s_lshr_b32 s52, s2, 1")
    a("s_lshl_b32 s52, s52, 10")
    a("s_and_b32 s31, s2, 1")
    a("s_lshl_b32 s31, s31, 7")
    a("s_add_u32 s52, s52, s31")
    a(f"v_add_u32 v{VXST}, s52, v7")
    a(f"v_and_b32 v56, 15, v{LN_}")
    a(f"v_lshrrev_b32 v57, 4, v{LN_}")
    a("v_lshrrev_b32 v6, 1, v56")
    a("v_xor_b32 v6, v6, v57")
    a(f"v_and_b32 v7, 1, v{W}")
    a("v_lshl_add_u32 v7, v7, 7, v56")
    a("v_lshlrev_b32 v7, 7, v7")
    a(f"v_lshl_add_u32 v{XRD}, v6, 4, v7")
    a(f"v_xor_b32 v{XRD+1}, 64, v{XRD}")
    a("v_lshrrev_b32 v6, 2, v56")
    a("v_and_b32 v58, 1, v57")
    a("v_lshl_add_u32 v58, v58, 2, v6")
    a("v_lshl_add_u32 v59, v57, 3, v6")
    a(f"v_and_b32 v63, 3, v{LN_}")
    a("v_lshlrev_b32 v7, 9, v59")
    a(f"v_lshrrev_b32 v6, 1, v{W}")
    a("v_lshl_add_u32 v7, v6, 8, v7")
    a("v_lshl_add_u32 v7, v63, 3, v7")
    a(f"v_add_u32 v7, {WB}, v7")
    a("v_lshlrev_b32 v59, 8, v59")
    a("v_lshl_add_u32 v59, v63, 3, v59")
    a(f"v_add_u32 v59, {WRING}, v59")
    for j in range(8):
        a(f"v_xor_b32 v6, {j}, v58")
        a(f"v_lshl_add_u32 v{WRD+j}, v6, 5, v7")
        a(f"v_lshl_add_u32 v{QWR+j}, v6, 5, v59")
    a("s_lshl_b32 s31, s38, 6")
    a(f"v_add_u32 v{QX}, s31, v{V_LANE16}")
    a("s_lshl_b32 s31, s39, 6")
    a(f"v_add_u32 v{QX+1}, s31, v{V_LANE16}")
    a(f"v_bfe_u32 v6, v{LN_}, 1, 3")
    a(f"v_and_b32 v7, 1, v{LN_}")
    a(f"v_lshl_add_u32 v58, v{W}, 4, v57")
    a("v_lshlrev_b32 v58, 13, v58")
    a("v_lshl_add_u32 v58, v7, 4, v58")
    a("s_lshl_b32 s31, s28, 8")
    a("v_add_u32 v58, s31, v58")
    a("v_xor_b32 v6, v6, v57")
    for i in range(4):
        a(f"v_xor_b32 v7, {(i // 2) << 2}, v6")
        a(f"v_lshl_add_u32 v7, v7, 5, v58")
        a(f"v_add_u32 v{QWD+i}, {4*i*8192 - i*1024}, v7")
    a("v_lshlrev_b32 v6, 2, v57")
    a(f"v_sub_u32 v{V_VV}, v56, v6")
    a(f"v_mov_b32 v{V_NINF}, 0xff800000")
    a(f"v_mov_b32 v{ZERO}, 0")
    a(f"v_mov_b32 v{ONE}, 1")
    zero_acc(a, 128, 64, 56)
    zero_acc(a, 128, 128, 56, "v", init=False)
    a(f"s_waitcnt vmcnt({16 if 'nocode' in KO else 17})")
    ln_rows_half_wave(a, VX, VT)
    for i in range(4):
        a(f"ds_write_b128 v{VLW}, v[{VX+4*i}:{VX+4*i+3}] offset:{i*512}")
    for g in range(4):
        emit_grp(*dma_grp(1, g))
    a("s_waitcnt vmcnt(16) lgkmcnt(0)")
    a("s_barrier")
    XT = 192
    for i in range(4):
        a(f"ds_read_b128 {aq(XT+4*i)}, v{VLR} offset:{i*128}")
    zero_acc(a, 64, 64, 56, "v", init=False)

    FX = [0, 64]
    FW = [32, 96]

    def reads(stage, sp, buf):
        out = []
        for i in range(8):
            out.append(f"ds_read_b128 {aq(FX[buf]+4*i)}, v{XRD+sp} offset:{XB + stage*32768 + i*2048}")
            out.append(f"ds_read_b64_tr_b16 a[{FW[buf]+4*i}:{FW[buf]+4*i+1}], v{WRD+i} offset:{stage*32768 + sp*16384}")
            out.append(f"ds_read_b64_tr_b16 a[{FW[buf]+4*i+2}:{FW[buf]+4*i+3}], v{WRD+i} offset:{stage*32768 + sp*16384 + 2048}")
        return out

    def pair_n(c, j, isv):
        return (c * 8 + j) if isv else (j * 4 + c)

    def acc(i, j, isv):
        n = pair_n(i // 2, j, isv)
        if n < 24:
            return ("v", (64 if i % 2 == 0 else 160) + 4 * n)
        return ("a", 128 + 8 * (n - 24) + 4 * (i % 2))

    def mf1(i, j, buf, isv):
        FA, FB = (FX, FW) if isv else (FW, FX)
        k, c = acc(i, j, isv)
        r = f"{k}[{c}:{c+3}]"
        return mfma16(r, aq(FA[buf] + 4 * i), aq(FB[buf] + 4 * j), r)

    def mfmas(buf, isv):
        return [mf1(i, j, buf, isv) for i in range(8) for j in range(8)]

    skip = a.uid("k12_nostat")
    a(f"s_cmp_ge_u32 s2, {ZERO_BYTES // 4096}")
    a(f"s_cbranch_scc1 {skip}")
    a("s_lshl_b32 s52, s2, 12")
    a(f"s_add_u32 s52, s52, 0x{STATS_OFF - KF_OFF:x}")
    a("s_mov_b32 s34, -1")
    a("v_lshlrev_b32 v6, 4, v0")
    a("buffer_store_dwordx4 v[56:59], v6, s[32:35], s52 offen sc1")
    a(f"s_mov_b32 s34, 0x{32 << 20:x}")
    a.label(skip)
    stamp(a, 1)
    tr_init(a)
    for t in reads(0, 0, 0):
        a(t)
    a("s_mov_b32 s51, 0")
    a("s_waitcnt lgkmcnt(15)")
    for i in range(4):
        a(f"s_mov_b32 s52, {i*2*131072}")
        a(f"buffer_store_dwordx4 {aq(XT+4*i)}, v{VXST}, s[8:11], s52 offen sc1")
    a("s_waitcnt lgkmcnt(0)")
    lv, joined = a.uid("k12_v"), a.uid("k12_join")
    a("s_cmp_lg_u32 s57, 0")
    a(f"s_cbranch_scc1 {lv}")

    DX, DW = 3, 2
    XR = 192
    QF = [0, 32]

    def wdma(stage):
        return (f"s_add_u32 m0, s60, {WRING + (stage % 4)*16384}",
                [f"buffer_load_dwordx4 v{QWD+i}, s[12:15], s61 offen offset:{i*1024} lds" for i in range(4)], "s_add_u32 s61, s61, 0x80000")

    def xloads(ks):
        return (None, [f"buffer_load_dwordx4 {aq(XR + (ks % 4)*16 + 4*qb)}, v{QX+qb//2}, s[8:11], s62 offen offset:{(qb%2)*1024} sc1" for qb in range(4)],
                "s_add_u32 s62, s62, 0x20000")

    def kvstore(n):
        return (f"s_add_u32 s52, s47, {(n // 16) * 0x80000 + (((n % 16) * 1024) & ~4095)}",
                [f"buffer_store_dwordx4 v[{PK+n*4}:{PK+3+n*4}], v{V_LANE16}, s[32:35], s52 offen offset:{(n*1024) & 4095}{os.environ.get('STF', ' sc1')}"], None)

    def wreads(stage, sp, buf):
        out = []
        for j in range(8):
            b = QF[buf] + 4 * j
            out.append(f"ds_read_b64_tr_b16 a[{b}:{b+1}], v{QWR+j} offset:{(stage % 4)*16384 + sp*8192}")
            out.append(f"ds_read_b64_tr_b16 a[{b+2}:{b+3}], v{QWR+j} offset:{(stage % 4)*16384 + sp*8192 + 1024}")
        return out

    def qacc(db, qb):
        return ("v", 192 + (db * 2 + qb) * 4) if qb < 2 else ("a", 64 + (db * 2 + qb - 2) * 4)

    for isv in range(2):
        if isv:
            a.label(lv)
        loop, last = a.uid("k12_loop"), a.uid("k12_last")
        a.label(loop)
        for st in range(2):
            ops = spread(reads(st, 1, 1), "M", 0, 50)
            ops.append(when("s_cmp_eq_u32 s51, s46", f"buffer_load_dword v{VPOLL}, v{ZERO}, s[24:27], 0 offen sc1", 4) if st == 0 else
                       when("s_sub_u32 s52, s51, 1\ns_cmp_eq_u32 s52, s46", spin_text(a, 0, 256), 56, lo=50))
            ops.append(Op(tr_wrap("s_waitcnt vmcnt(0) lgkmcnt(0)\ns_barrier"), "S", 63, lo=63, hard=63, after=list(ops)))
            schedule(a, mfmas(0, isv), ops)
            if st == 1:
                a("s_cmp_eq_u32 s51, 7")
                a(f"s_cbranch_scc1 {last}")
            rd = spread(reads(1 - st, 0, 0), "M", 0, 50)
            pre = []
            if st == 0:
                pre = [Op("s_cmp_ge_u32 s49, 1024\ns_cselect_b32 s18, 0, s18\ns_cselect_b32 s22, 0, s22", "S", 0, hard=0)]
            dm, dl = grp_sched([dma_grp(st, g) for g in range(4)], 1, ENV("GD1", 56), after=pre)
            sig = when("s_cmp_eq_u32 s51, s53", one_lane(f"buffer_atomic_add v{ONE}, v{ZERO}, s[24:27], 0 offen sc1"), 58, after=dl)
            ops = rd + pre + dm + [sig]
            cnt_after = [sig]
            if st == 0:
                p_ = when("s_cmp_eq_u32 s51, s63", pf, 60, after=dl)
                ops.append(p_)
                cnt_after.append(p_)
            ops.append(Op("s_add_u32 s51, s51, 1", "S", 62, after=cnt_after))
            ops.append(Op("s_waitcnt lgkmcnt(0)", "S", 63, lo=63, hard=63, after=rd))
            schedule(a, mfmas(1, isv), ops)
        a(f"s_branch {loop}")
        a.label(last)
        stamp(a, 2)
        pairs = {pair_n(c, j, isv): (c, j) for c in range(4) for j in range(8)}
        seq = list(range(8))
        for k in range(8):
            seq += [24 + k, 8 + 2 * k, 9 + 2 * k]
        mf, ops = [], []
        done = {}
        tuse = []
        for pos, n in enumerate(seq):
            c, j = pairs[n]
            mf += [mf1(2 * c, j, 1, isv), mf1(2 * c + 1, j, 1, isv)]
            g0 = 2 * pos + 1 + 4
            d = PK + 4 * n
            if n < 24:
                x, y = 64 + 4 * n, 160 + 4 * n
                tx = [f"v_cvt_pk_bf16_f32 v{d}, v{x}, v{x+1}", f"v_cvt_pk_bf16_f32 v{d+1}, v{x+2}, v{x+3}",
                      f"v_cvt_pk_bf16_f32 v{d+2}, v{y}, v{y+1}", f"v_cvt_pk_bf16_f32 v{d+3}, v{y+2}, v{y+3}"]
                o = spread(tx, "A", g0, g0 + 2)
            else:
                x = 128 + 8 * (n - 24)
                tx = [f"v_accvgpr_read_b32 v{PT+r}, a{x+r}" for r in range(8)]
                tx += [f"v_cvt_pk_bf16_f32 v{d+r}, v{PT+2*r}, v{PT+2*r+1}" for r in range(4)]
                o = spread(tx, "A", g0, g0 + 5)
                o[0].after += tuse + [done[n - 24]]
                tuse = [o[-1]]
            done[n] = o[-1]
            ops += o
        ld, ll = grp_sched([wdma(0), xloads(0), xloads(1), wdma(1), xloads(2)], 0, 40)
        ops += ld
        bar = Op("s_waitcnt vmcnt(16)\ns_barrier", "S", 44, lo=44, after=ll)
        rd = spread(wreads(0, 0, 0), "M", 45, 60)
        rd[0].after.append(bar)
        ops += [bar] + rd
        schedule(a, mf, ops)
        if not isv:
            a(f"s_branch {joined}")
    a.label(joined)
    a(tr_wrap("s_waitcnt vmcnt(12) lgkmcnt(0)"))

    NS = ENV("NS", 20)
    PSIG = NS + 3
    PPOLL = ENV("PPOLL", 27)
    assert PSIG % 2 == 1 and PPOLL % 2 == 1 and PSIG < PPOLL
    queue = ["W0"] * 4 + ["X0"] * 4 + ["X1"] * 4 + ["W1"] * 4 + ["X2"] * 4

    def younger(tag):
        if tag not in queue:
            return 63
        return len(queue) - 1 - max(i for i, t in enumerate(queue) if t == tag)

    kvsrd = ["s_lshl_b32 s31, s28, 14", "s_add_u32 s16, s6, s31\ns_addc_u32 s17, s7, 0",
             f"s_add_u32 s20, s16, 0x{VF_OFF:x}\ns_addc_u32 s21, s17, 0", f"s_add_u32 s16, s16, 0x{KF_OFF:x}\ns_addc_u32 s17, s17, 0",
             "s_and_b32 s17, s17, 0xffff", "s_and_b32 s21, s21, 0xffff", "s_lshl_b32 s31, s29, 20", "s_sub_u32 s18, 0xf84000, s31",
             "s_mov_b32 s22, s18",
             f"s_add_u32 s24, s6, 0x{KVC_OFF:x}\ns_addc_u32 s25, s7, 0", "s_and_b32 s25, s25, 0xffff", "s_mov_b32 s26, 4096"]

    def kdma():
        return ("s_mov_b32 m0, s34", [f"buffer_load_dwordx4 v{V_LANE16}, s[16:19], s32 offen offset:{i*1024}{LDF} lds" for i in range(4)],
                "s_add_u32 s32, s32, 0x80000\ns_add_u32 s34, s34, 0x4000")

    def vdma():
        return ("s_mov_b32 m0, s35", [f"buffer_load_dwordx4 v{V_LANE16}, s[20:23], s33 offen offset:{i*1024}{LDF} lds" for i in range(4)],
                "s_add_u32 s33, s33, 0x80000\ns_add_u32 s35, s35, 0x4000")

    sn = 0
    for ks in range(32):
        st, sp = ks // 2, ks % 2
        ops = []
        rd = []
        if ks < 31:
            rd = spread(wreads(st, 1, 1) if sp == 0 else wreads(st + 1, 0, 0), "M", 0, 22)
        ops += rd
        grps, tags = [], []
        if sp == 1 and st + DW < 16:
            grps.append(wdma(st + DW)); tags.append(f"W{st+DW}")
        if ks + DX < 32:
            grps.append(xloads(ks + DX)); tags.append(f"X{ks+DX}")
        while sn < 32 and sn < (ks + 1) * 32 // NS:
            grps.append(kvstore(sn)); tags.append("S"); sn += 1
        head = []
        if ks == 0:
            ops += spread(kvsrd, "S", 6, 30)
        if ks == PSIG:
            assert younger("S") >= prevw
            head = [when("s_cmp_eq_u32 s30, 0", one_lane(f"buffer_atomic_add v{ONE}, v{ZERO}, s[24:27], s54 offen sc1"), 0)]
            ops += spread(k2.kv_first(), "S", 8, 20)
        if ks == PPOLL:
            head = [when("s_cmp_eq_u32 s30, 0", f"buffer_load_dword v{VPOLL}, v{ZERO}, s[24:27], s55 offen sc1", 0)]
            qpoll = len(queue)
        if ks == PPOLL + 2:
            grps += [kdma(), kdma()]; tags += ["K0", "K1"]
        if ks == PPOLL + 3:
            grps += [vdma(), kdma()]; tags += ["V0", "K2"]
        if ks == PPOLL + 4:
            grps += [vdma()]; tags += ["V1"]
        ops += head
        if grps:
            g, _ = grp_sched(grps, 1, 28, after=head)
            ops += g
        for gr, tg in zip(grps, tags):
            queue += [tg] * len(gr[1])
        if ks < 31:
            nk = ks + 1
            wv = younger(f"X{nk}")
            if nk % 2:
                wv = min(wv, younger(f"W{nk // 2 + 1}"))
            prevw = wv
            wtxt = f"s_waitcnt vmcnt({wv}) lgkmcnt(0)"
            if ks == PPOLL + 1:
                ops.append(when("s_cmp_eq_u32 s30, 0", f"s_waitcnt vmcnt({len(queue) - qpoll})\n" + spin_text(a, "s55", 16), 29, lo=28, after=[o for o in ops if o.cls == "V"]))
            if nk % 2:
                wtxt = tr_wrap(wtxt + "\ns_barrier") if nk % 4 == 1 else wtxt + "\ns_barrier"
            ops.append(Op(wtxt, "S", 31, lo=31, hard=31, after=[o for o in ops if o.cls in "MVB"]))
        mf = []
        for db in range(8):
            for qb in range(4):
                k, c = qacc(db, qb)
                r = f"{k}[{c}:{c+3}]"
                mf.append(mfma16(r, aq(QF[sp] + 4 * db), aq(XR + (ks % 4) * 16 + 4 * qb), "0" if ks == 0 else r))
        schedule(a, mf, ops)
    assert PPOLL + 4 <= 31
    stamp(a, 3)
    a.srd_off(24, 6, CTX_OFF, 16 << 20)
    attention_phase(a, end, 0, qacc, early=True)
    for (sl, txt, ret) in stubs:
        a.label(sl)
        a(txt)
        a(f"s_branch {ret}")
    a.end_kernel(name, 256, 256)
    a.launch(name, 256, 256, 163840)
```

```python
from common import *
from sched import Op, spread, schedule, resolve_lgkm
import common
import math, struct

QSCALE = struct.unpack("<I", struct.pack("<f", math.log2(math.e) / math.sqrt(128.0)))[0]
THRESH = 0x46800000

V_LANE16 = 1
V_K = 2
V_V = 3
V_VV = 4
V_NINF = 5
V_T = 6
V_T2 = 7
NEGM = 8
L = 12
CIN = 16
LT = 48
DL = 52
V_LANEV = 56
Q = 64
S = [128, 160]
P = [192, 208]
TMP = 224
V_PF = 228
ET = 232
A_O = 0
A_K = 128
A_V = 192


LDF = ' sc1'
import os
KN = set(os.environ.get("KN", "").split(","))


def vq(b):
    return f"v[{b}:{b+3}]"


def aq(b):
    return f"a[{b}:{b+3}]"


def slot_of(typ, kb, qb):
    if typ == "D":
        return kb * 4 + qb
    return (kb % 2) * 4 + (kb // 2) * 2 + (qb - 2)


def qk_mfmas(typ, par):
    out = []
    kbs, qbs = (range(2), range(4)) if typ == "D" else (range(4), range(2, 4))
    for kb in kbs:
        for c in range(4):
            for qb in qbs:
                sl = slot_of(typ, kb, qb)
                d = vq(S[par] + 4 * sl)
                cc = vq(CIN + 4 * sl) if c == 0 else d
                out.append(mfma16(d, aq(A_K + (kb * 4 + c) * 4), vq(Q + (qb * 4 + c) * 4), cc))
    return out


def pv_mfmas(typ, par):
    out = []
    if typ == "D":
        for db in range(8):
            for qb in range(4):
                o = aq(A_O + (db * 4 + qb) * 4)
                out.append(mfma16(o, aq(A_V + db * 4), vq(P[par] + 4 * qb), o))
    else:
        for ks in range(2):
            for db in range(8):
                for qb in range(2, 4):
                    o = aq(A_O + (db * 4 + qb) * 4)
                    out.append(mfma16(o, aq(A_V + (ks * 8 + db) * 4), vq(P[par] + 4 * (ks * 2 + qb - 2)), o))
    return out


def k_reads(typ):
    n = 8 if typ == "D" else 16
    out = [f"ds_read_b128 {aq(A_K + 4*i)}, v{V_K} offset:{i*1024}" for i in range(n)]
    out.append(f"v_add_u32 v{V_K}, {n*1024}, v{V_K}\nv_and_b32 v{V_K}, 0xffff, v{V_K}")
    return out


def v_reads(typ):
    n = 8 if typ == "D" else 16
    out = [f"ds_read_b128 {aq(A_V + 4*i)}, v{V_V} offset:{i*1024}" for i in range(n)]
    out.append(f"v_add_u32 v{V_V}, {n*1024}, v{V_V}\nv_and_b32 v{V_V}, 0xffff, v{V_V}\nv_or_b32 v{V_V}, 0x10000, v{V_V}")
    return out


def sm_stream(par):
    ops = []
    pend = []
    n = 0
    for j in range(4):
        for half in range(2):
            sl = j + 4 * half
            for pr in range(2):
                t = ET + (n % 8) * 2
                n += 1
                s0 = S[par] + 4 * sl + 2 * pr
                ops.append(f"v_exp_f32 v{t}, v{s0}")
                ops.append(f"v_exp_f32 v{t+1}, v{s0+1}")
                ops += pend
                if half == 0 and pr == 0:
                    pend = [f"v_add_f32 v{LT+j}, v{t}, v{t+1}"]
                else:
                    pend = [f"v_add_f32 v{LT+j}, v{LT+j}, v{t}", f"v_add_f32 v{LT+j}, v{LT+j}, v{t+1}"]
                pend.append(f"v_cvt_pk_bf16_f32 v{P[par] + 4*j + 2*half + pr}, v{t}, v{t+1}")
    ops.append("s_nop 0")
    ops += pend
    return ops


def l_update(typ):
    return [f"v_add_f32 v{L + (j if typ == 'D' else 2 + j % 2)}, v{L + (j if typ == 'D' else 2 + j % 2)}, v{LT+j}" for j in range(4)]


def dma_group(mall=None):
    out = []
    if "nodma" in KN: return []
    for i in range(4):
        t = ""
        if i == 0:
            t = "s_mov_b32 m0, s34\ns_nop 0\n"
        out.append(t + f"buffer_load_dwordx4 v{V_LANE16}, s[16:19], s32 offen offset:{i*1024}{LDF} lds")
    for i in range(4):
        t = ""
        if i == 0:
            t = "s_mov_b32 m0, s35\ns_nop 0\n"
        out.append(t + f"buffer_load_dwordx4 v{V_LANE16}, s[20:23], s33 offen offset:{i*1024}{LDF} lds")
    if mall:
        l = mall.uid("k2_mpf")
        out.append(f"s_add_u32 s61, s61, 1\ns_and_b32 s31, s61, 3\ns_cbranch_scc1 {l}\n"
                   f"buffer_load_dword v{V_T2}, v{V_PF}, s[12:15], s62 offen\ns_add_u32 s62, s62, 0x2000\n{l}:")
    out.append("s_add_u32 s32, s32, 0x80000\ns_add_u32 s33, s33, 0x80000\n"
               "s_add_u32 s34, s34, 0x4000\ns_and_b32 s34, s34, 0xffff\n"
               "s_add_u32 s35, s35, 0x4000\ns_and_b32 s35, s35, 0xffff\ns_or_b32 s35, s35, 0x10000")
    return out


def cin_prep(a, typ):
    a(f"s_sub_u32 s40, s36, s{38 if typ == 'D' else 39}")
    a(f"v_subrev_u32 v{V_T}, s40, v{V_VV}")
    kbs, qbs = (range(2), range(2)) if typ == "D" else (range(4), range(2, 4))
    diffs = sorted({kb - (qb % 2) for kb in kbs for qb in qbs})
    for di, df in enumerate(diffs):
        base = 44 + (di % 2) * 10
        for r in range(4):
            a(f"v_cmp_gt_i32 s[{base+2*r}:{base+2*r+1}], {16*df + r}, v{V_T}")
        first = True
        for kb in kbs:
            for qb in qbs:
                if kb - (qb % 2) != df:
                    continue
                if first:
                    a("s_nop 1")
                    first = False
                for r in range(4):
                    a(f"v_cndmask_b32 v{CIN + 4*slot_of(typ, kb, qb) + r}, v{NEGM+qb}, v{V_NINF}, s[{base+2*r}:{base+2*r+1}]")
    a("s_nop 1")


def row_max(a, typ, par, clamp0):
    for qb in (range(4) if typ == "D" else range(2, 4)):
        sls = [slot_of(typ, kb, qb) for kb in (range(2) if typ == "D" else range(4))]
        rs = [S[par] + 4 * sl + r for sl in sls for r in range(4)]
        d = DL + qb
        a(f"v_max_f32 v{d}, v{rs[0]}, v{rs[1]}")
        for i in range(2, len(rs), 2):
            a(f"v_max3_f32 v{d}, v{d}, v{rs[i]}, v{rs[i+1]}")
        for sw in ("v_permlane16_swap_b32", "v_permlane32_swap_b32"):
            a(f"v_mov_b32 v{V_T}, v{d}")
            a("s_nop 1")
            a(f"{sw} v{d}, v{V_T}")
            a("s_nop 1")
            a(f"v_max_f32 v{d}, v{d}, v{V_T}")
        if clamp0:
            a(f"v_max_f32 v{d}, 0, v{d}")


def qb_of_slot(typ, sl):
    return sl % 4 if typ == "D" else 2 + (sl % 2)


def rare_path(a, sm_typ, qk_typ, par, ret):
    a("s_nop 7")
    row_max(a, sm_typ, par, True)
    qbs = range(4) if sm_typ == "D" else range(2, 4)
    for sl in range(8):
        for r in range(4):
            x = S[par] + 4 * sl + r
            a(f"v_sub_f32 v{x}, v{x}, v{DL + qb_of_slot(sm_typ, sl)}")
    if qk_typ is not None:
        for sl in range(8):
            for r in range(4):
                x = S[1 - par] + 4 * sl + r
                a(f"v_sub_f32 v{x}, v{x}, v{DL + qb_of_slot(qk_typ, sl)}")
                x = CIN + 4 * sl + r
                a(f"v_sub_f32 v{x}, v{x}, v{DL + qb_of_slot(qk_typ, sl)}")
    for qb in qbs:
        a(f"v_sub_f32 v{NEGM+qb}, v{NEGM+qb}, v{DL+qb}")
        a(f"v_exp_f32 v{DL+qb}, -v{DL+qb}")
    a("s_nop 0")
    for qb in qbs:
        a(f"v_mul_f32 v{L+qb}, v{L+qb}, v{DL+qb}")
    for db in range(8):
        for qb in qbs:
            o = A_O + (db * 4 + qb) * 4
            for r in range(4):
                a(f"v_accvgpr_read_b32 v{TMP+r}, a{o+r}")
            for r in range(4):
                a(f"v_mul_f32 v{TMP+r}, v{TMP+r}, v{DL+qb}")
            for r in range(4):
                a(f"v_accvgpr_write_b32 a{o+r}, v{TMP+r}")
    for t in sm_stream(par):
        a(t)
    a("s_nop 1")
    a(f"s_branch {ret}")


def sm_ops(par, lo, hi, lupd):
    ops, adds, cvts = [], [], []
    users = {}
    n = 0
    lastadd = {}
    for j in range(4):
        for half in range(2):
            sl = j + 4 * half
            for pr in range(2):
                t = ET + (n % 8) * 2
                w = lo + (hi - lo) * n / 16.0
                step = (hi - lo) / 16.0
                s0 = S[par] + 4 * sl + 2 * pr
                war = users.get(t, [])
                e0 = Op(f"v_exp_f32 v{t}, v{s0}", "E", w, after=war)
                e1 = Op(f"v_exp_f32 v{t+1}, v{s0+1}", "E", w + step / 2, after=war)
                if half == 0 and pr == 0:
                    ad = [Op(f"v_add_f32 v{LT+j}, v{t}, v{t+1}", "A", w + step, after=[e0, e1] + ([lupd[j]] if lupd else []))]
                else:
                    a0 = Op(f"v_add_f32 v{LT+j}, v{LT+j}, v{t}", "A", w + step * 0.6, after=[e0, lastadd[j]])
                    ad = [a0, Op(f"v_add_f32 v{LT+j}, v{LT+j}, v{t+1}", "A", w + step, after=[e1, a0])]
                lastadd[j] = ad[-1]
                cv = Op(f"v_cvt_pk_bf16_f32 v{P[par] + 4*j + 2*half + pr}, v{t}, v{t+1}", "A", w + step * 1.2, after=[e0, e1])
                users[t] = ad + [cv]
                ops += [e0, e1] + ad + [cv]
                adds += ad
                cvts.append(cv)
                n += 1
    return ops, list(lastadd.values()), cvts


def nfr(typ):
    return 8 if typ == "D" else 16


def rd_text(which, i):
    base, va = (A_K, V_K) if which == "K" else (A_V, V_V)
    return f"ds_read_b128 {aq(base + 4*i)}, v{va} offset:{i*1024}"


def ptr_ops(typ, which, lo, want, after):
    va, sp, lane = (V_K, 52, V_LANE16) if which == "K" else (V_V, 53, V_LANEV)
    s1 = Op(f"s_add_u32 s{sp}, s{sp}, {nfr(typ)*1024}", "S", lo + 1, lo=lo)
    s2 = Op(f"s_and_b32 s{sp}, s{sp}, 0xffff", "S", lo + 3, lo=lo, after=[s1])
    up = Op(f"v_add_u32 v{va}, s{sp}, v{lane}", "A", want, after=list(after) + [s2])
    return [s1, s2, up]


def dma_ops(h, lo, hi, after, pf=False):
    srd, so, lp = (("s[16:19]", 32, 34), ("s[20:23]", 33, 35))[h]
    step = (hi - lo - 1) / (5.0 if pf else 4.0)
    m = Op(f"s_mov_b32 m0, s{lp}", "S", lo, lo=lo, after=after)
    ops = [m]
    last = None
    for i in range(4):
        v = Op(f"buffer_load_dwordx4 v{V_LANE16}, {srd}, s{so} offen offset:{i*1024}{LDF} lds", "V", lo + 1 + step * i, lo=lo,
               after=[last] if last else [], prev_gap=[m], hard=hi - 1)
        ops.append(v)
        last = v
    b = [Op(f"s_add_u32 s{so}, s{so}, 0x80000", "S", lo + 2 + step * 3, after=[last])]
    b.append(Op(f"s_add_u32 s{lp}, s{lp}, 0x4000", "S", lo + step, after=[m]))
    b.append(Op(f"s_and_b32 s{lp}, s{lp}, 0xffff", "S", lo + step * 2, after=[b[-1]]))
    if h:
        b.append(Op(f"s_or_b32 s{lp}, s{lp}, 0x10000", "S", lo + step * 2.5, after=[b[-1]]))
    if pf and "nomall" not in KN:
        p = Op(f"buffer_load_dword v{V_T2}, v{V_PF}, s[12:15], s62 offen", "V", lo + 1 + step * 4, after=[last], hard=hi - 1)
        b += [p, Op("s_add_u32 s62, s62, 0x1000", "S", lo + 2 + step * 4, after=[p])]
    return ops + b, last


def body(a, outl, u_par, qk, sm, pv, vread, sync, prep, dk=None, dv=None, tail=()):
    par = u_par
    mf = (pv_mfmas(pv, 1 - par) if pv else []) + (qk_mfmas(qk, 1 - par) if qk else [])
    n1 = 32 if pv else 0
    n = len(mf)
    ops, pre = [], []
    carried = []
    lupd = None
    chain = []
    vup = None

    def add_reads(which, idxs, lo, hi, extra=(), los=None):
        out = []
        for k, i in enumerate(idxs):
            o = Op(rd_text(which, i), "M", lo + (hi - lo) * k / len(idxs), lo=(los[k] if los else lo) , after=(chain[-1:] + list(extra)))
            chain.append(o)
            out.append(o)
        return out

    def waits(which, typ, g0, rds):
        m = nfr(typ)
        base = A_K if which == "K" else A_V
        for i in range(0, m, 2):
            g = g0 + i * (32 // m) - 1
            need = [rds[j] for j in (i, i + 1) if rds.get(j) is not None]
            t = f"@LGKM {base + 4*(i+1)}"
            if g < 0:
                pre.append(t)
            else:
                for r in need:
                    r.hard = max(0, g - 4) if r.hard is None else r.hard
                ops.append(Op(t, "S", g, lo=g, hard=g, after=need))

    bar = None
    dlast = []
    if dv:
        o, l = dma_ops(1, dv[0], dv[1], [], pf=(pv == "D" and qk == "D"))
        ops += o
        dlast.append(l)
    if sync == "mid":
        bar = Op("s_waitcnt vmcnt(12)\ns_barrier", "S", n1, lo=n1, hard=n1, after=dlast)
    elif sync == "end":
        bar = Op("s_waitcnt vmcnt(8)\ns_barrier", "S", n - 1, lo=n - 1, hard=n - 1, after=dlast)
    elif sync == "epi":
        bar = Op("s_waitcnt vmcnt(0)\ns_barrier", "S", 0, lo=0, hard=0)
    if bar:
        ops.append(bar)
    if dk:
        o, l = dma_ops(0, dk[0], dk[1], [bar] if sync == "mid" else [])
        ops += o
    if pv:
        lupd = spread(l_update(pv), "A", 0, 3)
        ops += lupd
        m = nfr(pv)
        if sm or qk:
            carried = [A_V + 4 * i for i in range(m // 2)]
            r = add_reads("V", range(m // 2, m), 0, 14)
            ops += r
            po = ptr_ops(pv, "V", 2, 18, r[-1:])
            vup = po[-1]
            ops += po
            waits("V", pv, 0, dict(zip(range(m // 2, m), r)))
        else:
            carried = [A_V + 4 * i for i in range(m)]
            waits("V", pv, 0, {})
    if qk:
        m = nfr(qk)
        if pv:
            r = add_reads("K", range(m), 15, 46)
            ops += r + ptr_ops(qk, "K", 40, 50, r[-1:])
            waits("K", qk, n1, dict(zip(range(m), r)))
        else:
            pre += [rd_text("K", i) for i in range(m)] + [x.text for x in ptr_ops(qk, "K", 0, 0, [])]
            pre.append("s_waitcnt lgkmcnt(0)")
        if prep:
            pl, pr = a.uid("k2_prep"), a.uid("k2_prepret")
            if prep == "cond":
                t = f"s_cmp_ge_u32 s36, s{42 if qk == 'D' else 43}\ns_cbranch_scc1 {pl}\n{pr}:"
            else:
                t = f"s_branch {pl}\n{pr}:"
            outl.append(("prep", pl, qk, pr))
            if pv:
                ops.append(Op(t, "B", 24, lo=4, hard=n1 - 3))
            else:
                pre.append(t)
        ops.append(Op(f"s_add_u32 s36, s36, {32 if qk == 'D' else 64}", "S", n1 + 4, lo=n1))
    if vread:
        m = nfr(vread)
        ex = ([vup] if vup else []) + ([bar] if sync in ("mid", "epi") else [])
        if qk:
            ops += add_reads("V", range(m // 2), n - 17, n - 2, ex)
        else:
            ops += add_reads("V", range(m), 16, n + 4, ex, los=[2 * i + 2 for i in range(m)])
    if sm:
        so, adds, cvts = sm_ops(par, 0, n - 5, lupd)
        ops += so
        rl, ret = a.uid("k2_rare"), a.uid("k2_ret")
        c1 = Op(f"v_max3_f32 v{V_T}, v{LT}, v{LT+1}, v{LT+2}", "A", n - 6, after=adds[:3])
        c2 = Op(f"v_max_f32 v{V_T}, v{V_T}, v{LT+3}", "A", n - 3, after=[c1, adds[3]])
        c3 = Op(f"v_cmp_nge_f32 vcc, s37, v{V_T}", "A", n - 2, after=[c2])
        c4 = Op(f"s_cbranch_vccnz {rl}\n{ret}:", "B", n + 99, lo=n, after=[c3] + cvts)
        ops += [c1, c2, c3, c4]
        outl.append(("rare", rl, sm, qk, par, ret))
    for t in tail:
        ops.append(Op(t, "S", n - 8))
    start = len(a.lines)
    for t in pre:
        a(t)
    schedule(a, mf, ops)
    resolve_lgkm(a.lines, start, carried)
    for i in range(start, len(a.lines)):
        t = a.lines[i]
        if "nods" in KN and "ds_read" in t: a.lines[i] = f"    v_mov_b32 v{V_T2}, v{V_T2}"
        if "nodma" in KN and " lds" in t: a.lines[i] = f"    v_mov_b32 v{V_T2}, v{V_T2}"
        if "nobar" in KN and "s_barrier" in t: a.lines[i] = "    s_nop 0"
        if "nolgkm" in KN and "lgkmcnt" in t: a.lines[i] = "    s_nop 0"
        if KN & {"nods", "nodma", "nobar", "nolgkm"} and "s_cbranch_vccnz" in t: a.lines[i] = "    s_nop 0"


def kv_first():
    out = ["s_mov_b32 s32, s60", "s_mov_b32 s34, s60", "s_mov_b32 s33, s60", "s_add_u32 s35, s60, 0x10000"]
    return out


def attention_phase(a, end, kidx, qsrc, early=False):
    if not early:
        a("s_waitcnt vmcnt(0) lgkmcnt(0)")
        a("s_barrier")
        for t in kv_first():
            a(t)
        for i in range(4):
            t = "s_mov_b32 m0, s34\ns_nop 0\n" if i == 0 else ""
            a(t + f"buffer_load_dwordx4 v{V_LANE16}, s[16:19], s32 offen offset:{i*1024}{LDF} lds")
        a("s_add_u32 s32, s32, 0x80000")
        a("s_add_u32 s34, s34, 0x4000")
        for t in dma_group():
            a(t)
    a(f"s_load_dwordx2 s[44:45], s[0:1], {ARG['wo']}")
    a(f"s_load_dwordx2 s[46:47], s[0:1], {ARG['wg']}")
    a(f"s_load_dwordx4 s[48:51], s[0:1], {ARG['wu']}")
    a(f"s_mov_b32 s40, 0x{QSCALE:x}")
    a(f"s_mov_b32 s41, 0x{QSCALE:x}")
    if early:
        for t in dma_group():
            a(t)
    a("s_nop 4")
    for qb in (2, 3, 0, 1):
        if not early and qb in (0, 1):
            for t in dma_group():
                a(t)
        for c in range(4):
            for hh in range(2):
                kind, x = qsrc(2 * c + hh, qb)
                if kind == "a":
                    y = 128 + (c % 2) * 8 + hh * 4
                    for r in range(4):
                        a(f"v_accvgpr_read_b32 v{y+r}, a{x+r}")
                    x = y
                a(f"v_pk_mul_f32 v[{x}:{x+1}], v[{x}:{x+1}], s[40:41]")
                a(f"v_pk_mul_f32 v[{x+2}:{x+3}], v[{x+2}:{x+3}], s[40:41]")
                d = Q + (qb * 4 + c) * 4 + 2 * hh
                a(f"v_cvt_pk_bf16_f32 v{d}, v{x}, v{x+1}")
                a(f"v_cvt_pk_bf16_f32 v{d+1}, v{x+2}, v{x+3}")
    if early:
        zero_acc(a, 0, 128, 128)
    a("s_waitcnt lgkmcnt(0)")
    a("s_cmp_eq_u32 s30, 1")
    a("s_cselect_b64 s[12:13], s[46:47], s[44:45]")
    a("s_cmp_eq_u32 s30, 2")
    a("s_cselect_b64 s[12:13], s[48:49], s[12:13]")
    a("s_cmp_eq_u32 s30, 3")
    a("s_cselect_b64 s[12:13], s[50:51], s[12:13]")
    a("s_and_b32 s13, s13, 0xffff")
    a("s_mul_i32 s62, s28, 63")
    a("s_mul_i32 s31, s29, s29")
    a("s_add_u32 s62, s62, s31")
    a("s_sub_u32 s62, s62, 1")
    a("s_lshl_b32 s62, s62, 12")
    a("s_cmp_eq_u32 s30, 0")
    a("s_cselect_b32 s14, 0x800000, 0x0")
    a("s_max_u32 s14, s14, 0x700000")
    a("s_cmp_eq_u32 s29, 0")
    a("s_cselect_b32 s14, 0, s14")
    a("s_cselect_b32 s62, 0, s62")
    a(f"v_lshlrev_b32 v{V_PF}, 2, v{V_LANE16}")
    a(f"v_mov_b32 v{V_K}, v{V_LANE16}")
    a(f"v_or_b32 v{V_V}, 0x10000, v{V_LANE16}")
    a(f"v_mov_b32 v{V_LANEV}, v{V_V}")
    a("s_mov_b32 s52, 0")
    a("s_mov_b32 s53, 0")
    for i in range(4):
        a(f"v_mov_b32 v{NEGM+i}, 0")
        a(f"v_mov_b32 v{L+i}, 0")
    for i in range(32):
        a(f"v_mov_b32 v{CIN+i}, 0")
    a("s_mov_b32 s36, 0")
    a(f"s_mov_b32 s37, 0x{THRESH:x}")
    a("s_waitcnt vmcnt(16)")
    a("s_barrier")
    stamp(a, 4)
    outl = []
    body(a, outl, 1, "D", None, None, None, None, "cond")
    a("s_nop 7")
    row_max(a, "D", 0, False)
    for sl in range(8):
        for r in range(4):
            a(f"v_sub_f32 v{S[0]+4*sl+r}, v{S[0]+4*sl+r}, v{DL + sl % 4}")
            a(f"v_sub_f32 v{CIN+4*sl+r}, 0, v{DL + sl % 4}")
    for qb in range(4):
        a(f"v_sub_f32 v{NEGM+qb}, 0, v{DL+qb}")
    body(a, outl, 0, "D", "D", None, "D", "end", "cond")
    a("s_lshl_b32 s63, s29, 1")
    a("s_add_u32 s63, s63, 1")
    loop = a.uid("k2_dloop")
    a.label(loop)
    body(a, outl, 1, "D", "D", "D", "D", None, "cond", dk=(2, 60))
    body(a, outl, 0, "D", "D", "D", "D", "end", "cond", dv=(2, 60), tail=["s_sub_u32 s63, s63, 1"])
    a("s_cmp_lg_u32 s63, 0")
    a(f"s_cbranch_scc1 {loop}")
    stamp(a, 5)
    body(a, outl, 1, "S", "D", "D", "D", None, "always", dk=(2, 60))
    body(a, outl, 0, "S", "S", "D", "S", "mid", "cond", dv=(1, 31), dk=(33, 63))
    a("s_lshl_b32 s63, s29, 1")
    a("s_sub_u32 s63, 14, s63")
    loop, done = a.uid("k2_sloop"), a.uid("k2_sdone")
    a("s_cmp_eq_u32 s63, 0")
    a(f"s_cbranch_scc1 {done}")
    a.label(loop)
    body(a, outl, 1, "S", "S", "S", "S", "mid", "cond", dv=(1, 31), dk=(33, 63))
    body(a, outl, 0, "S", "S", "S", "S", "mid", "cond", dv=(1, 31), dk=(33, 63), tail=["s_sub_u32 s63, s63, 1"])
    a("s_cmp_lg_u32 s63, 0")
    a(f"s_cbranch_scc1 {loop}")
    a.label(done)
    body(a, outl, 1, None, "S", "S", "S", "epi", None)
    body(a, outl, 0, None, None, "S", None, None, None)
    stamp(a, 6)
    for qb in range(4):
        for sw in ("v_permlane16_swap_b32", "v_permlane32_swap_b32"):
            a(f"v_mov_b32 v{V_T}, v{L+qb}")
            a("s_nop 1")
            a(f"{sw} v{L+qb}, v{V_T}")
            a("s_nop 1")
            a(f"v_add_f32 v{L+qb}, v{L+qb}, v{V_T}")
        a(f"v_rcp_f32 v{L+qb}, v{L+qb}")
    a("s_lshl_b32 s31, s28, 19")
    a("s_lshl_b32 s40, s38, 6")
    a("s_add_u32 s40, s40, s31")
    a("s_lshl_b32 s44, s39, 6")
    a("s_add_u32 s44, s44, s31")
    for c in range(1, 4):
        a(f"s_add_u32 s{40+c}, s40, {c*0x20000}")
        a(f"s_add_u32 s{44+c}, s44, {c*0x20000}")
    n = 0
    for qb in range(4):
        for c in range(4):
            t = 128 + (n % 4) * 12
            n += 1
            for hh in range(2):
                o = A_O + ((2 * c + hh) * 4 + qb) * 4
                for r in range(4):
                    a(f"v_accvgpr_read_b32 v{t+4+hh*4+r}, a{o+r}")
            for r in range(8):
                a(f"v_mul_f32 v{t+4+r}, v{t+4+r}, v{L+qb}")
            for r in range(4):
                a(f"v_cvt_pk_bf16_f32 v{t+r}, v{t+4+2*r}, v{t+5+2*r}")
            a(f"buffer_store_dwordx4 v[{t}:{t+3}], v{V_LANE16}, s[24:27], s{40+(qb//2)*4+c} offen offset:{(qb%2)*1024}")
    tr_dump(a, 6, 30, V_LANE16)
    stamp_dump(a, kidx, 7, 6)
    a.label(end)
    a("s_endpgm")
    for o in outl:
        if o[0] == "prep":
            a.label(o[1])
            cin_prep(a, o[2])
            a(f"s_branch {o[3]}")
    for o in outl:
        if o[0] == "rare":
            a.label(o[1])
            rare_path(a, *o[2:])


def gen_k2(a, name="k2_kernel"):
    a.begin_kernel(name)
    end = a.uid("k2_end")
    a("s_cmp_ge_u32 s2, 256")
    a(f"s_cbranch_scc1 {end}")
    stamp(a, 0)
    a(f"s_load_dwordx2 s[4:5], s[0:1], {ARG['wq']}")
    a(f"s_load_dwordx2 s[6:7], s[0:1], {ARG['ws']}")
    a("s_and_b32 s28, s2, 7")
    a("s_lshl_b32 s28, s28, 2")
    a("s_lshr_b32 s29, s2, 3")
    a("s_and_b32 s31, s29, 3")
    a("s_add_u32 s28, s28, s31")
    a("s_lshr_b32 s29, s29, 2")
    a("v_lshrrev_b32 v10, 6, v0")
    a("v_and_b32 v11, 63, v0")
    a("v_readfirstlane_b32 s30, v10")
    a(f"v_lshlrev_b32 v{V_LANE16}, 4, v11")
    a("s_lshl_b32 s38, s29, 7")
    a("s_sub_u32 s39, 1920, s38")
    a("s_lshl_b32 s31, s30, 5")
    a("s_mov_b32 s42, s38")
    a("s_mov_b32 s43, s39")
    a("s_add_u32 s38, s38, s31")
    a("s_add_u32 s39, s39, s31")
    a("s_lshl_b32 s31, s38, 6")
    a(f"v_add_u32 v12, s31, v{V_LANE16}")
    a("s_lshl_b32 s31, s39, 6")
    a(f"v_add_u32 v13, s31, v{V_LANE16}")
    a("v_lshrrev_b32 v20, 4, v11")
    a("v_bfe_u32 v21, v11, 1, 3")
    a("v_and_b32 v22, 1, v11")
    a("v_lshl_add_u32 v23, v10, 4, v20")
    a("v_lshlrev_b32 v23, 13, v23")
    a("v_lshl_add_u32 v23, v22, 4, v23")
    a("s_lshl_b32 s31, s28, 8")
    a("v_add_u32 v23, s31, v23")
    a("v_xor_b32 v21, v21, v20")
    for i in range(4):
        a(f"v_xor_b32 v22, {(i // 2) << 2}, v21")
        a(f"v_lshl_add_u32 v22, v22, 5, v23")
        a(f"v_add_u32 v{16+i}, {4*i*8192 - i*1024}, v22")
    a("s_waitcnt lgkmcnt(0)")
    a.srd_off(8, 6, XN_OFF, 4 << 20)
    a.srd(12, 4, 8 << 20)
    a("s_lshl_b32 s60, s30, 12")
    a("s_mov_b32 s61, 0")
    a("s_mov_b32 s62, 0")
    XR = 128

    def wdma(slot):
        out = []
        for i in range(4):
            t = f"s_add_u32 m0, s60, {slot*16384}\ns_nop 0\n" if i == 0 else ""
            out.append(t + f"buffer_load_dwordx4 v{16+i}, s[12:15], s61 offen offset:{i*1024} lds")
        out.append("s_add_u32 s61, s61, 0x80000")
        return out

    def xloads(slot):
        out = [f"buffer_load_dwordx4 {aq(XR + slot*16 + 4*qb)}, v{12+qb//2}, s[8:11], s62 offen offset:{(qb%2)*1024}" for qb in range(4)]
        out.append("s_add_u32 s62, s62, 0x20000")
        return out

    DX = int(os.environ.get("K2DX", "3")); DW = int(os.environ.get("K2DW", "2")); DP = int(os.environ.get("K2DP", "40"))
    init, first, waits = ring_plan(DX, DW, trips=4)
    for (kind, i) in init:
        for t in (wdma(i) if kind == "W" else xloads(i)):
            a(t)
    a(f"s_add_u32 s55, s30, {DP-4}")
    a("s_lshl_b32 s55, s55, 18")
    a("s_lshr_b32 s56, s2, 3")
    a("s_lshl_b32 s56, s56, 13")
    a("s_add_u32 s55, s55, s56")
    a("v_lshlrev_b32 v33, 7, v11")
    pf0 = "buffer_load_dword v34, v33, s[8:11], s55 offen\ns_add_u32 s55, s55, 0x100000"

    def pf(st):
        l = a.uid("k2_pf")
        return f"s_cmp_lg_u32 s30, {st}\ns_cbranch_scc1 {l}\n{pf0}\n{l}:"
    a(pf0)
    stamp(a, 1)
    a("s_lshl_b32 s31, s28, 14")
    a(f"s_add_u32 s16, s6, s31")
    a("s_addc_u32 s17, s7, 0")
    a(f"s_add_u32 s20, s16, 0x{VF_OFF:x}")
    a("s_addc_u32 s21, s17, 0")
    a(f"s_add_u32 s16, s16, 0x{KF_OFF:x}")
    a("s_addc_u32 s17, s17, 0")
    a("s_and_b32 s17, s17, 0xffff")
    a("s_and_b32 s21, s21, 0xffff")
    a("s_lshl_b32 s31, s29, 20")
    a("s_sub_u32 s18, 0xf84000, s31")
    a("s_mov_b32 s22, s18")
    a("s_mov_b32 s19, 0x00020000")
    a("s_mov_b32 s23, 0x00020000")
    a.srd_off(24, 6, CTX_OFF, 16 << 20)
    a("v_and_b32 v21, 15, v11")
    a("v_lshrrev_b32 v22, 2, v21")
    a("v_and_b32 v23, 1, v20")
    a("v_lshl_add_u32 v23, v23, 2, v22")
    a("v_lshl_add_u32 v22, v20, 3, v22")
    a("v_lshlrev_b32 v22, 8, v22")
    a("v_and_b32 v32, 3, v11")
    a("v_lshl_add_u32 v22, v32, 3, v22")
    for j in range(8):
        a(f"v_xor_b32 v32, {j}, v23")
        a(f"v_lshl_add_u32 v{24+j}, v32, 5, v22")
    a(f"v_lshlrev_b32 v32, 2, v20")
    a(f"v_sub_u32 v{V_VV}, v21, v32")
    a(f"v_mov_b32 v{V_NINF}, 0xff800000")
    for i in range(128):
        a(f"v_accvgpr_write_b32 a{i}, 0")
    for i in range(128):
        a(f"v_mov_b32 v{128+i}, 0")
    FW = [64, 96]

    def wreads(slot, sp, buf):
        out = []
        for j in range(8):
            b = FW[buf] + 4 * j
            out.append(f"ds_read_b64_tr_b16 v[{b}:{b+1}], v{24+j} offset:{slot*16384 + sp*8192}")
            out.append(f"ds_read_b64_tr_b16 v[{b+2}:{b+3}], v{24+j} offset:{slot*16384 + sp*8192 + 1024}")
        return out

    def qproj_mfmas(buf, slot):
        out = []
        for db in range(8):
            for qb in range(4):
                c = vq(128 + (db * 4 + qb) * 4)
                out.append(mfma16(c, vq(FW[buf] + 4 * db), aq(XR + slot * 16 + 4 * qb), c))
        return out

    a(f"s_waitcnt vmcnt({first + 1})")
    a("s_barrier")
    for t in wreads(0, 0, 0):
        a(t)
    stamp(a, 2)
    a("s_mov_b32 s63, 0")
    loop = a.uid("k2_qloop")
    a.label(loop)
    for ks in range(8):
        st, sp = ks // 2, ks % 2
        a(f"s_waitcnt vmcnt({waits[ks]}) lgkmcnt(0)")
        if sp == 0:
            weave2(a, qproj_mfmas(0, ks), [(wreads(st, 1, 1), 0, 20), (xloads((ks + DX) % 8) + [pf(st)], 4, 28)])
        else:
            a("s_barrier")
            weave2(a, qproj_mfmas(1, ks), [(wreads((st + 1) % 4, 0, 0), 0, 20), (wdma((st + DW) % 4) + xloads((ks + DX) % 8), 2, 30)])
    a("s_add_u32 s63, s63, 1")
    a("s_cmp_lt_u32 s63, 4")
    a(f"s_cbranch_scc1 {loop}")
    stamp(a, 3)
    attention_phase(a, end, 1, lambda db, qb: ('v', 128 + (db * 4 + qb) * 4))
    a.end_kernel(name, 256, 256)
    a.launch(name, 256, 256, 131072)
```

```python
from common import *
import common, os


def vq(b):
    return f"v[{b}:{b+3}]"


def aq(b):
    return f"a[{b}:{b+3}]"


def gen_k3(a, name="k3_kernel"):
    a.begin_kernel(name)
    end = a.uid("k3_end")
    a("s_cmp_ge_u32 s2, 256")
    a(f"s_cbranch_scc1 {end}")
    stamp(a, 0)
    a(f"s_load_dwordx2 s[4:5], s[0:1], {ARG['wo']}")
    a(f"s_load_dwordx2 s[6:7], s[0:1], {ARG['ws']}")
    a(f"s_load_dwordx2 s[28:29], s[0:1], {ARG['x']}")
    a(f"s_load_dwordx2 s[30:31], s[0:1], {ARG['wr']}")
    a("s_and_b32 s40, s2, 7")
    a("s_lshr_b32 s41, s2, 3")
    a("s_and_b32 s42, s40, 3")
    a("s_lshl_b32 s42, s42, 2")
    a("s_and_b32 s43, s41, 3")
    a("s_add_u32 s42, s42, s43")
    a("s_lshr_b32 s43, s40, 2")
    a("s_lshl_b32 s43, s43, 3")
    a("s_lshr_b32 s44, s41, 2")
    a("s_add_u32 s43, s43, s44")
    a("v_lshrrev_b32 v10, 6, v0")
    a("v_and_b32 v11, 63, v0")
    a("v_readfirstlane_b32 s45, v10")
    a("v_lshlrev_b32 v1, 4, v11")
    a("s_lshl_b32 s46, s42, 7")
    a("s_lshl_b32 s47, s45, 5")
    a("s_add_u32 s46, s46, s47")
    a("s_lshl_b32 s47, s46, 6")
    a("v_add_u32 v12, s47, v1")
    a("v_add_u32 v13, 0x20000, v12")
    a("v_lshrrev_b32 v20, 3, v11")
    a("v_bfe_u32 v21, v11, 1, 2")
    a("v_bfe_u32 v22, v11, 4, 2")
    a("v_xor_b32 v21, v21, v22")
    a("v_and_b32 v22, 1, v11")
    a("v_lshl_add_u32 v23, v10, 5, v20")
    a("v_lshlrev_b32 v23, 11, v23")
    a("v_lshl_add_u32 v23, v22, 4, v23")
    a("v_lshl_add_u32 v23, v21, 5, v23")
    a("s_lshl_b32 s47, s43, 7")
    a("v_add_u32 v23, s47, v23")
    for i in range(4):
        a(f"v_add_u32 v{16+i}, {8*i*2048 - i*1024}, v23")
    a("s_waitcnt lgkmcnt(0)")
    a.srd_off(8, 6, CTX_OFF, 16 << 20)
    a.srd(12, 4, 8 << 20)
    a("s_lshl_b32 s60, s45, 12")
    a("s_mov_b32 s61, 0")
    a("s_mov_b32 s62, 0")
    XR = 0

    def wdma(slot):
        out = []
        for i in range(4):
            t = f"s_add_u32 m0, s60, {slot*16384}\ns_nop 0\n" if i == 0 else ""
            out.append(t + f"buffer_load_dwordx4 v{16+i}, s[12:15], s61 offen offset:{i*1024} lds")
        out.append("s_add_u32 s61, s61, 0x40000")
        return out

    def xloads(slot):
        out = [f"buffer_load_dwordx4 {aq(XR + slot*16 + 8*ks + 4*tb)}, v{12+ks}, s[8:11], s62 offen offset:{tb*1024}" for ks in range(2) for tb in range(2)]
        out.append("s_add_u32 s62, s62, 0x40000")
        return out

    DX = int(os.environ.get("K3DX", "3")); DW = int(os.environ.get("K3DW", "2")); DP = int(os.environ.get("K3DP", "40"))
    a("s_and_b32 s51, s41, 15")
    a(f"s_add_u32 s50, s45, {DP-4}")
    a("s_lshl_b32 s52, s50, 2")
    a("s_lshr_b32 s53, s51, 2")
    a("s_add_u32 s52, s52, s53")
    a("s_lshl_b32 s52, s52, 17")
    a("s_and_b32 s53, s51, 3")
    a("s_lshl_b32 s53, s53, 13")
    a("s_add_u32 s52, s52, s53")
    a("s_and_b32 s53, s40, 3")
    a("s_lshl_b32 s53, s53, 15")
    a("s_add_u32 s52, s52, s53")
    a("v_lshlrev_b32 v5, 7, v11")
    a("s_lshl_b32 s53, s50, 18")
    a("s_lshl_b32 s54, s51, 14")
    a("s_add_u32 s53, s53, s54")
    a("s_lshr_b32 s54, s40, 2")
    a("s_lshl_b32 s54, s54, 10")
    a("s_add_u32 s53, s53, s54")
    a("v_and_b32 v6, 7, v11")
    a("v_lshlrev_b32 v6, 7, v6")
    a("v_lshl_add_u32 v6, v20, 11, v6")
    a("s_cmp_lt_u32 s41, 16")
    a("s_cselect_b32 s36, s8, s12")
    a("s_cselect_b32 s37, s9, s13")
    a("s_cselect_b32 s38, s10, s14")
    a("s_mov_b32 s39, 0x00020000")
    a("s_cselect_b32 s55, s52, s53")
    a("s_mov_b32 s56, 0x100000")
    a("s_cselect_b32 s56, 0x200000, s56")
    a("s_cselect_b64 vcc, -1, 0")
    a("v_cndmask_b32 v5, v6, v5, vcc")
    pf0 = "buffer_load_dword v7, v5, s[36:39], s55 offen\ns_add_u32 s55, s55, s56"

    def pf(st):
        l = a.uid("k3_pf")
        return f"s_cmp_lg_u32 s45, {st}\ns_cbranch_scc1 {l}\n{pf0}\n{l}:"
    init, first, waits = ring_plan(DX, DW, trips=8)
    a.srd(16, 28, 4 << 20)
    a.srd(20, 30, 2048)
    a.srd_off(24, 6, H_OFF, 4 << 20)
    a.srd_off(32, 6, STATS_OFF, 3 * 8192)
    a("v_and_b32 v21, 15, v11")
    a("v_lshrrev_b32 v20, 4, v11")
    a("v_add_u32 v22, s46, v21")
    a("v_lshlrev_b32 v2, 2, v22")
    a("v_lshl_add_u32 v2, v20, 13, v2")
    a("v_lshlrev_b32 v22, 11, v22")
    a("v_lshl_add_u32 v14, v20, 3, s47")
    a("v_add_u32 v3, v22, v14")
    a("v_add_u32 v4, 0x8000, v3")
    XE, WR = 96, 112
    for tb in range(2):
        for cb in range(4):
            b = XE + (cb * 2 + tb) * 2
            a(f"buffer_load_dwordx2 v[{b}:{b+1}], v{3+tb}, s[16:19], 0 offen offset:{cb*32}")
    for cb in range(4):
        a(f"buffer_load_dwordx2 v[{WR+2*cb}:{WR+2*cb+1}], v14, s[20:23], 0 offen offset:{cb*32}")
    for (kind, i) in init:
        for t in (wdma(i) if kind == "W" else xloads(i)):
            a(t)
    a(pf0)
    stamp(a, 1)
    a("v_lshrrev_b32 v22, 2, v21")
    a("v_lshl_add_u32 v22, v20, 2, v22")
    a("v_bfe_u32 v23, v22, 1, 2")
    a("v_lshlrev_b32 v22, 7, v22")
    a("v_and_b32 v28, 3, v11")
    a("v_lshl_add_u32 v22, v28, 3, v22")
    for j in range(4):
        a(f"v_xor_b32 v28, {j}, v23")
        a(f"v_lshl_add_u32 v{24+j}, v28, 5, v22")
    ACC = 64
    for i in range(32):
        a(f"v_mov_b32 v{ACC+i}, 0")
    FW = [128, 160]

    def wreads(slot, ph, buf):
        out = []
        for ks in range(2):
            for cb in range(4):
                b = FW[buf] + (ks * 4 + cb) * 4
                off = slot * 16384 + (ph * 2 + ks) * 4096
                out.append(f"ds_read_b64_tr_b16 a[{b}:{b+1}], v{24+cb} offset:{off}")
                out.append(f"ds_read_b64_tr_b16 a[{b+2}:{b+3}], v{24+cb} offset:{off + 2048}")
        return out

    def mf(buf, slot):
        out = []
        for ks in range(2):
            for cb in range(4):
                for tb in range(2):
                    c = vq(ACC + (cb * 2 + tb) * 4)
                    out.append(mfma16(c, aq(FW[buf] + (ks * 4 + cb) * 4), aq(XR + slot * 16 + 8 * ks + 4 * tb), c))
        return out

    a(f"s_waitcnt vmcnt({first + 1})")
    a("s_barrier")
    for t in wreads(0, 0, 0):
        a(t)
    stamp(a, 2)
    a("s_mov_b32 s63, 0")
    loop = a.uid("k3_loop")
    a.label(loop)
    for ph in range(8):
        st, sp = ph // 2, ph % 2
        a(f"s_waitcnt vmcnt({waits[ph]}) lgkmcnt(0)")
        if sp == 0:
            weave2(a, mf(0, ph), [(wreads(st, 1, 1), 0, 10), (xloads((ph + DX) % 8) + [pf(st)], 2, 14)])
        else:
            a("s_barrier")
            weave2(a, mf(1, ph), [(wreads((st + 1) % 4, 0, 0), 0, 10), (wdma((st + DW) % 4) + xloads((ph + DX) % 8), 1, 15)])
    a("s_add_u32 s63, s63, 1")
    a("s_cmp_lt_u32 s63, 8")
    a(f"s_cbranch_scc1 {loop}")
    stamp(a, 3)
    for i in range(8):
        a(f"v_lshlrev_b32 v{32+2*i}, 16, v{WR+i}")
        a(f"v_and_b32 v{33+2*i}, 0xffff0000, v{WR+i}")
    for tb in range(2):
        S1, S2, S3 = 48 + tb * 4, 49 + tb * 4, 50 + tb * 4
        a(f"v_mov_b32 v{S1}, 0\nv_mov_b32 v{S2}, 0\nv_mov_b32 v{S3}, 0")
        for cb in range(4):
            c = ACC + (cb * 2 + tb) * 4
            xb = XE + (cb * 2 + tb) * 2
            for h in range(2):
                a(f"v_cvt_pk_bf16_f32 v56, v{c+2*h}, v{c+2*h+1}")
                a(f"v_lshlrev_b32 v57, 16, v56")
                a(f"v_and_b32 v58, 0xffff0000, v56")
                a(f"v_lshlrev_b32 v59, 16, v{xb+h}")
                a(f"v_and_b32 v60, 0xffff0000, v{xb+h}")
                a(f"v_add_f32 v57, v57, v59")
                a(f"v_add_f32 v58, v58, v60")
                a(f"v_cvt_pk_bf16_f32 v{xb+h}, v57, v58")
                a(f"v_lshlrev_b32 v57, 16, v{xb+h}")
                a(f"v_and_b32 v58, 0xffff0000, v{xb+h}")
                a(f"v_add_f32 v{S1}, v{S1}, v57")
                a(f"v_fmac_f32 v{S2}, v57, v57")
                a(f"v_fmac_f32 v{S3}, v57, v{32+cb*4+2*h}")
                a(f"v_add_f32 v{S1}, v{S1}, v58")
                a(f"v_fmac_f32 v{S2}, v58, v58")
                a(f"v_fmac_f32 v{S3}, v58, v{33+cb*4+2*h}")
            a(f"buffer_store_dwordx2 v[{xb}:{xb+1}], v{3+tb}, s[24:27], 0 offen offset:{cb*32}")
    regs = [48, 49, 50, 52, 53, 54]
    for sw in ("v_permlane16_swap_b32", "v_permlane32_swap_b32"):
        for i, r in enumerate(regs):
            a(f"v_mov_b32 v{56+i}, v{r}")
        a("s_nop 1")
        for i, r in enumerate(regs):
            a(f"{sw} v{r}, v{56+i}")
        a("s_nop 1")
        for i, r in enumerate(regs):
            a(f"v_add_f32 v{r}, v{r}, v{56+i}")
    a("v_cmp_eq_u32 s[48:49], 1, v20")
    a("v_cmp_eq_u32 s[50:51], 2, v20")
    a("s_nop 1")
    for tb in range(2):
        b = 48 + tb * 4
        a(f"v_cndmask_b32 v{b}, v{b}, v{b+1}, s[48:49]")
        a(f"v_cndmask_b32 v{b}, v{b}, v{b+2}, s[50:51]")
        a(f"buffer_atomic_add_f32 v{b}, v2, s[32:35], 0 offen offset:{tb*64}")
    stamp(a, 4)
    stamp_dump(a, 2, 5, 6)
    a.label(end)
    a("s_endpgm")
    a.end_kernel(name, 128, 192)
    a.launch(name, 256, 256, 65536)
```

```python
from common import *
import common

NSL = 224


def top2_merge(a, m1, m2, t1, t2):
    a(f"v_max_u32 v{t2}, v{t2}, v{m2}")
    a(f"v_med3_u32 v{m2}, v{m1}, v{t1}, v{t2}")
    a(f"v_max_u32 v{m1}, v{m1}, v{t1}")


def gen_k4(a, name="k4_kernel"):
    a.begin_kernel(name)
    end = a.uid("k4_end")
    a("s_cmp_ge_u32 s2, 256")
    a(f"s_cbranch_scc1 {end}")
    stamp(a, 0)
    a(f"s_load_dwordx8 s[4:11], s[0:1], {ARG['wr']}")
    a(f"s_load_dwordx2 s[12:13], s[0:1], {ARG['out']}")
    a(f"s_load_dwordx2 s[14:15], s[0:1], {ARG['ws']}")
    a("v_lshrrev_b32 v1, 6, v0")
    a("v_and_b32 v2, 63, v0")
    a("v_readfirstlane_b32 s44, v1")
    a("s_and_b32 s45, s2, 7")
    a("s_lshr_b32 s46, s2, 3")
    a("s_mul_i32 s45, s45, 28")
    a("s_add_u32 s45, s45, s46")
    a("v_lshlrev_b32 v3, 5, v0")
    a("v_and_b32 v4, 31, v2")
    a("v_lshrrev_b32 v5, 5, v2")
    a("v_lshl_add_u32 v6, v1, 1, v5")
    a("s_lshl_b32 s47, s2, 3")
    a("v_add_u32 v6, s47, v6")
    a("v_lshlrev_b32 v6, 11, v6")
    a("v_lshl_add_u32 v6, v4, 4, v6")
    a("v_lshlrev_b32 v7, 4, v4")
    a("v_lshrrev_b32 v8, 1, v2")
    a("v_lshl_add_u32 v8, v1, 8, v8")
    a("v_mul_u32_u24 v8, 7168, v8")
    a("v_and_b32 v9, 1, v2")
    a("v_lshl_add_u32 v8, v9, 4, v8")
    a("s_lshl_b32 s47, s45, 5")
    a("v_add_u32 v8, s47, v8")
    a("v_lshlrev_b32 v9, 3, v0")
    a("s_waitcnt lgkmcnt(0)")
    a.srd_off(16, 14, STATS_OFF, 3 * 8192)
    a.srd_off(20, 14, H_OFF, 4 << 20)
    a.srd(24, 6, 7340032)
    a.srd(28, 8, 7340032)
    a.srd(32, 10, 7340032)
    a.srd(36, 12, 4 << 20)
    a.srd(40, 4, 2048)
    a("s_cmp_ge_u32 s2, 224")
    a("s_cselect_b32 s26, 0, s26")
    a("s_cselect_b32 s30, 0, s30")
    a("s_cselect_b32 s34, 0, s34")
    ST, HO, WRr, HS, WD = 16, 40, 56, 72, 88
    for j in range(3):
        a(f"s_mov_b32 s48, {j*8192}")
        a(f"buffer_load_dwordx4 v[{ST+8*j}:{ST+8*j+3}], v3, s[16:19], s48 offen")
        a(f"buffer_load_dwordx4 v[{ST+8*j+4}:{ST+8*j+7}], v3, s[16:19], s48 offen offset:16")
    for i in range(4):
        a(f"buffer_load_dwordx4 v[{WRr+4*i}:{WRr+4*i+3}], v7, s[40:43], 0 offen offset:{i*512}")
    for i in range(4):
        a(f"buffer_load_dwordx4 v[{HO+4*i}:{HO+4*i+3}], v6, s[20:23], 0 offen offset:{i*512}")
    a("s_and_b32 s49, s45, 3")
    a("s_lshl_b32 s49, s49, 1")
    a("s_lshl_b32 s50, s44, 13")

    def wdma(m, i):
        return (f"s_add_u32 s51, s49, {i}\ns_and_b32 s51, s51, 7\ns_mul_i32 s52, s51, {32*7168}\n"
                f"s_lshl_b32 s51, s51, 10\ns_add_u32 s51, s51, s50\ns_add_u32 m0, s51, {m*32768}\ns_nop 0\n"
                f"buffer_load_dwordx4 v8, s[{24+4*m}:{27+4*m}], s52 offen lds")
    for i in range(2):
        a(wdma(0, i))
        a(wdma(1, i))
    T = 128
    a("s_waitcnt vmcnt(8)")
    for i in range(16):
        a(f"v_lshlrev_b32 v{T+2*i}, 16, v{WRr+i}")
        a(f"v_and_b32 v{T+2*i+1}, 0xffff0000, v{WRr+i}")
    a(f"v_pk_add_f32 v[10:11], v[{T}:{T+1}], v[{T+2}:{T+3}]")
    for i in range(4, 32, 2):
        a(f"v_pk_add_f32 v[10:11], v[10:11], v[{T+i}:{T+i+1}]")
    a("v_add_f32 v10, v10, v11")
    half_wave_sum(a, 10, 11)
    a("v_lshlrev_b32 v12, 3, v0")
    a("v_sub_u32 v12, 2047, v12")
    a("v_mov_b32 v13, 0")
    a("v_mov_b32 v14, 0")
    a("s_mov_b32 s53, 0x3a800000")
    a("s_mov_b32 s54, 0xfffff800")
    for i in range(8):
        s1, s2, s3 = ST + i, ST + 8 + i, ST + 16 + i
        a(f"v_mul_f32 v{s1}, s53, v{s1}")
        a(f"v_mul_f32 v{s2}, s53, v{s2}")
        a(f"v_fma_f32 v{s2}, -v{s1}, v{s1}, v{s2}")
        a(f"v_max_f32 v{s2}, 0, v{s2}")
        a(f"v_add_f32 v{s2}, 0x3727c5ac, v{s2}")
        a(f"v_rsq_f32 v{s2}, v{s2}")
        a(f"v_fma_f32 v{s3}, -v{s1}, v10, v{s3}")
        a(f"v_mul_f32 v{s3}, v{s3}, v{s2}")
        a(f"v_ashrrev_i32 v{s1}, 31, v{s3}")
        a(f"v_or_b32 v{s1}, 0x80000000, v{s1}")
        a(f"v_xor_b32 v{s3}, v{s3}, v{s1}")
        a(f"v_subrev_u32 v{s1}, {i}, v12")
        a(f"v_and_or_b32 v{s3}, v{s3}, s54, v{s1}")
        a(f"v_med3_u32 v14, v13, v14, v{s3}")
        a(f"v_max_u32 v13, v13, v{s3}")
    for dpp in ("quad_perm:[1,0,3,2]", "quad_perm:[2,3,0,1]", "row_half_mirror", "row_mirror"):
        a("s_nop 1")
        a(f"v_mov_b32_dpp v11, v13 {dpp} row_mask:0xf bank_mask:0xf")
        a(f"v_mov_b32_dpp v12, v14 {dpp} row_mask:0xf bank_mask:0xf")
        top2_merge(a, 13, 14, 11, 12)
    for sw in ("v_permlane16_swap_b32", "v_permlane32_swap_b32"):
        a("v_mov_b32 v11, v13")
        a("v_mov_b32 v12, v14")
        a("s_nop 1")
        a(f"{sw} v13, v11")
        a(f"{sw} v14, v12")
        a("s_nop 1")
        top2_merge(a, 13, 14, 11, 12)
    MISC = 81920
    a("v_lshlrev_b32 v11, 3, v1")
    a(f"v_add_u32 v11, {MISC}, v11")
    a("v_mov_b32 v12, v13")
    a("v_mov_b32 v13, v14")
    a("ds_write_b64 v11, v[12:13]")
    a("s_waitcnt lgkmcnt(0)")
    a("s_barrier")
    a(f"v_mov_b32 v11, {MISC}")
    a(f"ds_read_b128 v[{ST}:{ST+3}], v11")
    a(f"ds_read_b128 v[{ST+4}:{ST+7}], v11 offset:16")
    a("s_waitcnt lgkmcnt(0)")
    top2_merge(a, ST, ST + 1, ST + 2, ST + 3)
    top2_merge(a, ST + 4, ST + 5, ST + 6, ST + 7)
    top2_merge(a, ST, ST + 1, ST + 4, ST + 5)
    a("v_cmp_eq_u32 vcc, 0, v5")
    a("s_nop 1")
    a(f"v_cndmask_b32 v11, v{ST+1}, v{ST}, vcc")
    a("v_and_b32 v11, 0x7ff, v11")
    a("v_sub_u32 v15, 2047, v11")
    a("v_lshl_add_u32 v11, v15, 11, v7")
    for i in range(4):
        a(f"buffer_load_dwordx4 v[{HS+4*i}:{HS+4*i+3}], v11, s[20:23], 0 offen offset:{i*512}")
    stamp(a, 1)
    for i in range(2, 5):
        a(wdma(0, i))
        a(wdma(1, i))
    T2, KP = 160, 200
    a("s_waitcnt vmcnt(14)")
    ln_rows_half_wave(a, HO, T2, keep=KP)
    for i in range(16):
        a(f"v_lshlrev_b32 v{T2+2*i}, 16, v{HO+i}")
        a(f"v_and_b32 v{T2+2*i+1}, 0xffff0000, v{HO+i}")
    for i in range(0, 32, 2):
        a(f"v_pk_add_f32 v[{T2+i}:{T2+i+1}], v[{T2+i}:{T2+i+1}], v[{KP+i}:{KP+i+1}]")
    for i in range(16):
        a(f"v_cvt_pk_bf16_f32 v{HO+i}, v{T2+2*i}, v{T2+2*i+1}")
    for i in range(4):
        a(f"buffer_store_dwordx4 v[{HO+4*i}:{HO+4*i+3}], v6, s[36:39], 0 offen offset:{i*512}")
    a("s_cmp_ge_u32 s2, 224")
    a(f"s_cbranch_scc1 {end}")
    stamp(a, 2)
    for i in range(5, 8):
        a(wdma(0, i))
        a(wdma(1, i))
    a("s_lshl_b32 s52, s45, 15")
    for i in range(16):
        a(f"buffer_load_dwordx2 v[{WD+2*i}:{WD+2*i+1}], v9, s[32:35], s52 offen offset:{(i%2)*2048}")
        if i % 2:
            a("s_add_u32 s52, s52, 4096")
    a("s_waitcnt vmcnt(32)")
    ln_rows_half_wave(a, HS, T2)
    a("v_lshlrev_b32 v11, 11, v5")
    a("v_add_u32 v11, v11, v7")
    a("s_lshl_b32 s53, s44, 12")
    a("s_add_u32 s53, s53, 65536")
    a("v_add_u32 v11, s53, v11")
    for i in range(4):
        a(f"ds_write_b128 v11, v[{HS+4*i}:{HS+4*i+3}] offset:{i*512}")
    skip = a.uid("k4_nosel")
    a("s_or_b32 s54, s2, s44")
    a("s_cmp_lg_u32 s54, 0")
    a(f"s_cbranch_scc1 {skip}")
    a.srd_off(56, 14, SEL_OFF, 8192)
    for i in range(16):
        a(f"v_lshlrev_b32 v{T2+2*i}, 16, v{HS+i}")
        a(f"v_and_b32 v{T2+2*i+1}, 0xffff0000, v{HS+i}")
    a(f"v_pk_mul_f32 v[12:13], v[{T2}:{T2+1}], v[{T}:{T+1}]")
    for i in range(2, 32, 2):
        a(f"v_pk_fma_f32 v[12:13], v[{T2+i}:{T2+i+1}], v[{T+i}:{T+i+1}], v[12:13]")
    a("v_add_f32 v12, v12, v13")
    half_wave_sum(a, 12, 13)
    a("v_cvt_pk_bf16_f32 v12, v12, v12")
    a("v_and_b32 v12, 0xffff0000, v12")
    a("v_mul_f32 v12, 0xbfb8aa3b, v12")
    a("v_exp_f32 v12, v12")
    a("s_nop 0")
    a("v_add_f32 v12, 1.0, v12")
    a("v_rcp_f32 v12, v12")
    a("s_nop 0")
    a("v_cvt_pk_bf16_f32 v12, v12, v12")
    a("v_and_b32 v12, 0xffff0000, v12")
    a("v_lshlrev_b32 v13, 2, v5")
    a("buffer_store_dword v15, v13, s[56:59], 0 offen")
    a("buffer_store_dword v12, v13, s[56:59], 0 offen offset:8")
    a("v_lshl_add_u32 v13, v5, 11, v7")
    a("s_mov_b32 s54, 4096")
    for i in range(4):
        a(f"buffer_store_dwordx4 v[{HS+4*i}:{HS+4*i+3}], v13, s[56:59], s54 offen offset:{i*512}")
    a("s_waitcnt vmcnt(0)")
    a.label(skip)
    stamp(a, 3)
    a("v_lshrrev_b32 v12, 4, v2")
    a("v_and_b32 v13, 1, v2")
    a("v_lshlrev_b32 v13, 11, v13")
    a("v_lshl_add_u32 v13, v12, 3, v13")
    a("s_lshl_b32 s54, s44, 9")
    a("s_add_u32 s54, s54, s53")
    a("v_add_u32 v13, s54, v13")
    XF = 160
    a("s_waitcnt lgkmcnt(0)")
    for s in range(8):
        a(f"ds_read_b64 v[{XF+4*s}:{XF+4*s+1}], v13 offset:{s*64}")
        a(f"ds_read_b64 v[{XF+4*s+2}:{XF+4*s+3}], v13 offset:{s*64+32}")
    a("v_lshlrev_b32 v14, 3, v2")
    a("v_add_u32 v14, s50, v14")
    a("s_waitcnt vmcnt(16)")
    WF = 192
    for m in range(2):
        for s in range(8):
            b = WF + (m * 8 + s) * 4
            a(f"ds_read_b64_tr_b16 v[{b}:{b+1}], v14 offset:{m*32768 + s*1024}")
            a(f"ds_read_b64_tr_b16 v[{b+2}:{b+3}], v14 offset:{m*32768 + s*1024 + 512}")
    a("s_waitcnt lgkmcnt(0)")
    for s in range(8):
        for m in range(2):
            b = WF + (m * 8 + s) * 4
            c = f"v[{16+4*m}:{19+4*m}]"
            a(mfma16(c, f"v[{b}:{b+3}]", f"v[{XF+4*s}:{XF+4*s+3}]", "0" if s == 0 else c))
    a("v_and_b32 v13, 15, v2")
    a("v_lshlrev_b32 v13, 6, v13")
    a("v_lshl_add_u32 v13, v12, 4, v13")
    a("s_lshl_b32 s54, s44, 11")
    a(f"s_add_u32 s54, s54, {MISC + 64}")
    a("v_add_u32 v13, s54, v13")
    a("s_nop 4")
    a("ds_write_b128 v13, v[16:19]")
    a("ds_write_b128 v13, v[20:23] offset:1024")
    a("s_waitcnt lgkmcnt(0)")
    a("s_barrier")
    a("v_lshlrev_b32 v13, 2, v4")
    a(f"v_add_u32 v13, {MISC + 64}, v13")
    for w in range(4):
        a(f"ds_read_b32 v{16+w}, v13 offset:{w*2048}")
        a(f"ds_read_b32 v{20+w}, v13 offset:{w*2048 + 1024}")
    a("s_waitcnt lgkmcnt(0)")
    a("v_add_f32 v16, v16, v17\nv_add_f32 v18, v18, v19\nv_add_f32 v20, v20, v21\nv_add_f32 v22, v22, v23")
    a("v_add_f32 v16, v16, v18\nv_add_f32 v20, v20, v22")
    a("v_cvt_pk_bf16_f32 v16, v16, v20")
    a("v_and_b32 v20, 0xffff0000, v16")
    a("v_lshlrev_b32 v16, 16, v16")
    a("v_mul_f32 v17, 0xbfb8aa3b, v16")
    a("v_exp_f32 v17, v17")
    a("s_nop 0")
    a("v_add_f32 v17, 1.0, v17")
    a("v_rcp_f32 v17, v17")
    a("s_nop 0")
    a("v_mul_f32 v16, v16, v17")
    a("v_cvt_pk_bf16_f32 v16, v16, v16")
    a("v_and_b32 v16, 0xffff0000, v16")
    a("v_mul_f32 v16, v16, v20")
    a("s_nop 1")
    a("v_mov_b32_dpp v17, v16 quad_perm:[1,0,3,2] row_mask:0xf bank_mask:0xf")
    a("v_cvt_pk_bf16_f32 v16, v16, v17")
    a("s_nop 0")
    for t in range(2):
        for j in range(8):
            a(f"v_readlane_b32 s{60 - 44 + 0 + t*8 + j}, v16, {t*16 + 2*j}")
    a("s_mov_b32 s54, 0x05040100")
    a("s_mov_b32 s55, 0x07060302")
    a("s_waitcnt vmcnt(0)")
    ACC = 24
    for j in range(8):
        r0, r1 = WD + 4 * j, WD + 4 * j + 2
        for h in range(2):
            a(f"v_perm_b32 v16, v{r1+h}, v{r0+h}, s54")
            a(f"v_perm_b32 v17, v{r1+h}, v{r0+h}, s55")
            for t in range(2):
                for e in range(2):
                    d = ACC + t * 4 + h * 2 + e
                    a(f"v_dot2_f32_bf16 v{d}, v{16+e}, s{16 + t*8 + j}, {'0' if j == 0 else 'v%d' % d}")
    a.srd_off(56, 14, PART_OFF, NSL * 8192)
    a("v_lshlrev_b32 v13, 4, v0")
    a("s_lshl_b32 s54, s45, 13")
    a("s_add_u32 s55, s54, 4096")
    a("s_nop 2")
    a(f"buffer_store_dwordx4 v[{ACC}:{ACC+3}], v13, s[56:59], s54 offen")
    a(f"buffer_store_dwordx4 v[{ACC+4}:{ACC+7}], v13, s[56:59], s55 offen")
    stamp(a, 4)
    stamp_dump(a, 3, 5, 14)
    a.label(end)
    a("s_endpgm")
    a.end_kernel(name, 256)
    a.launch(name, 256, 256, 81920 + 64 + 8192)


def gen_k5(a, name="k5_kernel"):
    a.begin_kernel(name)
    end = a.uid("k5_end")
    a("s_cmp_ge_u32 s2, 64")
    a(f"s_cbranch_scc1 {end}")
    stamp(a, 0)
    a(f"s_load_dwordx2 s[12:13], s[0:1], {ARG['out']}")
    a(f"s_load_dwordx2 s[14:15], s[0:1], {ARG['ws']}")
    a("v_and_b32 v2, 7, v0")
    a("v_lshrrev_b32 v3, 3, v0")
    a("v_lshlrev_b32 v4, 13, v3")
    a("v_lshl_add_u32 v4, v2, 4, v4")
    a("s_lshl_b32 s40, s2, 7")
    a("s_lshr_b32 s41, s2, 5")
    a("s_and_b32 s42, s2, 31")
    a("s_waitcnt lgkmcnt(0)")
    a.srd_off(16, 14, PART_OFF, NSL * 8192)
    a.srd_off(20, 14, SEL_OFF, 8192)
    a.srd_off(24, 14, H_OFF, 4 << 20)
    a.srd(28, 12, 4 << 20)
    a("s_lshl_b32 s43, s41, 2")
    a("v_mov_b32 v5, s43")
    a("buffer_load_dword v6, v5, s[20:23], 0 offen")
    a("buffer_load_dword v7, v5, s[20:23], 0 offen offset:8")
    for i in range(7):
        a(f"buffer_load_dwordx4 v[{16+4*i}:{19+4*i}], v4, s[16:19], s40 offen")
        a("s_add_u32 s40, s40, 0x40000")
    a("s_lshl_b32 s44, s42, 6")
    a("v_lshl_add_u32 v8, v2, 3, s44")
    a("s_lshl_b32 s45, s41, 11")
    a("s_add_u32 s45, s45, 4096")
    a("buffer_load_dwordx2 v[10:11], v8, s[20:23], s45 offen")
    a("s_waitcnt vmcnt(8)")
    a("v_and_b32 v6, 0x7ff, v6")
    a("v_lshl_add_u32 v9, v6, 11, v8")
    a("buffer_load_dwordx2 v[12:13], v9, s[24:27], 0 offen")
    a("s_waitcnt vmcnt(2)")
    for i in range(1, 7):
        a(f"v_pk_add_f32 v[16:17], v[16:17], v[{16+4*i}:{17+4*i}]")
        a(f"v_pk_add_f32 v[18:19], v[18:19], v[{18+4*i}:{19+4*i}]")
    a("s_nop 1")
    for r in range(4):
        a(f"v_add_f32_dpp v{16+r}, v{16+r}, v{16+r} row_ror:8 row_mask:0xf bank_mask:0xf")
    for sw in ("v_permlane16_swap_b32", "v_permlane32_swap_b32"):
        for r in range(4):
            a(f"v_mov_b32 v{20+r}, v{16+r}")
        a("s_nop 1")
        for r in range(4):
            a(f"{sw} v{16+r}, v{20+r}")
        a("s_nop 1")
        for r in range(4):
            a(f"v_add_f32 v{16+r}, v{16+r}, v{20+r}")
    a("v_lshrrev_b32 v14, 6, v0")
    a("v_lshlrev_b32 v14, 7, v14")
    a("v_lshl_add_u32 v14, v2, 4, v14")
    a("ds_write_b128 v14, v[16:19]")
    a("s_waitcnt lgkmcnt(0)")
    a("s_barrier")
    a("v_lshlrev_b32 v14, 4, v2")
    for w in range(4):
        a(f"ds_read_b128 v[{16+4*w}:{19+4*w}], v14 offset:{w*128}")
    a("s_waitcnt vmcnt(0) lgkmcnt(0)")
    for w in range(1, 4):
        a(f"v_pk_add_f32 v[16:17], v[16:17], v[{16+4*w}:{17+4*w}]")
        a(f"v_pk_add_f32 v[18:19], v[18:19], v[{18+4*w}:{19+4*w}]")
    for h in range(2):
        y = 16 + 2 * h
        a(f"v_cvt_pk_bf16_f32 v20, v{y}, v{y+1}")
        a("v_lshlrev_b32 v21, 16, v20\nv_and_b32 v22, 0xffff0000, v20")
        a("v_mul_f32 v21, v21, v7\nv_mul_f32 v22, v22, v7")
        a("v_cvt_pk_bf16_f32 v20, v21, v22")
        a("v_lshlrev_b32 v21, 16, v20\nv_and_b32 v22, 0xffff0000, v20")
        a(f"v_lshlrev_b32 v23, 16, v{10+h}\nv_and_b32 v24, 0xffff0000, v{10+h}")
        a("v_add_f32 v21, v21, v23\nv_add_f32 v22, v22, v24")
        a("v_cvt_pk_bf16_f32 v20, v21, v22")
        a("v_lshlrev_b32 v21, 16, v20\nv_and_b32 v22, 0xffff0000, v20")
        a(f"v_lshlrev_b32 v23, 16, v{12+h}\nv_and_b32 v24, 0xffff0000, v{12+h}")
        a("v_add_f32 v21, v21, v23\nv_add_f32 v22, v22, v24")
        a(f"v_cvt_pk_bf16_f32 v{26+h}, v21, v22")
    a("v_cmp_gt_u32 vcc, 8, v0")
    a("s_and_saveexec_b64 s[46:47], vcc")
    skip = a.uid("k5_skip")
    a(f"s_cbranch_execz {skip}")
    a("buffer_store_dwordx2 v[26:27], v9, s[28:31], 0 offen")
    a.label(skip)
    a("s_mov_b64 exec, s[46:47]")
    stamp_dump(a, 4, 1, 14)
    a.label(end)
    a("s_endpgm")
    a.end_kernel(name, 64)
    a.launch(name, 64, 256, 512)
```

```python
class Op:
    def __init__(self, text, cls, want, lo=0, after=(), hard=None, prev_gap=()):
        self.text, self.cls, self.want, self.lo, self.after, self.hard = text, cls, want, lo, list(after), hard
        self.prev_gap = list(prev_gap)
        self.after += self.prev_gap
        self.slots = {"S": 1, "M": 1, "V": 1, "A": 1, "E": 2, "B": 2}[cls]
        self.pos = None
        self.gap = None


def spread(texts, cls, lo, hi, chain=True):
    out = []
    n = len(texts)
    for i, t in enumerate(texts):
        c = cls if isinstance(cls, str) else cls[i]
        o = Op(t, c, lo + (hi - lo) * i / max(1, n), lo=lo, after=[out[-1]] if (chain and out) else [])
        out.append(o)
    return out


def schedule(a, mfmas, ops, slack=1.5):
    n = len(mfmas)
    pending = list(ops)
    cnt = [0]

    def emit(o, g):
        a(o.text)
        o.pos = cnt[0]
        o.gap = g
        cnt[0] += 1
        pending.remove(o)

    def ready(o, g, chosen=()):
        if o.lo > g:
            return False
        for d in o.after:
            if d.pos is None and d not in chosen:
                return False
        for d in o.prev_gap:
            if d.gap is None or d.gap >= g:
                return False
        return True

    total = sum(o.slots for o in ops if o.cls != "S")
    nsal = sum(1 for o in ops if o.cls == "S")
    used = 0
    for g in range(n):
        a(mfmas[g])
        cnt[0] += 1
        target = max(2 * (g + 1), round(total * (g + 1) / n))
        cap = min(3, max(2, target - used)) if total > 2 * n else 2
        chosen = []
        sal = [o for o in pending if o.cls == "S" and ready(o, g) and o.want <= g + slack]
        sal.sort(key=lambda o: (0 if (o.hard is not None and o.hard <= g) else 1, o.want))
        first = sal[:1]
        for o in first:
            emit(o, g)
        room = cap
        while True:
            cand = [o for o in pending if o not in chosen and ready(o, g, chosen) and (o.want <= g + slack or (o.hard is not None and o.hard <= g))]
            if not cand:
                break
            cand.sort(key=lambda o: (0 if (o.hard is not None and o.hard <= g) else 1, o.want))
            pick = None
            for o in cand:
                forced = (o.hard is not None and o.hard <= g) or o.want < g - 3
                if o.cls == "S" and not forced and o.want > g - 1:
                    continue
                if any(d in chosen and d.cls == "E" for d in o.after) and o.cls != "E":
                    if not forced:
                        continue
                if any(c.cls == "V" for c in chosen) and o.cls in "AE" and not forced:
                    continue
                if o.cls == "V" and any(c.cls in "AE" for c in chosen) and not forced:
                    continue
                if o.slots <= room or forced:
                    pick = o
                    break
            if pick is None:
                break
            chosen.append(pick)
            room -= pick.slots
            if room <= 0 and not any((o.hard is not None and o.hard <= g) for o in pending if o not in chosen):
                break
        order = sorted(chosen, key=lambda o: {"V": 0, "M": 1}.get(o.cls, 2))
        done = []
        while order:
            for o in order:
                if all(d.pos is not None for d in o.after):
                    if done and done[-1].cls == "E" and done[-1] in o.after and o.cls != "E":
                        a("s_nop 0")
                        cnt[0] += 1
                    emit(o, g)
                    done.append(o)
                    order.remove(o)
                    break
            else:
                raise RuntimeError("dependency cycle")
        used += sum(o.slots for o in chosen)
    last = None
    while pending:
        for o in sorted(pending, key=lambda o: o.want):
            if all(d.pos is not None for d in o.after):
                if last is not None and ((last.cls == "E" and last in o.after and o.cls != "E") or last in o.prev_gap):
                    a("s_nop 0")
                emit(o, n)
                last = o
                break
        else:
            raise RuntimeError("stuck")


import re
_RD = re.compile(r"ds_read_b128 a\[(\d+):")


def resolve_lgkm(lines, start, carried):
    q = list(carried)
    for i in range(start, len(lines)):
        t = lines[i].strip()
        m = _RD.match(t)
        if m:
            q.append(int(m.group(1)))
        elif t.startswith("@LGKM"):
            reg = int(t.split()[1])
            idx = max(j for j, r in enumerate(q) if r == reg)
            k = len(q) - 1 - idx
            assert k <= 15
            lines[i] = f"    s_waitcnt lgkmcnt({k})"
```

```python
import sys
sys.path.insert(0, "gen")
import os
import common
common.PROF = bool(int(os.environ.get('PROF', '0')))
common.TRACE = bool(int(os.environ.get('TRACE', '0')))
from common import *
from k1 import gen_k1
from k2 import gen_k2
from k3 import gen_k3
from k12 import gen_k12
from k45 import gen_k4, gen_k5

HEADER = open("sequential_preLN__compressed_kv_cla__moe_arch_mod__prompt.s.ref").read().split("; Override launch")[0]

def build(path, which=("k1", "k2", "k3", "k4", "k5")):
    a = Asm()
    if "k12" in which: gen_k12(a)
    if "k1" in which: gen_k1(a)
    if "k2" in which: gen_k2(a)
    if "k3" in which: gen_k3(a)
    if "k4" in which: gen_k4(a)
    if "k5" in which: gen_k5(a)
    a.label("code_end")
    a("s_endpgm")
    open(path, "w").write(a.text(HEADER))

if __name__ == "__main__":
    build(sys.argv[1] if len(sys.argv) > 1 else "t.s", os.environ.get("WHICH", "k12,k3,k4,k5").split(","))
```

```python
from common import *
import common, os

NSL = 224


def top2_merge(a, m1, m2, t1, t2):
    a(f"v_max_u32 v{t2}, v{t2}, v{m2}")
    a(f"v_med3_u32 v{m2}, v{m1}, v{t1}, v{t2}")
    a(f"v_max_u32 v{m1}, v{m1}, v{t1}")


def gen_k4(a, name="k4_kernel"):
    a.begin_kernel(name)
    end = a.uid("k4_end")
    a("s_cmp_ge_u32 s2, 256")
    a(f"s_cbranch_scc1 {end}")
    stamp(a, 0)
    a(f"s_load_dwordx8 s[4:11], s[0:1], {ARG['wr']}")
    a(f"s_load_dwordx2 s[12:13], s[0:1], {ARG['out']}")
    a(f"s_load_dwordx2 s[14:15], s[0:1], {ARG['ws']}")
    a("v_lshrrev_b32 v1, 6, v0")
    a("v_and_b32 v2, 63, v0")
    a("v_readfirstlane_b32 s44, v1")
    a("s_and_b32 s45, s2, 7")
    a("s_lshr_b32 s46, s2, 3")
    a("s_mul_i32 s45, s45, 28")
    a("s_add_u32 s45, s45, s46")
    a("v_lshlrev_b32 v3, 5, v0")
    a("v_and_b32 v4, 31, v2")
    a("v_lshrrev_b32 v5, 5, v2")
    a("v_lshl_add_u32 v6, v1, 1, v5")
    a("s_lshl_b32 s47, s2, 3")
    a("v_add_u32 v6, s47, v6")
    a("v_lshlrev_b32 v6, 11, v6")
    a("v_lshl_add_u32 v6, v4, 4, v6")
    a("v_lshlrev_b32 v7, 4, v4")
    a("v_lshrrev_b32 v8, 1, v2")
    a("v_lshl_add_u32 v8, v1, 8, v8")
    a("v_mul_u32_u24 v8, 7168, v8")
    a("v_and_b32 v9, 1, v2")
    a("v_lshl_add_u32 v8, v9, 4, v8")
    a("s_lshl_b32 s47, s45, 5")
    a("v_add_u32 v8, s47, v8")
    a("v_lshlrev_b32 v9, 3, v0")
    a("s_waitcnt lgkmcnt(0)")
    a.srd_off(16, 14, STATS_OFF, 3 * 8192)
    a.srd_off(20, 14, H_OFF, 4 << 20)
    a.srd(24, 6, 7340032)
    a.srd(28, 8, 7340032)
    a.srd(32, 10, 7340032)
    a.srd(36, 12, 4 << 20)
    a.srd(40, 4, 2048)
    a("s_cmp_ge_u32 s2, 224")
    a("s_cselect_b32 s26, 0, s26")
    a("s_cselect_b32 s30, 0, s30")
    a("s_cselect_b32 s34, 0, s34")
    ST, HO, WRr, HS, WD = 16, 40, 56, 72, 88
    for j in range(3):
        a(f"s_mov_b32 s48, {j*8192}")
        a(f"buffer_load_dwordx4 v[{ST+8*j}:{ST+8*j+3}], v3, s[16:19], s48 offen")
        a(f"buffer_load_dwordx4 v[{ST+8*j+4}:{ST+8*j+7}], v3, s[16:19], s48 offen offset:16")
    for i in range(4):
        a(f"buffer_load_dwordx4 v[{WRr+4*i}:{WRr+4*i+3}], v7, s[40:43], 0 offen offset:{i*512}")
    for i in range(4):
        a(f"buffer_load_dwordx4 v[{HO+4*i}:{HO+4*i+3}], v6, s[20:23], 0 offen offset:{i*512}")
    a("s_and_b32 s49, s45, 3")
    a("s_lshl_b32 s49, s49, 1")
    a("s_lshl_b32 s50, s44, 13")

    def wdma(m, i):
        return (f"s_add_u32 s51, s49, {i}\ns_and_b32 s51, s51, 7\ns_mul_i32 s52, s51, {32*7168}\n"
                f"s_lshl_b32 s51, s51, 10\ns_add_u32 s51, s51, s50\ns_add_u32 m0, s51, {m*32768}\ns_nop 0\n"
                f"buffer_load_dwordx4 v8, s[{24+4*m}:{27+4*m}], s52 offen lds")
    for i in range(2):
        a(wdma(0, i))
        a(wdma(1, i))
    T = 128
    a("s_waitcnt vmcnt(8)")
    for i in range(16):
        a(f"v_lshlrev_b32 v{T+2*i}, 16, v{WRr+i}")
        a(f"v_and_b32 v{T+2*i+1}, 0xffff0000, v{WRr+i}")
    a(f"v_pk_add_f32 v[10:11], v[{T}:{T+1}], v[{T+2}:{T+3}]")
    for i in range(4, 32, 2):
        a(f"v_pk_add_f32 v[10:11], v[10:11], v[{T+i}:{T+i+1}]")
    a("v_add_f32 v10, v10, v11")
    half_wave_sum(a, 10, 11)
    a("v_lshlrev_b32 v12, 3, v0")
    a("v_sub_u32 v12, 2047, v12")
    a("v_mov_b32 v13, 0")
    a("v_mov_b32 v14, 0")
    a("s_mov_b32 s53, 0x3a800000")
    a("s_mov_b32 s54, 0xfffff800")
    for i in range(8):
        s1, s2, s3 = ST + i, ST + 8 + i, ST + 16 + i
        a(f"v_mul_f32 v{s1}, s53, v{s1}")
        a(f"v_mul_f32 v{s2}, s53, v{s2}")
        a(f"v_fma_f32 v{s2}, -v{s1}, v{s1}, v{s2}")
        a(f"v_max_f32 v{s2}, 0, v{s2}")
        a(f"v_add_f32 v{s2}, 0x3727c5ac, v{s2}")
        a(f"v_rsq_f32 v{s2}, v{s2}")
        a(f"v_fma_f32 v{s3}, -v{s1}, v10, v{s3}")
        a(f"v_mul_f32 v{s3}, v{s3}, v{s2}")
        a(f"v_ashrrev_i32 v{s1}, 31, v{s3}")
        a(f"v_or_b32 v{s1}, 0x80000000, v{s1}")
        a(f"v_xor_b32 v{s3}, v{s3}, v{s1}")
        a(f"v_subrev_u32 v{s1}, {i}, v12")
        a(f"v_and_or_b32 v{s3}, v{s3}, s54, v{s1}")
        a(f"v_med3_u32 v14, v13, v14, v{s3}")
        a(f"v_max_u32 v13, v13, v{s3}")
    for dpp in ("quad_perm:[1,0,3,2]", "quad_perm:[2,3,0,1]", "row_half_mirror", "row_mirror"):
        a("s_nop 1")
        a(f"v_mov_b32_dpp v11, v13 {dpp} row_mask:0xf bank_mask:0xf")
        a(f"v_mov_b32_dpp v12, v14 {dpp} row_mask:0xf bank_mask:0xf")
        top2_merge(a, 13, 14, 11, 12)
    for sw in ("v_permlane16_swap_b32", "v_permlane32_swap_b32"):
        a("v_mov_b32 v11, v13")
        a("v_mov_b32 v12, v14")
        a("s_nop 1")
        a(f"{sw} v13, v11")
        a(f"{sw} v14, v12")
        a("s_nop 1")
        top2_merge(a, 13, 14, 11, 12)
    MISC = 81920
    a("v_lshlrev_b32 v11, 3, v1")
    a(f"v_add_u32 v11, {MISC}, v11")
    a("v_mov_b32 v12, v13")
    a("v_mov_b32 v13, v14")
    a("ds_write_b64 v11, v[12:13]")
    a("s_waitcnt lgkmcnt(0)")
    a("s_barrier")
    a(f"v_mov_b32 v11, {MISC}")
    a(f"ds_read_b128 v[{ST}:{ST+3}], v11")
    a(f"ds_read_b128 v[{ST+4}:{ST+7}], v11 offset:16")
    a("s_waitcnt lgkmcnt(0)")
    top2_merge(a, ST, ST + 1, ST + 2, ST + 3)
    top2_merge(a, ST + 4, ST + 5, ST + 6, ST + 7)
    top2_merge(a, ST, ST + 1, ST + 4, ST + 5)
    a("v_cmp_eq_u32 vcc, 0, v5")
    a("s_nop 1")
    a(f"v_cndmask_b32 v11, v{ST+1}, v{ST}, vcc")
    a("v_and_b32 v11, 0x7ff, v11")
    a("v_sub_u32 v15, 2047, v11")
    a("v_lshl_add_u32 v11, v15, 11, v7")
    for i in range(4):
        a(f"buffer_load_dwordx4 v[{HS+4*i}:{HS+4*i+3}], v11, s[20:23], 0 offen offset:{i*512}")
    stamp(a, 1)
    for i in range(2, 5):
        a(wdma(0, i))
        a(wdma(1, i))
    T2, KP = 160, 200
    a("s_waitcnt vmcnt(14)")
    ln_rows_half_wave(a, HO, T2, keep=KP)
    for i in range(16):
        a(f"v_lshlrev_b32 v{T2+2*i}, 16, v{HO+i}")
        a(f"v_and_b32 v{T2+2*i+1}, 0xffff0000, v{HO+i}")
    for i in range(0, 32, 2):
        a(f"v_pk_add_f32 v[{T2+i}:{T2+i+1}], v[{T2+i}:{T2+i+1}], v[{KP+i}:{KP+i+1}]")
    for i in range(16):
        a(f"v_cvt_pk_bf16_f32 v{HO+i}, v{T2+2*i}, v{T2+2*i+1}")
    for i in range(4):
        a(f"buffer_store_dwordx4 v[{HO+4*i}:{HO+4*i+3}], v6, s[36:39], 0 offen offset:{i*512}")
    a("s_cmp_ge_u32 s2, 224")
    a(f"s_cbranch_scc1 {end}")
    stamp(a, 2)
    for i in range(5, 8):
        a(wdma(0, i))
        a(wdma(1, i))
    a("s_lshl_b32 s52, s45, 15")
    for i in range(16):
        a(f"buffer_load_dwordx2 v[{WD+2*i}:{WD+2*i+1}], v9, s[32:35], s52 offen offset:{(i%2)*2048}")
        if i % 2:
            a("s_add_u32 s52, s52, 4096")
    a("s_waitcnt vmcnt(32)")
    ln_rows_half_wave(a, HS, T2)
    a("v_lshlrev_b32 v11, 11, v5")
    a("v_add_u32 v11, v11, v7")
    a("s_lshl_b32 s53, s44, 12")
    a("s_add_u32 s53, s53, 65536")
    a("v_add_u32 v11, s53, v11")
    for i in range(4):
        a(f"ds_write_b128 v11, v[{HS+4*i}:{HS+4*i+3}] offset:{i*512}")
    skip = a.uid("k4_nosel")
    a("s_or_b32 s54, s2, s44")
    a("s_cmp_lg_u32 s54, 0")
    a(f"s_cbranch_scc1 {skip}")
    a.srd_off(56, 14, SEL_OFF, 8192)
    for i in range(16):
        a(f"v_lshlrev_b32 v{T2+2*i}, 16, v{HS+i}")
        a(f"v_and_b32 v{T2+2*i+1}, 0xffff0000, v{HS+i}")
    a(f"v_pk_mul_f32 v[12:13], v[{T2}:{T2+1}], v[{T}:{T+1}]")
    for i in range(2, 32, 2):
        a(f"v_pk_fma_f32 v[12:13], v[{T2+i}:{T2+i+1}], v[{T+i}:{T+i+1}], v[12:13]")
    a("v_add_f32 v12, v12, v13")
    half_wave_sum(a, 12, 13)
    a("v_cvt_pk_bf16_f32 v12, v12, v12")
    a("v_and_b32 v12, 0xffff0000, v12")
    a("v_mul_f32 v12, 0xbfb8aa3b, v12")
    a("v_exp_f32 v12, v12")
    a("s_nop 0")
    a("v_add_f32 v12, 1.0, v12")
    a("v_rcp_f32 v12, v12")
    a("s_nop 0")
    a("v_cvt_pk_bf16_f32 v12, v12, v12")
    a("v_and_b32 v12, 0xffff0000, v12")
    a("v_lshlrev_b32 v13, 2, v5")
    a("buffer_store_dword v15, v13, s[56:59], 0 offen")
    a("buffer_store_dword v12, v13, s[56:59], 0 offen offset:8")
    a("v_lshl_add_u32 v13, v5, 11, v7")
    a("s_mov_b32 s54, 4096")
    for i in range(4):
        a(f"buffer_store_dwordx4 v[{HS+4*i}:{HS+4*i+3}], v13, s[56:59], s54 offen offset:{i*512}")
    a("s_waitcnt vmcnt(0)")
    a.label(skip)
    stamp(a, 3)
    a("v_lshrrev_b32 v12, 4, v2")
    a("v_and_b32 v13, 1, v2")
    a("v_lshlrev_b32 v13, 11, v13")
    a("v_lshl_add_u32 v13, v12, 3, v13")
    a("s_lshl_b32 s54, s44, 9")
    a("s_add_u32 s54, s54, s53")
    a("v_add_u32 v13, s54, v13")
    XF = 160
    a("s_waitcnt lgkmcnt(0)")
    for s in range(8):
        a(f"ds_read_b64 v[{XF+4*s}:{XF+4*s+1}], v13 offset:{s*64}")
        a(f"ds_read_b64 v[{XF+4*s+2}:{XF+4*s+3}], v13 offset:{s*64+32}")
    a("v_lshlrev_b32 v14, 3, v2")
    a("v_add_u32 v14, s50, v14")
    a("s_waitcnt vmcnt(16)")
    WF = 192
    for m in range(2):
        for s in range(8):
            b = WF + (m * 8 + s) * 4
            a(f"ds_read_b64_tr_b16 v[{b}:{b+1}], v14 offset:{m*32768 + s*1024}")
            a(f"ds_read_b64_tr_b16 v[{b+2}:{b+3}], v14 offset:{m*32768 + s*1024 + 512}")
    a("s_waitcnt lgkmcnt(0)")
    for s in range(8):
        for m in range(2):
            b = WF + (m * 8 + s) * 4
            c = f"v[{16+4*m}:{19+4*m}]"
            a(mfma16(c, f"v[{b}:{b+3}]", f"v[{XF+4*s}:{XF+4*s+3}]", "0" if s == 0 else c))
    a("v_and_b32 v13, 15, v2")
    a("v_lshlrev_b32 v13, 6, v13")
    a("v_lshl_add_u32 v13, v12, 4, v13")
    a("s_lshl_b32 s54, s44, 11")
    a(f"s_add_u32 s54, s54, {MISC + 64}")
    a("v_add_u32 v13, s54, v13")
    a("s_nop 4")
    a("ds_write_b128 v13, v[16:19]")
    a("ds_write_b128 v13, v[20:23] offset:1024")
    a("s_waitcnt lgkmcnt(0)")
    a("s_barrier")
    a("v_lshlrev_b32 v13, 2, v4")
    a(f"v_add_u32 v13, {MISC + 64}, v13")
    for w in range(4):
        a(f"ds_read_b32 v{16+w}, v13 offset:{w*2048}")
        a(f"ds_read_b32 v{20+w}, v13 offset:{w*2048 + 1024}")
    a("s_waitcnt lgkmcnt(0)")
    a("v_add_f32 v16, v16, v17\nv_add_f32 v18, v18, v19\nv_add_f32 v20, v20, v21\nv_add_f32 v22, v22, v23")
    a("v_add_f32 v16, v16, v18\nv_add_f32 v20, v20, v22")
    a("v_cvt_pk_bf16_f32 v16, v16, v20")
    a("v_and_b32 v20, 0xffff0000, v16")
    a("v_lshlrev_b32 v16, 16, v16")
    a("v_mul_f32 v17, 0xbfb8aa3b, v16")
    a("v_exp_f32 v17, v17")
    a("s_nop 0")
    a("v_add_f32 v17, 1.0, v17")
    a("v_rcp_f32 v17, v17")
    a("s_nop 0")
    a("v_mul_f32 v16, v16, v17")
    a("v_cvt_pk_bf16_f32 v16, v16, v16")
    a("v_and_b32 v16, 0xffff0000, v16")
    a("v_mul_f32 v16, v16, v20")
    a("s_nop 1")
    a("v_mov_b32_dpp v17, v16 quad_perm:[1,0,3,2] row_mask:0xf bank_mask:0xf")
    a("v_cvt_pk_bf16_f32 v16, v16, v17")
    a("s_nop 0")
    for t in range(2):
        for j in range(8):
            a(f"v_readlane_b32 s{60 - 44 + 0 + t*8 + j}, v16, {t*16 + 2*j}")
    a("s_mov_b32 s54, 0x05040100")
    a("s_mov_b32 s55, 0x07060302")
    a("s_waitcnt vmcnt(0)")
    ACC = 24
    for j in range(8):
        r0, r1 = WD + 4 * j, WD + 4 * j + 2
        for h in range(2):
            a(f"v_perm_b32 v16, v{r1+h}, v{r0+h}, s54")
            a(f"v_perm_b32 v17, v{r1+h}, v{r0+h}, s55")
            for t in range(2):
                for e in range(2):
                    d = ACC + t * 4 + h * 2 + e
                    a(f"v_dot2_f32_bf16 v{d}, v{16+e}, s{16 + t*8 + j}, {'0' if j == 0 else 'v%d' % d}")
    a.srd_off(56, 14, PART_OFF, NSL * 8192)
    a("v_lshlrev_b32 v13, 4, v0")
    a("s_lshl_b32 s54, s45, 13")
    a("s_add_u32 s55, s54, 4096")
    a("s_nop 2")
    a(f"buffer_store_dwordx4 v[{ACC}:{ACC+3}], v13, s[56:59], s54 offen")
    a(f"buffer_store_dwordx4 v[{ACC+4}:{ACC+7}], v13, s[56:59], s55 offen")
    stamp(a, 4)
    stamp_dump(a, 3, 5, 14)
    a.label(end)
    a("s_endpgm")
    a.end_kernel(name, 256)
    a.launch(name, 256, 256, 81920 + 64 + 8192)


def gen_k5(a, name="k5_kernel"):
    a.begin_kernel(name)
    end = a.uid("k5_end")
    a("s_cmp_ge_u32 s2, 64")
    a(f"s_cbranch_scc1 {end}")
    stamp(a, 0)
    a(f"s_load_dwordx2 s[12:13], s[0:1], {ARG['out']}")
    a(f"s_load_dwordx2 s[14:15], s[0:1], {ARG['ws']}")
    a("v_and_b32 v2, 7, v0")
    a("v_lshrrev_b32 v3, 3, v0")
    a("v_lshlrev_b32 v4, 13, v3")
    a("v_lshl_add_u32 v4, v2, 4, v4")
    a("s_lshl_b32 s40, s2, 7")
    a("s_lshr_b32 s41, s2, 5")
    a("s_and_b32 s42, s2, 31")
    a("s_waitcnt lgkmcnt(0)")
    a.srd_off(16, 14, PART_OFF, NSL * 8192)
    a.srd_off(20, 14, SEL_OFF, 8192)
    a.srd_off(24, 14, H_OFF, 4 << 20)
    a.srd(28, 12, 4 << 20)
    a("s_lshl_b32 s43, s41, 2")
    a("v_mov_b32 v5, s43")
    a("buffer_load_dword v6, v5, s[20:23], 0 offen")
    a("buffer_load_dword v7, v5, s[20:23], 0 offen offset:8")
    for i in range(7):
        a(f"buffer_load_dwordx4 v[{16+4*i}:{19+4*i}], v4, s[16:19], s40 offen")
        a("s_add_u32 s40, s40, 0x40000")
    a("s_lshl_b32 s44, s42, 6")
    a("v_lshl_add_u32 v8, v2, 3, s44")
    a("s_lshl_b32 s45, s41, 11")
    a("s_add_u32 s45, s45, 4096")
    a("buffer_load_dwordx2 v[10:11], v8, s[20:23], s45 offen")
    a("s_waitcnt vmcnt(8)")
    a("v_and_b32 v6, 0x7ff, v6")
    a("v_lshl_add_u32 v9, v6, 11, v8")
    a("buffer_load_dwordx2 v[12:13], v9, s[24:27], 0 offen")
    a("s_waitcnt vmcnt(2)")
    for i in range(1, 7):
        a(f"v_pk_add_f32 v[16:17], v[16:17], v[{16+4*i}:{17+4*i}]")
        a(f"v_pk_add_f32 v[18:19], v[18:19], v[{18+4*i}:{19+4*i}]")
    a("s_nop 1")
    for r in range(4):
        a(f"v_add_f32_dpp v{16+r}, v{16+r}, v{16+r} row_ror:8 row_mask:0xf bank_mask:0xf")
    for sw in ("v_permlane16_swap_b32", "v_permlane32_swap_b32"):
        for r in range(4):
            a(f"v_mov_b32 v{20+r}, v{16+r}")
        a("s_nop 1")
        for r in range(4):
            a(f"{sw} v{16+r}, v{20+r}")
        a("s_nop 1")
        for r in range(4):
            a(f"v_add_f32 v{16+r}, v{16+r}, v{20+r}")
    a("v_lshrrev_b32 v14, 6, v0")
    a("v_lshlrev_b32 v14, 7, v14")
    a("v_lshl_add_u32 v14, v2, 4, v14")
    a("ds_write_b128 v14, v[16:19]")
    a("s_waitcnt lgkmcnt(0)")
    a("s_barrier")
    a("v_lshlrev_b32 v14, 4, v2")
    for w in range(4):
        a(f"ds_read_b128 v[{16+4*w}:{19+4*w}], v14 offset:{w*128}")
    a("s_waitcnt vmcnt(0) lgkmcnt(0)")
    for w in range(1, 4):
        a(f"v_pk_add_f32 v[16:17], v[16:17], v[{16+4*w}:{17+4*w}]")
        a(f"v_pk_add_f32 v[18:19], v[18:19], v[{18+4*w}:{19+4*w}]")
    for h in range(2):
        y = 16 + 2 * h
        a(f"v_cvt_pk_bf16_f32 v20, v{y}, v{y+1}")
        a("v_lshlrev_b32 v21, 16, v20\nv_and_b32 v22, 0xffff0000, v20")
        a("v_mul_f32 v21, v21, v7\nv_mul_f32 v22, v22, v7")
        a("v_cvt_pk_bf16_f32 v20, v21, v22")
        a("v_lshlrev_b32 v21, 16, v20\nv_and_b32 v22, 0xffff0000, v20")
        a(f"v_lshlrev_b32 v23, 16, v{10+h}\nv_and_b32 v24, 0xffff0000, v{10+h}")
        a("v_add_f32 v21, v21, v23\nv_add_f32 v22, v22, v24")
        a("v_cvt_pk_bf16_f32 v20, v21, v22")
        a("v_lshlrev_b32 v21, 16, v20\nv_and_b32 v22, 0xffff0000, v20")
        a(f"v_lshlrev_b32 v23, 16, v{12+h}\nv_and_b32 v24, 0xffff0000, v{12+h}")
        a("v_add_f32 v21, v21, v23\nv_add_f32 v22, v22, v24")
        a(f"v_cvt_pk_bf16_f32 v{26+h}, v21, v22")
    a("v_cmp_gt_u32 vcc, 8, v0")
    a("s_and_saveexec_b64 s[46:47], vcc")
    skip = a.uid("k5_skip")
    a(f"s_cbranch_execz {skip}")
    a("buffer_store_dwordx2 v[26:27], v9, s[28:31], 0 offen")
    a.label(skip)
    a("s_mov_b64 exec, s[46:47]")
    stamp_dump(a, 4, 1, 14)
    if common.PROF and os.environ.get("DBGOUT"):
        a("s_cmp_lg_u32 s2, 0")
        a(f"s_cbranch_scc1 {end}")
        a("s_waitcnt vmcnt(0)")
        a(f"s_load_dwordx2 s[4:5], s[0:1], {ARG['dbg']}")
        a.srd_off(8, 14, PROF_OFF, 8 * 512 * 64)
        picks = [(0, i) for i in range(8)] + [(2, 0), (2, 2), (2, 3), (2, 5), (3, 0), (3, 5)]
        a("v_mov_b32 v1, 0")
        for i, (k, j) in enumerate(picks):
            a(f"s_mov_b32 s3, {k*512*64 + 100*64 + j*4}")
            a(f"buffer_load_dword v{10+i}, v1, s[8:11], s3 offen sc1")
        a("v_mov_b32 v24, s64")
        a("v_mov_b32 v25, s68")
        a("s_waitcnt vmcnt(0) lgkmcnt(0)")
        a.srd(8, 4, 256)
        for i in range(15, -1, -1):
            a(f"v_sub_u32 v{10+i}, v{10+i}, v10")
            a(f"buffer_store_dword v{10+i}, v1, s[8:11], 0 offen offset:{4*i}")
    a.label(end)
    a("s_endpgm")
    a.end_kernel(name, 64)
    a.launch(name, 64, 256, 512)
```

```python
from common import *
import common, os
from sched import Op, spread, schedule
import k2
from k2 import vq, aq, V_LANE16, V_VV, V_NINF, attention_phase, LDF

SPIN_MAX = 1 << 20
KO = set(os.environ.get('KO', '').split(','))
NT = ' nt' if 'nt' in KO else ''
ENV = lambda k, d: int(os.environ.get(k, str(d)))

ZERO, ONE = 8, 9
XD, WD, XRD, WRD = 10, 18, 26, 28
QX, QWD, QWR = 36, 38, 42
VPF, VDUM, VPOLL, VXST, VLW, VLR = 50, 51, 52, 53, 54, 55
PT = 56
PK = 64
WRING = 98304


def spin_text(a, soff, target):
    ok, lp = a.uid("spin_ok"), a.uid("spin")
    return "\n".join([
        f"v_readfirstlane_b32 s31, v{VPOLL}", f"s_cmp_ge_u32 s31, {target}", f"s_cbranch_scc1 {ok}",
        f"s_mov_b32 s40, {SPIN_MAX}", f"{lp}:", "s_sleep 8",
        f"buffer_load_dword v{VPOLL}, v{ZERO}, s[24:27], {soff} offen sc1", "s_waitcnt vmcnt(0)",
        f"v_readfirstlane_b32 s31, v{VPOLL}", "s_sub_u32 s40, s40, 1", "s_cselect_b32 s31, -1, s31",
        f"s_cmp_lt_u32 s31, {target}", f"s_cbranch_scc1 {lp}", f"{ok}:"])


def one_lane(text):
    return f"s_mov_b64 exec, 1\n{text}\ns_mov_b64 exec, -1"


def gen_k12(a, name="k12_kernel"):
    a.begin_kernel(name)
    end = a.uid("k12_end")
    stubs = []

    def when(cmp_text, body, want, **kw):
        l, r = a.uid("k12_ool"), a.uid("k12_oolret")
        if "nosig" in KO and "s[24:27]" in body:
            body = "s_nop 0"
        stubs.append((l, body, r))
        return Op(f"{cmp_text}\ns_cbranch_scc1 {l}\n{r}:", "B", want, **kw)

    a("s_cmp_ge_u32 s2, 256")
    a(f"s_cbranch_scc1 {end}")
    stamp(a, 0)
    a(f"s_load_dwordx4 s[36:39], s[0:1], {ARG['x']}")
    a(f"s_load_dwordx4 s[40:43], s[0:1], {ARG['wuk']}")
    a(f"s_load_dwordx2 s[4:5], s[0:1], {ARG['wq']}")
    a(f"s_load_dwordx4 s[60:63], s[0:1], {ARG['dbg']}")
    a("s_and_b32 s58, s2, 7")
    a("s_lshr_b32 s59, s2, 3")
    a("s_and_b32 s45, s59, 7")
    a("s_lshr_b32 s57, s59, 3")
    a("s_and_b32 s44, s57, 1")
    a("s_lshl_b32 s52, s58, 1")
    a("s_add_u32 s44, s44, s52")
    a("s_lshr_b32 s57, s57, 1")
    W, LN_ = 2, 3
    a(f"v_lshrrev_b32 v{W}, 6, v0")
    a(f"v_and_b32 v{LN_}, 63, v0")
    a(f"v_readfirstlane_b32 s30, v{W}")
    a(f"v_lshlrev_b32 v{V_LANE16}, 4, v{LN_}")
    VX, VT = 64, 80
    TOK, L32 = 60, 61
    a(f"v_lshrrev_b32 v{TOK}, 5, v{LN_}")
    a(f"v_lshl_add_u32 v{TOK}, v{W}, 1, v{TOK}")
    a(f"v_and_b32 v{L32}, 31, v{LN_}")
    a(f"v_lshlrev_b32 v6, 11, v{TOK}")
    a(f"v_lshl_add_u32 v62, v{L32}, 4, v6")
    a("s_lshl_b32 s52, s2, 14")
    a(f"v_lshrrev_b32 v56, 3, v{LN_}")
    a(f"v_and_b32 v57, 7, v{LN_}")
    a("v_lshrrev_b32 v58, 1, v56")
    a("v_xor_b32 v6, v57, v58")
    a("v_xor_b32 v7, 4, v6")
    a(f"v_lshl_add_u32 v58, v{W}, 6, v56")
    a("v_lshlrev_b32 v58, 10, v58")
    a("s_lshl_b32 s47, s45, 18")
    a("v_add_u32 v58, s47, v58")
    a(f"v_lshl_add_u32 v{XD}, v6, 4, v58")
    a(f"v_lshl_add_u32 v{XD+1}, v7, 4, v58")
    for i in range(7, -1, -1):
        a(f"v_add_u32 v{XD+i}, {i*8*1024 - (i%4)*1024}, v{XD + (i%2)}")
    a(f"v_lshrrev_b32 v6, 5, v{LN_}")
    a(f"v_bfe_u32 v7, v{LN_}, 1, 4")
    a(f"v_and_b32 v59, 1, v{LN_}")
    a(f"v_lshl_add_u32 v58, v{W}, 4, v6")
    a("v_lshlrev_b32 v58, 13, v58")
    a("v_lshl_add_u32 v58, v59, 4, v58")
    a("s_lshl_b32 s47, s44, 9")
    a("v_add_u32 v58, s47, v58")
    a("v_xor_b32 v7, v7, v6")
    for i in range(8):
        fx = ((2 * i) & 3) | ((((2 * i) >> 3) & 1) << 2)
        a(f"v_xor_b32 v6, {fx}, v7")
        a(f"v_lshl_add_u32 v6, v6, 5, v58")
        a(f"v_add_u32 v{WD+i}, {2*i*8192 - (i%4)*1024}, v6")
    XB, WB = 0, 65536
    a("s_lshl_b32 s48, s30, 13")
    a("s_mov_b32 s49, 0")
    a("s_mov_b32 s50, 0")
    a("s_waitcnt lgkmcnt(0)")
    a.srd(24, 36, 4 << 20)
    for i in range(4):
        a(f"buffer_load_dwordx4 v[{VX+4*i}:{VX+4*i+3}], v62, s[24:27], s52 offen offset:{i*512}{NT}")
    a.srd(16, 38, 2 << 20)
    a("s_cmp_eq_u32 s57, 0")
    a("s_cselect_b32 s20, s40, s42")
    a("s_cselect_b32 s21, s41, s43")
    a("s_and_b32 s21, s21, 0xffff")
    a("s_mov_b32 s22, 0x400000")
    a("s_mov_b32 s23, 0x00020000")

    def dma_grp(stage, g):
        op, i0 = g // 2, (g % 2) * 4
        m = f"s_add_u32 m0, s48, {(XB if op == 0 else WB) + stage*32768 + i0*1024}"
        if op == 0:
            ld = [f"buffer_load_dwordx4 v{XD+i0+i}, s[16:19], s49 offen offset:{i*1024} lds" for i in range(4)]
        else:
            ld = [f"buffer_load_dwordx4 v{WD+i0+i}, s[20:23], s50 offen offset:{i*1024}{NT} lds" for i in range(4)]
        tr = {1: "s_add_u32 s49, s49, 128", 3: "s_add_u32 s50, s50, 0x80000"}.get(g)
        return m, ld, tr

    def emit_grp(m, ld, tr):
        a(m)
        a("s_nop 0")
        for t in ld:
            a(t)
        if tr:
            a(tr)

    def grp_sched(grps, lo, hi, after=()):
        ops, prev = [], list(after)
        tot = sum(len(g[1]) for g in grps)
        step = (hi - lo) / float(tot)
        k = 0
        for (m, ld, tr) in grps:
            mo = None
            if m:
                mo = Op(m, "S", lo + step * k - 1, lo=lo, after=prev)
                ops.append(mo)
            for t in ld:
                o = Op(t, "V", lo + 1 + step * k, lo=lo, after=prev, prev_gap=[mo] if mo else [])
                ops.append(o)
                prev = [o]
                k += 1
            if tr:
                for t in tr.split("\n"):
                    o = Op(t, "S", lo + step * k, after=prev)
                    ops.append(o)
                    prev = [o]
        return ops, prev

    for g in range(4):
        emit_grp(*dma_grp(0, g))
    if "nocode" not in KO:
        a("s_getpc_b64 s[40:41]")
        a("s_and_b32 s40, s40, 0xffffff00")
        a("s_and_b32 s41, s41, 0xffff")
        a("s_mov_b32 s42, 0x10000")
        a("s_mov_b32 s43, 0x00020000")
        a("s_lshl_b32 s52, s59, 11")
        a("s_lshl_b32 s31, s30, 9")
        a("s_add_u32 s52, s52, s31")
        a(f"v_and_b32 v6, 3, v{LN_}")
        a("v_lshlrev_b32 v6, 7, v6")
        a(f"buffer_load_dword v{VDUM}, v6, s[40:43], s52 offen")
    a("s_mov_b64 s[6:7], s[62:63]")
    a.srd_off(8, 6, XN_OFF, 4 << 20)
    a.srd(12, 4, 8 << 20)
    a.srd_off(32, 6, KF_OFF, 32 << 20)
    a.srd(24, 60, 256)
    a("s_lshl_b32 s28, s58, 2")
    a("s_and_b32 s31, s59, 3")
    a("s_add_u32 s28, s28, s31")
    a("s_lshr_b32 s29, s59, 2")
    a("s_lshl_b32 s42, s29, 7")
    a("s_sub_u32 s43, 1920, s42")
    a("s_lshl_b32 s31, s30, 5")
    a("s_add_u32 s38, s42, s31")
    a("s_add_u32 s39, s43, s31")
    a("s_lshl_b32 s60, s30, 12")
    a("s_mov_b32 s61, 0")
    a("s_mov_b32 s62, 0")
    a("s_lshl_b32 s47, s44, 1")
    a("s_lshr_b32 s52, s30, 1")
    a("s_add_u32 s47, s47, s52")
    a("s_lshl_b32 s47, s47, 14")
    a("s_lshl_b32 s52, s45, 1")
    a("s_and_b32 s53, s30, 1")
    a("s_add_u32 s52, s52, s53")
    a("s_lshl_b32 s52, s52, 20")
    a("s_add_u32 s47, s47, s52")
    a("s_lshl_b32 s52, s57, 24")
    a("s_add_u32 s47, s47, s52")
    assert VF_OFF - KF_OFF == 1 << 24
    a("s_lshl_b32 s54, s44, 8")
    a("s_lshr_b32 s55, s28, 1")
    a("s_lshl_b32 s55, s55, 8")
    a("s_and_b32 s53, s59, 3")
    a("s_add_u32 s53, s53, 1")
    a("s_cmp_eq_u32 s30, 0")
    a("s_cselect_b32 s53, s53, -1")
    a("s_cselect_b32 s46, 6, -1")
    a("v_lshlrev_b32 v6, 13, v56")
    a(f"v_lshl_add_u32 v{VPF}, v57, 7, v6")
    a("s_lshl_b32 s56, s30, 5")
    a("s_add_u32 s56, s56, s59")
    a("s_lshl_b32 s56, s56, 16")
    a("s_lshl_b32 s52, s58, 10")
    a("s_add_u32 s56, s56, s52")
    a("s_lshl_b32 s63, s30, 1")
    pf = f"buffer_load_dword v{VDUM}, v{VPF}, s[12:15], s56 offen" if "nowq" not in KO else "s_nop 0"
    XL = 131072
    a(f"v_mul_u32_u24 v6, 2064, v{TOK}")
    a(f"v_lshl_add_u32 v6, v{L32}, 4, v6")
    a(f"v_add_u32 v{VLW}, {XL}, v6")
    a("v_mul_u32_u24 v7, 2064, v57")
    a("v_lshl_add_u32 v7, v56, 4, v7")
    a(f"v_lshl_add_u32 v7, v{W}, 9, v7")
    a(f"v_add_u32 v{VLR}, {XL}, v7")
    a("v_lshrrev_b32 v7, 2, v56")
    a(f"v_lshl_add_u32 v7, v{W}, 3, v7")
    a("v_lshlrev_b32 v7, 17, v7")
    a("v_and_b32 v6, 3, v56")
    a("v_lshl_add_u32 v7, v6, 8, v7")
    a("v_lshl_add_u32 v7, v57, 4, v7")
    a("s_lshr_b32 s52, s2, 1")
    a("s_lshl_b32 s52, s52, 10")
    a("s_and_b32 s31, s2, 1")
    a("s_lshl_b32 s31, s31, 7")
    a("s_add_u32 s52, s52, s31")
    a(f"v_add_u32 v{VXST}, s52, v7")
    a(f"v_and_b32 v56, 15, v{LN_}")
    a(f"v_lshrrev_b32 v57, 4, v{LN_}")
    a("v_lshrrev_b32 v6, 1, v56")
    a("v_xor_b32 v6, v6, v57")
    a(f"v_and_b32 v7, 1, v{W}")
    a("v_lshl_add_u32 v7, v7, 7, v56")
    a("v_lshlrev_b32 v7, 7, v7")
    a(f"v_lshl_add_u32 v{XRD}, v6, 4, v7")
    a(f"v_xor_b32 v{XRD+1}, 64, v{XRD}")
    a("v_lshrrev_b32 v6, 2, v56")
    a("v_and_b32 v58, 1, v57")
    a("v_lshl_add_u32 v58, v58, 2, v6")
    a("v_lshl_add_u32 v59, v57, 3, v6")
    a(f"v_and_b32 v63, 3, v{LN_}")
    a("v_lshlrev_b32 v7, 9, v59")
    a(f"v_lshrrev_b32 v6, 1, v{W}")
    a("v_lshl_add_u32 v7, v6, 8, v7")
    a("v_lshl_add_u32 v7, v63, 3, v7")
    a(f"v_add_u32 v7, {WB}, v7")
    a("v_lshlrev_b32 v59, 8, v59")
    a("v_lshl_add_u32 v59, v63, 3, v59")
    a(f"v_add_u32 v59, {WRING}, v59")
    for j in range(8):
        a(f"v_xor_b32 v6, {j}, v58")
        a(f"v_lshl_add_u32 v{WRD+j}, v6, 5, v7")
        a(f"v_lshl_add_u32 v{QWR+j}, v6, 5, v59")
    a("s_lshl_b32 s31, s38, 6")
    a(f"v_add_u32 v{QX}, s31, v{V_LANE16}")
    a("s_lshl_b32 s31, s39, 6")
    a(f"v_add_u32 v{QX+1}, s31, v{V_LANE16}")
    a(f"v_bfe_u32 v6, v{LN_}, 1, 3")
    a(f"v_and_b32 v7, 1, v{LN_}")
    a(f"v_lshl_add_u32 v58, v{W}, 4, v57")
    a("v_lshlrev_b32 v58, 13, v58")
    a("v_lshl_add_u32 v58, v7, 4, v58")
    a("s_lshl_b32 s31, s28, 8")
    a("v_add_u32 v58, s31, v58")
    a("v_xor_b32 v6, v6, v57")
    for i in range(4):
        a(f"v_xor_b32 v7, {(i // 2) << 2}, v6")
        a(f"v_lshl_add_u32 v7, v7, 5, v58")
        a(f"v_add_u32 v{QWD+i}, {4*i*8192 - i*1024}, v7")
    a("v_lshlrev_b32 v6, 2, v57")
    a(f"v_sub_u32 v{V_VV}, v56, v6")
    a(f"v_mov_b32 v{V_NINF}, 0xff800000")
    a(f"v_mov_b32 v{ZERO}, 0")
    a(f"v_mov_b32 v{ONE}, 1")
    zero_acc(a, 128, 64, 56)
    zero_acc(a, 128, 128, 56, "v", init=False)
    a(f"s_waitcnt vmcnt({16 if 'nocode' in KO else 17})")
    ln_rows_half_wave(a, VX, VT)
    for i in range(4):
        a(f"ds_write_b128 v{VLW}, v[{VX+4*i}:{VX+4*i+3}] offset:{i*512}")
    for g in range(4):
        emit_grp(*dma_grp(1, g))
    a("s_waitcnt vmcnt(16) lgkmcnt(0)")
    a("s_barrier")
    XT = 192
    for i in range(4):
        a(f"ds_read_b128 {aq(XT+4*i)}, v{VLR} offset:{i*128}")
    zero_acc(a, 64, 64, 56, "v", init=False)

    FX = [0, 64]
    FW = [32, 96]

    def reads(stage, sp, buf):
        out = []
        for i in range(8):
            out.append(f"ds_read_b128 {aq(FX[buf]+4*i)}, v{XRD+sp} offset:{XB + stage*32768 + i*2048}")
            out.append(f"ds_read_b64_tr_b16 a[{FW[buf]+4*i}:{FW[buf]+4*i+1}], v{WRD+i} offset:{stage*32768 + sp*16384}")
            out.append(f"ds_read_b64_tr_b16 a[{FW[buf]+4*i+2}:{FW[buf]+4*i+3}], v{WRD+i} offset:{stage*32768 + sp*16384 + 2048}")
        return out

    def pair_n(c, j, isv):
        return (c * 8 + j) if isv else (j * 4 + c)

    def acc(i, j, isv):
        n = pair_n(i // 2, j, isv)
        if n < 24:
            return ("v", (64 if i % 2 == 0 else 160) + 4 * n)
        return ("a", 128 + 8 * (n - 24) + 4 * (i % 2))

    def mf1(i, j, buf, isv):
        FA, FB = (FX, FW) if isv else (FW, FX)
        k, c = acc(i, j, isv)
        r = f"{k}[{c}:{c+3}]"
        return mfma16(r, aq(FA[buf] + 4 * i), aq(FB[buf] + 4 * j), r)

    def mfmas(buf, isv):
        return [mf1(i, j, buf, isv) for i in range(8) for j in range(8)]

    skip = a.uid("k12_nostat")
    a(f"s_cmp_ge_u32 s2, {ZERO_BYTES // 4096}")
    a(f"s_cbranch_scc1 {skip}")
    a("s_lshl_b32 s52, s2, 12")
    a(f"s_add_u32 s52, s52, 0x{STATS_OFF - KF_OFF:x}")
    a("s_mov_b32 s34, -1")
    a("v_lshlrev_b32 v6, 4, v0")
    a("buffer_store_dwordx4 v[56:59], v6, s[32:35], s52 offen sc1")
    a(f"s_mov_b32 s34, 0x{32 << 20:x}")
    a.label(skip)
    stamp(a, 1)
    tr_init(a)
    for t in reads(0, 0, 0):
        a(t)
    a("s_mov_b32 s51, 0")
    a("s_waitcnt lgkmcnt(15)")
    for i in range(4):
        a(f"s_mov_b32 s52, {i*2*131072}")
        a(f"buffer_store_dwordx4 {aq(XT+4*i)}, v{VXST}, s[8:11], s52 offen sc1")
    a("s_waitcnt lgkmcnt(0)")
    lv, joined = a.uid("k12_v"), a.uid("k12_join")
    a("s_cmp_lg_u32 s57, 0")
    a(f"s_cbranch_scc1 {lv}")

    DX, DW = 3, 2
    XR = 192
    QF = [0, 32]

    def wdma(stage):
        return (f"s_add_u32 m0, s60, {WRING + (stage % 4)*16384}",
                [f"buffer_load_dwordx4 v{QWD+i}, s[12:15], s61 offen offset:{i*1024} lds" for i in range(4)], "s_add_u32 s61, s61, 0x80000")

    def xloads(ks):
        return (None, [f"buffer_load_dwordx4 {aq(XR + (ks % 4)*16 + 4*qb)}, v{QX+qb//2}, s[8:11], s62 offen offset:{(qb%2)*1024} sc1" for qb in range(4)],
                "s_add_u32 s62, s62, 0x20000")

    def kvstore(n):
        return (f"s_add_u32 s52, s47, {(n // 16) * 0x80000 + (((n % 16) * 1024) & ~4095)}",
                [f"buffer_store_dwordx4 v[{PK+n*4}:{PK+3+n*4}], v{V_LANE16}, s[32:35], s52 offen offset:{(n*1024) & 4095}{os.environ.get('STF', ' sc1')}"], None)

    def wreads(stage, sp, buf):
        out = []
        for j in range(8):
            b = QF[buf] + 4 * j
            out.append(f"ds_read_b64_tr_b16 a[{b}:{b+1}], v{QWR+j} offset:{(stage % 4)*16384 + sp*8192}")
            out.append(f"ds_read_b64_tr_b16 a[{b+2}:{b+3}], v{QWR+j} offset:{(stage % 4)*16384 + sp*8192 + 1024}")
        return out

    def qacc(db, qb):
        return ("v", 192 + (db * 2 + qb) * 4) if qb < 2 else ("a", 64 + (db * 2 + qb - 2) * 4)

    for isv in range(2):
        if isv:
            a.label(lv)
        loop, last = a.uid("k12_loop"), a.uid("k12_last")
        a.label(loop)
        for st in range(2):
            ops = spread(reads(st, 1, 1), "M", 0, 50)
            ops.append(when("s_cmp_eq_u32 s51, s46", f"buffer_load_dword v{VPOLL}, v{ZERO}, s[24:27], 0 offen sc1", 4) if st == 0 else
                       when("s_sub_u32 s52, s51, 1\ns_cmp_eq_u32 s52, s46", spin_text(a, 0, 256), 56, lo=50))
            ops.append(Op(tr_wrap("s_waitcnt vmcnt(0) lgkmcnt(0)\ns_barrier"), "S", 63, lo=63, hard=63, after=list(ops)))
            schedule(a, mfmas(0, isv), ops)
            if st == 1:
                a("s_cmp_eq_u32 s51, 7")
                a(f"s_cbranch_scc1 {last}")
            rd = spread(reads(1 - st, 0, 0), "M", 0, 50)
            pre = []
            if st == 0:
                pre = [Op("s_cmp_ge_u32 s49, 1024\ns_cselect_b32 s18, 0, s18\ns_cselect_b32 s22, 0, s22", "S", 0, hard=0)]
            dm, dl = grp_sched([dma_grp(st, g) for g in range(4)], 1, ENV("GD1", 56), after=pre)
            sig = when("s_cmp_eq_u32 s51, s53", one_lane(f"buffer_atomic_add v{ONE}, v{ZERO}, s[24:27], 0 offen sc1"), 58, after=dl)
            ops = rd + pre + dm + [sig]
            cnt_after = [sig]
            if st == 0:
                p_ = when("s_cmp_eq_u32 s51, s63", pf, 60, after=dl)
                ops.append(p_)
                cnt_after.append(p_)
            ops.append(Op("s_add_u32 s51, s51, 1", "S", 62, after=cnt_after))
            ops.append(Op("s_waitcnt lgkmcnt(0)", "S", 63, lo=63, hard=63, after=rd))
            schedule(a, mfmas(1, isv), ops)
        a(f"s_branch {loop}")
        a.label(last)
        stamp(a, 2)
        pairs = {pair_n(c, j, isv): (c, j) for c in range(4) for j in range(8)}
        seq = list(range(8))
        for k in range(8):
            seq += [24 + k, 8 + 2 * k, 9 + 2 * k]
        mf, ops = [], []
        done = {}
        tuse = []
        for pos, n in enumerate(seq):
            c, j = pairs[n]
            mf += [mf1(2 * c, j, 1, isv), mf1(2 * c + 1, j, 1, isv)]
            g0 = 2 * pos + 1 + 4
            d = PK + 4 * n
            if n < 24:
                x, y = 64 + 4 * n, 160 + 4 * n
                tx = [f"v_cvt_pk_bf16_f32 v{d}, v{x}, v{x+1}", f"v_cvt_pk_bf16_f32 v{d+1}, v{x+2}, v{x+3}",
                      f"v_cvt_pk_bf16_f32 v{d+2}, v{y}, v{y+1}", f"v_cvt_pk_bf16_f32 v{d+3}, v{y+2}, v{y+3}"]
                o = spread(tx, "A", g0, g0 + 2)
            else:
                x = 128 + 8 * (n - 24)
                tx = [f"v_accvgpr_read_b32 v{PT+r}, a{x+r}" for r in range(8)]
                tx += [f"v_cvt_pk_bf16_f32 v{d+r}, v{PT+2*r}, v{PT+2*r+1}" for r in range(4)]
                o = spread(tx, "A", g0, g0 + 5)
                o[0].after += tuse + [done[n - 24]]
                tuse = [o[-1]]
            done[n] = o[-1]
            ops += o
        ld, ll = grp_sched([wdma(0), xloads(0), xloads(1), wdma(1), xloads(2)], 0, 40)
        ops += ld
        bar = Op("s_waitcnt vmcnt(16)\ns_barrier", "S", 44, lo=44, after=ll)
        rd = spread(wreads(0, 0, 0), "M", 45, 60)
        rd[0].after.append(bar)
        ops += [bar] + rd
        schedule(a, mf, ops)
        if not isv:
            a(f"s_branch {joined}")
    a.label(joined)
    a(tr_wrap("s_waitcnt vmcnt(12) lgkmcnt(0)"))

    NS = ENV("NS", 20)
    PSIG = NS + 3
    PPOLL = ENV("PPOLL", 27)
    assert PSIG % 2 == 1 and PPOLL % 2 == 1 and PSIG < PPOLL
    queue = ["W0"] * 4 + ["X0"] * 4 + ["X1"] * 4 + ["W1"] * 4 + ["X2"] * 4

    def younger(tag):
        if tag not in queue:
            return 63
        return len(queue) - 1 - max(i for i, t in enumerate(queue) if t == tag)

    kvsrd = ["s_lshl_b32 s31, s28, 14", "s_add_u32 s16, s6, s31\ns_addc_u32 s17, s7, 0",
             f"s_add_u32 s20, s16, 0x{VF_OFF:x}\ns_addc_u32 s21, s17, 0", f"s_add_u32 s16, s16, 0x{KF_OFF:x}\ns_addc_u32 s17, s17, 0",
             "s_and_b32 s17, s17, 0xffff", "s_and_b32 s21, s21, 0xffff", "s_lshl_b32 s31, s29, 20", "s_sub_u32 s18, 0xf84000, s31",
             "s_mov_b32 s22, s18",
             f"s_add_u32 s24, s6, 0x{KVC_OFF:x}\ns_addc_u32 s25, s7, 0", "s_and_b32 s25, s25, 0xffff", "s_mov_b32 s26, 4096"]

    def kdma():
        return ("s_mov_b32 m0, s34", [f"buffer_load_dwordx4 v{V_LANE16}, s[16:19], s32 offen offset:{i*1024}{LDF} lds" for i in range(4)],
                "s_add_u32 s32, s32, 0x80000\ns_add_u32 s34, s34, 0x4000")

    def vdma():
        return ("s_mov_b32 m0, s35", [f"buffer_load_dwordx4 v{V_LANE16}, s[20:23], s33 offen offset:{i*1024}{LDF} lds" for i in range(4)],
                "s_add_u32 s33, s33, 0x80000\ns_add_u32 s35, s35, 0x4000")

    sn = 0
    for ks in range(32):
        st, sp = ks // 2, ks % 2
        ops = []
        rd = []
        if ks < 31:
            rd = spread(wreads(st, 1, 1) if sp == 0 else wreads(st + 1, 0, 0), "M", 0, 22)
        ops += rd
        grps, tags = [], []
        if sp == 1 and st + DW < 16:
            grps.append(wdma(st + DW)); tags.append(f"W{st+DW}")
        if ks + DX < 32:
            grps.append(xloads(ks + DX)); tags.append(f"X{ks+DX}")
        while sn < 32 and sn < (ks + 1) * 32 // NS:
            grps.append(kvstore(sn)); tags.append("S"); sn += 1
        head = []
        if ks == 0:
            ops += spread(kvsrd, "S", 6, 30)
        if ks == PSIG:
            assert younger("S") >= prevw
            head = [when("s_cmp_eq_u32 s30, 0", one_lane(f"buffer_atomic_add v{ONE}, v{ZERO}, s[24:27], s54 offen sc1"), 0)]
            ops += spread(k2.kv_first(), "S", 8, 20)
        if ks == PPOLL:
            head = [when("s_cmp_eq_u32 s30, 0", f"buffer_load_dword v{VPOLL}, v{ZERO}, s[24:27], s55 offen sc1", 0)]
            qpoll = len(queue)
        if ks == PPOLL + 2:
            grps += [kdma(), kdma()]; tags += ["K0", "K1"]
        if ks == PPOLL + 3:
            grps += [vdma(), kdma()]; tags += ["V0", "K2"]
        if ks == PPOLL + 4:
            grps += [vdma()]; tags += ["V1"]
        ops += head
        if grps:
            g, _ = grp_sched(grps, 1, 28, after=head)
            ops += g
        for gr, tg in zip(grps, tags):
            queue += [tg] * len(gr[1])
        if ks < 31:
            nk = ks + 1
            wv = younger(f"X{nk}")
            if nk % 2:
                wv = min(wv, younger(f"W{nk // 2 + 1}"))
            prevw = wv
            wtxt = f"s_waitcnt vmcnt({wv}) lgkmcnt(0)"
            if ks == PPOLL + 1:
                ops.append(when("s_cmp_eq_u32 s30, 0", f"s_waitcnt vmcnt({len(queue) - qpoll})\n" + spin_text(a, "s55", 16), 29, lo=28, after=[o for o in ops if o.cls == "V"]))
            if nk % 2:
                wtxt = tr_wrap(wtxt + "\ns_barrier") if nk % 4 == 1 else wtxt + "\ns_barrier"
            ops.append(Op(wtxt, "S", 31, lo=31, hard=31, after=[o for o in ops if o.cls in "MVB"]))
        mf = []
        for db in range(8):
            for qb in range(4):
                k, c = qacc(db, qb)
                r = f"{k}[{c}:{c+3}]"
                mf.append(mfma16(r, aq(QF[sp] + 4 * db), aq(XR + (ks % 4) * 16 + 4 * qb), "0" if ks == 0 else r))
        schedule(a, mf, ops)
    assert PPOLL + 4 <= 31
    stamp(a, 3)
    a.srd_off(24, 6, CTX_OFF, 16 << 20)
    attention_phase(a, end, 0, qacc, early=True)
    for (sl, txt, ret) in stubs:
        a.label(sl)
        a(txt)
        a(f"s_branch {ret}")
    a.end_kernel(name, 256, 256)
    a.launch(name, 256, 256, 163840)
```

```python
class Asm:
    def __init__(self):
        self.lines = []
        self.launches = []
        self.kernels = []
        self._uid = 0

    def emit(self, s=""):
        for ln in s.split("\n"):
            ln = ln.strip()
            if not ln:
                continue
            if ln.endswith(":") or ln.startswith("."):
                self.lines.append(ln)
            else:
                self.lines.append("    " + ln)

    __call__ = emit

    def uid(self, base="L"):
        self._uid += 1
        return f"{base}_{self._uid}"

    def label(self, name):
        self.lines.append(f"{name}:")

    def begin_kernel(self, name):
        self.lines.append(f".globl {name}")
        self.lines.append(".p2align 8")
        self.lines.append(f".type {name},@function")
        self.lines.append(f"{name}:")

    def end_kernel(self, name, vgpr, agpr=0, sgpr=102, extra=()):
        accum = max(4, (vgpr + 3) // 4 * 4)
        nfv = accum + agpr if agpr else vgpr
        assert accum <= 256 and nfv <= 512, (vgpr, agpr)
        self.kernels.append((name, nfv, accum, sgpr, extra))

    def launch(self, name, grid, block, lds):
        self.launches.append((name, grid, block, lds))

    def srd(self, d, base, nbytes):
        self.emit(f"s_mov_b32 s{d}, s{base}")
        self.emit(f"s_and_b32 s{d+1}, s{base+1}, 0xffff")
        self.emit(f"s_mov_b32 s{d+2}, 0x{nbytes:x}")
        self.emit(f"s_mov_b32 s{d+3}, 0x00020000")

    def srd_off(self, d, base, off, nbytes):
        self.emit(f"s_add_u32 s{d}, s{base}, 0x{off:x}")
        self.emit(f"s_addc_u32 s{d+1}, s{base+1}, 0")
        self.emit(f"s_and_b32 s{d+1}, s{d+1}, 0xffff")
        self.emit(f"s_mov_b32 s{d+2}, 0x{nbytes:x}")
        self.emit(f"s_mov_b32 s{d+3}, 0x00020000")

    def text(self, header=""):
        out = []
        if header:
            out.append(header.rstrip("\n"))
        for (name, grid, block, lds) in self.launches:
            out.append(f"; @launch kernel={name} grid=({grid},1,1) block=({block},1,1) lds={lds}")
        out.append('.amdgcn_target "amdgcn-amd-amdhsa--gfx950"')
        out.append(".text")
        out += self.lines
        out.append('.section .rodata,"a"')
        for (name, nfv, accum, sgpr, extra) in self.kernels:
            out.append(".p2align 6")
            out.append(f".amdhsa_kernel {name}")
            out.append(f"  .amdhsa_next_free_vgpr {nfv}")
            out.append(f"  .amdhsa_next_free_sgpr {sgpr}")
            out.append(f"  .amdhsa_accum_offset {accum}")
            out.append("  .amdhsa_group_segment_fixed_size 0")
            out.append("  .amdhsa_kernarg_size 112")
            out.append("  .amdhsa_user_sgpr_count 2")
            out.append("  .amdhsa_user_sgpr_kernarg_segment_ptr 1")
            out.append("  .amdhsa_system_sgpr_workgroup_id_x 1")
            out += ["  " + e for e in extra]
            out.append(".end_amdhsa_kernel")
        return "\n".join(out) + "\n"


def vr(b, n=1, p="v"):
    return f"{p}{b}" if n == 1 else f"{p}[{b}:{b+n-1}]"


def ar(b, n=1):
    return vr(b, n, "a")


def sr(b, n=1):
    return vr(b, n, "s")


def interleave(main, fill, start=0, per=1):
    raise NotImplementedError
```

```python
from asmlib import *

XN_OFF = 0x0000000
KF_OFF = 0x1000000
VF_OFF = 0x2000000
CTX_OFF = 0x3000000
H_OFF = 0x4000000
STATS_OFF = 0x4800000
KVC_OFF = STATS_OFF + 24576
WRSUM_OFF = KVC_OFF + 128
XFL_OFF = STATS_OFF + 28672
PCT_OFF = STATS_OFF + 61440
RPK_OFF = 0x6000000
CTC_OFF = STATS_OFF + 69632
XCH_OFF = 0x5000000
ZERO_BYTES = 86016
PART_OFF = 0x4900000
SEL_OFF = 0x4C00000

ARG = dict(x=0, ckv=8, wq=16, wuk=24, wuv=32, wo=40, bx=48, wr=56, wg=64, wu=72, wd=80, out=88, dbg=96, ws=104)


def mfma16(d, a, b, c):
    return f"v_mfma_f32_16x16x32_bf16 {d}, {a}, {b}, {c}"


def weave(a, mf, fills, start=0, end=None):
    n = len(mf)
    if end is None:
        end = n
    span = max(1, end - start)
    fi = 0
    for m in range(n):
        a(mf[m])
        if m >= start:
            tgt = min(len(fills), ((m - start + 1) * len(fills) + span - 1) // span)
            while fi < tgt:
                a(fills[fi])
                fi += 1
    while fi < len(fills):
        a(fills[fi])
        fi += 1


def weave2(a, mf, streams):
    n = len(mf)
    idx = [0] * len(streams)
    for m in range(n):
        a(mf[m])
        for si, (fills, start, end) in enumerate(streams):
            if m >= start:
                span = max(1, end - start)
                tgt = min(len(fills), ((m - start + 1) * len(fills) + span - 1) // span)
                while idx[si] < tgt:
                    a(fills[idx[si]])
                    idx[si] += 1
    for si, (fills, start, end) in enumerate(streams):
        while idx[si] < len(fills):
            a(fills[idx[si]])
            idx[si] += 1


def ln_rows_half_wave(a, vx, vt, vo=None, keep=None):
    if vo is None:
        vo = vx
    f = vt
    src = keep if keep is not None else f
    s = vt + 32
    t = vt + 34
    q = vt + 36
    mb = vt + 38
    P = lambda r: f"v[{r}:{r+1}]"
    for i in range(16):
        a(f"v_lshlrev_b32 v{src+2*i}, 16, v{vx+i}")
        a(f"v_and_b32 v{src+2*i+1}, 0xffff0000, v{vx+i}")
    a(f"v_pk_add_f32 {P(s)}, {P(src)}, {P(src+2)}")
    a(f"v_pk_add_f32 {P(t)}, {P(src+4)}, {P(src+6)}")
    for i in range(8, 32, 4):
        a(f"v_pk_add_f32 {P(s)}, {P(s)}, {P(src+i)}")
        a(f"v_pk_add_f32 {P(t)}, {P(t)}, {P(src+i+2)}")
    a(f"v_pk_add_f32 {P(s)}, {P(s)}, {P(t)}")
    a(f"v_add_f32 v{s}, v{s}, v{s+1}")
    half_wave_sum(a, s, t)
    a(f"v_mul_f32 v{s}, 0xba800000, v{s}")
    a(f"v_mov_b32 v{s+1}, v{s}")
    a(f"v_pk_add_f32 {P(t)}, {P(src)}, {P(s)}")
    a(f"v_pk_add_f32 {P(mb)}, {P(src+2)}, {P(s)}")
    a(f"v_pk_mul_f32 {P(q)}, {P(t)}, {P(t)}")
    a(f"v_pk_fma_f32 {P(q)}, {P(mb)}, {P(mb)}, {P(q)}")
    for i in range(4, 32, 4):
        a(f"v_pk_add_f32 {P(t)}, {P(src+i)}, {P(s)}")
        a(f"v_pk_add_f32 {P(mb)}, {P(src+i+2)}, {P(s)}")
        a(f"v_pk_fma_f32 {P(q)}, {P(t)}, {P(t)}, {P(q)}")
        a(f"v_pk_fma_f32 {P(q)}, {P(mb)}, {P(mb)}, {P(q)}")
    a(f"v_add_f32 v{q}, v{q}, v{q+1}")
    half_wave_sum(a, q, t)
    a(f"v_mul_f32 v{q}, 0x3a800000, v{q}")
    a(f"v_cvt_pk_bf16_f32 v{mb}, v{s}, v{q}")
    a(f"v_and_b32 v{q}, 0xffff0000, v{mb}")
    a(f"v_lshlrev_b32 v{mb}, 16, v{mb}")
    a(f"v_add_f32 v{q}, 0x3727c5ac, v{q}")
    a(f"v_mov_b32 v{mb+1}, v{mb}")
    a(f"v_cvt_pk_bf16_f32 v{q}, v{q}, v{q}")
    a(f"v_and_b32 v{q}, 0xffff0000, v{q}")
    a(f"v_sqrt_f32 v{q}, v{q}")
    for i in range(0, 32, 2):
        a(f"v_pk_add_f32 {P(f+i)}, {P(src+i)}, {P(mb)}")
    a(f"v_cvt_pk_bf16_f32 v{q}, v{q}, v{q}")
    a(f"v_and_b32 v{q}, 0xffff0000, v{q}")
    a(f"v_rcp_f32 v{q}, v{q}")
    for i in range(16):
        a(f"v_cvt_pk_bf16_f32 v{vo+i}, v{f+2*i}, v{f+2*i+1}")
    a(f"v_mov_b32 v{q+1}, v{q}")
    for i in range(16):
        a(f"v_lshlrev_b32 v{f+2*i}, 16, v{vo+i}")
        a(f"v_and_b32 v{f+2*i+1}, 0xffff0000, v{vo+i}")
    for i in range(0, 32, 2):
        a(f"v_pk_mul_f32 {P(f+i)}, {P(f+i)}, {P(q)}")
    for i in range(16):
        a(f"v_cvt_pk_bf16_f32 v{vo+i}, v{f+2*i}, v{f+2*i+1}")


def half_wave_sum(a, s, t):
    a("s_nop 1")
    a(f"v_add_f32_dpp v{s}, v{s}, v{s} quad_perm:[1,0,3,2] row_mask:0xf bank_mask:0xf")
    a("s_nop 1")
    a(f"v_add_f32_dpp v{s}, v{s}, v{s} quad_perm:[2,3,0,1] row_mask:0xf bank_mask:0xf")
    a("s_nop 1")
    a(f"v_add_f32_dpp v{s}, v{s}, v{s} row_half_mirror row_mask:0xf bank_mask:0xf")
    a("s_nop 1")
    a(f"v_add_f32_dpp v{s}, v{s}, v{s} row_mirror row_mask:0xf bank_mask:0xf")
    a(f"v_mov_b32 v{t}, v{s}")
    a("s_nop 1")
    a(f"v_permlane16_swap_b32 v{s}, v{t}")
    a("s_nop 1")
    a(f"v_add_f32 v{s}, v{s}, v{t}")


PROF_OFF = 0x8000000
PROF = False


def stamp(a, i):
    if PROF:
        a(f"s_memrealtime s[{64+4*i}:{65+4*i}]")
        a(f"s_memtime s[{66+4*i}:{67+4*i}]")


def stamp_dump(a, kidx, n, ws_pair):
    if not PROF:
        return
    a("s_waitcnt vmcnt(0) lgkmcnt(0)")
    stamp(a, n)
    a("s_waitcnt lgkmcnt(0)")
    a.srd_off(96, ws_pair, PROF_OFF + kidx * 512 * 64, 512 * 64)
    a("s_lshl_b32 s100, s2, 6")
    a("v_mov_b32 v1, s100")
    for i in range(n + 1):
        a(f"v_mov_b32 v2, s{64+4*i}")
        a(f"buffer_store_dword v2, v1, s[96:99], 0 offen offset:{4*i}")
        a(f"v_mov_b32 v2, s{66+4*i}")
        a(f"buffer_store_dword v2, v1, s[96:99], 0 offen offset:{32+4*i}")


def ring_plan(DX, DW, nx=4, nw=4, nph=8, trips=4):
    order = []
    init = []
    for p in range(-64, 0):
        if p % 2 and (p - 1) // 2 + DW >= 0:
            init.append(("W", (p - 1) // 2 + DW))
        if p + DX >= 0:
            init.append(("X", p + DX))
    init.sort(key=lambda o: 0 if o == ("W", 0) else (1 if o == ("X", 0) else 2))
    order = list(init)

    def younger(op):
        i = order.index(op)
        return sum(nx if o[0] == "X" else nw for o in order[i + 1:])
    first = younger(("W", 0))
    waits = [99] * nph
    for p in range(nph * trips):
        n = younger(("X", p))
        if p % 2:
            n = min(n, younger(("W", (p - 1) // 2 + 1)))
        waits[p % nph] = min(waits[p % nph], n)
        if p % 2:
            order.append(("W", (p - 1) // 2 + DW))
        order.append(("X", p + DX))
    return init, first, waits


def zero_acc(a, base, n, vz, kind="a", init=True):
    if init:
        for r in range(4):
            a(f"v_mov_b32 v{vz+r}, 0")
        a("s_nop 1")
    for b in range(base, base + n, 16):
        a(f"v_mfma_f32_32x32x16_bf16 {kind}[{b}:{b+15}], v[{vz}:{vz+3}], v[{vz}:{vz+3}], 0")


TRACE_OFF = 0x9000000
TRACE = False


def tr_wrap(text):
    if not TRACE:
        return text
    rec = "s_mov_b64 exec, s[98:99]\nv_mov_b32 v0, s96\ns_mov_b64 exec, -1\ns_lshl_b64 s[98:99], s[98:99], 1"
    return "s_memtime s[96:97]\n" + text + "\n" + rec + "\ns_memtime s[96:97]\ns_waitcnt lgkmcnt(0)\n" + rec


def tr_init(a):
    if TRACE:
        a("s_mov_b64 s[98:99], 1")
        a("v_mov_b32 v0, 0")


def tr_dump(a, ws_pair, swave, vlane16):
    if TRACE:
        a.srd_off(96, ws_pair, TRACE_OFF, 256 * 1024)
        a("s_lshl_b32 s100, s2, 2")
        a(f"s_add_u32 s100, s100, s{swave}")
        a("s_lshl_b32 s100, s100, 8")
        a(f"v_lshrrev_b32 v2, 2, v{vlane16}")
        a("buffer_store_dword v0, v2, s[96:99], s100 offen")


def code_addr(a, label, vpair, vline, stmp):
    here = a.uid("pc")
    a(f"s_getpc_b64 s[{stmp}:{stmp+1}]")
    a.label(here)
    a(f"s_add_u32 s{stmp}, s{stmp}, {label}-{here}")
    a(f"s_addc_u32 s{stmp+1}, s{stmp+1}, 0")
    a(f"v_lshlrev_b32 v{vpair}, 7, v{vline}")
    a(f"v_mov_b32 v{vpair+1}, s{stmp+1}")
    a(f"v_add_co_u32 v{vpair}, vcc, s{stmp}, v{vpair}")
    a("s_nop 1")
    a(f"v_addc_co_u32 v{vpair+1}, vcc, 0, v{vpair+1}, vcc")
```

```python
from common import *
import common, os
from sched import Op, spread, schedule
import k2
from k2 import vq, aq, V_LANE16, V_VV, V_NINF, attention_phase, LDF

SPIN_MAX = 1 << 20
KO = set(os.environ.get('KO', '').split(','))
NT = ' nt' if 'nt' in KO else ''
ENV = lambda k, d: int(os.environ.get(k, str(d)))

ZERO, ONE = 8, 9
XD, WD, XRD, WRD = 10, 18, 26, 28
QX, QWD, QWR = 36, 38, 42
VPF, VDUM, VPOLL, VXST, VLW, VLR = 50, 51, 52, 53, 54, 55
PT = 56
PK = 64
WRING = 98304


def spin_text(a, soff, target):
    ok, lp = a.uid("spin_ok"), a.uid("spin")
    return "\n".join([
        f"v_readfirstlane_b32 s31, v{VPOLL}", f"s_cmp_ge_u32 s31, {target}", f"s_cbranch_scc1 {ok}",
        f"s_mov_b32 s40, {SPIN_MAX}", f"{lp}:", "s_sleep 8",
        f"buffer_load_dword v{VPOLL}, v{ZERO}, s[24:27], {soff} offen sc1", "s_waitcnt vmcnt(0)",
        f"v_readfirstlane_b32 s31, v{VPOLL}", "s_sub_u32 s40, s40, 1", "s_cselect_b32 s31, -1, s31",
        f"s_cmp_lt_u32 s31, {target}", f"s_cbranch_scc1 {lp}", f"{ok}:"])


def one_lane(text):
    return f"s_mov_b64 exec, 1\n{text}\ns_mov_b64 exec, -1"


def gen_k12(a, name="k12_kernel"):
    a.begin_kernel(name)
    end = a.uid("k12_end")
    stubs = []

    def when(cmp_text, body, want, **kw):
        l, r = a.uid("k12_ool"), a.uid("k12_oolret")
        if "nosig" in KO and "s[24:27]" in body:
            body = "s_nop 0"
        stubs.append((l, body, r))
        return Op(f"{cmp_text}\ns_cbranch_scc1 {l}\n{r}:", "B", want, **kw)

    a("s_cmp_ge_u32 s2, 256")
    a(f"s_cbranch_scc1 {end}")
    stamp(a, 0)
    a(f"s_load_dwordx4 s[36:39], s[0:1], {ARG['x']}")
    a(f"s_load_dwordx4 s[40:43], s[0:1], {ARG['wuk']}")
    a(f"s_load_dwordx2 s[4:5], s[0:1], {ARG['wq']}")
    a(f"s_load_dwordx4 s[60:63], s[0:1], {ARG['dbg']}")
    CE = ENV("CE", 48)
    a("s_lshr_b32 s59, s2, 3")
    a("s_lshl_b32 s58, s59, 4")
    a("v_add_u32 v6, s58, v0")
    a(f"v_cmp_gt_u32 vcc, {CE}, v0")
    a(f"v_cmp_gt_u32 s[56:57], {CE + 16}, v0")
    a("s_nop 0")
    a("v_cndmask_b32 v6, v6, v0, vcc")
    code_addr(a, "k12_code0", 58, 6, 52)
    a.label("k12_code0")
    a("s_mov_b64 exec, s[56:57]")
    cs = a.uid("k12_nocode")
    a(f"s_cbranch_execz {cs}")
    a(f"global_load_dword v{VDUM}, v[58:59], off")
    a.label(cs)
    a("s_mov_b64 exec, -1")
    a("s_and_b32 s58, s2, 7")
    a("s_lshr_b32 s59, s2, 3")
    a("s_and_b32 s45, s59, 7")
    a("s_lshr_b32 s57, s59, 3")
    a("s_and_b32 s44, s57, 1")
    a("s_lshl_b32 s52, s58, 1")
    a("s_add_u32 s44, s44, s52")
    a("s_lshr_b32 s57, s57, 1")
    W, LN_ = 2, 3
    a(f"v_lshrrev_b32 v{W}, 6, v0")
    a(f"v_and_b32 v{LN_}, 63, v0")
    a(f"v_readfirstlane_b32 s30, v{W}")
    a(f"v_lshlrev_b32 v{V_LANE16}, 4, v{LN_}")
    VX, VT = 64, 80
    TOK, L32 = 60, 61
    a(f"v_lshrrev_b32 v{TOK}, 5, v{LN_}")
    a(f"v_lshl_add_u32 v{TOK}, v{W}, 1, v{TOK}")
    a(f"v_and_b32 v{L32}, 31, v{LN_}")
    a(f"v_lshlrev_b32 v6, 11, v{TOK}")
    a(f"v_lshl_add_u32 v62, v{L32}, 4, v6")
    a("s_lshl_b32 s52, s2, 14")
    a(f"v_lshrrev_b32 v56, 3, v{LN_}")
    a(f"v_and_b32 v57, 7, v{LN_}")
    a("v_lshrrev_b32 v58, 1, v56")
    a("v_xor_b32 v6, v57, v58")
    a("v_xor_b32 v7, 4, v6")
    a(f"v_lshl_add_u32 v58, v{W}, 6, v56")
    a("v_lshlrev_b32 v58, 10, v58")
    a("s_lshl_b32 s47, s45, 18")
    a("v_add_u32 v58, s47, v58")
    a(f"v_lshl_add_u32 v{XD}, v6, 4, v58")
    a(f"v_lshl_add_u32 v{XD+1}, v7, 4, v58")
    for i in range(7, -1, -1):
        a(f"v_add_u32 v{XD+i}, {i*8*1024 - (i%4)*1024}, v{XD + (i%2)}")
    a(f"v_lshrrev_b32 v6, 5, v{LN_}")
    a(f"v_bfe_u32 v7, v{LN_}, 1, 4")
    a(f"v_and_b32 v59, 1, v{LN_}")
    a(f"v_lshl_add_u32 v58, v{W}, 4, v6")
    a("v_lshlrev_b32 v58, 13, v58")
    a("v_lshl_add_u32 v58, v59, 4, v58")
    a("s_lshl_b32 s47, s44, 9")
    a("v_add_u32 v58, s47, v58")
    a("v_xor_b32 v7, v7, v6")
    for i in range(8):
        fx = ((2 * i) & 3) | ((((2 * i) >> 3) & 1) << 2)
        a(f"v_xor_b32 v6, {fx}, v7")
        a(f"v_lshl_add_u32 v6, v6, 5, v58")
        a(f"v_add_u32 v{WD+i}, {2*i*8192 - (i%4)*1024}, v6")
    XB, WB = 0, 65536
    a("s_lshl_b32 s48, s30, 13")
    a("s_mov_b32 s49, 0")
    a("s_mov_b32 s50, 0")
    a("s_waitcnt lgkmcnt(0)")
    a.srd(24, 36, 4 << 20)
    for i in range(4):
        a(f"buffer_load_dwordx4 v[{VX+4*i}:{VX+4*i+3}], v62, s[24:27], s52 offen offset:{i*512}{NT}")
    a.srd(16, 38, 2 << 20)
    a("s_cmp_eq_u32 s57, 0")
    a("s_cselect_b32 s20, s40, s42")
    a("s_cselect_b32 s21, s41, s43")
    a("s_and_b32 s21, s21, 0xffff")
    a("s_mov_b32 s22, 0x400000")
    a("s_mov_b32 s23, 0x00020000")

    def dma_grp(stage, g):
        op, i0 = g // 2, (g % 2) * 4
        m = f"s_add_u32 m0, s48, {(XB if op == 0 else WB) + stage*32768 + i0*1024}"
        if op == 0:
            ld = [f"buffer_load_dwordx4 v{XD+i0+i}, s[16:19], s49 offen offset:{i*1024} lds" for i in range(4)]
        else:
            ld = [f"buffer_load_dwordx4 v{WD+i0+i}, s[20:23], s50 offen offset:{i*1024}{NT} lds" for i in range(4)]
        tr = {1: "s_add_u32 s49, s49, 128", 3: "s_add_u32 s50, s50, 0x80000"}.get(g)
        return m, ld, tr

    def emit_grp(m, ld, tr):
        a(m)
        a("s_nop 0")
        for t in ld:
            a(t)
        if tr:
            a(tr)

    def grp_sched(grps, lo, hi, after=()):
        ops, prev = [], list(after)
        tot = sum(len(g[1]) for g in grps)
        step = (hi - lo) / float(tot)
        k = 0
        for (m, ld, tr) in grps:
            mo = None
            if m:
                mo = Op(m, "S", lo + step * k - 1, lo=lo, after=prev)
                ops.append(mo)
            for t in ld:
                o = Op(t, "V", lo + 1 + step * k, lo=lo, after=prev, prev_gap=[mo] if mo else [])
                ops.append(o)
                prev = [o]
                k += 1
            if tr:
                for t in tr.split("\n"):
                    o = Op(t, "S", lo + step * k, after=prev)
                    ops.append(o)
                    prev = [o]
        return ops, prev

    for g in range(4):
        emit_grp(*dma_grp(0, g))
    a("s_mov_b64 s[6:7], s[62:63]")
    a.srd_off(8, 6, XN_OFF, 4 << 20)
    a.srd(12, 4, 8 << 20)
    a.srd_off(32, 6, KF_OFF, 32 << 20)
    a.srd(24, 60, 256)
    a("s_lshl_b32 s28, s58, 2")
    a("s_and_b32 s31, s59, 3")
    a("s_add_u32 s28, s28, s31")
    a("s_lshr_b32 s29, s59, 2")
    a("s_lshl_b32 s42, s29, 7")
    a("s_sub_u32 s43, 1920, s42")
    a("s_lshl_b32 s31, s30, 5")
    a("s_add_u32 s38, s42, s31")
    a("s_add_u32 s39, s43, s31")
    a("s_lshl_b32 s60, s30, 12")
    a("s_mov_b32 s61, 0")
    a("s_mov_b32 s62, 0")
    a("s_lshl_b32 s47, s44, 1")
    a("s_lshr_b32 s52, s30, 1")
    a("s_add_u32 s47, s47, s52")
    a("s_lshl_b32 s47, s47, 14")
    a("s_lshl_b32 s52, s45, 1")
    a("s_and_b32 s53, s30, 1")
    a("s_add_u32 s52, s52, s53")
    a("s_lshl_b32 s52, s52, 20")
    a("s_add_u32 s47, s47, s52")
    a("s_lshl_b32 s52, s57, 24")
    a("s_add_u32 s47, s47, s52")
    assert VF_OFF - KF_OFF == 1 << 24
    a("s_lshl_b32 s54, s44, 8")
    a("s_lshr_b32 s55, s28, 1")
    a("s_lshl_b32 s55, s55, 8")
    a("s_and_b32 s53, s59, 3")
    a("s_add_u32 s53, s53, 1")
    a("s_cmp_eq_u32 s30, 0")
    a("s_cselect_b32 s53, s53, -1")
    a("s_cselect_b32 s46, 6, -1")
    a("v_lshlrev_b32 v6, 13, v56")
    a(f"v_lshl_add_u32 v{VPF}, v57, 7, v6")
    a("s_lshl_b32 s56, s30, 5")
    a("s_add_u32 s56, s56, s59")
    a("s_lshl_b32 s56, s56, 16")
    a("s_lshl_b32 s52, s58, 10")
    a("s_add_u32 s56, s56, s52")
    a("s_lshl_b32 s63, s30, 1")
    pf = f"buffer_load_dword v{VDUM}, v{VPF}, s[12:15], s56 offen" if "nowq" not in KO else "s_nop 0"
    XL = 131072
    a(f"v_mul_u32_u24 v6, 2064, v{TOK}")
    a(f"v_lshl_add_u32 v6, v{L32}, 4, v6")
    a(f"v_add_u32 v{VLW}, {XL}, v6")
    a("v_mul_u32_u24 v7, 2064, v57")
    a("v_lshl_add_u32 v7, v56, 4, v7")
    a(f"v_lshl_add_u32 v7, v{W}, 9, v7")
    a(f"v_add_u32 v{VLR}, {XL}, v7")
    a("v_lshrrev_b32 v7, 2, v56")
    a(f"v_lshl_add_u32 v7, v{W}, 3, v7")
    a("v_lshlrev_b32 v7, 17, v7")
    a("v_and_b32 v6, 3, v56")
    a("v_lshl_add_u32 v7, v6, 8, v7")
    a("v_lshl_add_u32 v7, v57, 4, v7")
    a("s_lshr_b32 s52, s2, 1")
    a("s_lshl_b32 s52, s52, 10")
    a("s_and_b32 s31, s2, 1")
    a("s_lshl_b32 s31, s31, 7")
    a("s_add_u32 s52, s52, s31")
    a(f"v_add_u32 v{VXST}, s52, v7")
    a(f"v_and_b32 v56, 15, v{LN_}")
    a(f"v_lshrrev_b32 v57, 4, v{LN_}")
    a("v_lshrrev_b32 v6, 1, v56")
    a("v_xor_b32 v6, v6, v57")
    a(f"v_and_b32 v7, 1, v{W}")
    a("v_lshl_add_u32 v7, v7, 7, v56")
    a("v_lshlrev_b32 v7, 7, v7")
    a(f"v_lshl_add_u32 v{XRD}, v6, 4, v7")
    a(f"v_xor_b32 v{XRD+1}, 64, v{XRD}")
    a("v_lshrrev_b32 v6, 2, v56")
    a("v_and_b32 v58, 1, v57")
    a("v_lshl_add_u32 v58, v58, 2, v6")
    a("v_lshl_add_u32 v59, v57, 3, v6")
    a(f"v_and_b32 v63, 3, v{LN_}")
    a("v_lshlrev_b32 v7, 9, v59")
    a(f"v_lshrrev_b32 v6, 1, v{W}")
    a("v_lshl_add_u32 v7, v6, 8, v7")
    a("v_lshl_add_u32 v7, v63, 3, v7")
    a(f"v_add_u32 v7, {WB}, v7")
    a("v_lshlrev_b32 v59, 8, v59")
    a("v_lshl_add_u32 v59, v63, 3, v59")
    a(f"v_add_u32 v59, {WRING}, v59")
    for j in range(8):
        a(f"v_xor_b32 v6, {j}, v58")
        a(f"v_lshl_add_u32 v{WRD+j}, v6, 5, v7")
        a(f"v_lshl_add_u32 v{QWR+j}, v6, 5, v59")
    a("s_lshl_b32 s31, s38, 6")
    a(f"v_add_u32 v{QX}, s31, v{V_LANE16}")
    a("s_lshl_b32 s31, s39, 6")
    a(f"v_add_u32 v{QX+1}, s31, v{V_LANE16}")
    a(f"v_bfe_u32 v6, v{LN_}, 1, 3")
    a(f"v_and_b32 v7, 1, v{LN_}")
    a(f"v_lshl_add_u32 v58, v{W}, 4, v57")
    a("v_lshlrev_b32 v58, 13, v58")
    a("v_lshl_add_u32 v58, v7, 4, v58")
    a("s_lshl_b32 s31, s28, 8")
    a("v_add_u32 v58, s31, v58")
    a("v_xor_b32 v6, v6, v57")
    for i in range(4):
        a(f"v_xor_b32 v7, {(i // 2) << 2}, v6")
        a(f"v_lshl_add_u32 v7, v7, 5, v58")
        a(f"v_add_u32 v{QWD+i}, {4*i*8192 - i*1024}, v7")
    a("v_lshlrev_b32 v6, 2, v57")
    a(f"v_sub_u32 v{V_VV}, v56, v6")
    a(f"v_mov_b32 v{V_NINF}, 0xff800000")
    a(f"v_mov_b32 v{ZERO}, 0")
    a(f"v_mov_b32 v{ONE}, 1")
    zero_acc(a, 128, 64, 56)
    zero_acc(a, 128, 128, 56, "v", init=False)
    a("s_waitcnt vmcnt(16)")
    ln_rows_half_wave(a, VX, VT)
    for i in range(4):
        a(f"ds_write_b128 v{VLW}, v[{VX+4*i}:{VX+4*i+3}] offset:{i*512}")
    for g in range(4):
        emit_grp(*dma_grp(1, g))
    a("s_waitcnt vmcnt(16) lgkmcnt(0)")
    a("s_barrier")
    XT = 192
    for i in range(4):
        a(f"ds_read_b128 {aq(XT+4*i)}, v{VLR} offset:{i*128}")
    zero_acc(a, 64, 64, 56, "v", init=False)

    FX = [0, 64]
    FW = [32, 96]

    def reads(stage, sp, buf):
        out = []
        for i in range(8):
            out.append(f"ds_read_b128 {aq(FX[buf]+4*i)}, v{XRD+sp} offset:{XB + stage*32768 + i*2048}")
            out.append(f"ds_read_b64_tr_b16 a[{FW[buf]+4*i}:{FW[buf]+4*i+1}], v{WRD+i} offset:{stage*32768 + sp*16384}")
            out.append(f"ds_read_b64_tr_b16 a[{FW[buf]+4*i+2}:{FW[buf]+4*i+3}], v{WRD+i} offset:{stage*32768 + sp*16384 + 2048}")
        return out

    def pair_n(c, j, isv):
        return (c * 8 + j) if isv else (j * 4 + c)

    def acc(i, j, isv):
        n = pair_n(i // 2, j, isv)
        if n < 24:
            return ("v", (64 if i % 2 == 0 else 160) + 4 * n)
        return ("a", 128 + 8 * (n - 24) + 4 * (i % 2))

    def mf1(i, j, buf, isv):
        FA, FB = (FX, FW) if isv else (FW, FX)
        k, c = acc(i, j, isv)
        r = f"{k}[{c}:{c+3}]"
        return mfma16(r, aq(FA[buf] + 4 * i), aq(FB[buf] + 4 * j), r)

    def mfmas(buf, isv):
        return [mf1(i, j, buf, isv) for i in range(8) for j in range(8)]

    skip = a.uid("k12_nostat")
    a(f"s_cmp_ge_u32 s2, {ZERO_BYTES // 4096}")
    a(f"s_cbranch_scc1 {skip}")
    a("s_lshl_b32 s52, s2, 12")
    a(f"s_add_u32 s52, s52, 0x{STATS_OFF - KF_OFF:x}")
    a("s_mov_b32 s34, -1")
    a("v_lshlrev_b32 v6, 4, v0")
    a("buffer_store_dwordx4 v[56:59], v6, s[32:35], s52 offen sc1")
    a(f"s_mov_b32 s34, 0x{32 << 20:x}")
    a.label(skip)
    stamp(a, 1)
    tr_init(a)
    for t in reads(0, 0, 0):
        a(t)
    a("s_mov_b32 s51, 0")
    a("s_waitcnt lgkmcnt(15)")
    for i in range(4):
        a(f"s_mov_b32 s52, {i*2*131072}")
        a(f"buffer_store_dwordx4 {aq(XT+4*i)}, v{VXST}, s[8:11], s52 offen sc1")
    a("s_waitcnt lgkmcnt(0)")
    lv, joined = a.uid("k12_v"), a.uid("k12_join")
    a("s_cmp_lg_u32 s57, 0")
    a(f"s_cbranch_scc1 {lv}")

    DX, DW = 3, 2
    XR = 192
    QF = [0, 32]

    def wdma(stage):
        return (f"s_add_u32 m0, s60, {WRING + (stage % 4)*16384}",
                [f"buffer_load_dwordx4 v{QWD+i}, s[12:15], s61 offen offset:{i*1024} lds" for i in range(4)], "s_add_u32 s61, s61, 0x80000")

    def xloads(ks):
        return (None, [f"buffer_load_dwordx4 {aq(XR + (ks % 4)*16 + 4*qb)}, v{QX+qb//2}, s[8:11], s62 offen offset:{(qb%2)*1024} sc1" for qb in range(4)],
                "s_add_u32 s62, s62, 0x20000")

    def kvstore(n):
        return (f"s_add_u32 s52, s47, {(n // 16) * 0x80000 + (((n % 16) * 1024) & ~4095)}",
                [f"buffer_store_dwordx4 v[{PK+n*4}:{PK+3+n*4}], v{V_LANE16}, s[32:35], s52 offen offset:{(n*1024) & 4095}{os.environ.get('STF', ' sc1')}"], None)

    def wreads(stage, sp, buf):
        out = []
        for j in range(8):
            b = QF[buf] + 4 * j
            out.append(f"ds_read_b64_tr_b16 a[{b}:{b+1}], v{QWR+j} offset:{(stage % 4)*16384 + sp*8192}")
            out.append(f"ds_read_b64_tr_b16 a[{b+2}:{b+3}], v{QWR+j} offset:{(stage % 4)*16384 + sp*8192 + 1024}")
        return out

    def qacc(db, qb):
        return ("v", 192 + (db * 2 + qb) * 4) if qb < 2 else ("a", 64 + (db * 2 + qb - 2) * 4)

    for isv in range(2):
        if isv:
            a.label(lv)
        loop, last = a.uid("k12_loop"), a.uid("k12_last")
        a.label(loop)
        for st in range(2):
            ops = spread(reads(st, 1, 1), "M", 0, 50)
            ops.append(when("s_cmp_eq_u32 s51, s46", f"buffer_load_dword v{VPOLL}, v{ZERO}, s[24:27], 0 offen sc1", 4) if st == 0 else
                       when("s_sub_u32 s52, s51, 1\ns_cmp_eq_u32 s52, s46", spin_text(a, 0, 256), 56, lo=50))
            ops.append(Op(tr_wrap("s_waitcnt vmcnt(0) lgkmcnt(0)\ns_barrier"), "S", 63, lo=63, hard=63, after=list(ops)))
            schedule(a, mfmas(0, isv), ops)
            if st == 1:
                a("s_cmp_eq_u32 s51, 7")
                a(f"s_cbranch_scc1 {last}")
            rd = spread(reads(1 - st, 0, 0), "M", 0, 50)
            pre = []
            if st == 0:
                pre = [Op("s_cmp_ge_u32 s49, 1024\ns_cselect_b32 s18, 0, s18\ns_cselect_b32 s22, 0, s22", "S", 0, hard=0)]
            dm, dl = grp_sched([dma_grp(st, g) for g in range(4)], 1, ENV("GD1", 56), after=pre)
            sig = when("s_cmp_eq_u32 s51, s53", one_lane(f"buffer_atomic_add v{ONE}, v{ZERO}, s[24:27], 0 offen sc1"), 58, after=dl)
            ops = rd + pre + dm + [sig]
            cnt_after = [sig]
            if st == 0:
                p_ = when("s_cmp_eq_u32 s51, s63", pf, 60, after=dl)
                ops.append(p_)
                cnt_after.append(p_)
            ops.append(Op("s_add_u32 s51, s51, 1", "S", 62, after=cnt_after))
            ops.append(Op("s_waitcnt lgkmcnt(0)", "S", 63, lo=63, hard=63, after=rd))
            schedule(a, mfmas(1, isv), ops)
        a(f"s_branch {loop}")
        a.label(last)
        stamp(a, 2)
        pairs = {pair_n(c, j, isv): (c, j) for c in range(4) for j in range(8)}
        seq = list(range(8))
        for k in range(8):
            seq += [24 + k, 8 + 2 * k, 9 + 2 * k]
        mf, ops = [], []
        done = {}
        tuse = []
        for pos, n in enumerate(seq):
            c, j = pairs[n]
            mf += [mf1(2 * c, j, 1, isv), mf1(2 * c + 1, j, 1, isv)]
            g0 = 2 * pos + 1 + 4
            d = PK + 4 * n
            if n < 24:
                x, y = 64 + 4 * n, 160 + 4 * n
                tx = [f"v_cvt_pk_bf16_f32 v{d}, v{x}, v{x+1}", f"v_cvt_pk_bf16_f32 v{d+1}, v{x+2}, v{x+3}",
                      f"v_cvt_pk_bf16_f32 v{d+2}, v{y}, v{y+1}", f"v_cvt_pk_bf16_f32 v{d+3}, v{y+2}, v{y+3}"]
                o = spread(tx, "A", g0, g0 + 2)
            else:
                x = 128 + 8 * (n - 24)
                tx = [f"v_accvgpr_read_b32 v{PT+r}, a{x+r}" for r in range(8)]
                tx += [f"v_cvt_pk_bf16_f32 v{d+r}, v{PT+2*r}, v{PT+2*r+1}" for r in range(4)]
                o = spread(tx, "A", g0, g0 + 5)
                o[0].after += tuse + [done[n - 24]]
                tuse = [o[-1]]
            done[n] = o[-1]
            ops += o
        ld, ll = grp_sched([wdma(0), xloads(0), xloads(1), wdma(1), xloads(2)], 0, 40)
        ops += ld
        bar = Op("s_waitcnt vmcnt(16)\ns_barrier", "S", 44, lo=44, after=ll)
        rd = spread(wreads(0, 0, 0), "M", 45, 60)
        rd[0].after.append(bar)
        ops += [bar] + rd
        schedule(a, mf, ops)
        if not isv:
            a(f"s_branch {joined}")
    a.label(joined)
    a(tr_wrap("s_waitcnt vmcnt(12) lgkmcnt(0)"))

    NS = ENV("NS", 20)
    PSIG = NS + 3
    PPOLL = ENV("PPOLL", 27)
    assert PSIG % 2 == 1 and PPOLL % 2 == 1 and PSIG < PPOLL
    queue = ["W0"] * 4 + ["X0"] * 4 + ["X1"] * 4 + ["W1"] * 4 + ["X2"] * 4

    def younger(tag):
        if tag not in queue:
            return 63
        return len(queue) - 1 - max(i for i, t in enumerate(queue) if t == tag)

    kvsrd = ["s_lshl_b32 s31, s28, 14", "s_add_u32 s16, s6, s31\ns_addc_u32 s17, s7, 0",
             f"s_add_u32 s20, s16, 0x{VF_OFF:x}\ns_addc_u32 s21, s17, 0", f"s_add_u32 s16, s16, 0x{KF_OFF:x}\ns_addc_u32 s17, s17, 0",
             "s_and_b32 s17, s17, 0xffff", "s_and_b32 s21, s21, 0xffff", "s_lshl_b32 s31, s29, 20", "s_sub_u32 s18, 0xf84000, s31",
             "s_mov_b32 s22, s18",
             f"s_add_u32 s24, s6, 0x{KVC_OFF:x}\ns_addc_u32 s25, s7, 0", "s_and_b32 s25, s25, 0xffff", "s_mov_b32 s26, 4096"]

    def kdma():
        return ("s_mov_b32 m0, s34", [f"buffer_load_dwordx4 v{V_LANE16}, s[16:19], s32 offen offset:{i*1024}{LDF} lds" for i in range(4)],
                "s_add_u32 s32, s32, 0x80000\ns_add_u32 s34, s34, 0x4000")

    def vdma():
        return ("s_mov_b32 m0, s35", [f"buffer_load_dwordx4 v{V_LANE16}, s[20:23], s33 offen offset:{i*1024}{LDF} lds" for i in range(4)],
                "s_add_u32 s33, s33, 0x80000\ns_add_u32 s35, s35, 0x4000")

    sn = 0
    for ks in range(32):
        st, sp = ks // 2, ks % 2
        ops = []
        rd = []
        if ks < 31:
            rd = spread(wreads(st, 1, 1) if sp == 0 else wreads(st + 1, 0, 0), "M", 0, 22)
        ops += rd
        grps, tags = [], []
        if sp == 1 and st + DW < 16:
            grps.append(wdma(st + DW)); tags.append(f"W{st+DW}")
        if ks + DX < 32:
            grps.append(xloads(ks + DX)); tags.append(f"X{ks+DX}")
        while sn < 32 and sn < (ks + 1) * 32 // NS:
            grps.append(kvstore(sn)); tags.append("S"); sn += 1
        head = []
        if ks == 0:
            ops += spread(kvsrd, "S", 6, 30)
        if ks == PSIG:
            assert younger("S") >= prevw
            head = [when("s_cmp_eq_u32 s30, 0", one_lane(f"buffer_atomic_add v{ONE}, v{ZERO}, s[24:27], s54 offen sc1"), 0)]
            ops += spread(k2.kv_first(), "S", 8, 20)
        if ks == PPOLL:
            head = [when("s_cmp_eq_u32 s30, 0", f"buffer_load_dword v{VPOLL}, v{ZERO}, s[24:27], s55 offen sc1", 0)]
            qpoll = len(queue)
        if ks == PPOLL + 2:
            grps += [kdma(), kdma()]; tags += ["K0", "K1"]
        if ks == PPOLL + 3:
            grps += [vdma(), kdma()]; tags += ["V0", "K2"]
        if ks == PPOLL + 4:
            grps += [vdma()]; tags += ["V1"]
        ops += head
        if grps:
            g, _ = grp_sched(grps, 1, 28, after=head)
            ops += g
        for gr, tg in zip(grps, tags):
            queue += [tg] * len(gr[1])
        if ks < 31:
            nk = ks + 1
            wv = younger(f"X{nk}")
            if nk % 2:
                wv = min(wv, younger(f"W{nk // 2 + 1}"))
            prevw = wv
            wtxt = f"s_waitcnt vmcnt({wv}) lgkmcnt(0)"
            if ks == PPOLL + 1:
                ops.append(when("s_cmp_eq_u32 s30, 0", f"s_waitcnt vmcnt({len(queue) - qpoll})\n" + spin_text(a, "s55", 16), 29, lo=28, after=[o for o in ops if o.cls == "V"]))
            if nk % 2:
                wtxt = tr_wrap(wtxt + "\ns_barrier") if nk % 4 == 1 else wtxt + "\ns_barrier"
            ops.append(Op(wtxt, "S", 31, lo=31, hard=31, after=[o for o in ops if o.cls in "MVB"]))
        mf = []
        for db in range(8):
            for qb in range(4):
                k, c = qacc(db, qb)
                r = f"{k}[{c}:{c+3}]"
                mf.append(mfma16(r, aq(QF[sp] + 4 * db), aq(XR + (ks % 4) * 16 + 4 * qb), "0" if ks == 0 else r))
        schedule(a, mf, ops)
    assert PPOLL + 4 <= 31
    stamp(a, 3)
    a.srd_off(24, 6, CTX_OFF, 16 << 20)
    attention_phase(a, end, 0, qacc, early=True, stubs=stubs)
    a.end_kernel(name, 256, 256)
    a.launch(name, 256, 256, 163840)
```

```python
from common import *
from sched import Op, spread, schedule, resolve_lgkm
import common
import math, struct

QSCALE = struct.unpack("<I", struct.pack("<f", math.log2(math.e) / math.sqrt(128.0)))[0]
THRESH = 0x46800000

V_LANE16 = 1
V_K = 2
V_V = 3
V_VV = 4
V_NINF = 5
V_T = 6
V_T2 = 7
NEGM = 8
L = 12
CIN = 16
LT = 48
DL = 52
V_LANEV = 56
Q = 64
S = [128, 160]
P = [192, 208]
TMP = 224
V_PF = 228
ET = 232
A_O = 0
A_K = 128
A_V = 192


LDF = ' sc1'
import os
KN = set(os.environ.get("KN", "").split(","))


def vq(b):
    return f"v[{b}:{b+3}]"


def aq(b):
    return f"a[{b}:{b+3}]"


def slot_of(typ, kb, qb):
    if typ == "D":
        return kb * 4 + qb
    return (kb % 2) * 4 + (kb // 2) * 2 + (qb - 2)


def qk_mfmas(typ, par):
    out = []
    kbs, qbs = (range(2), range(4)) if typ == "D" else (range(4), range(2, 4))
    for kb in kbs:
        for c in range(4):
            for qb in qbs:
                sl = slot_of(typ, kb, qb)
                d = vq(S[par] + 4 * sl)
                cc = vq(CIN + 4 * sl) if c == 0 else d
                out.append(mfma16(d, aq(A_K + (kb * 4 + c) * 4), vq(Q + (qb * 4 + c) * 4), cc))
    return out


def pv_mfmas(typ, par):
    out = []
    if typ == "D":
        for db in range(8):
            for qb in range(4):
                o = aq(A_O + (db * 4 + qb) * 4)
                out.append(mfma16(o, aq(A_V + db * 4), vq(P[par] + 4 * qb), o))
    else:
        for ks in range(2):
            for db in range(8):
                for qb in range(2, 4):
                    o = aq(A_O + (db * 4 + qb) * 4)
                    out.append(mfma16(o, aq(A_V + (ks * 8 + db) * 4), vq(P[par] + 4 * (ks * 2 + qb - 2)), o))
    return out


def k_reads(typ):
    n = 8 if typ == "D" else 16
    out = [f"ds_read_b128 {aq(A_K + 4*i)}, v{V_K} offset:{i*1024}" for i in range(n)]
    out.append(f"v_add_u32 v{V_K}, {n*1024}, v{V_K}\nv_and_b32 v{V_K}, 0xffff, v{V_K}")
    return out


def v_reads(typ):
    n = 8 if typ == "D" else 16
    out = [f"ds_read_b128 {aq(A_V + 4*i)}, v{V_V} offset:{i*1024}" for i in range(n)]
    out.append(f"v_add_u32 v{V_V}, {n*1024}, v{V_V}\nv_and_b32 v{V_V}, 0xffff, v{V_V}\nv_or_b32 v{V_V}, 0x10000, v{V_V}")
    return out


def sm_stream(par):
    ops = []
    pend = []
    n = 0
    for j in range(4):
        for half in range(2):
            sl = j + 4 * half
            for pr in range(2):
                t = ET + (n % 8) * 2
                n += 1
                s0 = S[par] + 4 * sl + 2 * pr
                ops.append(f"v_exp_f32 v{t}, v{s0}")
                ops.append(f"v_exp_f32 v{t+1}, v{s0+1}")
                ops += pend
                if half == 0 and pr == 0:
                    pend = [f"v_add_f32 v{LT+j}, v{t}, v{t+1}"]
                else:
                    pend = [f"v_add_f32 v{LT+j}, v{LT+j}, v{t}", f"v_add_f32 v{LT+j}, v{LT+j}, v{t+1}"]
                pend.append(f"v_cvt_pk_bf16_f32 v{P[par] + 4*j + 2*half + pr}, v{t}, v{t+1}")
    ops.append("s_nop 0")
    ops += pend
    return ops


def l_update(typ):
    return [f"v_add_f32 v{L + (j if typ == 'D' else 2 + j % 2)}, v{L + (j if typ == 'D' else 2 + j % 2)}, v{LT+j}" for j in range(4)]


def dma_group(mall=None):
    out = []
    if "nodma" in KN: return []
    for i in range(4):
        t = ""
        if i == 0:
            t = "s_mov_b32 m0, s34\ns_nop 0\n"
        out.append(t + f"buffer_load_dwordx4 v{V_LANE16}, s[16:19], s32 offen offset:{i*1024}{LDF} lds")
    for i in range(4):
        t = ""
        if i == 0:
            t = "s_mov_b32 m0, s35\ns_nop 0\n"
        out.append(t + f"buffer_load_dwordx4 v{V_LANE16}, s[20:23], s33 offen offset:{i*1024}{LDF} lds")
    if mall:
        l = mall.uid("k2_mpf")
        out.append(f"s_add_u32 s61, s61, 1\ns_and_b32 s31, s61, 3\ns_cbranch_scc1 {l}\n"
                   f"buffer_load_dword v{V_T2}, v{V_PF}, s[12:15], s62 offen\ns_add_u32 s62, s62, 0x2000\n{l}:")
    out.append("s_add_u32 s32, s32, 0x80000\ns_add_u32 s33, s33, 0x80000\n"
               "s_add_u32 s34, s34, 0x4000\ns_and_b32 s34, s34, 0xffff\n"
               "s_add_u32 s35, s35, 0x4000\ns_and_b32 s35, s35, 0xffff\ns_or_b32 s35, s35, 0x10000")
    return out


def cin_prep(a, typ):
    a(f"s_sub_u32 s40, s36, s{38 if typ == 'D' else 39}")
    a(f"v_subrev_u32 v{V_T}, s40, v{V_VV}")
    kbs, qbs = (range(2), range(2)) if typ == "D" else (range(4), range(2, 4))
    diffs = sorted({kb - (qb % 2) for kb in kbs for qb in qbs})
    for di, df in enumerate(diffs):
        base = 44 + (di % 2) * 10
        for r in range(4):
            a(f"v_cmp_gt_i32 s[{base+2*r}:{base+2*r+1}], {16*df + r}, v{V_T}")
        first = True
        for kb in kbs:
            for qb in qbs:
                if kb - (qb % 2) != df:
                    continue
                if first:
                    a("s_nop 1")
                    first = False
                for r in range(4):
                    a(f"v_cndmask_b32 v{CIN + 4*slot_of(typ, kb, qb) + r}, v{NEGM+qb}, v{V_NINF}, s[{base+2*r}:{base+2*r+1}]")
    a("s_nop 1")


def row_max(a, typ, par, clamp0):
    for qb in (range(4) if typ == "D" else range(2, 4)):
        sls = [slot_of(typ, kb, qb) for kb in (range(2) if typ == "D" else range(4))]
        rs = [S[par] + 4 * sl + r for sl in sls for r in range(4)]
        d = DL + qb
        a(f"v_max_f32 v{d}, v{rs[0]}, v{rs[1]}")
        for i in range(2, len(rs), 2):
            a(f"v_max3_f32 v{d}, v{d}, v{rs[i]}, v{rs[i+1]}")
        for sw in ("v_permlane16_swap_b32", "v_permlane32_swap_b32"):
            a(f"v_mov_b32 v{V_T}, v{d}")
            a("s_nop 1")
            a(f"{sw} v{d}, v{V_T}")
            a("s_nop 1")
            a(f"v_max_f32 v{d}, v{d}, v{V_T}")
        if clamp0:
            a(f"v_max_f32 v{d}, 0, v{d}")


def qb_of_slot(typ, sl):
    return sl % 4 if typ == "D" else 2 + (sl % 2)


def rare_path(a, sm_typ, qk_typ, par, ret):
    a("s_nop 7")
    row_max(a, sm_typ, par, True)
    qbs = range(4) if sm_typ == "D" else range(2, 4)
    for sl in range(8):
        for r in range(4):
            x = S[par] + 4 * sl + r
            a(f"v_sub_f32 v{x}, v{x}, v{DL + qb_of_slot(sm_typ, sl)}")
    if qk_typ is not None:
        for sl in range(8):
            for r in range(4):
                x = S[1 - par] + 4 * sl + r
                a(f"v_sub_f32 v{x}, v{x}, v{DL + qb_of_slot(qk_typ, sl)}")
                x = CIN + 4 * sl + r
                a(f"v_sub_f32 v{x}, v{x}, v{DL + qb_of_slot(qk_typ, sl)}")
    for qb in qbs:
        a(f"v_sub_f32 v{NEGM+qb}, v{NEGM+qb}, v{DL+qb}")
        a(f"v_exp_f32 v{DL+qb}, -v{DL+qb}")
    a("s_nop 0")
    for qb in qbs:
        a(f"v_mul_f32 v{L+qb}, v{L+qb}, v{DL+qb}")
    for db in range(8):
        for qb in qbs:
            o = A_O + (db * 4 + qb) * 4
            for r in range(4):
                a(f"v_accvgpr_read_b32 v{TMP+r}, a{o+r}")
            for r in range(4):
                a(f"v_mul_f32 v{TMP+r}, v{TMP+r}, v{DL+qb}")
            for r in range(4):
                a(f"v_accvgpr_write_b32 a{o+r}, v{TMP+r}")
    for t in sm_stream(par):
        a(t)
    a("s_nop 1")
    a(f"s_branch {ret}")


def sm_ops(par, lo, hi, lupd):
    ops, adds, cvts = [], [], []
    users = {}
    n = 0
    lastadd = {}
    for j in range(4):
        for half in range(2):
            sl = j + 4 * half
            for pr in range(2):
                t = ET + (n % 8) * 2
                w = lo + (hi - lo) * n / 16.0
                step = (hi - lo) / 16.0
                s0 = S[par] + 4 * sl + 2 * pr
                war = users.get(t, [])
                e0 = Op(f"v_exp_f32 v{t}, v{s0}", "E", w, after=war)
                e1 = Op(f"v_exp_f32 v{t+1}, v{s0+1}", "E", w + step / 2, after=war)
                if half == 0 and pr == 0:
                    ad = [Op(f"v_add_f32 v{LT+j}, v{t}, v{t+1}", "A", w + step, after=[e0, e1] + ([lupd[j]] if lupd else []))]
                else:
                    a0 = Op(f"v_add_f32 v{LT+j}, v{LT+j}, v{t}", "A", w + step * 0.6, after=[e0, lastadd[j]])
                    ad = [a0, Op(f"v_add_f32 v{LT+j}, v{LT+j}, v{t+1}", "A", w + step, after=[e1, a0])]
                lastadd[j] = ad[-1]
                cv = Op(f"v_cvt_pk_bf16_f32 v{P[par] + 4*j + 2*half + pr}, v{t}, v{t+1}", "A", w + step * 1.2, after=[e0, e1])
                users[t] = ad + [cv]
                ops += [e0, e1] + ad + [cv]
                adds += ad
                cvts.append(cv)
                n += 1
    return ops, list(lastadd.values()), cvts


def nfr(typ):
    return 8 if typ == "D" else 16


def rd_text(which, i):
    base, va = (A_K, V_K) if which == "K" else (A_V, V_V)
    return f"ds_read_b128 {aq(base + 4*i)}, v{va} offset:{i*1024}"


def ptr_ops(typ, which, lo, want, after):
    va, sp, lane = (V_K, 52, V_LANE16) if which == "K" else (V_V, 53, V_LANEV)
    s1 = Op(f"s_add_u32 s{sp}, s{sp}, {nfr(typ)*1024}", "S", lo + 1, lo=lo)
    s2 = Op(f"s_and_b32 s{sp}, s{sp}, 0xffff", "S", lo + 3, lo=lo, after=[s1])
    up = Op(f"v_add_u32 v{va}, s{sp}, v{lane}", "A", want, after=list(after) + [s2])
    return [s1, s2, up]


def dma_ops(h, lo, hi, after, pf=False):
    srd, so, lp = (("s[16:19]", 32, 34), ("s[20:23]", 33, 35))[h]
    step = (hi - lo - 1) / (5.0 if pf else 4.0)
    m = Op(f"s_mov_b32 m0, s{lp}", "S", lo, lo=lo, after=after)
    ops = [m]
    last = None
    for i in range(4):
        v = Op(f"buffer_load_dwordx4 v{V_LANE16}, {srd}, s{so} offen offset:{i*1024}{LDF} lds", "V", lo + 1 + step * i, lo=lo,
               after=[last] if last else [], prev_gap=[m], hard=hi - 1)
        ops.append(v)
        last = v
    b = [Op(f"s_add_u32 s{so}, s{so}, 0x80000", "S", lo + 2 + step * 3, after=[last])]
    b.append(Op(f"s_add_u32 s{lp}, s{lp}, 0x4000", "S", lo + step, after=[m]))
    b.append(Op(f"s_and_b32 s{lp}, s{lp}, 0xffff", "S", lo + step * 2, after=[b[-1]]))
    if h:
        b.append(Op(f"s_or_b32 s{lp}, s{lp}, 0x10000", "S", lo + step * 2.5, after=[b[-1]]))
    if pf and "nomall" not in KN:
        p = Op(f"buffer_load_dword v{V_T2}, v{V_PF}, s[12:15], s62 offen", "V", lo + 1 + step * 4, after=[last], hard=hi - 1)
        b += [p, Op("s_add_u32 s62, s62, 0x1000", "S", lo + 2 + step * 4, after=[p])]
    return ops + b, last


def body(a, outl, u_par, qk, sm, pv, vread, sync, prep, dk=None, dv=None, tail=()):
    par = u_par
    mf = (pv_mfmas(pv, 1 - par) if pv else []) + (qk_mfmas(qk, 1 - par) if qk else [])
    n1 = 32 if pv else 0
    n = len(mf)
    ops, pre = [], []
    carried = []
    lupd = None
    chain = []
    vup = None

    def add_reads(which, idxs, lo, hi, extra=(), los=None):
        out = []
        for k, i in enumerate(idxs):
            o = Op(rd_text(which, i), "M", lo + (hi - lo) * k / len(idxs), lo=(los[k] if los else lo) , after=(chain[-1:] + list(extra)))
            chain.append(o)
            out.append(o)
        return out

    def waits(which, typ, g0, rds):
        m = nfr(typ)
        base = A_K if which == "K" else A_V
        for i in range(0, m, 2):
            g = g0 + i * (32 // m) - 1
            need = [rds[j] for j in (i, i + 1) if rds.get(j) is not None]
            t = f"@LGKM {base + 4*(i+1)}"
            if g < 0:
                pre.append(t)
            else:
                for r in need:
                    r.hard = max(0, g - 4) if r.hard is None else r.hard
                ops.append(Op(t, "S", g, lo=g, hard=g, after=need))

    bar = None
    dlast = []
    if dv:
        o, l = dma_ops(1, dv[0], dv[1], [], pf=(pv == "D" and qk == "D"))
        ops += o
        dlast.append(l)
    if sync == "mid":
        bar = Op("s_waitcnt vmcnt(12)\ns_barrier", "S", n1, lo=n1, hard=n1, after=dlast)
    elif sync == "end":
        bar = Op("s_waitcnt vmcnt(8)\ns_barrier", "S", n - 1, lo=n - 1, hard=n - 1, after=dlast)
    elif sync == "epi":
        bar = Op("s_waitcnt vmcnt(0)\ns_barrier", "S", 0, lo=0, hard=0)
    if bar:
        ops.append(bar)
    if dk:
        o, l = dma_ops(0, dk[0], dk[1], [bar] if sync == "mid" else [])
        ops += o
    if pv:
        lupd = spread(l_update(pv), "A", 0, 3)
        ops += lupd
        m = nfr(pv)
        if sm or qk:
            carried = [A_V + 4 * i for i in range(m // 2)]
            r = add_reads("V", range(m // 2, m), 0, 14)
            ops += r
            po = ptr_ops(pv, "V", 2, 18, r[-1:])
            vup = po[-1]
            ops += po
            waits("V", pv, 0, dict(zip(range(m // 2, m), r)))
        else:
            carried = [A_V + 4 * i for i in range(m)]
            waits("V", pv, 0, {})
    if qk:
        m = nfr(qk)
        if pv:
            r = add_reads("K", range(m), 15, 46)
            ops += r + ptr_ops(qk, "K", 40, 50, r[-1:])
            waits("K", qk, n1, dict(zip(range(m), r)))
        else:
            pre += [rd_text("K", i) for i in range(m)] + [x.text for x in ptr_ops(qk, "K", 0, 0, [])]
            pre.append("s_waitcnt lgkmcnt(0)")
        if prep:
            pl, pr = a.uid("k2_prep"), a.uid("k2_prepret")
            if prep == "cond":
                t = f"s_cmp_ge_u32 s36, s{42 if qk == 'D' else 43}\ns_cbranch_scc1 {pl}\n{pr}:"
            else:
                t = f"s_branch {pl}\n{pr}:"
            outl.append(("prep", pl, qk, pr))
            if pv:
                ops.append(Op(t, "B", 24, lo=4, hard=n1 - 3))
            else:
                pre.append(t)
        ops.append(Op(f"s_add_u32 s36, s36, {32 if qk == 'D' else 64}", "S", n1 + 4, lo=n1))
    if vread:
        m = nfr(vread)
        ex = ([vup] if vup else []) + ([bar] if sync in ("mid", "epi") else [])
        if qk:
            ops += add_reads("V", range(m // 2), n - 17, n - 2, ex)
        else:
            ops += add_reads("V", range(m), 16, n + 4, ex, los=[2 * i + 2 for i in range(m)])
    if sm:
        so, adds, cvts = sm_ops(par, 0, n - 5, lupd)
        ops += so
        rl, ret = a.uid("k2_rare"), a.uid("k2_ret")
        c1 = Op(f"v_max3_f32 v{V_T}, v{LT}, v{LT+1}, v{LT+2}", "A", n - 6, after=adds[:3])
        c2 = Op(f"v_max_f32 v{V_T}, v{V_T}, v{LT+3}", "A", n - 3, after=[c1, adds[3]])
        c3 = Op(f"v_cmp_nge_f32 vcc, s37, v{V_T}", "A", n - 2, after=[c2])
        c4 = Op(f"s_cbranch_vccnz {rl}\n{ret}:", "B", n + 99, lo=n, after=[c3] + cvts)
        ops += [c1, c2, c3, c4]
        outl.append(("rare", rl, sm, qk, par, ret))
    for t in tail:
        ops.append(Op(t, "S", n - 8))
    start = len(a.lines)
    for t in pre:
        a(t)
    schedule(a, mf, ops)
    resolve_lgkm(a.lines, start, carried)
    for i in range(start, len(a.lines)):
        t = a.lines[i]
        if "nods" in KN and "ds_read" in t: a.lines[i] = f"    v_mov_b32 v{V_T2}, v{V_T2}"
        if "nodma" in KN and " lds" in t: a.lines[i] = f"    v_mov_b32 v{V_T2}, v{V_T2}"
        if "nobar" in KN and "s_barrier" in t: a.lines[i] = "    s_nop 0"
        if "nolgkm" in KN and "lgkmcnt" in t: a.lines[i] = "    s_nop 0"
        if KN & {"nods", "nodma", "nobar", "nolgkm"} and "s_cbranch_vccnz" in t: a.lines[i] = "    s_nop 0"


def kv_first():
    out = ["s_mov_b32 s32, s60", "s_mov_b32 s34, s60", "s_mov_b32 s33, s60", "s_add_u32 s35, s60, 0x10000"]
    return out


def attention_phase(a, end, kidx, qsrc, early=False, stubs=()):
    if not early:
        a("s_waitcnt vmcnt(0) lgkmcnt(0)")
        a("s_barrier")
        for t in kv_first():
            a(t)
        for i in range(4):
            t = "s_mov_b32 m0, s34\ns_nop 0\n" if i == 0 else ""
            a(t + f"buffer_load_dwordx4 v{V_LANE16}, s[16:19], s32 offen offset:{i*1024}{LDF} lds")
        a("s_add_u32 s32, s32, 0x80000")
        a("s_add_u32 s34, s34, 0x4000")
        for t in dma_group():
            a(t)
    a(f"s_load_dwordx2 s[44:45], s[0:1], {ARG['wo']}")
    a(f"s_load_dwordx2 s[46:47], s[0:1], {ARG['wg']}")
    a(f"s_load_dwordx4 s[48:51], s[0:1], {ARG['wu']}")
    a(f"s_mov_b32 s40, 0x{QSCALE:x}")
    a(f"s_mov_b32 s41, 0x{QSCALE:x}")
    if early:
        for t in dma_group():
            a(t)
    a("s_nop 4")
    for qb in (2, 3, 0, 1):
        if not early and qb in (0, 1):
            for t in dma_group():
                a(t)
        for c in range(4):
            for hh in range(2):
                kind, x = qsrc(2 * c + hh, qb)
                if kind == "a":
                    y = 128 + (c % 2) * 8 + hh * 4
                    for r in range(4):
                        a(f"v_accvgpr_read_b32 v{y+r}, a{x+r}")
                    x = y
                a(f"v_pk_mul_f32 v[{x}:{x+1}], v[{x}:{x+1}], s[40:41]")
                a(f"v_pk_mul_f32 v[{x+2}:{x+3}], v[{x+2}:{x+3}], s[40:41]")
                d = Q + (qb * 4 + c) * 4 + 2 * hh
                a(f"v_cvt_pk_bf16_f32 v{d}, v{x}, v{x+1}")
                a(f"v_cvt_pk_bf16_f32 v{d+1}, v{x+2}, v{x+3}")
    if early:
        zero_acc(a, 0, 128, 128)
    a("s_waitcnt lgkmcnt(0)")
    a("s_cmp_eq_u32 s30, 1")
    a("s_cselect_b64 s[12:13], s[46:47], s[44:45]")
    a("s_cmp_eq_u32 s30, 2")
    a("s_cselect_b64 s[12:13], s[48:49], s[12:13]")
    a("s_cmp_eq_u32 s30, 3")
    a("s_cselect_b64 s[12:13], s[50:51], s[12:13]")
    a("s_and_b32 s13, s13, 0xffff")
    a("s_mul_i32 s62, s28, 63")
    a("s_mul_i32 s31, s29, s29")
    a("s_add_u32 s62, s62, s31")
    a("s_sub_u32 s62, s62, 1")
    a("s_lshl_b32 s62, s62, 12")
    a("s_cmp_eq_u32 s30, 0")
    a("s_cselect_b32 s14, 0x800000, 0x0")
    a("s_max_u32 s14, s14, 0x700000")
    a("s_cmp_eq_u32 s29, 0")
    a("s_cselect_b32 s14, 0, s14")
    a("s_cselect_b32 s62, 0, s62")
    a(f"v_lshlrev_b32 v{V_PF}, 2, v{V_LANE16}")
    a(f"v_mov_b32 v{V_K}, v{V_LANE16}")
    a(f"v_or_b32 v{V_V}, 0x10000, v{V_LANE16}")
    a(f"v_mov_b32 v{V_LANEV}, v{V_V}")
    a("s_mov_b32 s52, 0")
    a("s_mov_b32 s53, 0")
    for i in range(4):
        a(f"v_mov_b32 v{NEGM+i}, 0")
        a(f"v_mov_b32 v{L+i}, 0")
    for i in range(32):
        a(f"v_mov_b32 v{CIN+i}, 0")
    a("s_mov_b32 s36, 0")
    a(f"s_mov_b32 s37, 0x{THRESH:x}")
    a("s_waitcnt vmcnt(16)")
    a("s_barrier")
    stamp(a, 4)
    outl = []
    body(a, outl, 1, "D", None, None, None, None, "cond")
    a("s_nop 7")
    row_max(a, "D", 0, False)
    for sl in range(8):
        for r in range(4):
            a(f"v_sub_f32 v{S[0]+4*sl+r}, v{S[0]+4*sl+r}, v{DL + sl % 4}")
            a(f"v_sub_f32 v{CIN+4*sl+r}, 0, v{DL + sl % 4}")
    for qb in range(4):
        a(f"v_sub_f32 v{NEGM+qb}, 0, v{DL+qb}")
    body(a, outl, 0, "D", "D", None, "D", "end", "cond")
    a("s_lshl_b32 s63, s29, 1")
    a("s_add_u32 s63, s63, 1")
    loop = a.uid("k2_dloop")
    a.label(loop)
    body(a, outl, 1, "D", "D", "D", "D", None, "cond", dk=(2, 60))
    body(a, outl, 0, "D", "D", "D", "D", "end", "cond", dv=(2, 60), tail=["s_sub_u32 s63, s63, 1"])
    a("s_cmp_lg_u32 s63, 0")
    a(f"s_cbranch_scc1 {loop}")
    stamp(a, 5)
    body(a, outl, 1, "S", "D", "D", "D", None, "always", dk=(2, 60))
    body(a, outl, 0, "S", "S", "D", "S", "mid", "cond", dv=(1, 31), dk=(33, 63))
    a("s_lshl_b32 s63, s29, 1")
    a("s_sub_u32 s63, 14, s63")
    loop, done = a.uid("k2_sloop"), a.uid("k2_sdone")
    a("s_cmp_eq_u32 s63, 0")
    a(f"s_cbranch_scc1 {done}")
    a.label(loop)
    body(a, outl, 1, "S", "S", "S", "S", "mid", "cond", dv=(1, 31), dk=(33, 63))
    body(a, outl, 0, "S", "S", "S", "S", "mid", "cond", dv=(1, 31), dk=(33, 63), tail=["s_sub_u32 s63, s63, 1"])
    a("s_cmp_lg_u32 s63, 0")
    a(f"s_cbranch_scc1 {loop}")
    a.label(done)
    body(a, outl, 1, None, "S", "S", "S", "epi", None)
    body(a, outl, 0, None, None, "S", None, None, None)
    stamp(a, 6)
    for qb in range(4):
        for sw in ("v_permlane16_swap_b32", "v_permlane32_swap_b32"):
            a(f"v_mov_b32 v{V_T}, v{L+qb}")
            a("s_nop 1")
            a(f"{sw} v{L+qb}, v{V_T}")
            a("s_nop 1")
            a(f"v_add_f32 v{L+qb}, v{L+qb}, v{V_T}")
        a(f"v_rcp_f32 v{L+qb}, v{L+qb}")
    a("s_lshl_b32 s31, s28, 19")
    a("s_lshl_b32 s40, s38, 6")
    a("s_add_u32 s40, s40, s31")
    a("s_lshl_b32 s44, s39, 6")
    a("s_add_u32 s44, s44, s31")
    for c in range(1, 4):
        a(f"s_add_u32 s{40+c}, s40, {c*0x20000}")
        a(f"s_add_u32 s{44+c}, s44, {c*0x20000}")
    n = 0
    for qb in range(4):
        for c in range(4):
            t = 128 + (n % 4) * 12
            n += 1
            for hh in range(2):
                o = A_O + ((2 * c + hh) * 4 + qb) * 4
                for r in range(4):
                    a(f"v_accvgpr_read_b32 v{t+4+hh*4+r}, a{o+r}")
            for r in range(8):
                a(f"v_mul_f32 v{t+4+r}, v{t+4+r}, v{L+qb}")
            for r in range(4):
                a(f"v_cvt_pk_bf16_f32 v{t+r}, v{t+4+2*r}, v{t+5+2*r}")
            a(f"buffer_store_dwordx4 v[{t}:{t+3}], v{V_LANE16}, s[24:27], s{40+(qb//2)*4+c} offen offset:{(qb%2)*1024}{' sc1'}")
    tr_dump(a, 6, 30, V_LANE16)
    stamp_dump(a, kidx, 7, 6)
    a.label(end)
    a("s_endpgm")
    for o in outl:
        if o[0] == "prep":
            a.label(o[1])
            cin_prep(a, o[2])
            a(f"s_branch {o[3]}")
    for (sl, txt, ret) in stubs:
        a.label(sl)
        a(txt)
        a(f"s_branch {ret}")
    for o in outl:
        if o[0] == "rare":
            a.label(o[1])
            rare_path(a, *o[2:])


def gen_k2(a, name="k2_kernel"):
    a.begin_kernel(name)
    end = a.uid("k2_end")
    a("s_cmp_ge_u32 s2, 256")
    a(f"s_cbranch_scc1 {end}")
    stamp(a, 0)
    a(f"s_load_dwordx2 s[4:5], s[0:1], {ARG['wq']}")
    a(f"s_load_dwordx2 s[6:7], s[0:1], {ARG['ws']}")
    a("s_and_b32 s28, s2, 7")
    a("s_lshl_b32 s28, s28, 2")
    a("s_lshr_b32 s29, s2, 3")
    a("s_and_b32 s31, s29, 3")
    a("s_add_u32 s28, s28, s31")
    a("s_lshr_b32 s29, s29, 2")
    a("v_lshrrev_b32 v10, 6, v0")
    a("v_and_b32 v11, 63, v0")
    a("v_readfirstlane_b32 s30, v10")
    a(f"v_lshlrev_b32 v{V_LANE16}, 4, v11")
    a("s_lshl_b32 s38, s29, 7")
    a("s_sub_u32 s39, 1920, s38")
    a("s_lshl_b32 s31, s30, 5")
    a("s_mov_b32 s42, s38")
    a("s_mov_b32 s43, s39")
    a("s_add_u32 s38, s38, s31")
    a("s_add_u32 s39, s39, s31")
    a("s_lshl_b32 s31, s38, 6")
    a(f"v_add_u32 v12, s31, v{V_LANE16}")
    a("s_lshl_b32 s31, s39, 6")
    a(f"v_add_u32 v13, s31, v{V_LANE16}")
    a("v_lshrrev_b32 v20, 4, v11")
    a("v_bfe_u32 v21, v11, 1, 3")
    a("v_and_b32 v22, 1, v11")
    a("v_lshl_add_u32 v23, v10, 4, v20")
    a("v_lshlrev_b32 v23, 13, v23")
    a("v_lshl_add_u32 v23, v22, 4, v23")
    a("s_lshl_b32 s31, s28, 8")
    a("v_add_u32 v23, s31, v23")
    a("v_xor_b32 v21, v21, v20")
    for i in range(4):
        a(f"v_xor_b32 v22, {(i // 2) << 2}, v21")
        a(f"v_lshl_add_u32 v22, v22, 5, v23")
        a(f"v_add_u32 v{16+i}, {4*i*8192 - i*1024}, v22")
    a("s_waitcnt lgkmcnt(0)")
    a.srd_off(8, 6, XN_OFF, 4 << 20)
    a.srd(12, 4, 8 << 20)
    a("s_lshl_b32 s60, s30, 12")
    a("s_mov_b32 s61, 0")
    a("s_mov_b32 s62, 0")
    XR = 128

    def wdma(slot):
        out = []
        for i in range(4):
            t = f"s_add_u32 m0, s60, {slot*16384}\ns_nop 0\n" if i == 0 else ""
            out.append(t + f"buffer_load_dwordx4 v{16+i}, s[12:15], s61 offen offset:{i*1024} lds")
        out.append("s_add_u32 s61, s61, 0x80000")
        return out

    def xloads(slot):
        out = [f"buffer_load_dwordx4 {aq(XR + slot*16 + 4*qb)}, v{12+qb//2}, s[8:11], s62 offen offset:{(qb%2)*1024}" for qb in range(4)]
        out.append("s_add_u32 s62, s62, 0x20000")
        return out

    DX = int(os.environ.get("K2DX", "3")); DW = int(os.environ.get("K2DW", "2")); DP = int(os.environ.get("K2DP", "40"))
    init, first, waits = ring_plan(DX, DW, trips=4)
    for (kind, i) in init:
        for t in (wdma(i) if kind == "W" else xloads(i)):
            a(t)
    a(f"s_add_u32 s55, s30, {DP-4}")
    a("s_lshl_b32 s55, s55, 18")
    a("s_lshr_b32 s56, s2, 3")
    a("s_lshl_b32 s56, s56, 13")
    a("s_add_u32 s55, s55, s56")
    a("v_lshlrev_b32 v33, 7, v11")
    pf0 = "buffer_load_dword v34, v33, s[8:11], s55 offen\ns_add_u32 s55, s55, 0x100000"

    def pf(st):
        l = a.uid("k2_pf")
        return f"s_cmp_lg_u32 s30, {st}\ns_cbranch_scc1 {l}\n{pf0}\n{l}:"
    a(pf0)
    stamp(a, 1)
    a("s_lshl_b32 s31, s28, 14")
    a(f"s_add_u32 s16, s6, s31")
    a("s_addc_u32 s17, s7, 0")
    a(f"s_add_u32 s20, s16, 0x{VF_OFF:x}")
    a("s_addc_u32 s21, s17, 0")
    a(f"s_add_u32 s16, s16, 0x{KF_OFF:x}")
    a("s_addc_u32 s17, s17, 0")
    a("s_and_b32 s17, s17, 0xffff")
    a("s_and_b32 s21, s21, 0xffff")
    a("s_lshl_b32 s31, s29, 20")
    a("s_sub_u32 s18, 0xf84000, s31")
    a("s_mov_b32 s22, s18")
    a("s_mov_b32 s19, 0x00020000")
    a("s_mov_b32 s23, 0x00020000")
    a.srd_off(24, 6, CTX_OFF, 16 << 20)
    a("v_and_b32 v21, 15, v11")
    a("v_lshrrev_b32 v22, 2, v21")
    a("v_and_b32 v23, 1, v20")
    a("v_lshl_add_u32 v23, v23, 2, v22")
    a("v_lshl_add_u32 v22, v20, 3, v22")
    a("v_lshlrev_b32 v22, 8, v22")
    a("v_and_b32 v32, 3, v11")
    a("v_lshl_add_u32 v22, v32, 3, v22")
    for j in range(8):
        a(f"v_xor_b32 v32, {j}, v23")
        a(f"v_lshl_add_u32 v{24+j}, v32, 5, v22")
    a(f"v_lshlrev_b32 v32, 2, v20")
    a(f"v_sub_u32 v{V_VV}, v21, v32")
    a(f"v_mov_b32 v{V_NINF}, 0xff800000")
    for i in range(128):
        a(f"v_accvgpr_write_b32 a{i}, 0")
    for i in range(128):
        a(f"v_mov_b32 v{128+i}, 0")
    FW = [64, 96]

    def wreads(slot, sp, buf):
        out = []
        for j in range(8):
            b = FW[buf] + 4 * j
            out.append(f"ds_read_b64_tr_b16 v[{b}:{b+1}], v{24+j} offset:{slot*16384 + sp*8192}")
            out.append(f"ds_read_b64_tr_b16 v[{b+2}:{b+3}], v{24+j} offset:{slot*16384 + sp*8192 + 1024}")
        return out

    def qproj_mfmas(buf, slot):
        out = []
        for db in range(8):
            for qb in range(4):
                c = vq(128 + (db * 4 + qb) * 4)
                out.append(mfma16(c, vq(FW[buf] + 4 * db), aq(XR + slot * 16 + 4 * qb), c))
        return out

    a(f"s_waitcnt vmcnt({first + 1})")
    a("s_barrier")
    for t in wreads(0, 0, 0):
        a(t)
    stamp(a, 2)
    a("s_mov_b32 s63, 0")
    loop = a.uid("k2_qloop")
    a.label(loop)
    for ks in range(8):
        st, sp = ks // 2, ks % 2
        a(f"s_waitcnt vmcnt({waits[ks]}) lgkmcnt(0)")
        if sp == 0:
            weave2(a, qproj_mfmas(0, ks), [(wreads(st, 1, 1), 0, 20), (xloads((ks + DX) % 8) + [pf(st)], 4, 28)])
        else:
            a("s_barrier")
            weave2(a, qproj_mfmas(1, ks), [(wreads((st + 1) % 4, 0, 0), 0, 20), (wdma((st + DW) % 4) + xloads((ks + DX) % 8), 2, 30)])
    a("s_add_u32 s63, s63, 1")
    a("s_cmp_lt_u32 s63, 4")
    a(f"s_cbranch_scc1 {loop}")
    stamp(a, 3)
    attention_phase(a, end, 1, lambda db, qb: ('v', 128 + (db * 4 + qb) * 4))
    a.end_kernel(name, 256, 256)
    a.launch(name, 256, 256, 131072)
```

```python
from common import *
import common, os
from sched import Op, spread, schedule

SPIN_MAX = 1 << 20


def vq(b):
    return f"v[{b}:{b+3}]"


def aq(b):
    return f"a[{b}:{b+3}]"


def gen_k3(a, name="k3_kernel"):
    a.begin_kernel(name)
    end = a.uid("k3_end")
    stubs = []

    def when(cmp_text, body, want, **kw):
        l, r = a.uid("k3_ool"), a.uid("k3_oolret")
        stubs.append((l, body, r))
        return Op(f"{cmp_text}\ns_cbranch_scc1 {l}\n{r}:", "B", want, **kw)

    a("s_cmp_ge_u32 s2, 256")
    a(f"s_cbranch_scc1 {end}")
    stamp(a, 0)
    a(f"s_load_dwordx2 s[4:5], s[0:1], {ARG['wo']}")
    a(f"s_load_dwordx2 s[6:7], s[0:1], {ARG['ws']}")
    a(f"s_load_dwordx2 s[28:29], s[0:1], {ARG['x']}")
    a(f"s_load_dwordx2 s[30:31], s[0:1], {ARG['wr']}")
    a("s_lshr_b32 s41, s2, 3")
    a("s_bfe_u32 s44, s2, 0x10002")
    a("s_and_b32 s42, s2, 1")
    a("s_lshl_b32 s42, s42, 3")
    a("s_and_b32 s43, s41, 7")
    a("s_add_u32 s42, s42, s43")
    a("s_and_b32 s43, s2, 2")
    a("s_lshl_b32 s43, s43, 1")
    a("s_lshr_b32 s40, s41, 3")
    a("s_add_u32 s43, s43, s40")
    a("v_lshrrev_b32 v10, 6, v0")
    a("v_and_b32 v11, 63, v0")
    a("v_readfirstlane_b32 s45, v10")
    a("v_lshlrev_b32 v1, 4, v11")
    a("s_lshl_b32 s46, s42, 7")
    a("s_lshl_b32 s47, s45, 5")
    a("s_add_u32 s46, s46, s47")
    a("s_lshl_b32 s47, s46, 6")
    a("v_add_u32 v12, s47, v1")
    a("v_add_u32 v13, 0x20000, v12")
    a("v_lshrrev_b32 v20, 4, v11")
    a("v_bfe_u32 v21, v11, 1, 3")
    a("v_xor_b32 v21, v21, v20")
    a("v_and_b32 v22, 1, v11")
    a("v_lshl_add_u32 v23, v10, 4, v20")
    a("v_lshlrev_b32 v23, 11, v23")
    a("v_lshl_add_u32 v23, v22, 4, v23")
    a("s_lshl_b32 s47, s43, 8")
    a("v_add_u32 v23, s47, v23")
    for i in range(4):
        a(f"v_xor_b32 v22, {(i % 2) * 4}, v21")
        a("v_lshl_add_u32 v22, v22, 5, v23")
        a(f"v_add_u32 v{16+i}, {4*i*2048 - i*1024}, v22")
    a("s_lshl_b32 s60, s45, 12")
    a("s_lshl_b32 s61, s44, 22")
    a("s_lshl_b32 s62, s44, 23")
    a("s_waitcnt lgkmcnt(0)")
    a.srd_off(8, 6, CTX_OFF, 16 << 20)
    a.srd(12, 4, 8 << 20)
    a("s_add_u32 s10, s62, 0x800000")
    a("s_add_u32 s14, s61, 0x400000")
    XR = 128
    FW = [0, 64]

    def wdma(p):
        return (f"s_add_u32 m0, s60, {(p % 4)*16384}",
                [f"buffer_load_dwordx4 v{16+i}, s[12:15], s61 offen offset:{i*1024} lds" for i in range(4)], "s_add_u32 s61, s61, 0x20000")

    def xloads(p):
        return (None, [f"buffer_load_dwordx4 {aq(XR + (p % 4)*16 + 8*ks + 4*tb)}, v{12+ks}, s[8:11], s62 offen offset:{tb*1024}" for ks in range(2) for tb in range(2)],
                "s_add_u32 s62, s62, 0x40000")

    def now(g):
        if g[0]:
            a(g[0])
            a("s_nop 0")
        for t in g[1] + [g[2]]:
            a(t)

    for g in (wdma(0), xloads(0), wdma(1), xloads(1), wdma(2), xloads(2)):
        now(g)
    stamp(a, 1)
    a.srd(16, 28, 4 << 20)
    a.srd(20, 30, 2048)
    a.srd_off(24, 6, H_OFF, 4 << 20)
    a.srd_off(32, 6, STATS_OFF, 3 * 8192)
    a.srd_off(36, 6, XCH_OFF, 8 << 20)
    a.srd_off(48, 6, XFL_OFF, 32768)
    a("v_and_b32 v21, 15, v11")
    a("v_add_u32 v22, s46, v21")
    a("v_lshlrev_b32 v2, 2, v22")
    a("v_lshl_add_u32 v2, v20, 13, v2")
    a("v_lshlrev_b32 v22, 11, v22")
    a("s_lshl_b32 s52, s44, 7")
    a("s_add_u32 s47, s47, s52")
    a("v_lshl_add_u32 v14, v20, 3, s47")
    a("v_add_u32 v3, v22, v14")
    a("v_add_u32 v4, 0x8000, v3")
    a("s_lshl_b32 s52, s2, 14")
    a("s_add_u32 s52, s52, s60")
    a("s_xor_b32 s53, s52, 0x10000")
    a("s_lshl_b32 s54, s2, 7")
    a("s_xor_b32 s55, s54, 0x200")
    a("v_mov_b32 v5, 0")
    a("v_mov_b32 v6, 1")
    XE, WR = 128, 144
    a("v_lshrrev_b32 v22, 2, v21")
    a("v_lshl_add_u32 v22, v20, 2, v22")
    a("v_and_b32 v23, 7, v22")
    a("s_lshl_b32 s56, s44, 2")
    a("v_xor_b32 v23, s56, v23")
    a("v_lshlrev_b32 v22, 8, v22")
    a("v_and_b32 v32, 3, v11")
    a("v_lshl_add_u32 v22, v32, 3, v22")
    for j in range(8):
        a(f"v_xor_b32 v32, {j}, v23")
        a(f"v_lshl_add_u32 v{24+j}, v32, 5, v22")
    a("s_mov_b32 s57, (code_end-k3_tail)/128")
    ACC = 64
    zero_acc(a, ACC, 64, 56, "v")

    def wreads(p):
        out = []
        for ks in range(2):
            for cb in range(8):
                b = FW[p % 2] + (ks * 8 + cb) * 4
                off = (p % 4) * 16384 + ks * 8192
                out.append(f"ds_read_b64_tr_b16 a[{b}:{b+1}], v{24+cb} offset:{off}")
                out.append(f"ds_read_b64_tr_b16 a[{b+2}:{b+3}], v{24+cb} offset:{off + 4096}")
        return out

    def mf(p):
        out = []
        for ks in range(2):
            for cb in (4, 5, 6, 7, 0, 1, 2, 3):
                for tb in range(2):
                    c = vq(ACC + (cb * 2 + tb) * 4)
                    out.append(mfma16(c, aq(FW[p % 2] + (ks * 8 + cb) * 4), aq(XR + (p % 4) * 16 + 8 * ks + 4 * tb), c))
        return out

    epi_loads = []
    for tb in range(2):
        for cb in range(4):
            b = XE + (tb * 4 + cb) * 2
            epi_loads.append(f"buffer_load_dwordx2 v[{b}:{b+1}], v{3+tb}, s[16:19], 0 offen offset:{cb*32}")
    for cb in range(4):
        epi_loads.append(f"buffer_load_dwordx2 v[{WR+2*cb}:{WR+2*cb+1}], v14, s[20:23], 0 offen offset:{cb*32}")

    a("v_min_u32 v33, s57, v0")
    code_addr(a, "k3_tail", 8, 33, 58)
    epi_loads.append("global_load_dword v7, v[8:9], off")
    a("s_lshl_b32 s56, s41, 2")
    a("s_add_u32 s56, s56, s45")
    a("s_and_b32 s57, s2, 7")
    a("v_lshrrev_b32 v34, 3, v11")
    a("v_and_b32 v35, 7, v11")
    a("v_min_u32 v35, 6, v35")
    a("v_mul_u32_u24 v34, 7168, v34")
    a("v_lshl_add_u32 v34, v35, 7, v34")
    a(f"s_mul_i32 s58, s56, {8*7168}")
    a("s_mul_i32 s59, s57, 896")
    a("s_add_u32 s58, s58, s59")
    a("v_add_u32 v34, s58, v34")
    a("v_min_u32 v35, 55, v11")
    a("v_lshlrev_b32 v35, 7, v35")
    a("s_mul_i32 s58, s56, 7168")
    a(f"s_mul_i32 s59, s57, {448*2048}")
    a("s_add_u32 s58, s58, s59")
    a("v_add_u32 v35, s58, v35")

    def ffn_pf(arg, v):
        return (f"s_load_dwordx2 s[56:57], s[0:1], {ARG[arg]}\ns_mov_b32 s58, 7340032\ns_mov_b32 s59, 0x00020000\ns_waitcnt lgkmcnt(0)\n"
                f"s_and_b32 s57, s57, 0xffff\nbuffer_load_dword v7, v{v}, s[56:59], 0 offen")
    a("s_waitcnt vmcnt(20)")
    a("s_barrier")
    for t in wreads(0):
        a(t)
    a("s_mov_b32 s63, 0")
    a("s_waitcnt vmcnt(12) lgkmcnt(0)")
    a("s_barrier")
    stamp(a, 2)
    loop = a.uid("k3_loop")
    a.label(loop)
    for p in range(4):
        rd = spread(wreads(p + 1), "M", 0, 25)
        ops = list(rd)
        prev = []
        k = 0
        for (m, ld, tr) in (wdma(p + 3), xloads(p + 3)):
            mo = None
            if m:
                mo = Op(m, "S", 0)
                ops.append(mo)
            for t in ld:
                o = Op(t, "V", 1 + 3.5 * k, after=prev, prev_gap=[mo] if mo else [])
                ops.append(o)
                prev = [o]
                k += 1
            ops.append(Op(tr, "S", 2 + 3.5 * k, after=prev))
        PF0 = int(os.environ.get("K3PF", "-1"))
        ex = {PF0: ffn_pf("wg", 34), PF0 + 1: ffn_pf("wu", 34), PF0 + 2: ffn_pf("wd", 35)}.get(p, "") if PF0 >= 0 else ""
        if p == 0:
            ex = "\n".join(epi_loads) + "\n" + ex
        wo = None
        if ex:
            wo = when("s_cmp_eq_u32 s63, 7", ex, 29, lo=26, after=prev + rd)
            ops.append(wo)
        if p == 3:
            ops.append(Op("s_add_u32 s63, s63, 1", "S", 30, after=[wo] if wo else []))
        ops.append(Op("s_waitcnt vmcnt(12) lgkmcnt(0)\ns_barrier", "S", 31, lo=31, hard=31, after=[o for o in ops if o.cls in "MVB"]))
        schedule(a, mf(p), ops)
    a("s_cmp_lt_u32 s63, 8")
    a(f"s_cbranch_scc1 {loop}")
    a.label("k3_tail")
    stamp(a, 3)
    a("s_nop 1")
    for q in range(4):
        c = ACC + 32 + 8 * q
        for r in range(4):
            a(f"v_cvt_pk_bf16_f32 v{c+r}, v{c+2*r}, v{c+2*r+1}")
        a(f"buffer_store_dwordx4 {vq(c)}, v1, s[36:39], s52 offen offset:{q*1024} sc1")
    a("s_waitcnt vmcnt(4)")
    for cb in range(4):
        for tb in range(2):
            c, xb = ACC + (cb * 2 + tb) * 4, XE + (tb * 4 + cb) * 2
            for h in range(2):
                a(f"v_lshlrev_b32 v58, 16, v{xb+h}")
                a(f"v_and_b32 v59, 0xffff0000, v{xb+h}")
                a(f"v_pk_add_f32 v[{c+2*h}:{c+2*h+1}], v[{c+2*h}:{c+2*h+1}], v[58:59]")
    a("v_and_b32 v58, 1, v20")
    a("v_lshrrev_b32 v59, 1, v20")
    a("v_lshlrev_b32 v58, 5, v58")
    a("v_lshl_add_u32 v58, v59, 4, v58")
    a("v_lshlrev_b32 v59, 3, v20")
    a("v_sub_u32 v58, v58, v59")
    a("v_add_u32 v3, v3, v58")
    a("v_add_u32 v4, v4, v58")
    for i in range(8):
        a(f"v_lshlrev_b32 v{32+2*i}, 16, v{WR+i}")
        a(f"v_and_b32 v{33+2*i}, 0xffff0000, v{WR+i}")
    nw = a.uid("k3_nowr")
    a("s_or_b32 s57, s42, s45")
    a(f"s_cbranch_scc1 {nw}")
    a("v_pk_add_f32 v[56:57], v[32:33], v[34:35]")
    for i in range(4, 16, 2):
        a(f"v_pk_add_f32 v[56:57], v[56:57], v[{32+i}:{33+i}]")
    a("v_add_f32 v56, v56, v57")
    for sw in ("v_permlane16_swap_b32", "v_permlane32_swap_b32"):
        a("v_mov_b32 v57, v56")
        a("s_nop 1")
        a(f"{sw} v56, v57")
        a("s_nop 1")
        a("v_add_f32 v56, v56, v57")
    a(f"s_mov_b32 s57, {WRSUM_OFF - STATS_OFF}")
    a(f"s_mov_b32 s34, {WRSUM_OFF - STATS_OFF + 4}")
    a("s_mov_b64 exec, 1")
    a("buffer_atomic_add_f32 v56, v5, s[32:35], s57 offen")
    a("s_mov_b64 exec, -1")
    a(f"s_mov_b32 s34, {3 * 8192}")
    a.label(nw)
    SA = 144
    for i in range(12):
        a(f"v_mov_b32 v{SA+i}, 0")
    a("s_waitcnt vmcnt(0)")
    a("s_barrier")
    sk, lp = a.uid("k3_nopoll"), a.uid("k3_spin")
    a("s_cmp_lg_u32 s45, 0")
    a(f"s_cbranch_scc1 {sk}")
    a("s_mov_b64 exec, 1")
    a("buffer_store_dword v6, v5, s[48:51], s54 offen sc1")
    a("s_mov_b64 exec, -1")
    a(f"s_mov_b32 s57, {SPIN_MAX}")
    a.label(lp)
    a("buffer_load_dword v7, v5, s[48:51], s55 offen sc1")
    a("s_waitcnt vmcnt(0)")
    a("v_readfirstlane_b32 s58, v7")
    a("s_sub_u32 s57, s57, 1")
    a("s_cselect_b32 s58, 1, s58")
    a("s_cmp_eq_u32 s58, 0")
    a(f"s_cbranch_scc1 {lp}")
    a.label(sk)
    a("s_barrier")
    for q in range(4):
        a(f"buffer_load_dwordx4 {vq(ACC + 32 + 4*q)}, v1, s[36:39], s53 offen offset:{q*1024} sc1")
    stamp(a, 4)
    P2 = lambda r: f"v[{r}:{r+1}]"
    nst = 0
    for cb in range(4):
        a(f"s_waitcnt vmcnt({3 - cb + nst})")
        for tb in range(2):
            c = ACC + (cb * 2 + tb) * 4
            xb = XE + (tb * 4 + cb) * 2
            S = SA + tb * 6
            for h in range(2):
                src = ACC + 32 + 4 * cb + 2 * tb + h
                a(f"v_lshlrev_b32 v{56+2*h}, 16, v{src}")
                a(f"v_and_b32 v{57+2*h}, 0xffff0000, v{src}")
            for h in range(2):
                a(f"v_pk_add_f32 {P2(c+2*h)}, {P2(c+2*h)}, {P2(56+2*h)}")
            for h in range(2):
                a(f"v_cvt_pk_bf16_f32 v{xb+h}, v{c+2*h}, v{c+2*h+1}")
            for h in range(2):
                a(f"v_lshlrev_b32 v{c+2*h}, 16, v{xb+h}")
                a(f"v_and_b32 v{c+2*h+1}, 0xffff0000, v{xb+h}")
            if cb % 2:
                a(f"v_permlane16_swap_b32 v{xb-2}, v{xb}")
                a(f"v_permlane16_swap_b32 v{xb-1}, v{xb+1}")
                a(f"buffer_store_dwordx4 {vq(xb-2)}, v{3+tb}, s[24:27], 0 offen offset:{(cb//2)*64} sc1")
                nst += 1
            for h in range(2):
                a(f"v_pk_add_f32 {P2(S)}, {P2(S)}, {P2(c+2*h)}")
                a(f"v_pk_fma_f32 {P2(S+2)}, {P2(c+2*h)}, {P2(c+2*h)}, {P2(S+2)}")
                a(f"v_pk_fma_f32 {P2(S+4)}, {P2(c+2*h)}, {P2(32+cb*4+2*h)}, {P2(S+4)}")
    for tb in range(2):
        for k in range(3):
            a(f"v_add_f32 v{48+tb*4+k}, v{SA+tb*6+2*k}, v{SA+tb*6+2*k+1}")
    regs = [48, 49, 50, 52, 53, 54]
    for sw in ("v_permlane16_swap_b32", "v_permlane32_swap_b32"):
        for i, r in enumerate(regs):
            a(f"v_mov_b32 v{56+i}, v{r}")
        a("s_nop 1")
        for i, r in enumerate(regs):
            a(f"{sw} v{r}, v{56+i}")
        a("s_nop 1")
        for i, r in enumerate(regs):
            a(f"v_add_f32 v{r}, v{r}, v{56+i}")
    a("v_cmp_eq_u32 s[56:57], 1, v20")
    a("v_cmp_eq_u32 s[58:59], 2, v20")
    a("s_nop 1")
    for tb in range(2):
        b = 48 + tb * 4
        a(f"v_cndmask_b32 v{b}, v{b}, v{b+1}, s[56:57]")
        a(f"v_cndmask_b32 v{b}, v{b}, v{b+2}, s[58:59]")
        a(f"buffer_atomic_add_f32 v{b}, v2, s[32:35], 0 offen offset:{tb*64}")
    stamp(a, 5)
    stamp_dump(a, 2, 6, 6)
    a.label(end)
    a("s_endpgm")
    for (sl, txt, ret) in stubs:
        a.label(sl)
        a(txt)
        a(f"s_branch {ret}")
    a.end_kernel(name, 156, 192)
    a.launch(name, 256, 256, 65536)
```

```python
from common import *
import common, os

NSL = 224


def top2_merge(a, m1, m2, t1, t2):
    a(f"v_max_f32 v{t2}, v{t2}, v{m2}")
    a(f"v_med3_f32 v{m2}, v{m1}, v{t1}, v{t2}")
    a(f"v_max_f32 v{m1}, v{m1}, v{t1}")


def gen_k4(a, name="k4_kernel"):
    a.begin_kernel(name)
    end = a.uid("k4_end")
    lb, lln, lmm, lbout = a.uid("k4_b"), a.uid("k4_ln"), a.uid("k4_mm"), a.uid("k4_bout")
    a("s_cmp_ge_u32 s2, 256")
    a(f"s_cbranch_scc1 {end}")
    stamp(a, 0)
    a(f"s_load_dwordx8 s[4:11], s[0:1], {ARG['wr']}")
    a(f"s_load_dwordx2 s[12:13], s[0:1], {ARG['out']}")
    a(f"s_load_dwordx2 s[14:15], s[0:1], {ARG['ws']}")
    a("v_lshrrev_b32 v1, 6, v0")
    a("v_and_b32 v2, 63, v0")
    a("v_readfirstlane_b32 s44, v1")
    a("s_and_b32 s45, s2, 7")
    a("s_lshr_b32 s46, s2, 3")
    a("s_mul_i32 s45, s45, 28")
    a("s_add_u32 s45, s45, s46")
    a("v_and_b32 v4, 31, v2")
    a("v_lshrrev_b32 v5, 5, v2")
    a("v_lshlrev_b32 v7, 4, v4")
    MISC = 65536 + 4096
    a(f"v_mov_b32 v11, {MISC}")
    a("v_lshl_add_u32 v12, v2, 2, v11")
    a("v_mov_b32 v13, 0")
    a("ds_write_b32 v12, v13")
    VX, T2, KP, ST, WD = 40, 160, 200, 16, 88
    a("s_waitcnt lgkmcnt(0)")
    a("s_barrier")
    a.srd_off(20, 14, H_OFF, 4 << 20)
    a("s_cmp_ge_u32 s44, 4")
    a(f"s_cbranch_scc1 {lb}")
    a("s_cmp_ge_u32 s2, 224")
    a(f"s_cbranch_scc1 {end}")
    a("s_setprio 3")
    a.srd_off(16, 14, STATS_OFF, WRSUM_OFF - STATS_OFF + 4)
    a("v_lshlrev_b32 v3, 5, v0")
    for j in range(3):
        a(f"s_mov_b32 s48, {j*8192}")
        a(f"buffer_load_dwordx4 v[{ST+8*j}:{ST+8*j+3}], v3, s[16:19], s48 offen")
        a(f"buffer_load_dwordx4 v[{ST+8*j+4}:{ST+8*j+7}], v3, s[16:19], s48 offen offset:16")
    a(f"s_mov_b32 s48, {WRSUM_OFF - STATS_OFF}")
    a("buffer_load_dword v10, v13, s[16:19], s48 offen")
    a.srd(32, 10, 7340032)
    a("s_mov_b32 s52, 0x3a800000")
    a("s_mov_b32 s53, 0x3a800000")
    a("s_mov_b32 s54, 0x7ff")
    a("v_mov_b32 v14, 0x3727c5ac")
    a("v_mov_b32 v15, v14")
    a("v_mov_b32 v8, 0xff800000")
    a("v_mov_b32 v9, v8")
    P = lambda r: f"v[{r}:{r+1}]"
    a("s_waitcnt vmcnt(0)")
    a("v_sub_f32 v10, 0, v10")
    a("v_mov_b32 v11, v10")
    for i in range(0, 8, 2):
        s1, s2, s3 = ST + i, ST + 8 + i, ST + 16 + i
        a(f"v_pk_mul_f32 {P(s1)}, {P(s1)}, s[52:53]")
        a(f"v_pk_fma_f32 {P(s2)}, {P(s2)}, s[52:53], {P(14)}")
        a(f"v_pk_fma_f32 {P(s3)}, {P(s1)}, {P(10)}, {P(s3)}")
        a(f"v_pk_fma_f32 {P(s2)}, {P(s1)}, {P(s1)}, {P(s2)} neg_lo:[1,0,0] neg_hi:[1,0,0]")
    for i in range(8):
        a(f"v_max_f32 v{ST+8+i}, v14, v{ST+8+i}")
    for i in range(8):
        a(f"v_rsq_f32 v{ST+8+i}, v{ST+8+i}")
    for i in range(0, 8, 2):
        a(f"v_pk_mul_f32 {P(ST+16+i)}, {P(ST+16+i)}, {P(ST+8+i)}")
    for i in range(8):
        a(f"v_bfi_b32 v{ST+16+i}, s54, {i}, v{ST+16+i}")
        a(f"v_med3_f32 v9, v8, v9, v{ST+16+i}")
        a(f"v_max_f32 v8, v8, v{ST+16+i}")
    a("v_lshl_or_b32 v8, v0, 3, v8")
    a("v_lshl_or_b32 v9, v0, 3, v9")
    for dpp in ("quad_perm:[1,0,3,2]", "quad_perm:[2,3,0,1]", "row_half_mirror", "row_mirror"):
        a("s_nop 1")
        a(f"v_mov_b32_dpp v10, v8 {dpp} row_mask:0xf bank_mask:0xf")
        a(f"v_mov_b32_dpp v11, v9 {dpp} row_mask:0xf bank_mask:0xf")
        top2_merge(a, 8, 9, 10, 11)
    for sw in ("v_permlane16_swap_b32", "v_permlane32_swap_b32"):
        a("v_mov_b32 v10, v8")
        a("v_mov_b32 v11, v9")
        a("s_nop 1")
        a(f"{sw} v8, v10")
        a(f"{sw} v9, v11")
        a("s_nop 1")
        top2_merge(a, 8, 9, 10, 11)
    a("v_mov_b32 v10, 1")
    a("v_mov_b32 v11, 1")
    a("v_lshlrev_b32 v12, 4, v1")
    a(f"v_add_u32 v12, {MISC}, v12")
    a("ds_write_b128 v12, v[8:11]")
    a(f"v_mov_b32 v12, {MISC}")
    sp = a.uid("k4_mail")
    a.label(sp)
    for w in range(4):
        a(f"ds_read_b128 v[{ST+4*w}:{ST+4*w+3}], v12 offset:{16*w}")
    a("s_waitcnt lgkmcnt(0)")
    a(f"v_and_b32 v10, v{ST+2}, v{ST+6}")
    a(f"v_and_b32 v11, v{ST+10}, v{ST+14}")
    a("v_and_b32 v10, v10, v11")
    a("v_cmp_eq_u32 vcc, 0, v10")
    a(f"s_cbranch_vccnz {sp}")
    top2_merge(a, ST, ST + 1, ST + 4, ST + 5)
    top2_merge(a, ST + 8, ST + 9, ST + 12, ST + 13)
    top2_merge(a, ST, ST + 1, ST + 8, ST + 9)
    a("v_cmp_eq_u32 vcc, 0, v5")
    a("s_lshl_b32 s52, s45, 15")
    a("v_lshlrev_b32 v9, 3, v0")
    a(f"v_cndmask_b32 v11, v{ST+1}, v{ST}, vcc")
    a("v_and_b32 v15, 0x7ff, v11")
    a("v_lshl_add_u32 v11, v15, 11, v7")
    for i in range(4):
        a(f"buffer_load_dwordx4 v[{VX+4*i}:{VX+4*i+3}], v11, s[20:23], 0 offen offset:{i*512}")
    stamp(a, 1)
    for i in range(16):
        a(f"buffer_load_dwordx2 v[{WD+2*i}:{WD+2*i+1}], v9, s[32:35], s52 offen offset:{(i%2)*2048}")
        if i % 2:
            a("s_add_u32 s52, s52, 4096")
    a("s_waitcnt vmcnt(16)")
    a.label(lln)
    ln_rows_half_wave(a, VX, T2, keep=KP)
    a("s_cmp_ge_u32 s44, 4")
    a(f"s_cbranch_scc1 {lbout}")
    stamp(a, 2)
    a("v_lshl_add_u32 v11, v5, 11, v7")
    a("v_add_u32 v12, 65536, v11")
    for i in range(4):
        a(f"ds_write_b128 v12, v[{VX+4*i}:{VX+4*i+3}] offset:{i*512}")
    a("s_waitcnt lgkmcnt(0)")
    a.label(lmm)
    a("s_barrier")
    stamp(a, 3)
    a("v_lshrrev_b32 v12, 4, v2")
    a("v_and_b32 v13, 1, v2")
    a("v_lshlrev_b32 v13, 11, v13")
    a("v_lshl_add_u32 v13, v12, 3, v13")
    a("s_lshl_b32 s54, s44, 8")
    a("s_add_u32 s54, s54, 65536")
    a("v_add_u32 v13, s54, v13")
    a("v_lshlrev_b32 v14, 3, v2")
    a("s_lshl_b32 s54, s44, 12")
    a("v_add_u32 v14, s54, v14")
    XF, WF = 128, 144
    for s in range(4):
        a(f"ds_read_b64 v[{XF+4*s}:{XF+4*s+1}], v13 offset:{s*64}")
        a(f"ds_read_b64 v[{XF+4*s+2}:{XF+4*s+3}], v13 offset:{s*64+32}")
        for m in range(2):
            b = WF + (m * 4 + s) * 4
            a(f"ds_read_b64_tr_b16 v[{b}:{b+1}], v14 offset:{m*32768 + s*1024}")
            a(f"ds_read_b64_tr_b16 v[{b+2}:{b+3}], v14 offset:{m*32768 + s*1024 + 512}")
    a("v_and_b32 v13, 15, v2")
    a("v_lshlrev_b32 v13, 6, v13")
    a("v_lshl_add_u32 v13, v12, 4, v13")
    a("s_lshl_b32 s54, s44, 11")
    a(f"s_add_u32 s54, s54, {MISC + 256}")
    a("v_add_u32 v13, s54, v13")
    a("s_waitcnt lgkmcnt(0)")
    for s in range(4):
        for m in range(2):
            b = WF + (m * 4 + s) * 4
            c = f"v[{16+4*m}:{19+4*m}]"
            a(mfma16(c, f"v[{b}:{b+3}]", f"v[{XF+4*s}:{XF+4*s+3}]", "0" if s == 0 else c))
    a("s_nop 7")
    a("ds_write_b128 v13, v[16:19]")
    a("ds_write_b128 v13, v[20:23] offset:1024")
    a("s_waitcnt lgkmcnt(0)")
    a("s_barrier")
    a("s_cmp_ge_u32 s44, 4")
    a(f"s_cbranch_scc1 {lln}")
    a("v_lshlrev_b32 v13, 2, v4")
    a(f"v_add_u32 v13, {MISC + 256}, v13")
    for w in range(8):
        a(f"ds_read2st64_b32 v[{16+2*w}:{17+2*w}], v13 offset0:{w*8} offset1:{w*8 + 4}")
    a.srd_off(56, 14, PART_OFF, NSL * 8192)
    a("s_waitcnt lgkmcnt(0)")
    for w in range(4):
        a(f"v_pk_add_f32 {P(16+2*w)}, {P(16+2*w)}, {P(24+2*w)}")
    a(f"v_pk_add_f32 {P(16)}, {P(16)}, {P(20)}")
    a(f"v_pk_add_f32 {P(18)}, {P(18)}, {P(22)}")
    a(f"v_pk_add_f32 {P(16)}, {P(16)}, {P(18)}")
    a("v_cvt_pk_bf16_f32 v16, v16, v17")
    a("v_and_b32 v20, 0xffff0000, v16")
    a("v_lshlrev_b32 v16, 16, v16")
    a("v_mul_f32 v17, 0xbfb8aa3b, v16")
    a("v_exp_f32 v17, v17")
    a("s_mov_b32 s54, 0x05040100")
    a("v_add_f32 v17, 1.0, v17")
    a("v_rcp_f32 v17, v17")
    a("s_mov_b32 s55, 0x07060302")
    a("v_mul_f32 v16, v16, v17")
    a("v_cvt_pk_bf16_f32 v16, v16, v16")
    a("v_and_b32 v16, 0xffff0000, v16")
    a("v_mul_f32 v16, v16, v20")
    a("s_nop 1")
    a("v_mov_b32_dpp v17, v16 quad_perm:[1,0,3,2] row_mask:0xf bank_mask:0xf")
    a("v_cvt_pk_bf16_f32 v16, v16, v17")
    a("s_waitcnt vmcnt(0)")
    for t in range(2):
        for j in range(8):
            a(f"v_readlane_b32 s{24 + t*8 + j}, v16, {t*16 + 2*j}")
    ACC = 24
    for j in range(8):
        r0, r1 = WD + 4 * j, WD + 4 * j + 2
        for h in range(2):
            a(f"v_perm_b32 v16, v{r1+h}, v{r0+h}, s54")
            a(f"v_perm_b32 v17, v{r1+h}, v{r0+h}, s55")
            for t in range(2):
                for e in range(2):
                    d = ACC + t * 4 + h * 2 + e
                    a(f"v_dot2_f32_bf16 v{d}, v{16+e}, s{24 + t*8 + j}, {'0' if j == 0 else 'v%d' % d}")
    a("v_lshlrev_b32 v13, 4, v0")
    a("s_lshl_b32 s54, s45, 13")
    a("s_add_u32 s55, s54, 4096")
    a("s_nop 2")
    a(f"buffer_store_dwordx4 v[{ACC}:{ACC+3}], v13, s[56:59], s54 offen sc1")
    a(f"buffer_store_dwordx4 v[{ACC+4}:{ACC+7}], v13, s[56:59], s55 offen sc1")
    skip = a.uid("k4_nosel")
    a("s_or_b32 s54, s2, s44")
    a(f"s_cbranch_scc1 {skip}")
    a.srd(40, 4, 2048)
    for i in range(4):
        a(f"buffer_load_dwordx4 v[{56+4*i}:{59+4*i}], v7, s[40:43], 0 offen offset:{i*512}")
    a.srd_off(56, 14, SEL_OFF, 8192)
    a("s_mov_b32 s54, 4096")
    for i in range(4):
        a(f"buffer_store_dwordx4 v[{VX+4*i}:{VX+4*i+3}], v11, s[56:59], s54 offen offset:{i*512} sc1")
    a("s_waitcnt vmcnt(4)")
    a(f"v_dot2_f32_bf16 v12, v{VX}, v56, 0")
    for i in range(1, 16):
        a(f"v_dot2_f32_bf16 v12, v{VX+i}, v{56+i}, v12")
    a("s_nop 2")
    half_wave_sum(a, 12, 13)
    a("v_cvt_pk_bf16_f32 v12, v12, v12")
    a("v_and_b32 v12, 0xffff0000, v12")
    a("v_mul_f32 v12, 0xbfb8aa3b, v12")
    a("v_exp_f32 v12, v12")
    a("s_nop 0")
    a("v_add_f32 v12, 1.0, v12")
    a("v_rcp_f32 v12, v12")
    a("s_nop 0")
    a("v_cvt_pk_bf16_f32 v12, v12, v12")
    a("v_and_b32 v12, 0xffff0000, v12")
    a("v_lshlrev_b32 v13, 2, v5")
    a("buffer_store_dword v15, v13, s[56:59], 0 offen sc1")
    a("buffer_store_dword v12, v13, s[56:59], 0 offen offset:8 sc1")
    a.label(skip)
    stamp(a, 4)
    stamp_dump(a, 3, 5, 14)
    a("s_endpgm")
    a.label(lb)
    a("v_lshl_add_u32 v6, v1, 1, v5")
    a("s_lshl_b32 s47, s2, 3")
    a("s_sub_u32 s47, s47, 8")
    a("v_add_u32 v6, s47, v6")
    a("v_lshl_add_u32 v6, v6, 11, v7")
    a.srd(36, 12, 4 << 20)
    nf = a.uid("k4_noffn")
    a("s_cmp_ge_u32 s2, 224")
    a(f"s_cbranch_scc1 {nf}")
    a.srd(24, 6, 7340032)
    a.srd(28, 8, 7340032)
    a("s_and_b32 s50, s44, 3")
    a("v_lshrrev_b32 v8, 1, v2")
    a("s_lshl_b32 s47, s50, 8")
    a("v_add_u32 v8, s47, v8")
    a("v_mul_u32_u24 v8, 7168, v8")
    a("v_and_b32 v9, 1, v2")
    a("v_lshl_add_u32 v8, v9, 4, v8")
    a("s_lshl_b32 s47, s45, 5")
    a("v_add_u32 v8, s47, v8")
    a("s_and_b32 s49, s45, 3")
    a("s_lshl_b32 s49, s49, 1")
    a("s_lshl_b32 s50, s50, 13")
    a("s_mov_b32 s53, 8")
    dl = a.uid("k4_dma")
    a.label(dl)
    a(f"s_mul_i32 s52, s49, {32*7168}")
    a("s_lshl_b32 s51, s49, 10")
    a("s_add_u32 m0, s51, s50")
    a("s_add_u32 s49, s49, 1")
    a("buffer_load_dwordx4 v8, s[24:27], s52 offen lds")
    a("s_add_u32 m0, m0, 32768")
    a("s_and_b32 s49, s49, 7")
    a("buffer_load_dwordx4 v8, s[28:31], s52 offen lds")
    a("s_sub_u32 s53, s53, 1")
    a("s_cmp_lg_u32 s53, 0")
    a(f"s_cbranch_scc1 {dl}")
    for i in range(4):
        a(f"buffer_load_dwordx4 v[{VX+4*i}:{VX+4*i+3}], v6, s[20:23], 0 offen offset:{i*512}")
    a("s_waitcnt vmcnt(0)")
    a(f"s_branch {lmm}")
    a.label(nf)
    for i in range(4):
        a(f"buffer_load_dwordx4 v[{VX+4*i}:{VX+4*i+3}], v6, s[20:23], 0 offen offset:{i*512}")
    a("s_waitcnt vmcnt(0)")
    a(f"s_branch {lln}")
    a.label(lbout)
    for i in range(16):
        a(f"v_lshlrev_b32 v{T2+2*i}, 16, v{VX+i}")
        a(f"v_and_b32 v{T2+2*i+1}, 0xffff0000, v{VX+i}")
    for i in range(0, 32, 2):
        a(f"v_pk_add_f32 v[{T2+i}:{T2+i+1}], v[{T2+i}:{T2+i+1}], v[{KP+i}:{KP+i+1}]")
    for i in range(16):
        a(f"v_cvt_pk_bf16_f32 v{VX+i}, v{T2+2*i}, v{T2+2*i+1}")
    for i in range(4):
        a(f"buffer_store_dwordx4 v[{VX+4*i}:{VX+4*i+3}], v6, s[36:39], 0 offen offset:{i*512} sc1")
    a.label(end)
    a("s_endpgm")
    a.end_kernel(name, 232, extra=[".amdhsa_float_denorm_mode_32 3"])
    a.launch(name, 256, 512, MISC + 256 + 16384)


def gen_k5(a, name="k5_kernel"):
    a.begin_kernel(name)
    end = a.uid("k5_end")
    a("s_cmp_ge_u32 s2, 64")
    a(f"s_cbranch_scc1 {end}")
    stamp(a, 0)
    a(f"s_load_dwordx2 s[12:13], s[0:1], {ARG['out']}")
    a(f"s_load_dwordx2 s[14:15], s[0:1], {ARG['ws']}")
    a("v_and_b32 v2, 7, v0")
    a("v_lshrrev_b32 v3, 3, v0")
    a("v_lshlrev_b32 v4, 13, v3")
    a("v_lshl_add_u32 v4, v2, 4, v4")
    a("s_lshl_b32 s40, s2, 7")
    a("s_lshr_b32 s41, s2, 5")
    a("s_and_b32 s42, s2, 31")
    a("s_waitcnt lgkmcnt(0)")
    a.srd_off(16, 14, PART_OFF, NSL * 8192)
    a.srd_off(20, 14, SEL_OFF, 8192)
    a.srd_off(24, 14, H_OFF, 4 << 20)
    a.srd(28, 12, 4 << 20)
    a("s_lshl_b32 s43, s41, 2")
    a("v_mov_b32 v5, s43")
    a("buffer_load_dword v6, v5, s[20:23], 0 offen")
    a("buffer_load_dword v7, v5, s[20:23], 0 offen offset:8")
    for i in range(7):
        a(f"buffer_load_dwordx4 v[{16+4*i}:{19+4*i}], v4, s[16:19], s40 offen")
        a("s_add_u32 s40, s40, 0x40000")
    a("s_lshl_b32 s44, s42, 6")
    a("v_lshl_add_u32 v8, v2, 3, s44")
    a("s_lshl_b32 s45, s41, 11")
    a("s_add_u32 s45, s45, 4096")
    a("buffer_load_dwordx2 v[10:11], v8, s[20:23], s45 offen")
    a("s_waitcnt vmcnt(8)")
    a("v_and_b32 v6, 0x7ff, v6")
    a("v_lshl_add_u32 v9, v6, 11, v8")
    a("buffer_load_dwordx2 v[12:13], v9, s[24:27], 0 offen")
    a("s_waitcnt vmcnt(2)")
    for i in range(1, 7):
        a(f"v_pk_add_f32 v[16:17], v[16:17], v[{16+4*i}:{17+4*i}]")
        a(f"v_pk_add_f32 v[18:19], v[18:19], v[{18+4*i}:{19+4*i}]")
    a("s_nop 1")
    for r in range(4):
        a(f"v_add_f32_dpp v{16+r}, v{16+r}, v{16+r} row_ror:8 row_mask:0xf bank_mask:0xf")
    for sw in ("v_permlane16_swap_b32", "v_permlane32_swap_b32"):
        for r in range(4):
            a(f"v_mov_b32 v{20+r}, v{16+r}")
        a("s_nop 1")
        for r in range(4):
            a(f"{sw} v{16+r}, v{20+r}")
        a("s_nop 1")
        for r in range(4):
            a(f"v_add_f32 v{16+r}, v{16+r}, v{20+r}")
    a("v_lshrrev_b32 v14, 6, v0")
    a("v_lshlrev_b32 v14, 7, v14")
    a("v_lshl_add_u32 v14, v2, 4, v14")
    a("ds_write_b128 v14, v[16:19]")
    a("s_waitcnt lgkmcnt(0)")
    a("s_barrier")
    a("v_lshlrev_b32 v14, 4, v2")
    for w in range(4):
        a(f"ds_read_b128 v[{16+4*w}:{19+4*w}], v14 offset:{w*128}")
    a("s_waitcnt vmcnt(0) lgkmcnt(0)")
    for w in range(1, 4):
        a(f"v_pk_add_f32 v[16:17], v[16:17], v[{16+4*w}:{17+4*w}]")
        a(f"v_pk_add_f32 v[18:19], v[18:19], v[{18+4*w}:{19+4*w}]")
    for h in range(2):
        y = 16 + 2 * h
        a(f"v_cvt_pk_bf16_f32 v20, v{y}, v{y+1}")
        a("v_lshlrev_b32 v21, 16, v20\nv_and_b32 v22, 0xffff0000, v20")
        a("v_mul_f32 v21, v21, v7\nv_mul_f32 v22, v22, v7")
        a("v_cvt_pk_bf16_f32 v20, v21, v22")
        a("v_lshlrev_b32 v21, 16, v20\nv_and_b32 v22, 0xffff0000, v20")
        a(f"v_lshlrev_b32 v23, 16, v{10+h}\nv_and_b32 v24, 0xffff0000, v{10+h}")
        a("v_add_f32 v21, v21, v23\nv_add_f32 v22, v22, v24")
        a("v_cvt_pk_bf16_f32 v20, v21, v22")
        a("v_lshlrev_b32 v21, 16, v20\nv_and_b32 v22, 0xffff0000, v20")
        a(f"v_lshlrev_b32 v23, 16, v{12+h}\nv_and_b32 v24, 0xffff0000, v{12+h}")
        a("v_add_f32 v21, v21, v23\nv_add_f32 v22, v22, v24")
        a(f"v_cvt_pk_bf16_f32 v{26+h}, v21, v22")
    a("v_cmp_gt_u32 vcc, 8, v0")
    a("s_and_saveexec_b64 s[46:47], vcc")
    skip = a.uid("k5_skip")
    a(f"s_cbranch_execz {skip}")
    a("buffer_store_dwordx2 v[26:27], v9, s[28:31], 0 offen")
    a.label(skip)
    a("s_mov_b64 exec, s[46:47]")
    stamp_dump(a, 4, 1, 14)
    if common.PROF and os.environ.get("DBGOUT"):
        a("s_cmp_lg_u32 s2, 0")
        a(f"s_cbranch_scc1 {end}")
        a("s_waitcnt vmcnt(0)")
        a(f"s_load_dwordx2 s[4:5], s[0:1], {ARG['dbg']}")
        a.srd_off(8, 14, PROF_OFF, 8 * 512 * 64)
        picks = [(0, i) for i in range(8)] + [(2, 0), (2, 2), (2, 3), (2, 5), (3, 0), (3, 5)]
        a("v_mov_b32 v1, 0")
        for i, (k, j) in enumerate(picks):
            a(f"s_mov_b32 s3, {k*512*64 + 100*64 + j*4}")
            a(f"buffer_load_dword v{10+i}, v1, s[8:11], s3 offen sc1")
        a("v_mov_b32 v24, s64")
        a("v_mov_b32 v25, s68")
        a("s_waitcnt vmcnt(0) lgkmcnt(0)")
        a.srd(8, 4, 256)
        for i in range(15, -1, -1):
            a(f"v_sub_u32 v{10+i}, v{10+i}, v10")
            a(f"buffer_store_dword v{10+i}, v1, s[8:11], 0 offen offset:{4*i}")
    a.label(end)
    a("s_endpgm")
    a.end_kernel(name, 64)
    a.launch(name, 64, 256, 512)
```

```python
from common import *
import common, os
from sched import Op, spread, schedule
import k2
from k2 import vq, aq, V_LANE16, V_VV, V_NINF, attention_phase, LDF

SPIN_MAX = 1 << 20
KO = set(os.environ.get('KO', '').split(','))
NT = ' nt' if 'nt' in KO else ''
ENV = lambda k, d: int(os.environ.get(k, str(d)))

ZERO, ONE = 8, 9
XD, WD, XRD, WRD = 10, 18, 26, 28
QX, QWD, QWR = 36, 38, 42
VPF, VDUM, VPOLL, VXST, VLW, VLR = 50, 51, 52, 53, 54, 55
PT = 56
PK = 64
WRING = 98304


def spin_text(a, soff, target):
    ok, lp = a.uid("spin_ok"), a.uid("spin")
    return "\n".join([
        f"v_readfirstlane_b32 s31, v{VPOLL}", f"s_cmp_ge_u32 s31, {target}", f"s_cbranch_scc1 {ok}",
        f"s_mov_b32 s40, {SPIN_MAX}", f"{lp}:", "s_sleep 8",
        f"buffer_load_dword v{VPOLL}, v{ZERO}, s[24:27], {soff} offen sc1", "s_waitcnt vmcnt(0)",
        f"v_readfirstlane_b32 s31, v{VPOLL}", "s_sub_u32 s40, s40, 1", "s_cselect_b32 s31, -1, s31",
        f"s_cmp_lt_u32 s31, {target}", f"s_cbranch_scc1 {lp}", f"{ok}:"])


def one_lane(text):
    return f"s_mov_b64 exec, 1\n{text}\ns_mov_b64 exec, -1"


def gen_k12(a, name="k12_kernel"):
    a.begin_kernel(name)
    end = a.uid("k12_end")
    stubs = []

    def when(cmp_text, body, want, **kw):
        l, r = a.uid("k12_ool"), a.uid("k12_oolret")
        if "nosig" in KO and "s[24:27]" in body:
            body = "s_nop 0"
        stubs.append((l, body, r))
        return Op(f"{cmp_text}\ns_cbranch_scc1 {l}\n{r}:", "B", want, **kw)

    a("s_cmp_ge_u32 s2, 256")
    a(f"s_cbranch_scc1 {end}")
    stamp(a, 0)
    a(f"s_load_dwordx4 s[36:39], s[0:1], {ARG['x']}")
    a(f"s_load_dwordx4 s[40:43], s[0:1], {ARG['wuk']}")
    a(f"s_load_dwordx2 s[4:5], s[0:1], {ARG['wq']}")
    a(f"s_load_dwordx4 s[60:63], s[0:1], {ARG['dbg']}")
    CE = ENV("CE", 48)
    a("s_lshr_b32 s59, s2, 3")
    a("s_lshl_b32 s58, s59, 4")
    a("v_add_u32 v6, s58, v0")
    a(f"v_cmp_gt_u32 vcc, {CE}, v0")
    a(f"v_cmp_gt_u32 s[56:57], {CE + 16}, v0")
    a("s_nop 0")
    a("v_cndmask_b32 v6, v6, v0, vcc")
    code_addr(a, "k12_code0", 58, 6, 52)
    a.label("k12_code0")
    a("s_mov_b64 exec, s[56:57]")
    cs = a.uid("k12_nocode")
    a(f"s_cbranch_execz {cs}")
    a(f"global_load_dword v{VDUM}, v[58:59], off")
    a.label(cs)
    a("s_mov_b64 exec, -1")
    a("s_and_b32 s58, s2, 7")
    a("s_lshr_b32 s59, s2, 3")
    a("s_and_b32 s45, s59, 7")
    a("s_lshr_b32 s57, s59, 3")
    a("s_and_b32 s44, s57, 1")
    a("s_lshl_b32 s52, s58, 1")
    a("s_add_u32 s44, s44, s52")
    a("s_lshr_b32 s57, s57, 1")
    W, LN_ = 2, 3
    a(f"v_lshrrev_b32 v{W}, 6, v0")
    a(f"v_and_b32 v{LN_}, 63, v0")
    a(f"v_readfirstlane_b32 s30, v{W}")
    a(f"v_lshlrev_b32 v{V_LANE16}, 4, v{LN_}")
    VX, VT = 64, 80
    TOK, L32 = 60, 61
    a(f"v_lshrrev_b32 v{TOK}, 5, v{LN_}")
    a(f"v_lshl_add_u32 v{TOK}, v{W}, 1, v{TOK}")
    a(f"v_and_b32 v{L32}, 31, v{LN_}")
    a(f"v_lshlrev_b32 v6, 11, v{TOK}")
    a(f"v_lshl_add_u32 v62, v{L32}, 4, v6")
    a("s_lshl_b32 s52, s2, 14")
    a(f"v_lshrrev_b32 v56, 3, v{LN_}")
    a(f"v_and_b32 v57, 7, v{LN_}")
    a("v_lshrrev_b32 v58, 1, v56")
    a("v_xor_b32 v6, v57, v58")
    a("v_xor_b32 v7, 4, v6")
    a(f"v_lshl_add_u32 v58, v{W}, 6, v56")
    a("v_lshlrev_b32 v58, 10, v58")
    a("s_lshl_b32 s47, s45, 18")
    a("v_add_u32 v58, s47, v58")
    a(f"v_lshl_add_u32 v{XD}, v6, 4, v58")
    a(f"v_lshl_add_u32 v{XD+1}, v7, 4, v58")
    for i in range(7, -1, -1):
        a(f"v_add_u32 v{XD+i}, {i*8*1024 - (i%4)*1024}, v{XD + (i%2)}")
    a(f"v_lshrrev_b32 v6, 5, v{LN_}")
    a(f"v_bfe_u32 v7, v{LN_}, 1, 4")
    a(f"v_and_b32 v59, 1, v{LN_}")
    a(f"v_lshl_add_u32 v58, v{W}, 4, v6")
    a("v_lshlrev_b32 v58, 13, v58")
    a("v_lshl_add_u32 v58, v59, 4, v58")
    a("s_lshl_b32 s47, s44, 9")
    a("v_add_u32 v58, s47, v58")
    a("v_xor_b32 v7, v7, v6")
    for i in range(8):
        fx = ((2 * i) & 3) | ((((2 * i) >> 3) & 1) << 2)
        a(f"v_xor_b32 v6, {fx}, v7")
        a(f"v_lshl_add_u32 v6, v6, 5, v58")
        a(f"v_add_u32 v{WD+i}, {2*i*8192 - (i%4)*1024}, v6")
    XB, WB = 0, 65536
    a("s_lshl_b32 s48, s30, 13")
    a("s_mov_b32 s49, 0")
    a("s_mov_b32 s50, 0")
    a("s_waitcnt lgkmcnt(0)")
    a.srd(24, 36, 4 << 20)
    for i in range(4):
        a(f"buffer_load_dwordx4 v[{VX+4*i}:{VX+4*i+3}], v62, s[24:27], s52 offen offset:{i*512}{NT}")
    a.srd(16, 38, 2 << 20)
    a("s_cmp_eq_u32 s57, 0")
    a("s_cselect_b32 s20, s40, s42")
    a("s_cselect_b32 s21, s41, s43")
    a("s_and_b32 s21, s21, 0xffff")
    a("s_mov_b32 s22, 0x400000")
    a("s_mov_b32 s23, 0x00020000")

    def dma_grp(stage, g):
        op, i0 = g // 2, (g % 2) * 4
        m = f"s_add_u32 m0, s48, {(XB if op == 0 else WB) + stage*32768 + i0*1024}"
        if op == 0:
            ld = [f"buffer_load_dwordx4 v{XD+i0+i}, s[16:19], s49 offen offset:{i*1024} lds" for i in range(4)]
        else:
            ld = [f"buffer_load_dwordx4 v{WD+i0+i}, s[20:23], s50 offen offset:{i*1024}{NT} lds" for i in range(4)]
        tr = {1: "s_add_u32 s49, s49, 128", 3: "s_add_u32 s50, s50, 0x80000"}.get(g)
        return m, ld, tr

    def emit_grp(m, ld, tr):
        a(m)
        a("s_nop 0")
        for t in ld:
            a(t)
        if tr:
            a(tr)

    def grp_sched(grps, lo, hi, after=()):
        ops, prev = [], list(after)
        tot = sum(len(g[1]) for g in grps)
        step = (hi - lo) / float(tot)
        k = 0
        for (m, ld, tr) in grps:
            mo = None
            if m:
                mo = Op(m, "S", lo + step * k - 1, lo=lo, after=prev)
                ops.append(mo)
            for t in ld:
                o = Op(t, "V", lo + 1 + step * k, lo=lo, after=prev, prev_gap=[mo] if mo else [])
                ops.append(o)
                prev = [o]
                k += 1
            if tr:
                for t in tr.split("\n"):
                    o = Op(t, "S", lo + step * k, after=prev)
                    ops.append(o)
                    prev = [o]
        return ops, prev

    for g in range(4):
        emit_grp(*dma_grp(0, g))
    a("s_mov_b64 s[6:7], s[62:63]")
    a.srd_off(8, 6, XN_OFF, 4 << 20)
    a.srd(12, 4, 8 << 20)
    a.srd_off(32, 6, KF_OFF, 32 << 20)
    a.srd(24, 60, 256)
    a("s_lshl_b32 s28, s58, 2")
    a("s_and_b32 s31, s59, 3")
    a("s_add_u32 s28, s28, s31")
    a("s_lshr_b32 s29, s59, 2")
    a("s_lshl_b32 s42, s29, 7")
    a("s_sub_u32 s43, 1920, s42")
    a("s_lshl_b32 s31, s30, 5")
    a("s_add_u32 s38, s42, s31")
    a("s_add_u32 s39, s43, s31")
    a("s_lshl_b32 s60, s30, 12")
    a("s_mov_b32 s61, 0")
    a("s_mov_b32 s62, 0")
    a("s_lshl_b32 s47, s44, 1")
    a("s_lshr_b32 s52, s30, 1")
    a("s_add_u32 s47, s47, s52")
    a("s_lshl_b32 s47, s47, 14")
    a("s_lshl_b32 s52, s45, 1")
    a("s_and_b32 s53, s30, 1")
    a("s_add_u32 s52, s52, s53")
    a("s_lshl_b32 s52, s52, 20")
    a("s_add_u32 s47, s47, s52")
    a("s_lshl_b32 s52, s57, 24")
    a("s_add_u32 s47, s47, s52")
    assert VF_OFF - KF_OFF == 1 << 24
    a("s_lshl_b32 s54, s44, 8")
    a("s_lshr_b32 s55, s28, 1")
    a("s_lshl_b32 s55, s55, 8")
    a("s_and_b32 s53, s59, 3")
    a("s_add_u32 s53, s53, 1")
    a("s_cmp_eq_u32 s30, 0")
    a("s_cselect_b32 s53, s53, -1")
    a("s_cselect_b32 s46, 6, -1")
    a("v_lshlrev_b32 v6, 13, v56")
    a(f"v_lshl_add_u32 v{VPF}, v57, 7, v6")
    a("s_lshl_b32 s56, s30, 5")
    a("s_add_u32 s56, s56, s59")
    a("s_lshl_b32 s56, s56, 16")
    a("s_lshl_b32 s52, s58, 10")
    a("s_add_u32 s56, s56, s52")
    a("s_lshl_b32 s63, s30, 1")
    pf = f"buffer_load_dword v{VDUM}, v{VPF}, s[12:15], s56 offen" if "nowq" not in KO else "s_nop 0"
    XL = 131072
    a(f"v_mul_u32_u24 v6, 2064, v{TOK}")
    a(f"v_lshl_add_u32 v6, v{L32}, 4, v6")
    a(f"v_add_u32 v{VLW}, {XL}, v6")
    a("v_mul_u32_u24 v7, 2064, v57")
    a("v_lshl_add_u32 v7, v56, 4, v7")
    a(f"v_lshl_add_u32 v7, v{W}, 9, v7")
    a(f"v_add_u32 v{VLR}, {XL}, v7")
    a("v_lshrrev_b32 v7, 2, v56")
    a(f"v_lshl_add_u32 v7, v{W}, 3, v7")
    a("v_lshlrev_b32 v7, 17, v7")
    a("v_and_b32 v6, 3, v56")
    a("v_lshl_add_u32 v7, v6, 8, v7")
    a("v_lshl_add_u32 v7, v57, 4, v7")
    a("s_lshr_b32 s52, s2, 1")
    a("s_lshl_b32 s52, s52, 10")
    a("s_and_b32 s31, s2, 1")
    a("s_lshl_b32 s31, s31, 7")
    a("s_add_u32 s52, s52, s31")
    a(f"v_add_u32 v{VXST}, s52, v7")
    a(f"v_and_b32 v56, 15, v{LN_}")
    a(f"v_lshrrev_b32 v57, 4, v{LN_}")
    a("v_lshrrev_b32 v6, 1, v56")
    a("v_xor_b32 v6, v6, v57")
    a(f"v_and_b32 v7, 1, v{W}")
    a("v_lshl_add_u32 v7, v7, 7, v56")
    a("v_lshlrev_b32 v7, 7, v7")
    a(f"v_lshl_add_u32 v{XRD}, v6, 4, v7")
    a(f"v_xor_b32 v{XRD+1}, 64, v{XRD}")
    a("v_lshrrev_b32 v6, 2, v56")
    a("v_and_b32 v58, 1, v57")
    a("v_lshl_add_u32 v58, v58, 2, v6")
    a("v_lshl_add_u32 v59, v57, 3, v6")
    a(f"v_and_b32 v63, 3, v{LN_}")
    a("v_lshlrev_b32 v7, 9, v59")
    a(f"v_lshrrev_b32 v6, 1, v{W}")
    a("v_lshl_add_u32 v7, v6, 8, v7")
    a("v_lshl_add_u32 v7, v63, 3, v7")
    a(f"v_add_u32 v7, {WB}, v7")
    a("v_lshlrev_b32 v59, 8, v59")
    a("v_lshl_add_u32 v59, v63, 3, v59")
    a(f"v_add_u32 v59, {WRING}, v59")
    for j in range(8):
        a(f"v_xor_b32 v6, {j}, v58")
        a(f"v_lshl_add_u32 v{WRD+j}, v6, 5, v7")
        a(f"v_lshl_add_u32 v{QWR+j}, v6, 5, v59")
    a("s_lshl_b32 s31, s38, 6")
    a(f"v_add_u32 v{QX}, s31, v{V_LANE16}")
    a("s_lshl_b32 s31, s39, 6")
    a(f"v_add_u32 v{QX+1}, s31, v{V_LANE16}")
    a(f"v_bfe_u32 v6, v{LN_}, 1, 3")
    a(f"v_and_b32 v7, 1, v{LN_}")
    a(f"v_lshl_add_u32 v58, v{W}, 4, v57")
    a("v_lshlrev_b32 v58, 13, v58")
    a("v_lshl_add_u32 v58, v7, 4, v58")
    a("s_lshl_b32 s31, s28, 8")
    a("v_add_u32 v58, s31, v58")
    a("v_xor_b32 v6, v6, v57")
    for i in range(4):
        a(f"v_xor_b32 v7, {(i // 2) << 2}, v6")
        a(f"v_lshl_add_u32 v7, v7, 5, v58")
        a(f"v_add_u32 v{QWD+i}, {4*i*8192 - i*1024}, v7")
    a("v_lshlrev_b32 v6, 2, v57")
    a(f"v_sub_u32 v{V_VV}, v56, v6")
    a(f"v_mov_b32 v{V_NINF}, 0xff800000")
    a(f"v_mov_b32 v{ZERO}, 0")
    a(f"v_mov_b32 v{ONE}, 1")
    a("s_lshl_b32 s52, s59, 2")
    a("s_add_u32 s52, s52, s30")
    a(f"v_and_b32 v6, 1, v{LN_}")
    a("v_lshl_add_u32 v6, s52, 1, v6")
    code_addr(a, "k12_qcode", 2, 6, 40)
    cpf = f"global_load_dword v{VDUM}, v[2:3], off" if "nocpf" not in KO else "s_nop 0"
    zero_acc(a, 128, 64, 56)
    zero_acc(a, 128, 128, 56, "v", init=False)
    a("s_waitcnt vmcnt(16)")
    ln_rows_half_wave(a, VX, VT)
    for i in range(4):
        a(f"ds_write_b128 v{VLW}, v[{VX+4*i}:{VX+4*i+3}] offset:{i*512}")
    for g in range(4):
        emit_grp(*dma_grp(1, g))
    a("s_waitcnt vmcnt(16) lgkmcnt(0)")
    a("s_barrier")
    XT = 192
    for i in range(4):
        a(f"ds_read_b128 {aq(XT+4*i)}, v{VLR} offset:{i*128}")
    zero_acc(a, 64, 64, 56, "v", init=False)

    FX = [0, 64]
    FW = [32, 96]

    def reads(stage, sp, buf):
        out = []
        for i in range(8):
            out.append(f"ds_read_b128 {aq(FX[buf]+4*i)}, v{XRD+sp} offset:{XB + stage*32768 + i*2048}")
            out.append(f"ds_read_b64_tr_b16 a[{FW[buf]+4*i}:{FW[buf]+4*i+1}], v{WRD+i} offset:{stage*32768 + sp*16384}")
            out.append(f"ds_read_b64_tr_b16 a[{FW[buf]+4*i+2}:{FW[buf]+4*i+3}], v{WRD+i} offset:{stage*32768 + sp*16384 + 2048}")
        return out

    def pair_n(c, j, isv):
        return (c * 8 + j) if isv else (j * 4 + c)

    def acc(i, j, isv):
        n = pair_n(i // 2, j, isv)
        if n < 24:
            return ("v", (64 if i % 2 == 0 else 160) + 4 * n)
        return ("a", 128 + 8 * (n - 24) + 4 * (i % 2))

    def mf1(i, j, buf, isv):
        FA, FB = (FX, FW) if isv else (FW, FX)
        k, c = acc(i, j, isv)
        r = f"{k}[{c}:{c+3}]"
        return mfma16(r, aq(FA[buf] + 4 * i), aq(FB[buf] + 4 * j), r)

    def mfmas(buf, isv):
        return [mf1(i, j, buf, isv) for i in range(8) for j in range(8)]

    skip = a.uid("k12_nostat")
    a(f"s_cmp_ge_u32 s2, {ZERO_BYTES // 4096}")
    a(f"s_cbranch_scc1 {skip}")
    a("s_lshl_b32 s52, s2, 12")
    a(f"s_add_u32 s52, s52, 0x{STATS_OFF - KF_OFF:x}")
    a("s_mov_b32 s34, -1")
    a("v_lshlrev_b32 v6, 4, v0")
    a("buffer_store_dwordx4 v[56:59], v6, s[32:35], s52 offen sc1")
    a(f"s_mov_b32 s34, 0x{32 << 20:x}")
    a.label(skip)
    stamp(a, 1)
    tr_init(a)
    for t in reads(0, 0, 0):
        a(t)
    a("s_mov_b32 s51, 0")
    a("s_waitcnt lgkmcnt(15)")
    for i in range(4):
        a(f"s_mov_b32 s52, {i*2*131072}")
        a(f"buffer_store_dwordx4 {aq(XT+4*i)}, v{VXST}, s[8:11], s52 offen sc1")
    a("s_waitcnt lgkmcnt(0)")
    lv, joined = a.uid("k12_v"), a.uid("k12_join")
    a("s_cmp_lg_u32 s57, 0")
    a(f"s_cbranch_scc1 {lv}")

    DX, DW = ENV("QDX", 3), ENV("QDW", 2)
    XS = lambda ks: 128 + ((ks + 4) % 8) * 16
    QF = [0, 32]

    def wdma(stage):
        return (f"s_add_u32 m0, s60, {WRING + (stage % 4)*16384}",
                [f"buffer_load_dwordx4 v{QWD+i}, s[12:15], s61 offen offset:{i*1024} lds" for i in range(4)], "s_add_u32 s61, s61, 0x80000")

    def xloads(ks):
        return (None, [f"buffer_load_dwordx4 {aq(XS(ks) + 4*qb)}, v{QX+qb//2}, s[8:11], s62 offen offset:{(qb%2)*1024} sc1" for qb in range(4)],
                "s_add_u32 s62, s62, 0x20000")

    def kvstore(n):
        return (f"s_add_u32 s52, s47, {(n // 16) * 0x80000 + (((n % 16) * 1024) & ~4095)}",
                [f"buffer_store_dwordx4 v[{PK+n*4}:{PK+3+n*4}], v{V_LANE16}, s[32:35], s52 offen offset:{(n*1024) & 4095}{os.environ.get('STF', ' sc1')}"], None)

    def wreads(stage, sp, buf):
        out = []
        for j in range(8):
            b = QF[buf] + 4 * j
            out.append(f"ds_read_b64_tr_b16 a[{b}:{b+1}], v{QWR+j} offset:{(stage % 4)*16384 + sp*8192}")
            out.append(f"ds_read_b64_tr_b16 a[{b+2}:{b+3}], v{QWR+j} offset:{(stage % 4)*16384 + sp*8192 + 1024}")
        return out

    def qacc(db, qb):
        return ("v", 192 + (db * 2 + qb) * 4) if qb < 2 else ("a", 64 + (db * 2 + qb - 2) * 4)

    for isv in range(2):
        if isv:
            a.label(lv)
        loop, last = a.uid("k12_loop"), a.uid("k12_last")
        a.label(loop)
        for st in range(2):
            ops = spread(reads(st, 1, 1), "M", 0, 50)
            ops.append(when("s_cmp_eq_u32 s51, s46", f"buffer_load_dword v{VPOLL}, v{ZERO}, s[24:27], 0 offen sc1", 4) if st == 0 else
                       when("s_sub_u32 s52, s51, 1\ns_cmp_eq_u32 s52, s46", spin_text(a, 0, 256), 56, lo=50))
            ops.append(Op(tr_wrap("s_waitcnt vmcnt(0) lgkmcnt(0)\ns_barrier"), "S", 63, lo=63, hard=63, after=list(ops)))
            schedule(a, mfmas(0, isv), ops)
            if st == 1:
                a("s_cmp_eq_u32 s51, 7")
                a(f"s_cbranch_scc1 {last}")
            rd = spread(reads(1 - st, 0, 0), "M", 0, 50)
            pre = []
            if st == 0:
                pre = [Op("s_cmp_ge_u32 s49, 1024\ns_cselect_b32 s18, 0, s18\ns_cselect_b32 s22, 0, s22", "S", 0, hard=0)]
            dm, dl = grp_sched([dma_grp(st, g) for g in range(4)], 1, ENV("GD1", 56), after=pre)
            sig = when("s_cmp_eq_u32 s51, s53", one_lane(f"buffer_atomic_add v{ONE}, v{ZERO}, s[24:27], 0 offen sc1"), 58, after=dl)
            ops = rd + pre + dm + [sig]
            cnt_after = [sig]
            if st == 0:
                p_ = when("s_cmp_eq_u32 s51, s63", pf, 60, after=dl)
                ops.append(p_)
                cnt_after.append(p_)
            else:
                p_ = when("s_cmp_eq_u32 s51, 5", cpf, 60, after=dl)
                ops.append(p_)
                cnt_after.append(p_)
            ops.append(Op("s_add_u32 s51, s51, 1", "S", 62, after=cnt_after))
            ops.append(Op("s_waitcnt lgkmcnt(0)", "S", 63, lo=63, hard=63, after=rd))
            schedule(a, mfmas(1, isv), ops)
        a(f"s_branch {loop}")
        a.label(last)
        stamp(a, 2)
        pairs = {pair_n(c, j, isv): (c, j) for c in range(4) for j in range(8)}
        seq = list(range(8))
        for k in range(8):
            seq += [24 + k, 8 + 2 * k, 9 + 2 * k]
        mf, ops = [], []
        done = {}
        tuse = []
        for pos, n in enumerate(seq):
            c, j = pairs[n]
            mf += [mf1(2 * c, j, 1, isv), mf1(2 * c + 1, j, 1, isv)]
            g0 = 2 * pos + 1 + 4
            d = PK + 4 * n
            if n < 24:
                x, y = 64 + 4 * n, 160 + 4 * n
                tx = [f"v_cvt_pk_bf16_f32 v{d}, v{x}, v{x+1}", f"v_cvt_pk_bf16_f32 v{d+1}, v{x+2}, v{x+3}",
                      f"v_cvt_pk_bf16_f32 v{d+2}, v{y}, v{y+1}", f"v_cvt_pk_bf16_f32 v{d+3}, v{y+2}, v{y+3}"]
                o = spread(tx, "A", g0, g0 + 2)
            else:
                x = 128 + 8 * (n - 24)
                tx = [f"v_accvgpr_read_b32 v{PT+r}, a{x+r}" for r in range(8)]
                tx += [f"v_cvt_pk_bf16_f32 v{d+r}, v{PT+2*r}, v{PT+2*r+1}" for r in range(4)]
                o = spread(tx, "A", g0, g0 + 5)
                o[0].after += tuse + [done[n - 24]]
                tuse = [o[-1]]
            done[n] = o[-1]
            ops += o
        ld, ll = grp_sched([wdma(0), xloads(0), xloads(1), wdma(1), xloads(2)], 0, 40)
        ops += ld
        bar = Op("s_waitcnt vmcnt(16)\ns_barrier", "S", 44, lo=44, after=ll)
        rd = spread(wreads(0, 0, 0), "M", 45, 60)
        rd[0].after.append(bar)
        ops += [bar] + rd
        schedule(a, mf, ops)
        if not isv:
            a(f"s_branch {joined}")
    a.label(joined)
    a.label("k12_qcode")
    a(tr_wrap("s_waitcnt vmcnt(12) lgkmcnt(0)"))

    NS = ENV("NS", 20)
    PSIG = ENV('PSIG', NS + 3)
    PPOLL = ENV("PPOLL", 27)
    assert PSIG % 2 == 1 and PPOLL % 2 == 1 and PSIG < PPOLL
    queue = ["W0"] * 4 + ["X0"] * 4 + ["X1"] * 4 + ["W1"] * 4 + ["X2"] * 4

    def younger(tag):
        if tag not in queue:
            return 63
        return len(queue) - 1 - max(i for i, t in enumerate(queue) if t == tag)

    kvsrd = ["s_lshl_b32 s31, s28, 14", "s_add_u32 s16, s6, s31\ns_addc_u32 s17, s7, 0",
             f"s_add_u32 s20, s16, 0x{VF_OFF:x}\ns_addc_u32 s21, s17, 0", f"s_add_u32 s16, s16, 0x{KF_OFF:x}\ns_addc_u32 s17, s17, 0",
             "s_and_b32 s17, s17, 0xffff", "s_and_b32 s21, s21, 0xffff", "s_lshl_b32 s31, s29, 20", "s_sub_u32 s18, 0xf84000, s31",
             "s_mov_b32 s22, s18",
             f"s_add_u32 s24, s6, 0x{KVC_OFF:x}\ns_addc_u32 s25, s7, 0", "s_and_b32 s25, s25, 0xffff", "s_mov_b32 s26, 4096"]

    def kdma():
        return ("s_mov_b32 m0, s34", [f"buffer_load_dwordx4 v{V_LANE16}, s[16:19], s32 offen offset:{i*1024}{LDF} lds" for i in range(4)],
                "s_add_u32 s32, s32, 0x80000\ns_add_u32 s34, s34, 0x4000")

    def vdma():
        return ("s_mov_b32 m0, s35", [f"buffer_load_dwordx4 v{V_LANE16}, s[20:23], s33 offen offset:{i*1024}{LDF} lds" for i in range(4)],
                "s_add_u32 s33, s33, 0x80000\ns_add_u32 s35, s35, 0x4000")

    sn, nx, nw = 0, 3, 2
    S0 = ENV("S0", 0)
    for ks in range(32):
        st, sp = ks // 2, ks % 2
        ops = []
        rd = []
        if ks < 31:
            rd = spread(wreads(st, 1, 1) if sp == 0 else wreads(st + 1, 0, 0), "M", 0, 22)
        ops += rd
        grps, tags = [], []
        while nw < 16 and ((sp == 1 and nw <= st + DW) or (ks == 0 and nw < DW)):
            grps.append(wdma(nw)); tags.append(f"W{nw}"); nw += 1
        for _ in range(2):
            if nx < 32 and nx <= ks + DX:
                grps.append(xloads(nx)); tags.append(f"X{nx}"); nx += 1
        while sn < 32 and ks >= S0 and sn < (ks - S0 + 1) * 32 // (NS - S0):
            grps.append(kvstore(sn)); tags.append("S"); sn += 1
        head = []
        if ks == 0:
            ops += spread(kvsrd, "S", 6, 30)
        if ks == PSIG:
            assert younger("S") >= prevw
            head = [when("s_cmp_eq_u32 s30, 0", one_lane(f"buffer_atomic_add v{ONE}, v{ZERO}, s[24:27], s54 offen sc1"), 0)]
            ops += spread(k2.kv_first(), "S", 8, 20)
        if ks == 24:
            ops.append(Op("v_add_co_u32 v2, vcc, 0x4000, v2\ns_nop 1\nv_addc_co_u32 v3, vcc, 0, v3, vcc\n" + cpf, "B", 29))
        if ks == PPOLL:
            head = [when("s_cmp_eq_u32 s30, 0", f"buffer_load_dword v{VPOLL}, v{ZERO}, s[24:27], s55 offen sc1", 0)]
            qpoll = len(queue)
        if ks == PPOLL + 2:
            grps += [kdma(), kdma()]; tags += ["K0", "K1"]
        if ks == PPOLL + 3:
            grps += [vdma(), kdma()]; tags += ["V0", "K2"]
        if ks == PPOLL + 4:
            grps += [vdma()]; tags += ["V1"]
        ops += head
        if grps:
            g, _ = grp_sched(grps, 1, 28, after=head)
            ops += g
        for gr, tg in zip(grps, tags):
            queue += [tg] * len(gr[1])
        if ks < 31:
            nk = ks + 1
            wv = younger(f"X{nk}")
            if nk % 2:
                wv = min(wv, younger(f"W{nk // 2 + 1}"))
            if nk == PSIG:
                wv = min(wv, younger("S"))
            wv = min(wv, 63)
            prevw = wv
            wtxt = f"s_waitcnt vmcnt({wv}) lgkmcnt(0)"
            if ks == PPOLL + 1:
                ops.append(when("s_cmp_eq_u32 s30, 0", f"s_waitcnt vmcnt({len(queue) - qpoll})\n" + spin_text(a, "s55", 16), 29, lo=28, after=[o for o in ops if o.cls == "V"]))
            if nk % 2:
                wtxt = tr_wrap(wtxt + "\ns_barrier") if nk % 4 == 1 else wtxt + "\ns_barrier"
            ops.append(Op(wtxt, "S", 31, lo=31, hard=31, after=[o for o in ops if o.cls in "MVB"]))
        mf = []
        for db in range(8):
            for qb in range(4):
                k, c = qacc(db, qb)
                r = f"{k}[{c}:{c+3}]"
                mf.append(mfma16(r, aq(QF[sp] + 4 * db), aq(XS(ks) + 4 * qb), "0" if ks == 0 else r))
        schedule(a, mf, ops)
    assert PPOLL + 4 <= 31
    stamp(a, 3)
    a.srd_off(24, 6, CTX_OFF, 16 << 20)
    attention_phase(a, end, 0, qacc, stubs=stubs, next_code=None if ('nocpf' in KO or os.environ.get('WHICH')) else 'k3_kernel')
    a.end_kernel(name, 256, 256)
    a.launch(name, 256, 256, 163840)
```

```python
from common import *
from sched import Op, spread, schedule, resolve_lgkm
import common
import math, struct

QSCALE = struct.unpack("<I", struct.pack("<f", math.log2(math.e) / math.sqrt(128.0)))[0]
THRESH = 0x40004000
REFBITS = 0x41400000

V_LANE16 = 1
V_K = 2
V_V = 3
V_VV = 4
V_NINF = 5
V_T = 6
V_T2 = 7
NEGM = 8
LQ = [12, 48, 248, 252]
ONES = 60
REF = 12.0
CIN = 16
DL = 52
V_C = 57
V_LANEV = 56
Q = 64
S = [128, 160]
P = [192, 208]
TMP = 224
V_PF = 228
ET = 232
A_O = 0
A_K = 128
A_V = 192


LDF = ' sc1'
import os
VT = int(os.environ.get('VT', '4'))
import os
KN = set(os.environ.get("KN", "").split(","))


def vq(b):
    return f"v[{b}:{b+3}]"


def aq(b):
    return f"a[{b}:{b+3}]"


def slot_of(typ, kb, qb):
    if typ == "D":
        return kb * 4 + qb
    return (kb % 2) * 4 + (kb // 2) * 2 + (qb - 2)


def qk_mfmas(typ, par, ko=0):
    out = []
    kbs, qbs = (range(2), range(4)) if typ == "D" else (range(4), range(2, 4))
    for kb in kbs:
        for c in range(4):
            for qb in qbs:
                sl = slot_of(typ, kb, qb)
                d = vq(S[par] + 4 * sl)
                cc = vq(CIN + 4 * sl) if c == 0 else d
                out.append(mfma16(d, aq(A_K + ko + (kb * 4 + c) * 4), vq(Q + (qb * 4 + c) * 4), cc))
    return out


def pv_mfmas(typ, par):
    out = []
    if typ == "D":
        for qb in range(4):
            out.append(mfma16(vq(LQ[qb]), vq(ONES), vq(P[par] + 4 * qb), vq(LQ[qb])))
        for db in range(8):
            for qb in range(4):
                o = aq(A_O + (db * 4 + qb) * 4)
                out.append(mfma16(o, aq(A_V + db * 4), vq(P[par] + 4 * qb), o))
    else:
        for j in range(4):
            out.append(mfma16(vq(LQ[2 + j % 2]), vq(ONES), vq(P[par] + 4 * j), vq(LQ[2 + j % 2])))
        for ks in range(2):
            for db in range(8):
                for qb in range(2, 4):
                    o = aq(A_O + (db * 4 + qb) * 4)
                    out.append(mfma16(o, aq(A_V + (ks * 8 + db) * 4), vq(P[par] + 4 * (ks * 2 + qb - 2)), o))
    return out


def k_reads(typ):
    n = 8 if typ == "D" else 16
    out = [f"ds_read_b128 {aq(A_K + 4*i)}, v{V_K} offset:{i*1024}" for i in range(n)]
    out.append(f"v_add_u32 v{V_K}, {n*1024}, v{V_K}\nv_and_b32 v{V_K}, 0xffff, v{V_K}")
    return out


def v_reads(typ):
    n = 8 if typ == "D" else 16
    out = [f"ds_read_b128 {aq(A_V + 4*i)}, v{V_V} offset:{i*1024}" for i in range(n)]
    out.append(f"v_add_u32 v{V_V}, {n*1024}, v{V_V}\nv_and_b32 v{V_V}, 0xffff, v{V_V}\nv_or_b32 v{V_V}, 0x10000, v{V_V}")
    return out


def sm_stream(par):
    ops = []
    for j in range(4):
        for half in range(2):
            sl = j + 4 * half
            for r in range(4):
                ops.append(f"v_exp_f32 v{ET+r}, v{S[par] + 4*sl + r}")
            ops.append("s_nop 0")
            for pr in range(2):
                ops.append(f"v_cvt_pk_bf16_f32 v{P[par] + 4*j + 2*half + pr}, v{ET+2*pr}, v{ET+2*pr+1}")
    return ops


def dma_group(mall=None):
    out = []
    if "nodma" in KN: return []
    for i in range(4):
        t = ""
        if i == 0:
            t = "s_mov_b32 m0, s34\ns_nop 0\n"
        out.append(t + f"buffer_load_dwordx4 v{V_LANE16}, s[16:19], s32 offen offset:{i*1024}{LDF} lds")
    for i in range(4):
        t = ""
        if i == 0:
            t = "s_mov_b32 m0, s35\ns_nop 0\n"
        out.append(t + f"buffer_load_dwordx4 v{V_LANE16}, s[20:23], s33 offen offset:{i*1024}{LDF} lds")
    if mall:
        l = mall.uid("k2_mpf")
        out.append(f"s_add_u32 s61, s61, 1\ns_and_b32 s31, s61, 3\ns_cbranch_scc1 {l}\n"
                   f"buffer_load_dword v{V_T2}, v{V_PF}, s[12:15], s62 offen\ns_add_u32 s62, s62, 0x2000\n{l}:")
    out.append("s_add_u32 s32, s32, 0x80000\ns_add_u32 s33, s33, 0x80000\n"
               "s_add_u32 s34, s34, 0x4000\ns_and_b32 s34, s34, 0xffff\n"
               "s_add_u32 s35, s35, 0x4000\ns_and_b32 s35, s35, 0xffff\ns_or_b32 s35, s35, 0x10000")
    return out


def cin_prep(a, typ):
    a(f"s_sub_u32 s40, s36, s{38 if typ == 'D' else 39}")
    a(f"v_subrev_u32 v{V_T}, s40, v{V_VV}")
    kbs, qbs = (range(2), range(2)) if typ == "D" else (range(4), range(2, 4))
    diffs = sorted({kb - (qb % 2) for kb in kbs for qb in qbs})
    for di, df in enumerate(diffs):
        base = 44 + (di % 2) * 10
        for r in range(4):
            a(f"v_cmp_gt_i32 s[{base+2*r}:{base+2*r+1}], {16*df + r}, v{V_T}")
        first = True
        for kb in kbs:
            for qb in qbs:
                if kb - (qb % 2) != df:
                    continue
                if first:
                    a("s_nop 1")
                    first = False
                for r in range(4):
                    a(f"v_cndmask_b32 v{CIN + 4*slot_of(typ, kb, qb) + r}, v{NEGM+qb}, v{V_NINF}, s[{base+2*r}:{base+2*r+1}]")
    a("s_nop 1")


def row_max(a, typ, par, clamp0):
    qbs = list(range(4) if typ == "D" else range(2, 4))
    for qb in qbs:
        sls = [slot_of(typ, kb, qb) for kb in (range(2) if typ == "D" else range(4))]
        rs = [S[par] + 4 * sl + r for sl in sls for r in range(4)]
        d = DL + qb
        a(f"v_max_f32 v{d}, v{rs[0]}, v{rs[1]}")
        for i in range(2, len(rs), 2):
            a(f"v_max3_f32 v{d}, v{d}, v{rs[i]}, v{rs[i+1]}")
    for sw in ("v_permlane16_swap_b32", "v_permlane32_swap_b32"):
        for qb in qbs:
            a(f"v_mov_b32 v{TMP+qb}, v{DL+qb}")
        a("s_nop 1")
        for qb in qbs:
            a(f"{sw} v{DL+qb}, v{TMP+qb}")
        a("s_nop 1")
        for qb in qbs:
            a(f"v_max_f32 v{DL+qb}, v{DL+qb}, v{TMP+qb}")
    for qb in qbs:
        a(f"v_add_f32 v{DL+qb}, 0x{REFBITS:x}, v{DL+qb}")
        if clamp0:
            a(f"v_max_f32 v{DL+qb}, 0, v{DL+qb}")


def qb_of_slot(typ, sl):
    return sl % 4 if typ == "D" else 2 + (sl % 2)


def rare_path(a, sm_typ, qk_typ, par, ret):
    a("s_nop 7")
    row_max(a, sm_typ, par, True)
    qbs = range(4) if sm_typ == "D" else range(2, 4)
    for sl in range(8):
        for r in range(4):
            x = S[par] + 4 * sl + r
            a(f"v_sub_f32 v{x}, v{x}, v{DL + qb_of_slot(sm_typ, sl)}")
    if qk_typ is not None:
        for sl in range(8):
            for r in range(4):
                x = S[1 - par] + 4 * sl + r
                a(f"v_sub_f32 v{x}, v{x}, v{DL + qb_of_slot(qk_typ, sl)}")
                x = CIN + 4 * sl + r
                a(f"v_sub_f32 v{x}, v{x}, v{DL + qb_of_slot(qk_typ, sl)}")
    for qb in qbs:
        a(f"v_sub_f32 v{NEGM+qb}, v{NEGM+qb}, v{DL+qb}")
        a(f"v_exp_f32 v{DL+qb}, -v{DL+qb}")
    a("s_nop 0")
    for qb in qbs:
        a(f"v_mul_f32 v{LQ[qb]}, v{LQ[qb]}, v{DL+qb}")
    for db in range(8):
        for qb in qbs:
            o = A_O + (db * 4 + qb) * 4
            for r in range(4):
                a(f"v_accvgpr_read_b32 v{TMP+r}, a{o+r}")
            for r in range(4):
                a(f"v_mul_f32 v{TMP+r}, v{TMP+r}, v{DL+qb}")
            for r in range(4):
                a(f"v_accvgpr_write_b32 a{o+r}, v{TMP+r}")
    for t in sm_stream(par):
        a(t)
    a("s_nop 1")
    a(f"s_branch {ret}")


def sm_ops(par, lo, hi, sub=False):
    ops, cvts = [], []
    users = {}
    n = 0
    chk = None
    for j in range(4):
        for half in range(2):
            sl = j + 4 * half
            for pr in range(2):
                t = ET + (n % 8) * 2
                w = lo + (hi - lo) * n / 16.0
                step = (hi - lo) / 16.0
                s0 = S[par] + 4 * sl + 2 * pr
                war = users.get(t, [])
                sb = []
                if sub:
                    sb = [Op(f"v_sub_f32 v{s0+k}, v{s0+k}, v{DL+j}", "A", w - step) for k in range(2)]
                    ops += sb
                e0 = Op(f"v_exp_f32 v{t}, v{s0}", "E", w, after=war + sb)
                e1 = Op(f"v_exp_f32 v{t+1}, v{s0+1}", "E", w + step / 2, after=war + sb)
                cv = Op(f"v_cvt_pk_bf16_f32 v{P[par] + n}, v{t}, v{t+1}", "A", w + step * 1.1, after=[e0, e1])
                assert n == 4 * j + 2 * half + pr
                users[t] = [cv]
                ops += [e0, e1, cv]
                cvts.append(cv)
                p = P[par]
                if n == 2:
                    chk = Op(f"v_or3_b32 v{V_C}, v{p}, v{p+1}, v{p+2}", "A", w + step * 1.6, after=cvts[-3:])
                elif n > 2 and n % 2 == 0:
                    chk = Op(f"v_or3_b32 v{V_C}, v{V_C}, v{p+n-1}, v{p+n}", "A", w + step * 1.6, after=cvts[-2:] + [chk])
                elif n == 15:
                    chk = Op(f"v_bitop3_b32 v{V_C}, v{V_C}, v{p+n}, s37 bitop3:0xa8", "A", w + step * 1.4, after=[cv, chk])
                else:
                    n += 1
                    continue
                ops.append(chk)
                n += 1
    return ops, chk, cvts


def nfr(typ):
    return 8 if typ == "D" else 16


def rd_text(which, i):
    base, va = (A_K, V_K) if which == "K" else (A_V, V_V)
    return f"ds_read_b128 {aq(base + 4*i)}, v{va} offset:{i*1024}"


def ptr_ops(typ, which, lo, want, after):
    va, sp, lane = (V_K, 52, V_LANE16) if which == "K" else (V_V, 53, V_LANEV)
    s1 = Op(f"s_add_u32 s{sp}, s{sp}, {nfr(typ)*1024}", "S", lo + 1, lo=lo)
    s2 = Op(f"s_and_b32 s{sp}, s{sp}, 0xffff", "S", lo + 3, lo=lo, after=[s1])
    up = Op(f"v_add_u32 v{va}, s{sp}, v{lane}", "A", want, after=list(after) + [s2])
    return [s1, s2, up]


def dma_ops(h, lo, hi, after, pf=False):
    srd, so, lp = (("s[16:19]", 32, 34), ("s[20:23]", 33, 35))[h]
    step = (hi - lo - 1) / (5.0 if pf else 4.0)
    m = Op(f"s_mov_b32 m0, s{lp}", "S", lo, lo=lo, after=after)
    ops = [m]
    last = None
    for i in range(4):
        v = Op(f"buffer_load_dwordx4 v{V_LANE16}, {srd}, s{so} offen offset:{i*1024}{LDF} lds", "V", lo + 1 + step * i, lo=lo,
               after=[last] if last else [], prev_gap=[m], hard=hi - 1)
        ops.append(v)
        last = v
    b = [Op(f"s_add_u32 s{so}, s{so}, 0x80000", "S", lo + 2 + step * 3, after=[last])]
    b.append(Op(f"s_add_u32 s{lp}, s{lp}, 0x4000", "S", lo + step, after=[m]))
    b.append(Op(f"s_and_b32 s{lp}, s{lp}, 0xffff", "S", lo + step * 2, after=[b[-1]]))
    if h:
        b.append(Op(f"s_or_b32 s{lp}, s{lp}, 0x10000", "S", lo + step * 2.5, after=[b[-1]]))
    if pf and "nomall" not in KN:
        p = Op(f"buffer_load_dword v{V_T2}, v{V_PF}, s[12:15], s62 offen", "V", lo + 1 + step * 4, after=[last], hard=hi - 1)
        b += [p, Op("s_add_u32 s62, s62, 0x1000", "S", lo + 2 + step * 4, after=[p])]
    return ops + b, last


def body(a, outl, u_par, qk, sm, pv, vread, sync, prep, dk=None, dv=None, tail=(), first=False):
    par = u_par
    mf = (pv_mfmas(pv, 1 - par) if pv else []) + (qk_mfmas(qk, 1 - par, 32 if first else 0) if qk else [])
    n1 = 36 if pv else 0
    n = len(mf)
    ops, pre = [], []
    carried = []
    lupd = None
    chain = []
    vup = None

    def add_reads(which, idxs, lo, hi, extra=(), los=None):
        out = []
        for k, i in enumerate(idxs):
            o = Op(rd_text(which, i), "M", lo + (hi - lo) * k / len(idxs), lo=(los[k] if los else lo) , after=(chain[-1:] + list(extra)))
            chain.append(o)
            out.append(o)
        return out

    def waits(which, typ, g0, rds):
        m = nfr(typ)
        base = A_K if which == "K" else A_V
        for i in range(0, m, 2):
            g = g0 + i * (32 // m) - 1
            need = [rds[j] for j in (i, i + 1) if rds.get(j) is not None]
            t = f"@LGKM {base + 4*(i+1)}"
            if g < 0:
                pre.append(t)
            else:
                for r in need:
                    r.hard = max(0, g - 4) if r.hard is None else r.hard
                ops.append(Op(t, "S", g, lo=g, hard=g, after=need))

    bar = None
    dlast = []
    if dv:
        o, l = dma_ops(1, dv[0], dv[1], [], pf=(pv == "D" and qk == "D"))
        ops += o
        dlast.append(l)
    if sync == "mid":
        bar = Op("s_waitcnt vmcnt(12)\ns_barrier", "S", n1, lo=n1, hard=n1, after=dlast)
    elif sync == "end":
        bar = Op("s_waitcnt vmcnt(8)\ns_barrier", "S", n - 1, lo=n - 1, hard=n - 1, after=dlast)
    elif sync == "epi":
        bar = Op("s_waitcnt vmcnt(0)\ns_barrier", "S", 0, lo=0, hard=0)
    if bar:
        ops.append(bar)
    if dk:
        o, l = dma_ops(0, dk[0], dk[1], [bar] if sync == "mid" else [])
        ops += o
    if pv:
        m = nfr(pv)
        if sm or qk:
            mt = m * VT // 8
            carried = [A_V + 4 * i for i in range(mt)]
            r = add_reads("V", range(mt, m), 0, 32 - 4 * VT)
            ops += r
            po = ptr_ops(pv, "V", 2, 36 - 4 * VT, r[-1:])
            vup = po[-1]
            ops += po
            waits("V", pv, 4, dict(zip(range(mt, m), r)))
        else:
            carried = [A_V + 4 * i for i in range(m)]
            waits("V", pv, 4, {})
    if qk:
        m = nfr(qk)
        if pv:
            r = add_reads("K", range(m), 33 - 4 * VT, 66 - 4 * VT)
            ops += r + ptr_ops(qk, "K", 44, 70 - 4 * VT, r[-1:])
            waits("K", qk, n1, dict(zip(range(m), r)))
        elif not first:
            pre.append("s_waitcnt lgkmcnt(0)")
        if prep:
            pl, pr = a.uid("k2_prep"), a.uid("k2_prepret")
            if prep == "cond":
                t = f"s_cmp_ge_u32 s36, s{42 if qk == 'D' else 43}\ns_cbranch_scc1 {pl}\n{pr}:"
            else:
                t = f"s_branch {pl}\n{pr}:"
            outl.append(("prep", pl, qk, pr))
            if pv:
                ops.append(Op(t, "B", 24, lo=4, hard=n1 - 3))
            else:
                pre.append(t)
        ops.append(Op(f"s_add_u32 s36, s36, {32 if qk == 'D' else 64}", "S", n1 + 4, lo=n1))
    if vread:
        m = nfr(vread)
        ex = ([vup] if vup else []) + ([bar] if sync in ("mid", "epi") else [])
        if qk:
            ops += add_reads("V", range(m * VT // 8), n - 1 - 4 * VT, n - 2, ex)
        else:
            ops += add_reads("V", range(m), 18, n + 4, ex, los=[2 * i + 6 for i in range(m)])
    if sm:
        so, chk, cvts = sm_ops(par, 1 if first else 0, n - 4, sub=first)
        ops += so
        rl, ret = a.uid("k2_rare"), a.uid("k2_ret")
        c3 = Op(f"v_cmp_ne_u32 vcc, 0, v{V_C}", "A", n - 2, after=[chk])
        c4 = Op(f"s_cbranch_vccnz {rl}\n{ret}:", "B", n + 99, lo=n, after=[c3] + cvts)
        ops += [c3, c4]
        outl.append(("rare", rl, sm, qk, par, ret))
    for t in tail:
        ops.append(Op(t, "S", n - 8))
    start = len(a.lines)
    for t in pre:
        a(t)
    schedule(a, mf, ops)
    resolve_lgkm(a.lines, start, carried)
    for i in range(start, len(a.lines)):
        t = a.lines[i]
        if "nods" in KN and "ds_read" in t: a.lines[i] = f"    v_mov_b32 v{V_T2}, v{V_T2}"
        if "nodma" in KN and " lds" in t: a.lines[i] = f"    v_mov_b32 v{V_T2}, v{V_T2}"
        if "nobar" in KN and "s_barrier" in t: a.lines[i] = "    s_nop 0"
        if "nolgkm" in KN and "lgkmcnt" in t: a.lines[i] = "    s_nop 0"
        if KN & {"nods", "nodma", "nobar", "nolgkm"} and "s_cbranch_vccnz" in t: a.lines[i] = "    s_nop 0"


def kv_first():
    out = ["s_mov_b32 s32, s60", "s_mov_b32 s34, s60", "s_mov_b32 s33, s60", "s_add_u32 s35, s60, 0x10000"]
    return out


def out_ops(qb, c, t, pk):
    tx = []
    for hh in range(2):
        o = A_O + ((2 * c + hh) * 4 + qb) * 4
        tx += [f"v_accvgpr_read_b32 v{t+4+hh*4+r}, a{o+r}" for r in range(4)]
    if pk:
        tx += [f"v_pk_mul_f32 v[{t+4+r}:{t+5+r}], v[{t+4+r}:{t+5+r}], v[{LQ[qb]}:{LQ[qb]+1}]" for r in range(0, 8, 2)]
    else:
        tx += [f"v_mul_f32 v{t+4+r}, v{t+4+r}, v{LQ[qb]}" for r in range(8)]
    tx += [f"v_cvt_pk_bf16_f32 v{t+r}, v{t+4+2*r}, v{t+5+2*r}" for r in range(4)]
    st = f"buffer_store_dwordx4 v[{t}:{t+3}], v{V_LANE16}, s[24:27], s{44+c} offen offset:{(qb%2)*1024} sc1"
    return tx, st


def l_final(qbs):
    tx = []
    for sw in ("v_permlane16_swap_b32", "v_permlane32_swap_b32"):
        tx += [f"v_mov_b32 v{LQ[q]+1}, v{LQ[q]}" for q in qbs] + ["s_nop 1"]
        tx += [f"{sw} v{LQ[q]}, v{LQ[q]+1}" for q in qbs] + ["s_nop 1"]
        tx += [f"v_add_f32 v{LQ[q]}, v{LQ[q]}, v{LQ[q]+1}" for q in qbs]
    tx += [f"v_rcp_f32 v{LQ[q]+1}, v{LQ[q]}" for q in qbs] + [f"v_rcp_f32 v{LQ[q]}, v{LQ[q]}" for q in qbs] + ["s_nop 0"]
    return tx


def ctx_base(srow):
    return ["s_lshl_b32 s31, s28, 19", f"s_lshl_b32 s44, s{srow}, 6", "s_add_u32 s44, s44, s31"] + \
           [f"s_add_u32 s{44+c}, s44, {c*0x20000}" for c in range(1, 4)]


def attention_phase(a, end, kidx, qsrc, stubs=(), next_code=None):
    a(f"s_load_dwordx2 s[44:45], s[0:1], {ARG['wo']}")
    a(f"s_load_dwordx2 s[46:47], s[0:1], {ARG['wg']}")
    a(f"s_load_dwordx4 s[48:51], s[0:1], {ARG['wu']}")
    a(f"s_mov_b32 s40, 0x{QSCALE:x}")
    a(f"s_mov_b32 s41, 0x{QSCALE:x}")
    for t in dma_group():
        a(t)
    a(f"v_mov_b32 v{V_K}, v{V_LANE16}")
    a(f"v_or_b32 v{V_V}, 0x10000, v{V_LANE16}")
    a(f"v_mov_b32 v{V_LANEV}, v{V_V}")
    a("s_mov_b32 s52, 0x4000")
    a("s_mov_b32 s53, 0")
    a("s_mul_i32 s62, s28, 63")
    a("s_mul_i32 s31, s29, s29")
    a("s_add_u32 s62, s62, s31")
    a("s_sub_u32 s62, s62, 1")
    a("s_lshl_b32 s62, s62, 12")
    a("s_cmp_eq_u32 s30, 0")
    a("s_cselect_b32 s14, 0x800000, 0x0")
    a("s_max_u32 s14, s14, 0x700000")
    a("s_cmp_eq_u32 s29, 0")
    a("s_cselect_b32 s14, 0, s14")
    a("s_cselect_b32 s62, 0, s62")
    a("s_waitcnt vmcnt(16) lgkmcnt(0)")
    a("s_barrier")
    for i in range(16):
        a(rd_text("K", i))
    a("s_cmp_eq_u32 s30, 1")
    a("s_cselect_b64 s[12:13], s[46:47], s[44:45]")
    a("s_cmp_eq_u32 s30, 2")
    a("s_cselect_b64 s[12:13], s[48:49], s[12:13]")
    a("s_cmp_eq_u32 s30, 3")
    a("s_cselect_b64 s[12:13], s[50:51], s[12:13]")
    a("s_and_b32 s13, s13, 0xffff")
    for qb in (2, 3, 0, 1):
        for c in range(4):
            for hh in range(2):
                kind, x = qsrc(2 * c + hh, qb)
                if kind == "a":
                    y = 128 + (c % 2) * 8 + hh * 4
                    for r in range(4):
                        a(f"v_accvgpr_read_b32 v{y+r}, a{x+r}")
                    x = y
                a(f"v_pk_mul_f32 v[{x}:{x+1}], v[{x}:{x+1}], s[40:41]")
                a(f"v_pk_mul_f32 v[{x+2}:{x+3}], v[{x+2}:{x+3}], s[40:41]")
                d = Q + (qb * 4 + c) * 4 + 2 * hh
                a(f"v_cvt_pk_bf16_f32 v{d}, v{x}, v{x+1}")
                a(f"v_cvt_pk_bf16_f32 v{d+1}, v{x+2}, v{x+3}")
    a(f"v_add_u32 v{V_K}, 0x4000, v{V_LANE16}")
    for i in range(4):
        a(f"v_mov_b32 v{NEGM+i}, 0")
        a(f"v_mov_b32 v{ET+i}, 0")
    a("s_mov_b32 s36, 0")
    a(f"s_mov_b32 s37, 0x{THRESH:x}")
    zero_acc(a, CIN, 32, ET, "v", init=False)
    a(f"v_and_b32 v{V_T}, 0xf0, v{V_LANE16}")
    a(f"v_cmp_eq_u32 vcc, 0, v{V_T}")
    a(f"v_mov_b32 v{V_T}, 0x3f803f80")
    a(f"v_lshlrev_b32 v{V_PF}, 2, v{V_LANE16}")
    for r in range(4):
        a(f"v_cndmask_b32 v{ONES+r}, 0, v{V_T}, vcc")
    for i in range(4):
        for r in range(4):
            a(f"v_mov_b32 v{LQ[i]+r}, 0")
    stamp(a, 4)
    outl = []
    body(a, outl, 1, "D", None, None, None, None, "cond")
    zero_acc(a, 0, 128, ET, init=False)
    row_max(a, "D", 0, False)
    for sl in range(8):
        for r in range(4):
            a(f"v_sub_f32 v{CIN+4*sl+r}, 0, v{DL + sl % 4}")
    for qb in range(4):
        a(f"v_sub_f32 v{NEGM+qb}, 0, v{DL+qb}")
    body(a, outl, 0, "D", "D", None, "D", "end", "cond", first=True)
    a("s_lshl_b32 s63, s29, 1")
    a("s_add_u32 s63, s63, 1")
    loop = a.uid("k2_dloop")
    a.label(loop)
    body(a, outl, 1, "D", "D", "D", "D", None, "cond", dk=(2, 64))
    body(a, outl, 0, "D", "D", "D", "D", "end", "cond", dv=(2, 64), tail=["s_sub_u32 s63, s63, 1"])
    a("s_cmp_lg_u32 s63, 0")
    a(f"s_cbranch_scc1 {loop}")
    stamp(a, 5)
    body(a, outl, 1, "S", "D", "D", "D", None, "always", dk=(2, 64))
    body(a, outl, 0, "S", "S", "D", "S", "mid", "cond", dv=(1, 35), dk=(37, 67))
    for t in ctx_base(38) + l_final([0, 1]):
        a(t)
    n = 0
    for qb in range(2):
        for c in range(4):
            tx, st = out_ops(qb, c, Q + (n % 2) * 12, True)
            n += 1
            for t in tx + [st]:
                a(t)
    a("s_lshl_b32 s63, s29, 1")
    a("s_sub_u32 s63, 14, s63")
    loop, done = a.uid("k2_sloop"), a.uid("k2_sdone")
    a("s_cmp_eq_u32 s63, 0")
    a(f"s_cbranch_scc1 {done}")
    a.label(loop)
    body(a, outl, 1, "S", "S", "S", "S", "mid", "cond", dv=(1, 35), dk=(37, 67))
    body(a, outl, 0, "S", "S", "S", "S", "mid", "cond", dv=(1, 35), dk=(37, 67), tail=["s_sub_u32 s63, s63, 1"])
    a("s_cmp_lg_u32 s63, 0")
    a(f"s_cbranch_scc1 {loop}")
    a.label(done)
    body(a, outl, 1, None, "S", "S", "S", "epi", None)
    if next_code:
        a(f"v_lshrrev_b32 v{V_T}, 4, v{V_LANE16}")
        a(f"v_and_b32 v{V_T}, 31, v{V_T}")
        code_addr(a, next_code, TMP, V_T, 40)
        a(f"global_load_dword v{V_T2}, v[{TMP}:{TMP+1}], off")
    mf = pv_mfmas("S", 1)
    mf = mf[:4] + [mf[4 + ks * 16 + db * 2 + q] for db in range(8) for ks in range(2) for q in range(2)]
    ops = spread(ctx_base(39), "S", 0, 8)
    lf = spread(l_final([2, 3]), "A", 8, 14)
    ops += lf
    ops.append(Op("s_waitcnt lgkmcnt(0)", "S", 3, lo=3, hard=3))
    prev = {}
    n = 0
    for c in range(4):
        for qb in (2, 3):
            t = 128 + (n % 4) * 12
            g0 = 4 + 8 * c + 7 + 4
            tx, st = out_ops(qb, c, t, False)
            o = spread(tx, "A", g0, g0 + 8)
            o[0].after += [lf[-1]] + prev.get(t, [])
            so = Op(st, "V", g0 + 8, after=[o[-1], ops[5]])
            prev[t] = [so]
            ops += o + [so]
            n += 1
    stamp(a, 6)
    schedule(a, mf, ops)
    tr_dump(a, 6, 30, V_LANE16)
    stamp_dump(a, kidx, 7, 6)
    a.label(end)
    a("s_endpgm")
    for o in outl:
        if o[0] == "prep":
            a.label(o[1])
            cin_prep(a, o[2])
            a(f"s_branch {o[3]}")
    for (sl, txt, ret) in stubs:
        a.label(sl)
        a(txt)
        a(f"s_branch {ret}")
    for o in outl:
        if o[0] == "rare":
            a.label(o[1])
            rare_path(a, *o[2:])
```

```python
from common import *
import common, os

NSL = 224


def top2_merge(a, m1, m2, t1, t2):
    a(f"v_max_f32 v{t2}, v{t2}, v{m2}")
    a(f"v_med3_f32 v{m2}, v{m1}, v{t1}, v{t2}")
    a(f"v_max_f32 v{m1}, v{m1}, v{t1}")


def gen_k4(a, name="k4_kernel"):
    a.begin_kernel(name)
    end = a.uid("k4_end")
    lb, lln, lmm, lbout = a.uid("k4_b"), a.uid("k4_ln"), a.uid("k4_mm"), a.uid("k4_bout")
    a("s_cmp_ge_u32 s2, 256")
    a(f"s_cbranch_scc1 {end}")
    stamp(a, 0)
    a(f"s_load_dwordx8 s[4:11], s[0:1], {ARG['wr']}")
    a(f"s_load_dwordx2 s[12:13], s[0:1], {ARG['out']}")
    a(f"s_load_dwordx2 s[14:15], s[0:1], {ARG['ws']}")
    a("v_lshrrev_b32 v1, 6, v0")
    a("v_and_b32 v2, 63, v0")
    a("v_readfirstlane_b32 s44, v1")
    a("s_and_b32 s45, s2, 7")
    a("s_lshr_b32 s46, s2, 3")
    a("s_mul_i32 s45, s45, 28")
    a("s_add_u32 s45, s45, s46")
    a("v_and_b32 v4, 31, v2")
    a("v_lshrrev_b32 v5, 5, v2")
    a("v_lshlrev_b32 v7, 4, v4")
    MISC = 65536 + 4096
    a(f"v_mov_b32 v11, {MISC}")
    a("v_lshl_add_u32 v12, v2, 2, v11")
    a("v_mov_b32 v13, 0")
    a("ds_write_b32 v12, v13")
    VX, T2, KP, ST, WD = 40, 160, 200, 16, 88
    a("s_waitcnt lgkmcnt(0)")
    a("s_barrier")
    a.srd_off(20, 14, H_OFF, 4 << 20)
    a("s_cmp_ge_u32 s44, 4")
    a(f"s_cbranch_scc1 {lb}")
    a("s_setprio 3")
    a.srd_off(16, 14, STATS_OFF, WRSUM_OFF - STATS_OFF + 4)
    a("v_lshlrev_b32 v3, 5, v0")
    for j in range(3):
        a(f"s_mov_b32 s48, {j*8192}")
        a(f"buffer_load_dwordx4 v[{ST+8*j}:{ST+8*j+3}], v3, s[16:19], s48 offen")
        a(f"buffer_load_dwordx4 v[{ST+8*j+4}:{ST+8*j+7}], v3, s[16:19], s48 offen offset:16")
    a(f"s_mov_b32 s48, {WRSUM_OFF - STATS_OFF}")
    a("buffer_load_dword v10, v13, s[16:19], s48 offen")
    a.srd(32, 10, 7340032)
    a("s_cmp_ge_u32 s2, 224")
    a("s_cselect_b32 s34, 0, s34")
    a("s_mov_b32 s52, 0x3a800000")
    a("s_mov_b32 s53, 0x3a800000")
    a("s_mov_b32 s54, 0x7ff")
    a("v_mov_b32 v14, 0x3727c5ac")
    a("v_mov_b32 v15, v14")
    a("v_mov_b32 v8, 0xff800000")
    a("v_mov_b32 v9, v8")
    P = lambda r: f"v[{r}:{r+1}]"
    a("s_waitcnt vmcnt(0)")
    a("v_sub_f32 v10, 0, v10")
    a("v_mov_b32 v11, v10")
    for i in range(0, 8, 2):
        s1, s2, s3 = ST + i, ST + 8 + i, ST + 16 + i
        a(f"v_pk_mul_f32 {P(s1)}, {P(s1)}, s[52:53]")
        a(f"v_pk_fma_f32 {P(s2)}, {P(s2)}, s[52:53], {P(14)}")
        a(f"v_pk_fma_f32 {P(s3)}, {P(s1)}, {P(10)}, {P(s3)}")
        a(f"v_pk_fma_f32 {P(s2)}, {P(s1)}, {P(s1)}, {P(s2)} neg_lo:[1,0,0] neg_hi:[1,0,0]")
    for i in range(8):
        a(f"v_max_f32 v{ST+8+i}, v14, v{ST+8+i}")
    for i in range(8):
        a(f"v_rsq_f32 v{ST+8+i}, v{ST+8+i}")
    for i in range(0, 8, 2):
        a(f"v_pk_mul_f32 {P(ST+16+i)}, {P(ST+16+i)}, {P(ST+8+i)}")
    for i in range(8):
        a(f"v_bfi_b32 v{ST+16+i}, s54, {i}, v{ST+16+i}")
        a(f"v_med3_f32 v9, v8, v9, v{ST+16+i}")
        a(f"v_max_f32 v8, v8, v{ST+16+i}")
    a("v_lshl_or_b32 v8, v0, 3, v8")
    a("v_lshl_or_b32 v9, v0, 3, v9")
    for dpp in ("quad_perm:[1,0,3,2]", "quad_perm:[2,3,0,1]", "row_half_mirror", "row_mirror"):
        a("s_nop 1")
        a(f"v_mov_b32_dpp v10, v8 {dpp} row_mask:0xf bank_mask:0xf")
        a(f"v_mov_b32_dpp v11, v9 {dpp} row_mask:0xf bank_mask:0xf")
        top2_merge(a, 8, 9, 10, 11)
    for sw in ("v_permlane16_swap_b32", "v_permlane32_swap_b32"):
        a("v_mov_b32 v10, v8")
        a("v_mov_b32 v11, v9")
        a("s_nop 1")
        a(f"{sw} v8, v10")
        a(f"{sw} v9, v11")
        a("s_nop 1")
        top2_merge(a, 8, 9, 10, 11)
    a("v_mov_b32 v10, 1")
    a("v_mov_b32 v11, 1")
    a("v_lshlrev_b32 v12, 4, v1")
    a(f"v_add_u32 v12, {MISC}, v12")
    a("ds_write_b128 v12, v[8:11]")
    a(f"v_mov_b32 v12, {MISC}")
    sp = a.uid("k4_mail")
    a.label(sp)
    for w in range(4):
        a(f"ds_read_b128 v[{ST+4*w}:{ST+4*w+3}], v12 offset:{16*w}")
    a("s_waitcnt lgkmcnt(0)")
    a(f"v_and_b32 v10, v{ST+2}, v{ST+6}")
    a(f"v_and_b32 v11, v{ST+10}, v{ST+14}")
    a("v_and_b32 v10, v10, v11")
    a("v_cmp_eq_u32 vcc, 0, v10")
    a(f"s_cbranch_vccnz {sp}")
    top2_merge(a, ST, ST + 1, ST + 4, ST + 5)
    top2_merge(a, ST + 8, ST + 9, ST + 12, ST + 13)
    top2_merge(a, ST, ST + 1, ST + 8, ST + 9)
    a("v_cmp_eq_u32 vcc, 0, v5")
    a("s_lshl_b32 s52, s45, 15")
    a("v_lshlrev_b32 v9, 3, v0")
    a(f"v_cndmask_b32 v11, v{ST+1}, v{ST}, vcc")
    a("v_and_b32 v15, 0x7ff, v11")
    a("v_lshl_add_u32 v11, v15, 11, v7")
    for i in range(4):
        a(f"buffer_load_dwordx4 v[{VX+4*i}:{VX+4*i+3}], v11, s[20:23], 0 offen offset:{i*512}")
    stamp(a, 1)
    for i in range(16):
        a(f"buffer_load_dwordx2 v[{WD+2*i}:{WD+2*i+1}], v9, s[32:35], s52 offen offset:{(i%2)*2048}")
        if i % 2:
            a("s_add_u32 s52, s52, 4096")
    a("s_waitcnt vmcnt(16)")
    a.label(lln)
    ln_rows_half_wave(a, VX, T2, keep=KP)
    a("s_cmp_ge_u32 s44, 4")
    a(f"s_cbranch_scc1 {lbout}")
    stamp(a, 2)
    a("v_lshl_add_u32 v11, v5, 11, v7")
    a("v_add_u32 v12, 65536, v11")
    for i in range(4):
        a(f"ds_write_b128 v12, v[{VX+4*i}:{VX+4*i+3}] offset:{i*512}")
    a("v_lshlrev_b32 v12, 2, v5")
    a(f"v_add_u32 v12, {MISC + 128}, v12")
    a("ds_write_b32 v12, v15")
    a("s_mov_b32 s54, 0x05040100")
    a("s_mov_b32 s55, 0x07060302")
    a("s_waitcnt vmcnt(0)")
    WP = 56
    for j in range(8):
        r0, r1 = WD + 4 * j, WD + 4 * j + 2
        for h in range(2):
            a(f"v_perm_b32 v{WP+4*j+2*h}, v{r1+h}, v{r0+h}, s54")
            a(f"v_perm_b32 v{WP+4*j+2*h+1}, v{r1+h}, v{r0+h}, s55")
    a.srd_off(56, 14, PART_OFF, NSL * 8192)
    a.srd_off(60, 14, PCT_OFF, 8192)
    a("s_waitcnt lgkmcnt(0)")
    a.label(lmm)
    a("s_barrier")
    stamp(a, 3)
    lred = a.uid("k4_red")
    a("s_cmp_ge_u32 s2, 224")
    a(f"s_cbranch_scc1 {lred}")
    a("v_lshrrev_b32 v12, 4, v2")
    a("v_and_b32 v13, 1, v2")
    a("v_lshlrev_b32 v13, 11, v13")
    a("v_lshl_add_u32 v13, v12, 3, v13")
    a("s_lshl_b32 s54, s44, 8")
    a("s_add_u32 s54, s54, 65536")
    a("v_add_u32 v13, s54, v13")
    a("v_lshlrev_b32 v14, 3, v2")
    a("s_lshl_b32 s54, s44, 12")
    a("v_add_u32 v14, s54, v14")
    XF, WF = 128, 144
    for s in range(4):
        a(f"ds_read_b64 v[{XF+4*s}:{XF+4*s+1}], v13 offset:{s*64}")
        a(f"ds_read_b64 v[{XF+4*s+2}:{XF+4*s+3}], v13 offset:{s*64+32}")
        for m in range(2):
            b = WF + (m * 4 + s) * 4
            a(f"ds_read_b64_tr_b16 v[{b}:{b+1}], v14 offset:{m*32768 + s*1024}")
            a(f"ds_read_b64_tr_b16 v[{b+2}:{b+3}], v14 offset:{m*32768 + s*1024 + 512}")
    a("v_and_b32 v13, 15, v2")
    a("v_lshlrev_b32 v13, 6, v13")
    a("v_lshl_add_u32 v13, v12, 4, v13")
    a("s_lshl_b32 s54, s44, 11")
    a(f"s_add_u32 s54, s54, {MISC + 256}")
    a("v_add_u32 v13, s54, v13")
    a("s_waitcnt lgkmcnt(0)")
    for s in range(4):
        for m in range(2):
            b = WF + (m * 4 + s) * 4
            c = f"v[{16+4*m}:{19+4*m}]"
            a(mfma16(c, f"v[{b}:{b+3}]", f"v[{XF+4*s}:{XF+4*s+3}]", "0" if s == 0 else c))
    a("s_nop 7")
    a("ds_write_b128 v13, v[16:19]")
    a("ds_write_b128 v13, v[20:23] offset:1024")
    a("s_waitcnt lgkmcnt(0)")
    a("s_barrier")
    a("s_cmp_ge_u32 s44, 4")
    a(f"s_cbranch_scc1 {lln}")
    a("v_lshlrev_b32 v13, 2, v4")
    a(f"v_add_u32 v13, {MISC + 256}, v13")
    for w in range(8):
        a(f"ds_read2st64_b32 v[{16+2*w}:{17+2*w}], v13 offset0:{w*8} offset1:{w*8 + 4}")
    a("s_waitcnt lgkmcnt(0)")
    for w in range(4):
        a(f"v_pk_add_f32 {P(16+2*w)}, {P(16+2*w)}, {P(24+2*w)}")
    a(f"v_pk_add_f32 {P(16)}, {P(16)}, {P(20)}")
    a(f"v_pk_add_f32 {P(18)}, {P(18)}, {P(22)}")
    a(f"v_pk_add_f32 {P(16)}, {P(16)}, {P(18)}")
    a("v_cvt_pk_bf16_f32 v16, v16, v17")
    a("v_and_b32 v20, 0xffff0000, v16")
    a("v_lshlrev_b32 v16, 16, v16")
    a("v_mul_f32 v17, 0xbfb8aa3b, v16")
    a("v_exp_f32 v17, v17")
    a("s_lshl_b32 s54, s45, 13")
    a("v_add_f32 v17, 1.0, v17")
    a("v_rcp_f32 v17, v17")
    a("s_add_u32 s55, s54, 4096")
    a("v_mul_f32 v16, v16, v17")
    a("v_cvt_pk_bf16_f32 v16, v16, v16")
    a("v_and_b32 v16, 0xffff0000, v16")
    a("v_mul_f32 v16, v16, v20")
    a("s_nop 1")
    a("v_mov_b32_dpp v17, v16 quad_perm:[1,0,3,2] row_mask:0xf bank_mask:0xf")
    a("v_cvt_pk_bf16_f32 v16, v16, v17")
    a("v_lshlrev_b32 v13, 4, v0")
    for t in range(2):
        for j in range(8):
            a(f"v_readlane_b32 s{24 + t*8 + j}, v16, {t*16 + 2*j}")
    ACC = 24
    for t in range(2):
        for j in range(8):
            for e in range(4):
                d = ACC + t * 4 + e
                a(f"v_dot2_f32_bf16 v{d}, v{WP+4*j+e}, s{24 + t*8 + j}, {'0' if j == 0 else 'v%d' % d}")
        if t == 0:
            continue
        a("s_and_b32 s52, s45, 15")
        a("s_lshl_b32 s53, s44, 4")
        a("s_add_u32 s52, s52, s53")
        a("s_lshl_b32 s52, s52, 7")
    a(f"buffer_store_dwordx4 v[{ACC}:{ACC+3}], v13, s[56:59], s54 offen sc1")
    a(f"buffer_store_dwordx4 v[{ACC+4}:{ACC+7}], v13, s[56:59], s55 offen sc1")
    a("v_mov_b32 v12, 0")
    a("v_mov_b32 v13, 1")
    a("s_mov_b64 exec, 1")
    a("s_waitcnt vmcnt(0)")
    a("buffer_atomic_add v13, v12, s[60:63], s52 offen sc1")
    a("s_mov_b64 exec, -1")
    stamp(a, 4)
    stamp_dump(a, 3, 5, 14)
    a("s_endpgm")
    a.label(lred)
    a("s_cmp_ge_u32 s44, 4")
    a(f"s_cbranch_scc1 {lln}")
    a("s_sub_u32 s40, s2, 224")
    a("s_lshr_b32 s41, s40, 4")
    a("s_and_b32 s42, s40, 15")
    a.srd(24, 4, 2048)
    a.srd(28, 12, 4 << 20)
    for i in range(4):
        a(f"buffer_load_dwordx4 v[{56+4*i}:{59+4*i}], v7, s[24:27], 0 offen offset:{i*512}")
    a("s_lshl_b32 s43, s41, 5")
    a("v_readlane_b32 s46, v15, s43")
    a("v_and_b32 v8, 15, v0")
    a("s_lshl_b32 s47, s42, 7")
    a("v_lshl_add_u32 v9, v8, 3, s47")
    a("s_lshl_b32 s46, s46, 11")
    a("s_lshl_b32 s48, s41, 11")
    a("s_add_u32 s48, s48, 65536")
    a("v_add_u32 v12, s48, v9")
    a("ds_read_b64 v[72:73], v12")
    a("buffer_load_dwordx2 v[74:75], v9, s[20:23], s46 offen")
    a("v_lshrrev_b32 v10, 4, v0")
    a("v_lshlrev_b32 v10, 13, v10")
    a("v_lshl_add_u32 v10, v8, 4, v10")
    a("s_lshl_b32 s49, s40, 8")
    a("s_waitcnt vmcnt(1)")
    a(f"v_dot2_f32_bf16 v12, v{VX}, v56, 0")
    for i in range(1, 16):
        a(f"v_dot2_f32_bf16 v12, v{VX+i}, v{56+i}, v12")
    a("s_nop 2")
    half_wave_sum(a, 12, 13)
    a("v_cvt_pk_bf16_f32 v12, v12, v12")
    a("v_and_b32 v12, 0xffff0000, v12")
    a("v_mul_f32 v12, 0xbfb8aa3b, v12")
    a("v_exp_f32 v12, v12")
    a("v_mov_b32 v3, v8")
    a("v_add_f32 v12, 1.0, v12")
    a("v_rcp_f32 v12, v12")
    a("s_lshr_b32 s50, s42, 2")
    a("v_cvt_pk_bf16_f32 v12, v12, v12")
    a("v_and_b32 v12, 0xffff0000, v12")
    a("s_lshl_b32 s50, s50, 11")
    a("v_readlane_b32 s51, v12, s43")
    a("v_lshlrev_b32 v3, 7, v3")
    np_, lp = a.uid("k4_go"), a.uid("k4_poll")
    a("s_mov_b32 s47, s49")
    a("s_mov_b32 s30, 0")
    a("s_mov_b32 s58, 0")
    a(f"s_branch {np_}")
    again = a.uid("k4_again")
    a.label(again)
    a("s_mov_b32 s49, s47")
    a(f"s_mov_b32 s30, 0x{4 << 20:x}")
    a(f"s_mov_b32 s58, {NSL * 8192}")
    a("s_cmp_lg_u32 s44, 0")
    a(f"s_cbranch_scc1 {np_}")
    a(f"s_mov_b32 s52, {1 << 20}")
    a.label(lp)
    a(f"s_sleep {os.environ.get('K4SL', '8')}")
    a("buffer_load_dword v13, v3, s[60:63], s50 offen sc1")
    a("s_sub_u32 s52, s52, 1")
    a(f"s_cbranch_scc1 {np_}")
    a("s_waitcnt vmcnt(0)")
    a("v_cmp_gt_u32 vcc, 14, v13")
    a(f"s_cbranch_vccnz {lp}")
    a.label(np_)
    a("s_barrier")
    for i in range(14):
        a(f"buffer_load_dwordx4 v[{76+4*i}:{79+4*i}], v10, s[56:59], s49 offen sc1")
        a("s_add_u32 s49, s49, 0x20000")
    for i in range(1, 14):
        a(f"s_waitcnt vmcnt({13 - i})")
        a(f"v_pk_add_f32 v[76:77], v[76:77], v[{76+4*i}:{77+4*i}]")
        a(f"v_pk_add_f32 v[78:79], v[78:79], v[{78+4*i}:{79+4*i}]")
    for sw in ("v_permlane16_swap_b32", "v_permlane32_swap_b32"):
        for r in range(4):
            a(f"v_mov_b32 v{80+r}, v{76+r}")
        a("s_nop 1")
        for r in range(4):
            a(f"{sw} v{76+r}, v{80+r}")
        a("s_nop 1")
        for r in range(4):
            a(f"v_add_f32 v{76+r}, v{76+r}, v{80+r}")
    a("v_lshlrev_b32 v14, 8, v1")
    a("v_lshl_add_u32 v14, v8, 4, v14")
    a("ds_write_b128 v14, v[76:79]")
    a("s_waitcnt lgkmcnt(0)")
    a("s_barrier")
    a("v_lshlrev_b32 v14, 4, v8")
    for w in range(4):
        a(f"ds_read_b128 v[{76+4*w}:{79+4*w}], v14 offset:{w*256}")
    a("s_waitcnt lgkmcnt(0)")
    for w in range(1, 4):
        a(f"v_pk_add_f32 v[76:77], v[76:77], v[{76+4*w}:{77+4*w}]")
        a(f"v_pk_add_f32 v[78:79], v[78:79], v[{78+4*w}:{79+4*w}]")
    for h in range(2):
        y = 76 + 2 * h
        a(f"v_cvt_pk_bf16_f32 v20, v{y}, v{y+1}")
        a("v_lshlrev_b32 v21, 16, v20\nv_and_b32 v22, 0xffff0000, v20")
        a("v_mul_f32 v21, s51, v21\nv_mul_f32 v22, s51, v22")
        a("v_cvt_pk_bf16_f32 v20, v21, v22")
        a("v_lshlrev_b32 v21, 16, v20\nv_and_b32 v22, 0xffff0000, v20")
        a(f"v_lshlrev_b32 v23, 16, v{72+h}\nv_and_b32 v24, 0xffff0000, v{72+h}")
        a("v_add_f32 v21, v21, v23\nv_add_f32 v22, v22, v24")
        a("v_cvt_pk_bf16_f32 v20, v21, v22")
        a("v_lshlrev_b32 v21, 16, v20\nv_and_b32 v22, 0xffff0000, v20")
        a(f"v_lshlrev_b32 v23, 16, v{74+h}\nv_and_b32 v24, 0xffff0000, v{74+h}")
        a("v_add_f32 v21, v21, v23\nv_add_f32 v22, v22, v24")
        a(f"v_cvt_pk_bf16_f32 v{26+h}, v21, v22")
    a("v_cmp_gt_u32 vcc, 16, v0")
    a("s_and_saveexec_b64 s[52:53], vcc")
    skip = a.uid("k4_skip")
    a(f"s_cbranch_execz {skip}")
    a("buffer_store_dwordx2 v[26:27], v9, s[28:31], s46 offen sc1")
    a.label(skip)
    a("s_mov_b64 exec, s[52:53]")
    fin = a.uid("k4_fin")
    a("s_cmp_lg_u32 s30, 0")
    a(f"s_cbranch_scc1 {fin}")
    a(f"s_branch {again}")
    a.label(fin)
    stamp(a, 4)
    stamp_dump(a, 3, 5, 14)
    a("s_endpgm")
    a.label(lb)
    a("v_lshl_add_u32 v6, v1, 1, v5")
    a("s_lshl_b32 s47, s2, 3")
    a("s_sub_u32 s47, s47, 8")
    a("v_add_u32 v6, s47, v6")
    a("v_lshl_add_u32 v6, v6, 11, v7")
    a.srd(36, 12, 4 << 20)
    nf = a.uid("k4_noffn")
    a("s_cmp_ge_u32 s2, 224")
    a(f"s_cbranch_scc1 {nf}")
    a.srd(24, 6, 7340032)
    a.srd(28, 8, 7340032)
    a("s_and_b32 s50, s44, 3")
    a("v_lshrrev_b32 v8, 1, v2")
    a("s_lshl_b32 s47, s50, 8")
    a("v_add_u32 v8, s47, v8")
    a("v_mul_u32_u24 v8, 7168, v8")
    a("v_and_b32 v9, 1, v2")
    a("v_lshl_add_u32 v8, v9, 4, v8")
    a("s_lshl_b32 s47, s45, 5")
    a("v_add_u32 v8, s47, v8")
    a("s_and_b32 s49, s45, 3")
    a("s_lshl_b32 s49, s49, 1")
    a("s_lshl_b32 s50, s50, 13")
    a("s_mov_b32 s53, 8")
    dl = a.uid("k4_dma")
    a.label(dl)
    a(f"s_mul_i32 s52, s49, {32*7168}")
    a("s_lshl_b32 s51, s49, 10")
    a("s_add_u32 m0, s51, s50")
    a("s_add_u32 s49, s49, 1")
    a("buffer_load_dwordx4 v8, s[24:27], s52 offen lds")
    a("s_add_u32 m0, m0, 32768")
    a("s_and_b32 s49, s49, 7")
    a("buffer_load_dwordx4 v8, s[28:31], s52 offen lds")
    a("s_sub_u32 s53, s53, 1")
    a("s_cmp_lg_u32 s53, 0")
    a(f"s_cbranch_scc1 {dl}")
    a.label(nf)
    for i in range(4):
        a(f"buffer_load_dwordx4 v[{VX+4*i}:{VX+4*i+3}], v6, s[20:23], 0 offen offset:{i*512}")
    a("s_waitcnt vmcnt(0)")
    a(f"s_branch {lmm}")
    a.label(lbout)
    a(f"v_mov_b32 v12, {MISC + 128}")
    a("ds_read_b64 v[12:13], v12")
    a("v_lshrrev_b32 v14, 11, v6")
    for i in range(16):
        a(f"v_lshlrev_b32 v{T2+2*i}, 16, v{VX+i}")
        a(f"v_and_b32 v{T2+2*i+1}, 0xffff0000, v{VX+i}")
    for i in range(0, 32, 2):
        a(f"v_pk_add_f32 v[{T2+i}:{T2+i+1}], v[{T2+i}:{T2+i+1}], v[{KP+i}:{KP+i+1}]")
    for i in range(16):
        a(f"v_cvt_pk_bf16_f32 v{VX+i}, v{T2+2*i}, v{T2+2*i+1}")
    a("s_waitcnt lgkmcnt(0)")
    a("v_cmp_eq_u32 vcc, v12, v14")
    a("v_cmp_eq_u32 s[52:53], v13, v14")
    a("v_mov_b32 v12, 0x7fffffff")
    a("s_or_b64 vcc, vcc, s[52:53]")
    a("v_cndmask_b32 v6, v6, v12, vcc")
    for i in range(4):
        a(f"buffer_store_dwordx4 v[{VX+4*i}:{VX+4*i+3}], v6, s[36:39], 0 offen offset:{i*512} sc1")
    a.label(end)
    a("s_endpgm")
    a.end_kernel(name, 232, extra=[".amdhsa_float_denorm_mode_32 3"])
    a.launch(name, 256, 512, MISC + 256 + 16384)


def gen_k5(a, name="k5_kernel"):
    a.begin_kernel(name)
    end = a.uid("k5_end")
    a("s_cmp_ge_u32 s2, 64")
    a(f"s_cbranch_scc1 {end}")
    stamp(a, 0)
    a(f"s_load_dwordx2 s[12:13], s[0:1], {ARG['out']}")
    a(f"s_load_dwordx2 s[14:15], s[0:1], {ARG['ws']}")
    a("v_and_b32 v2, 7, v0")
    a("v_lshrrev_b32 v3, 3, v0")
    a("v_lshlrev_b32 v4, 13, v3")
    a("v_lshl_add_u32 v4, v2, 4, v4")
    a("s_lshl_b32 s40, s2, 7")
    a("s_lshr_b32 s41, s2, 5")
    a("s_and_b32 s42, s2, 31")
    a("s_waitcnt lgkmcnt(0)")
    a.srd_off(16, 14, PART_OFF, NSL * 8192)
    a.srd_off(20, 14, SEL_OFF, 8192)
    a.srd_off(24, 14, H_OFF, 4 << 20)
    a.srd(28, 12, 4 << 20)
    a("s_lshl_b32 s43, s41, 2")
    a("v_mov_b32 v5, s43")
    a("buffer_load_dword v6, v5, s[20:23], 0 offen")
    a("buffer_load_dword v7, v5, s[20:23], 0 offen offset:8")
    for i in range(7):
        a(f"buffer_load_dwordx4 v[{16+4*i}:{19+4*i}], v4, s[16:19], s40 offen")
        a("s_add_u32 s40, s40, 0x40000")
    a("s_lshl_b32 s44, s42, 6")
    a("v_lshl_add_u32 v8, v2, 3, s44")
    a("s_lshl_b32 s45, s41, 11")
    a("s_add_u32 s45, s45, 4096")
    a("buffer_load_dwordx2 v[10:11], v8, s[20:23], s45 offen")
    a("s_waitcnt vmcnt(8)")
    a("v_and_b32 v6, 0x7ff, v6")
    a("v_lshl_add_u32 v9, v6, 11, v8")
    a("buffer_load_dwordx2 v[12:13], v9, s[24:27], 0 offen")
    a("s_waitcnt vmcnt(2)")
    for i in range(1, 7):
        a(f"v_pk_add_f32 v[16:17], v[16:17], v[{16+4*i}:{17+4*i}]")
        a(f"v_pk_add_f32 v[18:19], v[18:19], v[{18+4*i}:{19+4*i}]")
    a("s_nop 1")
    for r in range(4):
        a(f"v_add_f32_dpp v{16+r}, v{16+r}, v{16+r} row_ror:8 row_mask:0xf bank_mask:0xf")
    for sw in ("v_permlane16_swap_b32", "v_permlane32_swap_b32"):
        for r in range(4):
            a(f"v_mov_b32 v{20+r}, v{16+r}")
        a("s_nop 1")
        for r in range(4):
            a(f"{sw} v{16+r}, v{20+r}")
        a("s_nop 1")
        for r in range(4):
            a(f"v_add_f32 v{16+r}, v{16+r}, v{20+r}")
    a("v_lshrrev_b32 v14, 6, v0")
    a("v_lshlrev_b32 v14, 7, v14")
    a("v_lshl_add_u32 v14, v2, 4, v14")
    a("ds_write_b128 v14, v[16:19]")
    a("s_waitcnt lgkmcnt(0)")
    a("s_barrier")
    a("v_lshlrev_b32 v14, 4, v2")
    for w in range(4):
        a(f"ds_read_b128 v[{16+4*w}:{19+4*w}], v14 offset:{w*128}")
    a("s_waitcnt vmcnt(0) lgkmcnt(0)")
    for w in range(1, 4):
        a(f"v_pk_add_f32 v[16:17], v[16:17], v[{16+4*w}:{17+4*w}]")
        a(f"v_pk_add_f32 v[18:19], v[18:19], v[{18+4*w}:{19+4*w}]")
    for h in range(2):
        y = 16 + 2 * h
        a(f"v_cvt_pk_bf16_f32 v20, v{y}, v{y+1}")
        a("v_lshlrev_b32 v21, 16, v20\nv_and_b32 v22, 0xffff0000, v20")
        a("v_mul_f32 v21, v21, v7\nv_mul_f32 v22, v22, v7")
        a("v_cvt_pk_bf16_f32 v20, v21, v22")
        a("v_lshlrev_b32 v21, 16, v20\nv_and_b32 v22, 0xffff0000, v20")
        a(f"v_lshlrev_b32 v23, 16, v{10+h}\nv_and_b32 v24, 0xffff0000, v{10+h}")
        a("v_add_f32 v21, v21, v23\nv_add_f32 v22, v22, v24")
        a("v_cvt_pk_bf16_f32 v20, v21, v22")
        a("v_lshlrev_b32 v21, 16, v20\nv_and_b32 v22, 0xffff0000, v20")
        a(f"v_lshlrev_b32 v23, 16, v{12+h}\nv_and_b32 v24, 0xffff0000, v{12+h}")
        a("v_add_f32 v21, v21, v23\nv_add_f32 v22, v22, v24")
        a(f"v_cvt_pk_bf16_f32 v{26+h}, v21, v22")
    a("v_cmp_gt_u32 vcc, 8, v0")
    a("s_and_saveexec_b64 s[46:47], vcc")
    skip = a.uid("k5_skip")
    a(f"s_cbranch_execz {skip}")
    a("buffer_store_dwordx2 v[26:27], v9, s[28:31], 0 offen")
    a.label(skip)
    a("s_mov_b64 exec, s[46:47]")
    stamp_dump(a, 4, 1, 14)
    if common.PROF and os.environ.get("DBGOUT"):
        a("s_cmp_lg_u32 s2, 0")
        a(f"s_cbranch_scc1 {end}")
        a("s_waitcnt vmcnt(0)")
        a(f"s_load_dwordx2 s[4:5], s[0:1], {ARG['dbg']}")
        a.srd_off(8, 14, PROF_OFF, 8 * 512 * 64)
        picks = [(0, i) for i in range(8)] + [(2, 0), (2, 2), (2, 3), (2, 5), (3, 0), (3, 5)]
        a("v_mov_b32 v1, 0")
        for i, (k, j) in enumerate(picks):
            a(f"s_mov_b32 s3, {k*512*64 + 100*64 + j*4}")
            a(f"buffer_load_dword v{10+i}, v1, s[8:11], s3 offen sc1")
        a("v_mov_b32 v24, s64")
        a("v_mov_b32 v25, s68")
        a("s_waitcnt vmcnt(0) lgkmcnt(0)")
        a.srd(8, 4, 256)
        for i in range(15, -1, -1):
            a(f"v_sub_u32 v{10+i}, v{10+i}, v10")
            a(f"buffer_store_dword v{10+i}, v1, s[8:11], 0 offen offset:{4*i}")
    a.label(end)
    a("s_endpgm")
    a.end_kernel(name, 64)
    a.launch(name, 64, 256, 512)
```

```python
import sys
sys.path.insert(0, "gen")
import os
import common
common.PROF = bool(int(os.environ.get('PROF', '0')))
common.TRACE = bool(int(os.environ.get('TRACE', '0')))
from common import *
from k3 import gen_k3
from k12 import gen_k12
from k45 import gen_k4, gen_k5

HEADER = open("sequential_preLN__compressed_kv_cla__moe_arch_mod__prompt.s.ref").read().split("; Override launch")[0]

def build(path, which=("k1", "k2", "k3", "k4", "k5")):
    a = Asm()
    if "k12" in which: gen_k12(a)
    if "k3" in which: gen_k3(a)
    if "k4" in which: gen_k4(a)
    if "k5" in which: gen_k5(a)
    a.label("code_end")
    a("s_endpgm")
    open(path, "w").write(a.text(HEADER))

if __name__ == "__main__":
    build(sys.argv[1] if len(sys.argv) > 1 else "t.s", os.environ.get("WHICH", "k12,k3,k4").split(","))
```

```python
from common import *
import common, os
from sched import Op, spread, schedule
import k2
from k2 import vq, aq, V_LANE16, V_VV, V_NINF, attention_phase, LDF

SPIN_MAX = 1 << 20
KO = set(os.environ.get('KO', '').split(','))
NT = ' nt' if 'nt' in KO else ''
ENV = lambda k, d: int(os.environ.get(k, str(d)))

ZERO, ONE = 8, 9
XD, WD, XRD, WRD = 10, 18, 26, 28
QX, QWD, QWR = 36, 38, 42
VPF, VDUM, VPOLL, VXST, VLW, VLR = 50, 51, 52, 53, 54, 55
PT = 56
PK = 64
WRING = 98304


def spin_text(a, soff, target, VPOLL=VPOLL, ZERO=ZERO):
    ok, lp = a.uid("spin_ok"), a.uid("spin")
    return "\n".join([
        f"v_readfirstlane_b32 s31, v{VPOLL}", f"s_cmp_ge_u32 s31, {target}", f"s_cbranch_scc1 {ok}",
        f"s_mov_b32 s40, {SPIN_MAX}", f"{lp}:", "s_sleep 8",
        f"buffer_load_dword v{VPOLL}, v{ZERO}, s[24:27], {soff} offen sc1", "s_waitcnt vmcnt(0)",
        f"v_readfirstlane_b32 s31, v{VPOLL}", "s_sub_u32 s40, s40, 1", "s_cselect_b32 s31, -1, s31",
        f"s_cmp_lt_u32 s31, {target}", f"s_cbranch_scc1 {lp}", f"{ok}:"])


def one_lane(text):
    return f"s_mov_b64 exec, 1\n{text}\ns_mov_b64 exec, -1"


def gen_k12(a, name="k12_kernel"):
    a.begin_kernel(name)
    end = a.uid("k12_end")
    stubs = []
    pst = (lambda i: stamp(a, i)) if "ptrace" in KO else (lambda i: None)

    def when(cmp_text, body, want, **kw):
        l, r = a.uid("k12_ool"), a.uid("k12_oolret")
        if "nosig" in KO and "s[24:27]" in body:
            body = "s_nop 0"
        stubs.append((l, body, r))
        return Op(f"{cmp_text}\ns_cbranch_scc1 {l}\n{r}:", "B", want, **kw)

    a("s_cmp_ge_u32 s2, 256")
    a(f"s_cbranch_scc1 {end}")
    stamp(a, 0)
    a(f"s_load_dwordx4 s[36:39], s[0:1], {ARG['x']}")
    a(f"s_load_dwordx4 s[40:43], s[0:1], {ARG['wuk']}")
    a(f"s_load_dwordx2 s[4:5], s[0:1], {ARG['wq']}")
    a(f"s_load_dwordx4 s[60:63], s[0:1], {ARG['dbg']}")
    CE = ENV("CE", 48)
    a("s_lshr_b32 s59, s2, 3")
    a("s_lshl_b32 s58, s59, 4")
    a("v_add_u32 v6, s58, v0")
    a(f"v_cmp_gt_u32 vcc, {CE}, v0")
    a(f"v_cmp_gt_u32 s[56:57], {CE + 16}, v0")
    a("s_nop 0")
    a("v_cndmask_b32 v6, v6, v0, vcc")
    code_addr(a, "k12_code0", 58, 6, 52)
    a.label("k12_code0")
    a("s_mov_b64 exec, s[56:57]")
    cs = a.uid("k12_nocode")
    a(f"s_cbranch_execz {cs}")
    a(f"global_load_dword v{VDUM}, v[58:59], off")
    a.label(cs)
    a("s_mov_b64 exec, -1")
    a("s_and_b32 s58, s2, 7")
    a("s_lshr_b32 s59, s2, 3")
    a("s_and_b32 s45, s59, 7")
    a("s_lshr_b32 s57, s59, 3")
    a("s_and_b32 s44, s57, 1")
    a("s_lshl_b32 s52, s58, 1")
    a("s_add_u32 s44, s44, s52")
    a("s_lshr_b32 s57, s57, 1")
    W, LN_ = 2, 3
    a(f"v_lshrrev_b32 v{W}, 6, v0")
    a(f"v_and_b32 v{LN_}, 63, v0")
    a(f"v_readfirstlane_b32 s30, v{W}")
    a(f"v_lshlrev_b32 v{V_LANE16}, 4, v{LN_}")
    VX, VT = 64, 80
    TOK, L32 = 60, 61
    a(f"v_lshrrev_b32 v{TOK}, 5, v{LN_}")
    a(f"v_lshl_add_u32 v{TOK}, v{W}, 1, v{TOK}")
    a(f"v_and_b32 v{L32}, 31, v{LN_}")
    a(f"v_lshlrev_b32 v6, 11, v{TOK}")
    a(f"v_lshl_add_u32 v62, v{L32}, 4, v6")
    a("s_lshl_b32 s52, s2, 14")
    a(f"v_lshrrev_b32 v56, 3, v{LN_}")
    a(f"v_and_b32 v57, 7, v{LN_}")
    a("v_lshrrev_b32 v58, 1, v56")
    a("v_xor_b32 v6, v57, v58")
    a("v_xor_b32 v7, 4, v6")
    a(f"v_lshl_add_u32 v58, v{W}, 6, v56")
    a("v_lshlrev_b32 v58, 10, v58")
    a("s_lshl_b32 s47, s45, 18")
    a("v_add_u32 v58, s47, v58")
    a(f"v_lshl_add_u32 v{XD}, v6, 4, v58")
    a(f"v_lshl_add_u32 v{XD+1}, v7, 4, v58")
    for i in range(7, -1, -1):
        a(f"v_add_u32 v{XD+i}, {i*8*1024 - (i%4)*1024}, v{XD + (i%2)}")
    a(f"v_lshrrev_b32 v6, 5, v{LN_}")
    a(f"v_bfe_u32 v7, v{LN_}, 1, 4")
    a(f"v_and_b32 v59, 1, v{LN_}")
    a(f"v_lshl_add_u32 v58, v{W}, 4, v6")
    a("v_lshlrev_b32 v58, 13, v58")
    a("v_lshl_add_u32 v58, v59, 4, v58")
    a("s_lshl_b32 s47, s44, 9")
    a("v_add_u32 v58, s47, v58")
    a("v_xor_b32 v7, v7, v6")
    for i in range(8):
        fx = ((2 * i) & 3) | ((((2 * i) >> 3) & 1) << 2)
        a(f"v_xor_b32 v6, {fx}, v7")
        a(f"v_lshl_add_u32 v6, v6, 5, v58")
        a(f"v_add_u32 v{WD+i}, {2*i*8192 - (i%4)*1024}, v6")
    XB, WB = 0, 65536
    a("s_lshl_b32 s48, s30, 13")
    a("s_mov_b32 s49, 0")
    a("s_mov_b32 s50, 0")
    pst(1)
    a("s_waitcnt lgkmcnt(0)")
    a.srd(24, 36, 4 << 20)
    for i in range(4):
        a(f"buffer_load_dwordx4 v[{VX+4*i}:{VX+4*i+3}], v62, s[24:27], s52 offen offset:{i*512}{NT}")
    a.srd(16, 38, 2 << 20)
    a("s_cmp_eq_u32 s57, 0")
    a("s_cselect_b32 s20, s40, s42")
    a("s_cselect_b32 s21, s41, s43")
    a("s_and_b32 s21, s21, 0xffff")
    a("s_mov_b32 s22, 0x400000")
    a("s_mov_b32 s23, 0x00020000")

    def dma_grp(stage, g):
        op, i0 = g // 2, (g % 2) * 4
        m = f"s_add_u32 m0, s48, {(XB if op == 0 else WB) + stage*32768 + i0*1024}"
        if op == 0:
            ld = [f"buffer_load_dwordx4 v{XD+i0+i}, s[16:19], s49 offen offset:{i*1024} lds" for i in range(4)]
        else:
            ld = [f"buffer_load_dwordx4 v{WD+i0+i}, s[20:23], s50 offen offset:{i*1024}{NT} lds" for i in range(4)]
        tr = {1: "s_add_u32 s49, s49, 128", 3: "s_add_u32 s50, s50, 0x80000"}.get(g)
        return m, ld, tr

    def emit_grp(m, ld, tr):
        a(m)
        a("s_nop 0")
        for t in ld:
            a(t)
        if tr:
            a(tr)

    def grp_sched(grps, lo, hi, after=()):
        ops, prev = [], list(after)
        tot = sum(len(g[1]) for g in grps)
        step = (hi - lo) / float(tot)
        k = 0
        for (m, ld, tr) in grps:
            mo = None
            if m:
                mo = Op(m, "S", lo + step * k - 1, lo=lo, after=prev)
                ops.append(mo)
            for t in ld:
                o = Op(t, "V", lo + 1 + step * k, lo=lo, after=prev, prev_gap=[mo] if mo else [])
                ops.append(o)
                prev = [o]
                k += 1
            if tr:
                for t in tr.split("\n"):
                    o = Op(t, "S", lo + step * k, after=prev)
                    ops.append(o)
                    prev = [o]
        return ops, prev

    PG = ENV("PG", 2)
    order0 = [0, 2, 1, 3]
    for g in order0[:PG]:
        emit_grp(*dma_grp(0, g))
    pst(2)
    a("s_mov_b64 s[6:7], s[62:63]")
    a.srd_off(8, 6, XN_OFF, 4 << 20)
    a.srd(12, 4, 8 << 20)
    a.srd_off(32, 6, KF_OFF, 32 << 20)
    a.srd(24, 60, 256)
    a("s_lshl_b32 s28, s58, 2")
    a("s_and_b32 s31, s59, 3")
    a("s_add_u32 s28, s28, s31")
    a("s_lshr_b32 s29, s59, 2")
    a("s_lshl_b32 s42, s29, 7")
    a("s_sub_u32 s43, 1920, s42")
    a("s_lshl_b32 s31, s30, 5")
    a("s_add_u32 s38, s42, s31")
    a("s_add_u32 s39, s43, s31")
    a("s_lshl_b32 s60, s30, 12")
    a("s_mov_b32 s61, 0")
    a("s_mov_b32 s62, 0")
    a("s_lshl_b32 s47, s44, 1")
    a("s_lshr_b32 s52, s30, 1")
    a("s_add_u32 s47, s47, s52")
    a("s_lshl_b32 s47, s47, 14")
    a("s_lshl_b32 s52, s45, 1")
    a("s_and_b32 s53, s30, 1")
    a("s_add_u32 s52, s52, s53")
    a("s_lshl_b32 s52, s52, 20")
    a("s_add_u32 s47, s47, s52")
    a("s_lshl_b32 s52, s57, 24")
    a("s_add_u32 s47, s47, s52")
    assert VF_OFF - KF_OFF == 1 << 24
    a("s_lshl_b32 s54, s44, 8")
    a("s_lshr_b32 s55, s28, 1")
    a("s_lshl_b32 s55, s55, 8")
    a("s_and_b32 s53, s59, 3")
    a("s_add_u32 s53, s53, 1")
    a("s_cmp_eq_u32 s30, 0")
    a("s_cselect_b32 s53, s53, -1")
    a("s_cselect_b32 s46, 6, -1")
    a("v_lshlrev_b32 v6, 13, v56")
    a(f"v_lshl_add_u32 v{VPF}, v57, 7, v6")
    a("s_lshl_b32 s56, s30, 5")
    a("s_add_u32 s56, s56, s59")
    a("s_lshl_b32 s56, s56, 16")
    a("s_lshl_b32 s52, s58, 10")
    a("s_add_u32 s56, s56, s52")
    a("s_lshl_b32 s63, s30, 1")
    pf = f"buffer_load_dword v{VDUM}, v{VPF}, s[12:15], s56 offen" if "nowq" not in KO else "s_nop 0"
    for g in order0[PG:2]:
        emit_grp(*dma_grp(0, g))
    XL = 131072
    a(f"v_mul_u32_u24 v6, 2064, v{TOK}")
    a(f"v_lshl_add_u32 v6, v{L32}, 4, v6")
    a(f"v_add_u32 v{VLW}, {XL}, v6")
    a("v_mul_u32_u24 v7, 2064, v57")
    a("v_lshl_add_u32 v7, v56, 4, v7")
    a(f"v_lshl_add_u32 v7, v{W}, 9, v7")
    a(f"v_add_u32 v{VLR}, {XL}, v7")
    a("v_lshrrev_b32 v7, 2, v56")
    a(f"v_lshl_add_u32 v7, v{W}, 3, v7")
    a("v_lshlrev_b32 v7, 17, v7")
    a("v_and_b32 v6, 3, v56")
    a("v_lshl_add_u32 v7, v6, 8, v7")
    a("v_lshl_add_u32 v7, v57, 4, v7")
    a("s_lshr_b32 s52, s2, 1")
    a("s_lshl_b32 s52, s52, 10")
    a("s_and_b32 s31, s2, 1")
    a("s_lshl_b32 s31, s31, 7")
    a("s_add_u32 s52, s52, s31")
    a(f"v_add_u32 v{VXST}, s52, v7")
    a(f"v_and_b32 v56, 15, v{LN_}")
    a(f"v_lshrrev_b32 v57, 4, v{LN_}")
    a("v_lshrrev_b32 v6, 1, v56")
    a("v_xor_b32 v6, v6, v57")
    a(f"v_and_b32 v7, 1, v{W}")
    a("v_lshl_add_u32 v7, v7, 7, v56")
    a("v_lshlrev_b32 v7, 7, v7")
    a(f"v_lshl_add_u32 v{XRD}, v6, 4, v7")
    a(f"v_xor_b32 v{XRD+1}, 64, v{XRD}")
    a("v_lshrrev_b32 v6, 2, v56")
    a("v_and_b32 v58, 1, v57")
    a("v_lshl_add_u32 v58, v58, 2, v6")
    a("v_lshl_add_u32 v59, v57, 3, v6")
    a(f"v_and_b32 v63, 3, v{LN_}")
    a("v_lshlrev_b32 v7, 9, v59")
    a(f"v_lshrrev_b32 v6, 1, v{W}")
    a("v_lshl_add_u32 v7, v6, 8, v7")
    a("v_lshl_add_u32 v7, v63, 3, v7")
    a(f"v_add_u32 v7, {WB}, v7")
    a("v_lshlrev_b32 v59, 8, v59")
    a("v_lshl_add_u32 v59, v63, 3, v59")
    a(f"v_add_u32 v59, {WRING}, v59")
    for j in range(8):
        a(f"v_xor_b32 v6, {j}, v58")
        a(f"v_lshl_add_u32 v{WRD+j}, v6, 5, v7")
        a(f"v_lshl_add_u32 v{QWR+j}, v6, 5, v59")
    a("s_lshl_b32 s31, s38, 6")
    a(f"v_add_u32 v{QX}, s31, v{V_LANE16}")
    a("s_lshl_b32 s31, s39, 6")
    a(f"v_add_u32 v{QX+1}, s31, v{V_LANE16}")
    a(f"v_bfe_u32 v6, v{LN_}, 1, 3")
    a(f"v_and_b32 v7, 1, v{LN_}")
    a(f"v_lshl_add_u32 v58, v{W}, 4, v57")
    a("v_lshlrev_b32 v58, 13, v58")
    a("v_lshl_add_u32 v58, v7, 4, v58")
    a("s_lshl_b32 s31, s28, 8")
    a("v_add_u32 v58, s31, v58")
    a("v_xor_b32 v6, v6, v57")
    for i in range(4):
        a(f"v_xor_b32 v7, {(i // 2) << 2}, v6")
        a(f"v_lshl_add_u32 v7, v7, 5, v58")
        a(f"v_add_u32 v{QWD+i}, {4*i*8192 - i*1024}, v7")
    a("v_lshlrev_b32 v6, 2, v57")
    a(f"v_sub_u32 v{V_VV}, v56, v6")
    a(f"v_mov_b32 v{V_NINF}, 0xff800000")
    a(f"v_mov_b32 v{ZERO}, 0")
    a(f"v_mov_b32 v{ONE}, 1")
    a("s_lshl_b32 s52, s59, 2")
    a("s_add_u32 s52, s52, s30")
    a(f"v_and_b32 v6, 1, v{LN_}")
    a("v_lshl_add_u32 v6, s52, 1, v6")
    code_addr(a, "k12_qcode", 2, 6, 40)
    cpf = f"global_load_dword v{VDUM}, v[2:3], off" if "nocpf" not in KO else "s_nop 0"
    zero_acc(a, 128, 64, 56)
    zero_acc(a, 128, 128, 56, "v", init=False)
    for g in order0[max(PG, 2):]:
        emit_grp(*dma_grp(0, g))
    pst(3)
    a("s_waitcnt vmcnt(16)")
    pst(4)
    t_ = Asm()
    ln_rows_half_wave(t_, VX, VT)
    nl_ = len(t_.lines)
    for i, ln in enumerate(t_.lines):
        a.lines.append(ln)
        for g in range(4):
            if i == nl_ * (g + 1) // 5:
                emit_grp(*dma_grp(1, order0[g]))
    pst(5)
    for i in range(4):
        a(f"ds_write_b128 v{VLW}, v[{VX+4*i}:{VX+4*i+3}] offset:{i*512}")
    pst(6)
    a("s_waitcnt vmcnt(16) lgkmcnt(0)")
    a("s_barrier")
    if "ptrace" in KO:
        stamp_dump(a, 0, 7, 6)
        a("s_endpgm")
    XT = 192
    for i in range(4):
        a(f"ds_read_b128 {aq(XT+4*i)}, v{VLR} offset:{i*128}")
    zero_acc(a, 64, 64, 56, "v", init=False)

    FX = [0, 64]
    FW = [32, 96]

    def reads(stage, sp, buf):
        out = []
        for i in range(8):
            out.append(f"ds_read_b128 {aq(FX[buf]+4*i)}, v{XRD+sp} offset:{XB + stage*32768 + i*2048}")
            out.append(f"ds_read_b64_tr_b16 a[{FW[buf]+4*i}:{FW[buf]+4*i+1}], v{WRD+i} offset:{stage*32768 + sp*16384}")
            out.append(f"ds_read_b64_tr_b16 a[{FW[buf]+4*i+2}:{FW[buf]+4*i+3}], v{WRD+i} offset:{stage*32768 + sp*16384 + 2048}")
        return out

    def pair_n(c, j, isv):
        return (c * 8 + j) if isv else (j * 4 + c)

    def acc(i, j, isv):
        n = pair_n(i // 2, j, isv)
        if n < 24:
            return ("v", (64 if i % 2 == 0 else 160) + 4 * n)
        return ("a", 128 + 8 * (n - 24) + 4 * (i % 2))

    def mf1(i, j, buf, isv):
        FA, FB = (FX, FW) if isv else (FW, FX)
        k, c = acc(i, j, isv)
        r = f"{k}[{c}:{c+3}]"
        return mfma16(r, aq(FA[buf] + 4 * i), aq(FB[buf] + 4 * j), r)

    def mfmas(buf, isv):
        return [mf1(i, j, buf, isv) for i in range(8) for j in range(8)]

    skip = a.uid("k12_nostat")
    a(f"s_cmp_ge_u32 s2, {ZERO_BYTES // 4096}")
    a(f"s_cbranch_scc1 {skip}")
    a("s_lshl_b32 s52, s2, 12")
    a(f"s_add_u32 s52, s52, 0x{STATS_OFF - KF_OFF:x}")
    a("s_mov_b32 s34, -1")
    a("v_lshlrev_b32 v6, 4, v0")
    a("buffer_store_dwordx4 v[56:59], v6, s[32:35], s52 offen sc1")
    a(f"s_mov_b32 s34, 0x{32 << 20:x}")
    a.label(skip)
    stamp(a, 1)
    tr_init(a)
    for t in reads(0, 0, 0):
        a(t)
    a("s_mov_b32 s51, 0")
    a("s_waitcnt lgkmcnt(15)")
    for i in range(4):
        a(f"s_mov_b32 s52, {i*2*131072}")
        a(f"buffer_store_dwordx4 {aq(XT+4*i)}, v{VXST}, s[8:11], s52 offen sc1")
    a("s_waitcnt lgkmcnt(0)")
    lv, joined = a.uid("k12_v"), a.uid("k12_join")
    a("s_cmp_lg_u32 s57, 0")
    a(f"s_cbranch_scc1 {lv}")

    DX, DW = ENV("QDX", 3), ENV("QDW", 2)
    XS = lambda ks: 128 + ((ks + 4) % 8) * 16
    QF = [0, 32]

    def wdma(stage):
        return (f"s_add_u32 m0, s60, {WRING + (stage % 4)*16384}",
                [f"buffer_load_dwordx4 v{QWD+i}, s[12:15], s61 offen offset:{i*1024} lds" for i in range(4)], "s_add_u32 s61, s61, 0x80000")

    def xloads(ks):
        return (None, [f"buffer_load_dwordx4 {aq(XS(ks) + 4*qb)}, v{QX+qb//2}, s[8:11], s62 offen offset:{(qb%2)*1024} sc1" for qb in range(4)],
                "s_add_u32 s62, s62, 0x20000")

    def kvstore(n, srd):
        return (f"s_add_u32 s52, s47, {(n // 16) * 0x80000 + (((n % 16) * 1024) & ~4095)}",
                [f"buffer_store_dwordx4 v[{PK+n*4}:{PK+3+n*4}], v{V_LANE16}, {srd}, s52 offen offset:{(n*1024) & 4095} sc1"], None)

    def wreads(stage, sp, buf):
        out = []
        for j in range(8):
            b = QF[buf] + 4 * j
            out.append(f"ds_read_b64_tr_b16 a[{b}:{b+1}], v{QWR+j} offset:{(stage % 4)*16384 + sp*8192}")
            out.append(f"ds_read_b64_tr_b16 a[{b+2}:{b+3}], v{QWR+j} offset:{(stage % 4)*16384 + sp*8192 + 1024}")
        return out

    def qacc(db, qb):
        return ("v", 192 + (db * 2 + qb) * 4) if qb < 2 else ("a", 64 + (db * 2 + qb - 2) * 4)

    for isv in range(2):
        if isv:
            a.label(lv)
        loop, last = a.uid("k12_loop"), a.uid("k12_last")
        a.label(loop)
        for st in range(2):
            ops = spread(reads(st, 1, 1), "M", 0, 50)
            ops.append(when("s_cmp_eq_u32 s51, s46", f"buffer_load_dword v{VPOLL}, v{ZERO}, s[24:27], 0 offen sc1", 4) if st == 0 else
                       when("s_sub_u32 s52, s51, 1\ns_cmp_eq_u32 s52, s46", spin_text(a, 0, 256), 56, lo=50))
            ops.append(Op(tr_wrap("s_waitcnt vmcnt(0) lgkmcnt(0)\ns_barrier"), "S", 63, lo=63, hard=63, after=list(ops)))
            schedule(a, mfmas(0, isv), ops)
            if st == 1:
                a("s_cmp_eq_u32 s51, 7")
                a(f"s_cbranch_scc1 {last}")
            rd = spread(reads(1 - st, 0, 0), "M", 0, 50)
            pre = []
            if st == 0:
                pre = [Op("s_cmp_ge_u32 s49, 1024\ns_cselect_b32 s18, 0, s18\ns_cselect_b32 s22, 0, s22", "S", 0, hard=0)]
            dm, dl = grp_sched([dma_grp(st, g) for g in range(4)], 1, ENV("GD1", 56), after=pre)
            sig = when("s_cmp_eq_u32 s51, s53", one_lane(f"buffer_atomic_add v{ONE}, v{ZERO}, s[24:27], 0 offen sc1"), 58, after=dl)
            ops = rd + pre + dm + [sig]
            cnt_after = [sig]
            if st == 0:
                p_ = when("s_cmp_eq_u32 s51, s63", pf, 60, after=dl)
                ops.append(p_)
                cnt_after.append(p_)
            else:
                p_ = when("s_cmp_eq_u32 s51, 5", cpf, 60, after=dl)
                ops.append(p_)
                cnt_after.append(p_)
            ops.append(Op("s_add_u32 s51, s51, 1", "S", 62, after=cnt_after))
            ops.append(Op("s_waitcnt lgkmcnt(0)", "S", 63, lo=63, hard=63, after=rd))
            schedule(a, mfmas(1, isv), ops)
        a(f"s_branch {loop}")
        a.label(last)
        stamp(a, 2)
        pairs = {pair_n(c, j, isv): (c, j) for c in range(4) for j in range(8)}
        seq = list(range(8))
        for k in range(8):
            seq += [24 + k, 8 + 2 * k, 9 + 2 * k]
        mf, ops = [], []
        done = {}
        tuse = []
        for pos, n in enumerate(seq):
            c, j = pairs[n]
            mf += [mf1(2 * c, j, 1, isv), mf1(2 * c + 1, j, 1, isv)]
            g0 = 2 * pos + 1 + 4
            d = PK + 4 * n
            if n < 24:
                x, y = 64 + 4 * n, 160 + 4 * n
                tx = [f"v_cvt_pk_bf16_f32 v{d}, v{x}, v{x+1}", f"v_cvt_pk_bf16_f32 v{d+1}, v{x+2}, v{x+3}",
                      f"v_cvt_pk_bf16_f32 v{d+2}, v{y}, v{y+1}", f"v_cvt_pk_bf16_f32 v{d+3}, v{y+2}, v{y+3}"]
                o = spread(tx, "A", g0, g0 + 2)
            else:
                x = 128 + 8 * (n - 24)
                tx = [f"v_accvgpr_read_b32 v{PT+r}, a{x+r}" for r in range(8)]
                tx += [f"v_cvt_pk_bf16_f32 v{d+r}, v{PT+2*r}, v{PT+2*r+1}" for r in range(4)]
                o = spread(tx, "A", g0, g0 + 5)
                o[0].after += tuse + [done[n - 24]]
                tuse = [o[-1]]
            done[n] = o[-1]
            ops += o
        ld, ll = grp_sched([wdma(0), xloads(0), xloads(1), wdma(1), xloads(2)], 0, 40)
        ops += ld
        bar = Op("s_waitcnt vmcnt(16)\ns_barrier", "S", 44, lo=44, after=ll)
        rd = spread(wreads(0, 0, 0), "M", 45, 60)
        rd[0].after.append(bar)
        ops += [bar] + rd
        schedule(a, mf, ops)
        if not isv:
            a(f"s_branch {joined}")
    a.label(joined)
    a.label("k12_qcode")
    a("s_mov_b64 s[48:49], s[32:33]")
    a("s_mov_b32 s51, 0x00020000")
    a("s_cmp_eq_u32 s45, 0")
    a("s_mov_b32 s50, s34")
    a("s_cselect_b32 s56, s30, -1")
    a("s_cselect_b32 s57, -1, s30")
    a(tr_wrap("s_waitcnt vmcnt(12) lgkmcnt(0)"))

    NS = ENV("NS", 20)
    PSIG = ENV('PSIG', NS + 3)
    PPOLL = ENV("PPOLL", 27)
    assert PSIG % 2 == 1 and PPOLL % 2 == 1 and PSIG < PPOLL
    queue = ["W0"] * 4 + ["X0"] * 4 + ["X1"] * 4 + ["W1"] * 4 + ["X2"] * 4

    def younger(tag):
        if tag not in queue:
            return 63
        return len(queue) - 1 - max(i for i, t in enumerate(queue) if t == tag)

    kvsrd = ["s_lshl_b32 s31, s28, 14", "s_add_u32 s16, s6, s31\ns_addc_u32 s17, s7, 0",
             f"s_add_u32 s20, s16, 0x{VF_OFF:x}\ns_addc_u32 s21, s17, 0", f"s_add_u32 s16, s16, 0x{KF_OFF:x}\ns_addc_u32 s17, s17, 0",
             "s_and_b32 s17, s17, 0xffff", "s_and_b32 s21, s21, 0xffff", "s_lshl_b32 s31, s29, 20", "s_sub_u32 s18, 0xf84000, s31",
             "s_mov_b32 s22, s18",
             f"s_add_u32 s24, s6, 0x{KVC_OFF:x}\ns_addc_u32 s25, s7, 0", "s_and_b32 s25, s25, 0xffff", "s_mov_b32 s26, 4096"]

    def kdma():
        return ("s_mov_b32 m0, s34", [f"buffer_load_dwordx4 v{V_LANE16}, s[16:19], s32 offen offset:{i*1024}{LDF} lds" for i in range(4)],
                "s_add_u32 s32, s32, 0x80000\ns_add_u32 s34, s34, 0x4000")

    def vdma():
        return ("s_mov_b32 m0, s35", [f"buffer_load_dwordx4 v{V_LANE16}, s[20:23], s33 offen offset:{i*1024}{LDF} lds" for i in range(4)],
                "s_add_u32 s33, s33, 0x80000\ns_add_u32 s35, s35, 0x4000")

    NL = ENV('NL', 29)
    NE0 = (NS * 32 + NL - 1) // NL
    sn, sl_, nx, nw = NE0, 0, 3, 2
    assert NL <= PPOLL + 2
    S0 = ENV("S0", 0)
    for ks in range(32):
        st, sp = ks // 2, ks % 2
        ops = []
        rd = []
        if ks < 31:
            rd = spread(wreads(st, 1, 1) if sp == 0 else wreads(st + 1, 0, 0), "M", 0, 22)
        ops += rd
        grps, tags = [], []
        while nw < 16 and ((sp == 1 and nw <= st + DW) or (ks == 0 and nw < DW)):
            grps.append(wdma(nw)); tags.append(f"W{nw}"); nw += 1
        for _ in range(2):
            if nx < 32 and nx <= ks + DX:
                grps.append(xloads(nx)); tags.append(f"X{nx}"); nx += 1
        while sl_ < 32 and sl_ < ((ks + 1) * 32 + NL - 1) // NL:
            grps.append(kvstore(sl_, "s[48:51]")); tags.append("L"); sl_ += 1
        early = []
        while ks < NS and sn < 32 and sn < NE0 + ((ks + 1) * (32 - NE0) + NS - 1) // NS:
            m_, l_, _ = kvstore(sn, "s[48:51]")
            early += [m_, l_[0]]
            sn += 1
        head = []
        if ks == 0:
            ops += spread(kvsrd, "S", 6, 30)
        if ks == PSIG:
            head = [when("s_cmp_eq_u32 s56, 0", one_lane(f"buffer_atomic_add v{ONE}, v{ZERO}, s[24:27], s54 offen sc1"), 0)]
            ops += spread(k2.kv_first(), "S", 8, 20)
        if ks == 24:
            ops.append(Op("v_add_co_u32 v2, vcc, 0x4000, v2\ns_nop 1\nv_addc_co_u32 v3, vcc, 0, v3, vcc\n" + cpf, "B", 29))
        if ks == PPOLL:
            head = [when("s_cmp_eq_u32 s30, 0", f"buffer_load_dword v{VPOLL}, v{ZERO}, s[24:27], s55 offen sc1", 0)]
            qpoll = len(queue)
        if ks == PPOLL + 2:
            grps += [kdma(), kdma()]; tags += ["K0", "K1"]
        if ks == PPOLL + 3:
            grps += [vdma(), kdma()]; tags += ["V0", "K2"]
        if ks == PPOLL + 4:
            grps += [vdma()]; tags += ["V1"]
        ops += head
        if grps:
            g, gl_ = grp_sched(grps, 1, 27, after=head)
            ops += g
        if ks == NS - 1:
            early.append("s_mov_b32 s50, 0")
        if early:
            ops.append(when("s_cmp_eq_u32 s45, 0", "\n".join(early), 29, after=gl_))
        for gr, tg in zip(grps, tags):
            queue += [tg] * len(gr[1])
        if ks == NS - 1:
            assert sn == 32 and sl_ == NE0
            qearly = len(queue)
        if ks < 31:
            nk = ks + 1
            wv = younger(f"X{nk}")
            if nk % 2:
                wv = min(wv, younger(f"W{nk // 2 + 1}"))
            if nk == PSIG:
                wv = min(wv, len(queue) - qearly)
            wv = min(wv, 63)
            prevw = wv
            wtxt = f"s_waitcnt vmcnt({wv}) lgkmcnt(0)"
            if ks == PPOLL + 1:
                ops.append(when("s_cmp_eq_u32 s30, 0", f"s_waitcnt vmcnt({len(queue) - qpoll})\n" + spin_text(a, "s55", 2), 29, lo=28, after=[o for o in ops if o.cls == "V"]))
            if nk % 2:
                wtxt = tr_wrap(wtxt + "\ns_barrier") if nk % 4 == 1 else wtxt + "\ns_barrier"
            ops.append(Op(wtxt, "S", 31, lo=31, hard=31, after=[o for o in ops if o.cls in "MVB"]))
        mf = []
        for db in range(8):
            for qb in range(4):
                k, c = qacc(db, qb)
                r = f"{k}[{c}:{c+3}]"
                mf.append(mfma16(r, aq(QF[sp] + 4 * db), aq(XS(ks) + 4 * qb), "0" if ks == 0 else r))
        schedule(a, mf, ops)
    assert PPOLL + 4 <= 31
    stamp(a, 3)
    assert younger("L") >= 8
    a("s_add_u32 s3, s54, 64")
    a("s_add_u32 s5, s55, 64")
    a("s_mov_b32 s63, s57")
    late = dict(
        sig=when("s_cmp_eq_u32 s63, 0", one_lane(f"buffer_atomic_add v{ONE}, v{ZERO}, s[24:27], s3 offen sc1"), 0).text,
        poll=lambda: when("s_cmp_eq_u32 s30, 0", "buffer_load_dword v58, v59, s[24:27], s5 offen sc1", 2),
        gate=lambda **kw: when("s_cmp_eq_u32 s30, 0", "s_waitcnt vmcnt(0)\n" + spin_text(a, "s5", 14, 58, 59), 29, **kw))
    attention_phase(a, end, 0, qacc, late, stubs=stubs, next_code=None if ('nocpf' in KO or os.environ.get('WHICH')) else 'k3_kernel')
    a.end_kernel(name, 256, 256)
    a.launch(name, 256, 256, 163840)
```

```python
from common import *
from sched import Op, spread, schedule, resolve_lgkm
import common
import math, struct

QSCALE = struct.unpack("<I", struct.pack("<f", math.log2(math.e) / math.sqrt(128.0)))[0]
THRESH = 0x40004000
REFBITS = 0x41400000

V_LANE16 = 1
V_K = 2
V_V = 3
V_VV = 4
V_NINF = 5
V_T = 6
V_T2 = 7
NEGM = 8
LQ = [12, 48, 248, 252]
ONES = 60
REF = 12.0
CIN = 16
DL = 52
V_C = 57
V_LANEV = 56
Q = 64
S = [128, 160]
P = [192, 208]
TMP = 224
V_PF = 228
V_PS = 229
A_R = 224
ET = 232
A_O = 0
A_K = 128
A_V = 192


LDF = ' sc1'
import os
VT = int(os.environ.get('VT', '4'))
import os
KN = set(os.environ.get("KN", "").split(","))


def vq(b):
    return f"v[{b}:{b+3}]"


def aq(b):
    return f"a[{b}:{b+3}]"


def slot_of(typ, kb, qb):
    if typ == "D":
        return kb * 4 + qb
    return (kb % 2) * 4 + (kb // 2) * 2 + (qb - 2)


def qk_mfmas(typ, par, ko=0):
    out = []
    kbs, qbs = (range(2), range(4)) if typ == "D" else (range(4), range(2, 4))
    for kb in kbs:
        for c in range(4):
            for qb in qbs:
                sl = slot_of(typ, kb, qb)
                d = vq(S[par] + 4 * sl)
                cc = vq(CIN + 4 * sl) if c == 0 else d
                out.append(mfma16(d, aq(A_K + ko + (kb * 4 + c) * 4), vq(Q + (qb * 4 + c) * 4), cc))
    return out


def pv_mfmas(typ, par):
    out = []
    if typ == "D":
        for qb in range(4):
            out.append(mfma16(vq(LQ[qb]), vq(ONES), vq(P[par] + 4 * qb), vq(LQ[qb])))
        for db in range(8):
            for qb in range(4):
                o = aq(A_O + (db * 4 + qb) * 4)
                out.append(mfma16(o, aq(A_V + db * 4), vq(P[par] + 4 * qb), o))
    else:
        for j in range(4):
            out.append(mfma16(vq(LQ[2 + j % 2]), vq(ONES), vq(P[par] + 4 * j), vq(LQ[2 + j % 2])))
        for ks in range(2):
            for db in range(8):
                for qb in range(2, 4):
                    o = aq(A_O + (db * 4 + qb) * 4)
                    out.append(mfma16(o, aq(A_V + (ks * 8 + db) * 4), vq(P[par] + 4 * (ks * 2 + qb - 2)), o))
    return out


def k_reads(typ):
    n = 8 if typ == "D" else 16
    out = [f"ds_read_b128 {aq(A_K + 4*i)}, v{V_K} offset:{i*1024}" for i in range(n)]
    out.append(f"v_add_u32 v{V_K}, {n*1024}, v{V_K}\nv_and_b32 v{V_K}, 0xffff, v{V_K}")
    return out


def v_reads(typ):
    n = 8 if typ == "D" else 16
    out = [f"ds_read_b128 {aq(A_V + 4*i)}, v{V_V} offset:{i*1024}" for i in range(n)]
    out.append(f"v_add_u32 v{V_V}, {n*1024}, v{V_V}\nv_and_b32 v{V_V}, 0xffff, v{V_V}\nv_or_b32 v{V_V}, 0x10000, v{V_V}")
    return out


def sm_stream(par):
    ops = []
    for j in range(4):
        for half in range(2):
            sl = j + 4 * half
            for r in range(4):
                ops.append(f"v_exp_f32 v{ET+r}, v{S[par] + 4*sl + r}")
            ops.append("s_nop 0")
            for pr in range(2):
                ops.append(f"v_cvt_pk_bf16_f32 v{P[par] + 4*j + 2*half + pr}, v{ET+2*pr}, v{ET+2*pr+1}")
    return ops


def dma_group(mall=None):
    out = []
    if "nodma" in KN: return []
    for i in range(4):
        t = ""
        if i == 0:
            t = "s_mov_b32 m0, s34\ns_nop 0\n"
        out.append(t + f"buffer_load_dwordx4 v{V_LANE16}, s[16:19], s32 offen offset:{i*1024}{LDF} lds")
    for i in range(4):
        t = ""
        if i == 0:
            t = "s_mov_b32 m0, s35\ns_nop 0\n"
        out.append(t + f"buffer_load_dwordx4 v{V_LANE16}, s[20:23], s33 offen offset:{i*1024}{LDF} lds")
    if mall:
        l = mall.uid("k2_mpf")
        out.append(f"s_add_u32 s61, s61, 1\ns_and_b32 s31, s61, 3\ns_cbranch_scc1 {l}\n"
                   f"buffer_load_dword v{V_T2}, v{V_PF}, s[12:15], s62 offen\ns_add_u32 s62, s62, 0x2000\n{l}:")
    out.append("s_add_u32 s32, s32, 0x80000\ns_add_u32 s33, s33, 0x80000\n"
               "s_add_u32 s34, s34, 0x4000\ns_and_b32 s34, s34, 0xffff\n"
               "s_add_u32 s35, s35, 0x4000\ns_and_b32 s35, s35, 0xffff\ns_or_b32 s35, s35, 0x10000")
    return out


def cin_prep(a, typ):
    a(f"s_sub_u32 s40, s36, s{38 if typ == 'D' else 39}")
    a(f"v_subrev_u32 v{V_T}, s40, v{V_VV}")
    kbs, qbs = (range(2), range(2)) if typ == "D" else (range(4), range(2, 4))
    diffs = sorted({kb - (qb % 2) for kb in kbs for qb in qbs})
    for di, df in enumerate(diffs):
        base = 44
        for r in range(4):
            a(f"v_cmp_gt_i32 s[{base+2*r}:{base+2*r+1}], {16*df + r}, v{V_T}")
        first = True
        for kb in kbs:
            for qb in qbs:
                if kb - (qb % 2) != df:
                    continue
                if first:
                    a("s_nop 1")
                    first = False
                for r in range(4):
                    a(f"v_cndmask_b32 v{CIN + 4*slot_of(typ, kb, qb) + r}, v{NEGM+qb}, v{V_NINF}, s[{base+2*r}:{base+2*r+1}]")
    a("s_nop 1")


def row_max(a, typ, par, clamp0):
    qbs = list(range(4) if typ == "D" else range(2, 4))
    for qb in qbs:
        sls = [slot_of(typ, kb, qb) for kb in (range(2) if typ == "D" else range(4))]
        rs = [S[par] + 4 * sl + r for sl in sls for r in range(4)]
        d = DL + qb
        a(f"v_max_f32 v{d}, v{rs[0]}, v{rs[1]}")
        for i in range(2, len(rs), 2):
            a(f"v_max3_f32 v{d}, v{d}, v{rs[i]}, v{rs[i+1]}")
    for sw in ("v_permlane16_swap_b32", "v_permlane32_swap_b32"):
        for qb in qbs:
            a(f"v_mov_b32 v{TMP+qb}, v{DL+qb}")
        a("s_nop 1")
        for qb in qbs:
            a(f"{sw} v{DL+qb}, v{TMP+qb}")
        a("s_nop 1")
        for qb in qbs:
            a(f"v_max_f32 v{DL+qb}, v{DL+qb}, v{TMP+qb}")
    for qb in qbs:
        a(f"v_add_f32 v{DL+qb}, 0x{REFBITS:x}, v{DL+qb}")
        if clamp0:
            a(f"v_max_f32 v{DL+qb}, 0, v{DL+qb}")


def qb_of_slot(typ, sl):
    return sl % 4 if typ == "D" else 2 + (sl % 2)


def rare_path(a, sm_typ, qk_typ, par, ret):
    a("s_nop 7")
    row_max(a, sm_typ, par, True)
    qbs = range(4) if sm_typ == "D" else range(2, 4)
    for sl in range(8):
        for r in range(4):
            x = S[par] + 4 * sl + r
            a(f"v_sub_f32 v{x}, v{x}, v{DL + qb_of_slot(sm_typ, sl)}")
    if qk_typ is not None:
        for sl in range(8):
            for r in range(4):
                x = S[1 - par] + 4 * sl + r
                a(f"v_sub_f32 v{x}, v{x}, v{DL + qb_of_slot(qk_typ, sl)}")
                x = CIN + 4 * sl + r
                a(f"v_sub_f32 v{x}, v{x}, v{DL + qb_of_slot(qk_typ, sl)}")
    for qb in qbs:
        a(f"v_sub_f32 v{NEGM+qb}, v{NEGM+qb}, v{DL+qb}")
        a(f"v_exp_f32 v{DL+qb}, -v{DL+qb}")
    a("s_nop 0")
    for qb in qbs:
        a(f"v_mul_f32 v{LQ[qb]}, v{LQ[qb]}, v{DL+qb}")
    for db in range(8):
        for qb in qbs:
            o = A_O + (db * 4 + qb) * 4
            for r in range(4):
                a(f"v_accvgpr_read_b32 v{TMP+r}, a{o+r}")
            for r in range(4):
                a(f"v_mul_f32 v{TMP+r}, v{TMP+r}, v{DL+qb}")
            for r in range(4):
                a(f"v_accvgpr_write_b32 a{o+r}, v{TMP+r}")
    for t in sm_stream(par):
        a(t)
    a("s_nop 1")
    a(f"s_branch {ret}")


def sm_ops(par, lo, hi, sub=False):
    ops, cvts = [], []
    users = {}
    n = 0
    chk = None
    for j in range(4):
        for half in range(2):
            sl = j + 4 * half
            for pr in range(2):
                t = ET + (n % 8) * 2
                w = lo + (hi - lo) * n / 16.0
                step = (hi - lo) / 16.0
                s0 = S[par] + 4 * sl + 2 * pr
                war = users.get(t, [])
                sb = []
                if sub:
                    sb = [Op(f"v_sub_f32 v{s0+k}, v{s0+k}, v{DL+j}", "A", w - step) for k in range(2)]
                    ops += sb
                e0 = Op(f"v_exp_f32 v{t}, v{s0}", "E", w, after=war + sb)
                e1 = Op(f"v_exp_f32 v{t+1}, v{s0+1}", "E", w + step / 2, after=war + sb)
                cv = Op(f"v_cvt_pk_bf16_f32 v{P[par] + n}, v{t}, v{t+1}", "A", w + step * 1.1, after=[e0, e1])
                assert n == 4 * j + 2 * half + pr
                users[t] = [cv]
                ops += [e0, e1, cv]
                cvts.append(cv)
                p = P[par]
                if n == 2:
                    chk = Op(f"v_or3_b32 v{V_C}, v{p}, v{p+1}, v{p+2}", "A", w + step * 1.6, after=cvts[-3:])
                elif n > 2 and n % 2 == 0:
                    chk = Op(f"v_or3_b32 v{V_C}, v{V_C}, v{p+n-1}, v{p+n}", "A", w + step * 1.6, after=cvts[-2:] + [chk])
                elif n == 15:
                    chk = Op(f"v_bitop3_b32 v{V_C}, v{V_C}, v{p+n}, s37 bitop3:0xa8", "A", w + step * 1.4, after=[cv, chk])
                else:
                    n += 1
                    continue
                ops.append(chk)
                n += 1
    return ops, chk, cvts


def nfr(typ):
    return 8 if typ == "D" else 16


def rd_text(which, i):
    base, va = (A_K, V_K) if which == "K" else (A_V, V_V)
    return f"ds_read_b128 {aq(base + 4*i)}, v{va} offset:{i*1024}"


def ptr_ops(typ, which, lo, want, after):
    va, sp, lane = (V_K, 52, V_LANE16) if which == "K" else (V_V, 53, V_LANEV)
    s1 = Op(f"s_add_u32 s{sp}, s{sp}, {nfr(typ)*1024}", "S", lo + 1, lo=lo)
    s2 = Op(f"s_and_b32 s{sp}, s{sp}, 0xffff", "S", lo + 3, lo=lo, after=[s1])
    up = Op(f"v_add_u32 v{va}, s{sp}, v{lane}", "A", want, after=list(after) + [s2])
    return [s1, s2, up]


def dma_ops(h, lo, hi, after):
    srd, so, lp = (("s[16:19]", 32, 34), ("s[20:23]", 33, 35))[h]
    step = (hi - lo - 1) / 4.0
    m = Op(f"s_mov_b32 m0, s{lp}", "S", lo, lo=lo, after=after)
    ops = [m]
    last = None
    for i in range(4):
        v = Op(f"buffer_load_dwordx4 v{V_LANE16}, {srd}, s{so} offen offset:{i*1024}{LDF} lds", "V", lo + 1 + step * i, lo=lo,
               after=[last] if last else [], prev_gap=[m], hard=hi - 1)
        ops.append(v)
        last = v
    b = [Op(f"s_add_u32 s{so}, s{so}, 0x80000", "S", lo + 2 + step * 3, after=[last])]
    b.append(Op(f"s_add_u32 s{lp}, s{lp}, 0x4000", "S", lo + step, after=[m]))
    b.append(Op(f"s_and_b32 s{lp}, s{lp}, 0xffff", "S", lo + step * 2, after=[b[-1]]))
    if h:
        b.append(Op(f"s_or_b32 s{lp}, s{lp}, 0x10000", "S", lo + step * 2.5, after=[b[-1]]))
    return ops + b, last


def side_ops(lo, hi, load=True):
    step = (hi - lo) / (8.0 if load else 4.0)
    ops = spread([f"buffer_store_dwordx4 {aq(A_R + 4*i)}, v{V_PS}, s[8:11], s58 offen offset:{i*256} sc1" for i in range(4)], "V", lo, lo + 4 * step)
    if not load:
        return ops, ops[-1]
    sa = spread(["s_and_b32 s60, s62, 31", "s_lshr_b32 s61, s62, 5", "s_mul_i32 s57, s60, s54", "s_mul_i32 s4, s61, s55", "s_add_u32 s57, s57, s4",
                 "s_add_u32 s62, s62, 1"], "S", lo, lo + 3 * step)
    sb = spread(["s_lshl_b32 s58, s61, 17", "s_lshl_b32 s60, s60, 10", "s_add_u32 s58, s58, s60", "s_mov_b32 s10, s59"], "S", lo + 4 * step, lo + 7 * step)
    sb[0].after += [ops[-1], sa[-1]]
    prev = [ops[-1], sa[-1]]
    for i in range(4):
        o = Op(f"buffer_load_dwordx4 {aq(A_R + 4*i)}, v{V_PF}, s[12:15], s57 offen", "V", lo + (4 + i) * step, after=prev)
        ops.append(o)
        prev = [o]
        if i < 3:
            u = Op("s_add_u32 s57, s57, s56", "S", lo + (4.4 + i) * step, after=[o])
            ops.append(u)
            prev = [u]
    return ops + sa + sb, o


def body(a, outl, u_par, qk, sm, pv, vread, sync, prep, dk=None, dv=None, tail=(), first=False, side=None):
    par = u_par
    mf = (pv_mfmas(pv, 1 - par) if pv else []) + (qk_mfmas(qk, 1 - par, 32 if first else 0) if qk else [])
    n1 = 36 if pv else 0
    n = len(mf)
    ops, pre = [], []
    carried = []
    lupd = None
    chain = []
    vup = None

    def add_reads(which, idxs, lo, hi, extra=(), los=None):
        out = []
        for k, i in enumerate(idxs):
            o = Op(rd_text(which, i), "M", lo + (hi - lo) * k / len(idxs), lo=(los[k] if los else lo) , after=(chain[-1:] + list(extra)))
            chain.append(o)
            out.append(o)
        return out

    def waits(which, typ, g0, rds):
        m = nfr(typ)
        base = A_K if which == "K" else A_V
        for i in range(0, m, 2):
            g = g0 + i * (32 // m) - 1
            need = [rds[j] for j in (i, i + 1) if rds.get(j) is not None]
            t = f"@LGKM {base + 4*(i+1)}"
            if g < 0:
                pre.append(t)
            else:
                for r in need:
                    r.hard = max(0, g - 4) if r.hard is None else r.hard
                ops.append(Op(t, "S", g, lo=g, hard=g, after=need))

    bar = None
    dlast = []
    if dv:
        o, l = dma_ops(1, dv[0], dv[1], [])
        ops += o
        dlast.append(l)
    if sync == "mid":
        bar = Op("s_waitcnt vmcnt(12)\ns_barrier", "S", n1, lo=n1, hard=n1, after=dlast)
    elif sync == "end":
        bar = Op("s_waitcnt vmcnt(8)\ns_barrier", "S", n - 1, lo=n - 1, hard=n - 1, after=dlast)
    elif sync == "epi":
        bar = Op("s_waitcnt vmcnt(0)\ns_barrier", "S", 0, lo=0, hard=0)
    if first:
        po = first["poll"]()
        ga = first["gate"](lo=n - 3, hard=n - 2, after=[po])
        ops += [po, ga]
        bar.after.append(ga)
    if bar:
        ops.append(bar)
    kafter = [bar] if sync == "mid" else []
    if side is not None and "nomall" not in KN:
        o, l = side_ops(1, dk[0], side)
        ops += o
        kafter = [l]
    if dk:
        o, l = dma_ops(0, dk[0], dk[1], kafter)
        ops += o
    if pv:
        m = nfr(pv)
        if sm or qk:
            mt = m * VT // 8
            carried = [A_V + 4 * i for i in range(mt)]
            r = add_reads("V", range(mt, m), 0, 32 - 4 * VT)
            ops += r
            po = ptr_ops(pv, "V", 2, 36 - 4 * VT, r[-1:])
            vup = po[-1]
            ops += po
            waits("V", pv, 4, dict(zip(range(mt, m), r)))
        else:
            carried = [A_V + 4 * i for i in range(m)]
            waits("V", pv, 4, {})
    if qk:
        m = nfr(qk)
        if pv:
            r = add_reads("K", range(m), 33 - 4 * VT, 66 - 4 * VT)
            ops += r + ptr_ops(qk, "K", 44, 70 - 4 * VT, r[-1:])
            waits("K", qk, n1, dict(zip(range(m), r)))
        elif not first:
            pre.append("s_waitcnt lgkmcnt(0)")
        if prep:
            pl, pr = a.uid("k2_prep"), a.uid("k2_prepret")
            if prep == "cond":
                t = f"s_cmp_ge_u32 s36, s{42 if qk == 'D' else 43}\ns_cbranch_scc1 {pl}\n{pr}:"
            else:
                t = f"s_branch {pl}\n{pr}:"
            outl.append(("prep", pl, qk, pr))
            if pv:
                ops.append(Op(t, "B", 24, lo=4, hard=n1 - 3))
            else:
                pre.append(t)
        ops.append(Op(f"s_add_u32 s36, s36, {32 if qk == 'D' else 64}", "S", n1 + 4, lo=n1))
    if vread:
        m = nfr(vread)
        ex = ([vup] if vup else []) + ([bar] if sync in ("mid", "epi") else [])
        if qk:
            ops += add_reads("V", range(m * VT // 8), n - 1 - 4 * VT, n - 2, ex)
        else:
            ops += add_reads("V", range(m), 18, n + 4, ex, los=[2 * i + 6 for i in range(m)])
    if sm:
        so, chk, cvts = sm_ops(par, 1 if first else 0, n - 4, sub=bool(first))
        ops += so
        rl, ret = a.uid("k2_rare"), a.uid("k2_ret")
        c3 = Op(f"v_cmp_ne_u32 vcc, 0, v{V_C}", "A", n - 2, after=[chk])
        c4 = Op(f"s_cbranch_vccnz {rl}\n{ret}:", "B", n + 99, lo=n, after=[c3] + cvts)
        ops += [c3, c4]
        outl.append(("rare", rl, sm, qk, par, ret))
    for t in tail:
        ops.append(Op(t, "S", n - 8))
    start = len(a.lines)
    for t in pre:
        a(t)
    schedule(a, mf, ops)
    resolve_lgkm(a.lines, start, carried)
    for i in range(start, len(a.lines)):
        t = a.lines[i]
        if "nods" in KN and "ds_read" in t: a.lines[i] = f"    v_mov_b32 v{V_T2}, v{V_T2}"
        if "nodma" in KN and " lds" in t: a.lines[i] = f"    v_mov_b32 v{V_T2}, v{V_T2}"
        if "nobar" in KN and "s_barrier" in t: a.lines[i] = "    s_nop 0"
        if "nolgkm" in KN and "lgkmcnt" in t: a.lines[i] = "    s_nop 0"
        if KN & {"nods", "nodma", "nobar", "nolgkm"} and "s_cbranch_vccnz" in t: a.lines[i] = "    s_nop 0"


def kv_first():
    out = ["s_mov_b32 s32, s60", "s_mov_b32 s34, s60", "s_mov_b32 s33, s60", "s_add_u32 s35, s60, 0x10000"]
    return out


def out_ops(qb, c, t, pk):
    tx = []
    for hh in range(2):
        o = A_O + ((2 * c + hh) * 4 + qb) * 4
        tx += [f"v_accvgpr_read_b32 v{t+4+hh*4+r}, a{o+r}" for r in range(4)]
    if pk:
        tx += [f"v_pk_mul_f32 v[{t+4+r}:{t+5+r}], v[{t+4+r}:{t+5+r}], v[{LQ[qb]}:{LQ[qb]+1}]" for r in range(0, 8, 2)]
    else:
        tx += [f"v_mul_f32 v{t+4+r}, v{t+4+r}, v{LQ[qb]}" for r in range(8)]
    tx += [f"v_cvt_pk_bf16_f32 v{t+r}, v{t+4+2*r}, v{t+5+2*r}" for r in range(4)]
    st = f"buffer_store_dwordx4 v[{t}:{t+3}], v{V_LANE16}, s[24:27], s{44+c} offen offset:{(qb%2)*1024} sc1"
    return tx, st


def l_final(qbs):
    tx = []
    for sw in ("v_permlane16_swap_b32", "v_permlane32_swap_b32"):
        tx += [f"v_mov_b32 v{LQ[q]+1}, v{LQ[q]}" for q in qbs] + ["s_nop 1"]
        tx += [f"{sw} v{LQ[q]}, v{LQ[q]+1}" for q in qbs] + ["s_nop 1"]
        tx += [f"v_add_f32 v{LQ[q]}, v{LQ[q]}, v{LQ[q]+1}" for q in qbs]
    tx += [f"v_rcp_f32 v{LQ[q]+1}, v{LQ[q]}" for q in qbs] + [f"v_rcp_f32 v{LQ[q]}, v{LQ[q]}" for q in qbs] + ["s_nop 0"]
    return tx


def ctx_base(srow):
    return ["s_lshl_b32 s31, s28, 19", f"s_lshl_b32 s44, s{srow}, 6", "s_add_u32 s44, s44, s31"] + \
           [f"s_add_u32 s{44+c}, s44, {c*0x20000}" for c in range(1, 4)]


def attention_phase(a, end, kidx, qsrc, late, stubs=(), next_code=None):
    a(f"s_load_dwordx2 s[44:45], s[0:1], {ARG['wo']}")
    a(f"s_load_dwordx2 s[46:47], s[0:1], {ARG['wg']}")
    a(f"s_load_dwordx4 s[48:51], s[0:1], {ARG['wu']}")
    a(f"s_mov_b32 s40, 0x{QSCALE:x}")
    a(f"s_mov_b32 s41, 0x{QSCALE:x}")
    for t in dma_group():
        a(t)
    a(f"v_mov_b32 v{V_K}, v{V_LANE16}")
    a(f"v_or_b32 v{V_V}, 0x10000, v{V_LANE16}")
    a(f"v_mov_b32 v{V_LANEV}, v{V_V}")
    a("s_mov_b32 s52, 0x4000")
    a("s_mov_b32 s53, 0")
    a("s_mul_i32 s62, s28, 63")
    a("s_mul_i32 s31, s29, s29")
    a("s_add_u32 s62, s62, s31")
    a("s_sub_u32 s62, s62, 1")
    a("s_cmp_eq_u32 s30, 0")
    a("s_cselect_b32 s14, 0x800000, 0x0")
    a("s_max_u32 s14, s14, 0x700000")
    a("s_sub_u32 s31, s30, 1")
    a("s_lshl_b32 s4, s31, 23")
    a(f"s_add_u32 s4, s4, 0x{RPK_OFF:x}")
    a("s_add_u32 s8, s6, s4")
    a("s_addc_u32 s9, s7, 0")
    a("s_and_b32 s9, s9, 0xffff")
    a("s_mov_b32 s10, 0")
    a("s_mov_b32 s58, 0")
    a("s_mov_b32 s54, 4096")
    a("s_mov_b32 s55, 0x20000")
    a("s_mov_b32 s56, 1024")
    a("s_cmp_lt_u32 s31, 2")
    a(f"s_cselect_b32 s54, {32*7168}, s54")
    a("s_cselect_b32 s55, 128, s55")
    a(f"s_cselect_b32 s56, {8*7168}, s56")
    a("s_cselect_b32 s59, 0x700000, 0")
    a("s_cmp_eq_u32 s29, 0")
    a("s_cselect_b32 s14, 0, s14")
    a("s_cselect_b32 s59, 0, s59")
    a("s_cselect_b32 s62, 0, s62")
    a("s_waitcnt vmcnt(16) lgkmcnt(0)")
    a("s_barrier")
    a(late["sig"])
    a("v_mov_b32 v59, 0")
    for i in range(16):
        a(rd_text("K", i))
    a("s_cmp_eq_u32 s30, 1")
    a("s_cselect_b64 s[12:13], s[46:47], s[44:45]")
    a("s_cmp_eq_u32 s30, 2")
    a("s_cselect_b64 s[12:13], s[48:49], s[12:13]")
    a("s_cmp_eq_u32 s30, 3")
    a("s_cselect_b64 s[12:13], s[50:51], s[12:13]")
    a("s_and_b32 s13, s13, 0xffff")
    for qb in (2, 3, 0, 1):
        for c in range(4):
            for hh in range(2):
                kind, x = qsrc(2 * c + hh, qb)
                if kind == "a":
                    y = 128 + (c % 2) * 8 + hh * 4
                    for r in range(4):
                        a(f"v_accvgpr_read_b32 v{y+r}, a{x+r}")
                    x = y
                a(f"v_pk_mul_f32 v[{x}:{x+1}], v[{x}:{x+1}], s[40:41]")
                a(f"v_pk_mul_f32 v[{x+2}:{x+3}], v[{x+2}:{x+3}], s[40:41]")
                d = Q + (qb * 4 + c) * 4 + 2 * hh
                a(f"v_cvt_pk_bf16_f32 v{d}, v{x}, v{x+1}")
                a(f"v_cvt_pk_bf16_f32 v{d+1}, v{x+2}, v{x+3}")
    a(f"v_add_u32 v{V_K}, 0x4000, v{V_LANE16}")
    for i in range(4):
        a(f"v_mov_b32 v{NEGM+i}, 0")
        a(f"v_mov_b32 v{ET+i}, 0")
    a("s_mov_b32 s36, 0")
    a(f"s_mov_b32 s37, 0x{THRESH:x}")
    zero_acc(a, CIN, 32, ET, "v", init=False)
    a(f"v_and_b32 v{V_T}, 0xf0, v{V_LANE16}")
    a(f"v_cmp_eq_u32 vcc, 0, v{V_T}")
    a(f"v_mov_b32 v{V_T}, 0x3f803f80")
    a(f"v_lshrrev_b32 v{V_PS}, 7, v{V_LANE16}")
    a("s_lshr_b32 s4, s56, 3")
    a(f"v_mul_u32_u24 v{V_PF}, s4, v{V_PS}")
    a(f"v_and_b32 v{V_T2}, 0x70, v{V_LANE16}")
    a(f"v_add_u32 v{V_PF}, v{V_PF}, v{V_T2}")
    a(f"v_lshlrev_b32 v{V_PS}, 5, v{V_PS}")
    a(f"v_and_b32 v{V_C}, 0x10, v{V_LANE16}")
    a(f"v_add_u32 v{V_PS}, v{V_PS}, v{V_C}")
    a(f"v_lshrrev_b32 v{V_T2}, 5, v{V_T2}")
    a(f"v_lshl_add_u32 v{V_PS}, v{V_T2}, 15, v{V_PS}")
    for r in range(4):
        a(f"v_cndmask_b32 v{ONES+r}, 0, v{V_T}, vcc")
    for i in range(4):
        for r in range(4):
            a(f"v_mov_b32 v{LQ[i]+r}, 0")
    stamp(a, 4)
    outl = []
    body(a, outl, 1, "D", None, None, None, None, "cond")
    zero_acc(a, 0, 128, ET, init=False)
    row_max(a, "D", 0, False)
    for sl in range(8):
        for r in range(4):
            a(f"v_sub_f32 v{CIN+4*sl+r}, 0, v{DL + sl % 4}")
    for qb in range(4):
        a(f"v_sub_f32 v{NEGM+qb}, 0, v{DL+qb}")
    body(a, outl, 0, "D", "D", None, "D", "end", "cond", first=late)
    a.srd_off(24, 6, CTX_OFF, 16 << 20)
    a("s_lshl_b32 s63, s29, 1")
    a("s_add_u32 s63, s63, 1")
    loop = a.uid("k2_dloop")
    a.label(loop)
    body(a, outl, 1, "D", "D", "D", "D", None, "cond", dk=(42, 66), side=True)
    body(a, outl, 0, "D", "D", "D", "D", "end", "cond", dv=(2, 64), tail=["s_sub_u32 s63, s63, 1"])
    a("s_cmp_lg_u32 s63, 0")
    a(f"s_cbranch_scc1 {loop}")
    stamp(a, 5)
    body(a, outl, 1, "S", "D", "D", "D", None, "always", dk=(30, 64), side=False)
    body(a, outl, 0, "S", "S", "D", "S", "mid", "cond", dv=(1, 35), dk=(37, 67))
    for t in ctx_base(38) + l_final([0, 1]):
        a(t)
    n = 0
    for qb in range(2):
        for c in range(4):
            tx, st = out_ops(qb, c, Q + (n % 2) * 12, True)
            n += 1
            for t in tx + [st]:
                a(t)
    a("s_lshl_b32 s63, s29, 1")
    a("s_sub_u32 s63, 14, s63")
    loop, done = a.uid("k2_sloop"), a.uid("k2_sdone")
    a("s_cmp_eq_u32 s63, 0")
    a(f"s_cbranch_scc1 {done}")
    a.label(loop)
    body(a, outl, 1, "S", "S", "S", "S", "mid", "cond", dv=(1, 35), dk=(37, 67))
    body(a, outl, 0, "S", "S", "S", "S", "mid", "cond", dv=(1, 35), dk=(37, 67), tail=["s_sub_u32 s63, s63, 1"])
    a("s_cmp_lg_u32 s63, 0")
    a(f"s_cbranch_scc1 {loop}")
    a.label(done)
    body(a, outl, 1, None, "S", "S", "S", "epi", None)
    if next_code:
        a(f"v_lshrrev_b32 v{V_T}, 4, v{V_LANE16}")
        a(f"v_and_b32 v{V_T}, 31, v{V_T}")
        code_addr(a, next_code, TMP, V_T, 40)
        a(f"global_load_dword v{V_T2}, v[{TMP}:{TMP+1}], off")
    mf = pv_mfmas("S", 1)
    mf = mf[:4] + [mf[4 + ks * 16 + db * 2 + q] for db in range(8) for ks in range(2) for q in range(2)]
    ops = spread(ctx_base(39), "S", 0, 8)
    lf = spread(l_final([2, 3]), "A", 8, 14)
    ops += lf
    ops.append(Op("s_waitcnt lgkmcnt(0)", "S", 3, lo=3, hard=3))
    prev = {}
    n = 0
    for c in range(4):
        for qb in (2, 3):
            t = 128 + (n % 4) * 12
            g0 = 4 + 8 * c + 7 + 4
            tx, st = out_ops(qb, c, t, False)
            o = spread(tx, "A", g0, g0 + 8)
            o[0].after += [lf[-1]] + prev.get(t, [])
            so = Op(st, "V", g0 + 8, after=[o[-1], ops[5]])
            prev[t] = [so]
            ops += o + [so]
            n += 1
    stamp(a, 6)
    schedule(a, mf, ops)
    tr_dump(a, 6, 30, V_LANE16)
    stamp_dump(a, kidx, 7, 6)
    a.label(end)
    a("s_endpgm")
    for o in outl:
        if o[0] == "prep":
            a.label(o[1])
            cin_prep(a, o[2])
            a(f"s_branch {o[3]}")
    for (sl, txt, ret) in stubs:
        a.label(sl)
        a(txt)
        a(f"s_branch {ret}")
    for o in outl:
        if o[0] == "rare":
            a.label(o[1])
            rare_path(a, *o[2:])
```

```python
from common import *
import common, os

NSL = 224


def top2_merge(a, m1, m2, t1, t2):
    a(f"v_max_f32 v{t2}, v{t2}, v{m2}")
    a(f"v_med3_f32 v{m2}, v{m1}, v{t1}, v{t2}")
    a(f"v_max_f32 v{m1}, v{m1}, v{t1}")


def gen_k4(a, name="k4_kernel"):
    a.begin_kernel(name)
    end = a.uid("k4_end")
    lb, lln, lmm, lbout = a.uid("k4_b"), a.uid("k4_ln"), a.uid("k4_mm"), a.uid("k4_bout")
    a("s_cmp_ge_u32 s2, 256")
    a(f"s_cbranch_scc1 {end}")
    stamp(a, 0)
    a(f"s_load_dwordx8 s[4:11], s[0:1], {ARG['wr']}")
    a(f"s_load_dwordx2 s[12:13], s[0:1], {ARG['out']}")
    a(f"s_load_dwordx2 s[14:15], s[0:1], {ARG['ws']}")
    a("v_lshrrev_b32 v1, 6, v0")
    a("v_and_b32 v2, 63, v0")
    a("v_readfirstlane_b32 s44, v1")
    a("s_and_b32 s45, s2, 7")
    a("s_lshr_b32 s46, s2, 3")
    a("s_mul_i32 s45, s45, 28")
    a("s_add_u32 s45, s45, s46")
    a("v_and_b32 v4, 31, v2")
    a("v_lshrrev_b32 v5, 5, v2")
    a("v_lshlrev_b32 v7, 4, v4")
    MISC = 65536 + 4096
    a(f"v_mov_b32 v11, {MISC}")
    a("v_lshl_add_u32 v12, v2, 2, v11")
    a("v_mov_b32 v13, 0")
    a("ds_write_b32 v12, v13")
    VX, T2, KP, ST, WD = 40, 160, 200, 16, 88
    a("s_waitcnt lgkmcnt(0)")
    a("s_barrier")
    a.srd_off(20, 14, H_OFF, 4 << 20)
    a("s_cmp_ge_u32 s44, 4")
    a(f"s_cbranch_scc1 {lb}")
    a("s_setprio 3")
    a.srd_off(16, 14, STATS_OFF, WRSUM_OFF - STATS_OFF + 4)
    a("v_lshlrev_b32 v3, 5, v0")
    for j in range(3):
        a(f"s_mov_b32 s48, {j*8192}")
        a(f"buffer_load_dwordx4 v[{ST+8*j}:{ST+8*j+3}], v3, s[16:19], s48 offen")
        a(f"buffer_load_dwordx4 v[{ST+8*j+4}:{ST+8*j+7}], v3, s[16:19], s48 offen offset:16")
    a(f"s_mov_b32 s48, {WRSUM_OFF - STATS_OFF}")
    a("buffer_load_dword v10, v13, s[16:19], s48 offen")
    a.srd(32, 10, 7340032)
    a("s_cmp_ge_u32 s2, 224")
    a("s_cselect_b32 s34, 0, s34")
    a("s_mov_b32 s52, 0x3a800000")
    a("s_mov_b32 s53, 0x3a800000")
    a("s_mov_b32 s54, 0x7ff")
    a("v_mov_b32 v14, 0x3727c5ac")
    a("v_mov_b32 v15, v14")
    a("v_mov_b32 v8, 0xff800000")
    a("v_mov_b32 v9, v8")
    P = lambda r: f"v[{r}:{r+1}]"
    a("s_waitcnt vmcnt(0)")
    a("v_sub_f32 v10, 0, v10")
    a("v_mov_b32 v11, v10")
    for i in range(0, 8, 2):
        s1, s2, s3 = ST + i, ST + 8 + i, ST + 16 + i
        a(f"v_pk_mul_f32 {P(s1)}, {P(s1)}, s[52:53]")
        a(f"v_pk_fma_f32 {P(s2)}, {P(s2)}, s[52:53], {P(14)}")
        a(f"v_pk_fma_f32 {P(s3)}, {P(s1)}, {P(10)}, {P(s3)}")
        a(f"v_pk_fma_f32 {P(s2)}, {P(s1)}, {P(s1)}, {P(s2)} neg_lo:[1,0,0] neg_hi:[1,0,0]")
    for i in range(8):
        a(f"v_max_f32 v{ST+8+i}, v14, v{ST+8+i}")
    for i in range(8):
        a(f"v_rsq_f32 v{ST+8+i}, v{ST+8+i}")
    for i in range(0, 8, 2):
        a(f"v_pk_mul_f32 {P(ST+16+i)}, {P(ST+16+i)}, {P(ST+8+i)}")
    for i in range(8):
        a(f"v_bfi_b32 v{ST+16+i}, s54, {i}, v{ST+16+i}")
        a(f"v_med3_f32 v9, v8, v9, v{ST+16+i}")
        a(f"v_max_f32 v8, v8, v{ST+16+i}")
    a("v_lshl_or_b32 v8, v0, 3, v8")
    a("v_lshl_or_b32 v9, v0, 3, v9")
    for dpp in ("quad_perm:[1,0,3,2]", "quad_perm:[2,3,0,1]", "row_half_mirror", "row_mirror"):
        a("s_nop 1")
        a(f"v_mov_b32_dpp v10, v8 {dpp} row_mask:0xf bank_mask:0xf")
        a(f"v_mov_b32_dpp v11, v9 {dpp} row_mask:0xf bank_mask:0xf")
        top2_merge(a, 8, 9, 10, 11)
    for sw in ("v_permlane16_swap_b32", "v_permlane32_swap_b32"):
        a("v_mov_b32 v10, v8")
        a("v_mov_b32 v11, v9")
        a("s_nop 1")
        a(f"{sw} v8, v10")
        a(f"{sw} v9, v11")
        a("s_nop 1")
        top2_merge(a, 8, 9, 10, 11)
    a("v_mov_b32 v10, 1")
    a("v_mov_b32 v11, 1")
    a("v_lshlrev_b32 v12, 4, v1")
    a(f"v_add_u32 v12, {MISC}, v12")
    a("ds_write_b128 v12, v[8:11]")
    a(f"v_mov_b32 v12, {MISC}")
    sp = a.uid("k4_mail")
    a.label(sp)
    for w in range(4):
        a(f"ds_read_b128 v[{ST+4*w}:{ST+4*w+3}], v12 offset:{16*w}")
    a("s_waitcnt lgkmcnt(0)")
    a(f"v_and_b32 v10, v{ST+2}, v{ST+6}")
    a(f"v_and_b32 v11, v{ST+10}, v{ST+14}")
    a("v_and_b32 v10, v10, v11")
    a("v_cmp_eq_u32 vcc, 0, v10")
    a(f"s_cbranch_vccnz {sp}")
    top2_merge(a, ST, ST + 1, ST + 4, ST + 5)
    top2_merge(a, ST + 8, ST + 9, ST + 12, ST + 13)
    top2_merge(a, ST, ST + 1, ST + 8, ST + 9)
    a("v_cmp_eq_u32 vcc, 0, v5")
    a("s_lshl_b32 s52, s45, 15")
    a("v_lshlrev_b32 v9, 3, v0")
    a(f"v_cndmask_b32 v11, v{ST+1}, v{ST}, vcc")
    a("v_and_b32 v15, 0x7ff, v11")
    a("v_lshl_add_u32 v11, v15, 11, v7")
    for i in range(4):
        a(f"buffer_load_dwordx4 v[{VX+4*i}:{VX+4*i+3}], v11, s[20:23], 0 offen offset:{i*512}")
    stamp(a, 1)
    for i in range(16):
        a(f"buffer_load_dwordx2 v[{WD+2*i}:{WD+2*i+1}], v9, s[32:35], s52 offen offset:{(i%2)*2048}")
        if i % 2:
            a("s_add_u32 s52, s52, 4096")
    a("s_waitcnt vmcnt(16)")
    a.label(lln)
    ln_rows_half_wave(a, VX, T2, keep=KP)
    a("s_cmp_ge_u32 s44, 4")
    a(f"s_cbranch_scc1 {lbout}")
    stamp(a, 2)
    a("v_lshl_add_u32 v11, v5, 11, v7")
    a("v_add_u32 v12, 65536, v11")
    for i in range(4):
        a(f"ds_write_b128 v12, v[{VX+4*i}:{VX+4*i+3}] offset:{i*512}")
    a("v_lshlrev_b32 v12, 2, v5")
    a(f"v_add_u32 v12, {MISC + 128}, v12")
    a("ds_write_b32 v12, v15")
    a("s_mov_b32 s54, 0x05040100")
    a("s_mov_b32 s55, 0x07060302")
    a("s_waitcnt vmcnt(0)")
    WP = 56
    for j in range(8):
        r0, r1 = WD + 4 * j, WD + 4 * j + 2
        for h in range(2):
            a(f"v_perm_b32 v{WP+4*j+2*h}, v{r1+h}, v{r0+h}, s54")
            a(f"v_perm_b32 v{WP+4*j+2*h+1}, v{r1+h}, v{r0+h}, s55")
    a.srd_off(56, 14, PART_OFF, NSL * 8192)
    a.srd_off(60, 14, PCT_OFF, 8192)
    a("s_waitcnt lgkmcnt(0)")
    a.label(lmm)
    a("s_barrier")
    stamp(a, 3)
    lred = a.uid("k4_red")
    a("s_cmp_ge_u32 s2, 224")
    a(f"s_cbranch_scc1 {lred}")
    a("v_lshrrev_b32 v12, 4, v2")
    a("v_and_b32 v13, 1, v2")
    a("v_lshlrev_b32 v13, 11, v13")
    a("v_lshl_add_u32 v13, v12, 3, v13")
    a("s_lshl_b32 s54, s44, 8")
    a("s_add_u32 s54, s54, 65536")
    a("v_add_u32 v13, s54, v13")
    a("v_lshlrev_b32 v14, 3, v2")
    a("s_lshl_b32 s54, s44, 12")
    a("v_add_u32 v14, s54, v14")
    XF, WF = 128, 144
    for s in range(4):
        a(f"ds_read_b64 v[{XF+4*s}:{XF+4*s+1}], v13 offset:{s*64}")
        a(f"ds_read_b64 v[{XF+4*s+2}:{XF+4*s+3}], v13 offset:{s*64+32}")
        for m in range(2):
            b = WF + (m * 4 + s) * 4
            a(f"ds_read_b64_tr_b16 v[{b}:{b+1}], v14 offset:{m*32768 + s*1024}")
            a(f"ds_read_b64_tr_b16 v[{b+2}:{b+3}], v14 offset:{m*32768 + s*1024 + 512}")
    a("v_and_b32 v13, 15, v2")
    a("v_lshlrev_b32 v13, 6, v13")
    a("v_lshl_add_u32 v13, v12, 4, v13")
    a("s_lshl_b32 s54, s44, 11")
    a(f"s_add_u32 s54, s54, {MISC + 256}")
    a("v_add_u32 v13, s54, v13")
    a("s_waitcnt lgkmcnt(0)")
    for s in range(4):
        for m in range(2):
            b = WF + (m * 4 + s) * 4
            c = f"v[{16+4*m}:{19+4*m}]"
            a(mfma16(c, f"v[{b}:{b+3}]", f"v[{XF+4*s}:{XF+4*s+3}]", "0" if s == 0 else c))
    a("s_nop 7")
    a("ds_write_b128 v13, v[16:19]")
    a("ds_write_b128 v13, v[20:23] offset:1024")
    a("s_waitcnt lgkmcnt(0)")
    a("s_barrier")
    a("s_cmp_ge_u32 s44, 4")
    a(f"s_cbranch_scc1 {lln}")
    a("v_lshlrev_b32 v13, 2, v4")
    a(f"v_add_u32 v13, {MISC + 256}, v13")
    for w in range(8):
        a(f"ds_read2st64_b32 v[{16+2*w}:{17+2*w}], v13 offset0:{w*8} offset1:{w*8 + 4}")
    a("s_waitcnt lgkmcnt(0)")
    for w in range(4):
        a(f"v_pk_add_f32 {P(16+2*w)}, {P(16+2*w)}, {P(24+2*w)}")
    a(f"v_pk_add_f32 {P(16)}, {P(16)}, {P(20)}")
    a(f"v_pk_add_f32 {P(18)}, {P(18)}, {P(22)}")
    a(f"v_pk_add_f32 {P(16)}, {P(16)}, {P(18)}")
    a("v_cvt_pk_bf16_f32 v16, v16, v17")
    a("v_and_b32 v20, 0xffff0000, v16")
    a("v_lshlrev_b32 v16, 16, v16")
    a("v_mul_f32 v17, 0xbfb8aa3b, v16")
    a("v_exp_f32 v17, v17")
    a("s_lshl_b32 s54, s45, 13")
    a("v_add_f32 v17, 1.0, v17")
    a("v_rcp_f32 v17, v17")
    a("s_add_u32 s55, s54, 4096")
    a("v_mul_f32 v16, v16, v17")
    a("v_cvt_pk_bf16_f32 v16, v16, v16")
    a("v_and_b32 v16, 0xffff0000, v16")
    a("v_mul_f32 v16, v16, v20")
    a("s_nop 1")
    a("v_mov_b32_dpp v17, v16 quad_perm:[1,0,3,2] row_mask:0xf bank_mask:0xf")
    a("v_cvt_pk_bf16_f32 v16, v16, v17")
    a("v_lshlrev_b32 v13, 4, v0")
    for t in range(2):
        for j in range(8):
            a(f"v_readlane_b32 s{24 + t*8 + j}, v16, {t*16 + 2*j}")
    ACC = 24
    for t in range(2):
        for j in range(8):
            for e in range(4):
                d = ACC + t * 4 + e
                a(f"v_dot2_f32_bf16 v{d}, v{WP+4*j+e}, s{24 + t*8 + j}, {'0' if j == 0 else 'v%d' % d}")
        if t == 0:
            continue
        a("s_and_b32 s52, s45, 15")
        a("s_lshl_b32 s53, s44, 4")
        a("s_add_u32 s52, s52, s53")
        a("s_lshl_b32 s52, s52, 7")
    a(f"buffer_store_dwordx4 v[{ACC}:{ACC+3}], v13, s[56:59], s54 offen sc1")
    a(f"buffer_store_dwordx4 v[{ACC+4}:{ACC+7}], v13, s[56:59], s55 offen sc1")
    a("v_mov_b32 v12, 0")
    a("v_mov_b32 v13, 1")
    a("s_mov_b64 exec, 1")
    a("s_waitcnt vmcnt(0)")
    a("buffer_atomic_add v13, v12, s[60:63], s52 offen sc1")
    a("s_mov_b64 exec, -1")
    stamp(a, 4)
    stamp_dump(a, 3, 5, 14)
    a("s_endpgm")
    a.label(lred)
    a("s_cmp_ge_u32 s44, 4")
    a(f"s_cbranch_scc1 {lln}")
    a("s_sub_u32 s40, s2, 224")
    a("s_lshr_b32 s41, s40, 4")
    a("s_and_b32 s42, s40, 15")
    a.srd(24, 4, 2048)
    a.srd(28, 12, 4 << 20)
    for i in range(4):
        a(f"buffer_load_dwordx4 v[{56+4*i}:{59+4*i}], v7, s[24:27], 0 offen offset:{i*512}")
    a("s_lshl_b32 s43, s41, 5")
    a("v_readlane_b32 s46, v15, s43")
    a("v_and_b32 v8, 15, v0")
    a("s_lshl_b32 s47, s42, 7")
    a("v_lshl_add_u32 v9, v8, 3, s47")
    a("s_lshl_b32 s46, s46, 11")
    a("s_lshl_b32 s48, s41, 11")
    a("s_add_u32 s48, s48, 65536")
    a("v_add_u32 v12, s48, v9")
    a("ds_read_b64 v[72:73], v12")
    a("buffer_load_dwordx2 v[74:75], v9, s[20:23], s46 offen")
    a("v_lshrrev_b32 v10, 4, v0")
    a("v_lshlrev_b32 v10, 13, v10")
    a("v_lshl_add_u32 v10, v8, 4, v10")
    a("s_lshl_b32 s49, s40, 8")
    a("s_waitcnt vmcnt(1)")
    a(f"v_dot2_f32_bf16 v12, v{VX}, v56, 0")
    for i in range(1, 16):
        a(f"v_dot2_f32_bf16 v12, v{VX+i}, v{56+i}, v12")
    a("s_nop 2")
    half_wave_sum(a, 12, 13)
    a("v_cvt_pk_bf16_f32 v12, v12, v12")
    a("v_and_b32 v12, 0xffff0000, v12")
    a("v_mul_f32 v12, 0xbfb8aa3b, v12")
    a("v_exp_f32 v12, v12")
    a("v_mov_b32 v3, v8")
    a("v_add_f32 v12, 1.0, v12")
    a("v_rcp_f32 v12, v12")
    a("s_lshr_b32 s50, s42, 2")
    a("v_cvt_pk_bf16_f32 v12, v12, v12")
    a("v_and_b32 v12, 0xffff0000, v12")
    a("s_lshl_b32 s50, s50, 11")
    a("v_readlane_b32 s51, v12, s43")
    a("v_lshlrev_b32 v3, 7, v3")
    np_, lp = a.uid("k4_go"), a.uid("k4_poll")
    a("s_mov_b32 s47, s49")
    a("s_mov_b32 s30, 0")
    a("s_mov_b32 s58, 0")
    a(f"s_branch {np_}")
    again = a.uid("k4_again")
    a.label(again)
    a("s_mov_b32 s49, s47")
    a(f"s_mov_b32 s30, 0x{4 << 20:x}")
    a(f"s_mov_b32 s58, {NSL * 8192}")
    a("s_cmp_lg_u32 s44, 0")
    a(f"s_cbranch_scc1 {np_}")
    a(f"s_mov_b32 s52, {1 << 20}")
    a.label(lp)
    a(f"s_sleep {os.environ.get('K4SL', '8')}")
    a("buffer_load_dword v13, v3, s[60:63], s50 offen sc1")
    a("s_sub_u32 s52, s52, 1")
    a(f"s_cbranch_scc1 {np_}")
    a("s_waitcnt vmcnt(0)")
    a("v_cmp_gt_u32 vcc, 14, v13")
    a(f"s_cbranch_vccnz {lp}")
    a.label(np_)
    a("s_barrier")
    for i in range(14):
        a(f"buffer_load_dwordx4 v[{76+4*i}:{79+4*i}], v10, s[56:59], s49 offen sc1")
        a("s_add_u32 s49, s49, 0x20000")
    for i in range(1, 14):
        a(f"s_waitcnt vmcnt({13 - i})")
        a(f"v_pk_add_f32 v[76:77], v[76:77], v[{76+4*i}:{77+4*i}]")
        a(f"v_pk_add_f32 v[78:79], v[78:79], v[{78+4*i}:{79+4*i}]")
    for sw in ("v_permlane16_swap_b32", "v_permlane32_swap_b32"):
        for r in range(4):
            a(f"v_mov_b32 v{80+r}, v{76+r}")
        a("s_nop 1")
        for r in range(4):
            a(f"{sw} v{76+r}, v{80+r}")
        a("s_nop 1")
        for r in range(4):
            a(f"v_add_f32 v{76+r}, v{76+r}, v{80+r}")
    a("v_lshlrev_b32 v14, 8, v1")
    a("v_lshl_add_u32 v14, v8, 4, v14")
    a("ds_write_b128 v14, v[76:79]")
    a("s_waitcnt lgkmcnt(0)")
    a("s_barrier")
    a("v_lshlrev_b32 v14, 4, v8")
    for w in range(4):
        a(f"ds_read_b128 v[{76+4*w}:{79+4*w}], v14 offset:{w*256}")
    a("s_waitcnt lgkmcnt(0)")
    for w in range(1, 4):
        a(f"v_pk_add_f32 v[76:77], v[76:77], v[{76+4*w}:{77+4*w}]")
        a(f"v_pk_add_f32 v[78:79], v[78:79], v[{78+4*w}:{79+4*w}]")
    for h in range(2):
        y = 76 + 2 * h
        a(f"v_cvt_pk_bf16_f32 v20, v{y}, v{y+1}")
        a("v_lshlrev_b32 v21, 16, v20\nv_and_b32 v22, 0xffff0000, v20")
        a("v_mul_f32 v21, s51, v21\nv_mul_f32 v22, s51, v22")
        a("v_cvt_pk_bf16_f32 v20, v21, v22")
        a("v_lshlrev_b32 v21, 16, v20\nv_and_b32 v22, 0xffff0000, v20")
        a(f"v_lshlrev_b32 v23, 16, v{72+h}\nv_and_b32 v24, 0xffff0000, v{72+h}")
        a("v_add_f32 v21, v21, v23\nv_add_f32 v22, v22, v24")
        a("v_cvt_pk_bf16_f32 v20, v21, v22")
        a("v_lshlrev_b32 v21, 16, v20\nv_and_b32 v22, 0xffff0000, v20")
        a(f"v_lshlrev_b32 v23, 16, v{74+h}\nv_and_b32 v24, 0xffff0000, v{74+h}")
        a("v_add_f32 v21, v21, v23\nv_add_f32 v22, v22, v24")
        a(f"v_cvt_pk_bf16_f32 v{26+h}, v21, v22")
    a("v_cmp_gt_u32 vcc, 16, v0")
    a("s_and_saveexec_b64 s[52:53], vcc")
    skip = a.uid("k4_skip")
    a(f"s_cbranch_execz {skip}")
    a("buffer_store_dwordx2 v[26:27], v9, s[28:31], s46 offen sc1")
    a.label(skip)
    a("s_mov_b64 exec, s[52:53]")
    fin = a.uid("k4_fin")
    a("s_cmp_lg_u32 s30, 0")
    a(f"s_cbranch_scc1 {fin}")
    a(f"s_branch {again}")
    a.label(fin)
    stamp(a, 4)
    stamp_dump(a, 3, 5, 14)
    a("s_endpgm")
    a.label(lb)
    a("v_lshl_add_u32 v6, v1, 1, v5")
    a("s_lshl_b32 s47, s2, 3")
    a("s_sub_u32 s47, s47, 8")
    a("v_add_u32 v6, s47, v6")
    a("v_lshl_add_u32 v6, v6, 11, v7")
    a.srd(36, 12, 4 << 20)
    nf = a.uid("k4_noffn")
    a("s_cmp_ge_u32 s2, 224")
    a(f"s_cbranch_scc1 {nf}")
    a.srd_off(24, 14, RPK_OFF, 16 << 20)
    a("s_and_b32 s50, s44, 3")
    a("s_lshl_b32 s50, s50, 13")
    a("s_lshl_b32 s52, s45, 15")
    a("s_add_u32 s52, s52, s50")
    a("v_lshlrev_b32 v8, 4, v2")
    for m in range(2):
        for hf in range(2):
            a(f"s_add_u32 m0, s50, {m*32768 + hf*4096}")
            a(f"s_add_u32 s53, s52, {m*(8 << 20) + hf*4096}")
            for i in range(4):
                a(f"buffer_load_dwordx4 v8, s[24:27], s53 offen offset:{i*1024} lds")
    a.label(nf)
    for i in range(4):
        a(f"buffer_load_dwordx4 v[{VX+4*i}:{VX+4*i+3}], v6, s[20:23], 0 offen offset:{i*512}")
    a("s_waitcnt vmcnt(0)")
    a(f"s_branch {lmm}")
    a.label(lbout)
    a(f"v_mov_b32 v12, {MISC + 128}")
    a("ds_read_b64 v[12:13], v12")
    a("v_lshrrev_b32 v14, 11, v6")
    for i in range(16):
        a(f"v_lshlrev_b32 v{T2+2*i}, 16, v{VX+i}")
        a(f"v_and_b32 v{T2+2*i+1}, 0xffff0000, v{VX+i}")
    for i in range(0, 32, 2):
        a(f"v_pk_add_f32 v[{T2+i}:{T2+i+1}], v[{T2+i}:{T2+i+1}], v[{KP+i}:{KP+i+1}]")
    for i in range(16):
        a(f"v_cvt_pk_bf16_f32 v{VX+i}, v{T2+2*i}, v{T2+2*i+1}")
    a("s_waitcnt lgkmcnt(0)")
    a("v_cmp_eq_u32 vcc, v12, v14")
    a("v_cmp_eq_u32 s[52:53], v13, v14")
    a("v_mov_b32 v12, 0x7fffffff")
    a("s_or_b64 vcc, vcc, s[52:53]")
    a("v_cndmask_b32 v6, v6, v12, vcc")
    for i in range(4):
        a(f"buffer_store_dwordx4 v[{VX+4*i}:{VX+4*i+3}], v6, s[36:39], 0 offen offset:{i*512} sc1")
    a.label(end)
    a("s_endpgm")
    a.end_kernel(name, 232, extra=[".amdhsa_float_denorm_mode_32 3"])
    a.launch(name, 256, 512, MISC + 256 + 16384)


def gen_k5(a, name="k5_kernel"):
    a.begin_kernel(name)
    end = a.uid("k5_end")
    a("s_cmp_ge_u32 s2, 64")
    a(f"s_cbranch_scc1 {end}")
    stamp(a, 0)
    a(f"s_load_dwordx2 s[12:13], s[0:1], {ARG['out']}")
    a(f"s_load_dwordx2 s[14:15], s[0:1], {ARG['ws']}")
    a("v_and_b32 v2, 7, v0")
    a("v_lshrrev_b32 v3, 3, v0")
    a("v_lshlrev_b32 v4, 13, v3")
    a("v_lshl_add_u32 v4, v2, 4, v4")
    a("s_lshl_b32 s40, s2, 7")
    a("s_lshr_b32 s41, s2, 5")
    a("s_and_b32 s42, s2, 31")
    a("s_waitcnt lgkmcnt(0)")
    a.srd_off(16, 14, PART_OFF, NSL * 8192)
    a.srd_off(20, 14, SEL_OFF, 8192)
    a.srd_off(24, 14, H_OFF, 4 << 20)
    a.srd(28, 12, 4 << 20)
    a("s_lshl_b32 s43, s41, 2")
    a("v_mov_b32 v5, s43")
    a("buffer_load_dword v6, v5, s[20:23], 0 offen")
    a("buffer_load_dword v7, v5, s[20:23], 0 offen offset:8")
    for i in range(7):
        a(f"buffer_load_dwordx4 v[{16+4*i}:{19+4*i}], v4, s[16:19], s40 offen")
        a("s_add_u32 s40, s40, 0x40000")
    a("s_lshl_b32 s44, s42, 6")
    a("v_lshl_add_u32 v8, v2, 3, s44")
    a("s_lshl_b32 s45, s41, 11")
    a("s_add_u32 s45, s45, 4096")
    a("buffer_load_dwordx2 v[10:11], v8, s[20:23], s45 offen")
    a("s_waitcnt vmcnt(8)")
    a("v_and_b32 v6, 0x7ff, v6")
    a("v_lshl_add_u32 v9, v6, 11, v8")
    a("buffer_load_dwordx2 v[12:13], v9, s[24:27], 0 offen")
    a("s_waitcnt vmcnt(2)")
    for i in range(1, 7):
        a(f"v_pk_add_f32 v[16:17], v[16:17], v[{16+4*i}:{17+4*i}]")
        a(f"v_pk_add_f32 v[18:19], v[18:19], v[{18+4*i}:{19+4*i}]")
    a("s_nop 1")
    for r in range(4):
        a(f"v_add_f32_dpp v{16+r}, v{16+r}, v{16+r} row_ror:8 row_mask:0xf bank_mask:0xf")
    for sw in ("v_permlane16_swap_b32", "v_permlane32_swap_b32"):
        for r in range(4):
            a(f"v_mov_b32 v{20+r}, v{16+r}")
        a("s_nop 1")
        for r in range(4):
            a(f"{sw} v{16+r}, v{20+r}")
        a("s_nop 1")
        for r in range(4):
            a(f"v_add_f32 v{16+r}, v{16+r}, v{20+r}")
    a("v_lshrrev_b32 v14, 6, v0")
    a("v_lshlrev_b32 v14, 7, v14")
    a("v_lshl_add_u32 v14, v2, 4, v14")
    a("ds_write_b128 v14, v[16:19]")
    a("s_waitcnt lgkmcnt(0)")
    a("s_barrier")
    a("v_lshlrev_b32 v14, 4, v2")
    for w in range(4):
        a(f"ds_read_b128 v[{16+4*w}:{19+4*w}], v14 offset:{w*128}")
    a("s_waitcnt vmcnt(0) lgkmcnt(0)")
    for w in range(1, 4):
        a(f"v_pk_add_f32 v[16:17], v[16:17], v[{16+4*w}:{17+4*w}]")
        a(f"v_pk_add_f32 v[18:19], v[18:19], v[{18+4*w}:{19+4*w}]")
    for h in range(2):
        y = 16 + 2 * h
        a(f"v_cvt_pk_bf16_f32 v20, v{y}, v{y+1}")
        a("v_lshlrev_b32 v21, 16, v20\nv_and_b32 v22, 0xffff0000, v20")
        a("v_mul_f32 v21, v21, v7\nv_mul_f32 v22, v22, v7")
        a("v_cvt_pk_bf16_f32 v20, v21, v22")
        a("v_lshlrev_b32 v21, 16, v20\nv_and_b32 v22, 0xffff0000, v20")
        a(f"v_lshlrev_b32 v23, 16, v{10+h}\nv_and_b32 v24, 0xffff0000, v{10+h}")
        a("v_add_f32 v21, v21, v23\nv_add_f32 v22, v22, v24")
        a("v_cvt_pk_bf16_f32 v20, v21, v22")
        a("v_lshlrev_b32 v21, 16, v20\nv_and_b32 v22, 0xffff0000, v20")
        a(f"v_lshlrev_b32 v23, 16, v{12+h}\nv_and_b32 v24, 0xffff0000, v{12+h}")
        a("v_add_f32 v21, v21, v23\nv_add_f32 v22, v22, v24")
        a(f"v_cvt_pk_bf16_f32 v{26+h}, v21, v22")
    a("v_cmp_gt_u32 vcc, 8, v0")
    a("s_and_saveexec_b64 s[46:47], vcc")
    skip = a.uid("k5_skip")
    a(f"s_cbranch_execz {skip}")
    a("buffer_store_dwordx2 v[26:27], v9, s[28:31], 0 offen")
    a.label(skip)
    a("s_mov_b64 exec, s[46:47]")
    stamp_dump(a, 4, 1, 14)
    if common.PROF and os.environ.get("DBGOUT"):
        a("s_cmp_lg_u32 s2, 0")
        a(f"s_cbranch_scc1 {end}")
        a("s_waitcnt vmcnt(0)")
        a(f"s_load_dwordx2 s[4:5], s[0:1], {ARG['dbg']}")
        a.srd_off(8, 14, PROF_OFF, 8 * 512 * 64)
        picks = [(0, i) for i in range(8)] + [(2, 0), (2, 2), (2, 3), (2, 5), (3, 0), (3, 5)]
        a("v_mov_b32 v1, 0")
        for i, (k, j) in enumerate(picks):
            a(f"s_mov_b32 s3, {k*512*64 + 100*64 + j*4}")
            a(f"buffer_load_dword v{10+i}, v1, s[8:11], s3 offen sc1")
        a("v_mov_b32 v24, s64")
        a("v_mov_b32 v25, s68")
        a("s_waitcnt vmcnt(0) lgkmcnt(0)")
        a.srd(8, 4, 256)
        for i in range(15, -1, -1):
            a(f"v_sub_u32 v{10+i}, v{10+i}, v10")
            a(f"buffer_store_dword v{10+i}, v1, s[8:11], 0 offen offset:{4*i}")
    a.label(end)
    a("s_endpgm")
    a.end_kernel(name, 64)
    a.launch(name, 64, 256, 512)
```

```python
from common import *
from sched import Op, spread, schedule, resolve_lgkm
import common
import math, struct

QSCALE = struct.unpack("<I", struct.pack("<f", math.log2(math.e) / math.sqrt(128.0)))[0]
THRESH = 0x40004000
REFBITS = 0x41400000

V_LANE16 = 1
V_K = 2
V_V = 3
V_VV = 4
V_NINF = 5
V_T = 6
V_T2 = 7
NEGM = 8
LQ = [12, 48, 248, 252]
ONES = 60
REF = 12.0
CIN = 16
DL = 52
V_C = 57
V_LANEV = 56
Q = 64
S = [128, 160]
P = [192, 208]
TMP = 224
V_PF = 228
V_PS = 229
A_R = 224
ET = 232
A_O = 0
A_K = 128
A_V = 192


LDF = ' sc1'
import os
VT = int(os.environ.get('VT', '4'))
import os
KN = set(os.environ.get("KN", "").split(","))


def vq(b):
    return f"v[{b}:{b+3}]"


def aq(b):
    return f"a[{b}:{b+3}]"


def slot_of(typ, kb, qb):
    if typ == "D":
        return kb * 4 + qb
    return (kb % 2) * 4 + (kb // 2) * 2 + (qb - 2)


def qk_mfmas(typ, par, ko=0):
    out = []
    kbs, qbs = (range(2), range(4)) if typ == "D" else (range(4), range(2, 4))
    for kb in kbs:
        for c in range(4):
            for qb in qbs:
                sl = slot_of(typ, kb, qb)
                d = vq(S[par] + 4 * sl)
                cc = vq(CIN + 4 * sl) if c == 0 else d
                out.append(mfma16(d, aq(A_K + ko + (kb * 4 + c) * 4), vq(Q + (qb * 4 + c) * 4), cc))
    return out


def pv_mfmas(typ, par):
    out = []
    if typ == "D":
        for qb in range(4):
            out.append(mfma16(vq(LQ[qb]), vq(ONES), vq(P[par] + 4 * qb), vq(LQ[qb])))
        for db in range(8):
            for qb in range(4):
                o = aq(A_O + (db * 4 + qb) * 4)
                out.append(mfma16(o, aq(A_V + db * 4), vq(P[par] + 4 * qb), o))
    else:
        for j in range(4):
            out.append(mfma16(vq(LQ[2 + j % 2]), vq(ONES), vq(P[par] + 4 * j), vq(LQ[2 + j % 2])))
        for ks in range(2):
            for db in range(8):
                for qb in range(2, 4):
                    o = aq(A_O + (db * 4 + qb) * 4)
                    out.append(mfma16(o, aq(A_V + (ks * 8 + db) * 4), vq(P[par] + 4 * (ks * 2 + qb - 2)), o))
    return out


def k_reads(typ):
    n = 8 if typ == "D" else 16
    out = [f"ds_read_b128 {aq(A_K + 4*i)}, v{V_K} offset:{i*1024}" for i in range(n)]
    out.append(f"v_add_u32 v{V_K}, {n*1024}, v{V_K}\nv_and_b32 v{V_K}, 0xffff, v{V_K}")
    return out


def v_reads(typ):
    n = 8 if typ == "D" else 16
    out = [f"ds_read_b128 {aq(A_V + 4*i)}, v{V_V} offset:{i*1024}" for i in range(n)]
    out.append(f"v_add_u32 v{V_V}, {n*1024}, v{V_V}\nv_and_b32 v{V_V}, 0xffff, v{V_V}\nv_or_b32 v{V_V}, 0x10000, v{V_V}")
    return out


def sm_stream(par):
    ops = []
    for j in range(4):
        for half in range(2):
            sl = j + 4 * half
            for r in range(4):
                ops.append(f"v_exp_f32 v{ET+r}, v{S[par] + 4*sl + r}")
            ops.append("s_nop 0")
            for pr in range(2):
                ops.append(f"v_cvt_pk_bf16_f32 v{P[par] + 4*j + 2*half + pr}, v{ET+2*pr}, v{ET+2*pr+1}")
    return ops


def dma_group(mall=None):
    out = []
    if "nodma" in KN: return []
    for i in range(4):
        t = ""
        if i == 0:
            t = "s_mov_b32 m0, s34\ns_nop 0\n"
        out.append(t + f"buffer_load_dwordx4 v{V_LANE16}, s[16:19], s32 offen offset:{i*1024}{LDF} lds")
    for i in range(4):
        t = ""
        if i == 0:
            t = "s_mov_b32 m0, s35\ns_nop 0\n"
        out.append(t + f"buffer_load_dwordx4 v{V_LANE16}, s[20:23], s33 offen offset:{i*1024}{LDF} lds")
    if mall:
        l = mall.uid("k2_mpf")
        out.append(f"s_add_u32 s61, s61, 1\ns_and_b32 s31, s61, 3\ns_cbranch_scc1 {l}\n"
                   f"buffer_load_dword v{V_T2}, v{V_PF}, s[12:15], s62 offen\ns_add_u32 s62, s62, 0x2000\n{l}:")
    out.append("s_add_u32 s32, s32, 0x80000\ns_add_u32 s33, s33, 0x80000\n"
               "s_add_u32 s34, s34, 0x4000\ns_and_b32 s34, s34, 0xffff\n"
               "s_add_u32 s35, s35, 0x4000\ns_and_b32 s35, s35, 0xffff\ns_or_b32 s35, s35, 0x10000")
    return out


def cin_prep(a, typ):
    a(f"s_sub_u32 s40, s36, s{38 if typ == 'D' else 39}")
    a(f"v_subrev_u32 v{V_T}, s40, v{V_VV}")
    kbs, qbs = (range(2), range(2)) if typ == "D" else (range(4), range(2, 4))
    diffs = sorted({kb - (qb % 2) for kb in kbs for qb in qbs})
    for di, df in enumerate(diffs):
        base = 44
        for r in range(4):
            a(f"v_cmp_gt_i32 s[{base+2*r}:{base+2*r+1}], {16*df + r}, v{V_T}")
        first = True
        for kb in kbs:
            for qb in qbs:
                if kb - (qb % 2) != df:
                    continue
                if first:
                    a("s_nop 1")
                    first = False
                for r in range(4):
                    a(f"v_cndmask_b32 v{CIN + 4*slot_of(typ, kb, qb) + r}, v{NEGM+qb}, v{V_NINF}, s[{base+2*r}:{base+2*r+1}]")
    a("s_nop 1")


def row_max(a, typ, par, clamp0):
    qbs = list(range(4) if typ == "D" else range(2, 4))
    for qb in qbs:
        sls = [slot_of(typ, kb, qb) for kb in (range(2) if typ == "D" else range(4))]
        rs = [S[par] + 4 * sl + r for sl in sls for r in range(4)]
        d = DL + qb
        a(f"v_max_f32 v{d}, v{rs[0]}, v{rs[1]}")
        for i in range(2, len(rs), 2):
            a(f"v_max3_f32 v{d}, v{d}, v{rs[i]}, v{rs[i+1]}")
    for sw in ("v_permlane16_swap_b32", "v_permlane32_swap_b32"):
        for qb in qbs:
            a(f"v_mov_b32 v{TMP+qb}, v{DL+qb}")
        a("s_nop 1")
        for qb in qbs:
            a(f"{sw} v{DL+qb}, v{TMP+qb}")
        a("s_nop 1")
        for qb in qbs:
            a(f"v_max_f32 v{DL+qb}, v{DL+qb}, v{TMP+qb}")
    for qb in qbs:
        a(f"v_add_f32 v{DL+qb}, 0x{REFBITS:x}, v{DL+qb}")
        if clamp0:
            a(f"v_max_f32 v{DL+qb}, 0, v{DL+qb}")


def qb_of_slot(typ, sl):
    return sl % 4 if typ == "D" else 2 + (sl % 2)


def rare_path(a, sm_typ, qk_typ, par, ret):
    a("s_nop 7")
    row_max(a, sm_typ, par, True)
    qbs = range(4) if sm_typ == "D" else range(2, 4)
    for sl in range(8):
        for r in range(4):
            x = S[par] + 4 * sl + r
            a(f"v_sub_f32 v{x}, v{x}, v{DL + qb_of_slot(sm_typ, sl)}")
    if qk_typ is not None:
        for sl in range(8):
            for r in range(4):
                x = S[1 - par] + 4 * sl + r
                a(f"v_sub_f32 v{x}, v{x}, v{DL + qb_of_slot(qk_typ, sl)}")
                x = CIN + 4 * sl + r
                a(f"v_sub_f32 v{x}, v{x}, v{DL + qb_of_slot(qk_typ, sl)}")
    for qb in qbs:
        a(f"v_sub_f32 v{NEGM+qb}, v{NEGM+qb}, v{DL+qb}")
        a(f"v_exp_f32 v{DL+qb}, -v{DL+qb}")
    a("s_nop 0")
    for qb in qbs:
        a(f"v_mul_f32 v{LQ[qb]}, v{LQ[qb]}, v{DL+qb}")
    for db in range(8):
        for qb in qbs:
            o = A_O + (db * 4 + qb) * 4
            for r in range(4):
                a(f"v_accvgpr_read_b32 v{TMP+r}, a{o+r}")
            for r in range(4):
                a(f"v_mul_f32 v{TMP+r}, v{TMP+r}, v{DL+qb}")
            for r in range(4):
                a(f"v_accvgpr_write_b32 a{o+r}, v{TMP+r}")
    for t in sm_stream(par):
        a(t)
    a("s_nop 1")
    a(f"s_branch {ret}")


def sm_ops(par, lo, hi, sub=False):
    ops, cvts = [], []
    users = {}
    n = 0
    chk = None
    for j in range(4):
        for half in range(2):
            sl = j + 4 * half
            for pr in range(2):
                t = ET + (n % 8) * 2
                w = lo + (hi - lo) * n / 16.0
                step = (hi - lo) / 16.0
                s0 = S[par] + 4 * sl + 2 * pr
                war = users.get(t, [])
                sb = []
                if sub:
                    sb = [Op(f"v_sub_f32 v{s0+k}, v{s0+k}, v{DL+j}", "A", w - step) for k in range(2)]
                    ops += sb
                e0 = Op(f"v_exp_f32 v{t}, v{s0}", "E", w, after=war + sb)
                e1 = Op(f"v_exp_f32 v{t+1}, v{s0+1}", "E", w + step / 2, after=war + sb)
                cv = Op(f"v_cvt_pk_bf16_f32 v{P[par] + n}, v{t}, v{t+1}", "A", w + step * 1.1, after=[e0, e1])
                assert n == 4 * j + 2 * half + pr
                users[t] = [cv]
                ops += [e0, e1, cv]
                cvts.append(cv)
                p = P[par]
                if n == 2:
                    chk = Op(f"v_or3_b32 v{V_C}, v{p}, v{p+1}, v{p+2}", "A", w + step * 1.6, after=cvts[-3:])
                elif n > 2 and n % 2 == 0:
                    chk = Op(f"v_or3_b32 v{V_C}, v{V_C}, v{p+n-1}, v{p+n}", "A", w + step * 1.6, after=cvts[-2:] + [chk])
                elif n == 15:
                    chk = Op(f"v_bitop3_b32 v{V_C}, v{V_C}, v{p+n}, s37 bitop3:0xa8", "A", w + step * 1.4, after=[cv, chk])
                else:
                    n += 1
                    continue
                ops.append(chk)
                n += 1
    return ops, chk, cvts


def nfr(typ):
    return 8 if typ == "D" else 16


def rd_text(which, i):
    base, va = (A_K, V_K) if which == "K" else (A_V, V_V)
    return f"ds_read_b128 {aq(base + 4*i)}, v{va} offset:{i*1024}"


def ptr_ops(typ, which, lo, want, after):
    va, sp, lane = (V_K, 52, V_LANE16) if which == "K" else (V_V, 53, V_LANEV)
    s1 = Op(f"s_add_u32 s{sp}, s{sp}, {nfr(typ)*1024}", "S", lo + 1, lo=lo)
    s2 = Op(f"s_and_b32 s{sp}, s{sp}, 0xffff", "S", lo + 3, lo=lo, after=[s1])
    up = Op(f"v_add_u32 v{va}, s{sp}, v{lane}", "A", want, after=list(after) + [s2])
    return [s1, s2, up]


def dma_ops(h, lo, hi, after):
    srd, so, lp = (("s[16:19]", 32, 34), ("s[20:23]", 33, 35))[h]
    step = (hi - lo - 1) / 4.0
    m = Op(f"s_mov_b32 m0, s{lp}", "S", lo, lo=lo, after=after)
    ops = [m]
    last = None
    for i in range(4):
        v = Op(f"buffer_load_dwordx4 v{V_LANE16}, {srd}, s{so} offen offset:{i*1024}{LDF} lds", "V", lo + 1 + step * i, lo=lo,
               after=[last] if last else [], prev_gap=[m], hard=hi - 1)
        ops.append(v)
        last = v
    b = [Op(f"s_add_u32 s{so}, s{so}, 0x80000", "S", lo + 2 + step * 3, after=[last])]
    b.append(Op(f"s_add_u32 s{lp}, s{lp}, 0x4000", "S", lo + step, after=[m]))
    b.append(Op(f"s_and_b32 s{lp}, s{lp}, 0xffff", "S", lo + step * 2, after=[b[-1]]))
    if h:
        b.append(Op(f"s_or_b32 s{lp}, s{lp}, 0x10000", "S", lo + step * 2.5, after=[b[-1]]))
    return ops + b, last


def side_ops(lo, hi, load=True):
    step = (hi - lo) / (8.0 if load else 4.0)
    ops = spread([f"buffer_store_dwordx4 {aq(A_R + 4*i)}, v{V_PS}, s[8:11], s58 offen offset:{i*256} sc1" for i in range(4)], "V", lo, lo + 4 * step)
    if not load:
        return ops, ops[-1]
    sa = spread(["s_and_b32 s60, s62, 31", "s_lshr_b32 s61, s62, 5", "s_mul_i32 s57, s60, s54", "s_mul_i32 s4, s61, s55", "s_add_u32 s57, s57, s4",
                 "s_add_u32 s62, s62, 1"], "S", lo, lo + 3 * step)
    sb = spread(["s_lshl_b32 s58, s61, 17", "s_lshl_b32 s60, s60, 10", "s_add_u32 s58, s58, s60", "s_mov_b32 s10, s59"], "S", lo + 4 * step, lo + 7 * step)
    sb[0].after += [ops[-1], sa[-1]]
    prev = [ops[-1], sa[-1]]
    for i in range(4):
        o = Op(f"buffer_load_dwordx4 {aq(A_R + 4*i)}, v{V_PF}, s[12:15], s57 offen", "V", lo + (4 + i) * step, after=prev)
        ops.append(o)
        prev = [o]
        if i < 3:
            u = Op("s_add_u32 s57, s57, s56", "S", lo + (4.4 + i) * step, after=[o])
            ops.append(u)
            prev = [u]
    return ops + sa + sb, o


def body(a, outl, u_par, qk, sm, pv, vread, sync, prep, dk=None, dv=None, tail=(), first=False, side=None):
    par = u_par
    mf = (pv_mfmas(pv, 1 - par) if pv else []) + (qk_mfmas(qk, 1 - par, 32 if first else 0) if qk else [])
    n1 = 36 if pv else 0
    n = len(mf)
    ops, pre = [], []
    carried = []
    lupd = None
    chain = []
    vup = None

    def add_reads(which, idxs, lo, hi, extra=(), los=None):
        out = []
        for k, i in enumerate(idxs):
            o = Op(rd_text(which, i), "M", lo + (hi - lo) * k / len(idxs), lo=(los[k] if los else lo) , after=(chain[-1:] + list(extra)))
            chain.append(o)
            out.append(o)
        return out

    def waits(which, typ, g0, rds):
        m = nfr(typ)
        base = A_K if which == "K" else A_V
        for i in range(0, m, 2):
            g = g0 + i * (32 // m) - 1
            need = [rds[j] for j in (i, i + 1) if rds.get(j) is not None]
            t = f"@LGKM {base + 4*(i+1)}"
            if g < 0:
                pre.append(t)
            else:
                for r in need:
                    r.hard = max(0, g - 4) if r.hard is None else r.hard
                ops.append(Op(t, "S", g, lo=g, hard=g, after=need))

    bar = None
    dlast = []
    if dv:
        o, l = dma_ops(1, dv[0], dv[1], [])
        ops += o
        dlast.append(l)
    if sync == "mid":
        bar = Op("s_waitcnt vmcnt(12)\ns_barrier", "S", n1, lo=n1, hard=n1, after=dlast)
    elif sync == "end":
        bar = Op(f"s_waitcnt vmcnt({8 if (first or 'nomall' in KN) else 16})\ns_barrier", "S", n - 1, lo=n - 1, hard=n - 1, after=dlast)
    elif sync == "epi":
        bar = Op("s_waitcnt vmcnt(0)\ns_barrier", "S", 0, lo=0, hard=0)
    if first:
        po = first["poll"]()
        ga = first["gate"](lo=n - 3, hard=n - 2, after=[po])
        ops += [po, ga]
        bar.after.append(ga)
    if bar:
        ops.append(bar)
    if dk:
        o, l = dma_ops(0, dk[0], dk[1], [bar] if sync == "mid" else [])
        ops += o
        if side is not None and "nomall" not in KN:
            w = Op("s_waitcnt vmcnt(8)", "S", dk[1], lo=dk[1], after=[l])
            o, _ = side_ops(dk[1] + 1, dk[1] + 1 + int(os.environ.get("SW", "40")), side)
            o[0].after.append(w)
            ops += [w] + o
    if pv:
        m = nfr(pv)
        if sm or qk:
            mt = m * VT // 8
            carried = [A_V + 4 * i for i in range(mt)]
            r = add_reads("V", range(mt, m), 0, 32 - 4 * VT)
            ops += r
            po = ptr_ops(pv, "V", 2, 36 - 4 * VT, r[-1:])
            vup = po[-1]
            ops += po
            waits("V", pv, 4, dict(zip(range(mt, m), r)))
        else:
            carried = [A_V + 4 * i for i in range(m)]
            waits("V", pv, 4, {})
    if qk:
        m = nfr(qk)
        if pv:
            r = add_reads("K", range(m), 33 - 4 * VT, 66 - 4 * VT)
            ops += r + ptr_ops(qk, "K", 44, 70 - 4 * VT, r[-1:])
            waits("K", qk, n1, dict(zip(range(m), r)))
        elif not first:
            pre.append("s_waitcnt lgkmcnt(0)")
        if prep:
            pl, pr = a.uid("k2_prep"), a.uid("k2_prepret")
            if prep == "cond":
                t = f"s_cmp_ge_u32 s36, s{42 if qk == 'D' else 43}\ns_cbranch_scc1 {pl}\n{pr}:"
            else:
                t = f"s_branch {pl}\n{pr}:"
            outl.append(("prep", pl, qk, pr))
            if pv:
                ops.append(Op(t, "B", 24, lo=4, hard=n1 - 3))
            else:
                pre.append(t)
        ops.append(Op(f"s_add_u32 s36, s36, {32 if qk == 'D' else 64}", "S", n1 + 4, lo=n1))
    if vread:
        m = nfr(vread)
        ex = ([vup] if vup else []) + ([bar] if sync in ("mid", "epi") else [])
        if qk:
            ops += add_reads("V", range(m * VT // 8), n - 1 - 4 * VT, n - 2, ex)
        else:
            ops += add_reads("V", range(m), 18, n + 4, ex, los=[2 * i + 6 for i in range(m)])
    if sm:
        so, chk, cvts = sm_ops(par, 1 if first else 0, n - 4, sub=bool(first))
        ops += so
        rl, ret = a.uid("k2_rare"), a.uid("k2_ret")
        c3 = Op(f"v_cmp_ne_u32 vcc, 0, v{V_C}", "A", n - 2, after=[chk])
        c4 = Op(f"s_cbranch_vccnz {rl}\n{ret}:", "B", n + 99, lo=n, after=[c3] + cvts)
        ops += [c3, c4]
        outl.append(("rare", rl, sm, qk, par, ret))
    for t in tail:
        ops.append(Op(t, "S", n - 8))
    start = len(a.lines)
    for t in pre:
        a(t)
    schedule(a, mf, ops)
    resolve_lgkm(a.lines, start, carried)
    for i in range(start, len(a.lines)):
        t = a.lines[i]
        if "nods" in KN and "ds_read" in t: a.lines[i] = f"    v_mov_b32 v{V_T2}, v{V_T2}"
        if "nodma" in KN and " lds" in t: a.lines[i] = f"    v_mov_b32 v{V_T2}, v{V_T2}"
        if "nobar" in KN and "s_barrier" in t: a.lines[i] = "    s_nop 0"
        if "nolgkm" in KN and "lgkmcnt" in t: a.lines[i] = "    s_nop 0"
        if KN & {"nods", "nodma", "nobar", "nolgkm"} and "s_cbranch_vccnz" in t: a.lines[i] = "    s_nop 0"


def kv_first():
    out = ["s_mov_b32 s32, s60", "s_mov_b32 s34, s60", "s_mov_b32 s33, s60", "s_add_u32 s35, s60, 0x10000"]
    return out


def out_ops(qb, c, t, pk):
    tx = []
    for hh in range(2):
        o = A_O + ((2 * c + hh) * 4 + qb) * 4
        tx += [f"v_accvgpr_read_b32 v{t+4+hh*4+r}, a{o+r}" for r in range(4)]
    if pk:
        tx += [f"v_pk_mul_f32 v[{t+4+r}:{t+5+r}], v[{t+4+r}:{t+5+r}], v[{LQ[qb]}:{LQ[qb]+1}]" for r in range(0, 8, 2)]
    else:
        tx += [f"v_mul_f32 v{t+4+r}, v{t+4+r}, v{LQ[qb]}" for r in range(8)]
    tx += [f"v_cvt_pk_bf16_f32 v{t+r}, v{t+4+2*r}, v{t+5+2*r}" for r in range(4)]
    st = f"buffer_store_dwordx4 v[{t}:{t+3}], v{V_LANE16}, s[24:27], s{44+c} offen offset:{(qb%2)*1024} sc1"
    return tx, st


def l_final(qbs):
    tx = []
    for sw in ("v_permlane16_swap_b32", "v_permlane32_swap_b32"):
        tx += [f"v_mov_b32 v{LQ[q]+1}, v{LQ[q]}" for q in qbs] + ["s_nop 1"]
        tx += [f"{sw} v{LQ[q]}, v{LQ[q]+1}" for q in qbs] + ["s_nop 1"]
        tx += [f"v_add_f32 v{LQ[q]}, v{LQ[q]}, v{LQ[q]+1}" for q in qbs]
    tx += [f"v_rcp_f32 v{LQ[q]+1}, v{LQ[q]}" for q in qbs] + [f"v_rcp_f32 v{LQ[q]}, v{LQ[q]}" for q in qbs] + ["s_nop 0"]
    return tx


def ctx_base(srow):
    return ["s_lshl_b32 s31, s28, 19", f"s_lshl_b32 s44, s{srow}, 6", "s_add_u32 s44, s44, s31"] + \
           [f"s_add_u32 s{44+c}, s44, {c*0x20000}" for c in range(1, 4)]


def attention_phase(a, end, kidx, qsrc, late, stubs=(), next_code=None):
    a(f"s_load_dwordx2 s[44:45], s[0:1], {ARG['wo']}")
    a(f"s_load_dwordx2 s[46:47], s[0:1], {ARG['wg']}")
    a(f"s_load_dwordx4 s[48:51], s[0:1], {ARG['wu']}")
    a(f"s_mov_b32 s40, 0x{QSCALE:x}")
    a(f"s_mov_b32 s41, 0x{QSCALE:x}")
    for t in dma_group():
        a(t)
    a(f"v_mov_b32 v{V_K}, v{V_LANE16}")
    a(f"v_or_b32 v{V_V}, 0x10000, v{V_LANE16}")
    a(f"v_mov_b32 v{V_LANEV}, v{V_V}")
    a("s_mov_b32 s52, 0x4000")
    a("s_mov_b32 s53, 0")
    a("s_mul_i32 s62, s28, 63")
    a("s_mul_i32 s31, s29, s29")
    a("s_add_u32 s62, s62, s31")
    a("s_sub_u32 s62, s62, 1")
    a("s_cmp_eq_u32 s30, 0")
    a("s_cselect_b32 s14, 0x800000, 0x0")
    a("s_max_u32 s14, s14, 0x700000")
    a("s_sub_u32 s31, s30, 1")
    a("s_lshl_b32 s4, s31, 23")
    a(f"s_add_u32 s4, s4, 0x{RPK_OFF:x}")
    a("s_add_u32 s8, s6, s4")
    a("s_addc_u32 s9, s7, 0")
    a("s_and_b32 s9, s9, 0xffff")
    a("s_mov_b32 s10, 0")
    a("s_mov_b32 s58, 0")
    a("s_mov_b32 s54, 4096")
    a("s_mov_b32 s55, 0x20000")
    a("s_mov_b32 s56, 1024")
    a("s_cmp_lt_u32 s31, 2")
    a(f"s_cselect_b32 s54, {32*7168}, s54")
    a("s_cselect_b32 s55, 128, s55")
    a(f"s_cselect_b32 s56, {8*7168}, s56")
    a("s_cselect_b32 s59, 0x700000, 0")
    a("s_cmp_eq_u32 s29, 0")
    a("s_cselect_b32 s14, 0, s14")
    a("s_cselect_b32 s59, 0, s59")
    a("s_cselect_b32 s62, 0, s62")
    a("s_waitcnt vmcnt(16) lgkmcnt(0)")
    a("s_barrier")
    a(late["sig"])
    a("v_mov_b32 v59, 0")
    for i in range(16):
        a(rd_text("K", i))
    a("s_cmp_eq_u32 s30, 1")
    a("s_cselect_b64 s[12:13], s[46:47], s[44:45]")
    a("s_cmp_eq_u32 s30, 2")
    a("s_cselect_b64 s[12:13], s[48:49], s[12:13]")
    a("s_cmp_eq_u32 s30, 3")
    a("s_cselect_b64 s[12:13], s[50:51], s[12:13]")
    a("s_and_b32 s13, s13, 0xffff")
    for qb in (2, 3, 0, 1):
        for c in range(4):
            for hh in range(2):
                kind, x = qsrc(2 * c + hh, qb)
                if kind == "a":
                    y = 128 + (c % 2) * 8 + hh * 4
                    for r in range(4):
                        a(f"v_accvgpr_read_b32 v{y+r}, a{x+r}")
                    x = y
                a(f"v_pk_mul_f32 v[{x}:{x+1}], v[{x}:{x+1}], s[40:41]")
                a(f"v_pk_mul_f32 v[{x+2}:{x+3}], v[{x+2}:{x+3}], s[40:41]")
                d = Q + (qb * 4 + c) * 4 + 2 * hh
                a(f"v_cvt_pk_bf16_f32 v{d}, v{x}, v{x+1}")
                a(f"v_cvt_pk_bf16_f32 v{d+1}, v{x+2}, v{x+3}")
    a(f"v_add_u32 v{V_K}, 0x4000, v{V_LANE16}")
    for i in range(4):
        a(f"v_mov_b32 v{NEGM+i}, 0")
        a(f"v_mov_b32 v{ET+i}, 0")
    a("s_mov_b32 s36, 0")
    a(f"s_mov_b32 s37, 0x{THRESH:x}")
    zero_acc(a, CIN, 32, ET, "v", init=False)
    a(f"v_and_b32 v{V_T}, 0xf0, v{V_LANE16}")
    a(f"v_cmp_eq_u32 vcc, 0, v{V_T}")
    a(f"v_mov_b32 v{V_T}, 0x3f803f80")
    a(f"v_lshrrev_b32 v{V_PS}, 7, v{V_LANE16}")
    a("s_lshr_b32 s4, s56, 3")
    a(f"v_mul_u32_u24 v{V_PF}, s4, v{V_PS}")
    a(f"v_and_b32 v{V_T2}, 0x70, v{V_LANE16}")
    a(f"v_add_u32 v{V_PF}, v{V_PF}, v{V_T2}")
    a(f"v_lshlrev_b32 v{V_PS}, 5, v{V_PS}")
    a(f"v_and_b32 v{V_C}, 0x10, v{V_LANE16}")
    a(f"v_add_u32 v{V_PS}, v{V_PS}, v{V_C}")
    a(f"v_lshrrev_b32 v{V_T2}, 5, v{V_T2}")
    a(f"v_lshl_add_u32 v{V_PS}, v{V_T2}, 15, v{V_PS}")
    for r in range(4):
        a(f"v_cndmask_b32 v{ONES+r}, 0, v{V_T}, vcc")
    for i in range(4):
        for r in range(4):
            a(f"v_mov_b32 v{LQ[i]+r}, 0")
    stamp(a, 4)
    outl = []
    body(a, outl, 1, "D", None, None, None, None, "cond")
    zero_acc(a, 0, 128, ET, init=False)
    row_max(a, "D", 0, False)
    for sl in range(8):
        for r in range(4):
            a(f"v_sub_f32 v{CIN+4*sl+r}, 0, v{DL + sl % 4}")
    for qb in range(4):
        a(f"v_sub_f32 v{NEGM+qb}, 0, v{DL+qb}")
    body(a, outl, 0, "D", "D", None, "D", "end", "cond", first=late)
    a.srd_off(24, 6, CTX_OFF, 16 << 20)
    a("s_lshl_b32 s63, s29, 1")
    a("s_add_u32 s63, s63, 1")
    loop = a.uid("k2_dloop")
    a.label(loop)
    body(a, outl, 1, "D", "D", "D", "D", None, "cond", dk=(1, 24), side=True)
    body(a, outl, 0, "D", "D", "D", "D", "end", "cond", dv=(2, 64), tail=["s_sub_u32 s63, s63, 1"])
    a("s_cmp_lg_u32 s63, 0")
    a(f"s_cbranch_scc1 {loop}")
    stamp(a, 5)
    body(a, outl, 1, "S", "D", "D", "D", None, "always", dk=(1, 36), side=False)
    body(a, outl, 0, "S", "S", "D", "S", "mid", "cond", dv=(1, 35), dk=(37, 67))
    for t in ctx_base(38) + l_final([0, 1]):
        a(t)
    n = 0
    for qb in range(2):
        for c in range(4):
            tx, st = out_ops(qb, c, Q + (n % 2) * 12, True)
            n += 1
            for t in tx + [st]:
                a(t)
    a("s_lshl_b32 s63, s29, 1")
    a("s_sub_u32 s63, 14, s63")
    loop, done = a.uid("k2_sloop"), a.uid("k2_sdone")
    a("s_cmp_eq_u32 s63, 0")
    a(f"s_cbranch_scc1 {done}")
    a.label(loop)
    body(a, outl, 1, "S", "S", "S", "S", "mid", "cond", dv=(1, 35), dk=(37, 67))
    body(a, outl, 0, "S", "S", "S", "S", "mid", "cond", dv=(1, 35), dk=(37, 67), tail=["s_sub_u32 s63, s63, 1"])
    a("s_cmp_lg_u32 s63, 0")
    a(f"s_cbranch_scc1 {loop}")
    a.label(done)
    body(a, outl, 1, None, "S", "S", "S", "epi", None)
    if next_code:
        a(f"v_lshrrev_b32 v{V_T}, 4, v{V_LANE16}")
        a(f"v_and_b32 v{V_T}, 31, v{V_T}")
        code_addr(a, next_code, TMP, V_T, 40)
        a(f"global_load_dword v{V_T2}, v[{TMP}:{TMP+1}], off")
    mf = pv_mfmas("S", 1)
    mf = mf[:4] + [mf[4 + ks * 16 + db * 2 + q] for db in range(8) for ks in range(2) for q in range(2)]
    ops = spread(ctx_base(39), "S", 0, 8)
    lf = spread(l_final([2, 3]), "A", 8, 14)
    ops += lf
    ops.append(Op("s_waitcnt lgkmcnt(0)", "S", 3, lo=3, hard=3))
    prev = {}
    n = 0
    for c in range(4):
        for qb in (2, 3):
            t = 128 + (n % 4) * 12
            g0 = 4 + 8 * c + 7 + 4
            tx, st = out_ops(qb, c, t, False)
            o = spread(tx, "A", g0, g0 + 8)
            o[0].after += [lf[-1]] + prev.get(t, [])
            so = Op(st, "V", g0 + 8, after=[o[-1], ops[5]])
            prev[t] = [so]
            ops += o + [so]
            n += 1
    stamp(a, 6)
    schedule(a, mf, ops)
    tr_dump(a, 6, 30, V_LANE16)
    stamp_dump(a, kidx, 7, 6)
    a.label(end)
    a("s_endpgm")
    for o in outl:
        if o[0] == "prep":
            a.label(o[1])
            cin_prep(a, o[2])
            a(f"s_branch {o[3]}")
    for (sl, txt, ret) in stubs:
        a.label(sl)
        a(txt)
        a(f"s_branch {ret}")
    for o in outl:
        if o[0] == "rare":
            a.label(o[1])
            rare_path(a, *o[2:])
```

```python
from common import *
import common, os
from sched import Op, spread, schedule

SPIN_MAX = 1 << 20


def vq(b):
    return f"v[{b}:{b+3}]"


def aq(b):
    return f"a[{b}:{b+3}]"


def gen_k3(a, name="k3_kernel"):
    a.begin_kernel(name)
    end = a.uid("k3_end")
    stubs = []

    def when(cmp_text, body, want, **kw):
        l, r = a.uid("k3_ool"), a.uid("k3_oolret")
        stubs.append((l, body, r))
        return Op(f"{cmp_text}\ns_cbranch_scc1 {l}\n{r}:", "B", want, **kw)

    a("s_cmp_ge_u32 s2, 256")
    a(f"s_cbranch_scc1 {end}")
    stamp(a, 0)
    a(f"s_load_dwordx2 s[4:5], s[0:1], {ARG['wo']}")
    a(f"s_load_dwordx2 s[6:7], s[0:1], {ARG['ws']}")
    a(f"s_load_dwordx2 s[28:29], s[0:1], {ARG['x']}")
    a(f"s_load_dwordx2 s[30:31], s[0:1], {ARG['wr']}")
    a("s_lshr_b32 s41, s2, 3")
    a("s_bfe_u32 s44, s2, 0x10002")
    a("s_and_b32 s42, s2, 1")
    a("s_lshl_b32 s42, s42, 3")
    a("s_and_b32 s43, s41, 7")
    a("s_add_u32 s42, s42, s43")
    a("s_and_b32 s43, s2, 2")
    a("s_lshl_b32 s43, s43, 1")
    a("s_lshr_b32 s40, s41, 3")
    a("s_add_u32 s43, s43, s40")
    a("v_lshrrev_b32 v10, 6, v0")
    a("v_and_b32 v11, 63, v0")
    a("v_readfirstlane_b32 s45, v10")
    a("v_lshlrev_b32 v1, 4, v11")
    a("s_lshl_b32 s46, s42, 7")
    a("s_lshl_b32 s47, s45, 5")
    a("s_add_u32 s46, s46, s47")
    a("s_lshl_b32 s47, s46, 6")
    a("v_add_u32 v12, s47, v1")
    a("v_add_u32 v13, 0x20000, v12")
    a("v_lshrrev_b32 v20, 4, v11")
    a("v_bfe_u32 v21, v11, 1, 3")
    a("v_xor_b32 v21, v21, v20")
    a("v_and_b32 v22, 1, v11")
    a("v_lshl_add_u32 v23, v10, 4, v20")
    a("v_lshlrev_b32 v23, 11, v23")
    a("v_lshl_add_u32 v23, v22, 4, v23")
    a("s_lshl_b32 s47, s43, 8")
    a("v_add_u32 v23, s47, v23")
    for i in range(4):
        a(f"v_xor_b32 v22, {(i % 2) * 4}, v21")
        a("v_lshl_add_u32 v22, v22, 5, v23")
        a(f"v_add_u32 v{16+i}, {4*i*2048 - i*1024}, v22")
    a("s_lshl_b32 s60, s45, 12")
    a("s_lshl_b32 s61, s44, 22")
    a("s_lshl_b32 s62, s44, 23")
    a("s_waitcnt lgkmcnt(0)")
    a.srd_off(8, 6, CTX_OFF, 16 << 20)
    a.srd(12, 4, 8 << 20)
    a("s_add_u32 s10, s62, 0x800000")
    a("s_add_u32 s14, s61, 0x400000")
    XR = 128
    FW = [0, 64]

    def wdma(p):
        return (f"s_add_u32 m0, s60, {(p % 4)*16384}",
                [f"buffer_load_dwordx4 v{16+i}, s[12:15], s61 offen offset:{i*1024} lds" for i in range(4)], "s_add_u32 s61, s61, 0x20000")

    def xloads(p):
        return (None, [f"buffer_load_dwordx4 {aq(XR + (p % 4)*16 + 8*ks + 4*tb)}, v{12+ks}, s[8:11], s62 offen offset:{tb*1024}" for ks in range(2) for tb in range(2)],
                "s_add_u32 s62, s62, 0x40000")

    def now(g):
        if g[0]:
            a(g[0])
            a("s_nop 0")
        for t in g[1] + [g[2]]:
            a(t)

    for g in (wdma(0), xloads(0), wdma(1), xloads(1), wdma(2), xloads(2)):
        now(g)
    stamp(a, 1)
    a.srd(16, 28, 4 << 20)
    a.srd(20, 30, 2048)
    a.srd_off(24, 6, H_OFF, 4 << 20)
    a.srd_off(32, 6, STATS_OFF, 3 * 8192)
    a.srd_off(36, 6, XCH_OFF, 8 << 20)
    a.srd_off(48, 6, XFL_OFF, 32768)
    a("v_and_b32 v21, 15, v11")
    a("v_add_u32 v22, s46, v21")
    a("v_lshlrev_b32 v2, 2, v22")
    a("v_lshl_add_u32 v2, v20, 13, v2")
    a("v_lshlrev_b32 v22, 11, v22")
    a("s_lshl_b32 s52, s44, 7")
    a("s_add_u32 s47, s47, s52")
    a("v_lshl_add_u32 v14, v20, 3, s47")
    a("v_add_u32 v3, v22, v14")
    a("v_add_u32 v4, 0x8000, v3")
    a("s_lshl_b32 s52, s2, 14")
    a("s_add_u32 s52, s52, s60")
    a("s_xor_b32 s53, s52, 0x10000")
    a("s_lshl_b32 s54, s2, 7")
    a("s_xor_b32 s55, s54, 0x200")
    a("v_mov_b32 v5, 0")
    a("v_mov_b32 v6, 1")
    XE, WR = 128, 144
    a("v_lshrrev_b32 v22, 2, v21")
    a("v_lshl_add_u32 v22, v20, 2, v22")
    a("v_and_b32 v23, 7, v22")
    a("s_lshl_b32 s56, s44, 2")
    a("v_xor_b32 v23, s56, v23")
    a("v_lshlrev_b32 v22, 8, v22")
    a("v_and_b32 v32, 3, v11")
    a("v_lshl_add_u32 v22, v32, 3, v22")
    for j in range(8):
        a(f"v_xor_b32 v32, {j}, v23")
        a(f"v_lshl_add_u32 v{24+j}, v32, 5, v22")
    a("s_mov_b32 s57, (code_end-k3_tail)/128")
    ACC = 64
    zero_acc(a, ACC, 64, 56, "v")

    def wreads(p):
        out = []
        for ks in range(2):
            for cb in range(8):
                b = FW[p % 2] + (ks * 8 + cb) * 4
                off = (p % 4) * 16384 + ks * 8192
                out.append(f"ds_read_b64_tr_b16 a[{b}:{b+1}], v{24+cb} offset:{off}")
                out.append(f"ds_read_b64_tr_b16 a[{b+2}:{b+3}], v{24+cb} offset:{off + 4096}")
        return out

    def mf(p):
        out = []
        for ks in range(2):
            for cb in (4, 5, 6, 7, 0, 1, 2, 3):
                for tb in range(2):
                    c = vq(ACC + (cb * 2 + tb) * 4)
                    out.append(mfma16(c, aq(FW[p % 2] + (ks * 8 + cb) * 4), aq(XR + (p % 4) * 16 + 8 * ks + 4 * tb), c))
        return out

    epi_loads = []
    for tb in range(2):
        for cb in range(4):
            b = XE + (tb * 4 + cb) * 2
            epi_loads.append(f"buffer_load_dwordx2 v[{b}:{b+1}], v{3+tb}, s[16:19], 0 offen offset:{cb*32}")
    for cb in range(4):
        epi_loads.append(f"buffer_load_dwordx2 v[{WR+2*cb}:{WR+2*cb+1}], v14, s[20:23], 0 offen offset:{cb*32}")

    a("v_min_u32 v33, s57, v0")
    code_addr(a, "k3_tail", 8, 33, 58)
    epi_loads.append("global_load_dword v7, v[8:9], off")
    a("s_waitcnt vmcnt(20)")
    a("s_barrier")
    for t in wreads(0):
        a(t)
    a("s_mov_b32 s63, 0")
    a("s_waitcnt vmcnt(12) lgkmcnt(0)")
    a("s_barrier")
    stamp(a, 2)
    loop = a.uid("k3_loop")
    a.label(loop)
    for p in range(4):
        rd = spread(wreads(p + 1), "M", 0, 25)
        ops = list(rd)
        prev = []
        k = 0
        for (m, ld, tr) in (wdma(p + 3), xloads(p + 3)):
            mo = None
            if m:
                mo = Op(m, "S", 0)
                ops.append(mo)
            for t in ld:
                o = Op(t, "V", 1 + 3.5 * k, after=prev, prev_gap=[mo] if mo else [])
                ops.append(o)
                prev = [o]
                k += 1
            ops.append(Op(tr, "S", 2 + 3.5 * k, after=prev))
        ex = "\n".join(epi_loads) if p == 0 else ""
        wo = None
        if ex:
            wo = when("s_cmp_eq_u32 s63, 7", ex, 29, lo=26, after=prev + rd)
            ops.append(wo)
        if p == 3:
            ops.append(Op("s_add_u32 s63, s63, 1", "S", 30, after=[wo] if wo else []))
        ops.append(Op("s_waitcnt vmcnt(12) lgkmcnt(0)\ns_barrier", "S", 31, lo=31, hard=31, after=[o for o in ops if o.cls in "MVB"]))
        schedule(a, mf(p), ops)
    a("s_cmp_lt_u32 s63, 8")
    a(f"s_cbranch_scc1 {loop}")
    a.label("k3_tail")
    stamp(a, 3)
    a("s_nop 1")
    for q in range(4):
        c = ACC + 32 + 8 * q
        for r in range(4):
            a(f"v_cvt_pk_bf16_f32 v{c+r}, v{c+2*r}, v{c+2*r+1}")
        a(f"buffer_store_dwordx4 {vq(c)}, v1, s[36:39], s52 offen offset:{q*1024} sc1")
    a("s_waitcnt vmcnt(4)")
    for cb in range(4):
        for tb in range(2):
            c, xb = ACC + (cb * 2 + tb) * 4, XE + (tb * 4 + cb) * 2
            for h in range(2):
                a(f"v_lshlrev_b32 v58, 16, v{xb+h}")
                a(f"v_and_b32 v59, 0xffff0000, v{xb+h}")
                a(f"v_pk_add_f32 v[{c+2*h}:{c+2*h+1}], v[{c+2*h}:{c+2*h+1}], v[58:59]")
    a("v_and_b32 v58, 1, v20")
    a("v_lshrrev_b32 v59, 1, v20")
    a("v_lshlrev_b32 v58, 5, v58")
    a("v_lshl_add_u32 v58, v59, 4, v58")
    a("v_lshlrev_b32 v59, 3, v20")
    a("v_sub_u32 v58, v58, v59")
    a("v_add_u32 v3, v3, v58")
    a("v_add_u32 v4, v4, v58")
    for i in range(8):
        a(f"v_lshlrev_b32 v{32+2*i}, 16, v{WR+i}")
        a(f"v_and_b32 v{33+2*i}, 0xffff0000, v{WR+i}")
    nw = a.uid("k3_nowr")
    a("s_or_b32 s57, s42, s45")
    a(f"s_cbranch_scc1 {nw}")
    a("v_pk_add_f32 v[56:57], v[32:33], v[34:35]")
    for i in range(4, 16, 2):
        a(f"v_pk_add_f32 v[56:57], v[56:57], v[{32+i}:{33+i}]")
    a("v_add_f32 v56, v56, v57")
    for sw in ("v_permlane16_swap_b32", "v_permlane32_swap_b32"):
        a("v_mov_b32 v57, v56")
        a("s_nop 1")
        a(f"{sw} v56, v57")
        a("s_nop 1")
        a("v_add_f32 v56, v56, v57")
    a(f"s_mov_b32 s57, {WRSUM_OFF - STATS_OFF}")
    a(f"s_mov_b32 s34, {WRSUM_OFF - STATS_OFF + 4}")
    a("s_mov_b64 exec, 1")
    a("buffer_atomic_add_f32 v56, v5, s[32:35], s57 offen")
    a("s_mov_b64 exec, -1")
    a(f"s_mov_b32 s34, {3 * 8192}")
    a.label(nw)
    SA = 144
    for i in range(12):
        a(f"v_mov_b32 v{SA+i}, 0")
    a("s_waitcnt vmcnt(0)")
    a("s_barrier")
    sk, lp = a.uid("k3_nopoll"), a.uid("k3_spin")
    a("s_cmp_lg_u32 s45, 0")
    a(f"s_cbranch_scc1 {sk}")
    a("s_mov_b64 exec, 1")
    a("buffer_store_dword v6, v5, s[48:51], s54 offen sc1")
    a("s_mov_b64 exec, -1")
    a(f"s_mov_b32 s57, {SPIN_MAX}")
    a.label(lp)
    a("buffer_load_dword v7, v5, s[48:51], s55 offen sc1")
    a("s_waitcnt vmcnt(0)")
    a("v_readfirstlane_b32 s58, v7")
    a("s_sub_u32 s57, s57, 1")
    a("s_cselect_b32 s58, 1, s58")
    a("s_cmp_eq_u32 s58, 0")
    a(f"s_cbranch_scc1 {lp}")
    a.label(sk)
    a("s_barrier")
    for q in range(4):
        a(f"buffer_load_dwordx4 {vq(ACC + 32 + 4*q)}, v1, s[36:39], s53 offen offset:{q*1024} sc1")
    def next_pf():
        a("s_and_b32 s56, s2, 7")
        a("s_mul_i32 s56, s56, 28")
        a("s_add_u32 s56, s56, s41")
        a("s_lshl_b32 s56, s56, 15")
        a("s_lshl_b32 s57, s45, 13")
        a("s_add_u32 s56, s56, s57")
        a.srd_off(8, 6, RPK_OFF, 16 << 20)
        a("s_cmp_ge_u32 s2, 224")
        a("s_cselect_b32 s10, 0, s10")
        a("v_lshlrev_b32 v8, 3, v1")
        for m in range(NPF):
            a("buffer_load_dword v9, v8, s[8:11], s56 offen")
            a("s_add_u32 s56, s56, 0x800000")
    NPF = int(os.environ.get("K3NPF", "2"))
    PFP = os.environ.get("K3PFP", "B")
    if PFP == 'A':
        next_pf()
    stamp(a, 4)
    P2 = lambda r: f"v[{r}:{r+1}]"
    nst = NPF if PFP == 'A' else 0
    for cb in range(4):
        a(f"s_waitcnt vmcnt({3 - cb + nst})")
        for tb in range(2):
            c = ACC + (cb * 2 + tb) * 4
            xb = XE + (tb * 4 + cb) * 2
            S = SA + tb * 6
            for h in range(2):
                src = ACC + 32 + 4 * cb + 2 * tb + h
                a(f"v_lshlrev_b32 v{56+2*h}, 16, v{src}")
                a(f"v_and_b32 v{57+2*h}, 0xffff0000, v{src}")
            for h in range(2):
                a(f"v_pk_add_f32 {P2(c+2*h)}, {P2(c+2*h)}, {P2(56+2*h)}")
            for h in range(2):
                a(f"v_cvt_pk_bf16_f32 v{xb+h}, v{c+2*h}, v{c+2*h+1}")
            for h in range(2):
                a(f"v_lshlrev_b32 v{c+2*h}, 16, v{xb+h}")
                a(f"v_and_b32 v{c+2*h+1}, 0xffff0000, v{xb+h}")
            if cb % 2:
                a(f"v_permlane16_swap_b32 v{xb-2}, v{xb}")
                a(f"v_permlane16_swap_b32 v{xb-1}, v{xb+1}")
                a(f"buffer_store_dwordx4 {vq(xb-2)}, v{3+tb}, s[24:27], 0 offen offset:{(cb//2)*64} sc1")
                nst += 1
            for h in range(2):
                a(f"v_pk_add_f32 {P2(S)}, {P2(S)}, {P2(c+2*h)}")
                a(f"v_pk_fma_f32 {P2(S+2)}, {P2(c+2*h)}, {P2(c+2*h)}, {P2(S+2)}")
                a(f"v_pk_fma_f32 {P2(S+4)}, {P2(c+2*h)}, {P2(32+cb*4+2*h)}, {P2(S+4)}")
    for tb in range(2):
        for k in range(3):
            a(f"v_add_f32 v{48+tb*4+k}, v{SA+tb*6+2*k}, v{SA+tb*6+2*k+1}")
    regs = [48, 49, 50, 52, 53, 54]
    for sw in ("v_permlane16_swap_b32", "v_permlane32_swap_b32"):
        for i, r in enumerate(regs):
            a(f"v_mov_b32 v{56+i}, v{r}")
        a("s_nop 1")
        for i, r in enumerate(regs):
            a(f"{sw} v{r}, v{56+i}")
        a("s_nop 1")
        for i, r in enumerate(regs):
            a(f"v_add_f32 v{r}, v{r}, v{56+i}")
    a("v_cmp_eq_u32 s[56:57], 1, v20")
    a("v_cmp_eq_u32 s[58:59], 2, v20")
    a("s_nop 1")
    for tb in range(2):
        b = 48 + tb * 4
        a(f"v_cndmask_b32 v{b}, v{b}, v{b+1}, s[56:57]")
        a(f"v_cndmask_b32 v{b}, v{b}, v{b+2}, s[58:59]")
        a(f"buffer_atomic_add_f32 v{b}, v2, s[32:35], 0 offen offset:{tb*64}")
    if PFP == 'B':
        next_pf()
    stamp(a, 5)
    stamp_dump(a, 2, 6, 6)
    a.label(end)
    a("s_endpgm")
    for (sl, txt, ret) in stubs:
        a.label(sl)
        a(txt)
        a(f"s_branch {ret}")
    a.end_kernel(name, 156, 192)
    a.launch(name, 256, 256, 65536)
```

```python
from common import *
import common, os
from sched import Op, spread, schedule
import k2
from k2 import vq, aq, V_LANE16, V_VV, V_NINF, attention_phase, LDF

SPIN_MAX = 1 << 20
KO = set(os.environ.get('KO', '').split(','))
NT = ' nt' if 'nt' in KO else ''
ENV = lambda k, d: int(os.environ.get(k, str(d)))

ZERO, ONE = 8, 9
XD, WD, XRD, WRD = 10, 18, 26, 28
QX, QWD, QWR = 36, 38, 42
VPF, VDUM, VPOLL, VXST, VLW, VLR = 50, 51, 52, 53, 54, 55
PT = 56
PK = 64
WRING = 98304


def spin_text(a, soff, target, VPOLL=VPOLL, ZERO=ZERO):
    ok, lp = a.uid("spin_ok"), a.uid("spin")
    return "\n".join([
        f"v_readfirstlane_b32 s31, v{VPOLL}", f"s_cmp_ge_u32 s31, {target}", f"s_cbranch_scc1 {ok}",
        f"s_mov_b32 s40, {SPIN_MAX}", f"{lp}:", "s_sleep 8",
        f"buffer_load_dword v{VPOLL}, v{ZERO}, s[24:27], {soff} offen sc1", "s_waitcnt vmcnt(0)",
        f"v_readfirstlane_b32 s31, v{VPOLL}", "s_sub_u32 s40, s40, 1", "s_cselect_b32 s31, -1, s31",
        f"s_cmp_lt_u32 s31, {target}", f"s_cbranch_scc1 {lp}", f"{ok}:"])


def one_lane(text):
    return f"s_mov_b64 exec, 1\n{text}\ns_mov_b64 exec, -1"


def gen_k12(a, name="k12_kernel", fuse=False, ffn=None):
    a.begin_kernel(name)
    end = a.uid("k12_end")
    stubs = []
    pst = (lambda i: stamp(a, i)) if "ptrace" in KO else (lambda i: None)

    def when(cmp_text, body, want, **kw):
        l, r = a.uid("k12_ool"), a.uid("k12_oolret")
        if "nosig" in KO and "s[24:27]" in body:
            body = "s_nop 0"
        stubs.append((l, body, r))
        return Op(f"{cmp_text}\ns_cbranch_scc1 {l}\n{r}:", "B", want, **kw)

    a("s_cmp_ge_u32 s2, 256")
    a(f"s_cbranch_scc1 {end}")
    stamp(a, 0)
    a(f"s_load_dwordx4 s[36:39], s[0:1], {ARG['x']}")
    a(f"s_load_dwordx4 s[40:43], s[0:1], {ARG['wuk']}")
    a(f"s_load_dwordx2 s[4:5], s[0:1], {ARG['wq']}")
    a(f"s_load_dwordx4 s[60:63], s[0:1], {ARG['dbg']}")
    CE = ENV("CE", 48)
    a("s_lshr_b32 s59, s2, 3")
    a("s_lshl_b32 s58, s59, 4")
    a("v_add_u32 v6, s58, v0")
    a(f"v_cmp_gt_u32 vcc, {CE}, v0")
    a(f"v_cmp_gt_u32 s[56:57], {CE + 16}, v0")
    a("s_nop 0")
    a("v_cndmask_b32 v6, v6, v0, vcc")
    code_addr(a, "k12_code0", 58, 6, 52)
    a.label("k12_code0")
    a("s_mov_b64 exec, s[56:57]")
    cs = a.uid("k12_nocode")
    a(f"s_cbranch_execz {cs}")
    a(f"global_load_dword v{VDUM}, v[58:59], off")
    a.label(cs)
    a("s_mov_b64 exec, -1")
    a("s_and_b32 s58, s2, 7")
    a("s_lshr_b32 s59, s2, 3")
    a("s_and_b32 s45, s59, 7")
    a("s_lshr_b32 s57, s59, 3")
    a("s_and_b32 s44, s57, 1")
    a("s_lshl_b32 s52, s58, 1")
    a("s_add_u32 s44, s44, s52")
    a("s_lshr_b32 s57, s57, 1")
    W, LN_ = 2, 3
    a(f"v_lshrrev_b32 v{W}, 6, v0")
    a(f"v_and_b32 v{LN_}, 63, v0")
    a(f"v_readfirstlane_b32 s30, v{W}")
    a(f"v_lshlrev_b32 v{V_LANE16}, 4, v{LN_}")
    VX, VT = 64, 80
    TOK, L32 = 60, 61
    a(f"v_lshrrev_b32 v{TOK}, 5, v{LN_}")
    a(f"v_lshl_add_u32 v{TOK}, v{W}, 1, v{TOK}")
    a(f"v_and_b32 v{L32}, 31, v{LN_}")
    a(f"v_lshlrev_b32 v6, 11, v{TOK}")
    a(f"v_lshl_add_u32 v62, v{L32}, 4, v6")
    a("s_lshl_b32 s52, s2, 14")
    a(f"v_lshrrev_b32 v56, 3, v{LN_}")
    a(f"v_and_b32 v57, 7, v{LN_}")
    a("v_lshrrev_b32 v58, 1, v56")
    a("v_xor_b32 v6, v57, v58")
    a("v_xor_b32 v7, 4, v6")
    a(f"v_lshl_add_u32 v58, v{W}, 6, v56")
    a("v_lshlrev_b32 v58, 10, v58")
    a("s_lshl_b32 s47, s45, 18")
    a("v_add_u32 v58, s47, v58")
    a(f"v_lshl_add_u32 v{XD}, v6, 4, v58")
    a(f"v_lshl_add_u32 v{XD+1}, v7, 4, v58")
    for i in range(7, -1, -1):
        a(f"v_add_u32 v{XD+i}, {i*8*1024 - (i%4)*1024}, v{XD + (i%2)}")
    a(f"v_lshrrev_b32 v6, 5, v{LN_}")
    a(f"v_bfe_u32 v7, v{LN_}, 1, 4")
    a(f"v_and_b32 v59, 1, v{LN_}")
    a(f"v_lshl_add_u32 v58, v{W}, 4, v6")
    a("v_lshlrev_b32 v58, 13, v58")
    a("v_lshl_add_u32 v58, v59, 4, v58")
    a("s_lshl_b32 s47, s44, 9")
    a("v_add_u32 v58, s47, v58")
    a("v_xor_b32 v7, v7, v6")
    for i in range(8):
        fx = ((2 * i) & 3) | ((((2 * i) >> 3) & 1) << 2)
        a(f"v_xor_b32 v6, {fx}, v7")
        a(f"v_lshl_add_u32 v6, v6, 5, v58")
        a(f"v_add_u32 v{WD+i}, {2*i*8192 - (i%4)*1024}, v6")
    XB, WB = 0, 65536
    a("s_lshl_b32 s48, s30, 13")
    a("s_mov_b32 s49, 0")
    a("s_mov_b32 s50, 0")
    pst(1)
    a("s_waitcnt lgkmcnt(0)")
    a.srd(24, 36, 4 << 20)
    for i in range(4):
        a(f"buffer_load_dwordx4 v[{VX+4*i}:{VX+4*i+3}], v62, s[24:27], s52 offen offset:{i*512}{NT}")
    a.srd(16, 38, 2 << 20)
    a("s_cmp_eq_u32 s57, 0")
    a("s_cselect_b32 s20, s40, s42")
    a("s_cselect_b32 s21, s41, s43")
    a("s_and_b32 s21, s21, 0xffff")
    a("s_mov_b32 s22, 0x400000")
    a("s_mov_b32 s23, 0x00020000")

    def dma_grp(stage, g):
        op, i0 = g // 2, (g % 2) * 4
        m = f"s_add_u32 m0, s48, {(XB if op == 0 else WB) + stage*32768 + i0*1024}"
        if op == 0:
            ld = [f"buffer_load_dwordx4 v{XD+i0+i}, s[16:19], s49 offen offset:{i*1024} lds" for i in range(4)]
        else:
            ld = [f"buffer_load_dwordx4 v{WD+i0+i}, s[20:23], s50 offen offset:{i*1024}{NT} lds" for i in range(4)]
        tr = {1: "s_add_u32 s49, s49, 128", 3: "s_add_u32 s50, s50, 0x80000"}.get(g)
        return m, ld, tr

    def emit_grp(m, ld, tr):
        a(m)
        a("s_nop 0")
        for t in ld:
            a(t)
        if tr:
            a(tr)

    def grp_sched(grps, lo, hi, after=()):
        ops, prev = [], list(after)
        tot = sum(len(g[1]) for g in grps)
        step = (hi - lo) / float(tot)
        k = 0
        for (m, ld, tr) in grps:
            mo = None
            if m:
                mo = Op(m, "S", lo + step * k - 1, lo=lo, after=prev)
                ops.append(mo)
            for t in ld:
                o = Op(t, "V", lo + 1 + step * k, lo=lo, after=prev, prev_gap=[mo] if mo else [])
                ops.append(o)
                prev = [o]
                k += 1
            if tr:
                for t in tr.split("\n"):
                    o = Op(t, "S", lo + step * k, after=prev)
                    ops.append(o)
                    prev = [o]
        return ops, prev

    PG = ENV("PG", 2)
    order0 = [0, 2, 1, 3]
    for g in order0[:PG]:
        emit_grp(*dma_grp(0, g))
    pst(2)
    a("s_mov_b64 s[6:7], s[62:63]")
    a.srd_off(8, 6, XN_OFF, 4 << 20)
    a.srd(12, 4, 8 << 20)
    a.srd_off(32, 6, KF_OFF, 32 << 20)
    a.srd(24, 60, 256)
    a("s_lshl_b32 s28, s58, 2")
    a("s_and_b32 s31, s59, 3")
    a("s_add_u32 s28, s28, s31")
    a("s_lshr_b32 s29, s59, 2")
    a("s_lshl_b32 s42, s29, 7")
    a("s_sub_u32 s43, 1920, s42")
    a("s_lshl_b32 s31, s30, 4")
    a("s_add_u32 s38, s42, s31")
    a("s_add_u32 s39, s43, s31")
    a("s_lshl_b32 s60, s30, 12")
    a("s_mov_b32 s61, 0")
    a("s_mov_b32 s62, 0")
    a("s_lshl_b32 s47, s44, 1")
    a("s_lshr_b32 s52, s30, 1")
    a("s_add_u32 s47, s47, s52")
    a("s_lshl_b32 s47, s47, 14")
    a("s_lshl_b32 s52, s45, 1")
    a("s_and_b32 s53, s30, 1")
    a("s_add_u32 s52, s52, s53")
    a("s_lshl_b32 s52, s52, 20")
    a("s_add_u32 s47, s47, s52")
    a("s_lshl_b32 s52, s57, 24")
    a("s_add_u32 s47, s47, s52")
    assert VF_OFF - KF_OFF == 1 << 24
    a("s_lshl_b32 s54, s44, 8")
    a("s_lshr_b32 s55, s28, 1")
    a("s_lshl_b32 s55, s55, 8")
    a("s_and_b32 s53, s59, 3")
    a("s_add_u32 s53, s53, 1")
    a("s_cmp_eq_u32 s30, 0")
    a("s_cselect_b32 s53, s53, -1")
    a("s_cselect_b32 s46, 6, -1")
    a("v_lshlrev_b32 v6, 13, v56")
    a(f"v_lshl_add_u32 v{VPF}, v57, 7, v6")
    a("s_lshl_b32 s56, s30, 5")
    a("s_add_u32 s56, s56, s59")
    a("s_lshl_b32 s56, s56, 16")
    a("s_lshl_b32 s52, s58, 10")
    a("s_add_u32 s56, s56, s52")
    a("s_lshl_b32 s63, s30, 1")
    pf = f"buffer_load_dword v{VDUM}, v{VPF}, s[12:15], s56 offen" if "nowq" not in KO else "s_nop 0"
    for g in order0[PG:2]:
        emit_grp(*dma_grp(0, g))
    XL = 131072
    a(f"v_mul_u32_u24 v6, 2064, v{TOK}")
    a(f"v_lshl_add_u32 v6, v{L32}, 4, v6")
    a(f"v_add_u32 v{VLW}, {XL}, v6")
    a("v_mul_u32_u24 v7, 2064, v57")
    a("v_lshl_add_u32 v7, v56, 4, v7")
    a(f"v_lshl_add_u32 v7, v{W}, 9, v7")
    a(f"v_add_u32 v{VLR}, {XL}, v7")
    a("v_lshrrev_b32 v7, 2, v56")
    a(f"v_lshl_add_u32 v7, v{W}, 3, v7")
    a("v_lshlrev_b32 v7, 17, v7")
    a("v_and_b32 v6, 3, v56")
    a("v_lshl_add_u32 v7, v6, 8, v7")
    a("v_lshl_add_u32 v7, v57, 4, v7")
    a("s_lshr_b32 s52, s2, 1")
    a("s_lshl_b32 s52, s52, 10")
    a("s_and_b32 s31, s2, 1")
    a("s_lshl_b32 s31, s31, 7")
    a("s_add_u32 s52, s52, s31")
    a(f"v_add_u32 v{VXST}, s52, v7")
    a(f"v_and_b32 v56, 15, v{LN_}")
    a(f"v_lshrrev_b32 v57, 4, v{LN_}")
    a("v_lshrrev_b32 v6, 1, v56")
    a("v_xor_b32 v6, v6, v57")
    a(f"v_and_b32 v7, 1, v{W}")
    a("v_lshl_add_u32 v7, v7, 7, v56")
    a("v_lshlrev_b32 v7, 7, v7")
    a(f"v_lshl_add_u32 v{XRD}, v6, 4, v7")
    a(f"v_xor_b32 v{XRD+1}, 64, v{XRD}")
    a("v_lshrrev_b32 v6, 2, v56")
    a("v_and_b32 v58, 1, v57")
    a("v_lshl_add_u32 v58, v58, 2, v6")
    a("v_lshl_add_u32 v59, v57, 3, v6")
    a(f"v_and_b32 v63, 3, v{LN_}")
    a("v_lshlrev_b32 v7, 9, v59")
    a(f"v_lshrrev_b32 v6, 1, v{W}")
    a("v_lshl_add_u32 v7, v6, 8, v7")
    a("v_lshl_add_u32 v7, v63, 3, v7")
    a(f"v_add_u32 v7, {WB}, v7")
    a("v_lshlrev_b32 v59, 8, v59")
    a("v_lshl_add_u32 v59, v63, 3, v59")
    a(f"v_add_u32 v59, {WRING}, v59")
    for j in range(8):
        a(f"v_xor_b32 v6, {j}, v58")
        a(f"v_lshl_add_u32 v{WRD+j}, v6, 5, v7")
        a(f"v_lshl_add_u32 v{QWR+j}, v6, 5, v59")
    a("s_lshl_b32 s31, s38, 6")
    a(f"v_add_u32 v{QX}, s31, v{V_LANE16}")
    a("s_lshl_b32 s31, s39, 6")
    a(f"v_add_u32 v{QX+1}, s31, v{V_LANE16}")
    a(f"v_bfe_u32 v6, v{LN_}, 1, 3")
    a(f"v_and_b32 v7, 1, v{LN_}")
    a(f"v_lshl_add_u32 v58, v{W}, 4, v57")
    a("v_lshlrev_b32 v58, 13, v58")
    a("v_lshl_add_u32 v58, v7, 4, v58")
    a("s_lshl_b32 s31, s28, 8")
    a("v_add_u32 v58, s31, v58")
    a("v_xor_b32 v6, v6, v57")
    for i in range(4):
        a(f"v_xor_b32 v7, {(i // 2) << 2}, v6")
        a(f"v_lshl_add_u32 v7, v7, 5, v58")
        a(f"v_add_u32 v{QWD+i}, {4*i*8192 - i*1024}, v7")
    a("v_lshlrev_b32 v6, 2, v57")
    a(f"v_sub_u32 v{V_VV}, v56, v6")
    a(f"v_mov_b32 v{V_NINF}, 0xff800000")
    a(f"v_mov_b32 v{ZERO}, 0")
    a(f"v_mov_b32 v{ONE}, 1")
    a("s_lshl_b32 s52, s59, 2")
    a("s_add_u32 s52, s52, s30")
    a(f"v_and_b32 v6, 1, v{LN_}")
    a("v_lshl_add_u32 v6, s52, 1, v6")
    code_addr(a, "k12_qcode", 2, 6, 40)
    cpf = f"global_load_dword v{VDUM}, v[2:3], off" if "nocpf" not in KO else "s_nop 0"
    zero_acc(a, 128, 64, 56)
    zero_acc(a, 128, 128, 56, "v", init=False)
    for g in order0[max(PG, 2):]:
        emit_grp(*dma_grp(0, g))
    pst(3)
    a("s_waitcnt vmcnt(16)")
    pst(4)
    t_ = Asm()
    ln_rows_half_wave(t_, VX, VT)
    nl_ = len(t_.lines)
    for i, ln in enumerate(t_.lines):
        a.lines.append(ln)
        for g in range(4):
            if i == nl_ * (g + 1) // 5:
                emit_grp(*dma_grp(1, order0[g]))
    pst(5)
    for i in range(4):
        a(f"ds_write_b128 v{VLW}, v[{VX+4*i}:{VX+4*i+3}] offset:{i*512}")
    pst(6)
    a("s_waitcnt vmcnt(16) lgkmcnt(0)")
    a("s_barrier")
    if "ptrace" in KO:
        stamp_dump(a, 0, 7, 6)
        a("s_endpgm")
    XT = 192
    for i in range(4):
        a(f"ds_read_b128 {aq(XT+4*i)}, v{VLR} offset:{i*128}")
    a(f"v_add_u32 v{VLW}, 4096, v{QX}")
    a(f"v_add_u32 v{VLR}, 4096, v{QX+1}")
    zero_acc(a, 64, 64, 56, "v", init=False)

    FX = [0, 64]
    FW = [32, 96]

    def reads(stage, sp, buf):
        out = []
        for i in range(8):
            out.append(f"ds_read_b128 {aq(FX[buf]+4*i)}, v{XRD+sp} offset:{XB + stage*32768 + i*2048}")
            out.append(f"ds_read_b64_tr_b16 a[{FW[buf]+4*i}:{FW[buf]+4*i+1}], v{WRD+i} offset:{stage*32768 + sp*16384}")
            out.append(f"ds_read_b64_tr_b16 a[{FW[buf]+4*i+2}:{FW[buf]+4*i+3}], v{WRD+i} offset:{stage*32768 + sp*16384 + 2048}")
        return out

    def pair_n(c, j, isv):
        return (c * 8 + j) if isv else (j * 4 + c)

    def acc(i, j, isv):
        n = pair_n(i // 2, j, isv)
        if n < 24:
            return ("v", (64 if i % 2 == 0 else 160) + 4 * n)
        return ("a", 128 + 8 * (n - 24) + 4 * (i % 2))

    def mf1(i, j, buf, isv):
        FA, FB = (FX, FW) if isv else (FW, FX)
        k, c = acc(i, j, isv)
        r = f"{k}[{c}:{c+3}]"
        return mfma16(r, aq(FA[buf] + 4 * i), aq(FB[buf] + 4 * j), r)

    def mfmas(buf, isv):
        return [mf1(i, j, buf, isv) for i in range(8) for j in range(8)]

    skip = a.uid("k12_nostat")
    a(f"s_cmp_ge_u32 s2, {ZERO_BYTES // 4096}")
    a(f"s_cbranch_scc1 {skip}")
    a("s_lshl_b32 s52, s2, 12")
    a(f"s_add_u32 s52, s52, 0x{STATS_OFF - KF_OFF:x}")
    a("s_mov_b32 s34, -1")
    a("v_lshlrev_b32 v6, 4, v0")
    a("buffer_store_dwordx4 v[56:59], v6, s[32:35], s52 offen sc1")
    a(f"s_mov_b32 s34, 0x{32 << 20:x}")
    a.label(skip)
    stamp(a, 1)
    tr_init(a)
    for t in reads(0, 0, 0):
        a(t)
    a("s_mov_b32 s51, 0")
    a("s_waitcnt lgkmcnt(15)")
    for i in range(4):
        a(f"s_mov_b32 s52, {i*2*131072}")
        a(f"buffer_store_dwordx4 {aq(XT+4*i)}, v{VXST}, s[8:11], s52 offen sc1")
    a("s_waitcnt lgkmcnt(0)")
    lv, joined = a.uid("k12_v"), a.uid("k12_join")
    a("s_cmp_lg_u32 s57, 0")
    a(f"s_cbranch_scc1 {lv}")

    DX, DW = ENV("QDX", 3), ENV("QDW", 2)
    XS = lambda ks: 128 + ((ks + 4) % 8) * 16
    QF = [0, 32]

    def wdma(stage):
        return (f"s_add_u32 m0, s60, {WRING + (stage % 4)*16384}",
                [f"buffer_load_dwordx4 v{QWD+i}, s[12:15], s61 offen offset:{i*1024} lds" for i in range(4)], "s_add_u32 s61, s61, 0x80000")

    def xloads(ks):
        return (None, [f"buffer_load_dwordx4 {aq(XS(ks) + 4*qb)}, v{(QX, VLW, QX+1, VLR)[qb]}, s[8:11], s62 offen sc1" for qb in range(4)],
                "s_add_u32 s62, s62, 0x20000")

    def kvstore(n, srd):
        return (f"s_add_u32 s52, s47, {(n // 16) * 0x80000 + (((n % 16) * 1024) & ~4095)}",
                [f"buffer_store_dwordx4 v[{PK+n*4}:{PK+3+n*4}], v{V_LANE16}, {srd}, s52 offen offset:{(n*1024) & 4095} sc1"], None)

    def wreads(stage, sp, buf):
        out = []
        for j in range(8):
            b = QF[buf] + 4 * j
            out.append(f"ds_read_b64_tr_b16 a[{b}:{b+1}], v{QWR+j} offset:{(stage % 4)*16384 + sp*8192}")
            out.append(f"ds_read_b64_tr_b16 a[{b+2}:{b+3}], v{QWR+j} offset:{(stage % 4)*16384 + sp*8192 + 1024}")
        return out

    def qacc(db, qb):
        return ("v", 192 + (db * 2 + qb) * 4) if qb < 2 else ("a", 64 + (db * 2 + qb - 2) * 4)

    for isv in range(2):
        if isv:
            a.label(lv)
        loop, last = a.uid("k12_loop"), a.uid("k12_last")
        a.label(loop)
        for st in range(2):
            ops = spread(reads(st, 1, 1), "M", 0, 50)
            ops.append(when("s_cmp_eq_u32 s51, s46", f"buffer_load_dword v{VPOLL}, v{ZERO}, s[24:27], 0 offen sc1", 4) if st == 0 else
                       when("s_sub_u32 s52, s51, 1\ns_cmp_eq_u32 s52, s46", spin_text(a, 0, 256), 56, lo=50))
            ops.append(Op(tr_wrap("s_waitcnt vmcnt(0) lgkmcnt(0)\ns_barrier"), "S", 63, lo=63, hard=63, after=list(ops)))
            schedule(a, mfmas(0, isv), ops)
            if st == 1:
                a("s_cmp_eq_u32 s51, 7")
                a(f"s_cbranch_scc1 {last}")
            rd = spread(reads(1 - st, 0, 0), "M", 0, 50)
            pre = []
            if st == 0:
                pre = [Op("s_cmp_ge_u32 s49, 1024\ns_cselect_b32 s18, 0, s18\ns_cselect_b32 s22, 0, s22", "S", 0, hard=0)]
            dm, dl = grp_sched([dma_grp(st, g) for g in range(4)], 1, ENV("GD1", 56), after=pre)
            sig = when("s_cmp_eq_u32 s51, s53", one_lane(f"buffer_atomic_add v{ONE}, v{ZERO}, s[24:27], 0 offen sc1"), 58, after=dl)
            ops = rd + pre + dm + [sig]
            cnt_after = [sig]
            if st == 0:
                p_ = when("s_cmp_eq_u32 s51, s63", pf, 60, after=dl)
                ops.append(p_)
                cnt_after.append(p_)
            else:
                p_ = when("s_cmp_eq_u32 s51, 5", cpf, 60, after=dl)
                ops.append(p_)
                cnt_after.append(p_)
            ops.append(Op("s_add_u32 s51, s51, 1", "S", 62, after=cnt_after))
            ops.append(Op("s_waitcnt lgkmcnt(0)", "S", 63, lo=63, hard=63, after=rd))
            schedule(a, mfmas(1, isv), ops)
        a(f"s_branch {loop}")
        a.label(last)
        stamp(a, 2)
        pairs = {pair_n(c, j, isv): (c, j) for c in range(4) for j in range(8)}
        seq = list(range(8))
        for k in range(8):
            seq += [24 + k, 8 + 2 * k, 9 + 2 * k]
        mf, ops = [], []
        done = {}
        tuse = []
        for pos, n in enumerate(seq):
            c, j = pairs[n]
            mf += [mf1(2 * c, j, 1, isv), mf1(2 * c + 1, j, 1, isv)]
            g0 = 2 * pos + 1 + 4
            d = PK + 4 * n
            if n < 24:
                x, y = 64 + 4 * n, 160 + 4 * n
                tx = [f"v_cvt_pk_bf16_f32 v{d}, v{x}, v{x+1}", f"v_cvt_pk_bf16_f32 v{d+1}, v{x+2}, v{x+3}",
                      f"v_cvt_pk_bf16_f32 v{d+2}, v{y}, v{y+1}", f"v_cvt_pk_bf16_f32 v{d+3}, v{y+2}, v{y+3}"]
                o = spread(tx, "A", g0, g0 + 2)
            else:
                x = 128 + 8 * (n - 24)
                tx = [f"v_accvgpr_read_b32 v{PT+r}, a{x+r}" for r in range(8)]
                tx += [f"v_cvt_pk_bf16_f32 v{d+r}, v{PT+2*r}, v{PT+2*r+1}" for r in range(4)]
                o = spread(tx, "A", g0, g0 + 5)
                o[0].after += tuse + [done[n - 24]]
                tuse = [o[-1]]
            done[n] = o[-1]
            ops += o
        ld, ll = grp_sched([wdma(0), xloads(0), xloads(1), wdma(1), xloads(2)], 0, 40)
        ops += ld
        bar = Op("s_waitcnt vmcnt(16)\ns_barrier", "S", 44, lo=44, after=ll)
        rd = spread(wreads(0, 0, 0), "M", 45, 60)
        rd[0].after.append(bar)
        ops += [bar] + rd
        schedule(a, mf, ops)
        if not isv:
            a(f"s_branch {joined}")
    a.label(joined)
    a.label("k12_qcode")
    a("s_mov_b64 s[48:49], s[32:33]")
    a("s_mov_b32 s51, 0x00020000")
    a("s_cmp_eq_u32 s45, 0")
    a("s_mov_b32 s50, s34")
    a("s_cselect_b32 s56, s30, -1")
    a("s_cselect_b32 s57, -1, s30")
    a(tr_wrap("s_waitcnt vmcnt(12) lgkmcnt(0)"))

    NS = ENV("NS", 20)
    PSIG = ENV('PSIG', NS + 3)
    PPOLL = ENV("PPOLL", 27)
    assert PSIG % 2 == 1 and PPOLL % 2 == 1 and PSIG < PPOLL
    queue = ["W0"] * 4 + ["X0"] * 4 + ["X1"] * 4 + ["W1"] * 4 + ["X2"] * 4

    def younger(tag):
        if tag not in queue:
            return 63
        return len(queue) - 1 - max(i for i, t in enumerate(queue) if t == tag)

    kvsrd = ["s_lshl_b32 s31, s28, 14", "s_add_u32 s16, s6, s31\ns_addc_u32 s17, s7, 0",
             f"s_add_u32 s20, s16, 0x{VF_OFF:x}\ns_addc_u32 s21, s17, 0", f"s_add_u32 s16, s16, 0x{KF_OFF:x}\ns_addc_u32 s17, s17, 0",
             "s_and_b32 s17, s17, 0xffff", "s_and_b32 s21, s21, 0xffff", "s_lshl_b32 s31, s29, 20", "s_sub_u32 s18, 0xf84000, s31",
             "s_mov_b32 s22, s18",
             f"s_add_u32 s24, s6, 0x{KVC_OFF:x}\ns_addc_u32 s25, s7, 0", "s_and_b32 s25, s25, 0xffff", "s_mov_b32 s26, 4096"]

    def kdma():
        return ("s_mov_b32 m0, s34", [f"buffer_load_dwordx4 v{V_LANE16}, s[16:19], s32 offen offset:{i*1024}{LDF} lds" for i in range(4)],
                "s_add_u32 s32, s32, 0x80000\ns_add_u32 s34, s34, 0x4000")

    def vdma():
        return ("s_mov_b32 m0, s35", [f"buffer_load_dwordx4 v{V_LANE16}, s[20:23], s33 offen offset:{i*1024}{LDF} lds" for i in range(4)],
                "s_add_u32 s33, s33, 0x80000\ns_add_u32 s35, s35, 0x4000")

    NL = ENV('NL', 29)
    NE0 = (NS * 32 + NL - 1) // NL
    sn, sl_, nx, nw = NE0, 0, 3, 2
    assert NL <= PPOLL + 2
    S0 = ENV("S0", 0)
    for ks in range(32):
        st, sp = ks // 2, ks % 2
        ops = []
        rd = []
        if ks < 31:
            rd = spread(wreads(st, 1, 1) if sp == 0 else wreads(st + 1, 0, 0), "M", 0, 22)
        ops += rd
        grps, tags = [], []
        while nw < 16 and ((sp == 1 and nw <= st + DW) or (ks == 0 and nw < DW)):
            grps.append(wdma(nw)); tags.append(f"W{nw}"); nw += 1
        for _ in range(2):
            if nx < 32 and nx <= ks + DX:
                grps.append(xloads(nx)); tags.append(f"X{nx}"); nx += 1
        while sl_ < 32 and sl_ < ((ks + 1) * 32 + NL - 1) // NL:
            grps.append(kvstore(sl_, "s[48:51]")); tags.append("L"); sl_ += 1
        early = []
        while ks < NS and sn < 32 and sn < NE0 + ((ks + 1) * (32 - NE0) + NS - 1) // NS:
            m_, l_, _ = kvstore(sn, "s[48:51]")
            early += [m_, l_[0]]
            sn += 1
        head = []
        if ks == 0:
            ops += spread(kvsrd, "S", 6, 30)
        if ks == PSIG:
            head = [when("s_cmp_eq_u32 s56, 0", one_lane(f"buffer_atomic_add v{ONE}, v{ZERO}, s[24:27], s54 offen sc1"), 0)]
            ops += spread(k2.kv_first(), "S", 8, 20)
        if ks == 24:
            ops.append(Op("v_add_co_u32 v2, vcc, 0x4000, v2\ns_nop 1\nv_addc_co_u32 v3, vcc, 0, v3, vcc\n" + cpf, "B", 29))
        if ks == PPOLL:
            head = [when("s_cmp_eq_u32 s30, 0", f"buffer_load_dword v{VPOLL}, v{ZERO}, s[24:27], s55 offen sc1", 0)]
            qpoll = len(queue)
        if ks == PPOLL + 2:
            grps += [kdma(), kdma()]; tags += ["K0", "K1"]
        if ks == PPOLL + 3:
            grps += [vdma(), kdma()]; tags += ["V0", "K2"]
        if ks == PPOLL + 4:
            grps += [vdma()]; tags += ["V1"]
        ops += head
        if grps:
            g, gl_ = grp_sched(grps, 1, 27, after=head)
            ops += g
        if ks == NS - 1:
            early.append("s_mov_b32 s50, 0")
        if early:
            ops.append(when("s_cmp_eq_u32 s45, 0", "\n".join(early), 29, after=gl_))
        for gr, tg in zip(grps, tags):
            queue += [tg] * len(gr[1])
        if ks == NS - 1:
            assert sn == 32 and sl_ == NE0
            qearly = len(queue)
        if ks < 31:
            nk = ks + 1
            wv = younger(f"X{nk}")
            if nk % 2:
                wv = min(wv, younger(f"W{nk // 2 + 1}"))
            if nk == PSIG:
                wv = min(wv, len(queue) - qearly)
            wv = min(wv, 63)
            prevw = wv
            wtxt = f"s_waitcnt vmcnt({wv}) lgkmcnt(0)"
            if ks == PPOLL + 1:
                ops.append(when("s_cmp_eq_u32 s30, 0", f"s_waitcnt vmcnt({len(queue) - qpoll})\n" + spin_text(a, "s55", 2), 29, lo=28, after=[o for o in ops if o.cls == "V"]))
            if nk % 2:
                wtxt = tr_wrap(wtxt + "\ns_barrier") if nk % 4 == 1 else wtxt + "\ns_barrier"
            ops.append(Op(wtxt, "S", 31, lo=31, hard=31, after=[o for o in ops if o.cls in "MVB"]))
        mf = []
        for db in range(8):
            for qb in range(4):
                k, c = qacc(db, qb)
                r = f"{k}[{c}:{c+3}]"
                mf.append(mfma16(r, aq(QF[sp] + 4 * db), aq(XS(ks) + 4 * qb), "0" if ks == 0 else r))
        schedule(a, mf, ops)
    assert PPOLL + 4 <= 31
    stamp(a, 3)
    assert younger("L") >= 8
    a("s_add_u32 s3, s54, 64")
    a("s_add_u32 s5, s55, 64")
    a("s_mov_b32 s63, s57")
    late = dict(
        sig=when("s_cmp_eq_u32 s63, 0", one_lane(f"buffer_atomic_add v{ONE}, v{ZERO}, s[24:27], s3 offen sc1"), 0).text,
        poll=lambda: when("s_cmp_eq_u32 s30, 0", "buffer_load_dword v58, v59, s[24:27], s5 offen sc1", 2),
        gate=lambda **kw: when("s_cmp_eq_u32 s30, 0", "s_waitcnt vmcnt(0)\n" + spin_text(a, "s5", 14, 58, 59), 29, **kw))
    attention_phase(a, end, 0, qacc, late, stubs=stubs, next_code='op_head' if fuse else (None if os.environ.get('WHICH') == 'k12' else 'k3_kernel'), when=when if fuse else None, ffn=ffn)
    a.end_kernel(name, 256, 256)
    a.launch(name, 256, 256, 163840)
```

```python
from common import *
from sched import Op, spread, schedule, resolve_lgkm
import common
import oproj
import math, struct

QSCALE = struct.unpack("<I", struct.pack("<f", math.log2(math.e) / math.sqrt(128.0)))[0]
THRESH = 0x40004000
REFBITS = 0x41400000

V_LANE16 = 1
V_K = 2
V_V = 3
V_VV = 4
V_NINF = 5
V_T = 6
V_T2 = 7
NEGM = 8
LQ = [12, 48, 248, 252]
ONES = 60
REF = 12.0
CIN = 16
DL = 52
V_C = 57
V_LANEV = 56
Q = 64
S = [128, 160]
P = [192, 208]
TMP = 224
V_PF = 228
V_PS = 229
V_PL = 230
A_R = 224
ET = 232
A_O = 0
A_K = 128
A_V = 192


LDF = ' sc1'
import os
VT = int(os.environ.get('VT', '4'))
import os
KN = set(os.environ.get("KN", "").split(","))


def vq(b):
    return f"v[{b}:{b+3}]"


def aq(b):
    return f"a[{b}:{b+3}]"


def slot_of(typ, kb, qb):
    if typ == "D":
        return kb * 4 + qb
    return (kb % 2) * 4 + (kb // 2) * 2 + (qb - 2)


def kind(t):
    return t[0]


def qbs_of(t):
    return {"D": [0, 1, 2, 3], "D3": [1, 2, 3], "S": [2, 3], "S1": [3]}[t]


def js_of(t):
    return qbs_of(t) if kind(t) == "D" else [ks * 2 + q - 2 for ks in range(2) for q in qbs_of(t)]


def qk_mfmas(typ, par, ko=0):
    out = []
    for kb in range(2 if kind(typ) == "D" else 4):
        for c in range(4):
            for qb in qbs_of(typ):
                sl = slot_of(kind(typ), kb, qb)
                d = vq(S[par] + 4 * sl)
                cc = vq(CIN + 4 * sl) if c == 0 else d
                out.append(mfma16(d, aq(A_K + ko + (kb * 4 + c) * 4), vq(Q + (qb * 4 + c) * 4), cc))
    return out


def pv_mfmas(typ, par):
    out = []
    for j in js_of(typ):
        l = vq(LQ[j if kind(typ) == "D" else 2 + j % 2])
        out.append(mfma16(l, vq(ONES), vq(P[par] + 4 * j), l))
    for ks in range(1 if kind(typ) == "D" else 2):
        for db in range(8):
            for qb in qbs_of(typ):
                o = aq(A_O + (db * 4 + qb) * 4)
                j = qb if kind(typ) == "D" else ks * 2 + qb - 2
                out.append(mfma16(o, aq(A_V + (ks * 8 + db) * 4), vq(P[par] + 4 * j), o))
    return out


def sm_stream(par, js):
    ops = []
    for j in js:
        for half in range(2):
            sl = j + 4 * half
            for r in range(4):
                ops.append(f"v_exp_f32 v{ET+r}, v{S[par] + 4*sl + r}")
            ops.append("s_nop 0")
            for pr in range(2):
                ops.append(f"v_cvt_pk_bf16_f32 v{P[par] + 4*j + 2*half + pr}, v{ET+2*pr}, v{ET+2*pr+1}")
    return ops


def dma_group(mall=None):
    out = []
    if "nodma" in KN: return []
    for i in range(4):
        t = ""
        if i == 0:
            t = "s_mov_b32 m0, s34\ns_nop 0\n"
        out.append(t + f"buffer_load_dwordx4 v{V_LANE16}, s[16:19], s32 offen offset:{i*1024}{LDF} lds")
    for i in range(4):
        t = ""
        if i == 0:
            t = "s_mov_b32 m0, s35\ns_nop 0\n"
        out.append(t + f"buffer_load_dwordx4 v{V_LANE16}, s[20:23], s33 offen offset:{i*1024}{LDF} lds")
    if mall:
        l = mall.uid("k2_mpf")
        out.append(f"s_add_u32 s61, s61, 1\ns_and_b32 s31, s61, 3\ns_cbranch_scc1 {l}\n"
                   f"buffer_load_dword v{V_T2}, v{V_PF}, s[12:15], s62 offen\ns_add_u32 s62, s62, 0x2000\n{l}:")
    out.append("s_add_u32 s32, s32, 0x80000\ns_add_u32 s33, s33, 0x80000\n"
               "s_add_u32 s34, s34, 0x4000\ns_and_b32 s34, s34, 0xffff\n"
               "s_add_u32 s35, s35, 0x4000\ns_and_b32 s35, s35, 0xffff\ns_or_b32 s35, s35, 0x10000")
    return out


def prep_texts(k, qb):
    sc = f"s_sub_u32 s40, s36, s{38 if qb < 2 else 39}" + ("\ns_sub_u32 s40, s40, 64" if qb % 2 else "")
    v0 = f"v_subrev_u32 v{V_T}, s40, v{V_VV}"
    tiles = []
    for kb in range(2 if k == "D" else 4):
        cm = [f"v_cmp_gt_i32 s[{44+2*r}:{45+2*r}], {16*kb + r}, v{V_T}" for r in range(4)]
        cn = [f"v_cndmask_b32 v{CIN + 4*slot_of(k, kb, qb) + r}, v{NEGM+qb}, v{V_NINF}, s[{44+2*r}:{45+2*r}]" for r in range(4)]
        tiles.append((cm, cn))
    return sc, v0, tiles


def cin_prep(a, k, qb):
    sc, v0, tiles = prep_texts(k, qb)
    a(sc)
    a(v0)
    for cm, cn in tiles:
        for t in cm + cn:
            a(t)
    a("s_nop 1")


def prep_ops(k, qb, lo, hi):
    sc, v0, tiles = prep_texts(k, qb)
    o = spread([v0] + [t for cm, cn in tiles for t in cm + cn], "A", lo + 1, hi)
    so = Op(sc, "S", lo, lo=lo)
    o[0].after.append(so)
    o[-1].hard = hi
    return [so] + o


def row_max(a, typ, par, clamp0):
    qbs = qbs_of(typ)
    for qb in qbs:
        sls = [slot_of(kind(typ), kb, qb) for kb in range(2 if kind(typ) == "D" else 4)]
        rs = [S[par] + 4 * sl + r for sl in sls for r in range(4)]
        d = DL + qb
        a(f"v_max_f32 v{d}, v{rs[0]}, v{rs[1]}")
        for i in range(2, len(rs), 2):
            a(f"v_max3_f32 v{d}, v{d}, v{rs[i]}, v{rs[i+1]}")
    for sw in ("v_permlane16_swap_b32", "v_permlane32_swap_b32"):
        for qb in qbs:
            a(f"v_mov_b32 v{TMP+qb}, v{DL+qb}")
        a("s_nop 1")
        for qb in qbs:
            a(f"{sw} v{DL+qb}, v{TMP+qb}")
        a("s_nop 1")
        for qb in qbs:
            a(f"v_max_f32 v{DL+qb}, v{DL+qb}, v{TMP+qb}")
    for qb in qbs:
        a(f"v_add_f32 v{DL+qb}, 0x{REFBITS:x}, v{DL+qb}")
        if clamp0:
            a(f"v_max_f32 v{DL+qb}, 0, v{DL+qb}")


def qb_of_slot(typ, sl):
    return sl % 4 if typ == "D" else 2 + (sl % 2)


def rare_path(a, sm_typ, qk_k, par):
    a("s_nop 7")
    row_max(a, sm_typ, par, True)
    qbs = qbs_of(sm_typ)
    for sl in range(8):
        q = qb_of_slot(kind(sm_typ), sl)
        if q in qbs:
            for r in range(4):
                x = S[par] + 4 * sl + r
                a(f"v_sub_f32 v{x}, v{x}, v{DL + q}")
    if qk_k is not None:
        for sl in range(8):
            q = qb_of_slot(qk_k, sl)
            if q in qbs:
                for r in range(4):
                    x = S[1 - par] + 4 * sl + r
                    a(f"v_sub_f32 v{x}, v{x}, v{DL + q}")
                    x = CIN + 4 * sl + r
                    a(f"v_sub_f32 v{x}, v{x}, v{DL + q}")
    for qb in qbs:
        a(f"v_sub_f32 v{NEGM+qb}, v{NEGM+qb}, v{DL+qb}")
        a(f"v_exp_f32 v{DL+qb}, -v{DL+qb}")
    a("s_nop 0")
    for qb in qbs:
        a(f"v_mul_f32 v{LQ[qb]}, v{LQ[qb]}, v{DL+qb}")
    for db in range(8):
        for qb in qbs:
            o = A_O + (db * 4 + qb) * 4
            for r in range(4):
                a(f"v_accvgpr_read_b32 v{TMP+r}, a{o+r}")
            for r in range(4):
                a(f"v_mul_f32 v{TMP+r}, v{TMP+r}, v{DL+qb}")
            for r in range(4):
                a(f"v_accvgpr_write_b32 a{o+r}, v{TMP+r}")
    for t in sm_stream(par, js_of(sm_typ)):
        a(t)
    a("s_nop 3")
    a("s_setpc_b64 s[40:41]")


def sm_ops(par, js, lo, hi, sub=False):
    ops, cvts, regs = [], [], []
    users = {}
    chk = None
    tot = 4 * len(js)
    step = (hi - lo) / float(tot)
    n = 0
    for j in js:
        for half in range(2):
            sl = j + 4 * half
            for pr in range(2):
                t = ET + (n % 8) * 2
                w = lo + step * n
                s0 = S[par] + 4 * sl + 2 * pr
                war = users.get(t, [])
                sb = []
                if sub:
                    sb = [Op(f"v_sub_f32 v{s0+k}, v{s0+k}, v{DL+j}", "A", w - step) for k in range(2)]
                    ops += sb
                e0 = Op(f"v_exp_f32 v{t}, v{s0}", "E", w, after=war + sb)
                e1 = Op(f"v_exp_f32 v{t+1}, v{s0+1}", "E", w + step / 2, after=war + sb)
                pr_ = P[par] + 4 * j + 2 * half + pr
                cv = Op(f"v_cvt_pk_bf16_f32 v{pr_}, v{t}, v{t+1}", "A", w + step * 1.1, after=[e0, e1])
                users[t] = [cv]
                ops += [e0, e1, cv]
                cvts.append(cv)
                regs.append(pr_)
                if n == 2:
                    chk = Op(f"v_or3_b32 v{V_C}, v{regs[0]}, v{regs[1]}, v{regs[2]}", "A", w + step * 1.6, after=cvts[-3:])
                    ops.append(chk)
                elif n > 2 and n % 2 == 0:
                    chk = Op(f"v_or3_b32 v{V_C}, v{V_C}, v{regs[-2]}, v{regs[-1]}", "A", w + step * 1.6, after=cvts[-2:] + [chk])
                    ops.append(chk)
                elif n == tot - 1:
                    chk = Op(f"v_bitop3_b32 v{V_C}, v{V_C}, v{regs[-1]}, s37 bitop3:0xa8", "A", w + step * 1.4, after=[cv, chk])
                    ops.append(chk)
                n += 1
    return ops, chk, cvts


def nfr(typ):
    return 8 if typ[0] == "D" else 16


def rd_text(which, i):
    base, va = (A_K, V_K) if which == "K" else (A_V, V_V)
    return f"ds_read_b128 {aq(base + 4*i)}, v{va} offset:{i*1024}"


def ptr_ops(typ, which, lo, want, after):
    va, sp, lane = (V_K, 52, V_LANE16) if which == "K" else (V_V, 53, V_LANEV)
    s1 = Op(f"s_add_u32 s{sp}, s{sp}, {nfr(typ)*1024}", "S", lo + 1, lo=lo)
    s2 = Op(f"s_and_b32 s{sp}, s{sp}, 0xffff", "S", lo + 3, lo=lo, after=[s1])
    up = Op(f"v_add_u32 v{va}, s{sp}, v{lane}", "A", want, after=list(after) + [s2])
    return [s1, s2, up]


def dma_ops(h, lo, hi, after):
    srd, so, lp = (("s[16:19]", 32, 34), ("s[20:23]", 33, 35))[h]
    step = (hi - lo - 1) / 4.0
    m = Op(f"s_mov_b32 m0, s{lp}", "S", lo, lo=lo, after=after)
    ops = [m]
    last = None
    for i in range(4):
        v = Op(f"buffer_load_dwordx4 v{V_LANE16}, {srd}, s{so} offen offset:{i*1024}{LDF} lds", "V", lo + 1 + step * i, lo=lo,
               after=[last] if last else [], prev_gap=[m], hard=hi - 1)
        ops.append(v)
        last = v
    b = [Op(f"s_add_u32 s{so}, s{so}, 0x80000", "S", lo + 2 + step * 3, after=[last])]
    b.append(Op(f"s_add_u32 s{lp}, s{lp}, 0x4000", "S", lo + step, after=[m]))
    b.append(Op(f"s_and_b32 s{lp}, s{lp}, 0xffff", "S", lo + step * 2, after=[b[-1]]))
    if h:
        b.append(Op(f"s_or_b32 s{lp}, s{lp}, 0x10000", "S", lo + step * 2.5, after=[b[-1]]))
    return ops + b, last


def side_ops(lo, hi, load=True):
    step = (hi - lo) / (5.0 if load else 2.0)
    ops = spread([f"buffer_store_dwordx4 {aq(A_R + 4*i)}, v{V_PS}, s[8:11], s58 offen offset:{i*256} sc1" for i in range(2)], "V", lo, lo + 2 * step)
    if not load:
        return ops, ops[-1]
    sa = spread(["s_and_b32 s60, s62, 31", "s_lshr_b32 s61, s62, 5", f"s_mul_i32 s57, s60, {32*7168}", "s_lshl_b32 s4, s61, 7", "s_add_u32 s57, s57, s4",
                 f"s_add_u32 s56, s57, {8*7168}", "s_add_u32 s62, s62, 1"], "S", lo - 12, lo + step)
    sb = spread(["s_lshl_b32 s58, s61, 17", "s_lshl_b32 s60, s60, 10", "s_add_u32 s58, s58, s60", "s_mov_b32 s10, s59"], "S", lo + 2 * step, lo + 4 * step)
    sb[0].after += [ops[-1], sa[-1]]
    ld = spread([f"buffer_load_dwordx4 {aq(A_R)}, v{V_PF}, s[12:15], s57 offen", f"buffer_load_dwordx4 {aq(A_R + 4)}, v{V_PF}, s[12:15], s56 offen",
                 f"buffer_load_dword v{V_T2}, v{V_PL}, s[24:27], s54 offen"], "V", lo + 2 * step, hi)
    ld[0].after += [ops[-1], sa[-1]]
    return ops + sa + sb + ld + [Op("s_add_u32 s54, s54, 4096", "S", hi, after=ld[-1:])], ld[-1]


LEAD = 19


def body(a, outl, u_par, qk, sm, pv, vread, sync, prep=None, dk=False, dv=False, tail=(), first=False, side=None, remap=False, extra=None):
    par = u_par
    mp = pv_mfmas(pv, 1 - par) if pv else []
    mf = mp + (qk_mfmas(qk, 1 - par, 32 if first else 0) if qk else [])
    n1, n = len(mp), len(mf)
    ops, pre = [], []
    carried = []
    chain = []
    vup = None

    def uses(base, i):
        g = [k for k, t in enumerate(mf) if f", {aq(base + 4*i)}," in t]
        return g[0], g[-1]

    def add_reads(which, idxs, wants, los, extra=()):
        out = []
        for i, w, lo in zip(idxs, wants, los):
            o = Op(rd_text(which, i), "M", max(w, lo), lo=lo, after=(chain[-1:] + list(extra)))
            chain.append(o)
            out.append(o)
        return out

    def waits(base, m, rds):
        for i in range(0, m, 2):
            g = uses(base, i)[0] - 1
            need = [rds[j] for j in (i, i + 1) if rds.get(j) is not None]
            for r in need:
                r.hard = max(0, g - 4)
            ops.append(Op(f"@LGKM {base + 4*(i+1)}", "S", g, lo=g, hard=g, after=need))

    bar = None
    dlast = []
    if dv:
        o, l = dma_ops(1, 1, n1 - 1 if sync in ("mid", "mid0") else n - 4, [])
        ops += o
        dlast.append(l)
    if sync == "mid":
        bar = Op("s_waitcnt vmcnt(12)\ns_barrier", "S", n1, lo=n1, hard=n1, after=dlast)
    elif sync == "end":
        bar = Op(f"s_waitcnt vmcnt({8 if first else 13})\ns_barrier", "S", n - 1, lo=n - 1, hard=n - 1, after=dlast)
    elif sync == "mid0":
        bar = Op("s_waitcnt vmcnt(4)\ns_barrier", "S", n1, lo=n1, hard=n1, after=dlast)
    elif sync == "epi":
        bar = Op("s_waitcnt vmcnt(0)\ns_barrier", "S", 0, lo=0, hard=0)
    if first:
        po = first["poll"]()
        ga = first["gate"](lo=n - 3, hard=n - 2, after=[po])
        ops += [po, ga]
        bar.after.append(ga)
    if bar:
        ops.append(bar)
    if dk:
        if sync == "mid":
            o, l = dma_ops(0, n1 + 1, n - 1, [bar])
        else:
            o, l = dma_ops(0, 1, 24, [])
        ops += o
        if side is not None:
            w = Op("s_waitcnt vmcnt(8)", "S", 24, lo=24, after=[l])
            o, _ = side_ops(25, n - 3, side)
            o[0].after.append(w)
            ops += [w] + o
    if pv:
        m = nfr(pv)
        mt = m // 2
        carried = [A_V + 4 * i for i in range(mt)]
        idx = list(range(mt, m))
        r = add_reads("V", idx, [uses(A_V, i)[0] - LEAD for i in idx], [0] * len(idx))
        po = ptr_ops(pv, "V", 2, r[-1].want + 3, r[-1:])
        vup = po[-1]
        ops += r + po
        waits(A_V, m, dict(zip(idx, r)))
    if qk:
        m = nfr(qk)
        if pv:
            idx = list(range(m))
            r = add_reads("K", idx, [uses(A_K, i)[0] - LEAD for i in idx], [0] * m)
            ops += r + ptr_ops(qk, "K", n1 + 6, r[-1].want + 3, r[-1:])
            waits(A_K, m, dict(zip(idx, r)))
        elif not first:
            pre.append("s_waitcnt lgkmcnt(0)")
        rm = []
        if remap:
            rm = spread([f"v_mov_b32 v{CIN + 4*sl + r}, v{NEGM + 2 + sl % 2}" for sl in (0, 1, 4, 5) for r in range(4)], "A", 4, n1 - 8)
            rm[-1].hard = n1 - 5
            ops += rm
        if prep and prep[0] == "in":
            ops += prep_ops(kind(qk), prep[1], 4, n1 - 3)
        elif prep:
            pl, pr = a.uid("k2_prep"), a.uid("k2_prepret")
            t = f"s_cmp_ge_u32 s36, s{42 if kind(qk) == 'D' else 43}\ns_cbranch_scc1 {pl}\n{pr}:"
            outl.append(("prep", pl, kind(qk), prep[1], pr))
            if pv:
                ops.append(Op(t, "B", n1 - 4, lo=4, hard=n1 - 3, after=rm[-1:]))
            else:
                pre.append(t)
        ops.append(Op(f"s_add_u32 s36, s36, {32 if kind(qk) == 'D' else 64}", "S", n1 + 4, lo=n1))
    if vread:
        m = nfr(vread)
        ex = ([vup] if vup else []) + ([bar] if sync in ("mid", "mid0", "epi") else [])
        idx = list(range(m // 2 if qk else m))
        free = [(uses(A_V, i)[1] + 1) if (pv and i < nfr(pv)) else 0 for i in idx]
        if qk:
            ops += add_reads("V", idx, [n + 4 + i * (32 // m) - LEAD - 2 for i in idx], free, ex)
        else:
            ops += add_reads("V", idx, [18 + i for i in idx], free, ex)
    if sm:
        so, chk, cvts = sm_ops(par, js_of(sm), 1 if first else 0, n - 4, sub=bool(first))
        ops += so
        rl, ret = a.uid("k2_tramp"), a.uid("k2_ret")
        c3 = Op(f"v_cmp_ne_u32 vcc, 0, v{V_C}", "A", n - 2, after=[chk])
        c4 = Op(f"s_cbranch_vccnz {rl}\n{ret}:", "B", n + 99, lo=n, after=[c3] + cvts)
        ops += [c3, c4]
        outl.append(("rare", rl, (sm, kind(qk) if qk else None, par), ret))
    for t in tail:
        ops.append(Op(t, "S", n - 8))
    if extra:
        ops += extra(bar, n)
    start = len(a.lines)
    for t in pre:
        a(t)
    schedule(a, mf, ops)
    resolve_lgkm(a.lines, start, carried)


def kv_first():
    out = ["s_mov_b32 s32, s60", "s_mov_b32 s34, s60", "s_mov_b32 s33, s60", "s_add_u32 s35, s60, 0x10000"]
    return out


def out_ops(qb, c, t, pk):
    tx = []
    for hh in range(2):
        o = A_O + ((2 * c + hh) * 4 + qb) * 4
        tx += [f"v_accvgpr_read_b32 v{t+4+hh*4+r}, a{o+r}" for r in range(4)]
    if pk:
        tx += [f"v_pk_mul_f32 v[{t+4+r}:{t+5+r}], v[{t+4+r}:{t+5+r}], v[{LQ[qb]}:{LQ[qb]+1}]" for r in range(0, 8, 2)]
    else:
        tx += [f"v_mul_f32 v{t+4+r}, v{t+4+r}, v{LQ[qb]}" for r in range(8)]
    tx += [f"v_cvt_pk_bf16_f32 v{t+r}, v{t+4+2*r}, v{t+5+2*r}" for r in range(4)]
    st = f"buffer_store_dwordx4 v[{t}:{t+3}], v{V_LANE16}, s[24:27], s{44+c+4*(qb%2)} offen sc1"
    return tx, st


def l_final(qbs):
    tx = []
    for sw in ("v_permlane16_swap_b32", "v_permlane32_swap_b32"):
        tx += [f"v_mov_b32 v{LQ[q]+1}, v{LQ[q]}" for q in qbs] + ["s_nop 1"]
        tx += [f"{sw} v{LQ[q]}, v{LQ[q]+1}" for q in qbs] + ["s_nop 1"]
        tx += [f"v_add_f32 v{LQ[q]}, v{LQ[q]}, v{LQ[q]+1}" for q in qbs]
    tx += [f"v_rcp_f32 v{LQ[q]+1}, v{LQ[q]}" for q in qbs] + [f"v_rcp_f32 v{LQ[q]}, v{LQ[q]}" for q in qbs] + ["s_nop 0"]
    return tx


def ctx_base(srow):
    return ["s_lshl_b32 s31, s28, 19", f"s_lshl_b32 s44, s{srow}, 6", "s_add_u32 s44, s44, s31"] + \
           [f"s_add_u32 s{44+c}, s44, {(c%4)*0x20000 + (c//4)*4096}" for c in range(1, 8)]


def attention_phase(a, end, kidx, qsrc, late, stubs=(), next_code=None, when=None):
    a(f"s_load_dwordx2 s[44:45], s[0:1], {ARG['wo']}")
    a(f"s_load_dwordx2 s[46:47], s[0:1], {ARG['wg']}")
    a(f"s_load_dwordx4 s[48:51], s[0:1], {ARG['wu']}")
    a(f"s_mov_b32 s40, 0x{QSCALE:x}")
    a(f"s_mov_b32 s41, 0x{QSCALE:x}")
    for t in dma_group():
        a(t)
    a(f"v_mov_b32 v{V_K}, v{V_LANE16}")
    a(f"v_or_b32 v{V_V}, 0x10000, v{V_LANE16}")
    a(f"v_mov_b32 v{V_LANEV}, v{V_V}")
    a("s_mov_b32 s52, 0x4000")
    a("s_mov_b32 s53, 0")
    a("s_lshl_b32 s62, s28, 6")
    a("s_mul_i32 s31, s29, s29")
    a("s_add_u32 s62, s62, s31")
    a("s_lshr_b32 s31, s30, 1")
    a("s_lshl_b32 s4, s31, 23")
    a(f"s_add_u32 s4, s4, 0x{RPK_OFF:x}")
    a("s_add_u32 s8, s6, s4")
    a("s_addc_u32 s9, s7, 0")
    a("s_and_b32 s9, s9, 0xffff")
    a("s_mov_b32 s10, 0")
    a("s_mov_b32 s58, 0")
    a("s_mov_b32 s14, 0x700000")
    a("s_mov_b32 s59, 0x700000")
    a("s_lshl_b32 s54, s62, 12")
    a("s_waitcnt vmcnt(16) lgkmcnt(0)")
    a("s_barrier")
    a(late["sig"])
    a("v_mov_b32 v59, 0")
    for i in range(16):
        a(rd_text("K", i))
    a("s_cmp_lt_u32 s30, 2")
    a("s_cselect_b64 s[12:13], s[46:47], s[48:49]")
    a("s_cselect_b64 s[60:61], s[44:45], s[50:51]")
    a("s_cselect_b32 s55, 0x800000, s14")
    a("s_and_b32 s13, s13, 0xffff")
    for qb in (2, 3, 0, 1):
        for c in range(4):
            for hh in range(2):
                kind, x = qsrc(2 * c + hh, qb)
                if kind == "a":
                    y = 128 + (c % 2) * 8 + hh * 4
                    for r in range(4):
                        a(f"v_accvgpr_read_b32 v{y+r}, a{x+r}")
                    x = y
                a(f"v_pk_mul_f32 v[{x}:{x+1}], v[{x}:{x+1}], s[40:41]")
                a(f"v_pk_mul_f32 v[{x+2}:{x+3}], v[{x+2}:{x+3}], s[40:41]")
                d = Q + (qb * 4 + c) * 4 + 2 * hh
                a(f"v_cvt_pk_bf16_f32 v{d}, v{x}, v{x+1}")
                a(f"v_cvt_pk_bf16_f32 v{d+1}, v{x+2}, v{x+3}")
    a(f"v_add_u32 v{V_K}, 0x4000, v{V_LANE16}")
    for i in range(4):
        a(f"v_mov_b32 v{NEGM+i}, 0")
        a(f"v_mov_b32 v{ET+i}, 0")
    a("s_mov_b32 s36, 0")
    a(f"s_mov_b32 s37, 0x{THRESH:x}")
    zero_acc(a, CIN, 32, ET, "v", init=False)
    a(f"v_and_b32 v{V_T}, 0xf0, v{V_LANE16}")
    a(f"v_cmp_eq_u32 vcc, 0, v{V_T}")
    a(f"v_mov_b32 v{V_T}, 0x3f803f80")
    a(f"v_lshrrev_b32 v{V_PS}, 7, v{V_LANE16}")
    a("s_and_b32 s4, s30, 1")
    a("s_lshl_b32 s31, s4, 11")
    a(f"v_lshl_add_u32 v{V_PL}, v{V_LANE16}, 1, s31")
    a(f"v_lshl_add_u32 v{V_PS}, s4, 4, v{V_PS}")
    a(f"v_mul_u32_u24 v{V_PF}, 7168, v{V_PS}")
    a(f"v_and_b32 v{V_T2}, 0x70, v{V_LANE16}")
    a(f"v_add_u32 v{V_PF}, v{V_PF}, v{V_T2}")
    a(f"v_lshlrev_b32 v{V_PS}, 5, v{V_PS}")
    a(f"v_and_b32 v{V_C}, 0x10, v{V_LANE16}")
    a(f"v_add_u32 v{V_PS}, v{V_PS}, v{V_C}")
    a(f"v_lshrrev_b32 v{V_T2}, 5, v{V_T2}")
    a(f"v_lshl_add_u32 v{V_PS}, v{V_T2}, 15, v{V_PS}")
    for r in range(4):
        a(f"v_cndmask_b32 v{ONES+r}, 0, v{V_T}, vcc")
    for i in range(4):
        for r in range(4):
            a(f"v_mov_b32 v{LQ[i]+r}, 0")
    if not when:
        stamp(a, 4)
    outl = []
    body(a, outl, 1, "D", None, None, None, None, ("cond", 0))
    zero_acc(a, 0, 128, ET, init=False)
    row_max(a, "D", 0, False)
    for sl in range(8):
        for r in range(4):
            a(f"v_sub_f32 v{CIN+4*sl+r}, 0, v{DL + sl % 4}")
    for qb in range(4):
        a(f"v_sub_f32 v{NEGM+qb}, 0, v{DL+qb}")
    body(a, outl, 0, "D", "D", None, "D", "end", ("cond", 0), first=late)
    a("s_mov_b32 s24, s60")
    a("s_and_b32 s25, s61, 0xffff")
    a("s_mov_b32 s26, s55")
    loop, dm3 = a.uid("k2_dloop"), a.uid("k2_dm3")
    a("s_lshl_b32 s63, s29, 1")
    a("s_sub_u32 s63, s63, 1")
    a(f"s_cbranch_scc1 {dm3}")
    a.label(loop)
    body(a, outl, 1, "D", "D", "D", "D", None, dk=True, side=True)
    body(a, outl, 0, "D", "D", "D", "D", "end", dv=True, tail=["s_sub_u32 s63, s63, 1"])
    a("s_cmp_lg_u32 s63, 0")
    a(f"s_cbranch_scc1 {loop}")
    body(a, outl, 1, "D", "D", "D", "D", None, ("in", 0), dk=True, side=True)
    body(a, outl, 0, "D", "D", "D", "D", "end", ("in", 0), dv=True)
    a.label(dm3)
    body(a, outl, 1, "D3", "D", "D", "D", None, ("in", 1), dk=True, side=True)
    body(a, outl, 0, "D3", "D3", "D", "D", "end", ("in", 1), dv=True)
    if not when:
        stamp(a, 5)
    body(a, outl, 1, "S", "D3", "D3", "D", None, ("cond", 2), dk=True, side=False, remap=True)
    body(a, outl, 0, "S", "S", "D3", "S", "mid", ("cond", 3), dv=True, dk=True)
    if when:
        oproj.early_loads(a)
    a.srd_off(24, 6, CTX_OFF, 16 << 20)
    for t in ctx_base(38) + l_final([0, 1]):
        a(t)
    n = 0
    for qb in range(2):
        for c in range(4):
            tx, st = out_ops(qb, c, Q + (n % 2) * 12, True)
            n += 1
            for t in tx + [st]:
                a(t)
    if when:
        a("s_nop 1")
        oproj.early(a)
    loop, done = a.uid("k2_sloop"), a.uid("k2_sdone")
    a("s_lshl_b32 s63, s29, 1")
    a("s_sub_u32 s63, 13, s63")
    a(f"s_cbranch_scc1 {done}")
    a.label(loop)
    body(a, outl, 1, "S", "S", "S", "S", "mid", dv=True, dk=True)
    body(a, outl, 0, "S", "S", "S", "S", "mid", dv=True, dk=True, tail=["s_sub_u32 s63, s63, 1"])
    a("s_cmp_lg_u32 s63, 0")
    a(f"s_cbranch_scc1 {loop}")
    body(a, outl, 1, "S", "S", "S", "S", "mid0", ("in", 2), dv=True)
    body(a, outl, 0, "S1", "S", "S", "S", None, ("in", 3))
    a.label(done)
    body(a, outl, 1, None, "S1", "S", "S", "epi", extra=(lambda bar, n: oproj.e1_ops(a, when, bar, n)) if when else None)
    if next_code:
        a(f"v_lshrrev_b32 v{V_T}, 4, v{V_LANE16}")
        a(f"v_and_b32 v{V_T}, 31, v{V_T}")
        code_addr(a, next_code, TMP, V_T, 40)
        a(f"global_load_dword v{V_T2}, v[{TMP}:{TMP+1}], off")
    mf = pv_mfmas("S1", 1)
    mf = mf[:2] + [mf[2 + ks * 8 + db] for db in range(8) for ks in range(2)]
    ops = spread(ctx_base(39), "S", 0, 6)
    cb_last = ops[-1]
    lf = {2: spread(l_final([2]), "A", 0, 3), 3: spread(l_final([3]), "A", 8, 11)}
    ops += lf[2] + lf[3]
    ops.append(Op("s_waitcnt lgkmcnt(0)", "S", 1, lo=1, hard=1))
    prev = {}
    n = 0
    for qb in (2, 3):
        for c in range(4):
            t = 128 + (n % 4) * 12
            g0 = 3 + 4 * c if qb == 2 else 19 + c
            tx, st = out_ops(qb, c, t, qb == 3)
            o = spread(tx, "A", g0, g0 + (4 if qb == 2 else 1))
            o[0].after += [lf[qb][-1]] + prev.get(t, [])
            so = Op(st, "V", g0 + 4, after=[o[-1], cb_last])
            prev[t] = [so]
            ops += o + [so]
            n += 1
    if not when:
        stamp(a, 6)
    schedule(a, mf, ops)
    if when:
        stamp(a, 4)
        oproj.finish(a, when)
    tr_dump(a, 6, 30, V_LANE16)
    stamp_dump(a, kidx, 7, 6)
    a.label(end)
    a("s_endpgm")
    for o in outl:
        if o[0] == "prep":
            a.label(o[1])
            cin_prep(a, o[2], o[3])
            a(f"s_branch {o[4]}")
    for (sl, txt, ret) in stubs:
        a.label(sl)
        a(txt)
        a(f"s_branch {ret}")
    keys = {}
    for o in outl:
        if o[0] == "rare":
            lab = keys.setdefault(o[2], a.uid("k2_rare"))
            a.label(o[1])
            a(f"s_call_b64 s[40:41], {lab}")
            a(f"s_branch {o[3]}")
    for key, lab in keys.items():
        a.label(lab)
        rare_path(a, *key)
```

```python
from common import *
import common, os
from sched import Op, spread, schedule

SPIN_MAX = 1 << 20
R = 64
XO, WDM, WRD = R + 24, R + 26, R + 0
G, PO, PV_, Z, ONE = R + 8, R + 9, R + 10, R + 11, R + 12
STO, HO, WO, CA = R + 13, R + 14, R + 16, R + 18
DUM = R + 20
ACC, XE, WR, SA = 128, 192, 208, 208
XR = 128
FW = [0, 64]


def vq(b):
    return f"v[{b}:{b+3}]"


def aq(b):
    return f"a[{b}:{b+3}]"


def one_lane(text):
    return f"s_mov_b64 exec, 1\n{text}\ns_mov_b64 exec, -1"


def wdma(p):
    return (f"s_add_u32 m0, s60, {(p % 4)*16384}",
            [f"buffer_load_dwordx4 v{WDM+i}, s[12:15], s61 offen offset:{i*1024} lds" for i in range(4)],
            "s_add_u32 s61, s61, 0x20000\ns_and_b32 s61, s61, 0x3fffff")


def xloads(p):
    return (None, [f"buffer_load_dwordx4 {aq(XR + (p % 4)*16 + 8*ks + 4*tb)}, v{XO+ks}, s[8:11], s62 offen offset:{tb*1024} sc1" for ks in range(2) for tb in range(2)],
            "s_add_u32 s62, s62, 0x40000\ns_and_b32 s62, s62, 0x7fffff")


def early_loads(a):
    a(f"s_load_dwordx2 s[4:5], s[0:1], {ARG['wo']}")


def early(a):
    T0, T1, T2, LN = R + 20, R + 21, R + 22, R + 23
    a("s_lshr_b32 s31, s2, 3")
    a("s_bfe_u32 s56, s2, 0x10002")
    a("s_and_b32 s54, s2, 1")
    a("s_lshl_b32 s54, s54, 3")
    a("s_and_b32 s55, s31, 7")
    a("s_add_u32 s54, s54, s55")
    a("s_and_b32 s55, s2, 2")
    a("s_lshl_b32 s55, s55, 1")
    a("s_lshr_b32 s31, s31, 3")
    a("s_add_u32 s55, s55, s31")
    a(f"v_lshrrev_b32 v{LN}, 4, v1")
    a(f"v_lshrrev_b32 v{G}, 4, v{LN}")
    a("s_lshl_b32 s57, s54, 7")
    a("s_lshl_b32 s31, s30, 5")
    a("s_add_u32 s57, s57, s31")
    a("s_lshl_b32 s31, s57, 6")
    a(f"v_add_u32 v{XO}, s31, v1")
    a(f"v_add_u32 v{XO+1}, 0x20000, v{XO}")
    a(f"v_bfe_u32 v{T0}, v{LN}, 1, 3")
    a(f"v_xor_b32 v{T0}, v{T0}, v{G}")
    a(f"v_and_b32 v{T1}, 16, v1")
    a(f"v_lshl_add_u32 v{T1}, v{G}, 11, v{T1}")
    a("s_lshl_b32 s31, s30, 15")
    a("s_lshl_b32 s58, s55, 8")
    a("s_add_u32 s31, s31, s58")
    a(f"v_add_u32 v{T1}, s31, v{T1}")
    for i in range(4):
        a(f"v_xor_b32 v{T2}, {(i % 2) * 4}, v{T0}")
        a(f"v_lshl_add_u32 v{T2}, v{T2}, 5, v{T1}")
        a(f"v_add_u32 v{WDM+i}, {4*i*2048 - i*1024}, v{T2}")
    a(f"v_and_b32 v{T0}, 15, v{LN}")
    a(f"v_add_u32 v{T1}, s57, v{T0}")
    a(f"v_lshlrev_b32 v{STO}, 2, v{T1}")
    a(f"v_lshl_add_u32 v{STO}, v{G}, 13, v{STO}")
    a("s_lshl_b32 s31, s56, 7")
    a("s_add_u32 s58, s58, s31")
    a(f"v_lshl_add_u32 v{WO}, v{G}, 3, s58")
    a(f"v_lshl_add_u32 v{HO}, v{T1}, 11, v{WO}")
    a(f"v_add_u32 v{HO+1}, 0x8000, v{HO}")
    a(f"v_lshrrev_b32 v{T1}, 2, v{T0}")
    a(f"v_lshl_add_u32 v{T1}, v{G}, 2, v{T1}")
    a(f"v_and_b32 v{T0}, 7, v{T1}")
    a("s_lshl_b32 s31, s56, 2")
    a(f"v_xor_b32 v{T0}, s31, v{T0}")
    a(f"v_lshlrev_b32 v{T1}, 8, v{T1}")
    a(f"v_and_b32 v{T2}, 3, v{LN}")
    a(f"v_lshl_add_u32 v{T1}, v{T2}, 3, v{T1}")
    a("s_add_u32 s31, s2, 1")
    a("s_and_b32 s31, s31, 3")
    a(f"v_add_u32 v{PO}, s31, v{T2}")
    a(f"v_and_b32 v{PO}, 3, v{PO}")
    a(f"v_lshlrev_b32 v{PO}, 7, v{PO}")
    for j in range(8):
        a(f"v_xor_b32 v{T2}, {j}, v{T0}")
        a(f"v_lshl_add_u32 v{WRD+j}, v{T2}, 5, v{T1}")
    a("s_lshl_b32 s61, s31, 20")
    a("s_lshl_b32 s62, s31, 21")
    a("s_lshl_b32 s60, s30, 12")
    a("s_lshl_b32 s59, s54, 10")
    a("s_lshl_b32 s31, s56, 9")
    a("s_add_u32 s59, s59, s31")
    a("s_lshr_b32 s31, s28, 2")
    a("s_lshl_b32 s31, s31, 7")
    a("s_lshl_b32 s57, s29, 10")
    a("s_sub_u32 s58, 0x3c00, s57")
    a("s_add_u32 s57, s57, s31")
    a("s_add_u32 s58, s58, s31")
    a(f"v_mov_b32 v{Z}, 0")
    a(f"v_mov_b32 v{ONE}, 1")
    a("s_lshl_b32 s31, s56, 23")
    a(f"s_add_u32 s31, s31, 0x{CTX_OFF:x}")
    a("s_add_u32 s8, s6, s31")
    a("s_addc_u32 s9, s7, 0")
    a("s_and_b32 s9, s9, 0xffff")
    a("s_mov_b32 s10, 0x800000")
    a("s_lshl_b32 s31, s56, 22")
    a("s_waitcnt lgkmcnt(0)")
    a("s_add_u32 s12, s4, s31")
    a("s_addc_u32 s13, s5, 0")
    a("s_and_b32 s13, s13, 0xffff")
    a("s_mov_b32 s14, 0x400000")


POLL = f"buffer_load_dword v{PV_}, v{PO}, s[16:19], s59 offen sc1"


def e1_ops(a, when, bar, n):
    a.srd_off(16, 6, CTC_OFF, 16384)
    sig = when("s_cmp_eq_u32 s30, 0", one_lane(f"buffer_atomic_add v{ONE}, v{Z}, s[16:19], s57 offen sc1"), 1, after=[bar])
    ops, prev = [sig], [sig]
    k = 0
    for p in range(3):
        m, ld, tr = wdma(p)
        mo = Op(m, "S", 2 + 2.5 * k, after=prev)
        ops.append(mo)
        for t in ld:
            o = Op(t, "V", 3 + 2.5 * k, after=prev, prev_gap=[mo])
            ops.append(o)
            prev = [o]
            k += 1
        o = Op(tr, "S", 3 + 2.5 * k, after=prev)
        ops.append(o)
        prev = [o]
    ops.append(Op(POLL, "V", n - 1, after=prev))
    return ops


def spin(a, bit):
    lp, ok = a.uid("op_spin"), a.uid("op_ok")
    return "\n".join([f"s_mov_b32 s34, {SPIN_MAX}", f"{lp}:", POLL, "s_waitcnt vmcnt(0)", f"v_cmp_le_u32 vcc, 4, v{PV_}",
                      "s_sub_u32 s34, s34, 1", f"s_cbranch_scc1 {ok}", "s_mov_b32 s33, vcc_lo", f"s_bitcmp1_b32 s33, {bit}",
                      f"s_cbranch_scc1 {ok}", "s_sleep 4", f"s_branch {lp}", f"{ok}:"])


def finish(a, when):
    def now(g):
        for t in g[1] + [g[2]]:
            a(t)
    a.label("op_head")
    a(f"s_load_dwordx2 s[28:29], s[0:1], {ARG['x']}")
    a(f"s_load_dwordx2 s[42:43], s[0:1], {ARG['wr']}")
    late, join = a.uid("op_late"), a.uid("op_join")
    a("s_waitcnt vmcnt(8)")
    a(f"v_cmp_le_u32 vcc, 4, v{PV_}")
    zero_acc(a, ACC, 64, 56, "v")
    a("s_mov_b32 s33, vcc_lo")
    a("s_bitcmp1_b32 s33, 0")
    a(f"s_cbranch_scc0 {late}")
    for p in range(3):
        now(xloads(p))
    a("s_waitcnt vmcnt(12)")
    a(f"s_branch {join}")
    a.label(late)
    a("s_waitcnt vmcnt(0)")
    a.label(join)
    a("s_barrier")
    a(when("s_cmp_eq_u32 s30, 0", one_lane(f"buffer_atomic_add v{ONE}, v{Z}, s[16:19], s58 offen sc1"), 0).text)
    a(when("s_bitcmp0_b32 s33, 0", spin(a, 0) + "\n" + "\n".join("\n".join(xloads(p)[1] + [xloads(p)[2]]) for p in range(3)), 0).text)

    def wreads(p):
        out = []
        for ks in range(2):
            for cb in range(8):
                b = FW[p % 2] + (ks * 8 + cb) * 4
                off = (p % 4) * 16384 + ks * 8192
                out.append(f"ds_read_b64_tr_b16 a[{b}:{b+1}], v{WRD+cb} offset:{off}")
                out.append(f"ds_read_b64_tr_b16 a[{b+2}:{b+3}], v{WRD+cb} offset:{off + 4096}")
        return out

    def mf(p):
        out = []
        for ks in range(2):
            for cb in (4, 5, 6, 7, 0, 1, 2, 3):
                for tb in range(2):
                    c = vq(ACC + (cb * 2 + tb) * 4)
                    out.append(mfma16(c, aq(FW[p % 2] + (ks * 8 + cb) * 4), aq(XR + (p % 4) * 16 + 8 * ks + 4 * tb), c))
        return out

    for t in wreads(0):
        a(t)
    a.srd_off(24, 6, H_OFF, 4 << 20)
    a.srd_off(36, 6, XCH_OFF, 8 << 20)
    a.srd_off(48, 6, XFL_OFF, 32768)
    a("s_lshl_b32 s52, s2, 14")
    a("s_add_u32 s52, s52, s60")
    a("s_xor_b32 s53, s52, 0x10000")
    a("s_lshl_b32 s57, s2, 7")
    a("s_xor_b32 s58, s57, 0x200")
    a("v_lshrrev_b32 v56, 4, v1")
    a("s_lshl_b32 s31, s30, 6")
    a("s_add_u32 s31, s31, (op_tail2-op_tail)/128-64")
    a("s_cmp_eq_u32 s30, 0")
    a("s_cselect_b32 s31, 0, s31")
    a("v_add_u32 v56, s31, v56")
    a("s_mov_b32 s31, (code_end-op_tail)/128")
    a("v_min_u32 v56, s31, v56")
    code_addr(a, "op_tail", CA, 56, 40)
    a("s_mov_b32 s63, 0")
    a("s_waitcnt vmcnt(8) lgkmcnt(0)")
    a.srd(20, 28, 4 << 20)
    a.srd(44, 42, 2048)
    epi = []
    for tb in range(2):
        for cb in range(4):
            b = XE + (tb * 4 + cb) * 2
            epi.append(f"buffer_load_dwordx2 v[{b}:{b+1}], v{HO+tb}, s[20:23], 0 offen offset:{cb*32}")
    for cb in range(4):
        epi.append(f"buffer_load_dwordx2 v[{WR+2*cb}:{WR+2*cb+1}], v{WO}, s[44:47], 0 offen offset:{cb*32}")
    epi += [f"global_load_dword v{DUM}, v[{CA}:{CA+1}], off", "s_mov_b32 s10, 0", "s_mov_b32 s14, 0"]
    stamp(a, 5)
    loop = a.uid("op_loop")
    a.label(loop)
    for p in range(4):
        rd = spread(wreads(p + 1), "M", 0, 25)
        ops = list(rd)
        prev = []
        if p == 1:
            c1 = Op(f"v_cmp_le_u32 vcc, 4, v{PV_}", "A", 0)
            c2 = Op("s_add_u32 s32, s63, 1\ns_lshr_b32 s32, s32, 1", "S", 0)
            c3 = Op("s_or_b32 s33, vcc_lo, 16", "S", 3, after=[c1], prev_gap=[c1])
            gate = when("s_bitcmp0_b32 s33, s32", spin(a, "s32"), 6, after=[c2, c3])
            ops += [c1, c2, c3, gate]
        k = 0
        for (m, ld, tr) in (wdma(p + 3), xloads(p + 3)):
            mo = None
            if m:
                mo = Op(m, "S", 0)
                ops.append(mo)
            elif p == 1:
                prev = prev + [gate]
            for t in ld:
                o = Op(t, "V", 1 + 3.5 * k, after=prev, prev_gap=[mo] if mo else [])
                ops.append(o)
                prev = [o]
                k += 1
            ops.append(Op(tr, "S", 2 + 3.5 * k, after=prev))
        if p == 0:
            ops.append(when("s_cmp_eq_u32 s63, 7", "\n".join(epi), 29, lo=26, after=prev + rd))
        if p == 2:
            pl = Op(POLL, "V", 0.5)
            ops.append(pl)
            for o in ops:
                if o.cls == "V" and o is not pl and not [d for d in o.after if d.cls == "V"]:
                    o.after.append(pl)
        if p == 3:
            ops.append(Op("s_add_u32 s63, s63, 1", "S", 30))
        ops.append(Op(f"s_waitcnt vmcnt(12) lgkmcnt(0)\ns_barrier", "S", 31, lo=31, hard=31, after=[o for o in ops if o.cls in "MVB"]))
        schedule(a, mf(p), ops)
    a("s_cmp_lt_u32 s63, 8")
    a(f"s_cbranch_scc1 {loop}")
    a.label("op_tail")
    stamp(a, 6)
    a("s_nop 1")
    for q in range(4):
        c = ACC + 32 + 8 * q
        for r in range(4):
            a(f"v_cvt_pk_bf16_f32 v{c+r}, v{c+2*r}, v{c+2*r+1}")
        a(f"buffer_store_dwordx4 {vq(c)}, v1, s[36:39], s52 offen offset:{q*1024} sc1")
    a.srd_off(32, 6, STATS_OFF, 3 * 8192)
    a("s_waitcnt vmcnt(4)")
    for cb in range(4):
        for tb in range(2):
            c, xb = ACC + (cb * 2 + tb) * 4, XE + (tb * 4 + cb) * 2
            for h in range(2):
                a(f"v_lshlrev_b32 v58, 16, v{xb+h}")
                a(f"v_and_b32 v59, 0xffff0000, v{xb+h}")
                a(f"v_pk_add_f32 v[{c+2*h}:{c+2*h+1}], v[{c+2*h}:{c+2*h+1}], v[58:59]")
    a(f"v_and_b32 v58, 1, v{G}")
    a(f"v_lshrrev_b32 v59, 1, v{G}")
    a("v_lshlrev_b32 v58, 5, v58")
    a("v_lshl_add_u32 v58, v59, 4, v58")
    a(f"v_lshlrev_b32 v59, 3, v{G}")
    a("v_sub_u32 v58, v58, v59")
    a(f"v_add_u32 v{HO}, v{HO}, v58")
    a(f"v_add_u32 v{HO+1}, v{HO+1}, v58")
    for i in range(8):
        a(f"v_lshlrev_b32 v{32+2*i}, 16, v{WR+i}")
        a(f"v_and_b32 v{33+2*i}, 0xffff0000, v{WR+i}")
    nw = a.uid("op_nowr")
    a("s_or_b32 s31, s54, s30")
    a(f"s_cbranch_scc1 {nw}")
    a("v_pk_add_f32 v[56:57], v[32:33], v[34:35]")
    for i in range(4, 16, 2):
        a(f"v_pk_add_f32 v[56:57], v[56:57], v[{32+i}:{33+i}]")
    a("v_add_f32 v56, v56, v57")
    for sw in ("v_permlane16_swap_b32", "v_permlane32_swap_b32"):
        a("v_mov_b32 v57, v56")
        a("s_nop 1")
        a(f"{sw} v56, v57")
        a("s_nop 1")
        a("v_add_f32 v56, v56, v57")
    a(f"s_mov_b32 s31, {WRSUM_OFF - STATS_OFF}")
    a(f"s_mov_b32 s34, {WRSUM_OFF - STATS_OFF + 4}")
    a(one_lane(f"buffer_atomic_add_f32 v56, v{Z}, s[32:35], s31 offen"))
    a(f"s_mov_b32 s34, {3 * 8192}")
    a.label(nw)
    for i in range(12):
        a(f"v_mov_b32 v{SA+i}, 0")
    a("s_waitcnt vmcnt(0)")
    a("s_barrier")
    sk, lp = a.uid("op_nopoll"), a.uid("op_xspin")
    a("s_cmp_lg_u32 s30, 0")
    a(f"s_cbranch_scc1 {sk}")
    a(one_lane(f"buffer_store_dword v{ONE}, v{Z}, s[48:51], s57 offen sc1"))
    a(f"s_mov_b32 s40, {SPIN_MAX}")
    a.label(lp)
    a(f"buffer_load_dword v{DUM}, v{Z}, s[48:51], s58 offen sc1")
    a("s_waitcnt vmcnt(0)")
    a(f"v_readfirstlane_b32 s41, v{DUM}")
    a("s_sub_u32 s40, s40, 1")
    a("s_cselect_b32 s41, 1, s41")
    a("s_cmp_eq_u32 s41, 0")
    a(f"s_cbranch_scc1 {lp}")
    a.label(sk)
    a("s_barrier")
    for q in range(4):
        a(f"buffer_load_dwordx4 {vq(ACC + 32 + 4*q)}, v1, s[36:39], s53 offen offset:{q*1024} sc1")
    P2 = lambda r: f"v[{r}:{r+1}]"
    nst = 0
    for cb in range(4):
        a(f"s_waitcnt vmcnt({3 - cb + nst})")
        for tb in range(2):
            c = ACC + (cb * 2 + tb) * 4
            xb = XE + (tb * 4 + cb) * 2
            S = SA + tb * 6
            for h in range(2):
                src = ACC + 32 + 4 * cb + 2 * tb + h
                a(f"v_lshlrev_b32 v{56+2*h}, 16, v{src}")
                a(f"v_and_b32 v{57+2*h}, 0xffff0000, v{src}")
            for h in range(2):
                a(f"v_pk_add_f32 {P2(c+2*h)}, {P2(c+2*h)}, {P2(56+2*h)}")
            for h in range(2):
                a(f"v_cvt_pk_bf16_f32 v{xb+h}, v{c+2*h}, v{c+2*h+1}")
            for h in range(2):
                a(f"v_lshlrev_b32 v{c+2*h}, 16, v{xb+h}")
                a(f"v_and_b32 v{c+2*h+1}, 0xffff0000, v{xb+h}")
            if cb % 2:
                a(f"v_permlane16_swap_b32 v{xb-2}, v{xb}")
                a(f"v_permlane16_swap_b32 v{xb-1}, v{xb+1}")
                a(f"buffer_store_dwordx4 {vq(xb-2)}, v{HO+tb}, s[24:27], 0 offen offset:{(cb//2)*64} sc1")
                nst += 1
            for h in range(2):
                a(f"v_pk_add_f32 {P2(S)}, {P2(S)}, {P2(c+2*h)}")
                a(f"v_pk_fma_f32 {P2(S+2)}, {P2(c+2*h)}, {P2(c+2*h)}, {P2(S+2)}")
                a(f"v_pk_fma_f32 {P2(S+4)}, {P2(c+2*h)}, {P2(32+cb*4+2*h)}, {P2(S+4)}")
    for tb in range(2):
        for k in range(3):
            a(f"v_add_f32 v{48+tb*4+k}, v{SA+tb*6+2*k}, v{SA+tb*6+2*k+1}")
    regs = [48, 49, 50, 52, 53, 54]
    for sw in ("v_permlane16_swap_b32", "v_permlane32_swap_b32"):
        for i, r in enumerate(regs):
            a(f"v_mov_b32 v{56+i}, v{r}")
        a("s_nop 1")
        for i, r in enumerate(regs):
            a(f"{sw} v{r}, v{56+i}")
        a("s_nop 1")
        for i, r in enumerate(regs):
            a(f"v_add_f32 v{r}, v{r}, v{56+i}")
    a(f"v_cmp_eq_u32 s[40:41], 1, v{G}")
    a(f"v_cmp_eq_u32 s[42:43], 2, v{G}")
    a("s_nop 1")
    for tb in range(2):
        b = 48 + tb * 4
        a(f"v_cndmask_b32 v{b}, v{b}, v{b+1}, s[40:41]")
        a(f"v_cndmask_b32 v{b}, v{b}, v{b+2}, s[42:43]")
        a(f"buffer_atomic_add_f32 v{b}, v{STO}, s[32:35], 0 offen offset:{tb*64}")
    a("s_and_b32 s56, s2, 7")
    a("s_mul_i32 s56, s56, 28")
    a("s_lshr_b32 s31, s2, 3")
    a("s_add_u32 s56, s56, s31")
    a("s_lshl_b32 s56, s56, 15")
    a("s_lshl_b32 s57, s30, 13")
    a("s_add_u32 s56, s56, s57")
    a.srd_off(8, 6, RPK_OFF, 16 << 20)
    a("s_cmp_ge_u32 s2, 224")
    a("s_cselect_b32 s10, 0, s10")
    a("v_lshlrev_b32 v8, 3, v1")
    for m in range(int(os.environ.get("K3NPF", "2"))):
        a("buffer_load_dword v9, v8, s[8:11], s56 offen")
        a("s_add_u32 s56, s56, 0x800000")
```

```python
import sys
sys.path.insert(0, "gen")
import os
import common
common.PROF = bool(int(os.environ.get('PROF', '0')))
common.TRACE = bool(int(os.environ.get('TRACE', '0')))
from common import *
from k3 import gen_k3
from k12 import gen_k12
from k45 import gen_k4, gen_k5

HEADER = open("sequential_preLN__compressed_kv_cla__moe_arch_mod__prompt.s.ref").read().split("; Override launch")[0]

def build(path, which=("k1", "k2", "k3", "k4", "k5")):
    a = Asm()
    if "k12" in which: gen_k12(a)
    if "k123" in which:
        gen_k12(a, fuse=True)
        a.label("op_tail2")
    if "k3" in which: gen_k3(a)
    if "k4" in which: gen_k4(a)
    if "k5" in which: gen_k5(a)
    a.label("code_end")
    a("s_endpgm")
    open(path, "w").write(a.text(HEADER))

if __name__ == "__main__":
    build(sys.argv[1] if len(sys.argv) > 1 else "t.s", os.environ.get("WHICH", "k123,k4").split(","))
```

```python
from asmlib import *

XN_OFF = 0x0000000
KF_OFF = 0x1000000
VF_OFF = 0x2000000
CTX_OFF = 0x3000000
H_OFF = 0x4000000
STATS_OFF = 0x4800000
KVC_OFF = STATS_OFF + 24576
WRSUM_OFF = KVC_OFF + 128
XFL_OFF = STATS_OFF + 28672
PCT_OFF = STATS_OFF + 61440
RPK_OFF = 0x6000000
CTC_OFF = STATS_OFF + 69632
GBC_OFF = STATS_OFF + 86016
PC2_OFF = STATS_OFF + 90112
XCH_OFF = 0x5000000
ZERO_BYTES = 90112
PART_OFF = 0x4900000
SEL_OFF = 0x4C00000

ARG = dict(x=0, ckv=8, wq=16, wuk=24, wuv=32, wo=40, bx=48, wr=56, wg=64, wu=72, wd=80, out=88, dbg=96, ws=104)


def mfma16(d, a, b, c):
    return f"v_mfma_f32_16x16x32_bf16 {d}, {a}, {b}, {c}"


def weave(a, mf, fills, start=0, end=None):
    n = len(mf)
    if end is None:
        end = n
    span = max(1, end - start)
    fi = 0
    for m in range(n):
        a(mf[m])
        if m >= start:
            tgt = min(len(fills), ((m - start + 1) * len(fills) + span - 1) // span)
            while fi < tgt:
                a(fills[fi])
                fi += 1
    while fi < len(fills):
        a(fills[fi])
        fi += 1


def weave2(a, mf, streams):
    n = len(mf)
    idx = [0] * len(streams)
    for m in range(n):
        a(mf[m])
        for si, (fills, start, end) in enumerate(streams):
            if m >= start:
                span = max(1, end - start)
                tgt = min(len(fills), ((m - start + 1) * len(fills) + span - 1) // span)
                while idx[si] < tgt:
                    a(fills[idx[si]])
                    idx[si] += 1
    for si, (fills, start, end) in enumerate(streams):
        while idx[si] < len(fills):
            a(fills[idx[si]])
            idx[si] += 1


def ln_rows_half_wave(a, vx, vt, vo=None, keep=None):
    if vo is None:
        vo = vx
    f = vt
    src = keep if keep is not None else f
    s = vt + 32
    t = vt + 34
    q = vt + 36
    mb = vt + 38
    P = lambda r: f"v[{r}:{r+1}]"
    for i in range(16):
        a(f"v_lshlrev_b32 v{src+2*i}, 16, v{vx+i}")
        a(f"v_and_b32 v{src+2*i+1}, 0xffff0000, v{vx+i}")
    a(f"v_pk_add_f32 {P(s)}, {P(src)}, {P(src+2)}")
    a(f"v_pk_add_f32 {P(t)}, {P(src+4)}, {P(src+6)}")
    for i in range(8, 32, 4):
        a(f"v_pk_add_f32 {P(s)}, {P(s)}, {P(src+i)}")
        a(f"v_pk_add_f32 {P(t)}, {P(t)}, {P(src+i+2)}")
    a(f"v_pk_add_f32 {P(s)}, {P(s)}, {P(t)}")
    a(f"v_add_f32 v{s}, v{s}, v{s+1}")
    half_wave_sum(a, s, t)
    a(f"v_mul_f32 v{s}, 0xba800000, v{s}")
    a(f"v_mov_b32 v{s+1}, v{s}")
    a(f"v_pk_add_f32 {P(t)}, {P(src)}, {P(s)}")
    a(f"v_pk_add_f32 {P(mb)}, {P(src+2)}, {P(s)}")
    a(f"v_pk_mul_f32 {P(q)}, {P(t)}, {P(t)}")
    a(f"v_pk_fma_f32 {P(q)}, {P(mb)}, {P(mb)}, {P(q)}")
    for i in range(4, 32, 4):
        a(f"v_pk_add_f32 {P(t)}, {P(src+i)}, {P(s)}")
        a(f"v_pk_add_f32 {P(mb)}, {P(src+i+2)}, {P(s)}")
        a(f"v_pk_fma_f32 {P(q)}, {P(t)}, {P(t)}, {P(q)}")
        a(f"v_pk_fma_f32 {P(q)}, {P(mb)}, {P(mb)}, {P(q)}")
    a(f"v_add_f32 v{q}, v{q}, v{q+1}")
    half_wave_sum(a, q, t)
    a(f"v_mul_f32 v{q}, 0x3a800000, v{q}")
    a(f"v_cvt_pk_bf16_f32 v{mb}, v{s}, v{q}")
    a(f"v_and_b32 v{q}, 0xffff0000, v{mb}")
    a(f"v_lshlrev_b32 v{mb}, 16, v{mb}")
    a(f"v_add_f32 v{q}, 0x3727c5ac, v{q}")
    a(f"v_mov_b32 v{mb+1}, v{mb}")
    a(f"v_cvt_pk_bf16_f32 v{q}, v{q}, v{q}")
    a(f"v_and_b32 v{q}, 0xffff0000, v{q}")
    a(f"v_sqrt_f32 v{q}, v{q}")
    for i in range(0, 32, 2):
        a(f"v_pk_add_f32 {P(f+i)}, {P(src+i)}, {P(mb)}")
    a(f"v_cvt_pk_bf16_f32 v{q}, v{q}, v{q}")
    a(f"v_and_b32 v{q}, 0xffff0000, v{q}")
    a(f"v_rcp_f32 v{q}, v{q}")
    for i in range(16):
        a(f"v_cvt_pk_bf16_f32 v{vo+i}, v{f+2*i}, v{f+2*i+1}")
    a(f"v_mov_b32 v{q+1}, v{q}")
    for i in range(16):
        a(f"v_lshlrev_b32 v{f+2*i}, 16, v{vo+i}")
        a(f"v_and_b32 v{f+2*i+1}, 0xffff0000, v{vo+i}")
    for i in range(0, 32, 2):
        a(f"v_pk_mul_f32 {P(f+i)}, {P(f+i)}, {P(q)}")
    for i in range(16):
        a(f"v_cvt_pk_bf16_f32 v{vo+i}, v{f+2*i}, v{f+2*i+1}")


def half_wave_sum(a, s, t):
    a("s_nop 1")
    a(f"v_add_f32_dpp v{s}, v{s}, v{s} quad_perm:[1,0,3,2] row_mask:0xf bank_mask:0xf")
    a("s_nop 1")
    a(f"v_add_f32_dpp v{s}, v{s}, v{s} quad_perm:[2,3,0,1] row_mask:0xf bank_mask:0xf")
    a("s_nop 1")
    a(f"v_add_f32_dpp v{s}, v{s}, v{s} row_half_mirror row_mask:0xf bank_mask:0xf")
    a("s_nop 1")
    a(f"v_add_f32_dpp v{s}, v{s}, v{s} row_mirror row_mask:0xf bank_mask:0xf")
    a(f"v_mov_b32 v{t}, v{s}")
    a("s_nop 1")
    a(f"v_permlane16_swap_b32 v{s}, v{t}")
    a("s_nop 1")
    a(f"v_add_f32 v{s}, v{s}, v{t}")


PROF_OFF = 0x8000000
PROF = False


def stamp(a, i):
    if PROF:
        a(f"s_memrealtime s[{64+4*i}:{65+4*i}]")
        a(f"s_memtime s[{66+4*i}:{67+4*i}]")


def stamp_dump(a, kidx, n, ws_pair):
    if not PROF:
        return
    a("s_waitcnt vmcnt(0) lgkmcnt(0)")
    stamp(a, n)
    a("s_waitcnt lgkmcnt(0)")
    a.srd_off(96, ws_pair, PROF_OFF + kidx * 512 * 64, 512 * 64)
    a("s_lshl_b32 s100, s2, 6")
    a("v_mov_b32 v1, s100")
    for i in range(n + 1):
        a(f"v_mov_b32 v2, s{64+4*i}")
        a(f"buffer_store_dword v2, v1, s[96:99], 0 offen offset:{4*i}")
        a(f"v_mov_b32 v2, s{66+4*i}")
        a(f"buffer_store_dword v2, v1, s[96:99], 0 offen offset:{32+4*i}")


def ring_plan(DX, DW, nx=4, nw=4, nph=8, trips=4):
    order = []
    init = []
    for p in range(-64, 0):
        if p % 2 and (p - 1) // 2 + DW >= 0:
            init.append(("W", (p - 1) // 2 + DW))
        if p + DX >= 0:
            init.append(("X", p + DX))
    init.sort(key=lambda o: 0 if o == ("W", 0) else (1 if o == ("X", 0) else 2))
    order = list(init)

    def younger(op):
        i = order.index(op)
        return sum(nx if o[0] == "X" else nw for o in order[i + 1:])
    first = younger(("W", 0))
    waits = [99] * nph
    for p in range(nph * trips):
        n = younger(("X", p))
        if p % 2:
            n = min(n, younger(("W", (p - 1) // 2 + 1)))
        waits[p % nph] = min(waits[p % nph], n)
        if p % 2:
            order.append(("W", (p - 1) // 2 + DW))
        order.append(("X", p + DX))
    return init, first, waits


def zero_acc(a, base, n, vz, kind="a", init=True):
    if init:
        for r in range(4):
            a(f"v_mov_b32 v{vz+r}, 0")
        a("s_nop 1")
    for b in range(base, base + n, 16):
        a(f"v_mfma_f32_32x32x16_bf16 {kind}[{b}:{b+15}], v[{vz}:{vz+3}], v[{vz}:{vz+3}], 0")


TRACE_OFF = 0x9000000
TRACE = False


def tr_wrap(text):
    if not TRACE:
        return text
    rec = "s_mov_b64 exec, s[98:99]\nv_mov_b32 v0, s96\ns_mov_b64 exec, -1\ns_lshl_b64 s[98:99], s[98:99], 1"
    return "s_memtime s[96:97]\n" + text + "\n" + rec + "\ns_memtime s[96:97]\ns_waitcnt lgkmcnt(0)\n" + rec


def tr_init(a):
    if TRACE:
        a("s_mov_b64 s[98:99], 1")
        a("v_mov_b32 v0, 0")


def tr_dump(a, ws_pair, swave, vlane16):
    if TRACE:
        a.srd_off(96, ws_pair, TRACE_OFF, 256 * 1024)
        a("s_lshl_b32 s100, s2, 2")
        a(f"s_add_u32 s100, s100, s{swave}")
        a("s_lshl_b32 s100, s100, 8")
        a(f"v_lshrrev_b32 v2, 2, v{vlane16}")
        a("buffer_store_dword v0, v2, s[96:99], s100 offen")


def code_addr(a, label, vpair, vline, stmp):
    here = a.uid("pc")
    a(f"s_getpc_b64 s[{stmp}:{stmp+1}]")
    a.label(here)
    a(f"s_add_u32 s{stmp}, s{stmp}, {label}-{here}")
    a(f"s_addc_u32 s{stmp+1}, s{stmp+1}, 0")
    a(f"v_lshlrev_b32 v{vpair}, 7, v{vline}")
    a(f"v_mov_b32 v{vpair+1}, s{stmp+1}")
    a(f"v_add_co_u32 v{vpair}, vcc, s{stmp}, v{vpair}")
    a("s_nop 1")
    a(f"v_addc_co_u32 v{vpair+1}, vcc, 0, v{vpair+1}, vcc")
```

```python
from common import *
import common, os
import oproj
from oproj import Z, ONE, one_lane

NSL = 224
SPIN_MAX = 1 << 20
GL = 65536
DL_ = 131072
XL = 4096
MISC = XL + 4096
P64, PV64 = 94, 95
NEARLY = int(os.environ.get("FNE", "0"))
POLL64 = f"buffer_load_dword v{PV64}, v{P64}, s[16:19], 0 offen sc1"


def wgrp(k):
    m, hf = k // 2, k % 2
    t = [f"s_lshl_b32 s40, s30, 13", f"s_add_u32 m0, s40, {GL + m*32768 + hf*4096}", f"s_add_u32 s41, s3, {m*(8 << 20) + hf*4096}"]
    t += [f"buffer_load_dwordx4 v1, s[44:47], s41 offen offset:{i*1024} sc1 lds" for i in range(4)]
    return "\n".join(t)


def setup(a):
    a(f"v_lshlrev_b32 v{P64}, 3, v1")
    a("s_and_b32 s35, s2, 7")
    a("s_mul_i32 s35, s35, 28")
    a("s_lshr_b32 s31, s2, 3")
    a("s_add_u32 s55, s35, s31")
    a("s_lshl_b32 s3, s55, 15")
    a("s_lshl_b32 s31, s30, 13")
    a("s_add_u32 s3, s3, s31")


def gate_text(a):
    lp, ok = a.uid("ff_spin"), a.uid("ff_ok")
    return "\n".join([f"s_mov_b32 s34, {SPIN_MAX}", f"{lp}:", f"v_cmp_gt_u32 vcc, 4, v{PV64}", f"s_cbranch_vccz {ok}",
                      "s_sub_u32 s34, s34, 1", f"s_cbranch_scc1 {ok}", "s_sleep 4", POLL64, "s_waitcnt vmcnt(0)", f"s_branch {lp}", f"{ok}:",
                      f"s_add_u32 s44, s6, 0x{RPK_OFF:x}", "s_addc_u32 s45, s7, 0", "s_and_b32 s45, s45, 0xffff",
                      "s_cmp_ge_u32 s2, 224", f"s_cselect_b32 s46, 0, 0x{16 << 20:x}"])


def early_text(p):
    return wgrp(p - 1) if p - 1 < NEARLY else ""


FPOS = os.environ.get("FPOS", "S")


def wdown_loads(a):
    a(f"s_load_dwordx2 s[8:9], s[0:1], {ARG['wd']}")


def wdown_dma(a):
    a("s_and_b32 s31, s2, 7")
    a("s_mul_i32 s31, s31, 28")
    a("s_lshr_b32 s40, s2, 3")
    a("s_add_u32 s31, s31, s40")
    a("s_lshl_b32 s31, s31, 15")
    a("s_lshl_b32 s40, s30, 13")
    a("s_add_u32 s31, s31, s40")
    a("s_cmp_ge_u32 s2, 224")
    a("s_cselect_b32 s10, 0, 7340032")
    a("s_waitcnt lgkmcnt(0)")
    a("s_and_b32 s9, s9, 0xffff")
    for hf in range(2):
        a(f"s_add_u32 m0, s40, {DL_ + hf*4096}")
        a("s_nop 0")
        for i in range(4):
            a(f"buffer_load_dwordx4 v1, s[8:11], s31 offen offset:{i*1024} lds")
        a("s_add_u32 s31, s31, 4096")


def rest(a):
    WD = 96
    for k in range(NEARLY, 4):
        a(wgrp(k))
    a("s_lshl_b32 s41, s30, 9")
    a(f"s_add_u32 s41, s41, {DL_}")
    a("v_lshrrev_b32 v9, 1, v1")
    a("v_add_u32 v9, s41, v9")
    for i in range(16):
        a(f"ds_read_b64 v[{WD+2*i}:{WD+2*i+1}], v9 offset:{i*2048}")
    a("s_mov_b32 s54, 0x05040100")
    a("s_mov_b32 s53, 0x07060302")
    a("s_waitcnt lgkmcnt(0)")
    WP = 144
    for j in range(8):
        r0, r1 = WD + 4 * j, WD + 4 * j + 2
        for h in range(2):
            a(f"v_perm_b32 v{WP+4*j+2*h}, v{r1+h}, v{r0+h}, s54")
            a(f"v_perm_b32 v{WP+4*j+2*h+1}, v{r1+h}, v{r0+h}, s53")


def top2_merge(a, m1, m2, t1, t2):
    a(f"v_max_f32 v{t2}, v{t2}, v{m2}")
    a(f"v_med3_f32 v{m2}, v{m1}, v{t1}, v{t2}")
    a(f"v_max_f32 v{m1}, v{m1}, v{t1}")


def tail(a):
    P = lambda r: f"v[{r}:{r+1}]"
    ST, VX, VO, WD, WP, T2, KP = 16, 40, 128, 96, 144, 176, 216
    TID, LANE, L32, HALF, L16B = 2, 3, 4, 5, 7
    a(f"s_load_dwordx2 s[42:43], s[0:1], {ARG['out']}")
    a(f"s_load_dwordx2 s[56:57], s[0:1], {ARG['wr']}")
    a.srd_off(16, 6, GBC_OFF, 4096)
    a(f"v_lshrrev_b32 v{LANE}, 4, v1")
    a(f"v_lshl_add_u32 v{TID}, s30, 6, v{LANE}")
    a(f"v_and_b32 v{L32}, 31, v{LANE}")
    a(f"v_lshrrev_b32 v{HALF}, 5, v{LANE}")
    a(f"v_lshlrev_b32 v{L16B}, 4, v{L32}")
    a(f"v_and_b32 v8, 15, v{LANE}")
    a("v_lshlrev_b32 v6, 7, v8")
    a("s_bfe_u32 s31, s2, 0x20003")
    a("s_lshl_b32 s31, s31, 7")
    a(f"v_lshlrev_b32 v12, 9, v{LANE}")
    a(f"v_and_b32 v14, 3, v{LANE}")
    a("v_lshlrev_b32 v14, 7, v14")
    a("s_and_b32 s59, s2, 7")
    a("s_lshl_b32 s59, s59, 9")
    a("s_setreg_imm32_b32 hwreg(HW_REG_MODE, 4, 2), 3")
    a("s_waitcnt vmcnt(0) lgkmcnt(0)")
    a("s_barrier")
    ns = a.uid("ff_nosig")
    a("s_cmp_lg_u32 s30, 0")
    a(f"s_cbranch_scc1 {ns}")
    a(f"s_mov_b64 exec, 0xff\nbuffer_atomic_add v{ONE}, v12, s[16:19], s31 offen sc1\ns_mov_b64 exec, -1")
    a.label(ns)
    stamp(a, 1)
    if FPOS == "S":
        rest(a)
    a(f"s_mov_b32 s34, {WRSUM_OFF - STATS_OFF + 4}")
    a.srd(36, 42, 4 << 20)
    a.srd_off(48, 6, PART_OFF, NSL * 8192)
    a.srd_off(60, 6, PC2_OFF, 65536)
    a(f"v_lshlrev_b32 v10, 5, v{TID}")
    a(f"v_lshl_add_u32 v11, s30, 1, v{HALF}")
    a("s_lshl_b32 s31, s2, 3")
    a("v_add_u32 v11, s31, v11")
    a(f"v_lshl_add_u32 v0, v11, 11, v{L16B}" if not common.TRACE else "s_nop 0")
    go, lp = a.uid("ff_go"), a.uid("ff_poll")
    a("s_cmp_lg_u32 s30, 0")
    a(f"s_cbranch_scc1 {go}")
    a(f"s_mov_b32 s52, {SPIN_MAX}")
    a.label(lp)
    a("buffer_load_dword v13, v14, s[16:19], s59 offen sc1")
    a("s_sub_u32 s52, s52, 1")
    a(f"s_cbranch_scc1 {go}")
    a("s_waitcnt vmcnt(0)")
    a("v_cmp_gt_u32 vcc, 64, v13")
    a(f"s_cbranch_vccz {go}")
    a(f"s_sleep {os.environ.get('FSL', '4')}")
    a(f"s_branch {lp}")
    a.label(go)
    a("s_barrier")
    stamp(a, 2)
    for j in range(3):
        a(f"s_mov_b32 s31, {j*8192}")
        a(f"buffer_load_dwordx4 v[{ST+8*j}:{ST+8*j+3}], v10, s[32:35], s31 offen sc1")
        a(f"buffer_load_dwordx4 v[{ST+8*j+4}:{ST+8*j+7}], v10, s[32:35], s31 offen offset:16 sc1")
    a(f"s_mov_b32 s31, {WRSUM_OFF - STATS_OFF}")
    a(f"buffer_load_dword v10, v{Z}, s[32:35], s31 offen sc1")
    for i in range(4):
        a(f"buffer_load_dwordx4 v[{VO+4*i}:{VO+4*i+3}], v0, s[24:27], 0 offen offset:{i*512} sc1")
    a("s_mov_b32 s52, 0x3a800000")
    a("s_mov_b32 s53, 0x3a800000")
    a("s_mov_b32 s54, 0x7ff")
    a("v_mov_b32 v14, 0x3727c5ac")
    a("v_mov_b32 v15, v14")
    a("v_mov_b32 v12, 0xff800000")
    a("v_mov_b32 v13, v12")
    a("s_waitcnt vmcnt(4)")
    a("v_sub_f32 v56, 0, v10")
    a("v_sub_f32 v57, 0, v10")
    for i in range(0, 8, 2):
        s1, s2, s3 = ST + i, ST + 8 + i, ST + 16 + i
        a(f"v_pk_mul_f32 {P(s1)}, {P(s1)}, s[52:53]")
        a(f"v_pk_fma_f32 {P(s2)}, {P(s2)}, s[52:53], {P(14)}")
        a(f"v_pk_fma_f32 {P(s3)}, {P(s1)}, {P(56)}, {P(s3)}")
        a(f"v_pk_fma_f32 {P(s2)}, {P(s1)}, {P(s1)}, {P(s2)} neg_lo:[1,0,0] neg_hi:[1,0,0]")
    for i in range(8):
        a(f"v_max_f32 v{ST+8+i}, v14, v{ST+8+i}")
    for i in range(8):
        a(f"v_rsq_f32 v{ST+8+i}, v{ST+8+i}")
    for i in range(0, 8, 2):
        a(f"v_pk_mul_f32 {P(ST+16+i)}, {P(ST+16+i)}, {P(ST+8+i)}")
    for i in range(8):
        a(f"v_bfi_b32 v{ST+16+i}, s54, {i}, v{ST+16+i}")
        a(f"v_med3_f32 v13, v12, v13, v{ST+16+i}")
        a(f"v_max_f32 v12, v12, v{ST+16+i}")
    a(f"v_lshl_or_b32 v12, v{TID}, 3, v12")
    a(f"v_lshl_or_b32 v13, v{TID}, 3, v13")
    for dpp in ("quad_perm:[1,0,3,2]", "quad_perm:[2,3,0,1]", "row_half_mirror", "row_mirror"):
        a("s_nop 1")
        a(f"v_mov_b32_dpp v14, v12 {dpp} row_mask:0xf bank_mask:0xf")
        a(f"v_mov_b32_dpp v15, v13 {dpp} row_mask:0xf bank_mask:0xf")
        top2_merge(a, 12, 13, 14, 15)
    for sw in ("v_permlane16_swap_b32", "v_permlane32_swap_b32"):
        a("v_mov_b32 v14, v12")
        a("v_mov_b32 v15, v13")
        a("s_nop 1")
        a(f"{sw} v12, v14")
        a(f"{sw} v13, v15")
        a("s_nop 1")
        top2_merge(a, 12, 13, 14, 15)
    a("s_lshl_b32 s31, s30, 3")
    a(f"s_add_u32 s31, s31, {MISC}")
    a("v_mov_b32 v14, s31")
    a("ds_write_b64 v14, v[12:13]")
    a(f"v_mov_b32 v14, {MISC}")
    a("s_waitcnt lgkmcnt(0)")
    a("s_barrier")
    a(f"ds_read_b128 v[{ST}:{ST+3}], v14")
    a(f"ds_read_b128 v[{ST+4}:{ST+7}], v14 offset:16")
    a(f"v_cmp_eq_u32 vcc, 0, v{HALF}")
    a("s_waitcnt lgkmcnt(0)")
    top2_merge(a, ST, ST + 1, ST + 2, ST + 3)
    top2_merge(a, ST + 4, ST + 5, ST + 6, ST + 7)
    top2_merge(a, ST, ST + 1, ST + 4, ST + 5)
    a(f"v_and_b32 v{ST}, 0x7ff, v{ST}")
    a(f"v_and_b32 v{ST+1}, 0x7ff, v{ST+1}")
    a(f"v_cndmask_b32 v15, v{ST+1}, v{ST}, vcc")
    a(f"v_lshl_add_u32 v12, v15, 11, v{L16B}")
    for i in range(4):
        a(f"buffer_load_dwordx4 v[{VX+4*i}:{VX+4*i+3}], v12, s[24:27], 0 offen offset:{i*512} sc1")
    a(f"v_cmp_eq_u32 vcc, v{ST}, v11")
    a(f"v_cmp_eq_u32 s[52:53], v{ST+1}, v11")
    a("v_mov_b32 v13, 0x7fffffff")
    a("s_or_b64 vcc, vcc, s[52:53]")
    a("v_cndmask_b32 v0, v0, v13, vcc")
    a(f"v_lshl_add_u32 v12, v{HALF}, 11, v{L16B}")
    a(f"v_add_u32 v12, {XL}, v12")
    stamp(a, 3)
    a("s_mov_b32 s58, 0")
    a("s_waitcnt vmcnt(0)")
    lln, lown, lred, lred2, fin = (a.uid(x) for x in ("ff_ln", "ff_own", "ff_red", "ff_red2", "ff_fin"))
    a.label(lln)
    ln_rows_half_wave(a, VX, T2, keep=KP)
    a("s_cmp_lg_u32 s58, 0")
    a(f"s_cbranch_scc1 {lown}")
    for i in range(4):
        a(f"ds_write_b128 v12, v[{VX+4*i}:{VX+4*i+3}] offset:{i*512}")
    a("s_cmp_ge_u32 s2, 224")
    a(f"s_cbranch_scc1 {lred}")
    a(f"v_lshrrev_b32 v12, 4, v{LANE}")
    a(f"v_and_b32 v13, 1, v{LANE}")
    a("v_lshlrev_b32 v13, 11, v13")
    a("v_lshl_add_u32 v13, v12, 3, v13")
    a("s_lshl_b32 s54, s30, 9")
    a(f"s_add_u32 s54, s54, {XL}")
    a("v_add_u32 v13, s54, v13")
    a(f"v_lshlrev_b32 v14, 3, v{LANE}")
    a("s_lshl_b32 s54, s30, 13")
    a(f"s_add_u32 s54, s54, {GL}")
    a("v_add_u32 v14, s54, v14")
    for m in range(2):
        for s in range(8):
            b = (m * 8 + s) * 4
            a(f"ds_read_b64_tr_b16 a[{b}:{b+1}], v14 offset:{m*32768 + s*1024}")
            a(f"ds_read_b64_tr_b16 a[{b+2}:{b+3}], v14 offset:{m*32768 + s*1024 + 512}")
    for s in range(8):
        a(f"ds_read_b64 a[{64+4*s}:{65+4*s}], v13 offset:{s*64}")
        a(f"ds_read_b64 a[{66+4*s}:{67+4*s}], v13 offset:{s*64+32}")
    a("v_lshlrev_b32 v13, 6, v8")
    a("v_lshl_add_u32 v13, v12, 4, v13")
    a("s_lshl_b32 s54, s30, 11")
    a(f"s_add_u32 s54, s54, {MISC + 256}")
    a("v_add_u32 v13, s54, v13")
    a("s_waitcnt lgkmcnt(0)")
    for s in range(8):
        for m in range(2):
            b = (m * 8 + s) * 4
            c = f"v[{16+4*m}:{19+4*m}]"
            a(mfma16(c, f"a[{b}:{b+3}]", f"a[{64+4*s}:{67+4*s}]", "0" if s == 0 else c))
    a("s_nop 7")
    a("ds_write_b128 v13, v[16:19]")
    a("ds_write_b128 v13, v[20:23] offset:1024")
    a(f"v_lshlrev_b32 v13, 2, v{L32}")
    a(f"v_add_u32 v13, {MISC + 256}, v13")
    a("s_waitcnt lgkmcnt(0)")
    a("s_barrier")
    for w in range(4):
        a(f"ds_read2st64_b32 v[{16+2*w}:{17+2*w}], v13 offset0:{w*8} offset1:{w*8 + 4}")
    a("s_waitcnt lgkmcnt(0)")
    a(f"v_pk_add_f32 {P(16)}, {P(16)}, {P(20)}")
    a(f"v_pk_add_f32 {P(18)}, {P(18)}, {P(22)}")
    a(f"v_pk_add_f32 {P(16)}, {P(16)}, {P(18)}")
    a("v_cvt_pk_bf16_f32 v16, v16, v17")
    a("v_and_b32 v20, 0xffff0000, v16")
    a("v_lshlrev_b32 v16, 16, v16")
    a("v_mul_f32 v17, 0xbfb8aa3b, v16")
    a("v_exp_f32 v17, v17")
    a("s_lshl_b32 s54, s55, 13")
    a("v_add_f32 v17, 1.0, v17")
    a("v_rcp_f32 v17, v17")
    a("s_add_u32 s53, s54, 4096")
    a("v_mul_f32 v16, v16, v17")
    a("v_cvt_pk_bf16_f32 v16, v16, v16")
    a("v_and_b32 v16, 0xffff0000, v16")
    a("v_mul_f32 v16, v16, v20")
    a("s_nop 1")
    a("v_mov_b32_dpp v17, v16 quad_perm:[1,0,3,2] row_mask:0xf bank_mask:0xf")
    a("v_cvt_pk_bf16_f32 v16, v16, v17")
    a(f"v_lshlrev_b32 v13, 4, v{TID}")
    for t in range(2):
        for j in range(8):
            a(f"v_readlane_b32 s{8 + t*8 + j}, v16, {t*16 + 2*j}")
    ACC = 24
    for t in range(2):
        for j in range(8):
            for e in range(4):
                d = ACC + t * 4 + e
                a(f"v_dot2_f32_bf16 v{d}, v{WP+4*j+e}, s{8 + t*8 + j}, {'0' if j == 0 else 'v%d' % d}")
    a("s_and_b32 s52, s55, 15")
    a("s_lshl_b32 s31, s30, 7")
    a("s_add_u32 s52, s52, s31")
    a("s_lshl_b32 s52, s52, 7")
    a(f"v_lshlrev_b32 v12, 11, v{LANE}")
    a(f"buffer_store_dwordx4 v[{ACC}:{ACC+3}], v13, s[48:51], s54 offen sc1")
    a(f"buffer_store_dwordx4 v[{ACC+4}:{ACC+7}], v13, s[48:51], s53 offen sc1")
    for i in range(16):
        a(f"v_mov_b32 v{VX+i}, v{VO+i}")
    a("s_mov_b32 s58, 1")
    a("s_waitcnt vmcnt(0)")
    a(f"s_mov_b64 exec, 0xff\nbuffer_atomic_add v{ONE}, v12, s[60:63], s52 offen sc1\ns_mov_b64 exec, -1")
    a(f"s_branch {lln}")
    a.label(lown)
    for i in range(16):
        a(f"v_lshlrev_b32 v{T2+2*i}, 16, v{VX+i}")
        a(f"v_and_b32 v{T2+2*i+1}, 0xffff0000, v{VX+i}")
    for i in range(0, 32, 2):
        a(f"v_pk_add_f32 v[{T2+i}:{T2+i+1}], v[{T2+i}:{T2+i+1}], v[{KP+i}:{KP+i+1}]")
    for i in range(16):
        a(f"v_cvt_pk_bf16_f32 v{VX+i}, v{T2+2*i}, v{T2+2*i+1}")
    for i in range(4):
        a(f"buffer_store_dwordx4 v[{VX+4*i}:{VX+4*i+3}], v0, s[36:39], 0 offen offset:{i*512} sc1")
    a("s_cmp_ge_u32 s2, 224")
    a(f"s_cbranch_scc1 {lred2}")
    a(f"s_branch {fin}")
    a.label(lred)
    a("s_sub_u32 s40, s2, 224")
    a("s_lshr_b32 s41, s40, 4")
    a("s_and_b32 s42, s40, 15")
    a.srd(8, 56, 2048)
    for i in range(4):
        a(f"buffer_load_dwordx4 v[{WD+4*i}:{WD+3+4*i}], v{L16B}, s[8:11], 0 offen offset:{i*512}")
    a("s_lshl_b32 s43, s41, 5")
    a("v_readlane_b32 s46, v15, s43")
    a("s_lshl_b32 s47, s42, 7")
    a("v_lshl_add_u32 v9, v8, 3, s47")
    a("s_lshl_b32 s46, s46, 11")
    a("s_lshl_b32 s31, s41, 11")
    a(f"s_add_u32 s31, s31, {XL}")
    a("v_add_u32 v12, s31, v9")
    a("s_waitcnt lgkmcnt(0)")
    a("ds_read_b64 v[32:33], v12")
    a("buffer_load_dwordx2 v[34:35], v9, s[24:27], s46 offen sc1")
    a(f"v_lshrrev_b32 v10, 4, v{TID}")
    a("v_lshlrev_b32 v10, 13, v10")
    a("v_lshl_add_u32 v10, v8, 4, v10")
    a("s_lshl_b32 s47, s40, 8")
    a("s_waitcnt vmcnt(1)")
    a(f"v_dot2_f32_bf16 v12, v{VX}, v{WD}, 0")
    for i in range(1, 16):
        a(f"v_dot2_f32_bf16 v12, v{VX+i}, v{WD+i}, v12")
    a("s_nop 2")
    half_wave_sum(a, 12, 13)
    a("v_cvt_pk_bf16_f32 v12, v12, v12")
    a("v_and_b32 v12, 0xffff0000, v12")
    a("v_mul_f32 v12, 0xbfb8aa3b, v12")
    a("v_exp_f32 v12, v12")
    a("s_lshl_b32 s44, s42, 1")
    a("v_add_f32 v12, 1.0, v12")
    a("v_rcp_f32 v12, v12")
    a("s_add_u32 s44, s44, s41")
    a("s_lshl_b32 s44, s44, 11")
    a("v_cvt_pk_bf16_f32 v12, v12, v12")
    a("v_and_b32 v12, 0xffff0000, v12")
    for i in range(16):
        a(f"v_mov_b32 v{VX+i}, v{VO+i}")
    a("v_readlane_b32 s45, v12, s43")
    a("s_mov_b32 s58, 1")
    a(f"s_branch {lln}")
    a.label(lred2)
    go, lp = a.uid("ff_rgo"), a.uid("ff_rpoll")
    a("s_cmp_lg_u32 s30, 0")
    a(f"s_cbranch_scc1 {go}")
    a(f"s_mov_b32 s52, {SPIN_MAX}")
    a.label(lp)
    a("buffer_load_dword v13, v6, s[60:63], s44 offen sc1")
    a("s_sub_u32 s52, s52, 1")
    a(f"s_cbranch_scc1 {go}")
    a("s_waitcnt vmcnt(0)")
    a("v_cmp_gt_u32 vcc, 14, v13")
    a(f"s_cbranch_vccz {go}")
    a(f"s_sleep {os.environ.get('FSL2', '2')}")
    a(f"s_branch {lp}")
    a.label(go)
    a("s_barrier")
    R0 = 96
    for i in range(14):
        a(f"buffer_load_dwordx4 v[{R0+4*i}:{R0+3+4*i}], v10, s[48:51], s47 offen sc1")
        a("s_add_u32 s47, s47, 0x20000")
    for i in range(1, 14):
        a(f"s_waitcnt vmcnt({13 - i})")
        a(f"v_pk_add_f32 {P(R0)}, {P(R0)}, {P(R0+4*i)}")
        a(f"v_pk_add_f32 {P(R0+2)}, {P(R0+2)}, {P(R0+2+4*i)}")
    for sw in ("v_permlane16_swap_b32", "v_permlane32_swap_b32"):
        for r in range(4):
            a(f"v_mov_b32 v{R0+4+r}, v{R0+r}")
        a("s_nop 1")
        for r in range(4):
            a(f"{sw} v{R0+r}, v{R0+4+r}")
        a("s_nop 1")
        for r in range(4):
            a(f"v_add_f32 v{R0+r}, v{R0+r}, v{R0+4+r}")
    a("v_lshlrev_b32 v14, 4, v8")
    a("s_lshl_b32 s31, s30, 8")
    a("v_add_u32 v13, s31, v14")
    a(f"ds_write_b128 v13, v[{R0}:{R0+3}]")
    a("s_waitcnt lgkmcnt(0)")
    a("s_barrier")
    for w in range(4):
        a(f"ds_read_b128 v[{R0+4*w}:{R0+3+4*w}], v14 offset:{w*256}")
    a("s_waitcnt lgkmcnt(0)")
    for w in range(1, 4):
        a(f"v_pk_add_f32 {P(R0)}, {P(R0)}, {P(R0+4*w)}")
        a(f"v_pk_add_f32 {P(R0+2)}, {P(R0+2)}, {P(R0+2+4*w)}")
    for h in range(2):
        y = R0 + 2 * h
        a(f"v_cvt_pk_bf16_f32 v20, v{y}, v{y+1}")
        a("v_lshlrev_b32 v21, 16, v20\nv_and_b32 v22, 0xffff0000, v20")
        a("v_mul_f32 v21, s45, v21\nv_mul_f32 v22, s45, v22")
        a("v_cvt_pk_bf16_f32 v20, v21, v22")
        a("v_lshlrev_b32 v21, 16, v20\nv_and_b32 v22, 0xffff0000, v20")
        a(f"v_lshlrev_b32 v23, 16, v{32+h}\nv_and_b32 v24, 0xffff0000, v{32+h}")
        a("v_add_f32 v21, v21, v23\nv_add_f32 v22, v22, v24")
        a("v_cvt_pk_bf16_f32 v20, v21, v22")
        a("v_lshlrev_b32 v21, 16, v20\nv_and_b32 v22, 0xffff0000, v20")
        a(f"v_lshlrev_b32 v23, 16, v{34+h}\nv_and_b32 v24, 0xffff0000, v{34+h}")
        a("v_add_f32 v21, v21, v23\nv_add_f32 v22, v22, v24")
        a(f"v_cvt_pk_bf16_f32 v{26+h}, v21, v22")
    a(f"v_cmp_gt_u32 vcc, 16, v{TID}")
    a("s_and_saveexec_b64 s[52:53], vcc")
    a(f"s_cbranch_execz {fin}")
    a("buffer_store_dwordx2 v[26:27], v9, s[36:39], s46 offen sc1")
    a.label(fin)
    a("s_mov_b64 exec, -1")
```

```python
from common import *
from sched import Op, spread, schedule, resolve_lgkm
import common
import oproj
import math, struct

QSCALE = struct.unpack("<I", struct.pack("<f", math.log2(math.e) / math.sqrt(128.0)))[0]
THRESH = 0x40004000
REFBITS = 0x41400000

V_LANE16 = 1
V_K = 2
V_V = 3
V_VV = 4
V_NINF = 5
V_T = 6
V_T2 = 7
NEGM = 8
LQ = [12, 48, 248, 252]
ONES = 60
REF = 12.0
CIN = 16
DL = 52
V_C = 57
V_LANEV = 56
Q = 64
S = [128, 160]
P = [192, 208]
TMP = 224
V_PF = 228
V_PS = 229
V_PL = 230
A_R = 224
ET = 232
A_O = 0
A_K = 128
A_V = 192


LDF = ' sc1'
import os
VT = int(os.environ.get('VT', '4'))
import os
KN = set(os.environ.get("KN", "").split(","))


def vq(b):
    return f"v[{b}:{b+3}]"


def aq(b):
    return f"a[{b}:{b+3}]"


def slot_of(typ, kb, qb):
    if typ == "D":
        return kb * 4 + qb
    return (kb % 2) * 4 + (kb // 2) * 2 + (qb - 2)


def kind(t):
    return t[0]


def qbs_of(t):
    return {"D": [0, 1, 2, 3], "D3": [1, 2, 3], "S": [2, 3], "S1": [3]}[t]


def js_of(t):
    return qbs_of(t) if kind(t) == "D" else [ks * 2 + q - 2 for ks in range(2) for q in qbs_of(t)]


def qk_mfmas(typ, par, ko=0):
    out = []
    for kb in range(2 if kind(typ) == "D" else 4):
        for c in range(4):
            for qb in qbs_of(typ):
                sl = slot_of(kind(typ), kb, qb)
                d = vq(S[par] + 4 * sl)
                cc = vq(CIN + 4 * sl) if c == 0 else d
                out.append(mfma16(d, aq(A_K + ko + (kb * 4 + c) * 4), vq(Q + (qb * 4 + c) * 4), cc))
    return out


def pv_mfmas(typ, par):
    out = []
    for j in js_of(typ):
        l = vq(LQ[j if kind(typ) == "D" else 2 + j % 2])
        out.append(mfma16(l, vq(ONES), vq(P[par] + 4 * j), l))
    for ks in range(1 if kind(typ) == "D" else 2):
        for db in range(8):
            for qb in qbs_of(typ):
                o = aq(A_O + (db * 4 + qb) * 4)
                j = qb if kind(typ) == "D" else ks * 2 + qb - 2
                out.append(mfma16(o, aq(A_V + (ks * 8 + db) * 4), vq(P[par] + 4 * j), o))
    return out


def sm_stream(par, js):
    ops = []
    for j in js:
        for half in range(2):
            sl = j + 4 * half
            for r in range(4):
                ops.append(f"v_exp_f32 v{ET+r}, v{S[par] + 4*sl + r}")
            ops.append("s_nop 0")
            for pr in range(2):
                ops.append(f"v_cvt_pk_bf16_f32 v{P[par] + 4*j + 2*half + pr}, v{ET+2*pr}, v{ET+2*pr+1}")
    return ops


def dma_group(mall=None):
    out = []
    if "nodma" in KN: return []
    for i in range(4):
        t = ""
        if i == 0:
            t = "s_mov_b32 m0, s34\ns_nop 0\n"
        out.append(t + f"buffer_load_dwordx4 v{V_LANE16}, s[16:19], s32 offen offset:{i*1024}{LDF} lds")
    for i in range(4):
        t = ""
        if i == 0:
            t = "s_mov_b32 m0, s35\ns_nop 0\n"
        out.append(t + f"buffer_load_dwordx4 v{V_LANE16}, s[20:23], s33 offen offset:{i*1024}{LDF} lds")
    if mall:
        l = mall.uid("k2_mpf")
        out.append(f"s_add_u32 s61, s61, 1\ns_and_b32 s31, s61, 3\ns_cbranch_scc1 {l}\n"
                   f"buffer_load_dword v{V_T2}, v{V_PF}, s[12:15], s62 offen\ns_add_u32 s62, s62, 0x2000\n{l}:")
    out.append("s_add_u32 s32, s32, 0x80000\ns_add_u32 s33, s33, 0x80000\n"
               "s_add_u32 s34, s34, 0x4000\ns_and_b32 s34, s34, 0xffff\n"
               "s_add_u32 s35, s35, 0x4000\ns_and_b32 s35, s35, 0xffff\ns_or_b32 s35, s35, 0x10000")
    return out


def prep_texts(k, qb):
    sc = f"s_sub_u32 s40, s36, s{38 if qb < 2 else 39}" + ("\ns_sub_u32 s40, s40, 64" if qb % 2 else "")
    v0 = f"v_subrev_u32 v{V_T}, s40, v{V_VV}"
    tiles = []
    for kb in range(2 if k == "D" else 4):
        cm = [f"v_cmp_gt_i32 s[{44+2*r}:{45+2*r}], {16*kb + r}, v{V_T}" for r in range(4)]
        cn = [f"v_cndmask_b32 v{CIN + 4*slot_of(k, kb, qb) + r}, v{NEGM+qb}, v{V_NINF}, s[{44+2*r}:{45+2*r}]" for r in range(4)]
        tiles.append((cm, cn))
    return sc, v0, tiles


def cin_prep(a, k, qb):
    sc, v0, tiles = prep_texts(k, qb)
    a(sc)
    a(v0)
    for cm, cn in tiles:
        for t in cm + cn:
            a(t)
    a("s_nop 1")


def prep_ops(k, qb, lo, hi):
    sc, v0, tiles = prep_texts(k, qb)
    o = spread([v0] + [t for cm, cn in tiles for t in cm + cn], "A", lo + 1, hi)
    so = Op(sc, "S", lo, lo=lo)
    o[0].after.append(so)
    o[-1].hard = hi
    return [so] + o


def row_max(a, typ, par, clamp0):
    qbs = qbs_of(typ)
    for qb in qbs:
        sls = [slot_of(kind(typ), kb, qb) for kb in range(2 if kind(typ) == "D" else 4)]
        rs = [S[par] + 4 * sl + r for sl in sls for r in range(4)]
        d = DL + qb
        a(f"v_max_f32 v{d}, v{rs[0]}, v{rs[1]}")
        for i in range(2, len(rs), 2):
            a(f"v_max3_f32 v{d}, v{d}, v{rs[i]}, v{rs[i+1]}")
    for sw in ("v_permlane16_swap_b32", "v_permlane32_swap_b32"):
        for qb in qbs:
            a(f"v_mov_b32 v{TMP+qb}, v{DL+qb}")
        a("s_nop 1")
        for qb in qbs:
            a(f"{sw} v{DL+qb}, v{TMP+qb}")
        a("s_nop 1")
        for qb in qbs:
            a(f"v_max_f32 v{DL+qb}, v{DL+qb}, v{TMP+qb}")
    for qb in qbs:
        a(f"v_add_f32 v{DL+qb}, 0x{REFBITS:x}, v{DL+qb}")
        if clamp0:
            a(f"v_max_f32 v{DL+qb}, 0, v{DL+qb}")


def qb_of_slot(typ, sl):
    return sl % 4 if typ == "D" else 2 + (sl % 2)


def rare_path(a, sm_typ, qk_k, par):
    a("s_nop 7")
    row_max(a, sm_typ, par, True)
    qbs = qbs_of(sm_typ)
    for sl in range(8):
        q = qb_of_slot(kind(sm_typ), sl)
        if q in qbs:
            for r in range(4):
                x = S[par] + 4 * sl + r
                a(f"v_sub_f32 v{x}, v{x}, v{DL + q}")
    if qk_k is not None:
        for sl in range(8):
            q = qb_of_slot(qk_k, sl)
            if q in qbs:
                for r in range(4):
                    x = S[1 - par] + 4 * sl + r
                    a(f"v_sub_f32 v{x}, v{x}, v{DL + q}")
                    x = CIN + 4 * sl + r
                    a(f"v_sub_f32 v{x}, v{x}, v{DL + q}")
    for qb in qbs:
        a(f"v_sub_f32 v{NEGM+qb}, v{NEGM+qb}, v{DL+qb}")
        a(f"v_exp_f32 v{DL+qb}, -v{DL+qb}")
    a("s_nop 0")
    for qb in qbs:
        a(f"v_mul_f32 v{LQ[qb]}, v{LQ[qb]}, v{DL+qb}")
    for db in range(8):
        for qb in qbs:
            o = A_O + (db * 4 + qb) * 4
            for r in range(4):
                a(f"v_accvgpr_read_b32 v{TMP+r}, a{o+r}")
            for r in range(4):
                a(f"v_mul_f32 v{TMP+r}, v{TMP+r}, v{DL+qb}")
            for r in range(4):
                a(f"v_accvgpr_write_b32 a{o+r}, v{TMP+r}")
    for t in sm_stream(par, js_of(sm_typ)):
        a(t)
    a("s_nop 3")
    a("s_setpc_b64 s[40:41]")


def sm_ops(par, js, lo, hi, sub=False):
    ops, cvts, regs = [], [], []
    users = {}
    chk = None
    tot = 4 * len(js)
    step = (hi - lo) / float(tot)
    n = 0
    for j in js:
        for half in range(2):
            sl = j + 4 * half
            for pr in range(2):
                t = ET + (n % 8) * 2
                w = lo + step * n
                s0 = S[par] + 4 * sl + 2 * pr
                war = users.get(t, [])
                sb = []
                if sub:
                    sb = [Op(f"v_sub_f32 v{s0+k}, v{s0+k}, v{DL+j}", "A", w - step) for k in range(2)]
                    ops += sb
                e0 = Op(f"v_exp_f32 v{t}, v{s0}", "E", w, after=war + sb)
                e1 = Op(f"v_exp_f32 v{t+1}, v{s0+1}", "E", w + step / 2, after=war + sb)
                pr_ = P[par] + 4 * j + 2 * half + pr
                cv = Op(f"v_cvt_pk_bf16_f32 v{pr_}, v{t}, v{t+1}", "A", w + step * 1.1, after=[e0, e1])
                users[t] = [cv]
                ops += [e0, e1, cv]
                cvts.append(cv)
                regs.append(pr_)
                if n == 2:
                    chk = Op(f"v_or3_b32 v{V_C}, v{regs[0]}, v{regs[1]}, v{regs[2]}", "A", w + step * 1.6, after=cvts[-3:])
                    ops.append(chk)
                elif n > 2 and n % 2 == 0:
                    chk = Op(f"v_or3_b32 v{V_C}, v{V_C}, v{regs[-2]}, v{regs[-1]}", "A", w + step * 1.6, after=cvts[-2:] + [chk])
                    ops.append(chk)
                elif n == tot - 1:
                    chk = Op(f"v_bitop3_b32 v{V_C}, v{V_C}, v{regs[-1]}, s37 bitop3:0xa8", "A", w + step * 1.4, after=[cv, chk])
                    ops.append(chk)
                n += 1
    return ops, chk, cvts


def nfr(typ):
    return 8 if typ[0] == "D" else 16


def rd_text(which, i):
    base, va = (A_K, V_K) if which == "K" else (A_V, V_V)
    return f"ds_read_b128 {aq(base + 4*i)}, v{va} offset:{i*1024}"


def ptr_ops(typ, which, lo, want, after):
    va, sp, lane = (V_K, 52, V_LANE16) if which == "K" else (V_V, 53, V_LANEV)
    s1 = Op(f"s_add_u32 s{sp}, s{sp}, {nfr(typ)*1024}", "S", lo + 1, lo=lo)
    s2 = Op(f"s_and_b32 s{sp}, s{sp}, 0xffff", "S", lo + 3, lo=lo, after=[s1])
    up = Op(f"v_add_u32 v{va}, s{sp}, v{lane}", "A", want, after=list(after) + [s2])
    return [s1, s2, up]


def dma_ops(h, lo, hi, after):
    srd, so, lp = (("s[16:19]", 32, 34), ("s[20:23]", 33, 35))[h]
    step = (hi - lo - 1) / 4.0
    m = Op(f"s_mov_b32 m0, s{lp}", "S", lo, lo=lo, after=after)
    ops = [m]
    last = None
    for i in range(4):
        v = Op(f"buffer_load_dwordx4 v{V_LANE16}, {srd}, s{so} offen offset:{i*1024}{LDF} lds", "V", lo + 1 + step * i, lo=lo,
               after=[last] if last else [], prev_gap=[m], hard=hi - 1)
        ops.append(v)
        last = v
    b = [Op(f"s_add_u32 s{so}, s{so}, 0x80000", "S", lo + 2 + step * 3, after=[last])]
    b.append(Op(f"s_add_u32 s{lp}, s{lp}, 0x4000", "S", lo + step, after=[m]))
    b.append(Op(f"s_and_b32 s{lp}, s{lp}, 0xffff", "S", lo + step * 2, after=[b[-1]]))
    if h:
        b.append(Op(f"s_or_b32 s{lp}, s{lp}, 0x10000", "S", lo + step * 2.5, after=[b[-1]]))
    return ops + b, last


def side_ops(lo, hi, load=True):
    step = (hi - lo) / (5.0 if load else 2.0)
    ops = spread([f"buffer_store_dwordx4 {aq(A_R + 4*i)}, v{V_PS}, s[8:11], s58 offen offset:{i*256} sc1" for i in range(2)], "V", lo, lo + 2 * step)
    if not load:
        return ops, ops[-1]
    sa = spread(["s_and_b32 s60, s62, 31", "s_lshr_b32 s61, s62, 5", f"s_mul_i32 s57, s60, {32*7168}", "s_lshl_b32 s4, s61, 7", "s_add_u32 s57, s57, s4",
                 f"s_add_u32 s56, s57, {8*7168}", "s_add_u32 s62, s62, 1"], "S", lo - 12, lo + step)
    sb = spread(["s_lshl_b32 s58, s61, 17", "s_lshl_b32 s60, s60, 10", "s_add_u32 s58, s58, s60", "s_mov_b32 s10, s59"], "S", lo + 2 * step, lo + 4 * step)
    sb[0].after += [ops[-1], sa[-1]]
    ld = spread([f"buffer_load_dwordx4 {aq(A_R)}, v{V_PF}, s[12:15], s57 offen", f"buffer_load_dwordx4 {aq(A_R + 4)}, v{V_PF}, s[12:15], s56 offen",
                 f"buffer_load_dword v{V_T2}, v{V_PL}, s[24:27], s54 offen"], "V", lo + 2 * step, hi)
    ld[0].after += [ops[-1], sa[-1]]
    return ops + sa + sb + ld + [Op("s_add_u32 s54, s54, 4096", "S", hi, after=ld[-1:])], ld[-1]


LEAD = 19


def body(a, outl, u_par, qk, sm, pv, vread, sync, prep=None, dk=False, dv=False, tail=(), first=False, side=None, remap=False, extra=None):
    par = u_par
    mp = pv_mfmas(pv, 1 - par) if pv else []
    mf = mp + (qk_mfmas(qk, 1 - par, 32 if first else 0) if qk else [])
    n1, n = len(mp), len(mf)
    ops, pre = [], []
    carried = []
    chain = []
    vup = None

    def uses(base, i):
        g = [k for k, t in enumerate(mf) if f", {aq(base + 4*i)}," in t]
        return g[0], g[-1]

    def add_reads(which, idxs, wants, los, extra=()):
        out = []
        for i, w, lo in zip(idxs, wants, los):
            o = Op(rd_text(which, i), "M", max(w, lo), lo=lo, after=(chain[-1:] + list(extra)))
            chain.append(o)
            out.append(o)
        return out

    def waits(base, m, rds):
        for i in range(0, m, 2):
            g = uses(base, i)[0] - 1
            need = [rds[j] for j in (i, i + 1) if rds.get(j) is not None]
            for r in need:
                r.hard = max(0, g - 4)
            ops.append(Op(f"@LGKM {base + 4*(i+1)}", "S", g, lo=g, hard=g, after=need))

    bar = None
    dlast = []
    if dv:
        o, l = dma_ops(1, 1, n1 - 1 if sync in ("mid", "mid0") else n - 4, [])
        ops += o
        dlast.append(l)
    if sync == "mid":
        bar = Op("s_waitcnt vmcnt(12)\ns_barrier", "S", n1, lo=n1, hard=n1, after=dlast)
    elif sync == "end":
        bar = Op(f"s_waitcnt vmcnt({8 if first else 13})\ns_barrier", "S", n - 1, lo=n - 1, hard=n - 1, after=dlast)
    elif sync == "mid0":
        bar = Op("s_waitcnt vmcnt(4)\ns_barrier", "S", n1, lo=n1, hard=n1, after=dlast)
    elif sync == "epi":
        bar = Op("s_waitcnt vmcnt(0)\ns_barrier", "S", 0, lo=0, hard=0)
    if first:
        po = first["poll"]()
        ga = first["gate"](lo=n - 3, hard=n - 2, after=[po])
        ops += [po, ga]
        bar.after.append(ga)
    if bar:
        ops.append(bar)
    if dk:
        if sync == "mid":
            o, l = dma_ops(0, n1 + 1, n - 1, [bar])
        else:
            o, l = dma_ops(0, 1, 24, [])
        ops += o
        if side is not None:
            w = Op("s_waitcnt vmcnt(8)", "S", 24, lo=24, after=[l])
            o, _ = side_ops(25, n - 3, side)
            o[0].after.append(w)
            ops += [w] + o
    if pv:
        m = nfr(pv)
        mt = m // 2
        carried = [A_V + 4 * i for i in range(mt)]
        idx = list(range(mt, m))
        r = add_reads("V", idx, [uses(A_V, i)[0] - LEAD for i in idx], [0] * len(idx))
        po = ptr_ops(pv, "V", 2, r[-1].want + 3, r[-1:])
        vup = po[-1]
        ops += r + po
        waits(A_V, m, dict(zip(idx, r)))
    if qk:
        m = nfr(qk)
        if pv:
            idx = list(range(m))
            r = add_reads("K", idx, [uses(A_K, i)[0] - LEAD for i in idx], [0] * m)
            ops += r + ptr_ops(qk, "K", n1 + 6, r[-1].want + 3, r[-1:])
            waits(A_K, m, dict(zip(idx, r)))
        elif not first:
            pre.append("s_waitcnt lgkmcnt(0)")
        rm = []
        if remap:
            rm = spread([f"v_mov_b32 v{CIN + 4*sl + r}, v{NEGM + 2 + sl % 2}" for sl in (0, 1, 4, 5) for r in range(4)], "A", 4, n1 - 8)
            rm[-1].hard = n1 - 5
            ops += rm
        if prep and prep[0] == "in":
            ops += prep_ops(kind(qk), prep[1], 4, n1 - 3)
        elif prep:
            pl, pr = a.uid("k2_prep"), a.uid("k2_prepret")
            t = f"s_cmp_ge_u32 s36, s{42 if kind(qk) == 'D' else 43}\ns_cbranch_scc1 {pl}\n{pr}:"
            outl.append(("prep", pl, kind(qk), prep[1], pr))
            if pv:
                ops.append(Op(t, "B", n1 - 4, lo=4, hard=n1 - 3, after=rm[-1:]))
            else:
                pre.append(t)
        ops.append(Op(f"s_add_u32 s36, s36, {32 if kind(qk) == 'D' else 64}", "S", n1 + 4, lo=n1))
    if vread:
        m = nfr(vread)
        ex = ([vup] if vup else []) + ([bar] if sync in ("mid", "mid0", "epi") else [])
        idx = list(range(m // 2 if qk else m))
        free = [(uses(A_V, i)[1] + 1) if (pv and i < nfr(pv)) else 0 for i in idx]
        if qk:
            ops += add_reads("V", idx, [n + 4 + i * (32 // m) - LEAD - 2 for i in idx], free, ex)
        else:
            ops += add_reads("V", idx, [18 + i for i in idx], free, ex)
    if sm:
        so, chk, cvts = sm_ops(par, js_of(sm), 1 if first else 0, n - 4, sub=bool(first))
        ops += so
        rl, ret = a.uid("k2_tramp"), a.uid("k2_ret")
        c3 = Op(f"v_cmp_ne_u32 vcc, 0, v{V_C}", "A", n - 2, after=[chk])
        c4 = Op(f"s_cbranch_vccnz {rl}\n{ret}:", "B", n + 99, lo=n, after=[c3] + cvts)
        ops += [c3, c4]
        outl.append(("rare", rl, (sm, kind(qk) if qk else None, par), ret))
    for t in tail:
        ops.append(Op(t, "S", n - 8))
    if extra:
        ops += extra(bar, n)
    start = len(a.lines)
    for t in pre:
        a(t)
    schedule(a, mf, ops)
    resolve_lgkm(a.lines, start, carried)


def kv_first():
    out = ["s_mov_b32 s32, s60", "s_mov_b32 s34, s60", "s_mov_b32 s33, s60", "s_add_u32 s35, s60, 0x10000"]
    return out


def out_ops(qb, c, t, pk):
    tx = []
    for hh in range(2):
        o = A_O + ((2 * c + hh) * 4 + qb) * 4
        tx += [f"v_accvgpr_read_b32 v{t+4+hh*4+r}, a{o+r}" for r in range(4)]
    if pk:
        tx += [f"v_pk_mul_f32 v[{t+4+r}:{t+5+r}], v[{t+4+r}:{t+5+r}], v[{LQ[qb]}:{LQ[qb]+1}]" for r in range(0, 8, 2)]
    else:
        tx += [f"v_mul_f32 v{t+4+r}, v{t+4+r}, v{LQ[qb]}" for r in range(8)]
    tx += [f"v_cvt_pk_bf16_f32 v{t+r}, v{t+4+2*r}, v{t+5+2*r}" for r in range(4)]
    st = f"buffer_store_dwordx4 v[{t}:{t+3}], v{V_LANE16}, s[24:27], s{44+c+4*(qb%2)} offen sc1"
    return tx, st


def l_final(qbs):
    tx = []
    for sw in ("v_permlane16_swap_b32", "v_permlane32_swap_b32"):
        tx += [f"v_mov_b32 v{LQ[q]+1}, v{LQ[q]}" for q in qbs] + ["s_nop 1"]
        tx += [f"{sw} v{LQ[q]}, v{LQ[q]+1}" for q in qbs] + ["s_nop 1"]
        tx += [f"v_add_f32 v{LQ[q]}, v{LQ[q]}, v{LQ[q]+1}" for q in qbs]
    tx += [f"v_rcp_f32 v{LQ[q]+1}, v{LQ[q]}" for q in qbs] + [f"v_rcp_f32 v{LQ[q]}, v{LQ[q]}" for q in qbs] + ["s_nop 0"]
    return tx


def ctx_base(srow):
    return ["s_lshl_b32 s31, s28, 19", f"s_lshl_b32 s44, s{srow}, 6", "s_add_u32 s44, s44, s31"] + \
           [f"s_add_u32 s{44+c}, s44, {(c%4)*0x20000 + (c//4)*4096}" for c in range(1, 8)]


def attention_phase(a, end, kidx, qsrc, late, stubs=(), next_code=None, when=None, ffn=None):
    a(f"s_load_dwordx2 s[44:45], s[0:1], {ARG['wo']}")
    a(f"s_load_dwordx2 s[46:47], s[0:1], {ARG['wg']}")
    a(f"s_load_dwordx4 s[48:51], s[0:1], {ARG['wu']}")
    a(f"s_mov_b32 s40, 0x{QSCALE:x}")
    a(f"s_mov_b32 s41, 0x{QSCALE:x}")
    for t in dma_group():
        a(t)
    a(f"v_mov_b32 v{V_K}, v{V_LANE16}")
    a(f"v_or_b32 v{V_V}, 0x10000, v{V_LANE16}")
    a(f"v_mov_b32 v{V_LANEV}, v{V_V}")
    a("s_mov_b32 s52, 0x4000")
    a("s_mov_b32 s53, 0")
    a("s_lshl_b32 s62, s28, 6")
    a("s_mul_i32 s31, s29, s29")
    a("s_add_u32 s62, s62, s31")
    a("s_lshr_b32 s31, s30, 1")
    a("s_lshl_b32 s4, s31, 23")
    a(f"s_add_u32 s4, s4, 0x{RPK_OFF:x}")
    a("s_add_u32 s8, s6, s4")
    a("s_addc_u32 s9, s7, 0")
    a("s_and_b32 s9, s9, 0xffff")
    a("s_mov_b32 s10, 0")
    a("s_mov_b32 s58, 0")
    a("s_mov_b32 s14, 0x700000")
    a("s_mov_b32 s59, 0x700000")
    a("s_lshl_b32 s54, s62, 12")
    a("s_waitcnt vmcnt(16) lgkmcnt(0)")
    a("s_barrier")
    a(late["sig"])
    a("v_mov_b32 v59, 0")
    for i in range(16):
        a(rd_text("K", i))
    a("s_cmp_lt_u32 s30, 2")
    a("s_cselect_b64 s[12:13], s[46:47], s[48:49]")
    a("s_cselect_b64 s[60:61], s[44:45], s[50:51]")
    a("s_cselect_b32 s55, 0x800000, s14")
    a("s_and_b32 s13, s13, 0xffff")
    for qb in (2, 3, 0, 1):
        for c in range(4):
            for hh in range(2):
                kind, x = qsrc(2 * c + hh, qb)
                if kind == "a":
                    y = 128 + (c % 2) * 8 + hh * 4
                    for r in range(4):
                        a(f"v_accvgpr_read_b32 v{y+r}, a{x+r}")
                    x = y
                a(f"v_pk_mul_f32 v[{x}:{x+1}], v[{x}:{x+1}], s[40:41]")
                a(f"v_pk_mul_f32 v[{x+2}:{x+3}], v[{x+2}:{x+3}], s[40:41]")
                d = Q + (qb * 4 + c) * 4 + 2 * hh
                a(f"v_cvt_pk_bf16_f32 v{d}, v{x}, v{x+1}")
                a(f"v_cvt_pk_bf16_f32 v{d+1}, v{x+2}, v{x+3}")
    a(f"v_add_u32 v{V_K}, 0x4000, v{V_LANE16}")
    for i in range(4):
        a(f"v_mov_b32 v{NEGM+i}, 0")
        a(f"v_mov_b32 v{ET+i}, 0")
    a("s_mov_b32 s36, 0")
    a(f"s_mov_b32 s37, 0x{THRESH:x}")
    zero_acc(a, CIN, 32, ET, "v", init=False)
    a(f"v_and_b32 v{V_T}, 0xf0, v{V_LANE16}")
    a(f"v_cmp_eq_u32 vcc, 0, v{V_T}")
    a(f"v_mov_b32 v{V_T}, 0x3f803f80")
    a(f"v_lshrrev_b32 v{V_PS}, 7, v{V_LANE16}")
    a("s_and_b32 s4, s30, 1")
    a("s_lshl_b32 s31, s4, 11")
    a(f"v_lshl_add_u32 v{V_PL}, v{V_LANE16}, 1, s31")
    a(f"v_lshl_add_u32 v{V_PS}, s4, 4, v{V_PS}")
    a(f"v_mul_u32_u24 v{V_PF}, 7168, v{V_PS}")
    a(f"v_and_b32 v{V_T2}, 0x70, v{V_LANE16}")
    a(f"v_add_u32 v{V_PF}, v{V_PF}, v{V_T2}")
    a(f"v_lshlrev_b32 v{V_PS}, 5, v{V_PS}")
    a(f"v_and_b32 v{V_C}, 0x10, v{V_LANE16}")
    a(f"v_add_u32 v{V_PS}, v{V_PS}, v{V_C}")
    a(f"v_lshrrev_b32 v{V_T2}, 5, v{V_T2}")
    a(f"v_lshl_add_u32 v{V_PS}, v{V_T2}, 15, v{V_PS}")
    for r in range(4):
        a(f"v_cndmask_b32 v{ONES+r}, 0, v{V_T}, vcc")
    for i in range(4):
        for r in range(4):
            a(f"v_mov_b32 v{LQ[i]+r}, 0")
    if not when:
        stamp(a, 4)
    outl = []
    body(a, outl, 1, "D", None, None, None, None, ("cond", 0))
    zero_acc(a, 0, 128, ET, init=False)
    row_max(a, "D", 0, False)
    for sl in range(8):
        for r in range(4):
            a(f"v_sub_f32 v{CIN+4*sl+r}, 0, v{DL + sl % 4}")
    for qb in range(4):
        a(f"v_sub_f32 v{NEGM+qb}, 0, v{DL+qb}")
    body(a, outl, 0, "D", "D", None, "D", "end", ("cond", 0), first=late)
    a("s_mov_b32 s24, s60")
    a("s_and_b32 s25, s61, 0xffff")
    a("s_mov_b32 s26, s55")
    loop, dm3 = a.uid("k2_dloop"), a.uid("k2_dm3")
    a("s_lshl_b32 s63, s29, 1")
    a("s_sub_u32 s63, s63, 1")
    a(f"s_cbranch_scc1 {dm3}")
    a.label(loop)
    body(a, outl, 1, "D", "D", "D", "D", None, dk=True, side=True)
    body(a, outl, 0, "D", "D", "D", "D", "end", dv=True, tail=["s_sub_u32 s63, s63, 1"])
    a("s_cmp_lg_u32 s63, 0")
    a(f"s_cbranch_scc1 {loop}")
    body(a, outl, 1, "D", "D", "D", "D", None, ("in", 0), dk=True, side=True)
    body(a, outl, 0, "D", "D", "D", "D", "end", ("in", 0), dv=True)
    a.label(dm3)
    body(a, outl, 1, "D3", "D", "D", "D", None, ("in", 1), dk=True, side=True)
    body(a, outl, 0, "D3", "D3", "D", "D", "end", ("in", 1), dv=True)
    if not when:
        stamp(a, 5)
    body(a, outl, 1, "S", "D3", "D3", "D", None, ("cond", 2), dk=True, side=False, remap=True)
    body(a, outl, 0, "S", "S", "D3", "S", "mid", ("cond", 3), dv=True, dk=True)
    if when:
        oproj.early_loads(a)
    if ffn:
        ffn.wdown_loads(a)
    a.srd_off(24, 6, CTX_OFF, 16 << 20)
    for t in ctx_base(38) + l_final([0, 1]):
        a(t)
    n = 0
    for qb in range(2):
        for c in range(4):
            tx, st = out_ops(qb, c, Q + (n % 2) * 12, True)
            n += 1
            for t in tx + [st]:
                a(t)
    if ffn:
        ffn.wdown_dma(a)
    if when:
        a("s_nop 1")
        oproj.early(a)
    loop, done = a.uid("k2_sloop"), a.uid("k2_sdone")
    a("s_lshl_b32 s63, s29, 1")
    a("s_sub_u32 s63, 13, s63")
    a(f"s_cbranch_scc1 {done}")
    a.label(loop)
    body(a, outl, 1, "S", "S", "S", "S", "mid", dv=True, dk=True)
    body(a, outl, 0, "S", "S", "S", "S", "mid", dv=True, dk=True, tail=["s_sub_u32 s63, s63, 1"])
    a("s_cmp_lg_u32 s63, 0")
    a(f"s_cbranch_scc1 {loop}")
    body(a, outl, 1, "S", "S", "S", "S", "mid0", ("in", 2), dv=True)
    body(a, outl, 0, "S1", "S", "S", "S", None, ("in", 3))
    a.label(done)
    body(a, outl, 1, None, "S1", "S", "S", "epi", extra=(lambda bar, n: oproj.e1_ops(a, when, bar, n)) if when else None)
    if next_code:
        a(f"v_lshrrev_b32 v{V_T}, 4, v{V_LANE16}")
        a(f"v_and_b32 v{V_T}, 31, v{V_T}")
        code_addr(a, next_code, TMP, V_T, 40)
        a(f"global_load_dword v{V_T2}, v[{TMP}:{TMP+1}], off")
    mf = pv_mfmas("S1", 1)
    mf = mf[:2] + [mf[2 + ks * 8 + db] for db in range(8) for ks in range(2)]
    ops = spread(ctx_base(39), "S", 0, 6)
    cb_last = ops[-1]
    lf = {2: spread(l_final([2]), "A", 0, 3), 3: spread(l_final([3]), "A", 8, 11)}
    ops += lf[2] + lf[3]
    ops.append(Op("s_waitcnt lgkmcnt(0)", "S", 1, lo=1, hard=1))
    prev = {}
    n = 0
    for qb in (2, 3):
        for c in range(4):
            t = 128 + (n % 4) * 12
            g0 = 3 + 4 * c if qb == 2 else 19 + c
            tx, st = out_ops(qb, c, t, qb == 3)
            o = spread(tx, "A", g0, g0 + (4 if qb == 2 else 1))
            o[0].after += [lf[qb][-1]] + prev.get(t, [])
            so = Op(st, "V", g0 + 4, after=[o[-1], cb_last])
            prev[t] = [so]
            ops += o + [so]
            n += 1
    if not when:
        stamp(a, 6)
    schedule(a, mf, ops)
    if when:
        stamp(a, 4)
        oproj.finish(a, when, ffn)
    tr_dump(a, 6, 30, V_LANE16)
    stamp_dump(a, kidx, 7, 6)
    a.label(end)
    a("s_endpgm")
    for o in outl:
        if o[0] == "prep":
            a.label(o[1])
            cin_prep(a, o[2], o[3])
            a(f"s_branch {o[4]}")
    for (sl, txt, ret) in stubs:
        a.label(sl)
        a(txt)
        a(f"s_branch {ret}")
    keys = {}
    for o in outl:
        if o[0] == "rare":
            lab = keys.setdefault(o[2], a.uid("k2_rare"))
            a.label(o[1])
            a(f"s_call_b64 s[40:41], {lab}")
            a(f"s_branch {o[3]}")
    for key, lab in keys.items():
        a.label(lab)
        rare_path(a, *key)
```

```python
from common import *
import common, os
from sched import Op, spread, schedule

SPIN_MAX = 1 << 20
R = 64
XO, WDM, WRD = R + 24, R + 26, R + 0
G, PO, PV_, Z, ONE = R + 8, R + 9, R + 10, R + 11, R + 12
STO, HO, WO, CA = R + 13, R + 14, R + 16, R + 18
DUM = R + 20
ACC, XE, WR, SA = 128, 192, 208, 208
XR = 128
FW = [0, 64]


def vq(b):
    return f"v[{b}:{b+3}]"


def aq(b):
    return f"a[{b}:{b+3}]"


def one_lane(text):
    return f"s_mov_b64 exec, 1\n{text}\ns_mov_b64 exec, -1"


def wdma(p):
    return (f"s_add_u32 m0, s60, {(p % 4)*16384}",
            [f"buffer_load_dwordx4 v{WDM+i}, s[12:15], s61 offen offset:{i*1024} lds" for i in range(4)],
            "s_add_u32 s61, s61, 0x20000\ns_and_b32 s61, s61, 0x3fffff")


def xloads(p):
    return (None, [f"buffer_load_dwordx4 {aq(XR + (p % 4)*16 + 8*ks + 4*tb)}, v{XO+ks}, s[8:11], s62 offen offset:{tb*1024} sc1" for ks in range(2) for tb in range(2)],
            "s_add_u32 s62, s62, 0x40000\ns_and_b32 s62, s62, 0x7fffff")


def early_loads(a):
    a(f"s_load_dwordx2 s[4:5], s[0:1], {ARG['wo']}")


def early(a):
    T0, T1, T2, LN = R + 20, R + 21, R + 22, R + 23
    a("s_lshr_b32 s31, s2, 3")
    a("s_bfe_u32 s56, s2, 0x10002")
    a("s_and_b32 s54, s2, 1")
    a("s_lshl_b32 s54, s54, 3")
    a("s_and_b32 s55, s31, 7")
    a("s_add_u32 s54, s54, s55")
    a("s_and_b32 s55, s2, 2")
    a("s_lshl_b32 s55, s55, 1")
    a("s_lshr_b32 s31, s31, 3")
    a("s_add_u32 s55, s55, s31")
    a(f"v_lshrrev_b32 v{LN}, 4, v1")
    a(f"v_lshrrev_b32 v{G}, 4, v{LN}")
    a("s_lshl_b32 s57, s54, 7")
    a("s_lshl_b32 s31, s30, 5")
    a("s_add_u32 s57, s57, s31")
    a("s_lshl_b32 s31, s57, 6")
    a(f"v_add_u32 v{XO}, s31, v1")
    a(f"v_add_u32 v{XO+1}, 0x20000, v{XO}")
    a(f"v_bfe_u32 v{T0}, v{LN}, 1, 3")
    a(f"v_xor_b32 v{T0}, v{T0}, v{G}")
    a(f"v_and_b32 v{T1}, 16, v1")
    a(f"v_lshl_add_u32 v{T1}, v{G}, 11, v{T1}")
    a("s_lshl_b32 s31, s30, 15")
    a("s_lshl_b32 s58, s55, 8")
    a("s_add_u32 s31, s31, s58")
    a(f"v_add_u32 v{T1}, s31, v{T1}")
    for i in range(4):
        a(f"v_xor_b32 v{T2}, {(i % 2) * 4}, v{T0}")
        a(f"v_lshl_add_u32 v{T2}, v{T2}, 5, v{T1}")
        a(f"v_add_u32 v{WDM+i}, {4*i*2048 - i*1024}, v{T2}")
    a(f"v_and_b32 v{T0}, 15, v{LN}")
    a(f"v_add_u32 v{T1}, s57, v{T0}")
    a(f"v_lshlrev_b32 v{STO}, 2, v{T1}")
    a(f"v_lshl_add_u32 v{STO}, v{G}, 13, v{STO}")
    a("s_lshl_b32 s31, s56, 7")
    a("s_add_u32 s58, s58, s31")
    a(f"v_lshl_add_u32 v{WO}, v{G}, 3, s58")
    a(f"v_lshl_add_u32 v{HO}, v{T1}, 11, v{WO}")
    a(f"v_add_u32 v{HO+1}, 0x8000, v{HO}")
    a(f"v_lshrrev_b32 v{T1}, 2, v{T0}")
    a(f"v_lshl_add_u32 v{T1}, v{G}, 2, v{T1}")
    a(f"v_and_b32 v{T0}, 7, v{T1}")
    a("s_lshl_b32 s31, s56, 2")
    a(f"v_xor_b32 v{T0}, s31, v{T0}")
    a(f"v_lshlrev_b32 v{T1}, 8, v{T1}")
    a(f"v_and_b32 v{T2}, 3, v{LN}")
    a(f"v_lshl_add_u32 v{T1}, v{T2}, 3, v{T1}")
    a("s_add_u32 s31, s2, 1")
    a("s_and_b32 s31, s31, 3")
    a(f"v_add_u32 v{PO}, s31, v{T2}")
    a(f"v_and_b32 v{PO}, 3, v{PO}")
    a(f"v_lshlrev_b32 v{PO}, 7, v{PO}")
    for j in range(8):
        a(f"v_xor_b32 v{T2}, {j}, v{T0}")
        a(f"v_lshl_add_u32 v{WRD+j}, v{T2}, 5, v{T1}")
    a("s_lshl_b32 s61, s31, 20")
    a("s_lshl_b32 s62, s31, 21")
    a("s_lshl_b32 s60, s30, 12")
    a("s_lshl_b32 s59, s54, 10")
    a("s_lshl_b32 s31, s56, 9")
    a("s_add_u32 s59, s59, s31")
    a("s_lshr_b32 s31, s28, 2")
    a("s_lshl_b32 s31, s31, 7")
    a("s_lshl_b32 s57, s29, 10")
    a("s_sub_u32 s58, 0x3c00, s57")
    a("s_add_u32 s57, s57, s31")
    a("s_add_u32 s58, s58, s31")
    a(f"v_mov_b32 v{Z}, 0")
    a(f"v_mov_b32 v{ONE}, 1")
    a("s_lshl_b32 s31, s56, 23")
    a(f"s_add_u32 s31, s31, 0x{CTX_OFF:x}")
    a("s_add_u32 s8, s6, s31")
    a("s_addc_u32 s9, s7, 0")
    a("s_and_b32 s9, s9, 0xffff")
    a("s_mov_b32 s10, 0x800000")
    a("s_lshl_b32 s31, s56, 22")
    a("s_waitcnt lgkmcnt(0)")
    a("s_add_u32 s12, s4, s31")
    a("s_addc_u32 s13, s5, 0")
    a("s_and_b32 s13, s13, 0xffff")
    a("s_mov_b32 s14, 0x400000")


POLL = f"buffer_load_dword v{PV_}, v{PO}, s[16:19], s59 offen sc1"


def e1_ops(a, when, bar, n):
    a.srd_off(16, 6, CTC_OFF, 16384)
    sig = when("s_cmp_eq_u32 s30, 0", one_lane(f"buffer_atomic_add v{ONE}, v{Z}, s[16:19], s57 offen sc1"), 1, after=[bar])
    ops, prev = [sig], [sig]
    k = 0
    for p in range(3):
        m, ld, tr = wdma(p)
        mo = Op(m, "S", 2 + 2.5 * k, after=prev)
        ops.append(mo)
        for t in ld:
            o = Op(t, "V", 3 + 2.5 * k, after=prev, prev_gap=[mo])
            ops.append(o)
            prev = [o]
            k += 1
        o = Op(tr, "S", 3 + 2.5 * k, after=prev)
        ops.append(o)
        prev = [o]
    ops.append(Op(POLL, "V", n - 1, after=prev))
    return ops


def spin(a, bit):
    lp, ok = a.uid("op_spin"), a.uid("op_ok")
    return "\n".join([f"s_mov_b32 s34, {SPIN_MAX}", f"{lp}:", POLL, "s_waitcnt vmcnt(0)", f"v_cmp_le_u32 vcc, 4, v{PV_}",
                      "s_sub_u32 s34, s34, 1", f"s_cbranch_scc1 {ok}", "s_mov_b32 s33, vcc_lo", f"s_bitcmp1_b32 s33, {bit}",
                      f"s_cbranch_scc1 {ok}", "s_sleep 4", f"s_branch {lp}", f"{ok}:"])


def finish(a, when, ffn=None):
    def now(g):
        for t in g[1] + [g[2]]:
            a(t)
    a.label("op_head")
    a(f"s_load_dwordx2 s[28:29], s[0:1], {ARG['x']}")
    a(f"s_load_dwordx2 s[42:43], s[0:1], {ARG['wr']}")
    late, join = a.uid("op_late"), a.uid("op_join")
    a("s_waitcnt vmcnt(8)")
    a(f"v_cmp_le_u32 vcc, 4, v{PV_}")
    zero_acc(a, ACC, 64, 56, "v")
    a("s_mov_b32 s33, vcc_lo")
    a("s_bitcmp1_b32 s33, 0")
    a(f"s_cbranch_scc0 {late}")
    for p in range(3):
        now(xloads(p))
    a("s_waitcnt vmcnt(12)")
    a(f"s_branch {join}")
    a.label(late)
    a("s_waitcnt vmcnt(0)")
    a.label(join)
    a("s_barrier")
    a(when("s_cmp_eq_u32 s30, 0", one_lane(f"buffer_atomic_add v{ONE}, v{Z}, s[16:19], s58 offen sc1"), 0).text)
    a(when("s_bitcmp0_b32 s33, 0", spin(a, 0) + "\n" + "\n".join("\n".join(xloads(p)[1] + [xloads(p)[2]]) for p in range(3)), 0).text)

    def wreads(p):
        out = []
        for ks in range(2):
            for cb in range(8):
                b = FW[p % 2] + (ks * 8 + cb) * 4
                off = (p % 4) * 16384 + ks * 8192
                out.append(f"ds_read_b64_tr_b16 a[{b}:{b+1}], v{WRD+cb} offset:{off}")
                out.append(f"ds_read_b64_tr_b16 a[{b+2}:{b+3}], v{WRD+cb} offset:{off + 4096}")
        return out

    def mf(p):
        out = []
        for ks in range(2):
            for cb in (4, 5, 6, 7, 0, 1, 2, 3):
                for tb in range(2):
                    c = vq(ACC + (cb * 2 + tb) * 4)
                    out.append(mfma16(c, aq(FW[p % 2] + (ks * 8 + cb) * 4), aq(XR + (p % 4) * 16 + 8 * ks + 4 * tb), c))
        return out

    for t in wreads(0):
        a(t)
    a.srd_off(24, 6, H_OFF, 4 << 20)
    a.srd_off(36, 6, XCH_OFF, 8 << 20)
    a.srd_off(48, 6, XFL_OFF, 32768)
    a("s_lshl_b32 s52, s2, 14")
    a("s_add_u32 s52, s52, s60")
    a("s_xor_b32 s53, s52, 0x10000")
    a("s_lshl_b32 s57, s2, 7")
    a("s_xor_b32 s58, s57, 0x200")
    a("v_lshrrev_b32 v56, 4, v1")
    a("s_lshl_b32 s31, s30, 6")
    if not ffn:
        a("s_add_u32 s31, s31, (op_tail2-op_tail)/128-64")
        a("s_cmp_eq_u32 s30, 0")
        a("s_cselect_b32 s31, 0, s31")
    else:
        a("s_and_b32 s31, s31, 64")
    a("v_add_u32 v56, s31, v56")
    a("s_mov_b32 s31, (code_end-op_tail)/128")
    a("v_min_u32 v56, s31, v56")
    code_addr(a, "op_tail", CA, 56, 40)
    if ffn:
        ffn.setup(a)
    a("s_mov_b32 s63, 0")
    a("s_waitcnt vmcnt(8) lgkmcnt(0)")
    a.srd(20, 28, 4 << 20)
    a.srd(44, 42, 2048)
    epi = []
    for tb in range(2):
        for cb in range(4):
            b = XE + (tb * 4 + cb) * 2
            epi.append(f"buffer_load_dwordx2 v[{b}:{b+1}], v{HO+tb}, s[20:23], 0 offen offset:{cb*32}")
    for cb in range(4):
        epi.append(f"buffer_load_dwordx2 v[{WR+2*cb}:{WR+2*cb+1}], v{WO}, s[44:47], 0 offen offset:{cb*32}")
    epi += [f"global_load_dword v{DUM}, v[{CA}:{CA+1}], off", "s_mov_b32 s10, 0", "s_mov_b32 s14, 0"]
    stamp(a, 5)
    loop = a.uid("op_loop")
    a.label(loop)
    for p in range(4):
        rd = spread(wreads(p + 1), "M", 0, 25)
        ops = list(rd)
        prev = []
        if p == 1:
            c1 = Op(f"v_cmp_le_u32 vcc, 4, v{PV_}", "A", 0)
            c2 = Op("s_add_u32 s32, s63, 1\ns_lshr_b32 s32, s32, 1", "S", 0)
            c3 = Op("s_or_b32 s33, vcc_lo, 16", "S", 3, after=[c1], prev_gap=[c1])
            gate = when("s_bitcmp0_b32 s33, s32", spin(a, "s32"), 6, after=[c2, c3])
            ops += [c1, c2, c3, gate]
        k = 0
        for (m, ld, tr) in (wdma(p + 3), xloads(p + 3)):
            mo = None
            if m:
                mo = Op(m, "S", 0)
                ops.append(mo)
            elif p == 1:
                prev = prev + [gate]
            for t in ld:
                o = Op(t, "V", 1 + 3.5 * k, after=prev, prev_gap=[mo] if mo else [])
                ops.append(o)
                prev = [o]
                k += 1
            ops.append(Op(tr, "S", 2 + 3.5 * k, after=prev))
        if p == 0:
            ops.append(when("s_cmp_eq_u32 s63, 7", "\n".join(epi) + ("\n" + ffn.gate_text(a) if ffn else ""), 29, lo=26, after=prev + rd))
        elif ffn:
            if p == 1:
                ops.append(when("s_cmp_eq_u32 s63, 6", ffn.POLL64, 27, after=prev))
            if ffn.early_text(p):
                wq = when("s_cmp_eq_u32 s63, 7", ffn.early_text(p), 29, lo=26, after=prev + rd)
                ops.append(wq)
                prev = prev + [wq]
        if p == 2:
            pl = Op(POLL, "V", 0.5)
            ops.append(pl)
            for o in ops:
                if o.cls == "V" and o is not pl and not [d for d in o.after if d.cls == "V"]:
                    o.after.append(pl)
        if p == 3:
            ops.append(Op("s_add_u32 s63, s63, 1", "S", 30, after=prev))
        ops.append(Op(f"s_waitcnt vmcnt(12) lgkmcnt(0)\ns_barrier", "S", 31, lo=31, hard=31, after=[o for o in ops if o.cls in "MVB"]))
        schedule(a, mf(p), ops)
    a("s_cmp_lt_u32 s63, 8")
    a(f"s_cbranch_scc1 {loop}")
    a.label("op_tail")
    stamp(a, 6)
    a("s_nop 1")
    for q in range(4):
        c = ACC + 32 + 8 * q
        for r in range(4):
            a(f"v_cvt_pk_bf16_f32 v{c+r}, v{c+2*r}, v{c+2*r+1}")
        a(f"buffer_store_dwordx4 {vq(c)}, v1, s[36:39], s52 offen offset:{q*1024} sc1")
    a.srd_off(32, 6, STATS_OFF, 3 * 8192)
    a("s_waitcnt vmcnt(4) lgkmcnt(0)")
    for cb in range(4):
        for tb in range(2):
            c, xb = ACC + (cb * 2 + tb) * 4, XE + (tb * 4 + cb) * 2
            for h in range(2):
                a(f"v_lshlrev_b32 v58, 16, v{xb+h}")
                a(f"v_and_b32 v59, 0xffff0000, v{xb+h}")
                a(f"v_pk_add_f32 v[{c+2*h}:{c+2*h+1}], v[{c+2*h}:{c+2*h+1}], v[58:59]")
    a(f"v_and_b32 v58, 1, v{G}")
    a(f"v_lshrrev_b32 v59, 1, v{G}")
    a("v_lshlrev_b32 v58, 5, v58")
    a("v_lshl_add_u32 v58, v59, 4, v58")
    a(f"v_lshlrev_b32 v59, 3, v{G}")
    a("v_sub_u32 v58, v58, v59")
    a(f"v_add_u32 v{HO}, v{HO}, v58")
    a(f"v_add_u32 v{HO+1}, v{HO+1}, v58")
    for i in range(8):
        a(f"v_lshlrev_b32 v{32+2*i}, 16, v{WR+i}")
        a(f"v_and_b32 v{33+2*i}, 0xffff0000, v{WR+i}")
    nw = a.uid("op_nowr")
    a("s_or_b32 s31, s54, s30")
    a(f"s_cbranch_scc1 {nw}")
    a("v_pk_add_f32 v[56:57], v[32:33], v[34:35]")
    for i in range(4, 16, 2):
        a(f"v_pk_add_f32 v[56:57], v[56:57], v[{32+i}:{33+i}]")
    a("v_add_f32 v56, v56, v57")
    for sw in ("v_permlane16_swap_b32", "v_permlane32_swap_b32"):
        a("v_mov_b32 v57, v56")
        a("s_nop 1")
        a(f"{sw} v56, v57")
        a("s_nop 1")
        a("v_add_f32 v56, v56, v57")
    a(f"s_mov_b32 s31, {WRSUM_OFF - STATS_OFF}")
    a(f"s_mov_b32 s34, {WRSUM_OFF - STATS_OFF + 4}")
    a(one_lane(f"buffer_atomic_add_f32 v56, v{Z}, s[32:35], s31 offen"))
    a(f"s_mov_b32 s34, {3 * 8192}")
    a.label(nw)
    for i in range(12):
        a(f"v_mov_b32 v{SA+i}, 0")
    a("s_waitcnt vmcnt(0)")
    a("s_barrier")
    sk, lp = a.uid("op_nopoll"), a.uid("op_xspin")
    a("s_cmp_lg_u32 s30, 0")
    a(f"s_cbranch_scc1 {sk}")
    a(one_lane(f"buffer_store_dword v{ONE}, v{Z}, s[48:51], s57 offen sc1"))
    a(f"s_mov_b32 s40, {SPIN_MAX}")
    a.label(lp)
    a(f"buffer_load_dword v{DUM}, v{Z}, s[48:51], s58 offen sc1")
    a("s_waitcnt vmcnt(0)")
    a(f"v_readfirstlane_b32 s41, v{DUM}")
    a("s_sub_u32 s40, s40, 1")
    a("s_cselect_b32 s41, 1, s41")
    a("s_cmp_eq_u32 s41, 0")
    a(f"s_cbranch_scc1 {lp}")
    a.label(sk)
    a("s_barrier")
    for q in range(4):
        a(f"buffer_load_dwordx4 {vq(ACC + 32 + 4*q)}, v1, s[36:39], s53 offen offset:{q*1024} sc1")
    P2 = lambda r: f"v[{r}:{r+1}]"
    nst = 0
    for cb in range(4):
        a(f"s_waitcnt vmcnt({3 - cb + nst})")
        for tb in range(2):
            c = ACC + (cb * 2 + tb) * 4
            xb = XE + (tb * 4 + cb) * 2
            S = SA + tb * 6
            for h in range(2):
                src = ACC + 32 + 4 * cb + 2 * tb + h
                a(f"v_lshlrev_b32 v{56+2*h}, 16, v{src}")
                a(f"v_and_b32 v{57+2*h}, 0xffff0000, v{src}")
            for h in range(2):
                a(f"v_pk_add_f32 {P2(c+2*h)}, {P2(c+2*h)}, {P2(56+2*h)}")
            for h in range(2):
                a(f"v_cvt_pk_bf16_f32 v{xb+h}, v{c+2*h}, v{c+2*h+1}")
            for h in range(2):
                a(f"v_lshlrev_b32 v{c+2*h}, 16, v{xb+h}")
                a(f"v_and_b32 v{c+2*h+1}, 0xffff0000, v{xb+h}")
            if cb % 2:
                a(f"v_permlane16_swap_b32 v{xb-2}, v{xb}")
                a(f"v_permlane16_swap_b32 v{xb-1}, v{xb+1}")
                a(f"buffer_store_dwordx4 {vq(xb-2)}, v{HO+tb}, s[24:27], 0 offen offset:{(cb//2)*64} sc1")
                nst += 1
            for h in range(2):
                a(f"v_pk_add_f32 {P2(S)}, {P2(S)}, {P2(c+2*h)}")
                a(f"v_pk_fma_f32 {P2(S+2)}, {P2(c+2*h)}, {P2(c+2*h)}, {P2(S+2)}")
                a(f"v_pk_fma_f32 {P2(S+4)}, {P2(c+2*h)}, {P2(32+cb*4+2*h)}, {P2(S+4)}")
    for tb in range(2):
        for k in range(3):
            a(f"v_add_f32 v{48+tb*4+k}, v{SA+tb*6+2*k}, v{SA+tb*6+2*k+1}")
    regs = [48, 49, 50, 52, 53, 54]
    for sw in ("v_permlane16_swap_b32", "v_permlane32_swap_b32"):
        for i, r in enumerate(regs):
            a(f"v_mov_b32 v{56+i}, v{r}")
        a("s_nop 1")
        for i, r in enumerate(regs):
            a(f"{sw} v{r}, v{56+i}")
        a("s_nop 1")
        for i, r in enumerate(regs):
            a(f"v_add_f32 v{r}, v{r}, v{56+i}")
    a(f"v_cmp_eq_u32 s[40:41], 1, v{G}")
    a(f"v_cmp_eq_u32 s[42:43], 2, v{G}")
    a("s_nop 1")
    for tb in range(2):
        b = 48 + tb * 4
        a(f"v_cndmask_b32 v{b}, v{b}, v{b+1}, s[40:41]")
        a(f"v_cndmask_b32 v{b}, v{b}, v{b+2}, s[42:43]")
        a(f"buffer_atomic_add_f32 v{b}, v{STO}, s[32:35], 0 offen offset:{tb*64}")
    if ffn:
        ffn.tail(a)
        return
    a("s_and_b32 s56, s2, 7")
    a("s_mul_i32 s56, s56, 28")
    a("s_lshr_b32 s31, s2, 3")
    a("s_add_u32 s56, s56, s31")
    a("s_lshl_b32 s56, s56, 15")
    a("s_lshl_b32 s57, s30, 13")
    a("s_add_u32 s56, s56, s57")
    a.srd_off(8, 6, RPK_OFF, 16 << 20)
    a("s_cmp_ge_u32 s2, 224")
    a("s_cselect_b32 s10, 0, s10")
    a("v_lshlrev_b32 v8, 3, v1")
    for m in range(int(os.environ.get("K3NPF", "1"))):
        a("buffer_load_dword v9, v8, s[8:11], s56 offen")
        a("s_add_u32 s56, s56, 0x800000")
```

```python
import sys
sys.path.insert(0, "gen")
import os
import common
common.PROF = bool(int(os.environ.get('PROF', '0')))
common.TRACE = bool(int(os.environ.get('TRACE', '0')))
from common import *
from k3 import gen_k3
from k12 import gen_k12
from k45 import gen_k4, gen_k5

HEADER = open("sequential_preLN__compressed_kv_cla__moe_arch_mod__prompt.s.ref").read().split("; Override launch")[0]

def build(path, which=("k1", "k2", "k3", "k4", "k5")):
    a = Asm()
    if "k12" in which: gen_k12(a)
    if "all" in which:
        import ffn
        gen_k12(a, name=os.environ.get("KNAME", "k12_kernel"), fuse=True, ffn=ffn)
    if "k123" in which:
        gen_k12(a, fuse=True)
        a.label("op_tail2")
    if "k3" in which: gen_k3(a)
    if "k4" in which: gen_k4(a)
    if "k5" in which: gen_k5(a)
    a.label("code_end")
    a("s_endpgm")
    open(path, "w").write(a.text(HEADER))

if __name__ == "__main__":
    build(sys.argv[1] if len(sys.argv) > 1 else "t.s", os.environ.get("WHICH", "all").split(","))
```

```python
from common import *
import common, os
from sched import Op, spread, schedule
import k2
from k2 import vq, aq, V_LANE16, V_VV, V_NINF, attention_phase, LDF

SPIN_MAX = 1 << 20
KO = set(os.environ.get('KO', '').split(','))
NT = ' nt' if 'nt' in KO else ''
ENV = lambda k, d: int(os.environ.get(k, str(d)))

ZERO, ONE = 8, 9
XD, WD, XRD, WRD = 10, 18, 26, 28
QX, QWD, QWR = 36, 38, 42
VPF, VDUM, VPOLL, VXST, VLW, VLR = 50, 51, 52, 53, 54, 55
PT = 56
PK = 64
WRING = 98304


def spin_text(a, soff, target, VPOLL=VPOLL, ZERO=ZERO):
    ok, lp = a.uid("spin_ok"), a.uid("spin")
    return "\n".join([
        f"v_readfirstlane_b32 s31, v{VPOLL}", f"s_cmp_ge_u32 s31, {target}", f"s_cbranch_scc1 {ok}",
        f"s_mov_b32 s40, {SPIN_MAX}", f"{lp}:", "s_sleep 8",
        f"buffer_load_dword v{VPOLL}, v{ZERO}, s[24:27], {soff} offen sc1", "s_waitcnt vmcnt(0)",
        f"v_readfirstlane_b32 s31, v{VPOLL}", "s_sub_u32 s40, s40, 1", "s_cselect_b32 s31, -1, s31",
        f"s_cmp_lt_u32 s31, {target}", f"s_cbranch_scc1 {lp}", f"{ok}:"])


def one_lane(text):
    return f"s_mov_b64 exec, 1\n{text}\ns_mov_b64 exec, -1"


def gen_k12(a, name="k12_kernel", fuse=False, ffn=None):
    a.begin_kernel(name)
    end = a.uid("k12_end")
    stubs = []
    pst = (lambda i: stamp(a, i)) if "ptrace" in KO else (lambda i: None)

    def when(cmp_text, body, want, **kw):
        l, r = a.uid("k12_ool"), a.uid("k12_oolret")
        if "nosig" in KO and "s[24:27]" in body:
            body = "s_nop 0"
        stubs.append((l, body, r))
        return Op(f"{cmp_text}\ns_cbranch_scc1 {l}\n{r}:", "B", want, **kw)

    a("s_cmp_ge_u32 s2, 256")
    a(f"s_cbranch_scc1 {end}")
    stamp(a, 0)
    a(f"s_load_dwordx4 s[36:39], s[0:1], {ARG['x']}")
    a(f"s_load_dwordx4 s[40:43], s[0:1], {ARG['wuk']}")
    a(f"s_load_dwordx2 s[4:5], s[0:1], {ARG['wq']}")
    a(f"s_load_dwordx4 s[60:63], s[0:1], {ARG['dbg']}")
    CE = ENV("CE", 48)
    a("s_lshr_b32 s59, s2, 3")
    a("s_lshl_b32 s58, s59, 4")
    a("v_add_u32 v6, s58, v0")
    a(f"v_cmp_gt_u32 vcc, {CE}, v0")
    a(f"v_cmp_gt_u32 s[56:57], {CE + 16}, v0")
    a("s_nop 0")
    a("v_cndmask_b32 v6, v6, v0, vcc")
    code_addr(a, "k12_code0", 58, 6, 52)
    a.label("k12_code0")
    a("s_mov_b64 exec, s[56:57]")
    cs = a.uid("k12_nocode")
    a(f"s_cbranch_execz {cs}")
    a(f"global_load_dword v{VDUM}, v[58:59], off")
    a.label(cs)
    a("s_mov_b64 exec, -1")
    a("s_and_b32 s58, s2, 7")
    a("s_lshr_b32 s59, s2, 3")
    a("s_and_b32 s45, s59, 7")
    a("s_lshr_b32 s57, s59, 3")
    a("s_and_b32 s44, s57, 1")
    a("s_lshl_b32 s52, s58, 1")
    a("s_add_u32 s44, s44, s52")
    a("s_lshr_b32 s57, s57, 1")
    W, LN_ = 2, 3
    a(f"v_lshrrev_b32 v{W}, 6, v0")
    a(f"v_and_b32 v{LN_}, 63, v0")
    a(f"v_readfirstlane_b32 s30, v{W}")
    a(f"v_lshlrev_b32 v{V_LANE16}, 4, v{LN_}")
    VX, VT = 64, 80
    TOK, L32 = 60, 61
    a(f"v_lshrrev_b32 v{TOK}, 5, v{LN_}")
    a(f"v_lshl_add_u32 v{TOK}, v{W}, 1, v{TOK}")
    a(f"v_and_b32 v{L32}, 31, v{LN_}")
    a(f"v_lshlrev_b32 v6, 11, v{TOK}")
    a(f"v_lshl_add_u32 v62, v{L32}, 4, v6")
    a("s_lshl_b32 s52, s2, 14")
    a(f"v_lshrrev_b32 v56, 3, v{LN_}")
    a(f"v_and_b32 v57, 7, v{LN_}")
    a("v_lshrrev_b32 v58, 1, v56")
    a("v_xor_b32 v6, v57, v58")
    a("v_xor_b32 v7, 4, v6")
    a(f"v_lshl_add_u32 v58, v{W}, 6, v56")
    a("v_lshlrev_b32 v58, 10, v58")
    a("s_lshl_b32 s47, s45, 18")
    a("v_add_u32 v58, s47, v58")
    a(f"v_lshl_add_u32 v{XD}, v6, 4, v58")
    a(f"v_lshl_add_u32 v{XD+1}, v7, 4, v58")
    for i in range(7, -1, -1):
        a(f"v_add_u32 v{XD+i}, {i*8*1024 - (i%4)*1024}, v{XD + (i%2)}")
    a(f"v_lshrrev_b32 v6, 5, v{LN_}")
    a(f"v_bfe_u32 v7, v{LN_}, 1, 4")
    a(f"v_and_b32 v59, 1, v{LN_}")
    a(f"v_lshl_add_u32 v58, v{W}, 4, v6")
    a("v_lshlrev_b32 v58, 13, v58")
    a("v_lshl_add_u32 v58, v59, 4, v58")
    a("s_lshl_b32 s47, s44, 9")
    a("v_add_u32 v58, s47, v58")
    a("v_xor_b32 v7, v7, v6")
    for i in range(8):
        fx = ((2 * i) & 3) | ((((2 * i) >> 3) & 1) << 2)
        a(f"v_xor_b32 v6, {fx}, v7")
        a(f"v_lshl_add_u32 v6, v6, 5, v58")
        a(f"v_add_u32 v{WD+i}, {2*i*8192 - (i%4)*1024}, v6")
    XB, WB = 0, 65536
    a("s_lshl_b32 s48, s30, 13")
    a("s_mov_b32 s49, 0")
    a("s_mov_b32 s50, 0")
    pst(1)
    a("s_waitcnt lgkmcnt(0)")
    a.srd(24, 36, 4 << 20)
    for i in range(4):
        a(f"buffer_load_dwordx4 v[{VX+4*i}:{VX+4*i+3}], v62, s[24:27], s52 offen offset:{i*512}{NT}")
    a.srd(16, 38, 2 << 20)
    a("s_cmp_eq_u32 s57, 0")
    a("s_cselect_b32 s20, s40, s42")
    a("s_cselect_b32 s21, s41, s43")
    a("s_and_b32 s21, s21, 0xffff")
    a("s_mov_b32 s22, 0x400000")
    a("s_mov_b32 s23, 0x00020000")

    def dma_grp(stage, g):
        op, i0 = g // 2, (g % 2) * 4
        m = f"s_add_u32 m0, s48, {(XB if op == 0 else WB) + stage*32768 + i0*1024}"
        if op == 0:
            ld = [f"buffer_load_dwordx4 v{XD+i0+i}, s[16:19], s49 offen offset:{i*1024} lds" for i in range(4)]
        else:
            ld = [f"buffer_load_dwordx4 v{WD+i0+i}, s[20:23], s50 offen offset:{i*1024}{NT} lds" for i in range(4)]
        tr = {1: "s_add_u32 s49, s49, 128", 3: "s_add_u32 s50, s50, 0x80000"}.get(g)
        return m, ld, tr

    def emit_grp(m, ld, tr):
        a(m)
        a("s_nop 0")
        for t in ld:
            a(t)
        if tr:
            a(tr)

    def grp_sched(grps, lo, hi, after=()):
        ops, prev = [], list(after)
        tot = sum(len(g[1]) for g in grps)
        step = (hi - lo) / float(tot)
        k = 0
        for (m, ld, tr) in grps:
            mo = None
            if m:
                mo = Op(m, "S", lo + step * k - 1, lo=lo, after=prev)
                ops.append(mo)
            for t in ld:
                o = Op(t, "V", lo + 1 + step * k, lo=lo, after=prev, prev_gap=[mo] if mo else [])
                ops.append(o)
                prev = [o]
                k += 1
            if tr:
                for t in tr.split("\n"):
                    o = Op(t, "S", lo + step * k, after=prev)
                    ops.append(o)
                    prev = [o]
        return ops, prev

    PG = ENV("PG", 2)
    order0 = [0, 2, 1, 3]
    for g in order0[:PG]:
        emit_grp(*dma_grp(0, g))
    pst(2)
    a("s_mov_b64 s[6:7], s[62:63]")
    a.srd_off(8, 6, XN_OFF, 4 << 20)
    a.srd(12, 4, 8 << 20)
    a.srd_off(32, 6, KF_OFF, 32 << 20)
    a.srd(24, 60, 256)
    a("s_lshl_b32 s28, s58, 2")
    a("s_and_b32 s31, s59, 3")
    a("s_add_u32 s28, s28, s31")
    a("s_lshr_b32 s29, s59, 2")
    a("s_lshl_b32 s42, s29, 7")
    a("s_sub_u32 s43, 1920, s42")
    a("s_lshl_b32 s31, s30, 4")
    a("s_add_u32 s38, s42, s31")
    a("s_add_u32 s39, s43, s31")
    a("s_lshl_b32 s60, s30, 12")
    a("s_mov_b32 s61, 0")
    a("s_mov_b32 s62, 0")
    a("s_lshl_b32 s47, s44, 1")
    a("s_lshr_b32 s52, s30, 1")
    a("s_add_u32 s47, s47, s52")
    a("s_lshl_b32 s47, s47, 14")
    a("s_lshl_b32 s52, s45, 1")
    a("s_and_b32 s53, s30, 1")
    a("s_add_u32 s52, s52, s53")
    a("s_lshl_b32 s52, s52, 20")
    a("s_add_u32 s47, s47, s52")
    a("s_lshl_b32 s52, s57, 24")
    a("s_add_u32 s47, s47, s52")
    assert VF_OFF - KF_OFF == 1 << 24
    a("s_lshl_b32 s54, s44, 8")
    a("s_lshr_b32 s55, s28, 1")
    a("s_lshl_b32 s55, s55, 8")
    a("s_and_b32 s53, s59, 3")
    a("s_add_u32 s53, s53, 1")
    a("s_cmp_eq_u32 s30, 0")
    a("s_cselect_b32 s53, s53, -1")
    a("s_cselect_b32 s46, 6, -1")
    a("v_lshlrev_b32 v6, 13, v56")
    a(f"v_lshl_add_u32 v{VPF}, v57, 7, v6")
    a("s_lshl_b32 s56, s30, 5")
    a("s_add_u32 s56, s56, s59")
    a("s_lshl_b32 s56, s56, 16")
    a("s_lshl_b32 s52, s58, 10")
    a("s_add_u32 s56, s56, s52")
    a("s_lshl_b32 s63, s30, 1")
    pf = f"buffer_load_dword v{VDUM}, v{VPF}, s[12:15], s56 offen" if "nowq" not in KO else "s_nop 0"
    for g in order0[PG:2]:
        emit_grp(*dma_grp(0, g))
    XL = 131072
    a(f"v_mul_u32_u24 v6, 2064, v{TOK}")
    a(f"v_lshl_add_u32 v6, v{L32}, 4, v6")
    a(f"v_add_u32 v{VLW}, {XL}, v6")
    a("v_mul_u32_u24 v7, 2064, v57")
    a("v_lshl_add_u32 v7, v56, 4, v7")
    a(f"v_lshl_add_u32 v7, v{W}, 9, v7")
    a(f"v_add_u32 v{VLR}, {XL}, v7")
    a("v_lshrrev_b32 v7, 2, v56")
    a(f"v_lshl_add_u32 v7, v{W}, 3, v7")
    a("v_lshlrev_b32 v7, 17, v7")
    a("v_and_b32 v6, 3, v56")
    a("v_lshl_add_u32 v7, v6, 8, v7")
    a("v_lshl_add_u32 v7, v57, 4, v7")
    a("s_lshr_b32 s52, s2, 1")
    a("s_lshl_b32 s52, s52, 10")
    a("s_and_b32 s31, s2, 1")
    a("s_lshl_b32 s31, s31, 7")
    a("s_add_u32 s52, s52, s31")
    a(f"v_add_u32 v{VXST}, s52, v7")
    a(f"v_and_b32 v56, 15, v{LN_}")
    a(f"v_lshrrev_b32 v57, 4, v{LN_}")
    a("v_lshrrev_b32 v6, 1, v56")
    a("v_xor_b32 v6, v6, v57")
    a(f"v_and_b32 v7, 1, v{W}")
    a("v_lshl_add_u32 v7, v7, 7, v56")
    a("v_lshlrev_b32 v7, 7, v7")
    a(f"v_lshl_add_u32 v{XRD}, v6, 4, v7")
    a(f"v_xor_b32 v{XRD+1}, 64, v{XRD}")
    a("v_lshrrev_b32 v6, 2, v56")
    a("v_and_b32 v58, 1, v57")
    a("v_lshl_add_u32 v58, v58, 2, v6")
    a("v_lshl_add_u32 v59, v57, 3, v6")
    a(f"v_and_b32 v63, 3, v{LN_}")
    a("v_lshlrev_b32 v7, 9, v59")
    a(f"v_lshrrev_b32 v6, 1, v{W}")
    a("v_lshl_add_u32 v7, v6, 8, v7")
    a("v_lshl_add_u32 v7, v63, 3, v7")
    a(f"v_add_u32 v7, {WB}, v7")
    a("v_lshlrev_b32 v59, 8, v59")
    a("v_lshl_add_u32 v59, v63, 3, v59")
    a(f"v_add_u32 v59, {WRING}, v59")
    for j in range(8):
        a(f"v_xor_b32 v6, {j}, v58")
        a(f"v_lshl_add_u32 v{WRD+j}, v6, 5, v7")
        a(f"v_lshl_add_u32 v{QWR+j}, v6, 5, v59")
    a("s_lshl_b32 s31, s38, 6")
    a(f"v_add_u32 v{QX}, s31, v{V_LANE16}")
    a("s_lshl_b32 s31, s39, 6")
    a(f"v_add_u32 v{QX+1}, s31, v{V_LANE16}")
    a(f"v_bfe_u32 v6, v{LN_}, 1, 3")
    a(f"v_and_b32 v7, 1, v{LN_}")
    a(f"v_lshl_add_u32 v58, v{W}, 4, v57")
    a("v_lshlrev_b32 v58, 13, v58")
    a("v_lshl_add_u32 v58, v7, 4, v58")
    a("s_lshl_b32 s31, s28, 8")
    a("v_add_u32 v58, s31, v58")
    a("v_xor_b32 v6, v6, v57")
    for i in range(4):
        a(f"v_xor_b32 v7, {(i // 2) << 2}, v6")
        a(f"v_lshl_add_u32 v7, v7, 5, v58")
        a(f"v_add_u32 v{QWD+i}, {4*i*8192 - i*1024}, v7")
    a("v_lshlrev_b32 v6, 2, v57")
    a(f"v_sub_u32 v{V_VV}, v56, v6")
    a(f"v_mov_b32 v{V_NINF}, 0xff800000")
    a(f"v_mov_b32 v{ZERO}, 0")
    a(f"v_mov_b32 v{ONE}, 1")
    a("s_lshl_b32 s52, s59, 2")
    a("s_add_u32 s52, s52, s30")
    a(f"v_and_b32 v6, 1, v{LN_}")
    a("v_lshl_add_u32 v6, s52, 1, v6")
    code_addr(a, "k12_qcode", 2, 6, 40)
    cpf = f"global_load_dword v{VDUM}, v[2:3], off" if "nocpf" not in KO else "s_nop 0"
    zero_acc(a, 128, 64, 56)
    zero_acc(a, 128, 128, 56, "v", init=False)
    for g in order0[max(PG, 2):]:
        emit_grp(*dma_grp(0, g))
    pst(3)
    a("s_waitcnt vmcnt(16)")
    pst(4)
    t_ = Asm()
    ln_rows_half_wave(t_, VX, VT)
    nl_ = len(t_.lines)
    for i, ln in enumerate(t_.lines):
        a.lines.append(ln)
        for g in range(4):
            if i == nl_ * (g + 1) // 5:
                emit_grp(*dma_grp(1, order0[g]))
    pst(5)
    for i in range(4):
        a(f"ds_write_b128 v{VLW}, v[{VX+4*i}:{VX+4*i+3}] offset:{i*512}")
    pst(6)
    a("s_waitcnt vmcnt(16) lgkmcnt(0)")
    a("s_barrier")
    if "ptrace" in KO:
        stamp_dump(a, 0, 7, 6)
        a("s_endpgm")
    XT = 192
    for i in range(4):
        a(f"ds_read_b128 {aq(XT+4*i)}, v{VLR} offset:{i*128}")
    a(f"v_add_u32 v{VLW}, 4096, v{QX}")
    a(f"v_add_u32 v{VLR}, 4096, v{QX+1}")
    zero_acc(a, 64, 64, 56, "v", init=False)

    FX = [0, 64]
    FW = [32, 96]

    def reads(stage, sp, buf):
        out = []
        for i in range(8):
            out.append(f"ds_read_b128 {aq(FX[buf]+4*i)}, v{XRD+sp} offset:{XB + stage*32768 + i*2048}")
            out.append(f"ds_read_b64_tr_b16 a[{FW[buf]+4*i}:{FW[buf]+4*i+1}], v{WRD+i} offset:{stage*32768 + sp*16384}")
            out.append(f"ds_read_b64_tr_b16 a[{FW[buf]+4*i+2}:{FW[buf]+4*i+3}], v{WRD+i} offset:{stage*32768 + sp*16384 + 2048}")
        return out

    def pair_n(c, j, isv):
        return (c * 8 + j) if isv else (j * 4 + c)

    def acc(i, j, isv):
        n = pair_n(i // 2, j, isv)
        if n < 24:
            return ("v", (64 if i % 2 == 0 else 160) + 4 * n)
        return ("a", 128 + 8 * (n - 24) + 4 * (i % 2))

    def mf1(i, j, buf, isv):
        FA, FB = (FX, FW) if isv else (FW, FX)
        k, c = acc(i, j, isv)
        r = f"{k}[{c}:{c+3}]"
        return mfma16(r, aq(FA[buf] + 4 * i), aq(FB[buf] + 4 * j), r)

    def mfmas(buf, isv):
        return [mf1(i, j, buf, isv) for i in range(8) for j in range(8)]

    skip = a.uid("k12_nostat")
    a(f"s_cmp_ge_u32 s2, {ZERO_BYTES // 4096}")
    a(f"s_cbranch_scc1 {skip}")
    a("s_lshl_b32 s52, s2, 12")
    a(f"s_add_u32 s52, s52, 0x{STATS_OFF - KF_OFF:x}")
    a("s_mov_b32 s34, -1")
    a("v_lshlrev_b32 v6, 4, v0")
    a("buffer_store_dwordx4 v[56:59], v6, s[32:35], s52 offen sc1")
    a(f"s_mov_b32 s34, 0x{32 << 20:x}")
    a.label(skip)
    if "tlb" in KO:
        sk = a.uid("k12_notlb")
        TS = ENV("TS", 21)
        a(f"s_cmp_ge_u32 s59, {1 << (21 - TS)}")
        a(f"s_cbranch_scc1 {sk}")
        a(f"s_load_dwordx2 s[36:37], s[0:1], {ARG['wo']}")
        a(f"s_load_dwordx4 s[64:67], s[0:1], {ARG['wg']}")
        a(f"s_load_dwordx4 s[68:71], s[0:1], {ARG['wd']}")
        a(f"v_lshlrev_b32 v6, 17, v{V_LANE16}")
        a(f"s_lshl_b32 s52, s59, {TS}")
        a("s_mov_b32 s10, 0x7000000")
        a(f"buffer_load_dword v{VDUM}, v6, s[8:11], s52 offen")
        a("s_mov_b32 s10, 0x400000")
        a("s_waitcnt lgkmcnt(0)")
        for pr, sz in ((36, 8 << 20), (64, 7340032), (66, 7340032), (68, 7340032), (70, 4 << 20)):
            a.srd(72, pr, sz)
            a(f"buffer_load_dword v{VDUM}, v6, s[72:75], s52 offen")
        a.label(sk)
    stamp(a, 1)
    tr_init(a)
    for t in reads(0, 0, 0):
        a(t)
    a("s_mov_b32 s51, 0")
    a("s_waitcnt lgkmcnt(15)")
    for i in range(4):
        a(f"s_mov_b32 s52, {i*2*131072}")
        a(f"buffer_store_dwordx4 {aq(XT+4*i)}, v{VXST}, s[8:11], s52 offen sc1")
    a("s_waitcnt lgkmcnt(0)")
    lv, joined = a.uid("k12_v"), a.uid("k12_join")
    a("s_cmp_lg_u32 s57, 0")
    a(f"s_cbranch_scc1 {lv}")

    DX, DW = ENV("QDX", 3), ENV("QDW", 2)
    XS = lambda ks: 128 + ((ks + 4) % 8) * 16
    QF = [0, 32]

    def wdma(stage):
        return (f"s_add_u32 m0, s60, {WRING + (stage % 4)*16384}",
                [f"buffer_load_dwordx4 v{QWD+i}, s[12:15], s61 offen offset:{i*1024} lds" for i in range(4)], "s_add_u32 s61, s61, 0x80000")

    def xloads(ks):
        return (None, [f"buffer_load_dwordx4 {aq(XS(ks) + 4*qb)}, v{(QX, VLW, QX+1, VLR)[qb]}, s[8:11], s62 offen sc1" for qb in range(4)],
                "s_add_u32 s62, s62, 0x20000")

    def kvstore(n, srd):
        return (f"s_add_u32 s52, s47, {(n // 16) * 0x80000 + (((n % 16) * 1024) & ~4095)}",
                [f"buffer_store_dwordx4 v[{PK+n*4}:{PK+3+n*4}], v{V_LANE16}, {srd}, s52 offen offset:{(n*1024) & 4095} sc1"], None)

    def wreads(stage, sp, buf):
        out = []
        for j in range(8):
            b = QF[buf] + 4 * j
            out.append(f"ds_read_b64_tr_b16 a[{b}:{b+1}], v{QWR+j} offset:{(stage % 4)*16384 + sp*8192}")
            out.append(f"ds_read_b64_tr_b16 a[{b+2}:{b+3}], v{QWR+j} offset:{(stage % 4)*16384 + sp*8192 + 1024}")
        return out

    def qacc(db, qb):
        return ("v", 192 + (db * 2 + qb) * 4) if qb < 2 else ("a", 64 + (db * 2 + qb - 2) * 4)

    for isv in range(2):
        if isv:
            a.label(lv)
        loop, last = a.uid("k12_loop"), a.uid("k12_last")
        a.label(loop)
        for st in range(2):
            ops = spread(reads(st, 1, 1), "M", 0, 50)
            ops.append(when("s_cmp_eq_u32 s51, s46", f"buffer_load_dword v{VPOLL}, v{ZERO}, s[24:27], 0 offen sc1", 4) if st == 0 else
                       when("s_sub_u32 s52, s51, 1\ns_cmp_eq_u32 s52, s46", spin_text(a, 0, 256), 56, lo=50))
            ops.append(Op(tr_wrap("s_waitcnt vmcnt(0) lgkmcnt(0)\ns_barrier"), "S", 63, lo=63, hard=63, after=list(ops)))
            schedule(a, mfmas(0, isv), ops)
            if st == 1:
                a("s_cmp_eq_u32 s51, 7")
                a(f"s_cbranch_scc1 {last}")
            rd = spread(reads(1 - st, 0, 0), "M", 0, 50)
            pre = []
            if st == 0:
                pre = [Op("s_cmp_ge_u32 s49, 1024\ns_cselect_b32 s18, 0, s18\ns_cselect_b32 s22, 0, s22", "S", 0, hard=0)]
            dm, dl = grp_sched([dma_grp(st, g) for g in range(4)], 1, ENV("GD1", 56), after=pre)
            sig = when("s_cmp_eq_u32 s51, s53", one_lane(f"buffer_atomic_add v{ONE}, v{ZERO}, s[24:27], 0 offen sc1"), 58, after=dl)
            ops = rd + pre + dm + [sig]
            cnt_after = [sig]
            if st == 0:
                p_ = when("s_cmp_eq_u32 s51, s63", pf, 60, after=dl)
                ops.append(p_)
                cnt_after.append(p_)
            else:
                p_ = when("s_cmp_eq_u32 s51, 5", cpf, 60, after=dl)
                ops.append(p_)
                cnt_after.append(p_)
            ops.append(Op("s_add_u32 s51, s51, 1", "S", 62, after=cnt_after))
            ops.append(Op("s_waitcnt lgkmcnt(0)", "S", 63, lo=63, hard=63, after=rd))
            schedule(a, mfmas(1, isv), ops)
        a(f"s_branch {loop}")
        a.label(last)
        stamp(a, 2)
        pairs = {pair_n(c, j, isv): (c, j) for c in range(4) for j in range(8)}
        seq = list(range(8))
        for k in range(8):
            seq += [24 + k, 8 + 2 * k, 9 + 2 * k]
        mf, ops = [], []
        done = {}
        tuse = []
        for pos, n in enumerate(seq):
            c, j = pairs[n]
            mf += [mf1(2 * c, j, 1, isv), mf1(2 * c + 1, j, 1, isv)]
            g0 = 2 * pos + 1 + 4
            d = PK + 4 * n
            if n < 24:
                x, y = 64 + 4 * n, 160 + 4 * n
                tx = [f"v_cvt_pk_bf16_f32 v{d}, v{x}, v{x+1}", f"v_cvt_pk_bf16_f32 v{d+1}, v{x+2}, v{x+3}",
                      f"v_cvt_pk_bf16_f32 v{d+2}, v{y}, v{y+1}", f"v_cvt_pk_bf16_f32 v{d+3}, v{y+2}, v{y+3}"]
                o = spread(tx, "A", g0, g0 + 2)
            else:
                x = 128 + 8 * (n - 24)
                tx = [f"v_accvgpr_read_b32 v{PT+r}, a{x+r}" for r in range(8)]
                tx += [f"v_cvt_pk_bf16_f32 v{d+r}, v{PT+2*r}, v{PT+2*r+1}" for r in range(4)]
                o = spread(tx, "A", g0, g0 + 5)
                o[0].after += tuse + [done[n - 24]]
                tuse = [o[-1]]
            done[n] = o[-1]
            ops += o
        ld, ll = grp_sched([wdma(0), xloads(0), xloads(1), wdma(1), xloads(2)], 0, 40)
        ops += ld
        bar = Op("s_waitcnt vmcnt(16)\ns_barrier", "S", 44, lo=44, after=ll)
        rd = spread(wreads(0, 0, 0), "M", 45, 60)
        rd[0].after.append(bar)
        ops += [bar] + rd
        schedule(a, mf, ops)
        if not isv:
            a(f"s_branch {joined}")
    a.label(joined)
    a.label("k12_qcode")
    a("s_mov_b64 s[48:49], s[32:33]")
    a("s_mov_b32 s51, 0x00020000")
    a("s_cmp_eq_u32 s45, 0")
    a("s_mov_b32 s50, s34")
    a("s_cselect_b32 s56, s30, -1")
    a("s_cselect_b32 s57, -1, s30")
    a(tr_wrap("s_waitcnt vmcnt(12) lgkmcnt(0)"))

    NS = ENV("NS", 20)
    PSIG = ENV('PSIG', NS + 3)
    PPOLL = ENV("PPOLL", 27)
    assert PSIG % 2 == 1 and PPOLL % 2 == 1 and PSIG < PPOLL
    queue = ["W0"] * 4 + ["X0"] * 4 + ["X1"] * 4 + ["W1"] * 4 + ["X2"] * 4

    def younger(tag):
        if tag not in queue:
            return 63
        return len(queue) - 1 - max(i for i, t in enumerate(queue) if t == tag)

    kvsrd = ["s_lshl_b32 s31, s28, 14", "s_add_u32 s16, s6, s31\ns_addc_u32 s17, s7, 0",
             f"s_add_u32 s20, s16, 0x{VF_OFF:x}\ns_addc_u32 s21, s17, 0", f"s_add_u32 s16, s16, 0x{KF_OFF:x}\ns_addc_u32 s17, s17, 0",
             "s_and_b32 s17, s17, 0xffff", "s_and_b32 s21, s21, 0xffff", "s_lshl_b32 s31, s29, 20", "s_sub_u32 s18, 0xf84000, s31",
             "s_mov_b32 s22, s18",
             f"s_add_u32 s24, s6, 0x{KVC_OFF:x}\ns_addc_u32 s25, s7, 0", "s_and_b32 s25, s25, 0xffff", "s_mov_b32 s26, 4096"]

    def kdma():
        return ("s_mov_b32 m0, s34", [f"buffer_load_dwordx4 v{V_LANE16}, s[16:19], s32 offen offset:{i*1024}{LDF} lds" for i in range(4)],
                "s_add_u32 s32, s32, 0x80000\ns_add_u32 s34, s34, 0x4000")

    def vdma():
        return ("s_mov_b32 m0, s35", [f"buffer_load_dwordx4 v{V_LANE16}, s[20:23], s33 offen offset:{i*1024}{LDF} lds" for i in range(4)],
                "s_add_u32 s33, s33, 0x80000\ns_add_u32 s35, s35, 0x4000")

    NL = ENV('NL', 29)
    NE0 = (NS * 32 + NL - 1) // NL
    sn, sl_, nx, nw = NE0, 0, 3, 2
    assert NL <= PPOLL + 2
    S0 = ENV("S0", 0)
    for ks in range(32):
        st, sp = ks // 2, ks % 2
        ops = []
        rd = []
        if ks < 31:
            rd = spread(wreads(st, 1, 1) if sp == 0 else wreads(st + 1, 0, 0), "M", 0, 22)
        ops += rd
        grps, tags = [], []
        while nw < 16 and ((sp == 1 and nw <= st + DW) or (ks == 0 and nw < DW)):
            grps.append(wdma(nw)); tags.append(f"W{nw}"); nw += 1
        for _ in range(2):
            if nx < 32 and nx <= ks + DX:
                grps.append(xloads(nx)); tags.append(f"X{nx}"); nx += 1
        while sl_ < 32 and sl_ < ((ks + 1) * 32 + NL - 1) // NL:
            grps.append(kvstore(sl_, "s[48:51]")); tags.append("L"); sl_ += 1
        early = []
        while ks < NS and sn < 32 and sn < NE0 + ((ks + 1) * (32 - NE0) + NS - 1) // NS:
            m_, l_, _ = kvstore(sn, "s[48:51]")
            early += [m_, l_[0]]
            sn += 1
        head = []
        if ks == 0:
            ops += spread(kvsrd, "S", 6, 30)
        if ks == PSIG:
            head = [when("s_cmp_eq_u32 s56, 0", one_lane(f"buffer_atomic_add v{ONE}, v{ZERO}, s[24:27], s54 offen sc1"), 0)]
            ops += spread(k2.kv_first(), "S", 8, 20)
        if ks == 24:
            ops.append(Op("v_add_co_u32 v2, vcc, 0x4000, v2\ns_nop 1\nv_addc_co_u32 v3, vcc, 0, v3, vcc\n" + cpf, "B", 29))
        if ks == PPOLL:
            head = [when("s_cmp_eq_u32 s30, 0", f"buffer_load_dword v{VPOLL}, v{ZERO}, s[24:27], s55 offen sc1", 0)]
            qpoll = len(queue)
        if ks == PPOLL + 2:
            grps += [kdma(), kdma()]; tags += ["K0", "K1"]
        if ks == PPOLL + 3:
            grps += [vdma(), kdma()]; tags += ["V0", "K2"]
        if ks == PPOLL + 4:
            grps += [vdma()]; tags += ["V1"]
        ops += head
        if grps:
            g, gl_ = grp_sched(grps, 1, 27, after=head)
            ops += g
        if ks == NS - 1:
            early.append("s_mov_b32 s50, 0")
        if early:
            ops.append(when("s_cmp_eq_u32 s45, 0", "\n".join(early), 29, after=gl_))
        for gr, tg in zip(grps, tags):
            queue += [tg] * len(gr[1])
        if ks == NS - 1:
            assert sn == 32 and sl_ == NE0
            qearly = len(queue)
        if ks < 31:
            nk = ks + 1
            wv = younger(f"X{nk}")
            if nk % 2:
                wv = min(wv, younger(f"W{nk // 2 + 1}"))
            if nk == PSIG:
                wv = min(wv, len(queue) - qearly)
            wv = min(wv, 63)
            prevw = wv
            wtxt = f"s_waitcnt vmcnt({wv}) lgkmcnt(0)"
            if ks == PPOLL + 1:
                ops.append(when("s_cmp_eq_u32 s30, 0", f"s_waitcnt vmcnt({len(queue) - qpoll})\n" + spin_text(a, "s55", 2), 29, lo=28, after=[o for o in ops if o.cls == "V"]))
            if nk % 2:
                wtxt = tr_wrap(wtxt + "\ns_barrier") if nk % 4 == 1 else wtxt + "\ns_barrier"
            ops.append(Op(wtxt, "S", 31, lo=31, hard=31, after=[o for o in ops if o.cls in "MVB"]))
        mf = []
        for db in range(8):
            for qb in range(4):
                k, c = qacc(db, qb)
                r = f"{k}[{c}:{c+3}]"
                mf.append(mfma16(r, aq(QF[sp] + 4 * db), aq(XS(ks) + 4 * qb), "0" if ks == 0 else r))
        schedule(a, mf, ops)
    assert PPOLL + 4 <= 31
    stamp(a, 3)
    assert younger("L") >= 8
    a("s_add_u32 s3, s54, 64")
    a("s_add_u32 s5, s55, 64")
    a("s_mov_b32 s63, s57")
    late = dict(
        sig=when("s_cmp_eq_u32 s63, 0", one_lane(f"buffer_atomic_add v{ONE}, v{ZERO}, s[24:27], s3 offen sc1"), 0).text,
        poll=lambda: when("s_cmp_eq_u32 s30, 0", "buffer_load_dword v58, v59, s[24:27], s5 offen sc1", 2),
        gate=lambda **kw: when("s_cmp_eq_u32 s30, 0", "s_waitcnt vmcnt(0)\n" + spin_text(a, "s5", 14, 58, 59), 29, **kw))
    attention_phase(a, end, 0, qacc, late, stubs=stubs, next_code='op_head' if fuse else (None if os.environ.get('WHICH') == 'k12' else 'k3_kernel'), when=when if fuse else None, ffn=ffn)
    a.end_kernel(name, 256, 256)
    a.launch(name, 256, 256, 163840)
```

```python
import sys
sys.path.insert(0, "gen")
import os
import common
common.PROF = bool(int(os.environ.get('PROF', '0')))
common.TRACE = bool(int(os.environ.get('TRACE', '0')))
from common import *
from k3 import gen_k3
from k12 import gen_k12
from k45 import gen_k4, gen_k5

HEADER = open("sequential_preLN__compressed_kv_cla__moe_arch_mod__prompt.s.ref").read().split("; Override launch")[0]

def build(path, which=("k1", "k2", "k3", "k4", "k5")):
    a = Asm()
    if "k12" in which: gen_k12(a)
    if "all" in which:
        import ffn
        gen_k12(a, name=os.environ.get("KNAME", "k12_kernel"), fuse=True, ffn=ffn)
    if "k123" in which:
        gen_k12(a, fuse=True)
        a.label("op_tail2")
    if "k3" in which: gen_k3(a)
    if "k4" in which: gen_k4(a)
    if "k5" in which: gen_k5(a)
    a.label("code_end")
    a("s_endpgm")
    t = a.text(HEADER)
    if len(a.launches) == 1 and not common.PROF:
        t = t.replace("; @launch kernel=k12_kernel grid", "; @launch grid").replace("k12_kernel", "sequential_preLN__compressed_kv_cla__moe_arch_mod__prompt_kernel")
    open(path, "w").write(t)

if __name__ == "__main__":
    build(sys.argv[1] if len(sys.argv) > 1 else "t.s", os.environ.get("WHICH", "all").split(","))
```

```python
from common import *
import common, os
import oproj
from oproj import Z, ONE, one_lane

NSL = 224
SPIN_MAX = 1 << 20
GL = 65536
DL_ = 131072
XL = 4096
MISC = XL + 4096
P64, PV64 = 94, 95
NEARLY = int(os.environ.get("FNE", "0"))
POLL64 = f"buffer_load_dword v{PV64}, v{P64}, s[16:19], 0 offen sc1"


def wgrp(k):
    m, hf = k // 2, k % 2
    t = [f"s_lshl_b32 s40, s30, 13", f"s_add_u32 m0, s40, {GL + m*32768 + hf*4096}", f"s_add_u32 s41, s3, {m*(8 << 20) + hf*4096}"]
    t += [f"buffer_load_dwordx4 v1, s[44:47], s41 offen offset:{i*1024} sc1 lds" for i in range(4)]
    return "\n".join(t)


def setup(a):
    a(f"v_lshlrev_b32 v{P64}, 3, v1")
    a("s_and_b32 s35, s2, 7")
    a("s_mul_i32 s35, s35, 28")
    a("s_lshr_b32 s31, s2, 3")
    a("s_add_u32 s55, s35, s31")
    a("s_lshl_b32 s3, s55, 15")
    a("s_lshl_b32 s31, s30, 13")
    a("s_add_u32 s3, s3, s31")
    a(f"s_add_u32 s35, s31, {GL}")


def gate_text(a):
    lp, ok = a.uid("ff_spin"), a.uid("ff_ok")
    return "\n".join([f"s_mov_b32 s34, {SPIN_MAX}", f"{lp}:", f"v_cmp_gt_u32 vcc, 4, v{PV64}", f"s_cbranch_vccz {ok}",
                      "s_sub_u32 s34, s34, 1", f"s_cbranch_scc1 {ok}", "s_sleep 4", POLL64, "s_waitcnt vmcnt(0)", f"s_branch {lp}", f"{ok}:",
                      f"s_add_u32 s44, s6, 0x{RPK_OFF:x}", "s_addc_u32 s45, s7, 0", "s_and_b32 s45, s45, 0xffff",
                      "s_cmp_ge_u32 s2, 224", f"s_cselect_b32 s46, 0, 0x{16 << 20:x}"])


THIN = int(os.environ.get("THIN", "0"))
THIN_TEXT = "\n".join(["s_mov_b32 m0, s35", "s_add_u32 s35, s35, 1024", "buffer_load_dwordx4 v1, s[44:47], s3 offen sc1 lds", "s_add_u32 s3, s3, 1024"])
THIN_FLIP = "\n".join([f"s_add_u32 s35, s35, {32768 - 8192}", f"s_add_u32 s3, s3, {(8 << 20) - 8192}"])


def early_text(p):
    return wgrp(p - 1) if p - 1 < NEARLY else ""


FPOS = os.environ.get("FPOS", "S")


def wdown_loads(a):
    a(f"s_load_dwordx2 s[4:5], s[0:1], {ARG['wd']}")
    for r in range(4):
        a(f"v_mov_b32 v{12+r}, -1")
    a("s_waitcnt lgkmcnt(0)")


def wdown_seq(A, B, D):
    q = [("S", t) for t in ("s_and_b32 s32, s2, 7", "s_mul_i32 s32, s32, 28", "s_lshr_b32 s34, s2, 3", "s_add_u32 s32, s32, s34",
                            "s_lshl_b32 s32, s32, 15", "s_lshl_b32 s34, s30, 13", "s_add_u32 s32, s32, s34", f"s_mov_b32 s{D}, s4", f"s_mov_b32 s{D+3}, 0x00020000",
                            f"s_and_b32 s{D+1}, s5, 0xffff", f"s_cmp_ge_u32 s2, 224\ns_cselect_b32 s{D+2}, 0, 7340032")]
    for hf in range(2):
        q.append(("M0", f"s_add_u32 m0, s34, {DL_ + hf*4096}"))
        q += [("V", f"buffer_load_dwordx4 v1, s[{D}:{D+3}], s32 offen offset:{i*1024} lds") for i in range(4)]
        q.append(("S", "s_add_u32 s32, s32, 4096"))
    return [(c, t.replace('s32', A).replace('s34', B)) for c, t in q]


def poison_seq(A, B):
    q = [("S", t) for t in ("s_mov_b32 s26, -1", "s_lshl_b32 s32, s2, 14", "s_add_u32 s32, s32, s60", f"s_add_u32 s34, s32, 0x{XCH_OFF - CTX_OFF:x}")]
    q += [("V", f"buffer_store_dwordx4 v[12:15], v1, s[24:27], s34 offen offset:{i*1024} sc1") for i in range(4)]
    q += [("S", "s_lshr_b32 s32, s32, 1"), ("S", f"s_add_u32 s34, s32, 0x{PART_OFF - CTX_OFF:x}")]
    q += [("V", f"buffer_store_dwordx4 v[12:15], v1, s[24:27], s34 offen offset:{i*1024} sc1") for i in range(2)]
    q.append(("S", f"s_mov_b32 s26, 0x{16 << 20:x}"))
    return [(c, t.replace('s32', A).replace('s34', B)) for c, t in q]


def seq_ops(q, lo, hi, after=()):
    from sched import Op
    ops, prev, m0 = [], list(after), None
    for k, (c, t) in enumerate(q):
        w = lo + (hi - lo) * k / len(q)
        o = Op(t, "S" if c == "M0" else c, w, lo=lo, after=prev, prev_gap=[m0] if (c == "V" and m0) else [])
        if c == "M0":
            m0 = o
        ops.append(o)
        prev = [o]
    return ops


def seq_text(q):
    return "\n".join(t + ("\ns_nop 0" if c == "M0" else "") for c, t in q)


def rest(a):
    WD = 96
    for k in range(4 if THIN else NEARLY, 4):
        a(wgrp(k))
    a("s_lshl_b32 s41, s30, 9")
    a(f"s_add_u32 s41, s41, {DL_}")
    a("v_lshrrev_b32 v9, 1, v1")
    a("v_add_u32 v9, s41, v9")
    for i in range(16):
        a(f"ds_read_b64 v[{WD+2*i}:{WD+2*i+1}], v9 offset:{i*2048}")
    a("s_mov_b32 s54, 0x05040100")
    a("s_mov_b32 s53, 0x07060302")
    a("s_waitcnt lgkmcnt(0)")
    WP = 144
    for j in range(8):
        r0, r1 = WD + 4 * j, WD + 4 * j + 2
        for h in range(2):
            a(f"v_perm_b32 v{WP+4*j+2*h}, v{r1+h}, v{r0+h}, s54")
            a(f"v_perm_b32 v{WP+4*j+2*h+1}, v{r1+h}, v{r0+h}, s53")


def top2_merge(a, m1, m2, t1, t2):
    a(f"v_max_f32 v{t2}, v{t2}, v{m2}")
    a(f"v_med3_f32 v{m2}, v{m1}, v{t1}, v{t2}")
    a(f"v_max_f32 v{m1}, v{m1}, v{t1}")


def tail(a):
    P = lambda r: f"v[{r}:{r+1}]"
    fst = (lambda i: stamp(a, i)) if os.environ.get("FST") else (lambda i: None)
    ST, VX, VO, WD, WP, T2, KP = 16, 40, 128, 96, 144, 176, 216
    TID, LANE, L32, HALF, L16B = 2, 3, 4, 5, 7
    a(f"s_load_dwordx2 s[42:43], s[0:1], {ARG['out']}")
    a(f"s_load_dwordx2 s[56:57], s[0:1], {ARG['wr']}")
    a.srd_off(16, 6, GBC_OFF, 4096)
    a(f"v_lshrrev_b32 v{LANE}, 4, v1")
    a(f"v_lshl_add_u32 v{TID}, s30, 6, v{LANE}")
    a(f"v_and_b32 v{L32}, 31, v{LANE}")
    a(f"v_lshrrev_b32 v{HALF}, 5, v{LANE}")
    a(f"v_lshlrev_b32 v{L16B}, 4, v{L32}")
    a(f"v_and_b32 v8, 15, v{LANE}")
    a("v_lshlrev_b32 v6, 7, v8")
    a("s_bfe_u32 s31, s2, 0x20003")
    a("s_lshl_b32 s31, s31, 7")
    a(f"v_lshlrev_b32 v12, 9, v{LANE}")
    a(f"v_and_b32 v14, 3, v{LANE}")
    a("v_lshlrev_b32 v14, 7, v14")
    a("s_and_b32 s59, s2, 7")
    a("s_lshl_b32 s59, s59, 9")
    a("s_setreg_imm32_b32 hwreg(HW_REG_MODE, 4, 2), 3")
    a("s_waitcnt vmcnt(0) lgkmcnt(0)")
    a("s_barrier")
    ns = a.uid("ff_nosig")
    a("s_cmp_lg_u32 s30, 0")
    a(f"s_cbranch_scc1 {ns}")
    a(f"s_mov_b64 exec, 0xff\nbuffer_atomic_add v{ONE}, v12, s[16:19], s31 offen sc1\ns_mov_b64 exec, -1")
    a.label(ns)
    if not os.environ.get('LST'):
        stamp(a, 1)
    if FPOS == "S":
        rest(a)
    a(f"s_mov_b32 s34, {WRSUM_OFF - STATS_OFF + 4}")
    a.srd(36, 42, 4 << 20)
    a.srd_off(48, 6, PART_OFF, NSL * 8192)
    a(f"v_lshlrev_b32 v10, 5, v{TID}")
    a(f"v_lshl_add_u32 v11, s30, 1, v{HALF}")
    a("s_lshl_b32 s31, s2, 3")
    a("v_add_u32 v11, s31, v11")
    a(f"v_lshl_add_u32 v0, v11, 11, v{L16B}" if not common.TRACE else "s_nop 0")
    go, lp = a.uid("ff_go"), a.uid("ff_poll")
    a("s_cmp_lg_u32 s30, 0")
    a(f"s_cbranch_scc1 {go}")
    a(f"s_mov_b32 s52, {SPIN_MAX}")
    a.label(lp)
    a("buffer_load_dword v13, v14, s[16:19], s59 offen sc1")
    a("s_sub_u32 s52, s52, 1")
    a(f"s_cbranch_scc1 {go}")
    a("s_waitcnt vmcnt(0)")
    a("v_cmp_gt_u32 vcc, 64, v13")
    a(f"s_cbranch_vccz {go}")
    a(f"s_sleep {os.environ.get('FSL', '4')}")
    a(f"s_branch {lp}")
    a.label(go)
    a("s_barrier")
    if not os.environ.get('LST'):
        stamp(a, 2)
    for j in range(3):
        a(f"s_mov_b32 s31, {j*8192}")
        a(f"buffer_load_dwordx4 v[{ST+8*j}:{ST+8*j+3}], v10, s[32:35], s31 offen sc1")
        a(f"buffer_load_dwordx4 v[{ST+8*j+4}:{ST+8*j+7}], v10, s[32:35], s31 offen offset:16 sc1")
    a(f"s_mov_b32 s31, {WRSUM_OFF - STATS_OFF}")
    a(f"buffer_load_dword v10, v{Z}, s[32:35], s31 offen sc1")
    a("s_mov_b32 s52, 0x3a800000")
    a("s_mov_b32 s53, 0x3a800000")
    a("s_mov_b32 s54, 0x7ff")
    a("v_mov_b32 v14, 0x3727c5ac")
    a("v_mov_b32 v15, v14")
    a("v_mov_b32 v12, 0xff800000")
    a("v_mov_b32 v13, v12")
    a("s_waitcnt vmcnt(0)")
    a("v_sub_f32 v56, 0, v10")
    a("v_sub_f32 v57, 0, v10")
    for i in range(0, 8, 2):
        s1, s2, s3 = ST + i, ST + 8 + i, ST + 16 + i
        a(f"v_pk_mul_f32 {P(s1)}, {P(s1)}, s[52:53]")
        a(f"v_pk_fma_f32 {P(s2)}, {P(s2)}, s[52:53], {P(14)}")
        a(f"v_pk_fma_f32 {P(s3)}, {P(s1)}, {P(56)}, {P(s3)}")
        a(f"v_pk_fma_f32 {P(s2)}, {P(s1)}, {P(s1)}, {P(s2)} neg_lo:[1,0,0] neg_hi:[1,0,0]")
    for i in range(8):
        a(f"v_max_f32 v{ST+8+i}, v14, v{ST+8+i}")
    for i in range(8):
        a(f"v_rsq_f32 v{ST+8+i}, v{ST+8+i}")
    for i in range(0, 8, 2):
        a(f"v_pk_mul_f32 {P(ST+16+i)}, {P(ST+16+i)}, {P(ST+8+i)}")
    for i in range(8):
        a(f"v_bfi_b32 v{ST+16+i}, s54, {i}, v{ST+16+i}")
        a(f"v_med3_f32 v13, v12, v13, v{ST+16+i}")
        a(f"v_max_f32 v12, v12, v{ST+16+i}")
    a(f"v_lshl_or_b32 v12, v{TID}, 3, v12")
    a(f"v_lshl_or_b32 v13, v{TID}, 3, v13")
    for dpp in ("quad_perm:[1,0,3,2]", "quad_perm:[2,3,0,1]", "row_half_mirror", "row_mirror"):
        a("s_nop 1")
        a(f"v_mov_b32_dpp v14, v12 {dpp} row_mask:0xf bank_mask:0xf")
        a(f"v_mov_b32_dpp v15, v13 {dpp} row_mask:0xf bank_mask:0xf")
        top2_merge(a, 12, 13, 14, 15)
    for sw in ("v_permlane16_swap_b32", "v_permlane32_swap_b32"):
        a("v_mov_b32 v14, v12")
        a("v_mov_b32 v15, v13")
        a("s_nop 1")
        a(f"{sw} v12, v14")
        a(f"{sw} v13, v15")
        a("s_nop 1")
        top2_merge(a, 12, 13, 14, 15)
    a("s_lshl_b32 s31, s30, 3")
    a(f"s_add_u32 s31, s31, {MISC}")
    a("v_mov_b32 v14, s31")
    a("ds_write_b64 v14, v[12:13]")
    a(f"v_mov_b32 v14, {MISC}")
    a("s_waitcnt lgkmcnt(0)")
    a("s_barrier")
    a(f"ds_read_b128 v[{ST}:{ST+3}], v14")
    a(f"ds_read_b128 v[{ST+4}:{ST+7}], v14 offset:16")
    a(f"v_cmp_eq_u32 vcc, 0, v{HALF}")
    a("s_waitcnt lgkmcnt(0)")
    top2_merge(a, ST, ST + 1, ST + 2, ST + 3)
    top2_merge(a, ST + 4, ST + 5, ST + 6, ST + 7)
    top2_merge(a, ST, ST + 1, ST + 4, ST + 5)
    a(f"v_and_b32 v{ST}, 0x7ff, v{ST}")
    a(f"v_and_b32 v{ST+1}, 0x7ff, v{ST+1}")
    a(f"v_cndmask_b32 v15, v{ST+1}, v{ST}, vcc")
    a(f"v_lshl_add_u32 v12, v15, 11, v{L16B}")
    for i in range(4):
        a(f"buffer_load_dwordx4 v[{VX+4*i}:{VX+4*i+3}], v12, s[24:27], 0 offen offset:{i*512} sc1")
    for i in range(4):
        a(f"buffer_load_dwordx4 v[{VO+4*i}:{VO+4*i+3}], v0, s[24:27], 0 offen offset:{i*512} sc1")
    a(f"v_cmp_eq_u32 vcc, v{ST}, v11")
    a(f"v_cmp_eq_u32 s[52:53], v{ST+1}, v11")
    a("v_mov_b32 v13, 0x7fffffff")
    a("s_or_b64 vcc, vcc, s[52:53]")
    a("v_cndmask_b32 v0, v0, v13, vcc")
    a(f"v_lshl_add_u32 v12, v{HALF}, 11, v{L16B}")
    a(f"v_add_u32 v12, {XL}, v12")
    if not os.environ.get('LST'):
        stamp(a, 3)
    a("s_mov_b32 s58, 0")
    a("s_waitcnt vmcnt(4)")
    lln, lown, lred, lred2, fin = (a.uid(x) for x in ("ff_ln", "ff_own", "ff_red", "ff_red2", "ff_fin"))
    a.label(lln)
    ln_rows_half_wave(a, VX, T2, keep=KP)
    a("s_cmp_lg_u32 s58, 0")
    a(f"s_cbranch_scc1 {lown}")
    for i in range(4):
        a(f"ds_write_b128 v12, v[{VX+4*i}:{VX+4*i+3}] offset:{i*512}")
    a("s_cmp_ge_u32 s2, 224")
    a(f"s_cbranch_scc1 {lred}")
    fst(4)
    a(f"v_lshrrev_b32 v12, 4, v{LANE}")
    a(f"v_and_b32 v13, 1, v{LANE}")
    a("v_lshlrev_b32 v13, 11, v13")
    a("v_lshl_add_u32 v13, v12, 3, v13")
    a("s_lshl_b32 s54, s30, 9")
    a(f"s_add_u32 s54, s54, {XL}")
    a("v_add_u32 v13, s54, v13")
    a(f"v_lshlrev_b32 v14, 3, v{LANE}")
    a("s_lshl_b32 s54, s30, 13")
    a(f"s_add_u32 s54, s54, {GL}")
    a("v_add_u32 v14, s54, v14")
    for m in range(2):
        for s in range(8):
            b = (m * 8 + s) * 4
            a(f"ds_read_b64_tr_b16 a[{b}:{b+1}], v14 offset:{m*32768 + s*1024}")
            a(f"ds_read_b64_tr_b16 a[{b+2}:{b+3}], v14 offset:{m*32768 + s*1024 + 512}")
    for s in range(8):
        a(f"ds_read_b64 a[{64+4*s}:{65+4*s}], v13 offset:{s*64}")
        a(f"ds_read_b64 a[{66+4*s}:{67+4*s}], v13 offset:{s*64+32}")
    a("v_lshlrev_b32 v13, 6, v8")
    a("v_lshl_add_u32 v13, v12, 4, v13")
    a("s_lshl_b32 s54, s30, 11")
    a(f"s_add_u32 s54, s54, {MISC + 256}")
    a("v_add_u32 v13, s54, v13")
    a("s_waitcnt lgkmcnt(0)")
    for s in range(8):
        for m in range(2):
            b = (m * 8 + s) * 4
            c = f"v[{16+4*m}:{19+4*m}]"
            a(mfma16(c, f"a[{b}:{b+3}]", f"a[{64+4*s}:{67+4*s}]", "0" if s == 0 else c))
    a("s_nop 7")
    a("ds_write_b128 v13, v[16:19]")
    a("ds_write_b128 v13, v[20:23] offset:1024")
    a(f"v_lshlrev_b32 v13, 2, v{L32}")
    a(f"v_add_u32 v13, {MISC + 256}, v13")
    a("s_waitcnt lgkmcnt(0)")
    a("s_barrier")
    for w in range(4):
        a(f"ds_read2st64_b32 v[{16+2*w}:{17+2*w}], v13 offset0:{w*8} offset1:{w*8 + 4}")
    a("s_waitcnt lgkmcnt(0)")
    a(f"v_pk_add_f32 {P(16)}, {P(16)}, {P(20)}")
    a(f"v_pk_add_f32 {P(18)}, {P(18)}, {P(22)}")
    a(f"v_pk_add_f32 {P(16)}, {P(16)}, {P(18)}")
    a("v_cvt_pk_bf16_f32 v16, v16, v17")
    a("v_and_b32 v20, 0xffff0000, v16")
    a("v_lshlrev_b32 v16, 16, v16")
    a("v_mul_f32 v17, 0xbfb8aa3b, v16")
    a("v_exp_f32 v17, v17")
    a("s_lshl_b32 s54, s55, 13")
    a("v_add_f32 v17, 1.0, v17")
    a("v_rcp_f32 v17, v17")
    a("s_add_u32 s53, s54, 4096")
    a("v_mul_f32 v16, v16, v17")
    a("v_cvt_pk_bf16_f32 v16, v16, v16")
    a("v_and_b32 v16, 0xffff0000, v16")
    a("v_mul_f32 v16, v16, v20")
    a("s_nop 1")
    a("v_mov_b32_dpp v17, v16 quad_perm:[1,0,3,2] row_mask:0xf bank_mask:0xf")
    a("v_cvt_pk_bf16_f32 v16, v16, v17")
    a(f"v_lshlrev_b32 v13, 4, v{TID}")
    for t in range(2):
        for j in range(8):
            a(f"v_readlane_b32 s{8 + t*8 + j}, v16, {t*16 + 2*j}")
    ACC = 24
    for t in range(2):
        for j in range(8):
            for e in range(4):
                d = ACC + t * 4 + e
                a(f"v_dot2_f32_bf16 v{d}, v{WP+4*j+e}, s{8 + t*8 + j}, {'0' if j == 0 else 'v%d' % d}")
    a("s_nop 2")
    for r in range(8):
        a(f"v_min_u32 v{ACC+r}, -2, v{ACC+r}")
    a(f"buffer_store_dwordx4 v[{ACC}:{ACC+3}], v13, s[48:51], s54 offen sc1")
    a(f"buffer_store_dwordx4 v[{ACC+4}:{ACC+7}], v13, s[48:51], s53 offen sc1")
    fst(5)
    a("s_waitcnt vmcnt(2)")
    for i in range(16):
        a(f"v_mov_b32 v{VX+i}, v{VO+i}")
    a("s_mov_b32 s58, 1")
    a(f"s_branch {lln}")
    a.label(lown)
    for i in range(16):
        a(f"v_lshlrev_b32 v{T2+2*i}, 16, v{VX+i}")
        a(f"v_and_b32 v{T2+2*i+1}, 0xffff0000, v{VX+i}")
    for i in range(0, 32, 2):
        a(f"v_pk_add_f32 v[{T2+i}:{T2+i+1}], v[{T2+i}:{T2+i+1}], v[{KP+i}:{KP+i+1}]")
    for i in range(16):
        a(f"v_cvt_pk_bf16_f32 v{VX+i}, v{T2+2*i}, v{T2+2*i+1}")
    for i in range(4):
        a(f"buffer_store_dwordx4 v[{VX+4*i}:{VX+4*i+3}], v0, s[36:39], 0 offen offset:{i*512} sc1")
    a("s_cmp_ge_u32 s2, 224")
    a(f"s_cbranch_scc1 {lred2}")
    a(f"s_branch {fin}")
    a.label(lred)
    a("s_sub_u32 s40, s2, 224")
    a("s_lshr_b32 s41, s40, 4")
    a("s_and_b32 s42, s40, 15")
    a.srd(8, 56, 2048)
    for i in range(4):
        a(f"buffer_load_dwordx4 v[{WD+4*i}:{WD+3+4*i}], v{L16B}, s[8:11], 0 offen offset:{i*512}")
    a("s_lshl_b32 s43, s41, 5")
    a("v_readlane_b32 s46, v15, s43")
    a("s_lshl_b32 s47, s42, 7")
    a("v_lshl_add_u32 v9, v8, 3, s47")
    a("s_lshl_b32 s46, s46, 11")
    a("s_lshl_b32 s31, s41, 11")
    a(f"s_add_u32 s31, s31, {XL}")
    a("v_add_u32 v12, s31, v9")
    a("s_waitcnt lgkmcnt(0)")
    a("ds_read_b64 v[32:33], v12")
    a("buffer_load_dwordx2 v[34:35], v9, s[24:27], s46 offen sc1")
    a(f"v_lshrrev_b32 v10, 4, v{TID}")
    a("v_lshlrev_b32 v10, 13, v10")
    a("v_lshl_add_u32 v10, v8, 4, v10")
    a("s_lshl_b32 s47, s40, 8")
    a("s_waitcnt vmcnt(1)")
    a(f"v_dot2_f32_bf16 v12, v{VX}, v{WD}, 0")
    for i in range(1, 16):
        a(f"v_dot2_f32_bf16 v12, v{VX+i}, v{WD+i}, v12")
    a("s_nop 2")
    half_wave_sum(a, 12, 13)
    a("v_cvt_pk_bf16_f32 v12, v12, v12")
    a("v_and_b32 v12, 0xffff0000, v12")
    a("v_mul_f32 v12, 0xbfb8aa3b, v12")
    a("v_exp_f32 v12, v12")
    a("s_lshl_b32 s44, s42, 1")
    a("v_add_f32 v12, 1.0, v12")
    a("v_rcp_f32 v12, v12")
    a("s_add_u32 s44, s44, s41")
    a("s_lshl_b32 s44, s44, 11")
    a("v_cvt_pk_bf16_f32 v12, v12, v12")
    a("v_and_b32 v12, 0xffff0000, v12")
    for i in range(16):
        a(f"v_mov_b32 v{VX+i}, v{VO+i}")
    a("v_readlane_b32 s45, v12, s43")
    a("s_mov_b32 s58, 1")
    a(f"s_branch {lln}")
    a.label(lred2)
    fst(4)
    go, lp = a.uid("ff_rgo"), a.uid("ff_rpoll")
    R0 = 96
    a(f"s_mov_b32 s52, {SPIN_MAX}")
    a.label(lp)
    a("s_mov_b32 s53, s47")
    for i in range(14):
        a(f"buffer_load_dwordx4 v[{R0+4*i}:{R0+3+4*i}], v10, s[48:51], s53 offen sc1")
        a("s_add_u32 s53, s53, 0x20000")
    a("v_mov_b32 v13, 0")
    for i in range(14):
        a(f"s_waitcnt vmcnt({13 - i})")
        a(f"v_max3_u32 v13, v13, v{R0+4*i}, v{R0+4*i+1}")
        a(f"v_max3_u32 v13, v13, v{R0+4*i+2}, v{R0+4*i+3}")
    a("s_sub_u32 s52, s52, 1")
    a(f"s_cbranch_scc1 {go}")
    a("v_cmp_eq_u32 vcc, -1, v13")
    a(f"s_cbranch_vccnz {lp}")
    a.label(go)
    fst(5)
    for i in range(1, 14):
        a(f"v_pk_add_f32 {P(R0)}, {P(R0)}, {P(R0+4*i)}")
        a(f"v_pk_add_f32 {P(R0+2)}, {P(R0+2)}, {P(R0+2+4*i)}")
    for sw in ("v_permlane16_swap_b32", "v_permlane32_swap_b32"):
        for r in range(4):
            a(f"v_mov_b32 v{R0+4+r}, v{R0+r}")
        a("s_nop 1")
        for r in range(4):
            a(f"{sw} v{R0+r}, v{R0+4+r}")
        a("s_nop 1")
        for r in range(4):
            a(f"v_add_f32 v{R0+r}, v{R0+r}, v{R0+4+r}")
    fst(6)
    a("v_lshlrev_b32 v14, 4, v8")
    a("s_lshl_b32 s31, s30, 8")
    a("v_add_u32 v13, s31, v14")
    a(f"ds_write_b128 v13, v[{R0}:{R0+3}]")
    a("s_waitcnt lgkmcnt(0)")
    a("s_barrier")
    for w in range(4):
        a(f"ds_read_b128 v[{R0+4*w}:{R0+3+4*w}], v14 offset:{w*256}")
    a("s_waitcnt lgkmcnt(0)")
    for w in range(1, 4):
        a(f"v_pk_add_f32 {P(R0)}, {P(R0)}, {P(R0+4*w)}")
        a(f"v_pk_add_f32 {P(R0+2)}, {P(R0+2)}, {P(R0+2+4*w)}")
    for h in range(2):
        y = R0 + 2 * h
        a(f"v_cvt_pk_bf16_f32 v20, v{y}, v{y+1}")
        a("v_lshlrev_b32 v21, 16, v20\nv_and_b32 v22, 0xffff0000, v20")
        a("v_mul_f32 v21, s45, v21\nv_mul_f32 v22, s45, v22")
        a("v_cvt_pk_bf16_f32 v20, v21, v22")
        a("v_lshlrev_b32 v21, 16, v20\nv_and_b32 v22, 0xffff0000, v20")
        a(f"v_lshlrev_b32 v23, 16, v{32+h}\nv_and_b32 v24, 0xffff0000, v{32+h}")
        a("v_add_f32 v21, v21, v23\nv_add_f32 v22, v22, v24")
        a("v_cvt_pk_bf16_f32 v20, v21, v22")
        a("v_lshlrev_b32 v21, 16, v20\nv_and_b32 v22, 0xffff0000, v20")
        a(f"v_lshlrev_b32 v23, 16, v{34+h}\nv_and_b32 v24, 0xffff0000, v{34+h}")
        a("v_add_f32 v21, v21, v23\nv_add_f32 v22, v22, v24")
        a(f"v_cvt_pk_bf16_f32 v{26+h}, v21, v22")
    a(f"v_cmp_gt_u32 vcc, 16, v{TID}")
    a("s_and_saveexec_b64 s[52:53], vcc")
    a(f"s_cbranch_execz {fin}")
    a("buffer_store_dwordx2 v[26:27], v9, s[36:39], s46 offen sc1")
    a.label(fin)
    a("s_mov_b64 exec, -1")
```

```python
from common import *
from sched import Op, spread, schedule, resolve_lgkm
import common
import oproj
import math, struct

QSCALE = struct.unpack("<I", struct.pack("<f", math.log2(math.e) / math.sqrt(128.0)))[0]
THRESH = 0x40004000
REFBITS = 0x41400000

V_LANE16 = 1
V_K = 2
V_V = 3
V_VV = 4
V_NINF = 5
V_T = 6
V_T2 = 7
NEGM = 8
LQ = [12, 48, 248, 252]
ONES = 60
REF = 12.0
CIN = 16
DL = 52
V_C = 57
V_LANEV = 56
Q = 64
S = [128, 160]
P = [192, 208]
TMP = 224
V_PF = 228
V_PS = 229
V_PL = 230
A_R = 224
ET = 232
A_O = 0
A_K = 128
A_V = 192


LDF = ' sc1'
import os
VT = int(os.environ.get('VT', '4'))
import os
KN = set(os.environ.get("KN", "").split(","))


def vq(b):
    return f"v[{b}:{b+3}]"


def aq(b):
    return f"a[{b}:{b+3}]"


def slot_of(typ, kb, qb):
    if typ == "D":
        return kb * 4 + qb
    return (kb % 2) * 4 + (kb // 2) * 2 + (qb - 2)


def kind(t):
    return t[0]


def qbs_of(t):
    return {"D": [0, 1, 2, 3], "D3": [1, 2, 3], "S": [2, 3], "S1": [3]}[t]


def js_of(t):
    return qbs_of(t) if kind(t) == "D" else [ks * 2 + q - 2 for ks in range(2) for q in qbs_of(t)]


def qk_mfmas(typ, par, ko=0):
    out = []
    for kb in range(2 if kind(typ) == "D" else 4):
        for c in range(4):
            for qb in qbs_of(typ):
                sl = slot_of(kind(typ), kb, qb)
                d = vq(S[par] + 4 * sl)
                cc = vq(CIN + 4 * sl) if c == 0 else d
                out.append(mfma16(d, aq(A_K + ko + (kb * 4 + c) * 4), vq(Q + (qb * 4 + c) * 4), cc))
    return out


def pv_mfmas(typ, par):
    out = []
    for j in js_of(typ):
        l = vq(LQ[j if kind(typ) == "D" else 2 + j % 2])
        out.append(mfma16(l, vq(ONES), vq(P[par] + 4 * j), l))
    for ks in range(1 if kind(typ) == "D" else 2):
        for db in range(8):
            for qb in qbs_of(typ):
                o = aq(A_O + (db * 4 + qb) * 4)
                j = qb if kind(typ) == "D" else ks * 2 + qb - 2
                out.append(mfma16(o, aq(A_V + (ks * 8 + db) * 4), vq(P[par] + 4 * j), o))
    return out


def sm_stream(par, js):
    ops = []
    for j in js:
        for half in range(2):
            sl = j + 4 * half
            for r in range(4):
                ops.append(f"v_exp_f32 v{ET+r}, v{S[par] + 4*sl + r}")
            ops.append("s_nop 0")
            for pr in range(2):
                ops.append(f"v_cvt_pk_bf16_f32 v{P[par] + 4*j + 2*half + pr}, v{ET+2*pr}, v{ET+2*pr+1}")
    return ops


def dma_group(mall=None):
    out = []
    if "nodma" in KN: return []
    for i in range(4):
        t = ""
        if i == 0:
            t = "s_mov_b32 m0, s34\ns_nop 0\n"
        out.append(t + f"buffer_load_dwordx4 v{V_LANE16}, s[16:19], s32 offen offset:{i*1024}{LDF} lds")
    for i in range(4):
        t = ""
        if i == 0:
            t = "s_mov_b32 m0, s35\ns_nop 0\n"
        out.append(t + f"buffer_load_dwordx4 v{V_LANE16}, s[20:23], s33 offen offset:{i*1024}{LDF} lds")
    if mall:
        l = mall.uid("k2_mpf")
        out.append(f"s_add_u32 s61, s61, 1\ns_and_b32 s31, s61, 3\ns_cbranch_scc1 {l}\n"
                   f"buffer_load_dword v{V_T2}, v{V_PF}, s[12:15], s62 offen\ns_add_u32 s62, s62, 0x2000\n{l}:")
    out.append("s_add_u32 s32, s32, 0x80000\ns_add_u32 s33, s33, 0x80000\n"
               "s_add_u32 s34, s34, 0x4000\ns_and_b32 s34, s34, 0xffff\n"
               "s_add_u32 s35, s35, 0x4000\ns_and_b32 s35, s35, 0xffff\ns_or_b32 s35, s35, 0x10000")
    return out


def prep_texts(k, qb):
    sc = f"s_sub_u32 s40, s36, s{38 if qb < 2 else 39}" + ("\ns_sub_u32 s40, s40, 64" if qb % 2 else "")
    v0 = f"v_subrev_u32 v{V_T}, s40, v{V_VV}"
    tiles = []
    for kb in range(2 if k == "D" else 4):
        cm = [f"v_cmp_gt_i32 s[{44+2*r}:{45+2*r}], {16*kb + r}, v{V_T}" for r in range(4)]
        cn = [f"v_cndmask_b32 v{CIN + 4*slot_of(k, kb, qb) + r}, v{NEGM+qb}, v{V_NINF}, s[{44+2*r}:{45+2*r}]" for r in range(4)]
        tiles.append((cm, cn))
    return sc, v0, tiles


def cin_prep(a, k, qb):
    sc, v0, tiles = prep_texts(k, qb)
    a(sc)
    a(v0)
    for cm, cn in tiles:
        for t in cm + cn:
            a(t)
    a("s_nop 1")


def prep_ops(k, qb, lo, hi):
    sc, v0, tiles = prep_texts(k, qb)
    o = spread([v0] + [t for cm, cn in tiles for t in cm + cn], "A", lo + 1, hi)
    so = Op(sc, "S", lo, lo=lo)
    o[0].after.append(so)
    o[-1].hard = hi
    return [so] + o


def row_max(a, typ, par, clamp0):
    qbs = qbs_of(typ)
    for qb in qbs:
        sls = [slot_of(kind(typ), kb, qb) for kb in range(2 if kind(typ) == "D" else 4)]
        rs = [S[par] + 4 * sl + r for sl in sls for r in range(4)]
        d = DL + qb
        a(f"v_max_f32 v{d}, v{rs[0]}, v{rs[1]}")
        for i in range(2, len(rs), 2):
            a(f"v_max3_f32 v{d}, v{d}, v{rs[i]}, v{rs[i+1]}")
    for sw in ("v_permlane16_swap_b32", "v_permlane32_swap_b32"):
        for qb in qbs:
            a(f"v_mov_b32 v{TMP+qb}, v{DL+qb}")
        a("s_nop 1")
        for qb in qbs:
            a(f"{sw} v{DL+qb}, v{TMP+qb}")
        a("s_nop 1")
        for qb in qbs:
            a(f"v_max_f32 v{DL+qb}, v{DL+qb}, v{TMP+qb}")
    for qb in qbs:
        a(f"v_add_f32 v{DL+qb}, 0x{REFBITS:x}, v{DL+qb}")
        if clamp0:
            a(f"v_max_f32 v{DL+qb}, 0, v{DL+qb}")


def qb_of_slot(typ, sl):
    return sl % 4 if typ == "D" else 2 + (sl % 2)


def rare_path(a, sm_typ, qk_k, par):
    a("s_nop 7")
    row_max(a, sm_typ, par, True)
    qbs = qbs_of(sm_typ)
    for sl in range(8):
        q = qb_of_slot(kind(sm_typ), sl)
        if q in qbs:
            for r in range(4):
                x = S[par] + 4 * sl + r
                a(f"v_sub_f32 v{x}, v{x}, v{DL + q}")
    if qk_k is not None:
        for sl in range(8):
            q = qb_of_slot(qk_k, sl)
            if q in qbs:
                for r in range(4):
                    x = S[1 - par] + 4 * sl + r
                    a(f"v_sub_f32 v{x}, v{x}, v{DL + q}")
                    x = CIN + 4 * sl + r
                    a(f"v_sub_f32 v{x}, v{x}, v{DL + q}")
    for qb in qbs:
        a(f"v_sub_f32 v{NEGM+qb}, v{NEGM+qb}, v{DL+qb}")
        a(f"v_exp_f32 v{DL+qb}, -v{DL+qb}")
    a("s_nop 0")
    for qb in qbs:
        a(f"v_mul_f32 v{LQ[qb]}, v{LQ[qb]}, v{DL+qb}")
    for db in range(8):
        for qb in qbs:
            o = A_O + (db * 4 + qb) * 4
            for r in range(4):
                a(f"v_accvgpr_read_b32 v{TMP+r}, a{o+r}")
            for r in range(4):
                a(f"v_mul_f32 v{TMP+r}, v{TMP+r}, v{DL+qb}")
            for r in range(4):
                a(f"v_accvgpr_write_b32 a{o+r}, v{TMP+r}")
    for t in sm_stream(par, js_of(sm_typ)):
        a(t)
    a("s_nop 3")
    a("s_setpc_b64 s[40:41]")


def sm_ops(par, js, lo, hi, sub=False):
    ops, cvts, regs = [], [], []
    users = {}
    chk = None
    tot = 4 * len(js)
    step = (hi - lo) / float(tot)
    n = 0
    for j in js:
        for half in range(2):
            sl = j + 4 * half
            for pr in range(2):
                t = ET + (n % 8) * 2
                w = lo + step * n
                s0 = S[par] + 4 * sl + 2 * pr
                war = users.get(t, [])
                sb = []
                if sub:
                    sb = [Op(f"v_sub_f32 v{s0+k}, v{s0+k}, v{DL+j}", "A", w - step) for k in range(2)]
                    ops += sb
                e0 = Op(f"v_exp_f32 v{t}, v{s0}", "E", w, after=war + sb)
                e1 = Op(f"v_exp_f32 v{t+1}, v{s0+1}", "E", w + step / 2, after=war + sb)
                pr_ = P[par] + 4 * j + 2 * half + pr
                cv = Op(f"v_cvt_pk_bf16_f32 v{pr_}, v{t}, v{t+1}", "A", w + step * 1.1, after=[e0, e1])
                users[t] = [cv]
                ops += [e0, e1, cv]
                cvts.append(cv)
                regs.append(pr_)
                if n == 2:
                    chk = Op(f"v_or3_b32 v{V_C}, v{regs[0]}, v{regs[1]}, v{regs[2]}", "A", w + step * 1.6, after=cvts[-3:])
                    ops.append(chk)
                elif n > 2 and n % 2 == 0:
                    chk = Op(f"v_or3_b32 v{V_C}, v{V_C}, v{regs[-2]}, v{regs[-1]}", "A", w + step * 1.6, after=cvts[-2:] + [chk])
                    ops.append(chk)
                elif n == tot - 1:
                    chk = Op(f"v_bitop3_b32 v{V_C}, v{V_C}, v{regs[-1]}, s37 bitop3:0xa8", "A", w + step * 1.4, after=[cv, chk])
                    ops.append(chk)
                n += 1
    return ops, chk, cvts


def nfr(typ):
    return 8 if typ[0] == "D" else 16


def rd_text(which, i):
    base, va = (A_K, V_K) if which == "K" else (A_V, V_V)
    return f"ds_read_b128 {aq(base + 4*i)}, v{va} offset:{i*1024}"


def ptr_ops(typ, which, lo, want, after):
    va, sp, lane = (V_K, 52, V_LANE16) if which == "K" else (V_V, 53, V_LANEV)
    s1 = Op(f"s_add_u32 s{sp}, s{sp}, {nfr(typ)*1024}", "S", lo + 1, lo=lo)
    s2 = Op(f"s_and_b32 s{sp}, s{sp}, 0xffff", "S", lo + 3, lo=lo, after=[s1])
    up = Op(f"v_add_u32 v{va}, s{sp}, v{lane}", "A", want, after=list(after) + [s2])
    return [s1, s2, up]


def dma_ops(h, lo, hi, after):
    srd, so, lp = (("s[16:19]", 32, 34), ("s[20:23]", 33, 35))[h]
    step = (hi - lo - 1) / 4.0
    m = Op(f"s_mov_b32 m0, s{lp}", "S", lo, lo=lo, after=after)
    ops = [m]
    last = None
    for i in range(4):
        v = Op(f"buffer_load_dwordx4 v{V_LANE16}, {srd}, s{so} offen offset:{i*1024}{LDF} lds", "V", lo + 1 + step * i, lo=lo,
               after=[last] if last else [], prev_gap=[m], hard=hi - 1)
        ops.append(v)
        last = v
    b = [Op(f"s_add_u32 s{so}, s{so}, 0x80000", "S", lo + 2 + step * 3, after=[last])]
    b.append(Op(f"s_add_u32 s{lp}, s{lp}, 0x4000", "S", lo + step, after=[m]))
    b.append(Op(f"s_and_b32 s{lp}, s{lp}, 0xffff", "S", lo + step * 2, after=[b[-1]]))
    if h:
        b.append(Op(f"s_or_b32 s{lp}, s{lp}, 0x10000", "S", lo + step * 2.5, after=[b[-1]]))
    return ops + b, last


def side_ops(lo, hi, load=True):
    step = (hi - lo) / (5.0 if load else 2.0)
    ops = spread([f"buffer_store_dwordx4 {aq(A_R + 4*i)}, v{V_PS}, s[8:11], s58 offen offset:{i*256} sc1" for i in range(2)], "V", lo, lo + 2 * step)
    if not load:
        return ops, ops[-1]
    sa = spread(["s_and_b32 s60, s62, 31", "s_lshr_b32 s61, s62, 5", f"s_mul_i32 s57, s60, {32*7168}", "s_lshl_b32 s4, s61, 7", "s_add_u32 s57, s57, s4",
                 f"s_add_u32 s56, s57, {8*7168}", "s_add_u32 s62, s62, 1"], "S", lo - 12, lo + step)
    sb = spread(["s_lshl_b32 s58, s61, 17", "s_lshl_b32 s60, s60, 10", "s_add_u32 s58, s58, s60", "s_mov_b32 s10, s59"], "S", lo + 2 * step, lo + 4 * step)
    sb[0].after += [ops[-1], sa[-1]]
    ld = spread([f"buffer_load_dwordx4 {aq(A_R)}, v{V_PF}, s[12:15], s57 offen", f"buffer_load_dwordx4 {aq(A_R + 4)}, v{V_PF}, s[12:15], s56 offen",
                 f"buffer_load_dword v{V_T2}, v{V_PL}, s[24:27], s54 offen"], "V", lo + 2 * step, hi)
    ld[0].after += [ops[-1], sa[-1]]
    return ops + sa + sb + ld + [Op("s_add_u32 s54, s54, 4096", "S", hi, after=ld[-1:])], ld[-1]


LEAD = 19


def body(a, outl, u_par, qk, sm, pv, vread, sync, prep=None, dk=False, dv=False, tail=(), first=False, side=None, remap=False, extra=None):
    par = u_par
    mp = pv_mfmas(pv, 1 - par) if pv else []
    mf = mp + (qk_mfmas(qk, 1 - par, 32 if first else 0) if qk else [])
    n1, n = len(mp), len(mf)
    ops, pre = [], []
    carried = []
    chain = []
    vup = None

    def uses(base, i):
        g = [k for k, t in enumerate(mf) if f", {aq(base + 4*i)}," in t]
        return g[0], g[-1]

    def add_reads(which, idxs, wants, los, extra=()):
        out = []
        for i, w, lo in zip(idxs, wants, los):
            o = Op(rd_text(which, i), "M", max(w, lo), lo=lo, after=(chain[-1:] + list(extra)))
            chain.append(o)
            out.append(o)
        return out

    def waits(base, m, rds):
        for i in range(0, m, 2):
            g = uses(base, i)[0] - 1
            need = [rds[j] for j in (i, i + 1) if rds.get(j) is not None]
            for r in need:
                r.hard = max(0, g - 4)
            ops.append(Op(f"@LGKM {base + 4*(i+1)}", "S", g, lo=g, hard=g, after=need))

    bar = None
    dlast = []
    if dv:
        o, l = dma_ops(1, 1, n1 - 1 if sync in ("mid", "mid0") else n - 4, [])
        ops += o
        dlast.append(l)
    if sync == "mid":
        bar = Op("s_waitcnt vmcnt(12)\ns_barrier", "S", n1, lo=n1, hard=n1, after=dlast)
    elif sync == "end":
        bar = Op(f"s_waitcnt vmcnt({8 if first else 13})\ns_barrier", "S", n - 1, lo=n - 1, hard=n - 1, after=dlast)
    elif sync == "mid0":
        bar = Op("s_waitcnt vmcnt(4)\ns_barrier", "S", n1, lo=n1, hard=n1, after=dlast)
    elif sync == "epi":
        bar = Op("s_waitcnt vmcnt(0)\ns_barrier", "S", 0, lo=0, hard=0)
    if first:
        po = first["poll"]()
        ga = first["gate"](lo=n - 3, hard=n - 2, after=[po])
        ops += [po, ga]
        bar.after.append(ga)
    if bar:
        ops.append(bar)
    if dk:
        if sync == "mid":
            o, l = dma_ops(0, n1 + 1, n - 1, [bar])
        else:
            o, l = dma_ops(0, 1, 24, [])
        ops += o
        if side is not None:
            w = Op("s_waitcnt vmcnt(8)", "S", 24, lo=24, after=[l])
            o, _ = side_ops(25, n - 3, side)
            o[0].after.append(w)
            ops += [w] + o
    if pv:
        m = nfr(pv)
        mt = m // 2
        carried = [A_V + 4 * i for i in range(mt)]
        idx = list(range(mt, m))
        r = add_reads("V", idx, [uses(A_V, i)[0] - LEAD for i in idx], [0] * len(idx))
        po = ptr_ops(pv, "V", 2, r[-1].want + 3, r[-1:])
        vup = po[-1]
        ops += r + po
        waits(A_V, m, dict(zip(idx, r)))
    if qk:
        m = nfr(qk)
        if pv:
            idx = list(range(m))
            r = add_reads("K", idx, [uses(A_K, i)[0] - LEAD for i in idx], [0] * m)
            ops += r + ptr_ops(qk, "K", n1 + 6, r[-1].want + 3, r[-1:])
            waits(A_K, m, dict(zip(idx, r)))
        elif not first:
            pre.append("s_waitcnt lgkmcnt(0)")
        rm = []
        if remap:
            rm = spread([f"v_mov_b32 v{CIN + 4*sl + r}, v{NEGM + 2 + sl % 2}" for sl in (0, 1, 4, 5) for r in range(4)], "A", 4, n1 - 8)
            rm[-1].hard = n1 - 5
            ops += rm
        if prep and prep[0] == "in":
            ops += prep_ops(kind(qk), prep[1], 4, n1 - 3)
        elif prep:
            pl, pr = a.uid("k2_prep"), a.uid("k2_prepret")
            t = f"s_cmp_ge_u32 s36, s{42 if kind(qk) == 'D' else 43}\ns_cbranch_scc1 {pl}\n{pr}:"
            outl.append(("prep", pl, kind(qk), prep[1], pr))
            if pv:
                ops.append(Op(t, "B", n1 - 4, lo=4, hard=n1 - 3, after=rm[-1:]))
            else:
                pre.append(t)
        ops.append(Op(f"s_add_u32 s36, s36, {32 if kind(qk) == 'D' else 64}", "S", n1 + 4, lo=n1))
    if vread:
        m = nfr(vread)
        ex = ([vup] if vup else []) + ([bar] if sync in ("mid", "mid0", "epi") else [])
        idx = list(range(m // 2 if qk else m))
        free = [(uses(A_V, i)[1] + 1) if (pv and i < nfr(pv)) else 0 for i in idx]
        if qk:
            ops += add_reads("V", idx, [n + 4 + i * (32 // m) - LEAD - 2 for i in idx], free, ex)
        else:
            ops += add_reads("V", idx, [18 + i for i in idx], free, ex)
    if sm:
        so, chk, cvts = sm_ops(par, js_of(sm), 1 if first else 0, n - 4, sub=bool(first))
        ops += so
        rl, ret = a.uid("k2_tramp"), a.uid("k2_ret")
        c3 = Op(f"v_cmp_ne_u32 vcc, 0, v{V_C}", "A", n - 2, after=[chk])
        c4 = Op(f"s_cbranch_vccnz {rl}\n{ret}:", "B", n + 99, lo=n, after=[c3] + cvts)
        ops += [c3, c4]
        outl.append(("rare", rl, (sm, kind(qk) if qk else None, par), ret))
    for t in tail:
        ops.append(Op(t, "S", n - 8))
    if extra:
        ops += extra(bar, n)
    start = len(a.lines)
    for t in pre:
        a(t)
    schedule(a, mf, ops)
    resolve_lgkm(a.lines, start, carried)


def kv_first():
    out = ["s_mov_b32 s32, s60", "s_mov_b32 s34, s60", "s_mov_b32 s33, s60", "s_add_u32 s35, s60, 0x10000"]
    return out


def out_ops(qb, c, t, pk):
    tx = []
    for hh in range(2):
        o = A_O + ((2 * c + hh) * 4 + qb) * 4
        tx += [f"v_accvgpr_read_b32 v{t+4+hh*4+r}, a{o+r}" for r in range(4)]
    if pk:
        tx += [f"v_pk_mul_f32 v[{t+4+r}:{t+5+r}], v[{t+4+r}:{t+5+r}], v[{LQ[qb]}:{LQ[qb]+1}]" for r in range(0, 8, 2)]
    else:
        tx += [f"v_mul_f32 v{t+4+r}, v{t+4+r}, v{LQ[qb]}" for r in range(8)]
    tx += [f"v_cvt_pk_bf16_f32 v{t+r}, v{t+4+2*r}, v{t+5+2*r}" for r in range(4)]
    st = f"buffer_store_dwordx4 v[{t}:{t+3}], v{V_LANE16}, s[24:27], s{44+c+4*(qb%2)} offen sc1"
    return tx, st


def l_final(qbs):
    tx = []
    for sw in ("v_permlane16_swap_b32", "v_permlane32_swap_b32"):
        tx += [f"v_mov_b32 v{LQ[q]+1}, v{LQ[q]}" for q in qbs] + ["s_nop 1"]
        tx += [f"{sw} v{LQ[q]}, v{LQ[q]+1}" for q in qbs] + ["s_nop 1"]
        tx += [f"v_add_f32 v{LQ[q]}, v{LQ[q]}, v{LQ[q]+1}" for q in qbs]
    tx += [f"v_rcp_f32 v{LQ[q]+1}, v{LQ[q]}" for q in qbs] + [f"v_rcp_f32 v{LQ[q]}, v{LQ[q]}" for q in qbs] + ["s_nop 0"]
    return tx


def ctx_base(srow):
    return ["s_lshl_b32 s31, s28, 19", f"s_lshl_b32 s44, s{srow}, 6", "s_add_u32 s44, s44, s31"] + \
           [f"s_add_u32 s{44+c}, s44, {(c%4)*0x20000 + (c//4)*4096}" for c in range(1, 8)]


def attention_phase(a, end, kidx, qsrc, late, stubs=(), next_code=None, when=None, ffn=None):
    a(f"s_load_dwordx2 s[44:45], s[0:1], {ARG['wo']}")
    a(f"s_load_dwordx2 s[46:47], s[0:1], {ARG['wg']}")
    a(f"s_load_dwordx4 s[48:51], s[0:1], {ARG['wu']}")
    a(f"s_mov_b32 s40, 0x{QSCALE:x}")
    a(f"s_mov_b32 s41, 0x{QSCALE:x}")
    for t in dma_group():
        a(t)
    a(f"v_mov_b32 v{V_K}, v{V_LANE16}")
    a(f"v_or_b32 v{V_V}, 0x10000, v{V_LANE16}")
    a(f"v_mov_b32 v{V_LANEV}, v{V_V}")
    a("s_mov_b32 s52, 0x4000")
    a("s_mov_b32 s53, 0")
    a("s_lshl_b32 s62, s28, 6")
    a("s_mul_i32 s31, s29, s29")
    a("s_add_u32 s62, s62, s31")
    a("s_lshr_b32 s31, s30, 1")
    a("s_lshl_b32 s4, s31, 23")
    a(f"s_add_u32 s4, s4, 0x{RPK_OFF:x}")
    a("s_add_u32 s8, s6, s4")
    a("s_addc_u32 s9, s7, 0")
    a("s_and_b32 s9, s9, 0xffff")
    a("s_mov_b32 s10, 0")
    a("s_mov_b32 s58, 0")
    a("s_mov_b32 s14, 0x700000")
    a("s_mov_b32 s59, 0x700000")
    a("s_lshl_b32 s54, s62, 12")
    a("s_waitcnt vmcnt(16) lgkmcnt(0)")
    a("s_barrier")
    a(late["sig"])
    a("v_mov_b32 v59, 0")
    for i in range(16):
        a(rd_text("K", i))
    a("s_cmp_lt_u32 s30, 2")
    a("s_cselect_b64 s[12:13], s[46:47], s[48:49]")
    a("s_cselect_b64 s[60:61], s[44:45], s[50:51]")
    a("s_cselect_b32 s55, 0x800000, s14")
    a("s_and_b32 s13, s13, 0xffff")
    for qb in (2, 3, 0, 1):
        for c in range(4):
            for hh in range(2):
                kind, x = qsrc(2 * c + hh, qb)
                if kind == "a":
                    y = 128 + (c % 2) * 8 + hh * 4
                    for r in range(4):
                        a(f"v_accvgpr_read_b32 v{y+r}, a{x+r}")
                    x = y
                a(f"v_pk_mul_f32 v[{x}:{x+1}], v[{x}:{x+1}], s[40:41]")
                a(f"v_pk_mul_f32 v[{x+2}:{x+3}], v[{x+2}:{x+3}], s[40:41]")
                d = Q + (qb * 4 + c) * 4 + 2 * hh
                a(f"v_cvt_pk_bf16_f32 v{d}, v{x}, v{x+1}")
                a(f"v_cvt_pk_bf16_f32 v{d+1}, v{x+2}, v{x+3}")
    a(f"v_add_u32 v{V_K}, 0x4000, v{V_LANE16}")
    for i in range(4):
        a(f"v_mov_b32 v{NEGM+i}, 0")
        a(f"v_mov_b32 v{ET+i}, 0")
    a("s_mov_b32 s36, 0")
    a(f"s_mov_b32 s37, 0x{THRESH:x}")
    zero_acc(a, CIN, 32, ET, "v", init=False)
    a(f"v_and_b32 v{V_T}, 0xf0, v{V_LANE16}")
    a(f"v_cmp_eq_u32 vcc, 0, v{V_T}")
    a(f"v_mov_b32 v{V_T}, 0x3f803f80")
    a(f"v_lshrrev_b32 v{V_PS}, 7, v{V_LANE16}")
    a("s_and_b32 s4, s30, 1")
    a("s_lshl_b32 s31, s4, 11")
    a(f"v_lshl_add_u32 v{V_PL}, v{V_LANE16}, 1, s31")
    a(f"v_lshl_add_u32 v{V_PS}, s4, 4, v{V_PS}")
    a(f"v_mul_u32_u24 v{V_PF}, 7168, v{V_PS}")
    a(f"v_and_b32 v{V_T2}, 0x70, v{V_LANE16}")
    a(f"v_add_u32 v{V_PF}, v{V_PF}, v{V_T2}")
    a(f"v_lshlrev_b32 v{V_PS}, 5, v{V_PS}")
    a(f"v_and_b32 v{V_C}, 0x10, v{V_LANE16}")
    a(f"v_add_u32 v{V_PS}, v{V_PS}, v{V_C}")
    a(f"v_lshrrev_b32 v{V_T2}, 5, v{V_T2}")
    a(f"v_lshl_add_u32 v{V_PS}, v{V_T2}, 15, v{V_PS}")
    for r in range(4):
        a(f"v_cndmask_b32 v{ONES+r}, 0, v{V_T}, vcc")
    for i in range(4):
        for r in range(4):
            a(f"v_mov_b32 v{LQ[i]+r}, 0")
    if not when:
        stamp(a, 4)
    outl = []
    body(a, outl, 1, "D", None, None, None, None, ("cond", 0))
    zero_acc(a, 0, 128, ET, init=False)
    row_max(a, "D", 0, False)
    for sl in range(8):
        for r in range(4):
            a(f"v_sub_f32 v{CIN+4*sl+r}, 0, v{DL + sl % 4}")
    for qb in range(4):
        a(f"v_sub_f32 v{NEGM+qb}, 0, v{DL+qb}")
    body(a, outl, 0, "D", "D", None, "D", "end", ("cond", 0), first=late)
    a("s_mov_b32 s24, s60")
    a("s_and_b32 s25, s61, 0xffff")
    a("s_mov_b32 s26, s55")
    loop, dm3 = a.uid("k2_dloop"), a.uid("k2_dm3")
    a("s_lshl_b32 s63, s29, 1")
    a("s_sub_u32 s63, s63, 1")
    a(f"s_cbranch_scc1 {dm3}")
    a.label(loop)
    body(a, outl, 1, "D", "D", "D", "D", None, dk=True, side=True)
    body(a, outl, 0, "D", "D", "D", "D", "end", dv=True, tail=["s_sub_u32 s63, s63, 1"])
    a("s_cmp_lg_u32 s63, 0")
    a(f"s_cbranch_scc1 {loop}")
    body(a, outl, 1, "D", "D", "D", "D", None, ("in", 0), dk=True, side=True)
    body(a, outl, 0, "D", "D", "D", "D", "end", ("in", 0), dv=True)
    a.label(dm3)
    body(a, outl, 1, "D3", "D", "D", "D", None, ("in", 1), dk=True, side=True)
    body(a, outl, 0, "D3", "D3", "D", "D", "end", ("in", 1), dv=True)
    if not when:
        stamp(a, 5)
    body(a, outl, 1, "S", "D3", "D3", "D", None, ("cond", 2), dk=True, side=False, remap=True)
    body(a, outl, 0, "S", "S", "D3", "S", "mid", ("cond", 3), dv=True, dk=True)
    if os.environ.get("LST"):
        stamp(a, 1)
    if when:
        oproj.early_loads(a)
    a.srd_off(24, 6, CTX_OFF, 16 << 20)
    for t in ctx_base(38) + l_final([0, 1]):
        a(t)
    n = 0
    for qb in range(2):
        for c in range(4):
            tx, st = out_ops(qb, c, Q + (n % 2) * 12, True)
            n += 1
            for t in tx + [st]:
                a(t)
    if os.environ.get("LST"):
        stamp(a, 2)
    if when:
        a("s_nop 1")
        oproj.early(a)
    if ffn:
        ffn.wdown_loads(a)
        a(ffn.seq_text(ffn.poison_seq("s31", "s40") + ffn.wdown_seq("s31", "s40", 44)))
    if os.environ.get("LST"):
        stamp(a, 3)
    loop, done = a.uid("k2_sloop"), a.uid("k2_sdone")
    a("s_lshl_b32 s63, s29, 1")
    a("s_sub_u32 s63, 13, s63")
    a(f"s_cbranch_scc1 {done}")
    a.label(loop)
    body(a, outl, 1, "S", "S", "S", "S", "mid", dv=True, dk=True)
    body(a, outl, 0, "S", "S", "S", "S", "mid", dv=True, dk=True, tail=["s_sub_u32 s63, s63, 1"])
    a("s_cmp_lg_u32 s63, 0")
    a(f"s_cbranch_scc1 {loop}")
    body(a, outl, 1, "S", "S", "S", "S", "mid0", ("in", 2), dv=True)
    body(a, outl, 0, "S1", "S", "S", "S", None, ("in", 3))
    a.label(done)
    body(a, outl, 1, None, "S1", "S", "S", "epi", extra=(lambda bar, n: oproj.e1_ops(a, when, bar, n)) if when else None)
    if next_code:
        a(f"v_lshrrev_b32 v{V_T}, 4, v{V_LANE16}")
        a(f"v_and_b32 v{V_T}, 31, v{V_T}")
        code_addr(a, next_code, TMP, V_T, 40)
        a(f"global_load_dword v{V_T2}, v[{TMP}:{TMP+1}], off")
    mf = pv_mfmas("S1", 1)
    mf = mf[:2] + [mf[2 + ks * 8 + db] for db in range(8) for ks in range(2)]
    ops = spread(ctx_base(39), "S", 0, 6)
    cb_last = ops[-1]
    lf = {2: spread(l_final([2]), "A", 0, 3), 3: spread(l_final([3]), "A", 8, 11)}
    ops += lf[2] + lf[3]
    ops.append(Op("s_waitcnt lgkmcnt(0)", "S", 1, lo=1, hard=1))
    prev = {}
    n = 0
    for qb in (2, 3):
        for c in range(4):
            t = 128 + (n % 4) * 12
            g0 = 3 + 4 * c if qb == 2 else 19 + c
            tx, st = out_ops(qb, c, t, qb == 3)
            o = spread(tx, "A", g0, g0 + (4 if qb == 2 else 1))
            o[0].after += [lf[qb][-1]] + prev.get(t, [])
            so = Op(st, "V", g0 + 4, after=[o[-1], cb_last])
            prev[t] = [so]
            ops += o + [so]
            n += 1
    if not when:
        stamp(a, 6)
    schedule(a, mf, ops)
    if when:
        stamp(a, 4)
        oproj.finish(a, when, ffn)
    tr_dump(a, 6, 30, V_LANE16)
    stamp_dump(a, kidx, 7, 6)
    a.label(end)
    a("s_endpgm")
    for o in outl:
        if o[0] == "prep":
            a.label(o[1])
            cin_prep(a, o[2], o[3])
            a(f"s_branch {o[4]}")
    for (sl, txt, ret) in stubs:
        a.label(sl)
        a(txt)
        a(f"s_branch {ret}")
    keys = {}
    for o in outl:
        if o[0] == "rare":
            lab = keys.setdefault(o[2], a.uid("k2_rare"))
            a.label(o[1])
            a(f"s_call_b64 s[40:41], {lab}")
            a(f"s_branch {o[3]}")
    for key, lab in keys.items():
        a.label(lab)
        rare_path(a, *key)
```

```python
from common import *
import common, os
from sched import Op, spread, schedule

SPIN_MAX = 1 << 20
R = 64
XO, WDM, WRD = R + 24, R + 26, R + 0
G, PO, PV_, Z, ONE = R + 8, R + 9, R + 10, R + 11, R + 12
STO, HO, WO, CA = R + 13, R + 14, R + 16, R + 18
DUM = R + 20
ACC, XE, WR, SA = 128, 192, 208, 208
XR = 128
FW = [0, 64]


def vq(b):
    return f"v[{b}:{b+3}]"


def aq(b):
    return f"a[{b}:{b+3}]"


def one_lane(text):
    return f"s_mov_b64 exec, 1\n{text}\ns_mov_b64 exec, -1"


def wdma(p):
    return (f"s_add_u32 m0, s60, {(p % 4)*16384}",
            [f"buffer_load_dwordx4 v{WDM+i}, s[12:15], s61 offen offset:{i*1024} lds" for i in range(4)],
            "s_add_u32 s61, s61, 0x20000\ns_and_b32 s61, s61, 0x3fffff")


def xloads(p):
    return (None, [f"buffer_load_dwordx4 {aq(XR + (p % 4)*16 + 8*ks + 4*tb)}, v{XO+ks}, s[8:11], s62 offen offset:{tb*1024} sc1" for ks in range(2) for tb in range(2)],
            "s_add_u32 s62, s62, 0x40000\ns_and_b32 s62, s62, 0x7fffff")


def early_loads(a):
    a(f"s_load_dwordx2 s[4:5], s[0:1], {ARG['wo']}")


def early(a):
    T0, T1, T2, LN = R + 20, R + 21, R + 22, R + 23
    a("s_lshr_b32 s31, s2, 3")
    a("s_bfe_u32 s56, s2, 0x10002")
    a("s_and_b32 s54, s2, 1")
    a("s_lshl_b32 s54, s54, 3")
    a("s_and_b32 s55, s31, 7")
    a("s_add_u32 s54, s54, s55")
    a("s_and_b32 s55, s2, 2")
    a("s_lshl_b32 s55, s55, 1")
    a("s_lshr_b32 s31, s31, 3")
    a("s_add_u32 s55, s55, s31")
    a(f"v_lshrrev_b32 v{LN}, 4, v1")
    a(f"v_lshrrev_b32 v{G}, 4, v{LN}")
    a("s_lshl_b32 s57, s54, 7")
    a("s_lshl_b32 s31, s30, 5")
    a("s_add_u32 s57, s57, s31")
    a("s_lshl_b32 s31, s57, 6")
    a(f"v_add_u32 v{XO}, s31, v1")
    a(f"v_add_u32 v{XO+1}, 0x20000, v{XO}")
    a(f"v_bfe_u32 v{T0}, v{LN}, 1, 3")
    a(f"v_xor_b32 v{T0}, v{T0}, v{G}")
    a(f"v_and_b32 v{T1}, 16, v1")
    a(f"v_lshl_add_u32 v{T1}, v{G}, 11, v{T1}")
    a("s_lshl_b32 s31, s30, 15")
    a("s_lshl_b32 s58, s55, 8")
    a("s_add_u32 s31, s31, s58")
    a(f"v_add_u32 v{T1}, s31, v{T1}")
    for i in range(4):
        a(f"v_xor_b32 v{T2}, {(i % 2) * 4}, v{T0}")
        a(f"v_lshl_add_u32 v{T2}, v{T2}, 5, v{T1}")
        a(f"v_add_u32 v{WDM+i}, {4*i*2048 - i*1024}, v{T2}")
        if os.environ.get("WLIN"):
            a("s_lshl_b32 s31, s55, 14")
            a("s_lshl_b32 s40, s30, 12")
            a("s_add_u32 s31, s31, s40")
            a(f"v_add_u32 v{WDM+i}, s31, v1")
    a(f"v_and_b32 v{T0}, 15, v{LN}")
    a(f"v_add_u32 v{T1}, s57, v{T0}")
    a(f"v_lshlrev_b32 v{STO}, 2, v{T1}")
    a(f"v_lshl_add_u32 v{STO}, v{G}, 13, v{STO}")
    a("s_lshl_b32 s31, s56, 7")
    a("s_add_u32 s58, s58, s31")
    a(f"v_lshl_add_u32 v{WO}, v{G}, 3, s58")
    a(f"v_lshl_add_u32 v{HO}, v{T1}, 11, v{WO}")
    a(f"v_add_u32 v{HO+1}, 0x8000, v{HO}")
    a(f"v_lshrrev_b32 v{T1}, 2, v{T0}")
    a(f"v_lshl_add_u32 v{T1}, v{G}, 2, v{T1}")
    a(f"v_and_b32 v{T0}, 7, v{T1}")
    a("s_lshl_b32 s31, s56, 2")
    a(f"v_xor_b32 v{T0}, s31, v{T0}")
    a(f"v_lshlrev_b32 v{T1}, 8, v{T1}")
    a(f"v_and_b32 v{T2}, 3, v{LN}")
    a(f"v_lshl_add_u32 v{T1}, v{T2}, 3, v{T1}")
    a("s_add_u32 s31, s2, 1")
    a("s_and_b32 s31, s31, 3")
    a(f"v_add_u32 v{PO}, s31, v{T2}")
    a(f"v_and_b32 v{PO}, 3, v{PO}")
    a(f"v_lshlrev_b32 v{PO}, 7, v{PO}")
    for j in range(8):
        a(f"v_xor_b32 v{T2}, {j}, v{T0}")
        a(f"v_lshl_add_u32 v{WRD+j}, v{T2}, 5, v{T1}")
    a("s_lshl_b32 s61, s31, 20")
    a("s_lshl_b32 s62, s31, 21")
    a("s_lshl_b32 s60, s30, 12")
    a("s_lshl_b32 s59, s54, 10")
    a("s_lshl_b32 s31, s56, 9")
    a("s_add_u32 s59, s59, s31")
    a("s_lshr_b32 s31, s28, 2")
    a("s_lshl_b32 s31, s31, 7")
    a("s_lshl_b32 s57, s29, 10")
    a("s_sub_u32 s58, 0x3c00, s57")
    a("s_add_u32 s57, s57, s31")
    a("s_add_u32 s58, s58, s31")
    a(f"v_mov_b32 v{Z}, 0")
    a(f"v_mov_b32 v{ONE}, 1")
    a("s_lshl_b32 s31, s56, 23")
    a(f"s_add_u32 s31, s31, 0x{CTX_OFF:x}")
    a("s_add_u32 s8, s6, s31")
    a("s_addc_u32 s9, s7, 0")
    a("s_and_b32 s9, s9, 0xffff")
    a("s_mov_b32 s10, 0x800000")
    a("s_lshl_b32 s31, s56, 22")
    a("s_waitcnt lgkmcnt(0)")
    a("s_add_u32 s12, s4, s31")
    a("s_addc_u32 s13, s5, 0")
    a("s_and_b32 s13, s13, 0xffff")
    a("s_mov_b32 s14, 0x400000")


POLL = f"buffer_load_dword v{PV_}, v{PO}, s[16:19], s59 offen sc1"


def e1_ops(a, when, bar, n):
    a.srd_off(16, 6, CTC_OFF, 16384)
    sig = when("s_cmp_eq_u32 s30, 0", one_lane(f"buffer_atomic_add v{ONE}, v{Z}, s[16:19], s57 offen sc1"), 1, after=[bar])
    ops, prev = [sig], [sig]
    k = 0
    for p in range(3):
        m, ld, tr = wdma(p)
        mo = Op(m, "S", 2 + 2.5 * k, after=prev)
        ops.append(mo)
        for t in ld:
            o = Op(t, "V", 3 + 2.5 * k, after=prev, prev_gap=[mo])
            ops.append(o)
            prev = [o]
            k += 1
        o = Op(tr, "S", 3 + 2.5 * k, after=prev)
        ops.append(o)
        prev = [o]
    ops.append(Op(POLL, "V", n - 1, after=prev))
    return ops


def spin(a, bit):
    lp, ok = a.uid("op_spin"), a.uid("op_ok")
    return "\n".join([f"s_mov_b32 s34, {SPIN_MAX}", f"{lp}:", POLL, "s_waitcnt vmcnt(0)", f"v_cmp_le_u32 vcc, 4, v{PV_}",
                      "s_sub_u32 s34, s34, 1", f"s_cbranch_scc1 {ok}", "s_mov_b32 s33, vcc_lo", f"s_bitcmp1_b32 s33, {bit}",
                      f"s_cbranch_scc1 {ok}", "s_sleep 4", f"s_branch {lp}", f"{ok}:"])


def finish(a, when, ffn=None):
    def now(g):
        for t in g[1] + [g[2]]:
            a(t)
    a.label("op_head")
    a(f"s_load_dwordx2 s[28:29], s[0:1], {ARG['x']}")
    a(f"s_load_dwordx2 s[42:43], s[0:1], {ARG['wr']}")
    late, join = a.uid("op_late"), a.uid("op_join")
    a("s_waitcnt vmcnt(8)")
    a(f"v_cmp_le_u32 vcc, 4, v{PV_}")
    zero_acc(a, ACC, 64, 56, "v")
    a("s_mov_b32 s33, vcc_lo")
    a("s_bitcmp1_b32 s33, 0")
    a(f"s_cbranch_scc0 {late}")
    for p in range(3):
        now(xloads(p))
    a("s_waitcnt vmcnt(12)")
    a(f"s_branch {join}")
    a.label(late)
    a("s_waitcnt vmcnt(0)")
    a.label(join)
    a("s_barrier")
    a(when("s_cmp_eq_u32 s30, 0", one_lane(f"buffer_atomic_add v{ONE}, v{Z}, s[16:19], s58 offen sc1"), 0).text)
    a(when("s_bitcmp0_b32 s33, 0", spin(a, 0) + "\n" + "\n".join("\n".join(xloads(p)[1] + [xloads(p)[2]]) for p in range(3)), 0).text)

    def wreads(p):
        out = []
        for ks in range(2):
            for cb in range(8):
                b = FW[p % 2] + (ks * 8 + cb) * 4
                off = (p % 4) * 16384 + ks * 8192
                out.append(f"ds_read_b64_tr_b16 a[{b}:{b+1}], v{WRD+cb} offset:{off}")
                out.append(f"ds_read_b64_tr_b16 a[{b+2}:{b+3}], v{WRD+cb} offset:{off + 4096}")
        return out

    def mf(p):
        out = []
        for cb in (4, 5, 6, 7, 0, 1, 2, 3):
            for tb in range(2):
                for ks in range(2):
                    c = vq(ACC + (cb * 2 + tb) * 4)
                    out.append(mfma16(c, aq(FW[p % 2] + (ks * 8 + cb) * 4), aq(XR + (p % 4) * 16 + 8 * ks + 4 * tb), c))
        return out

    for t in wreads(0):
        a(t)
    a.srd_off(24, 6, H_OFF, 4 << 20)
    a.srd_off(36, 6, XCH_OFF, 8 << 20)
    a.srd_off(48, 6, XFL_OFF, 32768)
    a("s_lshl_b32 s52, s2, 14")
    a("s_add_u32 s52, s52, s60")
    a("s_xor_b32 s53, s52, 0x10000")
    a("s_lshl_b32 s57, s2, 7")
    a("s_xor_b32 s58, s57, 0x200")
    a("v_lshrrev_b32 v56, 4, v1")
    a("s_lshl_b32 s31, s30, 6")
    if not ffn:
        a("s_add_u32 s31, s31, (op_tail2-op_tail)/128-64")
        a("s_cmp_eq_u32 s30, 0")
        a("s_cselect_b32 s31, 0, s31")
    else:
        a("s_and_b32 s31, s31, 64")
    a("v_add_u32 v56, s31, v56")
    a("s_mov_b32 s31, (code_end-op_tail)/128")
    a("v_min_u32 v56, s31, v56")
    code_addr(a, "op_tail", CA, 56, 40)
    if ffn:
        ffn.setup(a)
    a("s_mov_b32 s63, 0")
    a("s_waitcnt vmcnt(8) lgkmcnt(0)")
    a.srd(20, 28, 4 << 20)
    a.srd(44, 42, 2048)
    epi = []
    for tb in range(2):
        for cb in range(4):
            b = XE + (tb * 4 + cb) * 2
            epi.append(f"buffer_load_dwordx2 v[{b}:{b+1}], v{HO+tb}, s[20:23], 0 offen offset:{cb*32}")
    for cb in range(4):
        epi.append(f"buffer_load_dwordx2 v[{WR+2*cb}:{WR+2*cb+1}], v{WO}, s[44:47], 0 offen offset:{cb*32}")
    epi += [f"global_load_dword v{DUM}, v[{CA}:{CA+1}], off", "s_mov_b32 s10, 0", "s_mov_b32 s14, 0"]
    stamp(a, 5)
    loop = a.uid("op_loop")
    a.label(loop)
    for p in range(4):
        rd = spread(wreads(p + 1), "M", 0, 25)
        ops = list(rd)
        prev = []
        if p == 1:
            c1 = Op(f"v_cmp_le_u32 vcc, 4, v{PV_}", "A", 0)
            c2 = Op("s_add_u32 s32, s63, 1\ns_lshr_b32 s32, s32, 1", "S", 0)
            c3 = Op("s_or_b32 s33, vcc_lo, 16", "S", 3, after=[c1], prev_gap=[c1])
            gate = when("s_bitcmp0_b32 s33, s32", spin(a, "s32"), 6, after=[c2, c3])
            ops += [c1, c2, c3, gate]
        k = 0
        for (m, ld, tr) in (wdma(p + 3), xloads(p + 3)):
            mo = None
            if m:
                mo = Op(m, "S", 0)
                ops.append(mo)
            elif p == 1:
                prev = prev + [gate]
            for t in ld:
                o = Op(t, "V", 1 + 3.5 * k, after=prev, prev_gap=[mo] if mo else [])
                ops.append(o)
                prev = [o]
                k += 1
            ops.append(Op(tr, "S", 2 + 3.5 * k, after=prev))
        if ffn and ffn.THIN:
            T0 = int(os.environ.get("THIN0", "3"))
            if p == 0:
                wr = "s_mov_b32 s44, s42\ns_and_b32 s45, s43, 0xffff\ns_mov_b32 s46, 2048\n"
                ops.append(when("s_cmp_eq_u32 s63, 7", wr + "\n".join(epi), 29, lo=26, after=prev + rd))
                ops.append(when(f"s_cmp_eq_u32 s63, {T0 - 1}", ffn.POLL64, 25, after=prev))
            if p == 3:
                g1 = when(f"s_cmp_eq_u32 s63, {T0 - 1}", ffn.gate_text(a), 24, after=prev)
                ops.append(g1)
                prev = prev + [g1]
            th = when(f"s_sub_u32 s40, s63, {T0}\ns_cmp_lt_u32 s40, 4", ffn.THIN_TEXT, 27, after=prev)
            ops.append(th)
            prev = prev + [th]
            if p == 3:
                g2 = when(f"s_cmp_eq_u32 s63, {T0 + 1}", ffn.THIN_FLIP, 29, after=prev)
                ops.append(g2)
                prev = prev + [g2]
        elif p == 0:
            ops.append(when("s_cmp_eq_u32 s63, 7", "\n".join(epi) + ("\n" + ffn.gate_text(a) if ffn else ""), 29, lo=26, after=prev + rd))
        elif ffn:
            if p == 1:
                ops.append(when("s_cmp_eq_u32 s63, 6", ffn.POLL64, 27, after=prev))
        if p == 2:
            pl = Op(POLL, "V", 0.5)
            ops.append(pl)
            for o in ops:
                if o.cls == "V" and o is not pl and not [d for d in o.after if d.cls == "V"]:
                    o.after.append(pl)
        if p == 3:
            ops.append(Op("s_add_u32 s63, s63, 1", "S", 30, after=prev))
        ops.append(Op(f"s_waitcnt vmcnt(12) lgkmcnt(0)\ns_barrier", "S", 31, lo=31, hard=31, after=[o for o in ops if o.cls in "MVB"]))
        schedule(a, mf(p), ops)
    a("s_cmp_lt_u32 s63, 8")
    a(f"s_cbranch_scc1 {loop}")
    a.label("op_tail")
    stamp(a, 6)
    a("s_nop 1")
    for q in range(4):
        c = ACC + 32 + 8 * q
        for r in range(4):
            a(f"v_cvt_pk_bf16_f32 v{c+r}, v{c+2*r}, v{c+2*r+1}")
        if ffn:
            for r in range(4):
                a(f"v_min_u32 v{c+r}, -2, v{c+r}")
        a(f"buffer_store_dwordx4 {vq(c)}, v1, s[36:39], s52 offen offset:{q*1024} sc1")
    a.srd_off(32, 6, STATS_OFF, 3 * 8192)
    a("s_waitcnt vmcnt(4) lgkmcnt(0)")
    for cb in range(4):
        for tb in range(2):
            c, xb = ACC + (cb * 2 + tb) * 4, XE + (tb * 4 + cb) * 2
            for h in range(2):
                a(f"v_lshlrev_b32 v58, 16, v{xb+h}")
                a(f"v_and_b32 v59, 0xffff0000, v{xb+h}")
                a(f"v_pk_add_f32 v[{c+2*h}:{c+2*h+1}], v[{c+2*h}:{c+2*h+1}], v[58:59]")
    a(f"v_and_b32 v58, 1, v{G}")
    a(f"v_lshrrev_b32 v59, 1, v{G}")
    a("v_lshlrev_b32 v58, 5, v58")
    a("v_lshl_add_u32 v58, v59, 4, v58")
    a(f"v_lshlrev_b32 v59, 3, v{G}")
    a("v_sub_u32 v58, v58, v59")
    a(f"v_add_u32 v{HO}, v{HO}, v58")
    a(f"v_add_u32 v{HO+1}, v{HO+1}, v58")
    for i in range(8):
        a(f"v_lshlrev_b32 v{32+2*i}, 16, v{WR+i}")
        a(f"v_and_b32 v{33+2*i}, 0xffff0000, v{WR+i}")
    nw = a.uid("op_nowr")
    a("s_or_b32 s31, s54, s30")
    a(f"s_cbranch_scc1 {nw}")
    a("v_pk_add_f32 v[56:57], v[32:33], v[34:35]")
    for i in range(4, 16, 2):
        a(f"v_pk_add_f32 v[56:57], v[56:57], v[{32+i}:{33+i}]")
    a("v_add_f32 v56, v56, v57")
    for sw in ("v_permlane16_swap_b32", "v_permlane32_swap_b32"):
        a("v_mov_b32 v57, v56")
        a("s_nop 1")
        a(f"{sw} v56, v57")
        a("s_nop 1")
        a("v_add_f32 v56, v56, v57")
    a(f"s_mov_b32 s31, {WRSUM_OFF - STATS_OFF}")
    a(f"s_mov_b32 s34, {WRSUM_OFF - STATS_OFF + 4}")
    a(one_lane(f"buffer_atomic_add_f32 v56, v{Z}, s[32:35], s31 offen"))
    a(f"s_mov_b32 s34, {3 * 8192}")
    a.label(nw)
    for i in range(12):
        a(f"v_mov_b32 v{SA+i}, 0")
    XI = ACC + 32
    if ffn:
        XI = 224
        lp, ok = a.uid("op_xspin"), a.uid("op_xok")
        a(f"s_mov_b32 s40, {SPIN_MAX}")
        a.label(lp)
        for q in range(4):
            a(f"buffer_load_dwordx4 {vq(XI + 4*q)}, v1, s[36:39], s53 offen offset:{q*1024} sc1")
        a("s_sub_u32 s40, s40, 1")
        a("s_waitcnt vmcnt(0)")
        a(f"s_cbranch_scc1 {ok}")
        a(f"v_max3_u32 v56, v{XI}, v{XI+1}, v{XI+2}")
        for r in range(3, 15, 2):
            a(f"v_max3_u32 v56, v56, v{XI+r}, v{XI+r+1}")
        a(f"v_max_u32 v56, v56, v{XI+15}")
        a("v_cmp_eq_u32 vcc, -1, v56")
        a(f"s_cbranch_vccz {ok}")
        a("s_sleep 2")
        a(f"s_branch {lp}")
        a.label(ok)
    else:
        a("s_waitcnt vmcnt(0)")
        a("s_barrier")
        sk, lp = a.uid("op_nopoll"), a.uid("op_xspin")
        a("s_cmp_lg_u32 s30, 0")
        a(f"s_cbranch_scc1 {sk}")
        a(one_lane(f"buffer_store_dword v{ONE}, v{Z}, s[48:51], s57 offen sc1"))
        a(f"s_mov_b32 s40, {SPIN_MAX}")
        a.label(lp)
        a(f"buffer_load_dword v{DUM}, v{Z}, s[48:51], s58 offen sc1")
        a("s_waitcnt vmcnt(0)")
        a(f"v_readfirstlane_b32 s41, v{DUM}")
        a("s_sub_u32 s40, s40, 1")
        a("s_cselect_b32 s41, 1, s41")
        a("s_cmp_eq_u32 s41, 0")
        a(f"s_cbranch_scc1 {lp}")
        a.label(sk)
        a("s_barrier")
        for q in range(4):
            a(f"buffer_load_dwordx4 {vq(ACC + 32 + 4*q)}, v1, s[36:39], s53 offen offset:{q*1024} sc1")
    P2 = lambda r: f"v[{r}:{r+1}]"
    nst = 0
    for cb in range(4):
        if not ffn:
            a(f"s_waitcnt vmcnt({3 - cb + nst})")
        for tb in range(2):
            c = ACC + (cb * 2 + tb) * 4
            xb = XE + (tb * 4 + cb) * 2
            S = SA + tb * 6
            for h in range(2):
                src = XI + 4 * cb + 2 * tb + h
                a(f"v_lshlrev_b32 v{56+2*h}, 16, v{src}")
                a(f"v_and_b32 v{57+2*h}, 0xffff0000, v{src}")
            for h in range(2):
                a(f"v_pk_add_f32 {P2(c+2*h)}, {P2(c+2*h)}, {P2(56+2*h)}")
            for h in range(2):
                a(f"v_cvt_pk_bf16_f32 v{xb+h}, v{c+2*h}, v{c+2*h+1}")
            for h in range(2):
                a(f"v_lshlrev_b32 v{c+2*h}, 16, v{xb+h}")
                a(f"v_and_b32 v{c+2*h+1}, 0xffff0000, v{xb+h}")
            if cb % 2:
                a(f"v_permlane16_swap_b32 v{xb-2}, v{xb}")
                a(f"v_permlane16_swap_b32 v{xb-1}, v{xb+1}")
                a(f"buffer_store_dwordx4 {vq(xb-2)}, v{HO+tb}, s[24:27], 0 offen offset:{(cb//2)*64} sc1")
                nst += 1
            for h in range(2):
                a(f"v_pk_add_f32 {P2(S)}, {P2(S)}, {P2(c+2*h)}")
                a(f"v_pk_fma_f32 {P2(S+2)}, {P2(c+2*h)}, {P2(c+2*h)}, {P2(S+2)}")
                a(f"v_pk_fma_f32 {P2(S+4)}, {P2(c+2*h)}, {P2(32+cb*4+2*h)}, {P2(S+4)}")
    for tb in range(2):
        for k in range(3):
            a(f"v_add_f32 v{48+tb*4+k}, v{SA+tb*6+2*k}, v{SA+tb*6+2*k+1}")
    regs = [48, 49, 50, 52, 53, 54]
    for sw in ("v_permlane16_swap_b32", "v_permlane32_swap_b32"):
        for i, r in enumerate(regs):
            a(f"v_mov_b32 v{56+i}, v{r}")
        a("s_nop 1")
        for i, r in enumerate(regs):
            a(f"{sw} v{r}, v{56+i}")
        a("s_nop 1")
        for i, r in enumerate(regs):
            a(f"v_add_f32 v{r}, v{r}, v{56+i}")
    a(f"v_cmp_eq_u32 s[40:41], 1, v{G}")
    a(f"v_cmp_eq_u32 s[42:43], 2, v{G}")
    a("s_nop 1")
    for tb in range(2):
        b = 48 + tb * 4
        a(f"v_cndmask_b32 v{b}, v{b}, v{b+1}, s[40:41]")
        a(f"v_cndmask_b32 v{b}, v{b}, v{b+2}, s[42:43]")
        a(f"buffer_atomic_add_f32 v{b}, v{STO}, s[32:35], 0 offen offset:{tb*64}")
    if ffn:
        ffn.tail(a)
        return
    a("s_and_b32 s56, s2, 7")
    a("s_mul_i32 s56, s56, 28")
    a("s_lshr_b32 s31, s2, 3")
    a("s_add_u32 s56, s56, s31")
    a("s_lshl_b32 s56, s56, 15")
    a("s_lshl_b32 s57, s30, 13")
    a("s_add_u32 s56, s56, s57")
    a.srd_off(8, 6, RPK_OFF, 16 << 20)
    a("s_cmp_ge_u32 s2, 224")
    a("s_cselect_b32 s10, 0, s10")
    a("v_lshlrev_b32 v8, 3, v1")
    for m in range(int(os.environ.get("K3NPF", "1"))):
        a("buffer_load_dword v9, v8, s[8:11], s56 offen")
        a("s_add_u32 s56, s56, 0x800000")
```

```python
from common import *
from sched import Op, spread, schedule, resolve_lgkm
import common
import oproj
import math, struct

QSCALE = struct.unpack("<I", struct.pack("<f", math.log2(math.e) / math.sqrt(128.0)))[0]
THRESH = 0x40004000
REFBITS = 0x41400000

V_LANE16 = 1
V_K = 2
V_V = 3
V_VV = 4
V_NINF = 5
V_T = 6
V_T2 = 7
NEGM = 8
LQ = [12, 48, 248, 252]
ONES = 60
REF = 12.0
CIN = 16
DL = 52
V_C = 57
V_LANEV = 56
Q = 64
S = [128, 160]
P = [192, 208]
TMP = 224
V_PF = 228
V_PS = 229
V_PL = 230
A_R = 224
ET = 232
A_O = 0
A_K = 128
A_V = 192


LDF = ' sc1'
import os
CHAIN = int(os.environ.get('CHAIN', '1'))
VT = int(os.environ.get('VT', '4'))
import os
KN = set(os.environ.get("KN", "").split(","))


def vq(b):
    return f"v[{b}:{b+3}]"


def aq(b):
    return f"a[{b}:{b+3}]"


def slot_of(typ, kb, qb):
    if typ == "D":
        return kb * 4 + qb
    return (kb % 2) * 4 + (kb // 2) * 2 + (qb - 2)


def kind(t):
    return t[0]


def qbs_of(t):
    return {"D": [0, 1, 2, 3], "D3": [1, 2, 3], "S": [2, 3], "S1": [3]}[t]


def js_of(t):
    return qbs_of(t) if kind(t) == "D" else [ks * 2 + q - 2 for ks in range(2) for q in qbs_of(t)]


def qk_mfmas(typ, par, ko=0):
    out = []
    for kb in range(2 if kind(typ) == "D" else 4):
        for qb, c in ([(q, c) for q in qbs_of(typ) for c in range(4)] if CHAIN else [(q, c) for c in range(4) for q in qbs_of(typ)]):
            if True:
                sl = slot_of(kind(typ), kb, qb)
                d = vq(S[par] + 4 * sl)
                cc = vq(CIN + 4 * sl) if c == 0 else d
                out.append(mfma16(d, aq(A_K + ko + (kb * 4 + c) * 4), vq(Q + (qb * 4 + c) * 4), cc))
    return out


def pv_mfmas(typ, par):
    out = []
    for j in sorted(js_of(typ), key=lambda j: (j % 2, j) if kind(typ) == "S" else j):
        l = vq(LQ[j if kind(typ) == "D" else 2 + j % 2])
        out.append(mfma16(l, vq(ONES), vq(P[par] + 4 * j), l))
    for db in range(8):
        if kind(typ) == "D":
            seq = [(qb, 0) for qb in qbs_of(typ)]
        elif CHAIN:
            seq = [(qb, ks) for qb in qbs_of(typ) for ks in range(2)]
        else:
            seq = [(qb, ks) for ks in range(2) for qb in qbs_of(typ)]
        for qb, ks in seq:
            o = aq(A_O + (db * 4 + qb) * 4)
            j = qb if kind(typ) == "D" else ks * 2 + qb - 2
            f = db if kind(typ) == "D" else db * 2 + ks
            out.append(mfma16(o, aq(A_V + f * 4), vq(P[par] + 4 * j), o))
    return out


def sm_stream(par, js):
    ops = []
    for j in js:
        for half in range(2):
            sl = j + 4 * half
            for r in range(4):
                ops.append(f"v_exp_f32 v{ET+r}, v{S[par] + 4*sl + r}")
            ops.append("s_nop 0")
            for pr in range(2):
                ops.append(f"v_cvt_pk_bf16_f32 v{P[par] + 4*j + 2*half + pr}, v{ET+2*pr}, v{ET+2*pr+1}")
    return ops


def dma_group(mall=None):
    out = []
    if "nodma" in KN: return []
    for i in range(4):
        t = ""
        if i == 0:
            t = "s_mov_b32 m0, s34\ns_nop 0\n"
        out.append(t + f"buffer_load_dwordx4 v{V_LANE16}, s[16:19], s32 offen offset:{i*1024}{LDF} lds")
    for i in range(4):
        t = ""
        if i == 0:
            t = "s_mov_b32 m0, s35\ns_nop 0\n"
        out.append(t + f"buffer_load_dwordx4 v{V_LANE16}, s[20:23], s33 offen offset:{i*1024}{LDF} lds")
    if mall:
        l = mall.uid("k2_mpf")
        out.append(f"s_add_u32 s61, s61, 1\ns_and_b32 s31, s61, 3\ns_cbranch_scc1 {l}\n"
                   f"buffer_load_dword v{V_T2}, v{V_PF}, s[12:15], s62 offen\ns_add_u32 s62, s62, 0x2000\n{l}:")
    out.append("s_add_u32 s32, s32, 0x80000\ns_add_u32 s33, s33, 0x80000\n"
               "s_add_u32 s34, s34, 0x4000\ns_and_b32 s34, s34, 0xffff\n"
               "s_add_u32 s35, s35, 0x4000\ns_and_b32 s35, s35, 0xffff\ns_or_b32 s35, s35, 0x10000")
    return out


def prep_texts(k, qb):
    sc = f"s_sub_u32 s40, s36, s{38 if qb < 2 else 39}" + ("\ns_sub_u32 s40, s40, 64" if qb % 2 else "")
    v0 = f"v_subrev_u32 v{V_T}, s40, v{V_VV}"
    tiles = []
    for kb in range(2 if k == "D" else 4):
        cm = [f"v_cmp_gt_i32 s[{44+2*r}:{45+2*r}], {16*kb + r}, v{V_T}" for r in range(4)]
        cn = [f"v_cndmask_b32 v{CIN + 4*slot_of(k, kb, qb) + r}, v{NEGM+qb}, v{V_NINF}, s[{44+2*r}:{45+2*r}]" for r in range(4)]
        tiles.append((cm, cn))
    return sc, v0, tiles


def cin_prep(a, k, qb):
    sc, v0, tiles = prep_texts(k, qb)
    a(sc)
    a(v0)
    for cm, cn in tiles:
        for t in cm + cn:
            a(t)
    a("s_nop 1")


def prep_ops(k, qb, lo, hi):
    sc, v0, tiles = prep_texts(k, qb)
    o = spread([v0] + [t for cm, cn in tiles for t in cm + cn], "A", lo + 1, hi)
    so = Op(sc, "S", lo, lo=lo)
    o[0].after.append(so)
    o[-1].hard = hi
    return [so] + o


def row_max(a, typ, par, clamp0):
    qbs = qbs_of(typ)
    for qb in qbs:
        sls = [slot_of(kind(typ), kb, qb) for kb in range(2 if kind(typ) == "D" else 4)]
        rs = [S[par] + 4 * sl + r for sl in sls for r in range(4)]
        d = DL + qb
        a(f"v_max_f32 v{d}, v{rs[0]}, v{rs[1]}")
        for i in range(2, len(rs), 2):
            a(f"v_max3_f32 v{d}, v{d}, v{rs[i]}, v{rs[i+1]}")
    for sw in ("v_permlane16_swap_b32", "v_permlane32_swap_b32"):
        for qb in qbs:
            a(f"v_mov_b32 v{TMP+qb}, v{DL+qb}")
        a("s_nop 1")
        for qb in qbs:
            a(f"{sw} v{DL+qb}, v{TMP+qb}")
        a("s_nop 1")
        for qb in qbs:
            a(f"v_max_f32 v{DL+qb}, v{DL+qb}, v{TMP+qb}")
    for qb in qbs:
        a(f"v_add_f32 v{DL+qb}, 0x{REFBITS:x}, v{DL+qb}")
        if clamp0:
            a(f"v_max_f32 v{DL+qb}, 0, v{DL+qb}")


def qb_of_slot(typ, sl):
    return sl % 4 if typ == "D" else 2 + (sl % 2)


def rare_path(a, sm_typ, qk_k, par):
    a("s_nop 7")
    row_max(a, sm_typ, par, True)
    qbs = qbs_of(sm_typ)
    for sl in range(8):
        q = qb_of_slot(kind(sm_typ), sl)
        if q in qbs:
            for r in range(4):
                x = S[par] + 4 * sl + r
                a(f"v_sub_f32 v{x}, v{x}, v{DL + q}")
    if qk_k is not None:
        for sl in range(8):
            q = qb_of_slot(qk_k, sl)
            if q in qbs:
                for r in range(4):
                    x = S[1 - par] + 4 * sl + r
                    a(f"v_sub_f32 v{x}, v{x}, v{DL + q}")
                    x = CIN + 4 * sl + r
                    a(f"v_sub_f32 v{x}, v{x}, v{DL + q}")
    for qb in qbs:
        a(f"v_sub_f32 v{NEGM+qb}, v{NEGM+qb}, v{DL+qb}")
        a(f"v_exp_f32 v{DL+qb}, -v{DL+qb}")
    a("s_nop 0")
    for qb in qbs:
        a(f"v_mul_f32 v{LQ[qb]}, v{LQ[qb]}, v{DL+qb}")
    for db in range(8):
        for qb in qbs:
            o = A_O + (db * 4 + qb) * 4
            for r in range(4):
                a(f"v_accvgpr_read_b32 v{TMP+r}, a{o+r}")
            for r in range(4):
                a(f"v_mul_f32 v{TMP+r}, v{TMP+r}, v{DL+qb}")
            for r in range(4):
                a(f"v_accvgpr_write_b32 a{o+r}, v{TMP+r}")
    for t in sm_stream(par, js_of(sm_typ)):
        a(t)
    a("s_nop 3")
    a("s_setpc_b64 s[40:41]")


def sm_ops(par, js, lo, hi, sub=False):
    ops, cvts, regs = [], [], []
    users = {}
    chk = None
    tot = 4 * len(js)
    step = (hi - lo) / float(tot)
    n = 0
    for j in js:
        for half in range(2):
            sl = j + 4 * half
            for pr in range(2):
                t = ET + (n % 8) * 2
                w = lo + step * n
                s0 = S[par] + 4 * sl + 2 * pr
                war = users.get(t, [])
                sb = []
                if sub:
                    sb = [Op(f"v_sub_f32 v{s0+k}, v{s0+k}, v{DL+j}", "A", w - step) for k in range(2)]
                    ops += sb
                e0 = Op(f"v_exp_f32 v{t}, v{s0}", "E", w, after=war + sb)
                e1 = Op(f"v_exp_f32 v{t+1}, v{s0+1}", "E", w + step / 2, after=war + sb)
                pr_ = P[par] + 4 * j + 2 * half + pr
                cv = Op(f"v_cvt_pk_bf16_f32 v{pr_}, v{t}, v{t+1}", "A", w + step * 1.1, after=[e0, e1])
                users[t] = [cv]
                ops += [e0, e1, cv]
                cvts.append(cv)
                regs.append(pr_)
                if n == 2:
                    chk = Op(f"v_or3_b32 v{V_C}, v{regs[0]}, v{regs[1]}, v{regs[2]}", "A", w + step * 1.6, after=cvts[-3:])
                    ops.append(chk)
                elif n > 2 and n % 2 == 0:
                    chk = Op(f"v_or3_b32 v{V_C}, v{V_C}, v{regs[-2]}, v{regs[-1]}", "A", w + step * 1.6, after=cvts[-2:] + [chk])
                    ops.append(chk)
                elif n == tot - 1:
                    chk = Op(f"v_bitop3_b32 v{V_C}, v{V_C}, v{regs[-1]}, s37 bitop3:0xa8", "A", w + step * 1.4, after=[cv, chk])
                    ops.append(chk)
                n += 1
    return ops, chk, cvts


def nfr(typ):
    return 8 if typ[0] == "D" else 16


def rd_text(which, i, typ="D"):
    base, va = (A_K, V_K) if which == "K" else (A_V, V_V)
    off = i * 1024 if (which == "K" or kind(typ) == "D") else (i % 2) * 8192 + (i // 2) * 1024
    return f"ds_read_b128 {aq(base + 4*i)}, v{va} offset:{off}"


def ptr_ops(typ, which, lo, want, after):
    va, sp, lane = (V_K, 52, V_LANE16) if which == "K" else (V_V, 53, V_LANEV)
    s1 = Op(f"s_add_u32 s{sp}, s{sp}, {nfr(typ)*1024}", "S", lo + 1, lo=lo)
    s2 = Op(f"s_and_b32 s{sp}, s{sp}, 0xffff", "S", lo + 3, lo=lo, after=[s1])
    up = Op(f"v_add_u32 v{va}, s{sp}, v{lane}", "A", want, after=list(after) + [s2])
    return [s1, s2, up]


def dma_ops(h, lo, hi, after):
    srd, so, lp = (("s[16:19]", 32, 34), ("s[20:23]", 33, 35))[h]
    step = (hi - lo - 1) / 4.0
    m = Op(f"s_mov_b32 m0, s{lp}", "S", lo, lo=lo, after=after)
    ops = [m]
    last = None
    for i in range(4):
        v = Op(f"buffer_load_dwordx4 v{V_LANE16}, {srd}, s{so} offen offset:{i*1024}{LDF} lds", "V", lo + 1 + step * i, lo=lo,
               after=[last] if last else [], prev_gap=[m], hard=hi - 1)
        ops.append(v)
        last = v
    b = [Op(f"s_add_u32 s{so}, s{so}, 0x80000", "S", lo + 2 + step * 3, after=[last])]
    b.append(Op(f"s_add_u32 s{lp}, s{lp}, 0x4000", "S", lo + step, after=[m]))
    b.append(Op(f"s_and_b32 s{lp}, s{lp}, 0xffff", "S", lo + step * 2, after=[b[-1]]))
    if h:
        b.append(Op(f"s_or_b32 s{lp}, s{lp}, 0x10000", "S", lo + step * 2.5, after=[b[-1]]))
    return ops + b, last


def side_ops(lo, hi, load=True):
    step = (hi - lo) / (5.0 if load else 2.0)
    ops = spread([f"buffer_store_dwordx4 {aq(A_R + 4*i)}, v{V_PS}, s[8:11], s58 offen offset:{i*256} sc1" for i in range(2)], "V", lo, lo + 2 * step)
    if not load:
        return ops, ops[-1]
    sa = spread(["s_and_b32 s60, s62, 31", "s_lshr_b32 s61, s62, 5", f"s_mul_i32 s57, s60, {32*7168}", "s_lshl_b32 s4, s61, 7", "s_add_u32 s57, s57, s4",
                 f"s_add_u32 s56, s57, {8*7168}", "s_add_u32 s62, s62, 1"], "S", lo - 12, lo + step)
    sb = spread(["s_lshl_b32 s58, s61, 17", "s_lshl_b32 s60, s60, 10", "s_add_u32 s58, s58, s60", "s_mov_b32 s10, s59"], "S", lo + 2 * step, lo + 4 * step)
    sb[0].after += [ops[-1], sa[-1]]
    ld = spread([f"buffer_load_dwordx4 {aq(A_R)}, v{V_PF}, s[12:15], s57 offen", f"buffer_load_dwordx4 {aq(A_R + 4)}, v{V_PF}, s[12:15], s56 offen",
                 f"buffer_load_dword v{V_T2}, v{V_PL}, s[24:27], s54 offen"], "V", lo + 2 * step, hi)
    ld[0].after += [ops[-1], sa[-1]]
    return ops + sa + sb + ld + [Op("s_add_u32 s54, s54, 4096", "S", hi, after=ld[-1:])], ld[-1]


LEAD = 19
KL = int(os.environ.get('KL', '0'))


def body(a, outl, u_par, qk, sm, pv, vread, sync, prep=None, dk=False, dv=False, tail=(), first=False, side=None, remap=False, extra=None):
    par = u_par
    mp = pv_mfmas(pv, 1 - par) if pv else []
    mf = mp + (qk_mfmas(qk, 1 - par, 32 if first else 0) if qk else [])
    n1, n = len(mp), len(mf)
    ops, pre = [], []
    carried = []
    chain = []
    vup = None

    def uses(base, i):
        g = [k for k, t in enumerate(mf) if f", {aq(base + 4*i)}," in t]
        return g[0], g[-1]

    def add_reads(which, idxs, wants, los, extra=(), typ="D"):
        out = []
        for i, w, lo in zip(idxs, wants, los):
            o = Op(rd_text(which, i, typ), "M", max(w, lo), lo=lo, after=(chain[-1:] + list(extra)))
            chain.append(o)
            out.append(o)
        return out

    def waits(base, m, rds):
        for i in range(0, m, 2):
            g = uses(base, i)[0] - 1
            need = [rds[j] for j in (i, i + 1) if rds.get(j) is not None]
            for r in need:
                r.hard = max(0, g - 4)
            ops.append(Op(f"@LGKM {base + 4*(i+1)}", "S", g, lo=g, hard=g, after=need))

    bar = None
    dlast = []
    if dv:
        o, l = dma_ops(1, 1, n1 - 1 if sync in ("mid", "mid0") else n - 4, [])
        ops += o
        dlast.append(l)
    if sync == "mid":
        bar = Op("s_waitcnt vmcnt(12)\ns_barrier", "S", n1, lo=n1, hard=n1, after=dlast)
    elif sync == "end":
        bar = Op(f"s_waitcnt vmcnt({8 if first else 13})\ns_barrier", "S", n - 1, lo=n - 1, hard=n - 1, after=dlast)
    elif sync == "mid0":
        bar = Op("s_waitcnt vmcnt(4)\ns_barrier", "S", n1, lo=n1, hard=n1, after=dlast)
    elif sync == "epi":
        bar = Op("s_waitcnt vmcnt(0)\ns_barrier", "S", 0, lo=0, hard=0)
    if first:
        po = first["poll"]()
        ga = first["gate"](lo=n - 3, hard=n - 2, after=[po])
        ops += [po, ga]
        bar.after.append(ga)
    if bar:
        ops.append(bar)
    if dk:
        if sync == "mid":
            o, l = dma_ops(0, n1 + 1, n - 1, [bar])
        else:
            o, l = dma_ops(0, 1, 24, [])
        ops += o
        if side is not None:
            w = Op("s_waitcnt vmcnt(8)", "S", 24, lo=24, after=[l])
            o, _ = side_ops(25, n - 3, side)
            o[0].after.append(w)
            ops += [w] + o
    if pv:
        m = nfr(pv)
        mt = m // 2
        carried = [A_V + 4 * i for i in range(mt)]
        idx = list(range(mt, m))
        r = add_reads("V", idx, [uses(A_V, mt)[0] + (n1 - uses(A_V, mt)[0]) * (i - mt) / len(idx) - LEAD for i in idx], [0] * len(idx), typ=pv)
        po = ptr_ops(pv, "V", 2, r[-1].want + 3, r[-1:])
        vup = po[-1]
        ops += r + po
        waits(A_V, m, dict(zip(idx, r)))
    if qk:
        m = nfr(qk)
        if pv:
            idx = list(range(m))
            r = add_reads("K", idx, [n1 + (n - n1) * i / m - LEAD - (KL if CHAIN else 0) for i in idx], [0] * m)
            ops += r + ptr_ops(qk, "K", n1 + 6, r[-1].want + 3, r[-1:])
            waits(A_K, m, dict(zip(idx, r)))
        elif not first:
            pre.append("s_waitcnt lgkmcnt(0)")
        rm = []
        if remap:
            rm = spread([f"v_mov_b32 v{CIN + 4*sl + r}, v{NEGM + 2 + sl % 2}" for sl in (0, 1, 4, 5) for r in range(4)], "A", 4, n1 - 8)
            rm[-1].hard = n1 - 5
            ops += rm
        if prep and prep[0] == "in":
            ops += prep_ops(kind(qk), prep[1], 4, n1 - 3)
        elif prep:
            pl, pr = a.uid("k2_prep"), a.uid("k2_prepret")
            t = f"s_cmp_ge_u32 s36, s{42 if kind(qk) == 'D' else 43}\ns_cbranch_scc1 {pl}\n{pr}:"
            outl.append(("prep", pl, kind(qk), prep[1], pr))
            if pv:
                ops.append(Op(t, "B", n1 - 4, lo=4, hard=n1 - 3, after=rm[-1:]))
            else:
                pre.append(t)
        ops.append(Op(f"s_add_u32 s36, s36, {32 if kind(qk) == 'D' else 64}", "S", n1 + 4, lo=n1))
    if vread:
        m = nfr(vread)
        ex = ([vup] if vup else []) + ([bar] if sync in ("mid", "mid0", "epi") else [])
        idx = list(range(m // 2 if qk else m))
        free = [(uses(A_V, i)[1] + 1) if (pv and i < nfr(pv)) else 0 for i in idx]
        if qk:
            ops += add_reads("V", idx, [n + 4 + i * (32 // m) - LEAD - 2 for i in idx], free, ex, typ=vread)
        else:
            ops += add_reads("V", idx, [18 + i for i in idx], free, ex, typ=vread)
    if sm:
        so, chk, cvts = sm_ops(par, js_of(sm), 1 if first else 0, n - 4, sub=bool(first))
        ops += so
        rl, ret = a.uid("k2_tramp"), a.uid("k2_ret")
        c3 = Op(f"v_cmp_ne_u32 vcc, 0, v{V_C}", "A", n - 2, after=[chk])
        c4 = Op(f"s_cbranch_vccnz {rl}\n{ret}:", "B", n + 99, lo=n, after=[c3] + cvts)
        ops += [c3, c4]
        outl.append(("rare", rl, (sm, kind(qk) if qk else None, par), ret))
    for t in tail:
        ops.append(Op(t, "S", n - 8))
    if extra:
        ops += extra(bar, n)
    start = len(a.lines)
    for t in pre:
        a(t)
    schedule(a, mf, ops)
    resolve_lgkm(a.lines, start, carried)


def kv_first():
    out = ["s_mov_b32 s32, s60", "s_mov_b32 s34, s60", "s_mov_b32 s33, s60", "s_add_u32 s35, s60, 0x10000"]
    return out


def out_ops(qb, c, t, pk):
    tx = []
    for hh in range(2):
        o = A_O + ((2 * c + hh) * 4 + qb) * 4
        tx += [f"v_accvgpr_read_b32 v{t+4+hh*4+r}, a{o+r}" for r in range(4)]
    if pk:
        tx += [f"v_pk_mul_f32 v[{t+4+r}:{t+5+r}], v[{t+4+r}:{t+5+r}], v[{LQ[qb]}:{LQ[qb]+1}]" for r in range(0, 8, 2)]
    else:
        tx += [f"v_mul_f32 v{t+4+r}, v{t+4+r}, v{LQ[qb]}" for r in range(8)]
    tx += [f"v_cvt_pk_bf16_f32 v{t+r}, v{t+4+2*r}, v{t+5+2*r}" for r in range(4)]
    st = f"buffer_store_dwordx4 v[{t}:{t+3}], v{V_LANE16}, s[24:27], s{44+c+4*(qb%2)} offen sc1"
    return tx, st


def l_final(qbs):
    tx = []
    for sw in ("v_permlane16_swap_b32", "v_permlane32_swap_b32"):
        tx += [f"v_mov_b32 v{LQ[q]+1}, v{LQ[q]}" for q in qbs] + ["s_nop 1"]
        tx += [f"{sw} v{LQ[q]}, v{LQ[q]+1}" for q in qbs] + ["s_nop 1"]
        tx += [f"v_add_f32 v{LQ[q]}, v{LQ[q]}, v{LQ[q]+1}" for q in qbs]
    tx += [f"v_rcp_f32 v{LQ[q]+1}, v{LQ[q]}" for q in qbs] + [f"v_rcp_f32 v{LQ[q]}, v{LQ[q]}" for q in qbs] + ["s_nop 0"]
    return tx


def ctx_base(srow):
    return ["s_lshl_b32 s31, s28, 19", f"s_lshl_b32 s44, s{srow}, 6", "s_add_u32 s44, s44, s31"] + \
           [f"s_add_u32 s{44+c}, s44, {(c%4)*0x20000 + (c//4)*4096}" for c in range(1, 8)]


def attention_phase(a, end, kidx, qsrc, late, stubs=(), next_code=None, when=None, ffn=None):
    a(f"s_load_dwordx2 s[44:45], s[0:1], {ARG['wo']}")
    a(f"s_load_dwordx2 s[46:47], s[0:1], {ARG['wg']}")
    a(f"s_load_dwordx4 s[48:51], s[0:1], {ARG['wu']}")
    a(f"s_mov_b32 s40, 0x{QSCALE:x}")
    a(f"s_mov_b32 s41, 0x{QSCALE:x}")
    for t in dma_group():
        a(t)
    a(f"v_mov_b32 v{V_K}, v{V_LANE16}")
    a(f"v_or_b32 v{V_V}, 0x10000, v{V_LANE16}")
    a(f"v_mov_b32 v{V_LANEV}, v{V_V}")
    a("s_mov_b32 s52, 0x4000")
    a("s_mov_b32 s53, 0")
    a("s_lshl_b32 s62, s28, 6")
    a("s_mul_i32 s31, s29, s29")
    a("s_add_u32 s62, s62, s31")
    a("s_lshr_b32 s31, s30, 1")
    a("s_lshl_b32 s4, s31, 23")
    a(f"s_add_u32 s4, s4, 0x{RPK_OFF:x}")
    a("s_add_u32 s8, s6, s4")
    a("s_addc_u32 s9, s7, 0")
    a("s_and_b32 s9, s9, 0xffff")
    a("s_mov_b32 s10, 0")
    a("s_mov_b32 s58, 0")
    a("s_mov_b32 s14, 0x700000")
    a("s_mov_b32 s59, 0x700000")
    a("s_lshl_b32 s54, s62, 12")
    a("s_waitcnt vmcnt(16) lgkmcnt(0)")
    a("s_barrier")
    a(late["sig"])
    a("v_mov_b32 v59, 0")
    for i in range(16):
        a(rd_text("K", i))
    a("s_cmp_lt_u32 s30, 2")
    a("s_cselect_b64 s[12:13], s[46:47], s[48:49]")
    a("s_cselect_b64 s[60:61], s[44:45], s[50:51]")
    a("s_cselect_b32 s55, 0x800000, s14")
    a("s_and_b32 s13, s13, 0xffff")
    for qb in (2, 3, 0, 1):
        for c in range(4):
            for hh in range(2):
                kind, x = qsrc(2 * c + hh, qb)
                if kind == "a":
                    y = 128 + (c % 2) * 8 + hh * 4
                    for r in range(4):
                        a(f"v_accvgpr_read_b32 v{y+r}, a{x+r}")
                    x = y
                a(f"v_pk_mul_f32 v[{x}:{x+1}], v[{x}:{x+1}], s[40:41]")
                a(f"v_pk_mul_f32 v[{x+2}:{x+3}], v[{x+2}:{x+3}], s[40:41]")
                d = Q + (qb * 4 + c) * 4 + 2 * hh
                a(f"v_cvt_pk_bf16_f32 v{d}, v{x}, v{x+1}")
                a(f"v_cvt_pk_bf16_f32 v{d+1}, v{x+2}, v{x+3}")
    a(f"v_add_u32 v{V_K}, 0x4000, v{V_LANE16}")
    for i in range(4):
        a(f"v_mov_b32 v{NEGM+i}, 0")
        a(f"v_mov_b32 v{ET+i}, 0")
    a("s_mov_b32 s36, 0")
    a(f"s_mov_b32 s37, 0x{THRESH:x}")
    zero_acc(a, CIN, 32, ET, "v", init=False)
    a(f"v_and_b32 v{V_T}, 0xf0, v{V_LANE16}")
    a(f"v_cmp_eq_u32 vcc, 0, v{V_T}")
    a(f"v_mov_b32 v{V_T}, 0x3f803f80")
    a(f"v_lshrrev_b32 v{V_PS}, 7, v{V_LANE16}")
    a("s_and_b32 s4, s30, 1")
    a("s_lshl_b32 s31, s4, 11")
    a(f"v_lshl_add_u32 v{V_PL}, v{V_LANE16}, 1, s31")
    a(f"v_lshl_add_u32 v{V_PS}, s4, 4, v{V_PS}")
    a(f"v_mul_u32_u24 v{V_PF}, 7168, v{V_PS}")
    a(f"v_and_b32 v{V_T2}, 0x70, v{V_LANE16}")
    a(f"v_add_u32 v{V_PF}, v{V_PF}, v{V_T2}")
    a(f"v_lshlrev_b32 v{V_PS}, 5, v{V_PS}")
    a(f"v_and_b32 v{V_C}, 0x10, v{V_LANE16}")
    a(f"v_add_u32 v{V_PS}, v{V_PS}, v{V_C}")
    a(f"v_lshrrev_b32 v{V_T2}, 5, v{V_T2}")
    a(f"v_lshl_add_u32 v{V_PS}, v{V_T2}, 15, v{V_PS}")
    for r in range(4):
        a(f"v_cndmask_b32 v{ONES+r}, 0, v{V_T}, vcc")
    for i in range(4):
        for r in range(4):
            a(f"v_mov_b32 v{LQ[i]+r}, 0")
    if not when:
        stamp(a, 4)
    outl = []
    body(a, outl, 1, "D", None, None, None, None, ("cond", 0))
    zero_acc(a, 0, 128, ET, init=False)
    row_max(a, "D", 0, False)
    for sl in range(8):
        for r in range(4):
            a(f"v_sub_f32 v{CIN+4*sl+r}, 0, v{DL + sl % 4}")
    for qb in range(4):
        a(f"v_sub_f32 v{NEGM+qb}, 0, v{DL+qb}")
    body(a, outl, 0, "D", "D", None, "D", "end", ("cond", 0), first=late)
    a("s_mov_b32 s24, s60")
    a("s_and_b32 s25, s61, 0xffff")
    a("s_mov_b32 s26, s55")
    loop, dm3 = a.uid("k2_dloop"), a.uid("k2_dm3")
    a("s_lshl_b32 s63, s29, 1")
    a("s_sub_u32 s63, s63, 1")
    a(f"s_cbranch_scc1 {dm3}")
    a.label(loop)
    body(a, outl, 1, "D", "D", "D", "D", None, dk=True, side=True)
    body(a, outl, 0, "D", "D", "D", "D", "end", dv=True, tail=["s_sub_u32 s63, s63, 1"])
    a("s_cmp_lg_u32 s63, 0")
    a(f"s_cbranch_scc1 {loop}")
    body(a, outl, 1, "D", "D", "D", "D", None, ("in", 0), dk=True, side=True)
    body(a, outl, 0, "D", "D", "D", "D", "end", ("in", 0), dv=True)
    a.label(dm3)
    body(a, outl, 1, "D3", "D", "D", "D", None, ("in", 1), dk=True, side=True)
    body(a, outl, 0, "D3", "D3", "D", "D", "end", ("in", 1), dv=True)
    if not when:
        stamp(a, 5)
    body(a, outl, 1, "S", "D3", "D3", "D", None, ("cond", 2), dk=True, side=False, remap=True)
    body(a, outl, 0, "S", "S", "D3", "S", "mid", ("cond", 3), dv=True, dk=True)
    if os.environ.get("LST"):
        stamp(a, 1)
    if when:
        oproj.early_loads(a)
    a.srd_off(24, 6, CTX_OFF, 16 << 20)
    for t in ctx_base(38) + l_final([0, 1]):
        a(t)
    n = 0
    for qb in range(2):
        for c in range(4):
            tx, st = out_ops(qb, c, Q + (n % 2) * 12, True)
            n += 1
            for t in tx + [st]:
                a(t)
    if os.environ.get("LST"):
        stamp(a, 2)
    if when:
        a("s_nop 1")
        oproj.early(a)
    if ffn:
        ffn.wdown_loads(a)
        a(ffn.seq_text(ffn.poison_seq("s31", "s40") + ffn.wdown_seq("s31", "s40", 44)))
    if os.environ.get("LST"):
        stamp(a, 3)
    loop, done = a.uid("k2_sloop"), a.uid("k2_sdone")
    a("s_lshl_b32 s63, s29, 1")
    a("s_sub_u32 s63, 13, s63")
    a(f"s_cbranch_scc1 {done}")
    a.label(loop)
    body(a, outl, 1, "S", "S", "S", "S", "mid", dv=True, dk=True)
    body(a, outl, 0, "S", "S", "S", "S", "mid", dv=True, dk=True, tail=["s_sub_u32 s63, s63, 1"])
    a("s_cmp_lg_u32 s63, 0")
    a(f"s_cbranch_scc1 {loop}")
    body(a, outl, 1, "S", "S", "S", "S", "mid0", ("in", 2), dv=True)
    body(a, outl, 0, "S1", "S", "S", "S", None, ("in", 3))
    a.label(done)
    body(a, outl, 1, None, "S1", "S", "S", "epi", extra=(lambda bar, n: oproj.e1_ops(a, when, bar, n)) if when else None)
    if next_code:
        a(f"v_lshrrev_b32 v{V_T}, 4, v{V_LANE16}")
        a(f"v_and_b32 v{V_T}, 31, v{V_T}")
        code_addr(a, next_code, TMP, V_T, 40)
        a(f"global_load_dword v{V_T2}, v[{TMP}:{TMP+1}], off")
    mf = pv_mfmas("S1", 1)
    ops = spread(ctx_base(39), "S", 0, 6)
    cb_last = ops[-1]
    lf = {2: spread(l_final([2]), "A", 0, 3), 3: spread(l_final([3]), "A", 8, 11)}
    ops += lf[2] + lf[3]
    ops.append(Op("s_waitcnt lgkmcnt(0)", "S", 1, lo=1, hard=1))
    prev = {}
    n = 0
    for qb in (2, 3):
        for c in range(4):
            t = 128 + (n % 4) * 12
            g0 = 3 + 4 * c if qb == 2 else 19 + c
            tx, st = out_ops(qb, c, t, qb == 3)
            o = spread(tx, "A", g0, g0 + (4 if qb == 2 else 1))
            o[0].after += [lf[qb][-1]] + prev.get(t, [])
            so = Op(st, "V", g0 + 4, after=[o[-1], cb_last])
            prev[t] = [so]
            ops += o + [so]
            n += 1
    if not when:
        stamp(a, 6)
    schedule(a, mf, ops)
    if when:
        stamp(a, 4)
        oproj.finish(a, when, ffn)
    tr_dump(a, 6, 30, V_LANE16)
    stamp_dump(a, kidx, 7, 6)
    a.label(end)
    a("s_endpgm")
    for o in outl:
        if o[0] == "prep":
            a.label(o[1])
            cin_prep(a, o[2], o[3])
            a(f"s_branch {o[4]}")
    for (sl, txt, ret) in stubs:
        a.label(sl)
        a(txt)
        a(f"s_branch {ret}")
    keys = {}
    for o in outl:
        if o[0] == "rare":
            lab = keys.setdefault(o[2], a.uid("k2_rare"))
            a.label(o[1])
            a(f"s_call_b64 s[40:41], {lab}")
            a(f"s_branch {o[3]}")
    for key, lab in keys.items():
        a.label(lab)
        rare_path(a, *key)
```

```python
from common import *
import common, os
import oproj
from oproj import Z, ONE, one_lane

NSL = 224
SPIN_MAX = 1 << 20
GL = 65536
DL_ = 131072
XL = 4096
MISC = XL + 4096
P64, PV64 = 94, 95
NEARLY = int(os.environ.get("FNE", "0"))
POLL64 = f"buffer_load_dword v{PV64}, v{P64}, s[16:19], 0 offen sc1"


def wgrp(k):
    m, hf = k // 2, k % 2
    t = [f"s_lshl_b32 s40, s30, 13", f"s_add_u32 m0, s40, {GL + m*32768 + hf*4096}", f"s_add_u32 s41, s3, {m*(8 << 20) + hf*4096}"]
    t += [f"buffer_load_dwordx4 v1, s[44:47], s41 offen offset:{i*1024} sc1 lds" for i in range(4)]
    return "\n".join(t)


def setup(a):
    a(f"v_lshlrev_b32 v{P64}, 3, v1")
    a("s_and_b32 s35, s2, 7")
    a("s_mul_i32 s35, s35, 28")
    a("s_lshr_b32 s31, s2, 3")
    a("s_add_u32 s55, s35, s31")
    a("s_lshl_b32 s3, s55, 15")
    a("s_lshl_b32 s31, s30, 13")
    a("s_add_u32 s3, s3, s31")
    a(f"s_add_u32 s35, s31, {GL}")


def gate_text(a):
    lp, ok = a.uid("ff_spin"), a.uid("ff_ok")
    return "\n".join([f"s_mov_b32 s34, {SPIN_MAX}", f"{lp}:", f"v_cmp_gt_u32 vcc, 4, v{PV64}", f"s_cbranch_vccz {ok}",
                      "s_sub_u32 s34, s34, 1", f"s_cbranch_scc1 {ok}", "s_sleep 4", POLL64, "s_waitcnt vmcnt(0)", f"s_branch {lp}", f"{ok}:",
                      f"s_add_u32 s44, s6, 0x{RPK_OFF:x}", "s_addc_u32 s45, s7, 0", "s_and_b32 s45, s45, 0xffff",
                      "s_cmp_ge_u32 s2, 224", f"s_cselect_b32 s46, 0, 0x{16 << 20:x}"])


THIN = int(os.environ.get("THIN", "0"))
THIN_TEXT = "\n".join(["s_mov_b32 m0, s35", "s_add_u32 s35, s35, 1024", "buffer_load_dwordx4 v1, s[44:47], s3 offen sc1 lds", "s_add_u32 s3, s3, 1024"])
THIN_FLIP = "\n".join([f"s_add_u32 s35, s35, {32768 - 8192}", f"s_add_u32 s3, s3, {(8 << 20) - 8192}"])


def early_text(p):
    return wgrp(p - 1) if p - 1 < NEARLY else ""


FPOS = os.environ.get("FPOS", "S")


def wdown_loads(a):
    a(f"s_load_dwordx2 s[4:5], s[0:1], {ARG['wd']}")
    for r in range(4):
        a(f"v_mov_b32 v{12+r}, -1")
    a("s_waitcnt lgkmcnt(0)")


def wdown_seq(A, B, D):
    q = [("S", t) for t in ("s_and_b32 s32, s2, 7", "s_mul_i32 s32, s32, 28", "s_lshr_b32 s34, s2, 3", "s_add_u32 s32, s32, s34",
                            "s_lshl_b32 s32, s32, 15", "s_lshl_b32 s34, s30, 13", "s_add_u32 s32, s32, s34", f"s_mov_b32 s{D}, s4", f"s_mov_b32 s{D+3}, 0x00020000",
                            f"s_and_b32 s{D+1}, s5, 0xffff", f"s_cmp_ge_u32 s2, 224\ns_cselect_b32 s{D+2}, 0, 7340032")]
    for hf in range(2):
        q.append(("M0", f"s_add_u32 m0, s34, {DL_ + hf*4096}"))
        q += [("V", f"buffer_load_dwordx4 v1, s[{D}:{D+3}], s32 offen offset:{i*1024} lds") for i in range(4)]
        q.append(("S", "s_add_u32 s32, s32, 4096"))
    return [(c, t.replace('s32', A).replace('s34', B)) for c, t in q]


def poison_seq(A, B):
    q = [("S", t) for t in ("s_mov_b32 s26, -1", "s_lshl_b32 s32, s2, 14", "s_add_u32 s32, s32, s60", f"s_add_u32 s34, s32, 0x{XCH_OFF - CTX_OFF:x}")]
    q += [("V", f"buffer_store_dwordx4 v[12:15], v1, s[24:27], s34 offen offset:{i*1024} sc1") for i in range(4)]
    q += [("S", "s_lshr_b32 s32, s32, 1"), ("S", f"s_add_u32 s34, s32, 0x{PART_OFF - CTX_OFF:x}")]
    q += [("V", f"buffer_store_dwordx4 v[12:15], v1, s[24:27], s34 offen offset:{i*1024} sc1") for i in range(2)]
    q.append(("S", f"s_mov_b32 s26, 0x{16 << 20:x}"))
    return [(c, t.replace('s32', A).replace('s34', B)) for c, t in q]


def seq_ops(q, lo, hi, after=()):
    from sched import Op
    ops, prev, m0 = [], list(after), None
    for k, (c, t) in enumerate(q):
        w = lo + (hi - lo) * k / len(q)
        o = Op(t, "S" if c == "M0" else c, w, lo=lo, after=prev, prev_gap=[m0] if (c == "V" and m0) else [])
        if c == "M0":
            m0 = o
        ops.append(o)
        prev = [o]
    return ops


def seq_text(q):
    return "\n".join(t + ("\ns_nop 0" if c == "M0" else "") for c, t in q)


def rest(a):
    WD = 96
    WTH = int(os.environ.get("WTH", "0"))
    for k in range(4 if THIN else NEARLY, 4):
        if WTH >= 0 and k:
            a(f"s_waitcnt vmcnt({WTH})")
        a(wgrp(k))
    a("s_lshl_b32 s41, s30, 9")
    a(f"s_add_u32 s41, s41, {DL_}")
    a("v_lshrrev_b32 v9, 1, v1")
    a("v_add_u32 v9, s41, v9")
    for i in range(16):
        a(f"ds_read_b64 v[{WD+2*i}:{WD+2*i+1}], v9 offset:{i*2048}")
    a("s_mov_b32 s54, 0x05040100")
    a("s_mov_b32 s53, 0x07060302")
    a("s_waitcnt lgkmcnt(0)")
    WP = 144
    for j in range(8):
        r0, r1 = WD + 4 * j, WD + 4 * j + 2
        for h in range(2):
            a(f"v_perm_b32 v{WP+4*j+2*h}, v{r1+h}, v{r0+h}, s54")
            a(f"v_perm_b32 v{WP+4*j+2*h+1}, v{r1+h}, v{r0+h}, s53")


def top2_merge(a, m1, m2, t1, t2):
    a(f"v_max_f32 v{t2}, v{t2}, v{m2}")
    a(f"v_med3_f32 v{m2}, v{m1}, v{t1}, v{t2}")
    a(f"v_max_f32 v{m1}, v{m1}, v{t1}")


def tail(a):
    P = lambda r: f"v[{r}:{r+1}]"
    fst = (lambda i: stamp(a, i)) if os.environ.get("FST") else (lambda i: None)
    ST, VX, VO, WD, WP, T2, KP = 16, 40, 128, 96, 144, 176, 216
    TID, LANE, L32, HALF, L16B = 2, 3, 4, 5, 7
    a(f"s_load_dwordx2 s[42:43], s[0:1], {ARG['out']}")
    a(f"s_load_dwordx2 s[56:57], s[0:1], {ARG['wr']}")
    a.srd_off(16, 6, GBC_OFF, 4096)
    a(f"v_lshrrev_b32 v{LANE}, 4, v1")
    a(f"v_lshl_add_u32 v{TID}, s30, 6, v{LANE}")
    a(f"v_and_b32 v{L32}, 31, v{LANE}")
    a(f"v_lshrrev_b32 v{HALF}, 5, v{LANE}")
    a(f"v_lshlrev_b32 v{L16B}, 4, v{L32}")
    a(f"v_and_b32 v8, 15, v{LANE}")
    a("v_lshlrev_b32 v6, 7, v8")
    a("s_bfe_u32 s31, s2, 0x20003")
    a("s_lshl_b32 s31, s31, 7")
    a(f"v_lshlrev_b32 v12, 9, v{LANE}")
    a(f"v_and_b32 v14, 3, v{LANE}")
    a("v_lshlrev_b32 v14, 7, v14")
    a("s_and_b32 s59, s2, 7")
    a("s_lshl_b32 s59, s59, 9")
    a("s_setreg_imm32_b32 hwreg(HW_REG_MODE, 4, 2), 3")
    a("s_waitcnt vmcnt(0) lgkmcnt(0)")
    a("s_barrier")
    ns = a.uid("ff_nosig")
    a("s_cmp_lg_u32 s30, 0")
    a(f"s_cbranch_scc1 {ns}")
    a(f"s_mov_b64 exec, 0xff\nbuffer_atomic_add v{ONE}, v12, s[16:19], s31 offen sc1\ns_mov_b64 exec, -1")
    a.label(ns)
    if not os.environ.get('LST'):
        stamp(a, 1)
    if FPOS == "S":
        rest(a)
    a(f"s_mov_b32 s34, {WRSUM_OFF - STATS_OFF + 4}")
    a.srd(36, 42, 4 << 20)
    a.srd_off(48, 6, PART_OFF, NSL * 8192)
    a(f"v_lshlrev_b32 v10, 5, v{TID}")
    a(f"v_lshl_add_u32 v11, s30, 1, v{HALF}")
    a("s_lshl_b32 s31, s2, 3")
    a("v_add_u32 v11, s31, v11")
    a(f"v_lshl_add_u32 v0, v11, 11, v{L16B}" if not common.TRACE else "s_nop 0")
    go, lp = a.uid("ff_go"), a.uid("ff_poll")
    a("s_cmp_lg_u32 s30, 0")
    a(f"s_cbranch_scc1 {go}")
    a(f"s_mov_b32 s52, {SPIN_MAX}")
    a.label(lp)
    a("buffer_load_dword v13, v14, s[16:19], s59 offen sc1")
    a("s_sub_u32 s52, s52, 1")
    a(f"s_cbranch_scc1 {go}")
    a("s_waitcnt vmcnt(0)")
    a("v_cmp_gt_u32 vcc, 64, v13")
    a(f"s_cbranch_vccz {go}")
    a(f"s_sleep {os.environ.get('FSL', '4')}")
    a(f"s_branch {lp}")
    a.label(go)
    a("s_barrier")
    if not os.environ.get('LST'):
        stamp(a, 2)
    for j in range(3):
        a(f"s_mov_b32 s31, {j*8192}")
        a(f"buffer_load_dwordx4 v[{ST+8*j}:{ST+8*j+3}], v10, s[32:35], s31 offen sc1")
        a(f"buffer_load_dwordx4 v[{ST+8*j+4}:{ST+8*j+7}], v10, s[32:35], s31 offen offset:16 sc1")
    a(f"s_mov_b32 s31, {WRSUM_OFF - STATS_OFF}")
    a(f"buffer_load_dword v10, v{Z}, s[32:35], s31 offen sc1")
    a("s_mov_b32 s52, 0x3a800000")
    a("s_mov_b32 s53, 0x3a800000")
    a("s_mov_b32 s54, 0x7ff")
    a("v_mov_b32 v14, 0x3727c5ac")
    a("v_mov_b32 v15, v14")
    a("v_mov_b32 v12, 0xff800000")
    a("v_mov_b32 v13, v12")
    a("s_waitcnt vmcnt(0)")
    a("v_sub_f32 v56, 0, v10")
    a("v_sub_f32 v57, 0, v10")
    for i in range(0, 8, 2):
        s1, s2, s3 = ST + i, ST + 8 + i, ST + 16 + i
        a(f"v_pk_mul_f32 {P(s1)}, {P(s1)}, s[52:53]")
        a(f"v_pk_fma_f32 {P(s2)}, {P(s2)}, s[52:53], {P(14)}")
        a(f"v_pk_fma_f32 {P(s3)}, {P(s1)}, {P(56)}, {P(s3)}")
        a(f"v_pk_fma_f32 {P(s2)}, {P(s1)}, {P(s1)}, {P(s2)} neg_lo:[1,0,0] neg_hi:[1,0,0]")
    for i in range(8):
        a(f"v_max_f32 v{ST+8+i}, v14, v{ST+8+i}")
    for i in range(8):
        a(f"v_rsq_f32 v{ST+8+i}, v{ST+8+i}")
    for i in range(0, 8, 2):
        a(f"v_pk_mul_f32 {P(ST+16+i)}, {P(ST+16+i)}, {P(ST+8+i)}")
    for i in range(8):
        a(f"v_bfi_b32 v{ST+16+i}, s54, {i}, v{ST+16+i}")
        a(f"v_med3_f32 v13, v12, v13, v{ST+16+i}")
        a(f"v_max_f32 v12, v12, v{ST+16+i}")
    a(f"v_lshl_or_b32 v12, v{TID}, 3, v12")
    a(f"v_lshl_or_b32 v13, v{TID}, 3, v13")
    for dpp in ("quad_perm:[1,0,3,2]", "quad_perm:[2,3,0,1]", "row_half_mirror", "row_mirror"):
        a("s_nop 1")
        a(f"v_mov_b32_dpp v14, v12 {dpp} row_mask:0xf bank_mask:0xf")
        a(f"v_mov_b32_dpp v15, v13 {dpp} row_mask:0xf bank_mask:0xf")
        top2_merge(a, 12, 13, 14, 15)
    for sw in ("v_permlane16_swap_b32", "v_permlane32_swap_b32"):
        a("v_mov_b32 v14, v12")
        a("v_mov_b32 v15, v13")
        a("s_nop 1")
        a(f"{sw} v12, v14")
        a(f"{sw} v13, v15")
        a("s_nop 1")
        top2_merge(a, 12, 13, 14, 15)
    a("s_lshl_b32 s31, s30, 3")
    a(f"s_add_u32 s31, s31, {MISC}")
    a("v_mov_b32 v14, s31")
    a("ds_write_b64 v14, v[12:13]")
    a(f"v_mov_b32 v14, {MISC}")
    a("s_waitcnt lgkmcnt(0)")
    a("s_barrier")
    a(f"ds_read_b128 v[{ST}:{ST+3}], v14")
    a(f"ds_read_b128 v[{ST+4}:{ST+7}], v14 offset:16")
    a(f"v_cmp_eq_u32 vcc, 0, v{HALF}")
    a("s_waitcnt lgkmcnt(0)")
    top2_merge(a, ST, ST + 1, ST + 2, ST + 3)
    top2_merge(a, ST + 4, ST + 5, ST + 6, ST + 7)
    top2_merge(a, ST, ST + 1, ST + 4, ST + 5)
    a(f"v_and_b32 v{ST}, 0x7ff, v{ST}")
    a(f"v_and_b32 v{ST+1}, 0x7ff, v{ST+1}")
    a(f"v_cndmask_b32 v15, v{ST+1}, v{ST}, vcc")
    a(f"v_lshl_add_u32 v12, v15, 11, v{L16B}")
    for i in range(4):
        a(f"buffer_load_dwordx4 v[{VX+4*i}:{VX+4*i+3}], v12, s[24:27], 0 offen offset:{i*512} sc1")
    for i in range(4):
        a(f"buffer_load_dwordx4 v[{VO+4*i}:{VO+4*i+3}], v0, s[24:27], 0 offen offset:{i*512} sc1")
    a(f"v_cmp_eq_u32 vcc, v{ST}, v11")
    a(f"v_cmp_eq_u32 s[52:53], v{ST+1}, v11")
    a("v_mov_b32 v13, 0x7fffffff")
    a("s_or_b64 vcc, vcc, s[52:53]")
    a("v_cndmask_b32 v0, v0, v13, vcc")
    a(f"v_lshl_add_u32 v12, v{HALF}, 11, v{L16B}")
    a(f"v_add_u32 v12, {XL}, v12")
    if not os.environ.get('LST'):
        stamp(a, 3)
    a("s_mov_b32 s58, 0")
    a("s_waitcnt vmcnt(4)")
    lln, lown, lred, lred2, fin = (a.uid(x) for x in ("ff_ln", "ff_own", "ff_red", "ff_red2", "ff_fin"))
    a.label(lln)
    ln_rows_half_wave(a, VX, T2, keep=KP)
    a("s_cmp_lg_u32 s58, 0")
    a(f"s_cbranch_scc1 {lown}")
    for i in range(4):
        a(f"ds_write_b128 v12, v[{VX+4*i}:{VX+4*i+3}] offset:{i*512}")
    a("s_cmp_ge_u32 s2, 224")
    a(f"s_cbranch_scc1 {lred}")
    fst(4)
    a(f"v_lshrrev_b32 v12, 4, v{LANE}")
    a(f"v_and_b32 v13, 1, v{LANE}")
    a("v_lshlrev_b32 v13, 11, v13")
    a("v_lshl_add_u32 v13, v12, 3, v13")
    a("s_lshl_b32 s54, s30, 9")
    a(f"s_add_u32 s54, s54, {XL}")
    a("v_add_u32 v13, s54, v13")
    a(f"v_lshlrev_b32 v14, 3, v{LANE}")
    a("s_lshl_b32 s54, s30, 13")
    a(f"s_add_u32 s54, s54, {GL}")
    a("v_add_u32 v14, s54, v14")
    for m in range(2):
        for s in range(8):
            b = (m * 8 + s) * 4
            a(f"ds_read_b64_tr_b16 a[{b}:{b+1}], v14 offset:{m*32768 + s*1024}")
            a(f"ds_read_b64_tr_b16 a[{b+2}:{b+3}], v14 offset:{m*32768 + s*1024 + 512}")
    for s in range(8):
        a(f"ds_read_b64 a[{64+4*s}:{65+4*s}], v13 offset:{s*64}")
        a(f"ds_read_b64 a[{66+4*s}:{67+4*s}], v13 offset:{s*64+32}")
    a("v_lshlrev_b32 v13, 6, v8")
    a("v_lshl_add_u32 v13, v12, 4, v13")
    a("s_lshl_b32 s54, s30, 11")
    a(f"s_add_u32 s54, s54, {MISC + 256}")
    a("v_add_u32 v13, s54, v13")
    a("s_waitcnt lgkmcnt(0)")
    for s in range(8):
        for m in range(2):
            b = (m * 8 + s) * 4
            c = f"v[{16+4*m}:{19+4*m}]"
            a(mfma16(c, f"a[{b}:{b+3}]", f"a[{64+4*s}:{67+4*s}]", "0" if s == 0 else c))
    a("s_nop 7")
    a("ds_write_b128 v13, v[16:19]")
    a("ds_write_b128 v13, v[20:23] offset:1024")
    a(f"v_lshlrev_b32 v13, 2, v{L32}")
    a(f"v_add_u32 v13, {MISC + 256}, v13")
    a("s_waitcnt lgkmcnt(0)")
    a("s_barrier")
    for w in range(4):
        a(f"ds_read2st64_b32 v[{16+2*w}:{17+2*w}], v13 offset0:{w*8} offset1:{w*8 + 4}")
    a("s_waitcnt lgkmcnt(0)")
    a(f"v_pk_add_f32 {P(16)}, {P(16)}, {P(20)}")
    a(f"v_pk_add_f32 {P(18)}, {P(18)}, {P(22)}")
    a(f"v_pk_add_f32 {P(16)}, {P(16)}, {P(18)}")
    a("v_cvt_pk_bf16_f32 v16, v16, v17")
    a("v_and_b32 v20, 0xffff0000, v16")
    a("v_lshlrev_b32 v16, 16, v16")
    a("v_mul_f32 v17, 0xbfb8aa3b, v16")
    a("v_exp_f32 v17, v17")
    a("s_lshl_b32 s54, s55, 13")
    a("v_add_f32 v17, 1.0, v17")
    a("v_rcp_f32 v17, v17")
    a("s_add_u32 s53, s54, 4096")
    a("v_mul_f32 v16, v16, v17")
    a("v_cvt_pk_bf16_f32 v16, v16, v16")
    a("v_and_b32 v16, 0xffff0000, v16")
    a("v_mul_f32 v16, v16, v20")
    a("s_nop 1")
    a("v_mov_b32_dpp v17, v16 quad_perm:[1,0,3,2] row_mask:0xf bank_mask:0xf")
    a("v_cvt_pk_bf16_f32 v16, v16, v17")
    a(f"v_lshlrev_b32 v13, 4, v{TID}")
    for t in range(2):
        for j in range(8):
            a(f"v_readlane_b32 s{8 + t*8 + j}, v16, {t*16 + 2*j}")
    ACC = 24
    for t in range(2):
        for j in range(8):
            for e in range(4):
                d = ACC + t * 4 + e
                a(f"v_dot2_f32_bf16 v{d}, v{WP+4*j+e}, s{8 + t*8 + j}, {'0' if j == 0 else 'v%d' % d}")
    a("s_nop 2")
    for r in range(8):
        a(f"v_min_u32 v{ACC+r}, -2, v{ACC+r}")
    a(f"buffer_store_dwordx4 v[{ACC}:{ACC+3}], v13, s[48:51], s54 offen sc1")
    a(f"buffer_store_dwordx4 v[{ACC+4}:{ACC+7}], v13, s[48:51], s53 offen sc1")
    fst(5)
    a("s_waitcnt vmcnt(2)")
    for i in range(16):
        a(f"v_mov_b32 v{VX+i}, v{VO+i}")
    a("s_mov_b32 s58, 1")
    a(f"s_branch {lln}")
    a.label(lown)
    for i in range(16):
        a(f"v_lshlrev_b32 v{T2+2*i}, 16, v{VX+i}")
        a(f"v_and_b32 v{T2+2*i+1}, 0xffff0000, v{VX+i}")
    for i in range(0, 32, 2):
        a(f"v_pk_add_f32 v[{T2+i}:{T2+i+1}], v[{T2+i}:{T2+i+1}], v[{KP+i}:{KP+i+1}]")
    for i in range(16):
        a(f"v_cvt_pk_bf16_f32 v{VX+i}, v{T2+2*i}, v{T2+2*i+1}")
    for i in range(4):
        a(f"buffer_store_dwordx4 v[{VX+4*i}:{VX+4*i+3}], v0, s[36:39], 0 offen offset:{i*512} sc1")
    a("s_cmp_ge_u32 s2, 224")
    a(f"s_cbranch_scc1 {lred2}")
    a(f"s_branch {fin}")
    a.label(lred)
    a("s_sub_u32 s40, s2, 224")
    a("s_lshr_b32 s41, s40, 4")
    a("s_and_b32 s42, s40, 15")
    a.srd(8, 56, 2048)
    for i in range(4):
        a(f"buffer_load_dwordx4 v[{WD+4*i}:{WD+3+4*i}], v{L16B}, s[8:11], 0 offen offset:{i*512}")
    a("s_lshl_b32 s43, s41, 5")
    a("v_readlane_b32 s46, v15, s43")
    a("s_lshl_b32 s47, s42, 7")
    a("v_lshl_add_u32 v9, v8, 3, s47")
    a("s_lshl_b32 s46, s46, 11")
    a("s_lshl_b32 s31, s41, 11")
    a(f"s_add_u32 s31, s31, {XL}")
    a("v_add_u32 v12, s31, v9")
    a("s_waitcnt lgkmcnt(0)")
    a("ds_read_b64 v[32:33], v12")
    a("buffer_load_dwordx2 v[34:35], v9, s[24:27], s46 offen sc1")
    a(f"v_lshrrev_b32 v10, 4, v{TID}")
    a("v_lshlrev_b32 v10, 13, v10")
    a("v_lshl_add_u32 v10, v8, 4, v10")
    a("s_lshl_b32 s47, s40, 8")
    a("s_waitcnt vmcnt(1)")
    a(f"v_dot2_f32_bf16 v12, v{VX}, v{WD}, 0")
    for i in range(1, 16):
        a(f"v_dot2_f32_bf16 v12, v{VX+i}, v{WD+i}, v12")
    a("s_nop 2")
    half_wave_sum(a, 12, 13)
    a("v_cvt_pk_bf16_f32 v12, v12, v12")
    a("v_and_b32 v12, 0xffff0000, v12")
    a("v_mul_f32 v12, 0xbfb8aa3b, v12")
    a("v_exp_f32 v12, v12")
    a("s_lshl_b32 s44, s42, 1")
    a("v_add_f32 v12, 1.0, v12")
    a("v_rcp_f32 v12, v12")
    a("s_add_u32 s44, s44, s41")
    a("s_lshl_b32 s44, s44, 11")
    a("v_cvt_pk_bf16_f32 v12, v12, v12")
    a("v_and_b32 v12, 0xffff0000, v12")
    for i in range(16):
        a(f"v_mov_b32 v{VX+i}, v{VO+i}")
    a("v_readlane_b32 s45, v12, s43")
    a("s_mov_b32 s58, 1")
    a(f"s_branch {lln}")
    a.label(lred2)
    fst(4)
    go, lp = a.uid("ff_rgo"), a.uid("ff_rpoll")
    R0 = 96
    a(f"s_mov_b32 s52, {SPIN_MAX}")
    a.label(lp)
    a("s_mov_b32 s53, s47")
    for i in range(14):
        a(f"buffer_load_dwordx4 v[{R0+4*i}:{R0+3+4*i}], v10, s[48:51], s53 offen sc1")
        a("s_add_u32 s53, s53, 0x20000")
    a("v_mov_b32 v13, 0")
    for i in range(14):
        a(f"s_waitcnt vmcnt({13 - i})")
        a(f"v_max3_u32 v13, v13, v{R0+4*i}, v{R0+4*i+1}")
        a(f"v_max3_u32 v13, v13, v{R0+4*i+2}, v{R0+4*i+3}")
    a("s_sub_u32 s52, s52, 1")
    a(f"s_cbranch_scc1 {go}")
    a("v_cmp_eq_u32 vcc, -1, v13")
    a(f"s_cbranch_vccnz {lp}")
    a.label(go)
    fst(5)
    for i in range(1, 14):
        a(f"v_pk_add_f32 {P(R0)}, {P(R0)}, {P(R0+4*i)}")
        a(f"v_pk_add_f32 {P(R0+2)}, {P(R0+2)}, {P(R0+2+4*i)}")
    for sw in ("v_permlane16_swap_b32", "v_permlane32_swap_b32"):
        for r in range(4):
            a(f"v_mov_b32 v{R0+4+r}, v{R0+r}")
        a("s_nop 1")
        for r in range(4):
            a(f"{sw} v{R0+r}, v{R0+4+r}")
        a("s_nop 1")
        for r in range(4):
            a(f"v_add_f32 v{R0+r}, v{R0+r}, v{R0+4+r}")
    fst(6)
    a("v_lshlrev_b32 v14, 4, v8")
    a("s_lshl_b32 s31, s30, 8")
    a("v_add_u32 v13, s31, v14")
    a(f"ds_write_b128 v13, v[{R0}:{R0+3}]")
    a("s_waitcnt lgkmcnt(0)")
    a("s_barrier")
    for w in range(4):
        a(f"ds_read_b128 v[{R0+4*w}:{R0+3+4*w}], v14 offset:{w*256}")
    a("s_waitcnt lgkmcnt(0)")
    for w in range(1, 4):
        a(f"v_pk_add_f32 {P(R0)}, {P(R0)}, {P(R0+4*w)}")
        a(f"v_pk_add_f32 {P(R0+2)}, {P(R0+2)}, {P(R0+2+4*w)}")
    for h in range(2):
        y = R0 + 2 * h
        a(f"v_cvt_pk_bf16_f32 v20, v{y}, v{y+1}")
        a("v_lshlrev_b32 v21, 16, v20\nv_and_b32 v22, 0xffff0000, v20")
        a("v_mul_f32 v21, s45, v21\nv_mul_f32 v22, s45, v22")
        a("v_cvt_pk_bf16_f32 v20, v21, v22")
        a("v_lshlrev_b32 v21, 16, v20\nv_and_b32 v22, 0xffff0000, v20")
        a(f"v_lshlrev_b32 v23, 16, v{32+h}\nv_and_b32 v24, 0xffff0000, v{32+h}")
        a("v_add_f32 v21, v21, v23\nv_add_f32 v22, v22, v24")
        a("v_cvt_pk_bf16_f32 v20, v21, v22")
        a("v_lshlrev_b32 v21, 16, v20\nv_and_b32 v22, 0xffff0000, v20")
        a(f"v_lshlrev_b32 v23, 16, v{34+h}\nv_and_b32 v24, 0xffff0000, v{34+h}")
        a("v_add_f32 v21, v21, v23\nv_add_f32 v22, v22, v24")
        a(f"v_cvt_pk_bf16_f32 v{26+h}, v21, v22")
    a(f"v_cmp_gt_u32 vcc, 16, v{TID}")
    a("s_and_saveexec_b64 s[52:53], vcc")
    a(f"s_cbranch_execz {fin}")
    a("buffer_store_dwordx2 v[26:27], v9, s[36:39], s46 offen sc1")
    a.label(fin)
    a("s_mov_b64 exec, -1")
```

```python
from common import *
import common, os
from sched import Op, spread, schedule
import k2
from k2 import vq, aq, V_LANE16, V_VV, V_NINF, attention_phase, LDF

SPIN_MAX = 1 << 20
KO = set(os.environ.get('KO', '').split(','))
NT = ' nt' if 'nt' in KO else ''
ENV = lambda k, d: int(os.environ.get(k, str(d)))

ZERO, ONE = 8, 9
XD, WD, XRD, WRD = 10, 18, 26, 28
QX, QWD, QWR = 36, 38, 42
VPF, VDUM, VPOLL, VXST, VLW, VLR = 50, 51, 52, 53, 54, 55
PT = 56
PK = 64
WRING = 98304


def spin_text(a, soff, target, VPOLL=VPOLL, ZERO=ZERO):
    ok, lp = a.uid("spin_ok"), a.uid("spin")
    return "\n".join([
        f"v_readfirstlane_b32 s31, v{VPOLL}", f"s_cmp_ge_u32 s31, {target}", f"s_cbranch_scc1 {ok}",
        f"s_mov_b32 s40, {SPIN_MAX}", f"{lp}:", "s_sleep 8",
        f"buffer_load_dword v{VPOLL}, v{ZERO}, s[24:27], {soff} offen sc1", "s_waitcnt vmcnt(0)",
        f"v_readfirstlane_b32 s31, v{VPOLL}", "s_sub_u32 s40, s40, 1", "s_cselect_b32 s31, -1, s31",
        f"s_cmp_lt_u32 s31, {target}", f"s_cbranch_scc1 {lp}", f"{ok}:"])


def one_lane(text):
    return f"s_mov_b64 exec, 1\n{text}\ns_mov_b64 exec, -1"


def gen_k12(a, name="k12_kernel", fuse=False, ffn=None):
    a.begin_kernel(name)
    end = a.uid("k12_end")
    stubs = []
    pst = (lambda i: stamp(a, i)) if "ptrace" in KO else (lambda i: None)

    def when(cmp_text, body, want, **kw):
        l, r = a.uid("k12_ool"), a.uid("k12_oolret")
        if "nosig" in KO and "s[24:27]" in body:
            body = "s_nop 0"
        stubs.append((l, body, r))
        return Op(f"{cmp_text}\ns_cbranch_scc1 {l}\n{r}:", "B", want, **kw)

    a("s_cmp_ge_u32 s2, 256")
    a(f"s_cbranch_scc1 {end}")
    stamp(a, 0)
    a(f"s_load_dwordx4 s[36:39], s[0:1], {ARG['x']}")
    a(f"s_load_dwordx4 s[40:43], s[0:1], {ARG['wuk']}")
    a(f"s_load_dwordx2 s[4:5], s[0:1], {ARG['wq']}")
    a(f"s_load_dwordx4 s[60:63], s[0:1], {ARG['dbg']}")
    CE = ENV("CE", 48)
    a("s_lshr_b32 s59, s2, 3")
    a("s_lshl_b32 s58, s59, 4")
    a("v_add_u32 v6, s58, v0")
    a(f"v_cmp_gt_u32 vcc, {CE}, v0")
    a(f"v_cmp_gt_u32 s[56:57], {CE + 16}, v0")
    a("s_nop 0")
    a("v_cndmask_b32 v6, v6, v0, vcc")
    code_addr(a, "k12_code0", 58, 6, 52)
    a.label("k12_code0")
    a("s_mov_b64 exec, s[56:57]")
    cs = a.uid("k12_nocode")
    a(f"s_cbranch_execz {cs}")
    a(f"global_load_dword v{VDUM}, v[58:59], off")
    a.label(cs)
    a("s_mov_b64 exec, -1")
    a("s_and_b32 s58, s2, 7")
    a("s_lshr_b32 s59, s2, 3")
    a("s_and_b32 s45, s59, 7")
    a("s_lshr_b32 s57, s59, 3")
    a("s_and_b32 s44, s57, 1")
    a("s_lshl_b32 s52, s58, 1")
    a("s_add_u32 s44, s44, s52")
    a("s_lshr_b32 s57, s57, 1")
    W, LN_ = 2, 3
    a(f"v_lshrrev_b32 v{W}, 6, v0")
    a(f"v_and_b32 v{LN_}, 63, v0")
    a(f"v_readfirstlane_b32 s30, v{W}")
    a(f"v_lshlrev_b32 v{V_LANE16}, 4, v{LN_}")
    VX, VT = 64, 80
    TOK, L32 = 60, 61
    a(f"v_lshrrev_b32 v{TOK}, 5, v{LN_}")
    a(f"v_lshl_add_u32 v{TOK}, v{W}, 1, v{TOK}")
    a(f"v_and_b32 v{L32}, 31, v{LN_}")
    a(f"v_lshlrev_b32 v6, 11, v{TOK}")
    a(f"v_lshl_add_u32 v62, v{L32}, 4, v6")
    a("s_lshl_b32 s52, s2, 14")
    a(f"v_lshrrev_b32 v56, 3, v{LN_}")
    a(f"v_and_b32 v57, 7, v{LN_}")
    a("v_lshrrev_b32 v58, 1, v56")
    a("v_xor_b32 v6, v57, v58")
    a("v_xor_b32 v7, 4, v6")
    a(f"v_lshl_add_u32 v58, v{W}, 6, v56")
    a("v_lshlrev_b32 v58, 10, v58")
    a("s_lshl_b32 s47, s45, 18")
    a("v_add_u32 v58, s47, v58")
    a(f"v_lshl_add_u32 v{XD}, v6, 4, v58")
    a(f"v_lshl_add_u32 v{XD+1}, v7, 4, v58")
    for i in range(7, -1, -1):
        a(f"v_add_u32 v{XD+i}, {i*8*1024 - (i%4)*1024}, v{XD + (i%2)}")
    a(f"v_lshrrev_b32 v6, 5, v{LN_}")
    a(f"v_bfe_u32 v7, v{LN_}, 1, 4")
    a(f"v_and_b32 v59, 1, v{LN_}")
    a(f"v_lshl_add_u32 v58, v{W}, 4, v6")
    a("v_lshlrev_b32 v58, 13, v58")
    a("v_lshl_add_u32 v58, v59, 4, v58")
    a("s_lshl_b32 s47, s44, 9")
    a("v_add_u32 v58, s47, v58")
    a("v_xor_b32 v7, v7, v6")
    for i in range(8):
        fx = ((2 * i) & 3) | ((((2 * i) >> 3) & 1) << 2)
        a(f"v_xor_b32 v6, {fx}, v7")
        a(f"v_lshl_add_u32 v6, v6, 5, v58")
        a(f"v_add_u32 v{WD+i}, {2*i*8192 - (i%4)*1024}, v6")
    XB, WB = 0, 65536
    a("s_lshl_b32 s48, s30, 13")
    a("s_mov_b32 s49, 0")
    a("s_mov_b32 s50, 0")
    pst(1)
    a("s_waitcnt lgkmcnt(0)")
    a.srd(24, 36, 4 << 20)
    for i in range(4):
        a(f"buffer_load_dwordx4 v[{VX+4*i}:{VX+4*i+3}], v62, s[24:27], s52 offen offset:{i*512}{NT}")
    a.srd(16, 38, 2 << 20)
    a("s_cmp_eq_u32 s57, 0")
    a("s_cselect_b32 s20, s40, s42")
    a("s_cselect_b32 s21, s41, s43")
    a("s_and_b32 s21, s21, 0xffff")
    a("s_mov_b32 s22, 0x400000")
    a("s_mov_b32 s23, 0x00020000")

    def dma_grp(stage, g):
        op, i0 = g // 2, (g % 2) * 4
        m = f"s_add_u32 m0, s48, {(XB if op == 0 else WB) + stage*32768 + i0*1024}"
        if op == 0:
            ld = [f"buffer_load_dwordx4 v{XD+i0+i}, s[16:19], s49 offen offset:{i*1024} lds" for i in range(4)]
        else:
            ld = [f"buffer_load_dwordx4 v{WD+i0+i}, s[20:23], s50 offen offset:{i*1024}{NT} lds" for i in range(4)]
        tr = {1: "s_add_u32 s49, s49, 128", 3: "s_add_u32 s50, s50, 0x80000"}.get(g)
        return m, ld, tr

    def emit_grp(m, ld, tr):
        a(m)
        a("s_nop 0")
        for t in ld:
            a(t)
        if tr:
            a(tr)

    def grp_sched(grps, lo, hi, after=()):
        ops, prev = [], list(after)
        tot = sum(len(g[1]) for g in grps)
        step = (hi - lo) / float(tot)
        k = 0
        for (m, ld, tr) in grps:
            mo = None
            if m:
                mo = Op(m, "S", lo + step * k - 1, lo=lo, after=prev)
                ops.append(mo)
            for t in ld:
                o = Op(t, "V", lo + 1 + step * k, lo=lo, after=prev, prev_gap=[mo] if mo else [])
                ops.append(o)
                prev = [o]
                k += 1
            if tr:
                for t in tr.split("\n"):
                    o = Op(t, "S", lo + step * k, after=prev)
                    ops.append(o)
                    prev = [o]
        return ops, prev

    PG = ENV("PG", 2)
    order0 = [0, 2, 1, 3]
    for g in order0[:PG]:
        emit_grp(*dma_grp(0, g))
    pst(2)
    a("s_mov_b64 s[6:7], s[62:63]")
    a.srd_off(8, 6, XN_OFF, 4 << 20)
    a.srd(12, 4, 8 << 20)
    a.srd_off(32, 6, KF_OFF, 32 << 20)
    a.srd(24, 60, 256)
    a("s_lshl_b32 s28, s58, 2")
    a("s_and_b32 s31, s59, 3")
    a("s_add_u32 s28, s28, s31")
    a("s_lshr_b32 s29, s59, 2")
    a("s_lshl_b32 s42, s29, 7")
    a("s_sub_u32 s43, 1920, s42")
    a("s_lshl_b32 s31, s30, 4")
    a("s_add_u32 s38, s42, s31")
    a("s_add_u32 s39, s43, s31")
    a("s_lshl_b32 s60, s30, 12")
    a("s_mov_b32 s61, 0")
    a("s_mov_b32 s62, 0")
    a("s_lshl_b32 s47, s44, 1")
    a("s_lshr_b32 s52, s30, 1")
    a("s_add_u32 s47, s47, s52")
    a("s_lshl_b32 s47, s47, 14")
    a("s_lshl_b32 s52, s45, 1")
    a("s_and_b32 s53, s30, 1")
    a("s_add_u32 s52, s52, s53")
    a("s_lshl_b32 s52, s52, 20")
    a("s_add_u32 s47, s47, s52")
    a("s_lshl_b32 s52, s57, 24")
    a("s_add_u32 s47, s47, s52")
    assert VF_OFF - KF_OFF == 1 << 24
    a("s_lshl_b32 s54, s44, 8")
    a("s_lshr_b32 s55, s28, 1")
    a("s_lshl_b32 s55, s55, 8")
    a(f"s_and_b32 s53, s59, {ENV('XSM', 3)}")
    a("s_add_u32 s53, s53, 1")
    a("s_cmp_eq_u32 s30, 0")
    a("s_cselect_b32 s53, s53, -1")
    a("s_cselect_b32 s46, 6, -1")
    a("v_lshlrev_b32 v6, 13, v56")
    a(f"v_lshl_add_u32 v{VPF}, v57, 7, v6")
    a("s_lshl_b32 s56, s30, 5")
    a("s_add_u32 s56, s56, s59")
    a("s_lshl_b32 s56, s56, 16")
    a("s_lshl_b32 s52, s58, 10")
    a("s_add_u32 s56, s56, s52")
    a(f"s_add_u32 s63, s30, {ENV('PF0', 1)}")
    pf = f"buffer_load_dword v{VDUM}, v{VPF}, s[12:15], s56 offen" if "nowq" not in KO else "s_nop 0"
    for g in order0[PG:2]:
        emit_grp(*dma_grp(0, g))
    XL = 131072
    a(f"v_mul_u32_u24 v6, 2064, v{TOK}")
    a(f"v_lshl_add_u32 v6, v{L32}, 4, v6")
    a(f"v_add_u32 v{VLW}, {XL}, v6")
    a("v_mul_u32_u24 v7, 2064, v57")
    a("v_lshl_add_u32 v7, v56, 4, v7")
    a(f"v_lshl_add_u32 v7, v{W}, 9, v7")
    a(f"v_add_u32 v{VLR}, {XL}, v7")
    a("v_lshrrev_b32 v7, 2, v56")
    a(f"v_lshl_add_u32 v7, v{W}, 3, v7")
    a("v_lshlrev_b32 v7, 17, v7")
    a("v_and_b32 v6, 3, v56")
    a("v_lshl_add_u32 v7, v6, 8, v7")
    a("v_lshl_add_u32 v7, v57, 4, v7")
    a("s_lshr_b32 s52, s2, 1")
    a("s_lshl_b32 s52, s52, 10")
    a("s_and_b32 s31, s2, 1")
    a("s_lshl_b32 s31, s31, 7")
    a("s_add_u32 s52, s52, s31")
    a(f"v_add_u32 v{VXST}, s52, v7")
    a(f"v_and_b32 v56, 15, v{LN_}")
    a(f"v_lshrrev_b32 v57, 4, v{LN_}")
    a("v_lshrrev_b32 v6, 1, v56")
    a("v_xor_b32 v6, v6, v57")
    a(f"v_and_b32 v7, 1, v{W}")
    a("v_lshl_add_u32 v7, v7, 7, v56")
    a("v_lshlrev_b32 v7, 7, v7")
    a(f"v_lshl_add_u32 v{XRD}, v6, 4, v7")
    a(f"v_xor_b32 v{XRD+1}, 64, v{XRD}")
    a("v_lshrrev_b32 v6, 2, v56")
    a("v_and_b32 v58, 1, v57")
    a("v_lshl_add_u32 v58, v58, 2, v6")
    a("v_lshl_add_u32 v59, v57, 3, v6")
    a(f"v_and_b32 v63, 3, v{LN_}")
    a("v_lshlrev_b32 v7, 9, v59")
    a(f"v_lshrrev_b32 v6, 1, v{W}")
    a("v_lshl_add_u32 v7, v6, 8, v7")
    a("v_lshl_add_u32 v7, v63, 3, v7")
    a(f"v_add_u32 v7, {WB}, v7")
    a("v_lshlrev_b32 v59, 8, v59")
    a("v_lshl_add_u32 v59, v63, 3, v59")
    a(f"v_add_u32 v59, {WRING}, v59")
    for j in range(8):
        a(f"v_xor_b32 v6, {j}, v58")
        a(f"v_lshl_add_u32 v{WRD+j}, v6, 5, v7")
        a(f"v_lshl_add_u32 v{QWR+j}, v6, 5, v59")
    a("s_lshl_b32 s31, s38, 6")
    a(f"v_add_u32 v{QX}, s31, v{V_LANE16}")
    a("s_lshl_b32 s31, s39, 6")
    a(f"v_add_u32 v{QX+1}, s31, v{V_LANE16}")
    a(f"v_bfe_u32 v6, v{LN_}, 1, 3")
    a(f"v_and_b32 v7, 1, v{LN_}")
    a(f"v_lshl_add_u32 v58, v{W}, 4, v57")
    a("v_lshlrev_b32 v58, 13, v58")
    a("v_lshl_add_u32 v58, v7, 4, v58")
    a("s_lshl_b32 s31, s28, 8")
    a("v_add_u32 v58, s31, v58")
    a("v_xor_b32 v6, v6, v57")
    for i in range(4):
        a(f"v_xor_b32 v7, {(i // 2) << 2}, v6")
        a(f"v_lshl_add_u32 v7, v7, 5, v58")
        a(f"v_add_u32 v{QWD+i}, {4*i*8192 - i*1024}, v7")
    a("v_lshlrev_b32 v6, 2, v57")
    a(f"v_sub_u32 v{V_VV}, v56, v6")
    a(f"v_mov_b32 v{V_NINF}, 0xff800000")
    a(f"v_mov_b32 v{ZERO}, 0")
    a(f"v_mov_b32 v{ONE}, 1")
    a("s_lshl_b32 s52, s59, 2")
    a("s_add_u32 s52, s52, s30")
    a(f"v_and_b32 v6, 1, v{LN_}")
    a("v_lshl_add_u32 v6, s52, 1, v6")
    code_addr(a, "k12_qcode", 2, 6, 40)
    cpf = f"global_load_dword v{VDUM}, v[2:3], off" if "nocpf" not in KO else "s_nop 0"
    zero_acc(a, 128, 64, 56)
    zero_acc(a, 128, 128, 56, "v", init=False)
    for g in order0[max(PG, 2):]:
        emit_grp(*dma_grp(0, g))
    pst(3)
    a("s_waitcnt vmcnt(16)")
    pst(4)
    t_ = Asm()
    ln_rows_half_wave(t_, VX, VT)
    nl_ = len(t_.lines)
    for i, ln in enumerate(t_.lines):
        a.lines.append(ln)
        for g in range(4):
            if i == nl_ * (g + 1) // 5:
                emit_grp(*dma_grp(1, order0[g]))
    pst(5)
    for i in range(4):
        a(f"ds_write_b128 v{VLW}, v[{VX+4*i}:{VX+4*i+3}] offset:{i*512}")
    pst(6)
    a("s_waitcnt vmcnt(16) lgkmcnt(0)")
    a("s_barrier")
    if "ptrace" in KO:
        stamp_dump(a, 0, 7, 6)
        a("s_endpgm")
    XT = 64
    for i in range(4):
        a(f"ds_read_b128 {aq(XT+4*i)}, v{VLR} offset:{i*128}")
    a(f"v_add_u32 v{VLW}, 4096, v{QX}")
    a(f"v_add_u32 v{VLR}, 4096, v{QX+1}")
    zero_acc(a, 64, 64, 56, "v", init=False)

    FXS = [192, 64]
    fw = lambda o, ks: (o * 2 + ks) * 4
    fx = lambda st, j, ks: FXS[st] + (j * 2 + ks) * 4

    def xreads(st):
        return [f"ds_read_b128 {aq(fx(st, j, ks))}, v{XRD+ks} offset:{XB + st*32768 + j*2048}" for j in range(8) for ks in range(2)]

    def wrd(st, os_):
        out = []
        for o in os_:
            for ks in range(2):
                b = fw(o, ks)
                out.append(f"ds_read_b64_tr_b16 a[{b}:{b+1}], v{WRD+o} offset:{st*32768 + ks*16384}")
                out.append(f"ds_read_b64_tr_b16 a[{b+2}:{b+3}], v{WRD+o} offset:{st*32768 + ks*16384 + 2048}")
        return out

    def mix(x, y):
        return [t for p in zip(x, y) for t in p]

    def pair_n(c, j, isv):
        return (c * 8 + j) if isv else (j * 4 + c)

    def acc(i, j, isv):
        n = pair_n(i // 2, j, isv)
        if n < 24:
            return ("v", (64 if i % 2 == 0 else 160) + 4 * n)
        return ("a", 128 + 8 * (n - 24) + 4 * (i % 2))

    def mf2(o, x, st, isv):
        k, c = acc(x, o, isv) if isv else acc(o, x, isv)
        r = f"{k}[{c}:{c+3}]"
        return [mfma16(r, *((aq(fx(st, x, ks)), aq(fw(o, ks))) if isv else (aq(fw(o, ks)), aq(fx(st, x, ks)))), r) for ks in range(2)]

    def mfmas(st, half, isv):
        return [m for o in range(4 * half, 4 * half + 4) for x in range(8) for m in mf2(o, x, st, isv)]

    skip = a.uid("k12_nostat")
    a(f"s_cmp_ge_u32 s2, {ZERO_BYTES // 4096}")
    a(f"s_cbranch_scc1 {skip}")
    a("s_lshl_b32 s52, s2, 12")
    a(f"s_add_u32 s52, s52, 0x{STATS_OFF - KF_OFF:x}")
    a("s_mov_b32 s34, -1")
    a("v_lshlrev_b32 v6, 4, v0")
    a("buffer_store_dwordx4 v[56:59], v6, s[32:35], s52 offen sc1")
    a(f"s_mov_b32 s34, 0x{32 << 20:x}")
    a.label(skip)
    stamp(a, 1)
    tr_init(a)
    for t in mix(xreads(0), wrd(0, range(4))):
        a(t)
    a("s_mov_b32 s51, 0")
    a("s_waitcnt lgkmcnt(15)")
    for i in range(4):
        a(f"s_mov_b32 s52, {i*2*131072}")
        a(f"buffer_store_dwordx4 {aq(XT+4*i)}, v{VXST}, s[8:11], s52 offen sc1")
    a("s_waitcnt lgkmcnt(0)")
    lv, joined = a.uid("k12_v"), a.uid("k12_join")
    a("s_cmp_lg_u32 s57, 0")
    a(f"s_cbranch_scc1 {lv}")

    DX, DW = ENV("QDX", 3), ENV("QDW", 2)
    XS = lambda ks: 128 + ((ks + 4) % 8) * 16
    QF = [0, 32]

    def wdma(stage):
        return (f"s_add_u32 m0, s60, {WRING + ((stage + 2) % 4)*16384}",
                [f"buffer_load_dwordx4 v{QWD+i}, s[12:15], s61 offen offset:{i*1024} lds" for i in range(4)], "s_add_u32 s61, s61, 0x80000")

    def xloads(ks):
        return (None, [f"buffer_load_dwordx4 {aq(XS(ks) + 4*qb)}, v{(QX, VLW, QX+1, VLR)[qb]}, s[8:11], s62 offen sc1" for qb in range(4)],
                "s_add_u32 s62, s62, 0x20000")

    def kvstore(n, srd):
        return (f"s_add_u32 s52, s47, {(n // 16) * 0x80000 + (((n % 16) * 1024) & ~4095)}",
                [f"buffer_store_dwordx4 v[{PK+n*4}:{PK+3+n*4}], v{V_LANE16}, {srd}, s52 offen offset:{(n*1024) & 4095} sc1"], None)

    PRE = [0, 1, 8, 9, 16, 17, 24, 25, 2, 4, 10, 12, 18, 20, 5, 13][:ENV("NPRE", 8)]
    REST = [n for n in range(32) if n not in PRE]
    NR = len(REST)

    def wreads(stage, sp, buf):
        out = []
        for j in range(8):
            b = QF[buf] + 4 * j
            out.append(f"ds_read_b64_tr_b16 a[{b}:{b+1}], v{QWR+j} offset:{((stage + 2) % 4)*16384 + sp*8192}")
            out.append(f"ds_read_b64_tr_b16 a[{b+2}:{b+3}], v{QWR+j} offset:{((stage + 2) % 4)*16384 + sp*8192 + 1024}")
        return out

    def qacc(db, qb):
        return ("v", 192 + (db * 2 + qb) * 4) if qb < 2 else ("a", 64 + (db * 2 + qb - 2) * 4)

    for isv in range(2):
        if isv:
            a.label(lv)
        loop, last = a.uid("k12_loop"), a.uid("k12_last")
        a.label(loop)
        for st in range(2):
            if st == 1:
                a("s_cmp_eq_u32 s51, 7")
                a(f"s_cbranch_scc1 {last}")
            ops = spread(wrd(st, range(4, 8)), "M", 1, 48)
            if st == 0:
                ops.append(when("s_cmp_eq_u32 s51, s46", f"buffer_load_dword v{VPOLL}, v{ZERO}, s[24:27], 0 offen sc1", 4))
            gt = (when("s_cmp_eq_u32 s51, s46", spin_text(a, 0, 256), 0).text + "\n") if st == 0 else ""
            ops.append(Op(tr_wrap("s_waitcnt vmcnt(0) lgkmcnt(0)\n" + gt + "s_barrier"), "S", 63, lo=63, hard=63, after=list(ops)))
            schedule(a, mfmas(st, 0, isv), ops)
            rd = spread(mix(xreads(1 - st), wrd(1 - st, range(4))), "M", 1, 54)
            pre = []
            if st == 0:
                pre = [Op("s_cmp_ge_u32 s49, 1024\ns_cselect_b32 s18, 0, s18\ns_cselect_b32 s22, 0, s22", "S", 0, hard=0)]
            dm, dl = grp_sched([dma_grp(st, g) for g in range(4)], 1, ENV("GD1", 56), after=pre)
            sig = when("s_cmp_eq_u32 s51, s53", one_lane(f"buffer_atomic_add v{ONE}, v{ZERO}, s[24:27], 0 offen sc1"), 58, after=dl)
            ops = rd + pre + dm + [sig]
            cnt_after = [sig]
            p_ = when("s_cmp_eq_u32 s51, s63", pf, 59, after=dl)
            ops.append(p_)
            cnt_after.append(p_)
            if st == 1:
                p_ = when("s_cmp_eq_u32 s51, 5", cpf, 60, after=dl)
            else:
                p_ = when("s_cmp_eq_u32 s51, 6", "\n".join(g[0] + "\ns_nop 0\n" + "\n".join(g[1]) + "\n" + g[2] for g in (wdma(0), wdma(1))), 60, after=dl)
            ops.append(p_)
            cnt_after.append(p_)
            ops.append(Op("s_add_u32 s51, s51, 1", "S", 62, after=cnt_after))
            ops.append(Op("s_waitcnt lgkmcnt(0)", "S", 63, lo=63, hard=63, after=rd))
            schedule(a, mfmas(st, 1, isv), ops)
        a(f"s_branch {loop}")
        a.label(last)
        stamp(a, 2)
        seq = [(c, j) for j in range(8) for c in range(4)] if isv else [(c, j) for c in range(4) for j in range(8)]
        mf, ops = [], []
        done = {}
        tuse = []
        for pos, (c, j) in enumerate(seq):
            n = pair_n(c, j, isv)
            for i in (2 * c, 2 * c + 1):
                mf += mf2(j, i, 1, isv) if isv else mf2(i, j, 1, isv)
            g0 = 4 * pos + 3 + 6
            d = PK + 4 * n
            if n < 24:
                x, y = 64 + 4 * n, 160 + 4 * n
                tx = [f"v_cvt_pk_bf16_f32 v{d}, v{x}, v{x+1}", f"v_cvt_pk_bf16_f32 v{d+1}, v{x+2}, v{x+3}",
                      f"v_cvt_pk_bf16_f32 v{d+2}, v{y}, v{y+1}", f"v_cvt_pk_bf16_f32 v{d+3}, v{y+2}, v{y+3}"]
                o = spread(tx, "A", g0, g0 + 2)
            else:
                x = 128 + 8 * (n - 24)
                tx = [f"v_accvgpr_read_b32 v{PT+r}, a{x+r}" for r in range(8)]
                tx += [f"v_cvt_pk_bf16_f32 v{d+r}, v{PT+2*r}, v{PT+2*r+1}" for r in range(4)]
                o = spread(tx, "A", g0, g0 + 5)
                o[0].after += tuse + [done[n - 24]]
                tuse = [o[-1]]
            done[n] = o[-1]
            ops += o
        w47 = spread(wrd(1, range(4, 8)), "M", 1, 40)
        ld, ll = grp_sched([xloads(0), xloads(1), xloads(2)], 0, 24)
        ops += w47 + ld + [Op("s_waitcnt lgkmcnt(0)", "S", 60, lo=60, hard=62, after=w47)]
        prev_ = list(ll)
        for k_, n_ in enumerate(sorted(PRE, key=lambda n: done[n].want)):
            m_, l_, _ = kvstore(n_, "s[32:35]")
            w_ = ENV("PS0", 28) + k_ * (126 - ENV("PS0", 28)) / max(1, len(PRE))
            o1 = Op(m_, "S", w_ - 1, after=prev_)
            o2 = Op(l_[0], "V", w_, after=[o1, done[n_]])
            ops += [o1, o2]
            prev_ = [o2]
        bar = Op("s_waitcnt vmcnt(12)\ns_barrier", "S", 96, lo=96, after=ll)
        rd = spread(wreads(0, 0, 0), "M", 97, 120)
        rd[0].after.append(bar)
        ops += [bar] + rd
        schedule(a, mf, ops)
        if not isv:
            a(f"s_branch {joined}")
    a.label(joined)
    a.label("k12_qcode")
    a("s_mov_b64 s[48:49], s[32:33]")
    a("s_mov_b32 s51, 0x00020000")
    a("s_cmp_eq_u32 s45, 0")
    a("s_mov_b32 s50, s34")
    a("s_cselect_b32 s56, s30, -1")
    a("s_cselect_b32 s57, -1, s30")
    a(tr_wrap(f"s_waitcnt vmcnt({8 + len(PRE)}) lgkmcnt(0)"))

    NS = ENV("NS", 20)
    PSIG = ENV('PSIG', NS + 3)
    PPOLL = ENV("PPOLL", 27)
    assert PSIG % 2 == 1 and PPOLL % 2 == 1 and PSIG < PPOLL
    queue = ["W0"] * 4 + ["W1"] * 4 + ["X0"] * 4 + ["X1"] * 4 + ["X2"] * 4 + ["L"] * len(PRE)

    def younger(tag):
        if tag not in queue:
            return 63
        return len(queue) - 1 - max(i for i, t in enumerate(queue) if t == tag)

    kvsrd = ["s_lshl_b32 s31, s28, 14", "s_add_u32 s16, s6, s31\ns_addc_u32 s17, s7, 0",
             f"s_add_u32 s20, s16, 0x{VF_OFF:x}\ns_addc_u32 s21, s17, 0", f"s_add_u32 s16, s16, 0x{KF_OFF:x}\ns_addc_u32 s17, s17, 0",
             "s_and_b32 s17, s17, 0xffff", "s_and_b32 s21, s21, 0xffff", "s_lshl_b32 s31, s29, 20", "s_sub_u32 s18, 0xf84000, s31",
             "s_mov_b32 s22, s18",
             f"s_add_u32 s24, s6, 0x{KVC_OFF:x}\ns_addc_u32 s25, s7, 0", "s_and_b32 s25, s25, 0xffff", "s_mov_b32 s26, 4096"]

    def kdma():
        return ("s_mov_b32 m0, s34", [f"buffer_load_dwordx4 v{V_LANE16}, s[16:19], s32 offen offset:{i*1024}{LDF} lds" for i in range(4)],
                "s_add_u32 s32, s32, 0x80000\ns_add_u32 s34, s34, 0x4000")

    def vdma():
        return ("s_mov_b32 m0, s35", [f"buffer_load_dwordx4 v{V_LANE16}, s[20:23], s33 offen offset:{i*1024}{LDF} lds" for i in range(4)],
                "s_add_u32 s33, s33, 0x80000\ns_add_u32 s35, s35, 0x4000")

    NL = ENV('NL', 29)
    NE0 = (NS * NR) // NL
    sn, sl_, nx, nw = NE0, 0, 3, 2
    assert NL <= PPOLL + 2
    S0 = ENV("S0", 0)
    for ks in range(32):
        st, sp = ks // 2, ks % 2
        ops = []
        rd = []
        if ks < 31:
            rd = spread(wreads(st, 1, 1) if sp == 0 else wreads(st + 1, 0, 0), "M", 0, 22)
        ops += rd
        grps, tags = [], []
        while nw < 16 and ((sp == 1 and nw <= st + DW) or (ks == 0 and nw < DW)):
            grps.append(wdma(nw)); tags.append(f"W{nw}"); nw += 1
        for _ in range(2):
            if nx < 32 and nx <= ks + DX:
                grps.append(xloads(nx)); tags.append(f"X{nx}"); nx += 1
        while sl_ < NR and sl_ < ((ks + 1) * NR) // NL:
            grps.append(kvstore(REST[sl_], "s[48:51]")); tags.append("L"); sl_ += 1
        early = []
        while ks < NS and sn < NR and sn < NE0 + ((ks + 1) * (NR - NE0) + NS - 1) // NS:
            m_, l_, _ = kvstore(REST[sn], "s[48:51]")
            early += [m_, l_[0]]
            sn += 1
        head = []
        if ks == 0:
            ops += spread(kvsrd, "S", 6, 30)
        if ks == PSIG:
            head = [when("s_cmp_eq_u32 s56, 0", one_lane(f"buffer_atomic_add v{ONE}, v{ZERO}, s[24:27], s54 offen sc1"), 0)]
            ops += spread(k2.kv_first(), "S", 8, 20)
        if ks == 24:
            ops.append(Op("v_add_co_u32 v2, vcc, 0x4000, v2\ns_nop 1\nv_addc_co_u32 v3, vcc, 0, v3, vcc\n" + cpf, "B", 29))
        if ks == PPOLL:
            head = [when("s_cmp_eq_u32 s30, 0", f"buffer_load_dword v{VPOLL}, v{ZERO}, s[24:27], s55 offen sc1", 0)]
            qpoll = len(queue)
        if ks == PPOLL + 2:
            grps += [kdma(), kdma()]; tags += ["K0", "K1"]
        if ks == PPOLL + 3:
            grps += [vdma(), kdma()]; tags += ["V0", "K2"]
        if ks == PPOLL + 4:
            grps += [vdma()]; tags += ["V1"]
        ops += head
        if grps:
            g, gl_ = grp_sched(grps, 1, 27, after=head)
            ops += g
        if ks == NS - 1:
            early.append("s_mov_b32 s50, 0")
        if early:
            ops.append(when("s_cmp_eq_u32 s45, 0", "\n".join(early), 29, after=gl_))
        for gr, tg in zip(grps, tags):
            queue += [tg] * len(gr[1])
        if ks == NS - 1:
            assert sn == NR and sl_ == NE0
            qearly = len(queue)
        if ks < 31:
            nk = ks + 1
            wv = younger(f"X{nk}")
            if nk % 2:
                wv = min(wv, younger(f"W{nk // 2 + 1}"))
            if nk == PSIG:
                wv = min(wv, len(queue) - qearly)
            wv = min(wv, 63)
            prevw = wv
            wtxt = f"s_waitcnt vmcnt({wv}) lgkmcnt(0)"
            if ks == PPOLL + 1:
                ops.append(when("s_cmp_eq_u32 s30, 0", f"s_waitcnt vmcnt({len(queue) - qpoll})\n" + spin_text(a, "s55", 2), 29, lo=28, after=[o for o in ops if o.cls == "V"]))
            if nk % 2:
                wtxt = tr_wrap(wtxt + "\ns_barrier") if nk % 4 == 1 else wtxt + "\ns_barrier"
            ops.append(Op(wtxt, "S", 31, lo=31, hard=31, after=[o for o in ops if o.cls in "MVB"]))
        mf = []
        for db in range(8):
            for qb in range(4):
                k, c = qacc(db, qb)
                r = f"{k}[{c}:{c+3}]"
                mf.append(mfma16(r, aq(QF[sp] + 4 * db), aq(XS(ks) + 4 * qb), "0" if ks == 0 else r))
        schedule(a, mf, ops)
    assert PPOLL + 4 <= 31
    stamp(a, 3)
    assert younger("L") >= 8
    a("s_add_u32 s3, s54, 64")
    a("s_add_u32 s5, s55, 64")
    a("s_mov_b32 s63, s57")
    late = dict(
        sig=when("s_cmp_eq_u32 s63, 0", one_lane(f"buffer_atomic_add v{ONE}, v{ZERO}, s[24:27], s3 offen sc1"), 0).text,
        poll=lambda: when("s_cmp_eq_u32 s30, 0", "buffer_load_dword v58, v59, s[24:27], s5 offen sc1", 2),
        gate=lambda **kw: when("s_cmp_eq_u32 s30, 0", "s_waitcnt vmcnt(0)\n" + spin_text(a, "s5", 14, 58, 59), 29, **kw))
    attention_phase(a, end, 0, qacc, late, stubs=stubs, next_code='op_head' if fuse else (None if os.environ.get('WHICH') == 'k12' else 'k3_kernel'), when=when if fuse else None, ffn=ffn)
    a.end_kernel(name, 256, 256)
    a.launch(name, 256, 256, 163840)
```

```python
from common import *
import common, os
from sched import Op, spread, schedule

SPIN_MAX = 1 << 20
R = 64
XO, WDM, WRD = R + 24, R + 26, R + 0
G, PO, PV_, Z, ONE = R + 8, R + 9, R + 10, R + 11, R + 12
STO, HO, WO, CA = R + 13, R + 14, R + 16, R + 18
DUM = R + 20
ACC, XE, WR, SA = 128, 192, 208, 208
XR = 128
FW = [0, 64]


def vq(b):
    return f"v[{b}:{b+3}]"


def aq(b):
    return f"a[{b}:{b+3}]"


def one_lane(text):
    return f"s_mov_b64 exec, 1\n{text}\ns_mov_b64 exec, -1"


def wdma(p):
    return (f"s_add_u32 m0, s60, {(p % 4)*16384}",
            [f"buffer_load_dwordx4 v{WDM+i}, s[12:15], s61 offen offset:{i*1024} lds" for i in range(4)],
            "s_add_u32 s61, s61, 0x20000\ns_and_b32 s61, s61, 0x3fffff")


def xloads(p):
    return (None, [f"buffer_load_dwordx4 {aq(XR + (p % 4)*16 + 8*ks + 4*tb)}, v{XO+ks}, s[8:11], s62 offen offset:{tb*1024} sc1" for ks in range(2) for tb in range(2)],
            "s_add_u32 s62, s62, 0x40000\ns_and_b32 s62, s62, 0x7fffff")


def early_loads(a):
    a(f"s_load_dwordx2 s[4:5], s[0:1], {ARG['wo']}")


def early(a):
    T0, T1, T2, LN = R + 20, R + 21, R + 22, R + 23
    a("s_lshr_b32 s31, s2, 3")
    a("s_bfe_u32 s56, s2, 0x10002")
    a("s_and_b32 s54, s2, 1")
    a("s_and_b32 s55, s31, 7")
    if os.environ.get("TMIX", "0") == "1":
        a("s_lshl_b32 s55, s55, 1")
    else:
        a("s_lshl_b32 s54, s54, 3")
    a("s_add_u32 s54, s54, s55")
    a("s_and_b32 s55, s2, 2")
    a("s_lshl_b32 s55, s55, 1")
    a("s_lshr_b32 s31, s31, 3")
    a("s_add_u32 s55, s55, s31")
    a(f"v_lshrrev_b32 v{LN}, 4, v1")
    a(f"v_lshrrev_b32 v{G}, 4, v{LN}")
    a("s_lshl_b32 s57, s54, 7")
    a("s_lshl_b32 s31, s30, 5")
    a("s_add_u32 s57, s57, s31")
    a("s_lshl_b32 s31, s57, 6")
    a(f"v_add_u32 v{XO}, s31, v1")
    a(f"v_add_u32 v{XO+1}, 0x20000, v{XO}")
    a(f"v_bfe_u32 v{T0}, v{LN}, 1, 3")
    a(f"v_xor_b32 v{T0}, v{T0}, v{G}")
    a(f"v_and_b32 v{T1}, 16, v1")
    a(f"v_lshl_add_u32 v{T1}, v{G}, 11, v{T1}")
    a("s_lshl_b32 s31, s30, 15")
    a("s_lshl_b32 s58, s55, 8")
    a("s_add_u32 s31, s31, s58")
    a(f"v_add_u32 v{T1}, s31, v{T1}")
    for i in range(4):
        a(f"v_xor_b32 v{T2}, {(i % 2) * 4}, v{T0}")
        a(f"v_lshl_add_u32 v{T2}, v{T2}, 5, v{T1}")
        a(f"v_add_u32 v{WDM+i}, {4*i*2048 - i*1024}, v{T2}")
        if os.environ.get("WLIN"):
            a("s_lshl_b32 s31, s55, 14")
            a("s_lshl_b32 s40, s30, 12")
            a("s_add_u32 s31, s31, s40")
            a(f"v_add_u32 v{WDM+i}, s31, v1")
    a(f"v_and_b32 v{T0}, 15, v{LN}")
    a(f"v_add_u32 v{T1}, s57, v{T0}")
    a(f"v_lshlrev_b32 v{STO}, 2, v{T1}")
    a(f"v_lshl_add_u32 v{STO}, v{G}, 13, v{STO}")
    a("s_lshl_b32 s31, s56, 7")
    a("s_add_u32 s58, s58, s31")
    a(f"v_lshl_add_u32 v{WO}, v{G}, 3, s58")
    a(f"v_lshl_add_u32 v{HO}, v{T1}, 11, v{WO}")
    a(f"v_add_u32 v{HO+1}, 0x8000, v{HO}")
    a(f"v_lshrrev_b32 v{T1}, 2, v{T0}")
    a(f"v_lshl_add_u32 v{T1}, v{G}, 2, v{T1}")
    a(f"v_and_b32 v{T0}, 7, v{T1}")
    a("s_lshl_b32 s31, s56, 2")
    a(f"v_xor_b32 v{T0}, s31, v{T0}")
    a(f"v_lshlrev_b32 v{T1}, 8, v{T1}")
    a(f"v_and_b32 v{T2}, 3, v{LN}")
    a(f"v_lshl_add_u32 v{T1}, v{T2}, 3, v{T1}")
    a("s_add_u32 s31, s2, 1")
    a("s_and_b32 s31, s31, 3")
    a(f"v_add_u32 v{PO}, s31, v{T2}")
    a(f"v_and_b32 v{PO}, 3, v{PO}")
    a(f"v_lshlrev_b32 v{PO}, 7, v{PO}")
    for j in range(8):
        a(f"v_xor_b32 v{T2}, {j}, v{T0}")
        a(f"v_lshl_add_u32 v{WRD+j}, v{T2}, 5, v{T1}")
    a("s_lshl_b32 s61, s31, 20")
    a("s_lshl_b32 s62, s31, 21")
    a("s_lshl_b32 s60, s30, 12")
    a("s_lshl_b32 s59, s54, 10")
    a("s_lshl_b32 s31, s56, 9")
    a("s_add_u32 s59, s59, s31")
    a("s_lshr_b32 s31, s28, 2")
    a("s_lshl_b32 s31, s31, 7")
    a("s_lshl_b32 s57, s29, 10")
    a("s_sub_u32 s58, 0x3c00, s57")
    a("s_add_u32 s57, s57, s31")
    a("s_add_u32 s58, s58, s31")
    a(f"v_mov_b32 v{Z}, 0")
    a(f"v_mov_b32 v{ONE}, 1")
    a("s_lshl_b32 s31, s56, 23")
    a(f"s_add_u32 s31, s31, 0x{CTX_OFF:x}")
    a("s_add_u32 s8, s6, s31")
    a("s_addc_u32 s9, s7, 0")
    a("s_and_b32 s9, s9, 0xffff")
    a("s_mov_b32 s10, 0x800000")
    a("s_lshl_b32 s31, s56, 22")
    a("s_waitcnt lgkmcnt(0)")
    a("s_add_u32 s12, s4, s31")
    a("s_addc_u32 s13, s5, 0")
    a("s_and_b32 s13, s13, 0xffff")
    a("s_mov_b32 s14, 0x400000")


POLL = f"buffer_load_dword v{PV_}, v{PO}, s[16:19], s59 offen sc1"


def e1_ops(a, when, bar, n):
    a.srd_off(16, 6, CTC_OFF, 16384)
    sig = when("s_cmp_eq_u32 s30, 0", one_lane(f"buffer_atomic_add v{ONE}, v{Z}, s[16:19], s57 offen sc1"), 1, after=[bar])
    ops, prev = [sig], [sig]
    k = 0
    for p in range(3):
        m, ld, tr = wdma(p)
        mo = Op(m, "S", 2 + 2.5 * k, after=prev)
        ops.append(mo)
        for t in ld:
            o = Op(t, "V", 3 + 2.5 * k, after=prev, prev_gap=[mo])
            ops.append(o)
            prev = [o]
            k += 1
        o = Op(tr, "S", 3 + 2.5 * k, after=prev)
        ops.append(o)
        prev = [o]
    ops.append(Op(POLL, "V", n - 1, after=prev))
    return ops


def spin(a, bit):
    lp, ok = a.uid("op_spin"), a.uid("op_ok")
    return "\n".join([f"s_mov_b32 s34, {SPIN_MAX}", f"{lp}:", POLL, "s_waitcnt vmcnt(0)", f"v_cmp_le_u32 vcc, 4, v{PV_}",
                      "s_sub_u32 s34, s34, 1", f"s_cbranch_scc1 {ok}", "s_mov_b32 s33, vcc_lo", f"s_bitcmp1_b32 s33, {bit}",
                      f"s_cbranch_scc1 {ok}", "s_sleep 4", f"s_branch {lp}", f"{ok}:"])


def finish(a, when, ffn=None):
    def now(g):
        for t in g[1] + [g[2]]:
            a(t)
    a.label("op_head")
    a(f"s_load_dwordx2 s[28:29], s[0:1], {ARG['x']}")
    a(f"s_load_dwordx2 s[42:43], s[0:1], {ARG['wr']}")
    late, join = a.uid("op_late"), a.uid("op_join")
    a("s_waitcnt vmcnt(8)")
    a(f"v_cmp_le_u32 vcc, 4, v{PV_}")
    zero_acc(a, ACC, 64, 56, "v")
    a("s_mov_b32 s33, vcc_lo")
    a("s_bitcmp1_b32 s33, 0")
    a(f"s_cbranch_scc0 {late}")
    for p in range(3):
        now(xloads(p))
    a("s_waitcnt vmcnt(12)")
    a(f"s_branch {join}")
    a.label(late)
    a("s_waitcnt vmcnt(0)")
    a.label(join)
    a("s_barrier")
    a(when("s_cmp_eq_u32 s30, 0", one_lane(f"buffer_atomic_add v{ONE}, v{Z}, s[16:19], s58 offen sc1"), 0).text)
    a(when("s_bitcmp0_b32 s33, 0", spin(a, 0) + "\n" + "\n".join("\n".join(xloads(p)[1] + [xloads(p)[2]]) for p in range(3)), 0).text)

    def wreads(p):
        out = []
        for ks in range(2):
            for cb in range(8):
                b = FW[p % 2] + (ks * 8 + cb) * 4
                off = (p % 4) * 16384 + ks * 8192
                out.append(f"ds_read_b64_tr_b16 a[{b}:{b+1}], v{WRD+cb} offset:{off}")
                out.append(f"ds_read_b64_tr_b16 a[{b+2}:{b+3}], v{WRD+cb} offset:{off + 4096}")
        return out

    def mf(p):
        out = []
        for cb in (4, 5, 6, 7, 0, 1, 2, 3):
            for tb in range(2):
                for ks in range(2):
                    c = vq(ACC + (cb * 2 + tb) * 4)
                    out.append(mfma16(c, aq(FW[p % 2] + (ks * 8 + cb) * 4), aq(XR + (p % 4) * 16 + 8 * ks + 4 * tb), c))
        return out

    for t in wreads(0):
        a(t)
    a.srd_off(24, 6, H_OFF, 4 << 20)
    a.srd_off(36, 6, XCH_OFF, 8 << 20)
    a.srd_off(48, 6, XFL_OFF, 32768)
    a("s_lshl_b32 s52, s2, 14")
    a("s_add_u32 s52, s52, s60")
    a("s_xor_b32 s53, s52, 0x10000")
    a("s_lshl_b32 s57, s2, 7")
    a("s_xor_b32 s58, s57, 0x200")
    a("v_lshrrev_b32 v56, 4, v1")
    a("s_lshl_b32 s31, s30, 6")
    if not ffn:
        a("s_add_u32 s31, s31, (op_tail2-op_tail)/128-64")
        a("s_cmp_eq_u32 s30, 0")
        a("s_cselect_b32 s31, 0, s31")
    else:
        a("s_and_b32 s31, s31, 64")
    a("v_add_u32 v56, s31, v56")
    a("s_mov_b32 s31, (code_end-op_tail)/128")
    a("v_min_u32 v56, s31, v56")
    code_addr(a, "op_tail", CA, 56, 40)
    if ffn:
        ffn.setup(a)
    a("s_mov_b32 s63, 0")
    a("s_waitcnt vmcnt(8) lgkmcnt(0)")
    a.srd(20, 28, 4 << 20)
    a.srd(44, 42, 2048)
    epi = []
    for tb in range(2):
        for cb in range(4):
            b = XE + (tb * 4 + cb) * 2
            epi.append(f"buffer_load_dwordx2 v[{b}:{b+1}], v{HO+tb}, s[20:23], 0 offen offset:{cb*32}")
    for cb in range(4):
        epi.append(f"buffer_load_dwordx2 v[{WR+2*cb}:{WR+2*cb+1}], v{WO}, s[44:47], 0 offen offset:{cb*32}")
    epi += [f"global_load_dword v{DUM}, v[{CA}:{CA+1}], off", "s_mov_b32 s10, 0", "s_mov_b32 s14, 0"]
    stamp(a, 5)
    loop = a.uid("op_loop")
    a.label(loop)
    for p in range(4):
        rd = spread(wreads(p + 1), "M", 0, 25)
        ops = list(rd)
        prev = []
        if p == 1:
            c1 = Op(f"v_cmp_le_u32 vcc, 4, v{PV_}", "A", 0)
            c2 = Op("s_add_u32 s32, s63, 1\ns_lshr_b32 s32, s32, 1", "S", 0)
            c3 = Op("s_or_b32 s33, vcc_lo, 16", "S", 3, after=[c1], prev_gap=[c1])
            gate = when("s_bitcmp0_b32 s33, s32", spin(a, "s32"), 6, after=[c2, c3])
            ops += [c1, c2, c3, gate]
        k = 0
        for (m, ld, tr) in (wdma(p + 3), xloads(p + 3)):
            mo = None
            if m:
                mo = Op(m, "S", 0)
                ops.append(mo)
            elif p == 1:
                prev = prev + [gate]
            for t in ld:
                o = Op(t, "V", 1 + 3.5 * k, after=prev, prev_gap=[mo] if mo else [])
                ops.append(o)
                prev = [o]
                k += 1
            ops.append(Op(tr, "S", 2 + 3.5 * k, after=prev))
        if ffn and ffn.THIN:
            T0 = int(os.environ.get("THIN0", "3"))
            if p == 0:
                wr = "s_mov_b32 s44, s42\ns_and_b32 s45, s43, 0xffff\ns_mov_b32 s46, 2048\n"
                ops.append(when("s_cmp_eq_u32 s63, 7", wr + "\n".join(epi), 29, lo=26, after=prev + rd))
                ops.append(when(f"s_cmp_eq_u32 s63, {T0 - 1}", ffn.POLL64, 25, after=prev))
            if p == 3:
                g1 = when(f"s_cmp_eq_u32 s63, {T0 - 1}", ffn.gate_text(a), 24, after=prev)
                ops.append(g1)
                prev = prev + [g1]
            th = when(f"s_sub_u32 s40, s63, {T0}\ns_cmp_lt_u32 s40, 4", ffn.THIN_TEXT, 27, after=prev)
            ops.append(th)
            prev = prev + [th]
            if p == 3:
                g2 = when(f"s_cmp_eq_u32 s63, {T0 + 1}", ffn.THIN_FLIP, 29, after=prev)
                ops.append(g2)
                prev = prev + [g2]
        elif p == 0:
            ops.append(when("s_cmp_eq_u32 s63, 7", "\n".join(epi) + ("\n" + ffn.gate_text(a) if ffn else ""), 29, lo=26, after=prev + rd))
        elif ffn:
            if p == 1:
                ops.append(when("s_cmp_eq_u32 s63, 6", ffn.POLL64, 27, after=prev))
        if p == 2:
            pl = Op(POLL, "V", 0.5)
            ops.append(pl)
            for o in ops:
                if o.cls == "V" and o is not pl and not [d for d in o.after if d.cls == "V"]:
                    o.after.append(pl)
        if p == 3:
            ops.append(Op("s_add_u32 s63, s63, 1", "S", 30, after=prev))
        ops.append(Op(f"s_waitcnt vmcnt(12) lgkmcnt(0)\ns_barrier", "S", 31, lo=31, hard=31, after=[o for o in ops if o.cls in "MVB"]))
        schedule(a, mf(p), ops)
    a("s_cmp_lt_u32 s63, 8")
    a(f"s_cbranch_scc1 {loop}")
    a.label("op_tail")
    stamp(a, 6)
    a("s_nop 1")
    for q in range(4):
        c = ACC + 32 + 8 * q
        for r in range(4):
            a(f"v_cvt_pk_bf16_f32 v{c+r}, v{c+2*r}, v{c+2*r+1}")
        if ffn:
            for r in range(4):
                a(f"v_min_u32 v{c+r}, -2, v{c+r}")
        a(f"buffer_store_dwordx4 {vq(c)}, v1, s[36:39], s52 offen offset:{q*1024} sc1")
    a.srd_off(32, 6, STATS_OFF, 3 * 8192)
    a("s_waitcnt vmcnt(4) lgkmcnt(0)")
    for cb in range(4):
        for tb in range(2):
            c, xb = ACC + (cb * 2 + tb) * 4, XE + (tb * 4 + cb) * 2
            for h in range(2):
                a(f"v_lshlrev_b32 v58, 16, v{xb+h}")
                a(f"v_and_b32 v59, 0xffff0000, v{xb+h}")
                a(f"v_pk_add_f32 v[{c+2*h}:{c+2*h+1}], v[{c+2*h}:{c+2*h+1}], v[58:59]")
    a(f"v_and_b32 v58, 1, v{G}")
    a(f"v_lshrrev_b32 v59, 1, v{G}")
    a("v_lshlrev_b32 v58, 5, v58")
    a("v_lshl_add_u32 v58, v59, 4, v58")
    a(f"v_lshlrev_b32 v59, 3, v{G}")
    a("v_sub_u32 v58, v58, v59")
    a(f"v_add_u32 v{HO}, v{HO}, v58")
    a(f"v_add_u32 v{HO+1}, v{HO+1}, v58")
    for i in range(8):
        a(f"v_lshlrev_b32 v{32+2*i}, 16, v{WR+i}")
        a(f"v_and_b32 v{33+2*i}, 0xffff0000, v{WR+i}")
    nw = a.uid("op_nowr")
    a("s_or_b32 s31, s54, s30")
    a(f"s_cbranch_scc1 {nw}")
    a("v_pk_add_f32 v[56:57], v[32:33], v[34:35]")
    for i in range(4, 16, 2):
        a(f"v_pk_add_f32 v[56:57], v[56:57], v[{32+i}:{33+i}]")
    a("v_add_f32 v56, v56, v57")
    for sw in ("v_permlane16_swap_b32", "v_permlane32_swap_b32"):
        a("v_mov_b32 v57, v56")
        a("s_nop 1")
        a(f"{sw} v56, v57")
        a("s_nop 1")
        a("v_add_f32 v56, v56, v57")
    a(f"s_mov_b32 s31, {WRSUM_OFF - STATS_OFF}")
    a(f"s_mov_b32 s34, {WRSUM_OFF - STATS_OFF + 4}")
    a(one_lane(f"buffer_atomic_add_f32 v56, v{Z}, s[32:35], s31 offen"))
    a(f"s_mov_b32 s34, {3 * 8192}")
    a.label(nw)
    for i in range(12):
        a(f"v_mov_b32 v{SA+i}, 0")
    XI = ACC + 32
    if ffn:
        XI = 224
        lp, ok = a.uid("op_xspin"), a.uid("op_xok")
        a(f"s_mov_b32 s40, {SPIN_MAX}")
        a.label(lp)
        for q in range(4):
            a(f"buffer_load_dwordx4 {vq(XI + 4*q)}, v1, s[36:39], s53 offen offset:{q*1024} sc1")
        a("s_sub_u32 s40, s40, 1")
        a("s_waitcnt vmcnt(0)")
        a(f"s_cbranch_scc1 {ok}")
        a(f"v_max3_u32 v56, v{XI}, v{XI+1}, v{XI+2}")
        for r in range(3, 15, 2):
            a(f"v_max3_u32 v56, v56, v{XI+r}, v{XI+r+1}")
        a(f"v_max_u32 v56, v56, v{XI+15}")
        a("v_cmp_eq_u32 vcc, -1, v56")
        a(f"s_cbranch_vccz {ok}")
        a("s_sleep 2")
        a(f"s_branch {lp}")
        a.label(ok)
    else:
        a("s_waitcnt vmcnt(0)")
        a("s_barrier")
        sk, lp = a.uid("op_nopoll"), a.uid("op_xspin")
        a("s_cmp_lg_u32 s30, 0")
        a(f"s_cbranch_scc1 {sk}")
        a(one_lane(f"buffer_store_dword v{ONE}, v{Z}, s[48:51], s57 offen sc1"))
        a(f"s_mov_b32 s40, {SPIN_MAX}")
        a.label(lp)
        a(f"buffer_load_dword v{DUM}, v{Z}, s[48:51], s58 offen sc1")
        a("s_waitcnt vmcnt(0)")
        a(f"v_readfirstlane_b32 s41, v{DUM}")
        a("s_sub_u32 s40, s40, 1")
        a("s_cselect_b32 s41, 1, s41")
        a("s_cmp_eq_u32 s41, 0")
        a(f"s_cbranch_scc1 {lp}")
        a.label(sk)
        a("s_barrier")
        for q in range(4):
            a(f"buffer_load_dwordx4 {vq(ACC + 32 + 4*q)}, v1, s[36:39], s53 offen offset:{q*1024} sc1")
    P2 = lambda r: f"v[{r}:{r+1}]"
    nst = 0
    for cb in range(4):
        if not ffn:
            a(f"s_waitcnt vmcnt({3 - cb + nst})")
        for tb in range(2):
            c = ACC + (cb * 2 + tb) * 4
            xb = XE + (tb * 4 + cb) * 2
            S = SA + tb * 6
            for h in range(2):
                src = XI + 4 * cb + 2 * tb + h
                a(f"v_lshlrev_b32 v{56+2*h}, 16, v{src}")
                a(f"v_and_b32 v{57+2*h}, 0xffff0000, v{src}")
            for h in range(2):
                a(f"v_pk_add_f32 {P2(c+2*h)}, {P2(c+2*h)}, {P2(56+2*h)}")
            for h in range(2):
                a(f"v_cvt_pk_bf16_f32 v{xb+h}, v{c+2*h}, v{c+2*h+1}")
            for h in range(2):
                a(f"v_lshlrev_b32 v{c+2*h}, 16, v{xb+h}")
                a(f"v_and_b32 v{c+2*h+1}, 0xffff0000, v{xb+h}")
            if cb % 2:
                a(f"v_permlane16_swap_b32 v{xb-2}, v{xb}")
                a(f"v_permlane16_swap_b32 v{xb-1}, v{xb+1}")
                a(f"buffer_store_dwordx4 {vq(xb-2)}, v{HO+tb}, s[24:27], 0 offen offset:{(cb//2)*64} sc1")
                nst += 1
            for h in range(2):
                a(f"v_pk_add_f32 {P2(S)}, {P2(S)}, {P2(c+2*h)}")
                a(f"v_pk_fma_f32 {P2(S+2)}, {P2(c+2*h)}, {P2(c+2*h)}, {P2(S+2)}")
                a(f"v_pk_fma_f32 {P2(S+4)}, {P2(c+2*h)}, {P2(32+cb*4+2*h)}, {P2(S+4)}")
    for tb in range(2):
        for k in range(3):
            a(f"v_add_f32 v{48+tb*4+k}, v{SA+tb*6+2*k}, v{SA+tb*6+2*k+1}")
    regs = [48, 49, 50, 52, 53, 54]
    for sw in ("v_permlane16_swap_b32", "v_permlane32_swap_b32"):
        for i, r in enumerate(regs):
            a(f"v_mov_b32 v{56+i}, v{r}")
        a("s_nop 1")
        for i, r in enumerate(regs):
            a(f"{sw} v{r}, v{56+i}")
        a("s_nop 1")
        for i, r in enumerate(regs):
            a(f"v_add_f32 v{r}, v{r}, v{56+i}")
    a(f"v_cmp_eq_u32 s[40:41], 1, v{G}")
    a(f"v_cmp_eq_u32 s[42:43], 2, v{G}")
    a("s_nop 1")
    for tb in range(2):
        b = 48 + tb * 4
        a(f"v_cndmask_b32 v{b}, v{b}, v{b+1}, s[40:41]")
        a(f"v_cndmask_b32 v{b}, v{b}, v{b+2}, s[42:43]")
        a(f"buffer_atomic_add_f32 v{b}, v{STO}, s[32:35], 0 offen offset:{tb*64}")
    if ffn:
        ffn.tail(a)
        return
    a("s_and_b32 s56, s2, 7")
    a("s_mul_i32 s56, s56, 28")
    a("s_lshr_b32 s31, s2, 3")
    a("s_add_u32 s56, s56, s31")
    a("s_lshl_b32 s56, s56, 15")
    a("s_lshl_b32 s57, s30, 13")
    a("s_add_u32 s56, s56, s57")
    a.srd_off(8, 6, RPK_OFF, 16 << 20)
    a("s_cmp_ge_u32 s2, 224")
    a("s_cselect_b32 s10, 0, s10")
    a("v_lshlrev_b32 v8, 3, v1")
    for m in range(int(os.environ.get("K3NPF", "1"))):
        a("buffer_load_dword v9, v8, s[8:11], s56 offen")
        a("s_add_u32 s56, s56, 0x800000")
```

```python
from asmlib import *

XN_OFF = 0x0000000
KF_OFF = 0x1000000
VF_OFF = 0x2000000
CTX_OFF = 0x3000000
H_OFF = 0x4000000
STATS_OFF = 0x4800000
KVC_OFF = STATS_OFF + 24576
WRSUM_OFF = KVC_OFF + 128
XFL_OFF = STATS_OFF + 28672
PCT_OFF = STATS_OFF + 61440
RPK_OFF = 0x6000000
CTC_OFF = STATS_OFF + 69632
GBC_OFF = STATS_OFF + 86016
PC2_OFF = STATS_OFF + 90112
XCH_OFF = 0x5000000
ZERO_BYTES = 90112
PART_OFF = 0x4900000
SEL_OFF = 0x4C00000

ARG = dict(x=0, ckv=8, wq=16, wuk=24, wuv=32, wo=40, bx=48, wr=56, wg=64, wu=72, wd=80, out=88, dbg=96, ws=104)


def mfma16(d, a, b, c):
    return f"v_mfma_f32_16x16x32_bf16 {d}, {a}, {b}, {c}"


def weave(a, mf, fills, start=0, end=None):
    n = len(mf)
    if end is None:
        end = n
    span = max(1, end - start)
    fi = 0
    for m in range(n):
        a(mf[m])
        if m >= start:
            tgt = min(len(fills), ((m - start + 1) * len(fills) + span - 1) // span)
            while fi < tgt:
                a(fills[fi])
                fi += 1
    while fi < len(fills):
        a(fills[fi])
        fi += 1


def weave2(a, mf, streams):
    n = len(mf)
    idx = [0] * len(streams)
    for m in range(n):
        a(mf[m])
        for si, (fills, start, end) in enumerate(streams):
            if m >= start:
                span = max(1, end - start)
                tgt = min(len(fills), ((m - start + 1) * len(fills) + span - 1) // span)
                while idx[si] < tgt:
                    a(fills[idx[si]])
                    idx[si] += 1
    for si, (fills, start, end) in enumerate(streams):
        while idx[si] < len(fills):
            a(fills[idx[si]])
            idx[si] += 1


def ln_rows_half_wave(a, vx, vt, vo=None, keep=None):
    if vo is None:
        vo = vx
    f = vt
    src = keep if keep is not None else f
    s = vt + 32
    t = vt + 34
    q = vt + 36
    mb = vt + 38
    P = lambda r: f"v[{r}:{r+1}]"
    for i in range(16):
        a(f"v_lshlrev_b32 v{src+2*i}, 16, v{vx+i}")
        a(f"v_and_b32 v{src+2*i+1}, 0xffff0000, v{vx+i}")
    a(f"v_pk_add_f32 {P(s)}, {P(src)}, {P(src+2)}")
    a(f"v_pk_add_f32 {P(t)}, {P(src+4)}, {P(src+6)}")
    for i in range(8, 32, 4):
        a(f"v_pk_add_f32 {P(s)}, {P(s)}, {P(src+i)}")
        a(f"v_pk_add_f32 {P(t)}, {P(t)}, {P(src+i+2)}")
    a(f"v_pk_add_f32 {P(s)}, {P(s)}, {P(t)}")
    a(f"v_add_f32 v{s}, v{s}, v{s+1}")
    half_wave_sum(a, s, t)
    a(f"v_mul_f32 v{s}, 0xba800000, v{s}")
    a(f"v_mov_b32 v{s+1}, v{s}")
    a(f"v_pk_add_f32 {P(t)}, {P(src)}, {P(s)}")
    a(f"v_pk_add_f32 {P(mb)}, {P(src+2)}, {P(s)}")
    a(f"v_pk_mul_f32 {P(q)}, {P(t)}, {P(t)}")
    a(f"v_pk_fma_f32 {P(q)}, {P(mb)}, {P(mb)}, {P(q)}")
    for i in range(4, 32, 4):
        a(f"v_pk_add_f32 {P(t)}, {P(src+i)}, {P(s)}")
        a(f"v_pk_add_f32 {P(mb)}, {P(src+i+2)}, {P(s)}")
        a(f"v_pk_fma_f32 {P(q)}, {P(t)}, {P(t)}, {P(q)}")
        a(f"v_pk_fma_f32 {P(q)}, {P(mb)}, {P(mb)}, {P(q)}")
    a(f"v_add_f32 v{q}, v{q}, v{q+1}")
    half_wave_sum(a, q, t)
    a(f"v_mul_f32 v{q}, 0x3a800000, v{q}")
    a(f"v_cvt_pk_bf16_f32 v{mb}, v{s}, v{q}")
    a(f"v_and_b32 v{q}, 0xffff0000, v{mb}")
    a(f"v_lshlrev_b32 v{mb}, 16, v{mb}")
    a(f"v_add_f32 v{q}, 0x3727c5ac, v{q}")
    a(f"v_mov_b32 v{mb+1}, v{mb}")
    a(f"v_cvt_pk_bf16_f32 v{q}, v{q}, v{q}")
    a(f"v_and_b32 v{q}, 0xffff0000, v{q}")
    a(f"v_sqrt_f32 v{q}, v{q}")
    for i in range(0, 32, 2):
        a(f"v_pk_add_f32 {P(f+i)}, {P(src+i)}, {P(mb)}")
    a(f"v_cvt_pk_bf16_f32 v{q}, v{q}, v{q}")
    a(f"v_and_b32 v{q}, 0xffff0000, v{q}")
    a(f"v_rcp_f32 v{q}, v{q}")
    for i in range(16):
        a(f"v_cvt_pk_bf16_f32 v{vo+i}, v{f+2*i}, v{f+2*i+1}")
    a(f"v_mov_b32 v{q+1}, v{q}")
    for i in range(16):
        a(f"v_lshlrev_b32 v{f+2*i}, 16, v{vo+i}")
        a(f"v_and_b32 v{f+2*i+1}, 0xffff0000, v{vo+i}")
    for i in range(0, 32, 2):
        a(f"v_pk_mul_f32 {P(f+i)}, {P(f+i)}, {P(q)}")
    for i in range(16):
        a(f"v_cvt_pk_bf16_f32 v{vo+i}, v{f+2*i}, v{f+2*i+1}")


def half_wave_sum(a, s, t):
    a("s_nop 1")
    a(f"v_add_f32_dpp v{s}, v{s}, v{s} quad_perm:[1,0,3,2] row_mask:0xf bank_mask:0xf")
    a("s_nop 1")
    a(f"v_add_f32_dpp v{s}, v{s}, v{s} quad_perm:[2,3,0,1] row_mask:0xf bank_mask:0xf")
    a("s_nop 1")
    a(f"v_add_f32_dpp v{s}, v{s}, v{s} row_half_mirror row_mask:0xf bank_mask:0xf")
    a("s_nop 1")
    a(f"v_add_f32_dpp v{s}, v{s}, v{s} row_mirror row_mask:0xf bank_mask:0xf")
    a(f"v_mov_b32 v{t}, v{s}")
    a("s_nop 1")
    a(f"v_permlane16_swap_b32 v{s}, v{t}")
    a("s_nop 1")
    a(f"v_add_f32 v{s}, v{s}, v{t}")


PROF_OFF = 0x8000000
PROF = False


def stamp(a, i):
    if PROF:
        a(f"s_memrealtime s[{64+4*i}:{65+4*i}]")
        a(f"s_memtime s[{66+4*i}:{67+4*i}]")


def stamp_dump(a, kidx, n, ws_pair):
    if not PROF:
        return
    a("s_waitcnt vmcnt(0) lgkmcnt(0)")
    stamp(a, n)
    a("s_waitcnt lgkmcnt(0)")
    a.srd_off(96, ws_pair, PROF_OFF + kidx * 512 * 64, 512 * 64)
    a("s_lshl_b32 s100, s2, 6")
    a("v_mov_b32 v1, s100")
    for i in range(n + 1):
        a(f"v_mov_b32 v2, s{64+4*i}")
        a(f"buffer_store_dword v2, v1, s[96:99], 0 offen offset:{4*i}")
        a(f"v_mov_b32 v2, s{66+4*i}")
        a(f"buffer_store_dword v2, v1, s[96:99], 0 offen offset:{32+4*i}")


def ring_plan(DX, DW, nx=4, nw=4, nph=8, trips=4):
    order = []
    init = []
    for p in range(-64, 0):
        if p % 2 and (p - 1) // 2 + DW >= 0:
            init.append(("W", (p - 1) // 2 + DW))
        if p + DX >= 0:
            init.append(("X", p + DX))
    init.sort(key=lambda o: 0 if o == ("W", 0) else (1 if o == ("X", 0) else 2))
    order = list(init)

    def younger(op):
        i = order.index(op)
        return sum(nx if o[0] == "X" else nw for o in order[i + 1:])
    first = younger(("W", 0))
    waits = [99] * nph
    for p in range(nph * trips):
        n = younger(("X", p))
        if p % 2:
            n = min(n, younger(("W", (p - 1) // 2 + 1)))
        waits[p % nph] = min(waits[p % nph], n)
        if p % 2:
            order.append(("W", (p - 1) // 2 + DW))
        order.append(("X", p + DX))
    return init, first, waits


def zero_acc(a, base, n, vz, kind="a", init=True):
    if init:
        for r in range(4):
            a(f"v_mov_b32 v{vz+r}, 0")
        a("s_nop 1")
    for b in range(base, base + n, 16):
        a(f"v_mfma_f32_32x32x16_bf16 {kind}[{b}:{b+15}], v[{vz}:{vz+3}], v[{vz}:{vz+3}], 0")


TRACE_OFF = 0x9000000
TRACE = False


def tr_wrap(text):
    if not TRACE:
        return text
    rec = "s_mov_b64 exec, s[98:99]\nv_mov_b32 v0, s96\ns_mov_b64 exec, -1\ns_lshl_b64 s[98:99], s[98:99], 1"
    return "s_memtime s[96:97]\n" + text + "\n" + rec + "\ns_memtime s[96:97]\ns_waitcnt lgkmcnt(0)\n" + rec


def tr_init(a):
    if TRACE:
        a("s_mov_b64 s[98:99], 1")
        a("v_mov_b32 v0, 0")


def tr_dump(a, ws_pair, swave, vlane16):
    if TRACE:
        a.srd_off(96, ws_pair, TRACE_OFF, 256 * 1024)
        a("s_lshl_b32 s100, s2, 2")
        a(f"s_add_u32 s100, s100, s{swave}")
        a("s_lshl_b32 s100, s100, 8")
        a(f"v_lshrrev_b32 v2, 2, v{vlane16}")
        a("buffer_store_dword v0, v2, s[96:99], s100 offen")


def code_addr(a, label, vpair, vline, stmp):
    here = a.uid("pc")
    a(f"s_getpc_b64 s[{stmp}:{stmp+1}]")
    a.label(here)
    a(f"s_add_u32 s{stmp}, s{stmp}, {label}-{here}")
    a(f"s_addc_u32 s{stmp+1}, s{stmp+1}, 0")
    a(f"v_lshlrev_b32 v{vpair}, 7, v{vline}")
    a(f"v_mov_b32 v{vpair+1}, s{stmp+1}")
    a(f"v_add_co_u32 v{vpair}, vcc, s{stmp}, v{vpair}")
    a("s_nop 1")
    a(f"v_addc_co_u32 v{vpair+1}, vcc, 0, v{vpair+1}, vcc")


def snake(outers, inners, nk):
    out = []
    flip = False
    inner = list(inners)
    for o in outers:
        for x in inner:
            ks = list(range(nk))[::-1] if flip else list(range(nk))
            out += [(o, x, k, i == 0) for i, k in enumerate(ks)]
            flip = not flip
        inner.reverse()
    return out
```

```python
from common import *
import common, os
from sched import Op, spread, schedule
import k2
from k2 import vq, aq, V_LANE16, V_VV, V_NINF, attention_phase, LDF

SPIN_MAX = 1 << 20
KO = set(os.environ.get('KO', '').split(','))
NT = ' nt' if 'nt' in KO else ''
ENV = lambda k, d: int(os.environ.get(k, str(d)))

ZERO, ONE = 8, 9
XD, WD, XRD, WRD = 10, 18, 26, 28
QX, QWD, QWR = 36, 38, 42
VPF, VDUM, VPOLL, VXST, VLW, VLR = 50, 51, 52, 53, 54, 55
PT = 56
PK = 64
WRING = 98304


def spin_text(a, soff, target, VPOLL=VPOLL, ZERO=ZERO):
    ok, lp = a.uid("spin_ok"), a.uid("spin")
    return "\n".join([
        f"v_readfirstlane_b32 s31, v{VPOLL}", f"s_cmp_ge_u32 s31, {target}", f"s_cbranch_scc1 {ok}",
        f"s_mov_b32 s40, {SPIN_MAX}", f"{lp}:", "s_sleep 8",
        f"buffer_load_dword v{VPOLL}, v{ZERO}, s[24:27], {soff} offen sc1", "s_waitcnt vmcnt(0)",
        f"v_readfirstlane_b32 s31, v{VPOLL}", "s_sub_u32 s40, s40, 1", "s_cselect_b32 s31, -1, s31",
        f"s_cmp_lt_u32 s31, {target}", f"s_cbranch_scc1 {lp}", f"{ok}:"])


def one_lane(text):
    return f"s_mov_b64 exec, 1\n{text}\ns_mov_b64 exec, -1"


def gen_k12(a, name="k12_kernel", fuse=False, ffn=None):
    a.begin_kernel(name)
    end = a.uid("k12_end")
    stubs = []
    pst = (lambda i: stamp(a, i)) if "ptrace" in KO else (lambda i: None)

    def when(cmp_text, body, want, **kw):
        l, r = a.uid("k12_ool"), a.uid("k12_oolret")
        if "nosig" in KO and "s[24:27]" in body:
            body = "s_nop 0"
        stubs.append((l, body, r))
        return Op(f"{cmp_text}\ns_cbranch_scc1 {l}\n{r}:", "B", want, **kw)

    a("s_cmp_ge_u32 s2, 256")
    a(f"s_cbranch_scc1 {end}")
    stamp(a, 0)
    a(f"s_load_dwordx4 s[36:39], s[0:1], {ARG['x']}")
    a(f"s_load_dwordx4 s[40:43], s[0:1], {ARG['wuk']}")
    a(f"s_load_dwordx2 s[4:5], s[0:1], {ARG['wq']}")
    a(f"s_load_dwordx4 s[60:63], s[0:1], {ARG['dbg']}")
    CE = ENV("CE", 48)
    a("s_lshr_b32 s59, s2, 3")
    a("s_lshl_b32 s58, s59, 4")
    a("v_add_u32 v6, s58, v0")
    a(f"v_cmp_gt_u32 vcc, {CE}, v0")
    a(f"v_cmp_gt_u32 s[56:57], {CE + 16}, v0")
    a("s_nop 0")
    a("v_cndmask_b32 v6, v6, v0, vcc")
    code_addr(a, "k12_code0", 58, 6, 52)
    a.label("k12_code0")
    a("s_mov_b64 exec, s[56:57]")
    cs = a.uid("k12_nocode")
    a(f"s_cbranch_execz {cs}")
    a(f"global_load_dword v{VDUM}, v[58:59], off")
    a.label(cs)
    a("s_mov_b64 exec, -1")
    a("s_and_b32 s58, s2, 7")
    a("s_lshr_b32 s59, s2, 3")
    a("s_and_b32 s45, s59, 7")
    a("s_lshr_b32 s57, s59, 3")
    a("s_and_b32 s44, s57, 1")
    a("s_lshl_b32 s52, s58, 1")
    a("s_add_u32 s44, s44, s52")
    a("s_lshr_b32 s57, s57, 1")
    W, LN_ = 2, 3
    a(f"v_lshrrev_b32 v{W}, 6, v0")
    a(f"v_and_b32 v{LN_}, 63, v0")
    a(f"v_readfirstlane_b32 s30, v{W}")
    a(f"v_lshlrev_b32 v{V_LANE16}, 4, v{LN_}")
    VX, VT = 64, 80
    TOK, L32 = 60, 61
    a(f"v_lshrrev_b32 v{TOK}, 5, v{LN_}")
    a(f"v_lshl_add_u32 v{TOK}, v{W}, 1, v{TOK}")
    a(f"v_and_b32 v{L32}, 31, v{LN_}")
    a(f"v_lshlrev_b32 v6, 11, v{TOK}")
    a(f"v_lshl_add_u32 v62, v{L32}, 4, v6")
    a("s_lshl_b32 s52, s2, 14")
    a(f"v_lshrrev_b32 v56, 3, v{LN_}")
    a(f"v_and_b32 v57, 7, v{LN_}")
    a("v_lshrrev_b32 v58, 1, v56")
    a("v_xor_b32 v6, v57, v58")
    a("v_xor_b32 v7, 4, v6")
    a(f"v_lshl_add_u32 v58, v{W}, 6, v56")
    a("v_lshlrev_b32 v58, 10, v58")
    a("s_lshl_b32 s47, s45, 18")
    a("v_add_u32 v58, s47, v58")
    a(f"v_lshl_add_u32 v{XD}, v6, 4, v58")
    a(f"v_lshl_add_u32 v{XD+1}, v7, 4, v58")
    for i in range(7, -1, -1):
        a(f"v_add_u32 v{XD+i}, {i*8*1024 - (i%4)*1024}, v{XD + (i%2)}")
    a(f"v_lshrrev_b32 v6, 5, v{LN_}")
    a(f"v_bfe_u32 v7, v{LN_}, 1, 4")
    a(f"v_and_b32 v59, 1, v{LN_}")
    a(f"v_lshl_add_u32 v58, v{W}, 4, v6")
    a("v_lshlrev_b32 v58, 13, v58")
    a("v_lshl_add_u32 v58, v59, 4, v58")
    a("s_lshl_b32 s47, s44, 9")
    a("v_add_u32 v58, s47, v58")
    a("v_xor_b32 v7, v7, v6")
    for i in range(8):
        fx = ((2 * i) & 3) | ((((2 * i) >> 3) & 1) << 2)
        a(f"v_xor_b32 v6, {fx}, v7")
        a(f"v_lshl_add_u32 v6, v6, 5, v58")
        a(f"v_add_u32 v{WD+i}, {2*i*8192 - (i%4)*1024}, v6")
    XB, WB = 0, 65536
    a("s_lshl_b32 s48, s30, 13")
    a("s_mov_b32 s49, 0")
    a("s_mov_b32 s50, 0")
    pst(1)
    a("s_waitcnt lgkmcnt(0)")
    a.srd(24, 36, 4 << 20)
    for i in range(4):
        a(f"buffer_load_dwordx4 v[{VX+4*i}:{VX+4*i+3}], v62, s[24:27], s52 offen offset:{i*512}{NT}")
    a.srd(16, 38, 2 << 20)
    a("s_cmp_eq_u32 s57, 0")
    a("s_cselect_b32 s20, s40, s42")
    a("s_cselect_b32 s21, s41, s43")
    a("s_and_b32 s21, s21, 0xffff")
    a("s_mov_b32 s22, 0x400000")
    a("s_mov_b32 s23, 0x00020000")

    def dma_grp(stage, g):
        op, i0 = g // 2, (g % 2) * 4
        m = f"s_add_u32 m0, s48, {(XB if op == 0 else WB) + stage*32768 + i0*1024}"
        if op == 0:
            ld = [f"buffer_load_dwordx4 v{XD+i0+i}, s[16:19], s49 offen offset:{i*1024} lds" for i in range(4)]
        else:
            ld = [f"buffer_load_dwordx4 v{WD+i0+i}, s[20:23], s50 offen offset:{i*1024}{NT} lds" for i in range(4)]
        tr = {1: "s_add_u32 s49, s49, 128", 3: "s_add_u32 s50, s50, 0x80000"}.get(g)
        return m, ld, tr

    def emit_grp(m, ld, tr):
        a(m)
        a("s_nop 0")
        for t in ld:
            a(t)
        if tr:
            a(tr)

    def grp_sched(grps, lo, hi, after=()):
        ops, prev = [], list(after)
        tot = sum(len(g[1]) for g in grps)
        step = (hi - lo) / float(tot)
        k = 0
        for (m, ld, tr) in grps:
            mo = None
            if m:
                mo = Op(m, "S", lo + step * k - 1, lo=lo, after=prev)
                ops.append(mo)
            for t in ld:
                o = Op(t, "V", lo + 1 + step * k, lo=lo, after=prev, prev_gap=[mo] if mo else [])
                ops.append(o)
                prev = [o]
                k += 1
            if tr:
                for t in tr.split("\n"):
                    o = Op(t, "S", lo + step * k, after=prev)
                    ops.append(o)
                    prev = [o]
        return ops, prev

    PG = ENV("PG", 2)
    order0 = [0, 2, 1, 3]
    for g in order0[:PG]:
        emit_grp(*dma_grp(0, g))
    pst(2)
    a("s_mov_b64 s[6:7], s[62:63]")
    a.srd_off(8, 6, XN_OFF, 4 << 20)
    a.srd(12, 4, 8 << 20)
    a.srd_off(32, 6, KF_OFF, 32 << 20)
    a.srd(24, 60, 256)
    a("s_lshl_b32 s28, s58, 2")
    a("s_and_b32 s31, s59, 3")
    a("s_add_u32 s28, s28, s31")
    a("s_lshr_b32 s29, s59, 2")
    a("s_lshl_b32 s42, s29, 7")
    a("s_sub_u32 s43, 1920, s42")
    a("s_lshl_b32 s31, s30, 4")
    a("s_add_u32 s38, s42, s31")
    a("s_add_u32 s39, s43, s31")
    a("s_lshl_b32 s60, s30, 12")
    a("s_mov_b32 s61, 0")
    a("s_mov_b32 s62, 0")
    a("s_lshl_b32 s47, s44, 1")
    a("s_lshr_b32 s52, s30, 1")
    a("s_add_u32 s47, s47, s52")
    a("s_lshl_b32 s47, s47, 14")
    a("s_lshl_b32 s52, s45, 1")
    a("s_and_b32 s53, s30, 1")
    a("s_add_u32 s52, s52, s53")
    a("s_lshl_b32 s52, s52, 20")
    a("s_add_u32 s47, s47, s52")
    a("s_lshl_b32 s52, s57, 24")
    a("s_add_u32 s47, s47, s52")
    assert VF_OFF - KF_OFF == 1 << 24
    a("s_lshl_b32 s54, s44, 8")
    a("s_lshr_b32 s55, s28, 1")
    a("s_lshl_b32 s55, s55, 8")
    a(f"s_and_b32 s53, s59, {ENV('XSM', 3)}")
    a("s_add_u32 s53, s53, 1")
    a("s_cmp_eq_u32 s30, 0")
    a("s_cselect_b32 s53, s53, -1")
    a("s_cselect_b32 s46, 6, -1")
    a("v_lshlrev_b32 v6, 13, v56")
    a(f"v_lshl_add_u32 v{VPF}, v57, 7, v6")
    a("s_lshl_b32 s56, s30, 5")
    a("s_add_u32 s56, s56, s59")
    a("s_lshl_b32 s56, s56, 16")
    a("s_lshl_b32 s52, s58, 10")
    a("s_add_u32 s56, s56, s52")
    a(f"s_add_u32 s63, s30, {ENV('PF0', 1)}")
    pf = f"buffer_load_dword v{VDUM}, v{VPF}, s[12:15], s56 offen" if "nowq" not in KO else "s_nop 0"
    for g in order0[PG:2]:
        emit_grp(*dma_grp(0, g))
    XL = 131072
    a(f"v_mul_u32_u24 v6, 2064, v{TOK}")
    a(f"v_lshl_add_u32 v6, v{L32}, 4, v6")
    a(f"v_add_u32 v{VLW}, {XL}, v6")
    a("v_mul_u32_u24 v7, 2064, v57")
    a("v_lshl_add_u32 v7, v56, 4, v7")
    a(f"v_lshl_add_u32 v7, v{W}, 9, v7")
    a(f"v_add_u32 v{VLR}, {XL}, v7")
    a("v_lshrrev_b32 v7, 2, v56")
    a(f"v_lshl_add_u32 v7, v{W}, 3, v7")
    a("v_lshlrev_b32 v7, 17, v7")
    a("v_and_b32 v6, 3, v56")
    a("v_lshl_add_u32 v7, v6, 8, v7")
    a("v_lshl_add_u32 v7, v57, 4, v7")
    a("s_lshr_b32 s52, s2, 1")
    a("s_lshl_b32 s52, s52, 10")
    a("s_and_b32 s31, s2, 1")
    a("s_lshl_b32 s31, s31, 7")
    a("s_add_u32 s52, s52, s31")
    a(f"v_add_u32 v{VXST}, s52, v7")
    a(f"v_and_b32 v56, 15, v{LN_}")
    a(f"v_lshrrev_b32 v57, 4, v{LN_}")
    a("v_lshrrev_b32 v6, 1, v56")
    a("v_xor_b32 v6, v6, v57")
    a(f"v_and_b32 v7, 1, v{W}")
    a("v_lshl_add_u32 v7, v7, 7, v56")
    a("v_lshlrev_b32 v7, 7, v7")
    a(f"v_lshl_add_u32 v{XRD}, v6, 4, v7")
    a(f"v_xor_b32 v{XRD+1}, 64, v{XRD}")
    a("v_lshrrev_b32 v6, 2, v56")
    a("v_and_b32 v58, 1, v57")
    a("v_lshl_add_u32 v58, v58, 2, v6")
    a("v_lshl_add_u32 v59, v57, 3, v6")
    a(f"v_and_b32 v63, 3, v{LN_}")
    a("v_lshlrev_b32 v7, 9, v59")
    a(f"v_lshrrev_b32 v6, 1, v{W}")
    a("v_lshl_add_u32 v7, v6, 8, v7")
    a("v_lshl_add_u32 v7, v63, 3, v7")
    a(f"v_add_u32 v7, {WB}, v7")
    a("v_lshlrev_b32 v59, 8, v59")
    a("v_lshl_add_u32 v59, v63, 3, v59")
    a(f"v_add_u32 v59, {WRING}, v59")
    for j in range(8):
        a(f"v_xor_b32 v6, {j}, v58")
        a(f"v_lshl_add_u32 v{WRD+j}, v6, 5, v7")
        a(f"v_lshl_add_u32 v{QWR+j}, v6, 5, v59")
    a("s_lshl_b32 s31, s38, 6")
    a(f"v_add_u32 v{QX}, s31, v{V_LANE16}")
    a("s_lshl_b32 s31, s39, 6")
    a(f"v_add_u32 v{QX+1}, s31, v{V_LANE16}")
    a(f"v_bfe_u32 v6, v{LN_}, 1, 3")
    a(f"v_and_b32 v7, 1, v{LN_}")
    a(f"v_lshl_add_u32 v58, v{W}, 4, v57")
    a("v_lshlrev_b32 v58, 13, v58")
    a("v_lshl_add_u32 v58, v7, 4, v58")
    a("s_lshl_b32 s31, s28, 8")
    a("v_add_u32 v58, s31, v58")
    a("v_xor_b32 v6, v6, v57")
    for i in range(4):
        a(f"v_xor_b32 v7, {(i // 2) << 2}, v6")
        a(f"v_lshl_add_u32 v7, v7, 5, v58")
        a(f"v_add_u32 v{QWD+i}, {4*i*8192 - i*1024}, v7")
    a("v_lshlrev_b32 v6, 2, v57")
    a(f"v_sub_u32 v{V_VV}, v56, v6")
    a(f"v_mov_b32 v{V_NINF}, 0xff800000")
    a(f"v_mov_b32 v{ZERO}, 0")
    a(f"v_mov_b32 v{ONE}, 1")
    a("s_lshl_b32 s52, s59, 2")
    a("s_add_u32 s52, s52, s30")
    a(f"v_and_b32 v6, 1, v{LN_}")
    a("v_lshl_add_u32 v6, s52, 1, v6")
    code_addr(a, "k12_qcode", 2, 6, 40)
    cpf = f"global_load_dword v{VDUM}, v[2:3], off" if "nocpf" not in KO else "s_nop 0"
    zero_acc(a, 128, 64, 56)
    zero_acc(a, 128, 128, 56, "v", init=False)
    for g in order0[max(PG, 2):]:
        emit_grp(*dma_grp(0, g))
    pst(3)
    a("s_waitcnt vmcnt(16)")
    pst(4)
    t_ = Asm()
    ln_rows_half_wave(t_, VX, VT)
    nl_ = len(t_.lines)
    for i, ln in enumerate(t_.lines):
        a.lines.append(ln)
        for g in range(4):
            if i == nl_ * (g + 1) // 5:
                emit_grp(*dma_grp(1, order0[g]))
    pst(5)
    for i in range(4):
        a(f"ds_write_b128 v{VLW}, v[{VX+4*i}:{VX+4*i+3}] offset:{i*512}")
    pst(6)
    a("s_waitcnt vmcnt(16) lgkmcnt(0)")
    a("s_barrier")
    if "ptrace" in KO:
        stamp_dump(a, 0, 7, 6)
        a("s_endpgm")
    XT = 64
    for i in range(4):
        a(f"ds_read_b128 {aq(XT+4*i)}, v{VLR} offset:{i*128}")
    a(f"v_add_u32 v{VLW}, 4096, v{QX}")
    a(f"v_add_u32 v{VLR}, 4096, v{QX+1}")
    zero_acc(a, 64, 64, 56, "v", init=False)

    FXS = [192, 64]
    fw = lambda o, ks: (o * 2 + ks) * 4
    fx = lambda st, j, ks: FXS[st] + (j * 2 + ks) * 4

    def xreads(st):
        return [f"ds_read_b128 {aq(fx(st, j, ks))}, v{XRD+ks} offset:{XB + st*32768 + j*2048}" for j in range(8) for ks in range(2)]

    def wrd(st, os_):
        out = []
        for o in os_:
            for ks in range(2):
                b = fw(o, ks)
                out.append(f"ds_read_b64_tr_b16 a[{b}:{b+1}], v{WRD+o} offset:{st*32768 + ks*16384}")
                out.append(f"ds_read_b64_tr_b16 a[{b+2}:{b+3}], v{WRD+o} offset:{st*32768 + ks*16384 + 2048}")
        return out

    def mix(x, y):
        return [t for p in zip(x, y) for t in p]

    def pair_n(c, j, isv):
        return (c * 8 + j) if isv else (j * 4 + c)

    def acc(i, j, isv):
        n = pair_n(i // 2, j, isv)
        if n < 24:
            return ("v", (64 if i % 2 == 0 else 160) + 4 * n)
        return ("a", 128 + 8 * (n - 24) + 4 * (i % 2))

    def mf2(o, x, st, isv, kss=(0, 1)):
        k, c = acc(x, o, isv) if isv else acc(o, x, isv)
        r = f"{k}[{c}:{c+3}]"
        return [mfma16(r, *((aq(fx(st, x, ks)), aq(fw(o, ks))) if isv else (aq(fw(o, ks)), aq(fx(st, x, ks)))), r) for ks in kss]

    def mfmas(st, half, isv):
        return [mf2(o, x, st, isv, [k])[0] for o, x, k, _ in snake(range(4 * half, 4 * half + 4), range(8), 2)]

    skip = a.uid("k12_nostat")
    a(f"s_cmp_ge_u32 s2, {ZERO_BYTES // 4096}")
    a(f"s_cbranch_scc1 {skip}")
    a("s_lshl_b32 s52, s2, 12")
    a(f"s_add_u32 s52, s52, 0x{STATS_OFF - KF_OFF:x}")
    a("s_mov_b32 s34, -1")
    a("v_lshlrev_b32 v6, 4, v0")
    a("buffer_store_dwordx4 v[56:59], v6, s[32:35], s52 offen sc1")
    a(f"s_mov_b32 s34, 0x{32 << 20:x}")
    a.label(skip)
    stamp(a, 1)
    tr_init(a)
    for t in mix(xreads(0), wrd(0, range(4))):
        a(t)
    a("s_mov_b32 s51, 0")
    a("s_waitcnt lgkmcnt(15)")
    for i in range(4):
        a(f"s_mov_b32 s52, {i*2*131072}")
        a(f"buffer_store_dwordx4 {aq(XT+4*i)}, v{VXST}, s[8:11], s52 offen sc1")
    a("s_waitcnt lgkmcnt(0)")
    lv, joined = a.uid("k12_v"), a.uid("k12_join")
    a("s_cmp_lg_u32 s57, 0")
    a(f"s_cbranch_scc1 {lv}")

    DX, DW = ENV("QDX", 4), ENV("QDW", 2)
    XS = lambda ks: 128 + ((ks + 4) % 8) * 16
    QF = [0, 32]

    def wdma(stage):
        return (f"s_add_u32 m0, s60, {WRING + ((stage + 2) % 4)*16384}",
                [f"buffer_load_dwordx4 v{QWD+i}, s[12:15], s61 offen offset:{i*1024} lds" for i in range(4)], "s_add_u32 s61, s61, 0x80000")

    def xloads(ks):
        return (None, [f"buffer_load_dwordx4 {aq(XS(ks) + 4*qb)}, v{(QX, VLW, QX+1, VLR)[qb]}, s[8:11], s62 offen sc1" for qb in range(4)],
                "s_add_u32 s62, s62, 0x20000")

    def kvstore(n, srd):
        return (f"s_add_u32 s52, s47, {(n // 16) * 0x80000 + (((n % 16) * 1024) & ~4095)}",
                [f"buffer_store_dwordx4 v[{PK+n*4}:{PK+3+n*4}], v{V_LANE16}, {srd}, s52 offen offset:{(n*1024) & 4095} sc1"], None)

    PRE = [0, 1, 8, 9, 16, 17, 24, 25, 2, 4, 10, 12, 18, 20, 5, 13][:ENV("NPRE", 8)]
    REST = [n for n in range(32) if n not in PRE]
    NR = len(REST)

    def wreads(stage, half, buf=None):
        out = []
        for j in range(4 * half, 4 * half + 4):
            for sp in range(2):
                b = fw(j, sp)
                out.append(f"ds_read_b64_tr_b16 a[{b}:{b+1}], v{QWR+j} offset:{((stage + 2) % 4)*16384 + sp*8192}")
                out.append(f"ds_read_b64_tr_b16 a[{b+2}:{b+3}], v{QWR+j} offset:{((stage + 2) % 4)*16384 + sp*8192 + 1024}")
        return out

    def qacc(db, qb):
        return ("v", 192 + (db * 2 + qb) * 4) if qb < 2 else ("a", 64 + (db * 2 + qb - 2) * 4)

    for isv in range(2):
        if isv:
            a.label(lv)
        loop, last = a.uid("k12_loop"), a.uid("k12_last")
        a.label(loop)
        for st in range(2):
            if st == 1:
                a("s_cmp_eq_u32 s51, 7")
                a(f"s_cbranch_scc1 {last}")
            ops = spread(wrd(st, range(4, 8)), "M", 1, 48)
            if st == 0:
                ops.append(when("s_cmp_eq_u32 s51, s46", f"buffer_load_dword v{VPOLL}, v{ZERO}, s[24:27], 0 offen sc1", 4))
            gt = (when("s_cmp_eq_u32 s51, s46", spin_text(a, 0, 256), 0).text + "\n") if st == 0 else ""
            ops.append(Op(tr_wrap("s_waitcnt vmcnt(0) lgkmcnt(0)\n" + gt + "s_barrier"), "S", 63, lo=63, hard=63, after=list(ops)))
            schedule(a, mfmas(st, 0, isv), ops)
            rd = spread(mix(xreads(1 - st), wrd(1 - st, range(4))), "M", 1, 54)
            pre = []
            if st == 0:
                pre = [Op("s_cmp_ge_u32 s49, 1024\ns_cselect_b32 s18, 0, s18\ns_cselect_b32 s22, 0, s22", "S", 0, hard=0)]
            dm, dl = grp_sched([dma_grp(st, g) for g in range(4)], 1, ENV("GD1", 56), after=pre)
            sig = when("s_cmp_eq_u32 s51, s53", one_lane(f"buffer_atomic_add v{ONE}, v{ZERO}, s[24:27], 0 offen sc1"), 58, after=dl)
            ops = rd + pre + dm + [sig]
            cnt_after = [sig]
            p_ = when("s_cmp_eq_u32 s51, s63", pf, 59, after=dl)
            ops.append(p_)
            cnt_after.append(p_)
            if st == 1:
                p_ = when("s_cmp_eq_u32 s51, 5", cpf, 60, after=dl)
            else:
                p_ = when("s_cmp_eq_u32 s51, 6", "\n".join(g[0] + "\ns_nop 0\n" + "\n".join(g[1]) + "\n" + g[2] for g in (wdma(0), wdma(1))), 60, after=dl)
            ops.append(p_)
            cnt_after.append(p_)
            ops.append(Op("s_add_u32 s51, s51, 1", "S", 62, after=cnt_after))
            ops.append(Op("s_waitcnt lgkmcnt(0)", "S", 63, lo=63, hard=63, after=rd))
            schedule(a, mfmas(st, 1, isv), ops)
        a(f"s_branch {loop}")
        a.label(last)
        stamp(a, 2)
        seq = [(c, j) for j in range(8) for c in range(4)] if isv else [(c, j) for c in range(4) for j in range(8)]
        mf, ops = [], []
        done = {}
        tuse = []
        for pos, (c, j) in enumerate(seq):
            n = pair_n(c, j, isv)
            for i in (2 * c, 2 * c + 1):
                kss = (1, 0) if i % 2 else (0, 1)
                mf += mf2(j, i, 1, isv, kss) if isv else mf2(i, j, 1, isv, kss)
            g0 = 4 * pos + 3 + 6
            d = PK + 4 * n
            if n < 24:
                x, y = 64 + 4 * n, 160 + 4 * n
                tx = [f"v_cvt_pk_bf16_f32 v{d}, v{x}, v{x+1}", f"v_cvt_pk_bf16_f32 v{d+1}, v{x+2}, v{x+3}",
                      f"v_cvt_pk_bf16_f32 v{d+2}, v{y}, v{y+1}", f"v_cvt_pk_bf16_f32 v{d+3}, v{y+2}, v{y+3}"]
                o = spread(tx, "A", g0, g0 + 2)
            else:
                x = 128 + 8 * (n - 24)
                tx = [f"v_accvgpr_read_b32 v{PT+r}, a{x+r}" for r in range(8)]
                tx += [f"v_cvt_pk_bf16_f32 v{d+r}, v{PT+2*r}, v{PT+2*r+1}" for r in range(4)]
                o = spread(tx, "A", g0, g0 + 5)
                o[0].after += tuse + [done[n - 24]]
                tuse = [o[-1]]
            done[n] = o[-1]
            ops += o
        w47 = spread(wrd(1, range(4, 8)), "M", 1, 40)
        ld, ll = grp_sched([xloads(0), xloads(1), xloads(2), xloads(3)], 0, 30)
        ops += w47 + ld + [Op("s_waitcnt lgkmcnt(0)", "S", 60, lo=60, hard=62, after=w47)]
        prev_ = list(ll)
        for k_, n_ in enumerate(sorted(PRE, key=lambda n: done[n].want)):
            m_, l_, _ = kvstore(n_, "s[32:35]")
            w_ = ENV("PS0", 34) + k_ * (126 - ENV("PS0", 34)) / max(1, len(PRE))
            o1 = Op(m_, "S", w_ - 1, after=prev_)
            o2 = Op(l_[0], "V", w_, after=[o1, done[n_]])
            ops += [o1, o2]
            prev_ = [o2]
        bar = Op("s_waitcnt vmcnt(16)\ns_barrier", "S", 96, lo=96, after=ll)
        rd = spread(wreads(0, 0, 0), "M", 97, 120)
        rd[0].after.append(bar)
        ops += [bar] + rd
        schedule(a, mf, ops)
        if not isv:
            a(f"s_branch {joined}")
    a.label(joined)
    a.label("k12_qcode")
    a("s_mov_b64 s[48:49], s[32:33]")
    a("s_mov_b32 s51, 0x00020000")
    a("s_cmp_eq_u32 s45, 0")
    a("s_mov_b32 s50, s34")
    a("s_cselect_b32 s56, s30, -1")
    a("s_cselect_b32 s57, -1, s30")
    a(tr_wrap(f"s_waitcnt vmcnt({8 + len(PRE)}) lgkmcnt(0)"))

    NS = ENV("NS", 20)
    PSIG = ENV('PSIG', NS + 3)
    PPOLL = ENV("PPOLL", 27)
    assert PSIG % 2 == 1 and PPOLL % 2 == 1 and PSIG < PPOLL
    queue = ["W0"] * 4 + ["W1"] * 4 + ["X0"] * 4 + ["X1"] * 4 + ["X2"] * 4 + ["X3"] * 4 + ["L"] * len(PRE)

    def younger(tag):
        if tag not in queue:
            return 63
        return len(queue) - 1 - max(i for i, t in enumerate(queue) if t == tag)

    kvsrd = ["s_lshl_b32 s31, s28, 14", "s_add_u32 s16, s6, s31\ns_addc_u32 s17, s7, 0",
             f"s_add_u32 s20, s16, 0x{VF_OFF:x}\ns_addc_u32 s21, s17, 0", f"s_add_u32 s16, s16, 0x{KF_OFF:x}\ns_addc_u32 s17, s17, 0",
             "s_and_b32 s17, s17, 0xffff", "s_and_b32 s21, s21, 0xffff", "s_lshl_b32 s31, s29, 20", "s_sub_u32 s18, 0xf84000, s31",
             "s_mov_b32 s22, s18",
             f"s_add_u32 s24, s6, 0x{KVC_OFF:x}\ns_addc_u32 s25, s7, 0", "s_and_b32 s25, s25, 0xffff", "s_mov_b32 s26, 4096"]

    def kdma():
        return ("s_mov_b32 m0, s34", [f"buffer_load_dwordx4 v{V_LANE16}, s[16:19], s32 offen offset:{i*1024}{LDF} lds" for i in range(4)],
                "s_add_u32 s32, s32, 0x80000\ns_add_u32 s34, s34, 0x4000")

    def vdma():
        return ("s_mov_b32 m0, s35", [f"buffer_load_dwordx4 v{V_LANE16}, s[20:23], s33 offen offset:{i*1024}{LDF} lds" for i in range(4)],
                "s_add_u32 s33, s33, 0x80000\ns_add_u32 s35, s35, 0x4000")

    NL = ENV('NL', 29)
    NE0 = (NS * NR) // NL
    sn, sl_, nx, nw = NE0, 0, 4, 2
    assert NL <= PPOLL + 2
    S0 = ENV("S0", 0)
    for ks in range(32):
        st, sp = ks // 2, ks % 2
        ops = []
        rd = []
        if ks < 31:
            rd = spread(wreads(st, 1, 1) if sp == 0 else wreads(st + 1, 0, 0), "M", 1, 22)
        ops += rd
        grps, tags = [], []
        while nw < 16 and ((sp == 1 and nw <= st + DW) or (ks == 0 and nw < DW)):
            grps.append(wdma(nw)); tags.append(f"W{nw}"); nw += 1
        for _ in range(2):
            if nx < 32 and nx <= ks + DX:
                grps.append(xloads(nx)); tags.append(f"X{nx}"); nx += 1
        while sl_ < NR and sl_ < ((ks + 1) * NR) // NL:
            grps.append(kvstore(REST[sl_], "s[48:51]")); tags.append("L"); sl_ += 1
        early = []
        while ks < NS and sn < NR and sn < NE0 + ((ks + 1) * (NR - NE0) + NS - 1) // NS:
            m_, l_, _ = kvstore(REST[sn], "s[48:51]")
            early += [m_, l_[0]]
            sn += 1
        head = []
        if ks == 0:
            ops += spread(kvsrd, "S", 6, 30)
        if ks == PSIG:
            head = [when("s_cmp_eq_u32 s56, 0", one_lane(f"buffer_atomic_add v{ONE}, v{ZERO}, s[24:27], s54 offen sc1"), 0)]
            ops += spread(k2.kv_first(), "S", 8, 20)
        if ks == 24:
            ops.append(Op("v_add_co_u32 v2, vcc, 0x4000, v2\ns_nop 1\nv_addc_co_u32 v3, vcc, 0, v3, vcc\n" + cpf, "B", 29))
        if ks == PPOLL:
            head = [when("s_cmp_eq_u32 s30, 0", f"buffer_load_dword v{VPOLL}, v{ZERO}, s[24:27], s55 offen sc1", 0)]
            qpoll = len(queue)
        if ks == PPOLL + 2:
            grps += [kdma(), kdma()]; tags += ["K0", "K1"]
        if ks == PPOLL + 3:
            grps += [vdma(), kdma()]; tags += ["V0", "K2"]
        if ks == PPOLL + 4:
            grps += [vdma()]; tags += ["V1"]
        ops += head
        if grps:
            g, gl_ = grp_sched(grps, 1, 27, after=head)
            ops += g
        if ks == NS - 1:
            early.append("s_mov_b32 s50, 0")
        if early:
            ops.append(when("s_cmp_eq_u32 s45, 0", "\n".join(early), 29, after=gl_))
        for gr, tg in zip(grps, tags):
            queue += [tg] * len(gr[1])
        if ks == NS - 1:
            assert sn == NR and sl_ == NE0
            qearly = len(queue)
        if ks < 31:
            nk = ks + 1
            wv = younger(f"W{nk // 2 + 1}") if nk % 2 else younger(f"X{nk + 1}")
            if nk == PSIG:
                wv = min(wv, len(queue) - qearly)
            wv = min(wv, 63)
            prevw = wv
            wtxt = f"s_waitcnt vmcnt({wv}) lgkmcnt(0)"
            if ks == PPOLL + 1:
                ops.append(when("s_cmp_eq_u32 s30, 0", f"s_waitcnt vmcnt({len(queue) - qpoll})\n" + spin_text(a, "s55", 2), 29, lo=28, after=[o for o in ops if o.cls == "V"]))
            if nk % 2:
                wtxt = tr_wrap(wtxt + "\ns_barrier") if nk % 4 == 1 else wtxt + "\ns_barrier"
            ops.append(Op(wtxt, "S", 31, lo=31, hard=31, after=[o for o in ops if o.cls in "MVB"]))
        mf = []
        for db, qb, k2_, f_ in snake(range(4 * sp, 4 * sp + 4), range(4), 2):
            k, c = qacc(db, qb)
            r = f"{k}[{c}:{c+3}]"
            mf.append(mfma16(r, aq(fw(db, k2_)), aq(XS(2 * st + k2_) + 4 * qb), "0" if (st == 0 and f_) else r))
        schedule(a, mf, ops)
    assert PPOLL + 4 <= 31
    stamp(a, 3)
    assert younger("L") >= 8
    a("s_add_u32 s3, s54, 64")
    a("s_add_u32 s5, s55, 64")
    a("s_mov_b32 s63, s57")
    late = dict(
        sig=when("s_cmp_eq_u32 s63, 0", one_lane(f"buffer_atomic_add v{ONE}, v{ZERO}, s[24:27], s3 offen sc1"), 0).text,
        poll=lambda: when("s_cmp_eq_u32 s30, 0", "buffer_load_dword v58, v59, s[24:27], s5 offen sc1", 2),
        gate=lambda **kw: when("s_cmp_eq_u32 s30, 0", "s_waitcnt vmcnt(0)\n" + spin_text(a, "s5", 14, 58, 59), 29, **kw))
    attention_phase(a, end, 0, qacc, late, stubs=stubs, next_code='op_head' if fuse else (None if os.environ.get('WHICH') == 'k12' else 'k3_kernel'), when=when if fuse else None, ffn=ffn)
    a.end_kernel(name, 256, 256)
    a.launch(name, 256, 256, 163840)
```

```python
from common import *
from sched import Op, spread, schedule, resolve_lgkm
import common
import oproj
import math, struct

QSCALE = struct.unpack("<I", struct.pack("<f", math.log2(math.e) / math.sqrt(128.0)))[0]
THRESH = 0x40004000
REFBITS = 0x41400000

V_LANE16 = 1
V_K = 2
V_V = 3
V_VV = 4
V_NINF = 5
V_T = 6
V_T2 = 7
NEGM = 8
LQ = [12, 48, 248, 252]
ONES = 60
REF = 12.0
CIN = 16
DL = 52
V_C = 57
V_LANEV = 56
Q = 64
S = [128, 160]
P = [192, 208]
TMP = 224
V_PF = 228
V_PS = 229
V_PL = 230
A_R = 224
ET = 232
A_O = 0
A_K = 128
A_V = 192


LDF = ' sc1'
import os
SNT = os.environ.get('SNT', ' nt')
SNAKE = int(os.environ.get('SNAKE', '1'))
CHAIN = int(os.environ.get('CHAIN', '1'))
VT = int(os.environ.get('VT', '4'))
import os
KN = set(os.environ.get("KN", "").split(","))


def vq(b):
    return f"v[{b}:{b+3}]"


def aq(b):
    return f"a[{b}:{b+3}]"


def slot_of(typ, kb, qb):
    if typ == "D":
        return kb * 4 + qb
    return (kb % 2) * 4 + (kb // 2) * 2 + (qb - 2)


def kind(t):
    return t[0]


def qbs_of(t):
    return {"D": [0, 1, 2, 3], "D3": [1, 2, 3], "S": [2, 3], "S1": [3]}[t]


def js_of(t):
    return qbs_of(t) if kind(t) == "D" else [ks * 2 + q - 2 for ks in range(2) for q in qbs_of(t)]


def qk_mfmas(typ, par, ko=0):
    out = []
    for kb, qb, c, first in snake(range(2 if kind(typ) == "D" else 4), qbs_of(typ), 4):
        sl = slot_of(kind(typ), kb, qb)
        d = vq(S[par] + 4 * sl)
        out.append(mfma16(d, aq(A_K + ko + (kb * 4 + c) * 4), vq(Q + (qb * 4 + c) * 4), vq(CIN + 4 * sl) if first else d))
    return out


def pv_mfmas(typ, par):
    out = []
    D = kind(typ) == "D"
    for db, qb, ks, _ in snake(range(-1, 8), qbs_of(typ), 1 if D else 2):
        j = qb if D else ks * 2 + qb - 2
        if db < 0:
            out.append(mfma16(vq(LQ[qb]), vq(ONES), vq(P[par] + 4 * j), vq(LQ[qb])))
        else:
            o = aq(A_O + (db * 4 + qb) * 4)
            out.append(mfma16(o, aq(A_V + (db if D else db * 2 + ks) * 4), vq(P[par] + 4 * j), o))
    return out


def sm_stream(par, js):
    ops = []
    for j in js:
        for half in range(2):
            sl = j + 4 * half
            for r in range(4):
                ops.append(f"v_exp_f32 v{ET+r}, v{S[par] + 4*sl + r}")
            ops.append("s_nop 0")
            for pr in range(2):
                ops.append(f"v_cvt_pk_bf16_f32 v{P[par] + 4*j + 2*half + pr}, v{ET+2*pr}, v{ET+2*pr+1}")
    return ops


def dma_group(mall=None):
    out = []
    if "nodma" in KN: return []
    for i in range(4):
        t = ""
        if i == 0:
            t = "s_mov_b32 m0, s34\ns_nop 0\n"
        out.append(t + f"buffer_load_dwordx4 v{V_LANE16}, s[16:19], s32 offen offset:{i*1024}{LDF} lds")
    for i in range(4):
        t = ""
        if i == 0:
            t = "s_mov_b32 m0, s35\ns_nop 0\n"
        out.append(t + f"buffer_load_dwordx4 v{V_LANE16}, s[20:23], s33 offen offset:{i*1024}{LDF} lds")
    if mall:
        l = mall.uid("k2_mpf")
        out.append(f"s_add_u32 s61, s61, 1\ns_and_b32 s31, s61, 3\ns_cbranch_scc1 {l}\n"
                   f"buffer_load_dword v{V_T2}, v{V_PF}, s[12:15], s62 offen\ns_add_u32 s62, s62, 0x2000\n{l}:")
    out.append("s_add_u32 s32, s32, 0x80000\ns_add_u32 s33, s33, 0x80000\n"
               "s_add_u32 s34, s34, 0x4000\ns_and_b32 s34, s34, 0xffff\n"
               "s_add_u32 s35, s35, 0x4000\ns_and_b32 s35, s35, 0xffff\ns_or_b32 s35, s35, 0x10000")
    return out


def prep_texts(k, qb):
    sc = f"s_sub_u32 s40, s36, s{38 if qb < 2 else 39}" + ("\ns_sub_u32 s40, s40, 64" if qb % 2 else "")
    v0 = f"v_subrev_u32 v{V_T}, s40, v{V_VV}"
    tiles = []
    for kb in range(2 if k == "D" else 4):
        cm = [f"v_cmp_gt_i32 s[{44+2*r}:{45+2*r}], {16*kb + r}, v{V_T}" for r in range(4)]
        cn = [f"v_cndmask_b32 v{CIN + 4*slot_of(k, kb, qb) + r}, v{NEGM+qb}, v{V_NINF}, s[{44+2*r}:{45+2*r}]" for r in range(4)]
        tiles.append((cm, cn))
    return sc, v0, tiles


def cin_prep(a, k, qb):
    sc, v0, tiles = prep_texts(k, qb)
    a(sc)
    a(v0)
    for cm, cn in tiles:
        for t in cm + cn:
            a(t)
    a("s_nop 1")


def prep_ops(k, qb, lo, hi):
    sc, v0, tiles = prep_texts(k, qb)
    o = spread([v0] + [t for cm, cn in tiles for t in cm + cn], "A", lo + 1, hi)
    so = Op(sc, "S", lo, lo=lo)
    o[0].after.append(so)
    o[-1].hard = hi
    return [so] + o


def row_max(a, typ, par, clamp0):
    qbs = qbs_of(typ)
    for qb in qbs:
        sls = [slot_of(kind(typ), kb, qb) for kb in range(2 if kind(typ) == "D" else 4)]
        rs = [S[par] + 4 * sl + r for sl in sls for r in range(4)]
        d = DL + qb
        a(f"v_max_f32 v{d}, v{rs[0]}, v{rs[1]}")
        for i in range(2, len(rs), 2):
            a(f"v_max3_f32 v{d}, v{d}, v{rs[i]}, v{rs[i+1]}")
    for sw in ("v_permlane16_swap_b32", "v_permlane32_swap_b32"):
        for qb in qbs:
            a(f"v_mov_b32 v{TMP+qb}, v{DL+qb}")
        a("s_nop 1")
        for qb in qbs:
            a(f"{sw} v{DL+qb}, v{TMP+qb}")
        a("s_nop 1")
        for qb in qbs:
            a(f"v_max_f32 v{DL+qb}, v{DL+qb}, v{TMP+qb}")
    for qb in qbs:
        a(f"v_add_f32 v{DL+qb}, 0x{REFBITS:x}, v{DL+qb}")
        if clamp0:
            a(f"v_max_f32 v{DL+qb}, 0, v{DL+qb}")


def qb_of_slot(typ, sl):
    return sl % 4 if typ == "D" else 2 + (sl % 2)


def rare_path(a, sm_typ, qk_k, par):
    a("s_nop 7")
    row_max(a, sm_typ, par, True)
    qbs = qbs_of(sm_typ)
    for sl in range(8):
        q = qb_of_slot(kind(sm_typ), sl)
        if q in qbs:
            for r in range(4):
                x = S[par] + 4 * sl + r
                a(f"v_sub_f32 v{x}, v{x}, v{DL + q}")
    if qk_k is not None:
        for sl in range(8):
            q = qb_of_slot(qk_k, sl)
            if q in qbs:
                for r in range(4):
                    x = S[1 - par] + 4 * sl + r
                    a(f"v_sub_f32 v{x}, v{x}, v{DL + q}")
                    x = CIN + 4 * sl + r
                    a(f"v_sub_f32 v{x}, v{x}, v{DL + q}")
    for qb in qbs:
        a(f"v_sub_f32 v{NEGM+qb}, v{NEGM+qb}, v{DL+qb}")
        a(f"v_exp_f32 v{DL+qb}, -v{DL+qb}")
    a("s_nop 0")
    for qb in qbs:
        a(f"v_mul_f32 v{LQ[qb]}, v{LQ[qb]}, v{DL+qb}")
    for db in range(8):
        for qb in qbs:
            o = A_O + (db * 4 + qb) * 4
            for r in range(4):
                a(f"v_accvgpr_read_b32 v{TMP+r}, a{o+r}")
            for r in range(4):
                a(f"v_mul_f32 v{TMP+r}, v{TMP+r}, v{DL+qb}")
            for r in range(4):
                a(f"v_accvgpr_write_b32 a{o+r}, v{TMP+r}")
    for t in sm_stream(par, js_of(sm_typ)):
        a(t)
    a("s_nop 3")
    a("s_setpc_b64 s[40:41]")


def sm_ops(par, js, lo, hi, sub=False):
    ops, cvts, regs = [], [], []
    users = {}
    chk = None
    tot = 4 * len(js)
    step = (hi - lo) / float(tot)
    n = 0
    for j in js:
        for half in range(2):
            sl = j + 4 * half
            for pr in range(2):
                t = ET + (n % 8) * 2
                w = lo + step * n
                s0 = S[par] + 4 * sl + 2 * pr
                war = users.get(t, [])
                sb = []
                if sub:
                    sb = [Op(f"v_sub_f32 v{s0+k}, v{s0+k}, v{DL+j}", "A", w - step) for k in range(2)]
                    ops += sb
                e0 = Op(f"v_exp_f32 v{t}, v{s0}", "E", w, after=war + sb)
                e1 = Op(f"v_exp_f32 v{t+1}, v{s0+1}", "E", w + step / 2, after=war + sb)
                pr_ = P[par] + 4 * j + 2 * half + pr
                cv = Op(f"v_cvt_pk_bf16_f32 v{pr_}, v{t}, v{t+1}", "A", w + step * 1.1, after=[e0, e1])
                users[t] = [cv]
                ops += [e0, e1, cv]
                cvts.append(cv)
                regs.append(pr_)
                if n == 2:
                    chk = Op(f"v_or3_b32 v{V_C}, v{regs[0]}, v{regs[1]}, v{regs[2]}", "A", w + step * 1.6, after=cvts[-3:])
                    ops.append(chk)
                elif n > 2 and n % 2 == 0:
                    chk = Op(f"v_or3_b32 v{V_C}, v{V_C}, v{regs[-2]}, v{regs[-1]}", "A", w + step * 1.6, after=cvts[-2:] + [chk])
                    ops.append(chk)
                elif n == tot - 1:
                    chk = Op(f"v_bitop3_b32 v{V_C}, v{V_C}, v{regs[-1]}, s37 bitop3:0xa8", "A", w + step * 1.4, after=[cv, chk])
                    ops.append(chk)
                n += 1
    return ops, chk, cvts


def nfr(typ):
    return 8 if typ[0] == "D" else 16


def rd_text(which, i, typ="D"):
    base, va = (A_K, V_K) if which == "K" else (A_V, V_V)
    off = i * 1024 if (which == "K" or kind(typ) == "D") else (i % 2) * 8192 + (i // 2) * 1024
    return f"ds_read_b128 {aq(base + 4*i)}, v{va} offset:{off}"


def ptr_ops(typ, which, lo, want, after):
    va, sp, lane = (V_K, 52, V_LANE16) if which == "K" else (V_V, 53, V_LANEV)
    s1 = Op(f"s_add_u32 s{sp}, s{sp}, {nfr(typ)*1024}", "S", lo + 1, lo=lo)
    s2 = Op(f"s_and_b32 s{sp}, s{sp}, 0xffff", "S", lo + 3, lo=lo, after=[s1])
    up = Op(f"v_add_u32 v{va}, s{sp}, v{lane}", "A", want, after=list(after) + [s2])
    return [s1, s2, up]


def dma_ops(h, lo, hi, after):
    srd, so, lp = (("s[16:19]", 32, 34), ("s[20:23]", 33, 35))[h]
    step = (hi - lo - 1) / 4.0
    m = Op(f"s_mov_b32 m0, s{lp}", "S", lo, lo=lo, after=after)
    ops = [m]
    last = None
    for i in range(4):
        v = Op(f"buffer_load_dwordx4 v{V_LANE16}, {srd}, s{so} offen offset:{i*1024}{LDF} lds", "V", lo + 1 + step * i, lo=lo,
               after=[last] if last else [], prev_gap=[m], hard=hi - 1)
        ops.append(v)
        last = v
    b = [Op(f"s_add_u32 s{so}, s{so}, 0x80000", "S", lo + 2 + step * 3, after=[last])]
    b.append(Op(f"s_add_u32 s{lp}, s{lp}, 0x4000", "S", lo + step, after=[m]))
    b.append(Op(f"s_and_b32 s{lp}, s{lp}, 0xffff", "S", lo + step * 2, after=[b[-1]]))
    if h:
        b.append(Op(f"s_or_b32 s{lp}, s{lp}, 0x10000", "S", lo + step * 2.5, after=[b[-1]]))
    return ops + b, last


def side_ops(lo, hi, load=True):
    step = (hi - lo) / (5.0 if load else 2.0)
    ops = spread([f"buffer_store_dwordx4 {aq(A_R + 4*i)}, v{V_PS}, s[8:11], s58 offen offset:{i*256} sc1" for i in range(2)], "V", lo, lo + 2 * step)
    if not load:
        return ops, ops[-1]
    sa = spread(["s_and_b32 s60, s62, 31", "s_lshr_b32 s61, s62, 5", f"s_mul_i32 s57, s60, {32*7168}", "s_lshl_b32 s4, s61, 7", "s_add_u32 s57, s57, s4",
                 f"s_add_u32 s56, s57, {8*7168}", "s_add_u32 s62, s62, 1"], "S", lo - 12, lo + step)
    sb = spread(["s_lshl_b32 s58, s61, 17", "s_lshl_b32 s60, s60, 10", "s_add_u32 s58, s58, s60", "s_mov_b32 s10, s59"], "S", lo + 2 * step, lo + 4 * step)
    sb[0].after += [ops[-1], sa[-1]]
    ld = spread([f"buffer_load_dwordx4 {aq(A_R)}, v{V_PF}, s[12:15], s57 offen{SNT}", f"buffer_load_dwordx4 {aq(A_R + 4)}, v{V_PF}, s[12:15], s56 offen{SNT}",
                 f"buffer_load_dword v{V_T2}, v{V_PL}, s[24:27], s54 offen"], "V", lo + 2 * step, hi)
    ld[0].after += [ops[-1], sa[-1]]
    return ops + sa + sb + ld + [Op("s_add_u32 s54, s54, 4096", "S", hi, after=ld[-1:])], ld[-1]


LEAD = 19
KL = int(os.environ.get('KL', '0'))


def body(a, outl, u_par, qk, sm, pv, vread, sync, prep=None, dk=False, dv=False, tail=(), first=False, side=None, remap=False, extra=None):
    par = u_par
    mp = pv_mfmas(pv, 1 - par) if pv else []
    mf = mp + (qk_mfmas(qk, 1 - par, 32 if first else 0) if qk else [])
    n1, n = len(mp), len(mf)
    ops, pre = [], []
    carried = []
    chain = []
    vup = None

    def uses(base, i):
        g = [k for k, t in enumerate(mf) if f", {aq(base + 4*i)}," in t]
        return g[0], g[-1]

    def add_reads(which, idxs, wants, los, extra=(), typ="D"):
        out = []
        for i, w, lo in zip(idxs, wants, los):
            o = Op(rd_text(which, i, typ), "M", max(w, lo), lo=lo, after=(chain[-1:] + list(extra)))
            chain.append(o)
            out.append(o)
        return out

    def waits(base, m, rds):
        for i in range(0, m, 2):
            g = min(uses(base, j)[0] for j in range(i, m)) - 1
            need = [rds[j] for j in (i, i + 1) if rds.get(j) is not None]
            for r in need:
                r.hard = max(0, g - 4)
            ops.append(Op(f"@LGKM {base + 4*(i+1)}", "S", g, lo=g, hard=g, after=need))

    bar = None
    dlast = []
    if dv:
        o, l = dma_ops(1, 1, n1 - 1 if sync in ("mid", "mid0") else n - 4, [])
        ops += o
        dlast.append(l)
    if sync == "mid":
        bar = Op("s_waitcnt vmcnt(12)\ns_barrier", "S", n1, lo=n1, hard=n1, after=dlast)
    elif sync == "end":
        bar = Op(f"s_waitcnt vmcnt({8 if first else 13})\ns_barrier", "S", n - 1, lo=n - 1, hard=n - 1, after=dlast)
    elif sync == "mid0":
        bar = Op("s_waitcnt vmcnt(4)\ns_barrier", "S", n1, lo=n1, hard=n1, after=dlast)
    elif sync == "epi":
        bar = Op("s_waitcnt vmcnt(0)\ns_barrier", "S", 0, lo=0, hard=0)
    if first:
        po = first["poll"]()
        ga = first["gate"](lo=n - 3, hard=n - 2, after=[po])
        ops += [po, ga]
        bar.after.append(ga)
    if bar:
        ops.append(bar)
    if dk:
        if sync == "mid":
            o, l = dma_ops(0, n1 + 1, n - 1, [bar])
        else:
            o, l = dma_ops(0, 1, 24, [])
        ops += o
        if side is not None:
            w = Op("s_waitcnt vmcnt(9)", "S", 24, lo=24, after=[l])
            o, _ = side_ops(25, n - 3, side)
            o[0].after.append(w)
            ops += [w] + o
    if pv:
        m = nfr(pv)
        mt = m // 2
        carried = [A_V + 4 * i for i in range(mt)]
        idx = list(range(mt, m))
        r = add_reads("V", idx, [uses(A_V, mt)[0] + (n1 - uses(A_V, mt)[0]) * (i - mt) / len(idx) - LEAD for i in idx], [0] * len(idx), typ=pv)
        po = ptr_ops(pv, "V", 2, r[-1].want + 3, r[-1:])
        vup = po[-1]
        ops += r + po
        waits(A_V, m, dict(zip(idx, r)))
    if qk:
        m = nfr(qk)
        if pv:
            idx = list(range(m))
            r = add_reads("K", idx, [n1 + (n - n1) * i / m - LEAD - (KL if CHAIN else 0) for i in idx], [0] * m)
            ops += r + ptr_ops(qk, "K", n1 + 6, r[-1].want + 3, r[-1:])
            waits(A_K, m, dict(zip(idx, r)))
        elif not first:
            pre.append("s_waitcnt lgkmcnt(0)")
        rm = []
        if remap:
            rm = spread([f"v_mov_b32 v{CIN + 4*sl + r}, v{NEGM + 2 + sl % 2}" for sl in (0, 1, 4, 5) for r in range(4)], "A", 4, n1 - 8)
            rm[-1].hard = n1 - 5
            ops += rm
        if prep and prep[0] == "in":
            ops += prep_ops(kind(qk), prep[1], 4, n1 - 3)
        elif prep:
            pl, pr = a.uid("k2_prep"), a.uid("k2_prepret")
            t = f"s_cmp_ge_u32 s36, s{42 if kind(qk) == 'D' else 43}\ns_cbranch_scc1 {pl}\n{pr}:"
            outl.append(("prep", pl, kind(qk), prep[1], pr))
            if pv:
                ops.append(Op(t, "B", n1 - 4, lo=4, hard=n1 - 3, after=rm[-1:]))
            else:
                pre.append(t)
        ops.append(Op(f"s_add_u32 s36, s36, {32 if kind(qk) == 'D' else 64}", "S", n1 + 4, lo=n1))
    if vread:
        m = nfr(vread)
        ex = ([vup] if vup else []) + ([bar] if sync in ("mid", "mid0", "epi") else [])
        idx = list(range(m // 2 if qk else m))
        free = [(uses(A_V, i)[1] + 1) if (pv and i < nfr(pv)) else 0 for i in idx]
        if qk:
            ops += add_reads("V", idx, [n + 4 + i * (32 // m) - LEAD - 2 for i in idx], free, ex, typ=vread)
        else:
            ops += add_reads("V", idx, [18 + i for i in idx], free, ex, typ=vread)
    if sm:
        so, chk, cvts = sm_ops(par, js_of(sm), 1 if first else 0, n - 4, sub=bool(first))
        ops += so
        rl, ret = a.uid("k2_tramp"), a.uid("k2_ret")
        c3 = Op(f"v_cmp_ne_u32 vcc, 0, v{V_C}", "A", n - 2, after=[chk])
        c4 = Op(f"s_cbranch_vccnz {rl}\n{ret}:", "B", n + 99, lo=n, after=[c3] + cvts)
        ops += [c3, c4]
        outl.append(("rare", rl, (sm, kind(qk) if qk else None, par), ret))
    for t in tail:
        ops.append(Op(t, "S", n - 8))
    if extra:
        ops += extra(bar, n)
    start = len(a.lines)
    for t in pre:
        a(t)
    schedule(a, mf, ops)
    resolve_lgkm(a.lines, start, carried)


def kv_first():
    out = ["s_mov_b32 s32, s60", "s_mov_b32 s34, s60", "s_mov_b32 s33, s60", "s_add_u32 s35, s60, 0x10000"]
    return out


def out_ops(qb, c, t, pk):
    tx = []
    for hh in range(2):
        o = A_O + ((2 * c + hh) * 4 + qb) * 4
        tx += [f"v_accvgpr_read_b32 v{t+4+hh*4+r}, a{o+r}" for r in range(4)]
    if pk:
        tx += [f"v_pk_mul_f32 v[{t+4+r}:{t+5+r}], v[{t+4+r}:{t+5+r}], v[{LQ[qb]}:{LQ[qb]+1}]" for r in range(0, 8, 2)]
    else:
        tx += [f"v_mul_f32 v{t+4+r}, v{t+4+r}, v{LQ[qb]}" for r in range(8)]
    tx += [f"v_cvt_pk_bf16_f32 v{t+r}, v{t+4+2*r}, v{t+5+2*r}" for r in range(4)]
    st = f"buffer_store_dwordx4 v[{t}:{t+3}], v{V_LANE16}, s[24:27], s{44+c+4*(qb%2)} offen sc1"
    return tx, st


def l_final(qbs):
    tx = []
    for sw in ("v_permlane16_swap_b32", "v_permlane32_swap_b32"):
        tx += [f"v_mov_b32 v{LQ[q]+1}, v{LQ[q]}" for q in qbs] + ["s_nop 1"]
        tx += [f"{sw} v{LQ[q]}, v{LQ[q]+1}" for q in qbs] + ["s_nop 1"]
        tx += [f"v_add_f32 v{LQ[q]}, v{LQ[q]}, v{LQ[q]+1}" for q in qbs]
    tx += [f"v_rcp_f32 v{LQ[q]+1}, v{LQ[q]}" for q in qbs] + [f"v_rcp_f32 v{LQ[q]}, v{LQ[q]}" for q in qbs] + ["s_nop 0"]
    return tx


def ctx_base(srow):
    return ["s_lshl_b32 s31, s28, 19", f"s_lshl_b32 s44, s{srow}, 6", "s_add_u32 s44, s44, s31"] + \
           [f"s_add_u32 s{44+c}, s44, {(c%4)*0x20000 + (c//4)*4096}" for c in range(1, 8)]


def attention_phase(a, end, kidx, qsrc, late, stubs=(), next_code=None, when=None, ffn=None):
    a(f"s_load_dwordx2 s[44:45], s[0:1], {ARG['wo']}")
    a(f"s_load_dwordx2 s[46:47], s[0:1], {ARG['wg']}")
    a(f"s_load_dwordx4 s[48:51], s[0:1], {ARG['wu']}")
    a(f"s_mov_b32 s40, 0x{QSCALE:x}")
    a(f"s_mov_b32 s41, 0x{QSCALE:x}")
    for t in dma_group():
        a(t)
    a(f"v_mov_b32 v{V_K}, v{V_LANE16}")
    a(f"v_or_b32 v{V_V}, 0x10000, v{V_LANE16}")
    a(f"v_mov_b32 v{V_LANEV}, v{V_V}")
    a("s_mov_b32 s52, 0x4000")
    a("s_mov_b32 s53, 0")
    a("s_lshl_b32 s62, s28, 6")
    a("s_mul_i32 s31, s29, s29")
    a("s_add_u32 s62, s62, s31")
    a("s_lshr_b32 s31, s30, 1")
    a("s_lshl_b32 s4, s31, 23")
    a(f"s_add_u32 s4, s4, 0x{RPK_OFF:x}")
    a("s_add_u32 s8, s6, s4")
    a("s_addc_u32 s9, s7, 0")
    a("s_and_b32 s9, s9, 0xffff")
    a("s_mov_b32 s10, 0")
    a("s_mov_b32 s58, 0")
    a("s_mov_b32 s14, 0x700000")
    a("s_mov_b32 s59, 0x700000")
    a("s_lshl_b32 s54, s62, 12")
    a("s_waitcnt vmcnt(16) lgkmcnt(0)")
    a("s_barrier")
    a(late["sig"])
    a("v_mov_b32 v59, 0")
    for i in range(16):
        a(rd_text("K", i))
    a("s_cmp_lt_u32 s30, 2")
    a("s_cselect_b64 s[12:13], s[46:47], s[48:49]")
    a("s_cselect_b64 s[60:61], s[44:45], s[50:51]")
    a("s_cselect_b32 s55, 0x800000, s14")
    a("s_and_b32 s13, s13, 0xffff")
    for qb in (2, 3, 0, 1):
        for c in range(4):
            for hh in range(2):
                kind, x = qsrc(2 * c + hh, qb)
                if kind == "a":
                    y = 128 + (c % 2) * 8 + hh * 4
                    for r in range(4):
                        a(f"v_accvgpr_read_b32 v{y+r}, a{x+r}")
                    x = y
                a(f"v_pk_mul_f32 v[{x}:{x+1}], v[{x}:{x+1}], s[40:41]")
                a(f"v_pk_mul_f32 v[{x+2}:{x+3}], v[{x+2}:{x+3}], s[40:41]")
                d = Q + (qb * 4 + c) * 4 + 2 * hh
                a(f"v_cvt_pk_bf16_f32 v{d}, v{x}, v{x+1}")
                a(f"v_cvt_pk_bf16_f32 v{d+1}, v{x+2}, v{x+3}")
    a(f"v_add_u32 v{V_K}, 0x4000, v{V_LANE16}")
    for i in range(4):
        a(f"v_mov_b32 v{NEGM+i}, 0")
        a(f"v_mov_b32 v{ET+i}, 0")
    a("s_mov_b32 s36, 0")
    a(f"s_mov_b32 s37, 0x{THRESH:x}")
    zero_acc(a, CIN, 32, ET, "v", init=False)
    a(f"v_and_b32 v{V_T}, 0xf0, v{V_LANE16}")
    a(f"v_cmp_eq_u32 vcc, 0, v{V_T}")
    a(f"v_mov_b32 v{V_T}, 0x3f803f80")
    a(f"v_lshrrev_b32 v{V_PS}, 7, v{V_LANE16}")
    a("s_and_b32 s4, s30, 1")
    a("s_lshl_b32 s31, s4, 11")
    a(f"v_lshl_add_u32 v{V_PL}, v{V_LANE16}, 1, s31")
    a(f"v_lshl_add_u32 v{V_PS}, s4, 4, v{V_PS}")
    a(f"v_mul_u32_u24 v{V_PF}, 7168, v{V_PS}")
    a(f"v_and_b32 v{V_T2}, 0x70, v{V_LANE16}")
    a(f"v_add_u32 v{V_PF}, v{V_PF}, v{V_T2}")
    a(f"v_lshlrev_b32 v{V_PS}, 5, v{V_PS}")
    a(f"v_and_b32 v{V_C}, 0x10, v{V_LANE16}")
    a(f"v_add_u32 v{V_PS}, v{V_PS}, v{V_C}")
    a(f"v_lshrrev_b32 v{V_T2}, 5, v{V_T2}")
    a(f"v_lshl_add_u32 v{V_PS}, v{V_T2}, 15, v{V_PS}")
    for r in range(4):
        a(f"v_cndmask_b32 v{ONES+r}, 0, v{V_T}, vcc")
    for i in range(4):
        for r in range(4):
            a(f"v_mov_b32 v{LQ[i]+r}, 0")
    if not when:
        stamp(a, 4)
    outl = []
    body(a, outl, 1, "D", None, None, None, None, ("cond", 0))
    zero_acc(a, 0, 128, ET, init=False)
    row_max(a, "D", 0, False)
    for sl in range(8):
        for r in range(4):
            a(f"v_sub_f32 v{CIN+4*sl+r}, 0, v{DL + sl % 4}")
    for qb in range(4):
        a(f"v_sub_f32 v{NEGM+qb}, 0, v{DL+qb}")
    body(a, outl, 0, "D", "D", None, "D", "end", ("cond", 0), first=late)
    a("s_mov_b32 s24, s60")
    a("s_and_b32 s25, s61, 0xffff")
    a("s_mov_b32 s26, s55")
    loop, dm3 = a.uid("k2_dloop"), a.uid("k2_dm3")
    a("s_lshl_b32 s63, s29, 1")
    a("s_sub_u32 s63, s63, 1")
    a(f"s_cbranch_scc1 {dm3}")
    a.label(loop)
    body(a, outl, 1, "D", "D", "D", "D", None, dk=True, side=True)
    body(a, outl, 0, "D", "D", "D", "D", "end", dv=True, tail=["s_sub_u32 s63, s63, 1"])
    a("s_cmp_lg_u32 s63, 0")
    a(f"s_cbranch_scc1 {loop}")
    body(a, outl, 1, "D", "D", "D", "D", None, ("in", 0), dk=True, side=True)
    body(a, outl, 0, "D", "D", "D", "D", "end", ("in", 0), dv=True)
    a.label(dm3)
    body(a, outl, 1, "D3", "D", "D", "D", None, ("in", 1), dk=True, side=True)
    body(a, outl, 0, "D3", "D3", "D", "D", "end", ("in", 1), dv=True)
    if not when:
        stamp(a, 5)
    body(a, outl, 1, "S", "D3", "D3", "D", None, ("cond", 2), dk=True, side=False, remap=True)
    body(a, outl, 0, "S", "S", "D3", "S", "mid", ("cond", 3), dv=True, dk=True)
    if os.environ.get("LST"):
        stamp(a, 1)
    if when:
        oproj.early_loads(a)
    a.srd_off(24, 6, CTX_OFF, 16 << 20)
    for t in ctx_base(38) + l_final([0, 1]):
        a(t)
    n = 0
    for qb in range(2):
        for c in range(4):
            tx, st = out_ops(qb, c, Q + (n % 2) * 12, True)
            n += 1
            for t in tx + [st]:
                a(t)
    if os.environ.get("LST"):
        stamp(a, 2)
    if when:
        a("s_nop 1")
        oproj.early(a)
    if ffn:
        ffn.wdown_loads(a)
        a(ffn.seq_text(ffn.poison_seq("s31", "s40") + ffn.wdown_seq("s31", "s40", 44)))
    if os.environ.get("LST"):
        stamp(a, 3)
    loop, done = a.uid("k2_sloop"), a.uid("k2_sdone")
    a("s_lshl_b32 s63, s29, 1")
    a("s_sub_u32 s63, 13, s63")
    a(f"s_cbranch_scc1 {done}")
    a.label(loop)
    body(a, outl, 1, "S", "S", "S", "S", "mid", dv=True, dk=True)
    body(a, outl, 0, "S", "S", "S", "S", "mid", dv=True, dk=True, tail=["s_sub_u32 s63, s63, 1"])
    a("s_cmp_lg_u32 s63, 0")
    a(f"s_cbranch_scc1 {loop}")
    body(a, outl, 1, "S", "S", "S", "S", "mid0", ("in", 2), dv=True)
    body(a, outl, 0, "S1", "S", "S", "S", None, ("in", 3))
    a.label(done)
    body(a, outl, 1, None, "S1", "S", "S", "epi", extra=(lambda bar, n: oproj.e1_ops(a, when, bar, n)) if when else None)
    if next_code:
        a(f"v_lshrrev_b32 v{V_T}, 4, v{V_LANE16}")
        a(f"v_and_b32 v{V_T}, 31, v{V_T}")
        code_addr(a, next_code, TMP, V_T, 40)
        a(f"global_load_dword v{V_T2}, v[{TMP}:{TMP+1}], off")
    mf = pv_mfmas("S1", 1)
    ops = spread(ctx_base(39), "S", 0, 6)
    cb_last = ops[-1]
    lf = {2: spread(l_final([2]), "A", 0, 3), 3: spread(l_final([3]), "A", 8, 11)}
    ops += lf[2] + lf[3]
    ops.append(Op("s_waitcnt lgkmcnt(0)", "S", 1, lo=1, hard=1))
    prev = {}
    n = 0
    for qb in (2, 3):
        for c in range(4):
            t = 128 + (n % 4) * 12
            g0 = 3 + 4 * c if qb == 2 else 19 + c
            tx, st = out_ops(qb, c, t, qb == 3)
            o = spread(tx, "A", g0, g0 + (4 if qb == 2 else 1))
            o[0].after += [lf[qb][-1]] + prev.get(t, [])
            so = Op(st, "V", g0 + 4, after=[o[-1], cb_last])
            prev[t] = [so]
            ops += o + [so]
            n += 1
    if not when:
        stamp(a, 6)
    schedule(a, mf, ops)
    if when:
        stamp(a, 4)
        oproj.finish(a, when, ffn)
    tr_dump(a, 6, 30, V_LANE16)
    stamp_dump(a, kidx, 7, 6)
    a.label(end)
    a("s_endpgm")
    for o in outl:
        if o[0] == "prep":
            a.label(o[1])
            cin_prep(a, o[2], o[3])
            a(f"s_branch {o[4]}")
    for (sl, txt, ret) in stubs:
        a.label(sl)
        a(txt)
        a(f"s_branch {ret}")
    keys = {}
    for o in outl:
        if o[0] == "rare":
            lab = keys.setdefault(o[2], a.uid("k2_rare"))
            a.label(o[1])
            a(f"s_call_b64 s[40:41], {lab}")
            a(f"s_branch {o[3]}")
    for key, lab in keys.items():
        a.label(lab)
        rare_path(a, *key)
```

```python
from common import *
import common, os
from sched import Op, spread, schedule

SPIN_MAX = 1 << 20
R = 64
XO, WDM, WRD = R + 24, R + 26, R + 0
G, PO, PV_, Z, ONE = R + 8, R + 9, R + 10, R + 11, R + 12
STO, HO, WO, CA = R + 13, R + 14, R + 16, R + 18
DUM = R + 20
ACC, XE, WR, SA = 128, 192, 208, 208
XR = 128
FW = [0, 64]


def vq(b):
    return f"v[{b}:{b+3}]"


def aq(b):
    return f"a[{b}:{b+3}]"


def one_lane(text):
    return f"s_mov_b64 exec, 1\n{text}\ns_mov_b64 exec, -1"


def wdma(p):
    return (f"s_add_u32 m0, s60, {(p % 4)*16384}",
            [f"buffer_load_dwordx4 v{WDM+i}, s[12:15], s61 offen offset:{i*1024} lds" for i in range(4)],
            "s_add_u32 s61, s61, 0x20000\ns_and_b32 s61, s61, 0x3fffff")


def xloads(p):
    return (None, [f"buffer_load_dwordx4 {aq(XR + (p % 4)*16 + 8*ks + 4*tb)}, v{XO+ks}, s[8:11], s62 offen offset:{tb*1024} sc1" for ks in range(2) for tb in range(2)],
            "s_add_u32 s62, s62, 0x40000\ns_and_b32 s62, s62, 0x7fffff")


def early_loads(a):
    a(f"s_load_dwordx2 s[4:5], s[0:1], {ARG['wo']}")


def early(a):
    T0, T1, T2, LN = R + 20, R + 21, R + 22, R + 23
    a("s_lshr_b32 s31, s2, 3")
    a("s_bfe_u32 s56, s2, 0x10002")
    a("s_and_b32 s54, s2, 1")
    a("s_and_b32 s55, s31, 7")
    if os.environ.get("TMIX", "0") == "1":
        a("s_lshl_b32 s55, s55, 1")
    else:
        a("s_lshl_b32 s54, s54, 3")
    a("s_add_u32 s54, s54, s55")
    a("s_and_b32 s55, s2, 2")
    a("s_lshl_b32 s55, s55, 1")
    a("s_lshr_b32 s31, s31, 3")
    a("s_add_u32 s55, s55, s31")
    a(f"v_lshrrev_b32 v{LN}, 4, v1")
    a(f"v_lshrrev_b32 v{G}, 4, v{LN}")
    a("s_lshl_b32 s57, s54, 7")
    a("s_lshl_b32 s31, s30, 5")
    a("s_add_u32 s57, s57, s31")
    a("s_lshl_b32 s31, s57, 6")
    a(f"v_add_u32 v{XO}, s31, v1")
    a(f"v_add_u32 v{XO+1}, 0x20000, v{XO}")
    a(f"v_bfe_u32 v{T0}, v{LN}, 1, 3")
    a(f"v_xor_b32 v{T0}, v{T0}, v{G}")
    a(f"v_and_b32 v{T1}, 16, v1")
    a(f"v_lshl_add_u32 v{T1}, v{G}, 11, v{T1}")
    a("s_lshl_b32 s31, s30, 15")
    a("s_lshl_b32 s58, s55, 8")
    a("s_add_u32 s31, s31, s58")
    a(f"v_add_u32 v{T1}, s31, v{T1}")
    for i in range(4):
        a(f"v_xor_b32 v{T2}, {(i % 2) * 4}, v{T0}")
        a(f"v_lshl_add_u32 v{T2}, v{T2}, 5, v{T1}")
        a(f"v_add_u32 v{WDM+i}, {4*i*2048 - i*1024}, v{T2}")
        if os.environ.get("WLIN"):
            a("s_lshl_b32 s31, s55, 14")
            a("s_lshl_b32 s40, s30, 12")
            a("s_add_u32 s31, s31, s40")
            a(f"v_add_u32 v{WDM+i}, s31, v1")
    a(f"v_and_b32 v{T0}, 15, v{LN}")
    a(f"v_add_u32 v{T1}, s57, v{T0}")
    a(f"v_lshlrev_b32 v{STO}, 2, v{T1}")
    a(f"v_lshl_add_u32 v{STO}, v{G}, 13, v{STO}")
    a("s_lshl_b32 s31, s56, 7")
    a("s_add_u32 s58, s58, s31")
    a(f"v_lshl_add_u32 v{WO}, v{G}, 3, s58")
    a(f"v_lshl_add_u32 v{HO}, v{T1}, 11, v{WO}")
    a(f"v_add_u32 v{HO+1}, 0x8000, v{HO}")
    a(f"v_lshrrev_b32 v{T1}, 2, v{T0}")
    a(f"v_lshl_add_u32 v{T1}, v{G}, 2, v{T1}")
    a(f"v_and_b32 v{T0}, 7, v{T1}")
    a("s_lshl_b32 s31, s56, 2")
    a(f"v_xor_b32 v{T0}, s31, v{T0}")
    a(f"v_lshlrev_b32 v{T1}, 8, v{T1}")
    a(f"v_and_b32 v{T2}, 3, v{LN}")
    a(f"v_lshl_add_u32 v{T1}, v{T2}, 3, v{T1}")
    a(f"s_add_u32 s31, s2, {os.environ.get('OQ0', '1')}")
    a("s_and_b32 s31, s31, 3")
    a(f"v_add_u32 v{PO}, s31, v{T2}")
    a(f"v_and_b32 v{PO}, 3, v{PO}")
    a(f"v_lshlrev_b32 v{PO}, 7, v{PO}")
    for j in range(8):
        a(f"v_xor_b32 v{T2}, {j}, v{T0}")
        a(f"v_lshl_add_u32 v{WRD+j}, v{T2}, 5, v{T1}")
    a("s_lshl_b32 s61, s31, 20")
    a("s_lshl_b32 s62, s31, 21")
    a("s_lshl_b32 s60, s30, 12")
    a("s_lshl_b32 s59, s54, 10")
    a("s_lshl_b32 s31, s56, 9")
    a("s_add_u32 s59, s59, s31")
    a("s_lshr_b32 s31, s28, 2")
    a("s_lshl_b32 s31, s31, 7")
    a("s_lshl_b32 s57, s29, 10")
    a("s_sub_u32 s58, 0x3c00, s57")
    a("s_add_u32 s57, s57, s31")
    a("s_add_u32 s58, s58, s31")
    a(f"v_mov_b32 v{Z}, 0")
    a(f"v_mov_b32 v{ONE}, 1")
    a("s_lshl_b32 s31, s56, 23")
    a(f"s_add_u32 s31, s31, 0x{CTX_OFF:x}")
    a("s_add_u32 s8, s6, s31")
    a("s_addc_u32 s9, s7, 0")
    a("s_and_b32 s9, s9, 0xffff")
    a("s_mov_b32 s10, 0x800000")
    a("s_lshl_b32 s31, s56, 22")
    a("s_waitcnt lgkmcnt(0)")
    a("s_add_u32 s12, s4, s31")
    a("s_addc_u32 s13, s5, 0")
    a("s_and_b32 s13, s13, 0xffff")
    a("s_mov_b32 s14, 0x400000")


POLL = f"buffer_load_dword v{PV_}, v{PO}, s[16:19], s59 offen sc1"


def e1_ops(a, when, bar, n):
    a.srd_off(16, 6, CTC_OFF, 16384)
    sig = when("s_cmp_eq_u32 s30, 0", one_lane(f"buffer_atomic_add v{ONE}, v{Z}, s[16:19], s57 offen sc1"), 1, after=[bar])
    ops, prev = [sig], [sig]
    k = 0
    for p in range(3):
        m, ld, tr = wdma(p)
        mo = Op(m, "S", 2 + 2.5 * k, after=prev)
        ops.append(mo)
        for t in ld:
            o = Op(t, "V", 3 + 2.5 * k, after=prev, prev_gap=[mo])
            ops.append(o)
            prev = [o]
            k += 1
        o = Op(tr, "S", 3 + 2.5 * k, after=prev)
        ops.append(o)
        prev = [o]
    ops.append(Op(POLL, "V", n - 1, after=prev))
    return ops


def spin(a, bit):
    lp, ok = a.uid("op_spin"), a.uid("op_ok")
    return "\n".join([f"s_mov_b32 s34, {SPIN_MAX}", f"{lp}:", POLL, "s_waitcnt vmcnt(0)", f"v_cmp_le_u32 vcc, 4, v{PV_}",
                      "s_sub_u32 s34, s34, 1", f"s_cbranch_scc1 {ok}", "s_mov_b32 s33, vcc_lo", f"s_bitcmp1_b32 s33, {bit}",
                      f"s_cbranch_scc1 {ok}", f"s_sleep {os.environ.get('OSL', '4')}", f"s_branch {lp}", f"{ok}:"])


def finish(a, when, ffn=None):
    def now(g):
        for t in g[1] + [g[2]]:
            a(t)
    a.label("op_head")
    a(f"s_load_dwordx2 s[28:29], s[0:1], {ARG['x']}")
    a(f"s_load_dwordx2 s[42:43], s[0:1], {ARG['wr']}")
    late, join = a.uid("op_late"), a.uid("op_join")
    a("s_waitcnt vmcnt(8)")
    a(f"v_cmp_le_u32 vcc, 4, v{PV_}")
    zero_acc(a, ACC, 64, 56, "v")
    a("s_mov_b32 s33, vcc_lo")
    a("s_bitcmp1_b32 s33, 0")
    a(f"s_cbranch_scc0 {late}")
    for p in range(3):
        now(xloads(p))
    a("s_waitcnt vmcnt(12)")
    a(f"s_branch {join}")
    a.label(late)
    a("s_waitcnt vmcnt(0)")
    a.label(join)
    a("s_barrier")
    a(when("s_cmp_eq_u32 s30, 0", one_lane(f"buffer_atomic_add v{ONE}, v{Z}, s[16:19], s58 offen sc1"), 0).text)
    a(when("s_bitcmp0_b32 s33, 0", spin(a, 0) + "\n" + "\n".join("\n".join(xloads(p)[1] + [xloads(p)[2]]) for p in range(3)), 0).text)

    def wreads(p):
        out = []
        for ks in range(2):
            for cb in range(8):
                b = FW[p % 2] + (ks * 8 + cb) * 4
                off = (p % 4) * 16384 + ks * 8192
                out.append(f"ds_read_b64_tr_b16 a[{b}:{b+1}], v{WRD+cb} offset:{off}")
                out.append(f"ds_read_b64_tr_b16 a[{b+2}:{b+3}], v{WRD+cb} offset:{off + 4096}")
        return out

    def mf(p):
        out = []
        for cb, tb, ks, _ in snake((4, 5, 6, 7, 0, 1, 2, 3), range(2), 2):
            c = vq(ACC + (cb * 2 + tb) * 4)
            out.append(mfma16(c, aq(FW[p % 2] + (ks * 8 + cb) * 4), aq(XR + (p % 4) * 16 + 8 * ks + 4 * tb), c))
        return out

    for t in wreads(0):
        a(t)
    a.srd_off(24, 6, H_OFF, 4 << 20)
    a.srd_off(36, 6, XCH_OFF, 8 << 20)
    a.srd_off(48, 6, XFL_OFF, 32768)
    a("s_lshl_b32 s52, s2, 14")
    a("s_add_u32 s52, s52, s60")
    a("s_xor_b32 s53, s52, 0x10000")
    a("s_lshl_b32 s57, s2, 7")
    a("s_xor_b32 s58, s57, 0x200")
    a("v_lshrrev_b32 v56, 4, v1")
    a("s_lshl_b32 s31, s30, 6")
    if not ffn:
        a("s_add_u32 s31, s31, (op_tail2-op_tail)/128-64")
        a("s_cmp_eq_u32 s30, 0")
        a("s_cselect_b32 s31, 0, s31")
    else:
        a("s_and_b32 s31, s31, 64")
    a("v_add_u32 v56, s31, v56")
    a("s_mov_b32 s31, (code_end-op_tail)/128")
    a("v_min_u32 v56, s31, v56")
    code_addr(a, "op_tail", CA, 56, 40)
    if ffn:
        ffn.setup(a)
    a("s_mov_b32 s63, 0")
    a("s_waitcnt vmcnt(8) lgkmcnt(0)")
    a.srd(20, 28, 4 << 20)
    a.srd(44, 42, 2048)
    epi = []
    for tb in range(2):
        for cb in range(4):
            b = XE + (tb * 4 + cb) * 2
            epi.append(f"buffer_load_dwordx2 v[{b}:{b+1}], v{HO+tb}, s[20:23], 0 offen offset:{cb*32}")
    for cb in range(4):
        epi.append(f"buffer_load_dwordx2 v[{WR+2*cb}:{WR+2*cb+1}], v{WO}, s[44:47], 0 offen offset:{cb*32}")
    epi += [f"global_load_dword v{DUM}, v[{CA}:{CA+1}], off", "s_mov_b32 s10, 0", "s_mov_b32 s14, 0"]
    stamp(a, 5)
    loop = a.uid("op_loop")
    a.label(loop)
    for p in range(4):
        rd = spread(wreads(p + 1), "M", 0, 25)
        ops = list(rd)
        prev = []
        if p == 1:
            c1 = Op(f"v_cmp_le_u32 vcc, 4, v{PV_}", "A", 0)
            c2 = Op("s_add_u32 s32, s63, 1\ns_lshr_b32 s32, s32, 1", "S", 0)
            c3 = Op("s_or_b32 s33, vcc_lo, 16", "S", 3, after=[c1], prev_gap=[c1])
            gate = when("s_bitcmp0_b32 s33, s32", spin(a, "s32"), 6, after=[c2, c3])
            ops += [c1, c2, c3, gate]
        k = 0
        for (m, ld, tr) in (wdma(p + 3), xloads(p + 3)):
            mo = None
            if m:
                mo = Op(m, "S", 0)
                ops.append(mo)
            elif p == 1:
                prev = prev + [gate]
            for t in ld:
                o = Op(t, "V", 1 + 3.5 * k, after=prev, prev_gap=[mo] if mo else [])
                ops.append(o)
                prev = [o]
                k += 1
            ops.append(Op(tr, "S", 2 + 3.5 * k, after=prev))
        if ffn and ffn.THIN:
            T0 = int(os.environ.get("THIN0", "3"))
            if p == 0:
                wr = "s_mov_b32 s44, s42\ns_and_b32 s45, s43, 0xffff\ns_mov_b32 s46, 2048\n"
                ops.append(when("s_cmp_eq_u32 s63, 7", wr + "\n".join(epi), 29, lo=26, after=prev + rd))
                ops.append(when(f"s_cmp_eq_u32 s63, {T0 - 1}", ffn.POLL64, 25, after=prev))
            if p == 3:
                g1 = when(f"s_cmp_eq_u32 s63, {T0 - 1}", ffn.gate_text(a), 24, after=prev)
                ops.append(g1)
                prev = prev + [g1]
            th = when(f"s_sub_u32 s40, s63, {T0}\ns_cmp_lt_u32 s40, 4", ffn.THIN_TEXT, 27, after=prev)
            ops.append(th)
            prev = prev + [th]
            if p == 3:
                g2 = when(f"s_cmp_eq_u32 s63, {T0 + 1}", ffn.THIN_FLIP, 29, after=prev)
                ops.append(g2)
                prev = prev + [g2]
        elif p == 0:
            ops.append(when("s_cmp_eq_u32 s63, 7", "\n".join(epi) + ("\n" + ffn.gate_text(a) if ffn else ""), 29, lo=26, after=prev + rd))
        elif ffn:
            if p == 1:
                ops.append(when("s_cmp_eq_u32 s63, 6", ffn.POLL64, 27, after=prev))
        if p == 2:
            pl = Op(POLL, "V", 0.5)
            ops.append(pl)
            for o in ops:
                if o.cls == "V" and o is not pl and not [d for d in o.after if d.cls == "V"]:
                    o.after.append(pl)
        if p == 3:
            ops.append(Op("s_add_u32 s63, s63, 1", "S", 30, after=prev))
        ops.append(Op(f"s_waitcnt vmcnt(12) lgkmcnt(0)\ns_barrier", "S", 31, lo=31, hard=31, after=[o for o in ops if o.cls in "MVB"]))
        schedule(a, mf(p), ops)
    a("s_cmp_lt_u32 s63, 8")
    a(f"s_cbranch_scc1 {loop}")
    a.label("op_tail")
    stamp(a, 6)
    a("s_nop 1")
    for q in range(4):
        c = ACC + 32 + 8 * q
        for r in range(4):
            a(f"v_cvt_pk_bf16_f32 v{c+r}, v{c+2*r}, v{c+2*r+1}")
        if ffn:
            for r in range(4):
                a(f"v_min_u32 v{c+r}, -2, v{c+r}")
        a(f"buffer_store_dwordx4 {vq(c)}, v1, s[36:39], s52 offen offset:{q*1024} sc1")
    a.srd_off(32, 6, STATS_OFF, 3 * 8192)
    a("s_waitcnt vmcnt(4) lgkmcnt(0)")
    for cb in range(4):
        for tb in range(2):
            c, xb = ACC + (cb * 2 + tb) * 4, XE + (tb * 4 + cb) * 2
            for h in range(2):
                a(f"v_lshlrev_b32 v58, 16, v{xb+h}")
                a(f"v_and_b32 v59, 0xffff0000, v{xb+h}")
                a(f"v_pk_add_f32 v[{c+2*h}:{c+2*h+1}], v[{c+2*h}:{c+2*h+1}], v[58:59]")
    a(f"v_and_b32 v58, 1, v{G}")
    a(f"v_lshrrev_b32 v59, 1, v{G}")
    a("v_lshlrev_b32 v58, 5, v58")
    a("v_lshl_add_u32 v58, v59, 4, v58")
    a(f"v_lshlrev_b32 v59, 3, v{G}")
    a("v_sub_u32 v58, v58, v59")
    a(f"v_add_u32 v{HO}, v{HO}, v58")
    a(f"v_add_u32 v{HO+1}, v{HO+1}, v58")
    for i in range(8):
        a(f"v_lshlrev_b32 v{32+2*i}, 16, v{WR+i}")
        a(f"v_and_b32 v{33+2*i}, 0xffff0000, v{WR+i}")
    nw = a.uid("op_nowr")
    a("s_or_b32 s31, s54, s30")
    a(f"s_cbranch_scc1 {nw}")
    a("v_pk_add_f32 v[56:57], v[32:33], v[34:35]")
    for i in range(4, 16, 2):
        a(f"v_pk_add_f32 v[56:57], v[56:57], v[{32+i}:{33+i}]")
    a("v_add_f32 v56, v56, v57")
    for sw in ("v_permlane16_swap_b32", "v_permlane32_swap_b32"):
        a("v_mov_b32 v57, v56")
        a("s_nop 1")
        a(f"{sw} v56, v57")
        a("s_nop 1")
        a("v_add_f32 v56, v56, v57")
    a(f"s_mov_b32 s31, {WRSUM_OFF - STATS_OFF}")
    a(f"s_mov_b32 s34, {WRSUM_OFF - STATS_OFF + 4}")
    a(one_lane(f"buffer_atomic_add_f32 v56, v{Z}, s[32:35], s31 offen"))
    a(f"s_mov_b32 s34, {3 * 8192}")
    a.label(nw)
    for i in range(12):
        a(f"v_mov_b32 v{SA+i}, 0")
    XI = ACC + 32
    if ffn:
        XI = 224
        lp, ok = a.uid("op_xspin"), a.uid("op_xok")
        a(f"s_mov_b32 s40, {SPIN_MAX}")
        a.label(lp)
        for q in range(4):
            a(f"buffer_load_dwordx4 {vq(XI + 4*q)}, v1, s[36:39], s53 offen offset:{q*1024} sc1")
        a("s_sub_u32 s40, s40, 1")
        a("s_waitcnt vmcnt(0)")
        a(f"s_cbranch_scc1 {ok}")
        a(f"v_max3_u32 v56, v{XI}, v{XI+1}, v{XI+2}")
        for r in range(3, 15, 2):
            a(f"v_max3_u32 v56, v56, v{XI+r}, v{XI+r+1}")
        a(f"v_max_u32 v56, v56, v{XI+15}")
        a("v_cmp_eq_u32 vcc, -1, v56")
        a(f"s_cbranch_vccz {ok}")
        a("s_sleep 2")
        a(f"s_branch {lp}")
        a.label(ok)
    else:
        a("s_waitcnt vmcnt(0)")
        a("s_barrier")
        sk, lp = a.uid("op_nopoll"), a.uid("op_xspin")
        a("s_cmp_lg_u32 s30, 0")
        a(f"s_cbranch_scc1 {sk}")
        a(one_lane(f"buffer_store_dword v{ONE}, v{Z}, s[48:51], s57 offen sc1"))
        a(f"s_mov_b32 s40, {SPIN_MAX}")
        a.label(lp)
        a(f"buffer_load_dword v{DUM}, v{Z}, s[48:51], s58 offen sc1")
        a("s_waitcnt vmcnt(0)")
        a(f"v_readfirstlane_b32 s41, v{DUM}")
        a("s_sub_u32 s40, s40, 1")
        a("s_cselect_b32 s41, 1, s41")
        a("s_cmp_eq_u32 s41, 0")
        a(f"s_cbranch_scc1 {lp}")
        a.label(sk)
        a("s_barrier")
        for q in range(4):
            a(f"buffer_load_dwordx4 {vq(ACC + 32 + 4*q)}, v1, s[36:39], s53 offen offset:{q*1024} sc1")
    P2 = lambda r: f"v[{r}:{r+1}]"
    nst = 0
    for cb in range(4):
        if not ffn:
            a(f"s_waitcnt vmcnt({3 - cb + nst})")
        for tb in range(2):
            c = ACC + (cb * 2 + tb) * 4
            xb = XE + (tb * 4 + cb) * 2
            S = SA + tb * 6
            for h in range(2):
                src = XI + 4 * cb + 2 * tb + h
                a(f"v_lshlrev_b32 v{56+2*h}, 16, v{src}")
                a(f"v_and_b32 v{57+2*h}, 0xffff0000, v{src}")
            for h in range(2):
                a(f"v_pk_add_f32 {P2(c+2*h)}, {P2(c+2*h)}, {P2(56+2*h)}")
            for h in range(2):
                a(f"v_cvt_pk_bf16_f32 v{xb+h}, v{c+2*h}, v{c+2*h+1}")
            for h in range(2):
                a(f"v_lshlrev_b32 v{c+2*h}, 16, v{xb+h}")
                a(f"v_and_b32 v{c+2*h+1}, 0xffff0000, v{xb+h}")
            if cb % 2:
                a(f"v_permlane16_swap_b32 v{xb-2}, v{xb}")
                a(f"v_permlane16_swap_b32 v{xb-1}, v{xb+1}")
                a(f"buffer_store_dwordx4 {vq(xb-2)}, v{HO+tb}, s[24:27], 0 offen offset:{(cb//2)*64} sc1")
                nst += 1
            for h in range(2):
                a(f"v_pk_add_f32 {P2(S)}, {P2(S)}, {P2(c+2*h)}")
                a(f"v_pk_fma_f32 {P2(S+2)}, {P2(c+2*h)}, {P2(c+2*h)}, {P2(S+2)}")
                a(f"v_pk_fma_f32 {P2(S+4)}, {P2(c+2*h)}, {P2(32+cb*4+2*h)}, {P2(S+4)}")
    for tb in range(2):
        for k in range(3):
            a(f"v_add_f32 v{48+tb*4+k}, v{SA+tb*6+2*k}, v{SA+tb*6+2*k+1}")
    regs = [48, 49, 50, 52, 53, 54]
    for sw in ("v_permlane16_swap_b32", "v_permlane32_swap_b32"):
        for i, r in enumerate(regs):
            a(f"v_mov_b32 v{56+i}, v{r}")
        a("s_nop 1")
        for i, r in enumerate(regs):
            a(f"{sw} v{r}, v{56+i}")
        a("s_nop 1")
        for i, r in enumerate(regs):
            a(f"v_add_f32 v{r}, v{r}, v{56+i}")
    a(f"v_cmp_eq_u32 s[40:41], 1, v{G}")
    a(f"v_cmp_eq_u32 s[42:43], 2, v{G}")
    a("s_nop 1")
    for tb in range(2):
        b = 48 + tb * 4
        a(f"v_cndmask_b32 v{b}, v{b}, v{b+1}, s[40:41]")
        a(f"v_cndmask_b32 v{b}, v{b}, v{b+2}, s[42:43]")
        a(f"buffer_atomic_add_f32 v{b}, v{STO}, s[32:35], 0 offen offset:{tb*64}")
    if ffn:
        ffn.tail(a)
        return
    a("s_and_b32 s56, s2, 7")
    a("s_mul_i32 s56, s56, 28")
    a("s_lshr_b32 s31, s2, 3")
    a("s_add_u32 s56, s56, s31")
    a("s_lshl_b32 s56, s56, 15")
    a("s_lshl_b32 s57, s30, 13")
    a("s_add_u32 s56, s56, s57")
    a.srd_off(8, 6, RPK_OFF, 16 << 20)
    a("s_cmp_ge_u32 s2, 224")
    a("s_cselect_b32 s10, 0, s10")
    a("v_lshlrev_b32 v8, 3, v1")
    for m in range(int(os.environ.get("K3NPF", "1"))):
        a("buffer_load_dword v9, v8, s[8:11], s56 offen")
        a("s_add_u32 s56, s56, 0x800000")
```

```python
from common import *
import common, os
from sched import Op, spread, schedule
import k2
from k2 import vq, aq, V_LANE16, V_VV, V_NINF, attention_phase, LDF

SPIN_MAX = 1 << 20
KO = set(os.environ.get('KO', '').split(','))
NT = ' nt' if 'nt' in KO else ''
ENV = lambda k, d: int(os.environ.get(k, str(d)))

ZERO, ONE = 8, 9
XD, WD, XRD, WRD = 10, 18, 26, 28
QX, QWD, QWR = 36, 38, 42
VPF, VDUM, VPOLL, VXST, VLW, VLR = 50, 51, 52, 53, 54, 55
PT = 56
PK = 64
WRING = 98304


def spin_text(a, soff, target, VPOLL=VPOLL, ZERO=ZERO):
    ok, lp = a.uid("spin_ok"), a.uid("spin")
    return "\n".join([
        f"v_readfirstlane_b32 s31, v{VPOLL}", f"s_cmp_ge_u32 s31, {target}", f"s_cbranch_scc1 {ok}",
        f"s_mov_b32 s40, {SPIN_MAX}", f"{lp}:", "s_sleep 8",
        f"buffer_load_dword v{VPOLL}, v{ZERO}, s[24:27], {soff} offen sc1", "s_waitcnt vmcnt(0)",
        f"v_readfirstlane_b32 s31, v{VPOLL}", "s_sub_u32 s40, s40, 1", "s_cselect_b32 s31, -1, s31",
        f"s_cmp_lt_u32 s31, {target}", f"s_cbranch_scc1 {lp}", f"{ok}:"])


def one_lane(text):
    return f"s_mov_b64 exec, 1\n{text}\ns_mov_b64 exec, -1"


def gen_k12(a, name="k12_kernel", fuse=False, ffn=None):
    a.begin_kernel(name)
    end = a.uid("k12_end")
    stubs = []
    pst = (lambda i: stamp(a, i)) if "ptrace" in KO else (lambda i: None)

    def when(cmp_text, body, want, **kw):
        l, r = a.uid("k12_ool"), a.uid("k12_oolret")
        if "nosig" in KO and "s[24:27]" in body:
            body = "s_nop 0"
        stubs.append((l, body, r))
        return Op(f"{cmp_text}\ns_cbranch_scc1 {l}\n{r}:", "B", want, **kw)

    a("s_cmp_ge_u32 s2, 256")
    a(f"s_cbranch_scc1 {end}")
    stamp(a, 0)
    a(f"s_load_dwordx4 s[36:39], s[0:1], {ARG['x']}")
    a(f"s_load_dwordx4 s[40:43], s[0:1], {ARG['wuk']}")
    a(f"s_load_dwordx2 s[4:5], s[0:1], {ARG['wq']}")
    a(f"s_load_dwordx4 s[60:63], s[0:1], {ARG['dbg']}")
    CE = ENV("CE", 48)
    a("s_lshr_b32 s59, s2, 3")
    a("s_lshl_b32 s58, s59, 4")
    a("v_add_u32 v6, s58, v0")
    a(f"v_cmp_gt_u32 vcc, {CE}, v0")
    a(f"v_cmp_gt_u32 s[56:57], {CE + 16}, v0")
    a("s_nop 0")
    a("v_cndmask_b32 v6, v6, v0, vcc")
    code_addr(a, "k12_code0", 58, 6, 52)
    a.label("k12_code0")
    a("s_mov_b64 exec, s[56:57]")
    cs = a.uid("k12_nocode")
    a(f"s_cbranch_execz {cs}")
    a(f"global_load_dword v{VDUM}, v[58:59], off")
    a.label(cs)
    a("s_mov_b64 exec, -1")
    a("s_and_b32 s58, s2, 7")
    a("s_lshr_b32 s59, s2, 3")
    a("s_and_b32 s45, s59, 7")
    a("s_lshr_b32 s57, s59, 3")
    a("s_and_b32 s44, s57, 1")
    a("s_lshl_b32 s52, s58, 1")
    a("s_add_u32 s44, s44, s52")
    a("s_lshr_b32 s57, s57, 1")
    W, LN_ = 2, 3
    a(f"v_lshrrev_b32 v{W}, 6, v0")
    a(f"v_and_b32 v{LN_}, 63, v0")
    a(f"v_readfirstlane_b32 s30, v{W}")
    a(f"v_lshlrev_b32 v{V_LANE16}, 4, v{LN_}")
    VX, VT = 64, 80
    TOK, L32 = 60, 61
    a(f"v_lshrrev_b32 v{TOK}, 5, v{LN_}")
    a(f"v_lshl_add_u32 v{TOK}, v{W}, 1, v{TOK}")
    a(f"v_and_b32 v{L32}, 31, v{LN_}")
    a(f"v_lshlrev_b32 v6, 11, v{TOK}")
    a(f"v_lshl_add_u32 v62, v{L32}, 4, v6")
    a("s_lshl_b32 s52, s2, 14")
    a(f"v_lshrrev_b32 v56, 3, v{LN_}")
    a(f"v_and_b32 v57, 7, v{LN_}")
    a("v_lshrrev_b32 v58, 1, v56")
    a("v_xor_b32 v6, v57, v58")
    a("v_xor_b32 v7, 4, v6")
    a(f"v_lshl_add_u32 v58, v{W}, 6, v56")
    a("v_lshlrev_b32 v58, 10, v58")
    a("s_lshl_b32 s47, s45, 18")
    a("v_add_u32 v58, s47, v58")
    a(f"v_lshl_add_u32 v{XD}, v6, 4, v58")
    a(f"v_lshl_add_u32 v{XD+1}, v7, 4, v58")
    for i in range(7, -1, -1):
        a(f"v_add_u32 v{XD+i}, {i*8*1024 - (i%4)*1024}, v{XD + (i%2)}")
    a(f"v_lshrrev_b32 v6, 5, v{LN_}")
    a(f"v_bfe_u32 v7, v{LN_}, 1, 4")
    a(f"v_and_b32 v59, 1, v{LN_}")
    a(f"v_lshl_add_u32 v58, v{W}, 4, v6")
    a("v_lshlrev_b32 v58, 13, v58")
    a("v_lshl_add_u32 v58, v59, 4, v58")
    a("s_lshl_b32 s47, s44, 9")
    a("v_add_u32 v58, s47, v58")
    a("v_xor_b32 v7, v7, v6")
    for i in range(8):
        fx = ((2 * i) & 3) | ((((2 * i) >> 3) & 1) << 2)
        a(f"v_xor_b32 v6, {fx}, v7")
        a(f"v_lshl_add_u32 v6, v6, 5, v58")
        a(f"v_add_u32 v{WD+i}, {2*i*8192 - (i%4)*1024}, v6")
    XB, WB = 0, 65536
    a("s_lshl_b32 s48, s30, 13")
    a("s_mov_b32 s49, 0")
    a("s_mov_b32 s50, 0")
    pst(1)
    a("s_waitcnt lgkmcnt(0)")
    a.srd(24, 36, 4 << 20)
    XP = ENV("XP", 1)

    def xrows():
        for i in range(4):
            a(f"buffer_load_dwordx4 v[{VX+4*i}:{VX+4*i+3}], v62, s[24:27], s52 offen offset:{i*512}{NT}")
    if XP == 0:
        xrows()
    a.srd(16, 38, 2 << 20)
    a("s_cmp_eq_u32 s57, 0")
    a("s_cselect_b32 s20, s40, s42")
    a("s_cselect_b32 s21, s41, s43")
    a("s_and_b32 s21, s21, 0xffff")
    a("s_mov_b32 s22, 0x400000")
    a("s_mov_b32 s23, 0x00020000")

    def dma_grp(stage, g):
        op, i0 = g // 2, (g % 2) * 4
        m = f"s_add_u32 m0, s48, {(XB if op == 0 else WB) + stage*32768 + i0*1024}"
        if op == 0:
            ld = [f"buffer_load_dwordx4 v{XD+i0+i}, s[16:19], s49 offen offset:{i*1024} lds" for i in range(4)]
        else:
            ld = [f"buffer_load_dwordx4 v{WD+i0+i}, s[20:23], s50 offen offset:{i*1024}{NT} lds" for i in range(4)]
        tr = {1: "s_add_u32 s49, s49, 128", 3: "s_add_u32 s50, s50, 0x80000"}.get(g)
        return m, ld, tr

    def emit_grp(m, ld, tr):
        a(m)
        a("s_nop 0")
        for t in ld:
            a(t)
        if tr:
            a(tr)

    def grp_sched(grps, lo, hi, after=()):
        ops, prev = [], list(after)
        tot = sum(len(g[1]) for g in grps)
        step = (hi - lo) / float(tot)
        k = 0
        for (m, ld, tr) in grps:
            mo = None
            if m:
                mo = Op(m, "S", lo + step * k - 1, lo=lo, after=prev)
                ops.append(mo)
            for t in ld:
                o = Op(t, "V", lo + 1 + step * k, lo=lo, after=prev, prev_gap=[mo] if mo else [])
                ops.append(o)
                prev = [o]
                k += 1
            if tr:
                for t in tr.split("\n"):
                    o = Op(t, "S", lo + step * k, after=prev)
                    ops.append(o)
                    prev = [o]
        return ops, prev

    PG = ENV("PG", 2)
    order0 = [0, 2, 1, 3]
    for k_, g in enumerate(order0[:PG]):
        emit_grp(*dma_grp(0, g))
        if k_ + 1 == XP:
            xrows()
    pst(2)
    a("s_mov_b64 s[6:7], s[62:63]")
    a.srd_off(8, 6, XN_OFF, 4 << 20)
    a.srd(12, 4, 8 << 20)
    a.srd_off(32, 6, KF_OFF, 32 << 20)
    a.srd(24, 60, 256)
    a("s_lshl_b32 s28, s58, 2")
    a("s_and_b32 s31, s59, 3")
    a("s_add_u32 s28, s28, s31")
    a("s_lshr_b32 s29, s59, 2")
    a("s_lshl_b32 s42, s29, 7")
    a("s_sub_u32 s43, 1920, s42")
    a("s_lshl_b32 s31, s30, 4")
    a("s_add_u32 s38, s42, s31")
    a("s_add_u32 s39, s43, s31")
    a("s_lshl_b32 s60, s30, 12")
    a("s_mov_b32 s61, 0")
    a("s_mov_b32 s62, 0")
    a("s_lshl_b32 s47, s44, 1")
    a("s_lshr_b32 s52, s30, 1")
    a("s_add_u32 s47, s47, s52")
    a("s_lshl_b32 s47, s47, 14")
    a("s_lshl_b32 s52, s45, 1")
    a("s_and_b32 s53, s30, 1")
    a("s_add_u32 s52, s52, s53")
    a("s_lshl_b32 s52, s52, 20")
    a("s_add_u32 s47, s47, s52")
    a("s_lshl_b32 s52, s57, 24")
    a("s_add_u32 s47, s47, s52")
    assert VF_OFF - KF_OFF == 1 << 24
    a("s_lshl_b32 s54, s44, 8")
    a("s_lshr_b32 s55, s28, 1")
    a("s_lshl_b32 s55, s55, 8")
    a(f"s_and_b32 s53, s59, {ENV('XSM', 3)}")
    a("s_add_u32 s53, s53, 1")
    a("s_cmp_eq_u32 s30, 0")
    a("s_cselect_b32 s53, s53, -1")
    a("s_cselect_b32 s46, 6, -1")
    a("v_lshlrev_b32 v6, 13, v56")
    a(f"v_lshl_add_u32 v{VPF}, v57, 7, v6")
    a("s_lshl_b32 s56, s30, 5")
    a("s_add_u32 s56, s56, s59")
    a("s_lshl_b32 s56, s56, 16")
    a("s_lshl_b32 s52, s58, 10")
    a("s_add_u32 s56, s56, s52")
    a(f"s_add_u32 s63, s30, {ENV('PF0', 1)}")
    pf = f"buffer_load_dword v{VDUM}, v{VPF}, s[12:15], s56 offen" if "nowq" not in KO else "s_nop 0"
    for g in order0[PG:2]:
        emit_grp(*dma_grp(0, g))
    XL = 131072
    a(f"v_mul_u32_u24 v6, 2064, v{TOK}")
    a(f"v_lshl_add_u32 v6, v{L32}, 4, v6")
    a(f"v_add_u32 v{VLW}, {XL}, v6")
    a("v_mul_u32_u24 v7, 2064, v57")
    a("v_lshl_add_u32 v7, v56, 4, v7")
    a(f"v_lshl_add_u32 v7, v{W}, 9, v7")
    a(f"v_add_u32 v{VLR}, {XL}, v7")
    a("v_lshrrev_b32 v7, 2, v56")
    a(f"v_lshl_add_u32 v7, v{W}, 3, v7")
    a("v_lshlrev_b32 v7, 17, v7")
    a("v_and_b32 v6, 3, v56")
    a("v_lshl_add_u32 v7, v6, 8, v7")
    a("v_lshl_add_u32 v7, v57, 4, v7")
    a("s_lshr_b32 s52, s2, 1")
    a("s_lshl_b32 s52, s52, 10")
    a("s_and_b32 s31, s2, 1")
    a("s_lshl_b32 s31, s31, 7")
    a("s_add_u32 s52, s52, s31")
    a(f"v_add_u32 v{VXST}, s52, v7")
    a(f"v_and_b32 v56, 15, v{LN_}")
    a(f"v_lshrrev_b32 v57, 4, v{LN_}")
    a("v_lshrrev_b32 v6, 1, v56")
    a("v_xor_b32 v6, v6, v57")
    a(f"v_and_b32 v7, 1, v{W}")
    a("v_lshl_add_u32 v7, v7, 7, v56")
    a("v_lshlrev_b32 v7, 7, v7")
    a(f"v_lshl_add_u32 v{XRD}, v6, 4, v7")
    a(f"v_xor_b32 v{XRD+1}, 64, v{XRD}")
    a("v_lshrrev_b32 v6, 2, v56")
    a("v_and_b32 v58, 1, v57")
    a("v_lshl_add_u32 v58, v58, 2, v6")
    a("v_lshl_add_u32 v59, v57, 3, v6")
    a(f"v_and_b32 v63, 3, v{LN_}")
    a("v_lshlrev_b32 v7, 9, v59")
    a(f"v_lshrrev_b32 v6, 1, v{W}")
    a("v_lshl_add_u32 v7, v6, 8, v7")
    a("v_lshl_add_u32 v7, v63, 3, v7")
    a(f"v_add_u32 v7, {WB}, v7")
    a("v_lshlrev_b32 v59, 8, v59")
    a("v_lshl_add_u32 v59, v63, 3, v59")
    a(f"v_add_u32 v59, {WRING}, v59")
    for j in range(8):
        a(f"v_xor_b32 v6, {j}, v58")
        a(f"v_lshl_add_u32 v{WRD+j}, v6, 5, v7")
        a(f"v_lshl_add_u32 v{QWR+j}, v6, 5, v59")
    a("s_lshl_b32 s31, s38, 6")
    a(f"v_add_u32 v{QX}, s31, v{V_LANE16}")
    a("s_lshl_b32 s31, s39, 6")
    a(f"v_add_u32 v{QX+1}, s31, v{V_LANE16}")
    a(f"v_bfe_u32 v6, v{LN_}, 1, 3")
    a(f"v_and_b32 v7, 1, v{LN_}")
    a(f"v_lshl_add_u32 v58, v{W}, 4, v57")
    a("v_lshlrev_b32 v58, 13, v58")
    a("v_lshl_add_u32 v58, v7, 4, v58")
    a("s_lshl_b32 s31, s28, 8")
    a("v_add_u32 v58, s31, v58")
    a("v_xor_b32 v6, v6, v57")
    for i in range(4):
        a(f"v_xor_b32 v7, {(i // 2) << 2}, v6")
        a(f"v_lshl_add_u32 v7, v7, 5, v58")
        a(f"v_add_u32 v{QWD+i}, {4*i*8192 - i*1024}, v7")
    a("v_lshlrev_b32 v6, 2, v57")
    a(f"v_sub_u32 v{V_VV}, v56, v6")
    a(f"v_mov_b32 v{V_NINF}, 0xff800000")
    a(f"v_mov_b32 v{ZERO}, 0")
    a(f"v_mov_b32 v{ONE}, 1")
    a("s_lshl_b32 s52, s59, 2")
    a("s_add_u32 s52, s52, s30")
    a(f"v_and_b32 v6, 1, v{LN_}")
    a("v_lshl_add_u32 v6, s52, 1, v6")
    code_addr(a, "k12_qcode", 2, 6, 40)
    cpf = f"global_load_dword v{VDUM}, v[2:3], off" if "nocpf" not in KO else "s_nop 0"
    zero_acc(a, 128, 64, 56)
    zero_acc(a, 128, 128, 56, "v", init=False)
    for g in order0[max(PG, 2):]:
        emit_grp(*dma_grp(0, g))
    pst(3)
    a(f"s_waitcnt vmcnt({16 - 4 * XP})")
    pst(4)
    t_ = Asm()
    ln_rows_half_wave(t_, VX, VT)
    nl_ = len(t_.lines)
    for i, ln in enumerate(t_.lines):
        a.lines.append(ln)
        for g in range(4):
            if i == (nl_ * (g + 1) // 5 if not ENV("S1L", 0) else nl_ - 1):
                emit_grp(*dma_grp(1, order0[g]))
    pst(5)
    for i in range(4):
        a(f"ds_write_b128 v{VLW}, v[{VX+4*i}:{VX+4*i+3}] offset:{i*512}")
    pst(6)
    a("s_waitcnt vmcnt(16) lgkmcnt(0)")
    a("s_barrier")
    if "ptrace" in KO:
        stamp_dump(a, 0, 7, 6)
        a("s_endpgm")
    XT = 64
    for i in range(4):
        a(f"ds_read_b128 {aq(XT+4*i)}, v{VLR} offset:{i*128}")
    a(f"v_add_u32 v{VLW}, 4096, v{QX}")
    a(f"v_add_u32 v{VLR}, 4096, v{QX+1}")
    zero_acc(a, 64, 64, 56, "v", init=False)

    FXS = [192, 64]
    fw = lambda o, ks: (o * 2 + ks) * 4
    fx = lambda st, j, ks: FXS[st] + (j * 2 + ks) * 4

    def xreads(st):
        return [f"ds_read_b128 {aq(fx(st, j, ks))}, v{XRD+ks} offset:{XB + st*32768 + j*2048}" for j in range(8) for ks in range(2)]

    def wrd(st, os_):
        out = []
        for o in os_:
            for ks in range(2):
                b = fw(o, ks)
                out.append(f"ds_read_b64_tr_b16 a[{b}:{b+1}], v{WRD+o} offset:{st*32768 + ks*16384}")
                out.append(f"ds_read_b64_tr_b16 a[{b+2}:{b+3}], v{WRD+o} offset:{st*32768 + ks*16384 + 2048}")
        return out

    def mix(x, y):
        return [t for p in zip(x, y) for t in p]

    def pair_n(c, j, isv):
        return (c * 8 + j) if isv else (j * 4 + c)

    def acc(i, j, isv):
        n = pair_n(i // 2, j, isv)
        if n < 24:
            return ("v", (64 if i % 2 == 0 else 160) + 4 * n)
        return ("a", 128 + 8 * (n - 24) + 4 * (i % 2))

    def mf2(o, x, st, isv, kss=(0, 1)):
        k, c = acc(x, o, isv) if isv else acc(o, x, isv)
        r = f"{k}[{c}:{c+3}]"
        return [mfma16(r, *((aq(fx(st, x, ks)), aq(fw(o, ks))) if isv else (aq(fw(o, ks)), aq(fx(st, x, ks)))), r) for ks in kss]

    def mfmas(st, half, isv):
        return [mf2(o, x, st, isv, [k])[0] for o, x, k, _ in snake(range(4 * half, 4 * half + 4), range(8), 2)]

    skip = a.uid("k12_nostat")
    a(f"s_cmp_ge_u32 s2, {ZERO_BYTES // 4096}")
    a(f"s_cbranch_scc1 {skip}")
    a("s_lshl_b32 s52, s2, 12")
    a(f"s_add_u32 s52, s52, 0x{STATS_OFF - KF_OFF:x}")
    a("s_mov_b32 s34, -1")
    a("v_lshlrev_b32 v6, 4, v0")
    a("buffer_store_dwordx4 v[56:59], v6, s[32:35], s52 offen sc1")
    a(f"s_mov_b32 s34, 0x{32 << 20:x}")
    a.label(skip)
    stamp(a, 1)
    tr_init(a)
    for t in mix(xreads(0), wrd(0, range(4))):
        a(t)
    a("s_mov_b32 s51, 0")
    a("s_waitcnt lgkmcnt(15)")
    for i in range(4):
        a(f"s_mov_b32 s52, {i*2*131072}")
        a(f"buffer_store_dwordx4 {aq(XT+4*i)}, v{VXST}, s[8:11], s52 offen sc1")
    a("s_waitcnt lgkmcnt(0)")
    lv, joined = a.uid("k12_v"), a.uid("k12_join")
    a("s_cmp_lg_u32 s57, 0")
    a(f"s_cbranch_scc1 {lv}")

    DX, DW = ENV("QDX", 4), ENV("QDW", 2)
    XS = lambda ks: 128 + ((ks + 4) % 8) * 16
    QF = [0, 32]

    def wdma(stage):
        return (f"s_add_u32 m0, s60, {WRING + ((stage + 2) % 4)*16384}",
                [f"buffer_load_dwordx4 v{QWD+i}, s[12:15], s61 offen offset:{i*1024} lds" for i in range(4)], "s_add_u32 s61, s61, 0x80000")

    def xloads(ks):
        return (None, [f"buffer_load_dwordx4 {aq(XS(ks) + 4*qb)}, v{(QX, VLW, QX+1, VLR)[qb]}, s[8:11], s62 offen sc1" for qb in range(4)],
                "s_add_u32 s62, s62, 0x20000")

    def kvstore(n, srd):
        return (f"s_add_u32 s52, s47, {(n // 16) * 0x80000 + (((n % 16) * 1024) & ~4095)}",
                [f"buffer_store_dwordx4 v[{PK+n*4}:{PK+3+n*4}], v{V_LANE16}, {srd}, s52 offen offset:{(n*1024) & 4095} sc1"], None)

    PRE = [0, 1, 8, 9, 16, 17, 24, 25, 2, 4, 10, 12, 18, 20, 5, 13][:ENV("NPRE", 8)]
    REST = [n for n in range(32) if n not in PRE]
    NR = len(REST)

    def wreads(stage, half, buf=None):
        out = []
        for j in range(4 * half, 4 * half + 4):
            for sp in range(2):
                b = fw(j, sp)
                out.append(f"ds_read_b64_tr_b16 a[{b}:{b+1}], v{QWR+j} offset:{((stage + 2) % 4)*16384 + sp*8192}")
                out.append(f"ds_read_b64_tr_b16 a[{b+2}:{b+3}], v{QWR+j} offset:{((stage + 2) % 4)*16384 + sp*8192 + 1024}")
        return out

    def qacc(db, qb):
        return ("v", 192 + (db * 2 + qb) * 4) if qb < 2 else ("a", 64 + (db * 2 + qb - 2) * 4)

    for isv in range(2):
        if isv:
            a.label(lv)
        loop, last = a.uid("k12_loop"), a.uid("k12_last")
        a.label(loop)
        for st in range(2):
            if st == 1:
                a("s_cmp_eq_u32 s51, 7")
                a(f"s_cbranch_scc1 {last}")
            ops = spread(wrd(st, range(4, 8)), "M", 1, 48)
            if st == 0:
                ops.append(when("s_cmp_eq_u32 s51, s46", f"buffer_load_dword v{VPOLL}, v{ZERO}, s[24:27], 0 offen sc1", 4))
            gt = (when("s_cmp_eq_u32 s51, s46", spin_text(a, 0, 256), 0).text + "\n") if st == 0 else ""
            ops.append(Op(tr_wrap("s_waitcnt vmcnt(0) lgkmcnt(0)\n" + gt + "s_barrier"), "S", 63, lo=63, hard=63, after=list(ops)))
            schedule(a, mfmas(st, 0, isv), ops)
            rd = spread(mix(xreads(1 - st), wrd(1 - st, range(4))), "M", 1, 54)
            pre = []
            if st == 0:
                pre = [Op("s_cmp_ge_u32 s49, 1024\ns_cselect_b32 s18, 0, s18\ns_cselect_b32 s22, 0, s22", "S", 0, hard=0)]
            dm, dl = grp_sched([dma_grp(st, g) for g in range(4)], 1, ENV("GD1", 56), after=pre)
            sig = when("s_cmp_eq_u32 s51, s53", one_lane(f"buffer_atomic_add v{ONE}, v{ZERO}, s[24:27], 0 offen sc1"), 58, after=dl)
            ops = rd + pre + dm + [sig]
            cnt_after = [sig]
            p_ = when("s_cmp_eq_u32 s51, s63", pf, 59, after=dl)
            ops.append(p_)
            cnt_after.append(p_)
            if st == 1:
                p_ = when("s_cmp_eq_u32 s51, 5", cpf, 60, after=dl)
            else:
                p_ = when("s_cmp_eq_u32 s51, 6", "\n".join(g[0] + "\ns_nop 0\n" + "\n".join(g[1]) + "\n" + g[2] for g in (wdma(0), wdma(1))), 60, after=dl)
            ops.append(p_)
            cnt_after.append(p_)
            ops.append(Op("s_add_u32 s51, s51, 1", "S", 62, after=cnt_after))
            ops.append(Op("s_waitcnt lgkmcnt(0)", "S", 63, lo=63, hard=63, after=rd))
            schedule(a, mfmas(st, 1, isv), ops)
        a(f"s_branch {loop}")
        a.label(last)
        stamp(a, 2)
        seq = [(c, j) for j in range(8) for c in range(4)] if isv else [(c, j) for c in range(4) for j in range(8)]
        mf, ops = [], []
        done = {}
        tuse = []
        for pos, (c, j) in enumerate(seq):
            n = pair_n(c, j, isv)
            for i in (2 * c, 2 * c + 1):
                kss = (1, 0) if i % 2 else (0, 1)
                mf += mf2(j, i, 1, isv, kss) if isv else mf2(i, j, 1, isv, kss)
            g0 = 4 * pos + 3 + 6
            d = PK + 4 * n
            if n < 24:
                x, y = 64 + 4 * n, 160 + 4 * n
                tx = [f"v_cvt_pk_bf16_f32 v{d}, v{x}, v{x+1}", f"v_cvt_pk_bf16_f32 v{d+1}, v{x+2}, v{x+3}",
                      f"v_cvt_pk_bf16_f32 v{d+2}, v{y}, v{y+1}", f"v_cvt_pk_bf16_f32 v{d+3}, v{y+2}, v{y+3}"]
                o = spread(tx, "A", g0, g0 + 2)
            else:
                x = 128 + 8 * (n - 24)
                tx = [f"v_accvgpr_read_b32 v{PT+r}, a{x+r}" for r in range(8)]
                tx += [f"v_cvt_pk_bf16_f32 v{d+r}, v{PT+2*r}, v{PT+2*r+1}" for r in range(4)]
                o = spread(tx, "A", g0, g0 + 5)
                o[0].after += tuse + [done[n - 24]]
                tuse = [o[-1]]
            done[n] = o[-1]
            ops += o
        w47 = spread(wrd(1, range(4, 8)), "M", 1, 40)
        ld, ll = grp_sched([xloads(0), xloads(1), xloads(2), xloads(3)], 0, 30)
        ops += w47 + ld + [Op("s_waitcnt lgkmcnt(0)", "S", 60, lo=60, hard=62, after=w47)]
        prev_ = list(ll)
        for k_, n_ in enumerate(sorted(PRE, key=lambda n: done[n].want)):
            m_, l_, _ = kvstore(n_, "s[32:35]")
            w_ = ENV("PS0", 34) + k_ * (126 - ENV("PS0", 34)) / max(1, len(PRE))
            o1 = Op(m_, "S", w_ - 1, after=prev_)
            o2 = Op(l_[0], "V", w_, after=[o1, done[n_]])
            ops += [o1, o2]
            prev_ = [o2]
        bar = Op("s_waitcnt vmcnt(16)\ns_barrier", "S", 96, lo=96, after=ll)
        rd = spread(wreads(0, 0, 0), "M", 97, 120)
        rd[0].after.append(bar)
        ops += [bar] + rd
        schedule(a, mf, ops)
        if not isv:
            a(f"s_branch {joined}")
    a.label(joined)
    a.label("k12_qcode")
    a("s_mov_b64 s[48:49], s[32:33]")
    a("s_mov_b32 s51, 0x00020000")
    a("s_cmp_eq_u32 s45, 0")
    a("s_mov_b32 s50, s34")
    a("s_cselect_b32 s56, s30, -1")
    a("s_cselect_b32 s57, -1, s30")
    a(tr_wrap(f"s_waitcnt vmcnt({8 + len(PRE)}) lgkmcnt(0)"))

    NS = ENV("NS", 20)
    PSIG = ENV('PSIG', NS + 3)
    PPOLL = ENV("PPOLL", 27)
    assert PSIG % 2 == 1 and PPOLL % 2 == 1 and PSIG < PPOLL
    queue = ["W0"] * 4 + ["W1"] * 4 + ["X0"] * 4 + ["X1"] * 4 + ["X2"] * 4 + ["X3"] * 4 + ["L"] * len(PRE)

    def younger(tag):
        if tag not in queue:
            return 63
        return len(queue) - 1 - max(i for i, t in enumerate(queue) if t == tag)

    kvsrd = ["s_lshl_b32 s31, s28, 14", "s_add_u32 s16, s6, s31\ns_addc_u32 s17, s7, 0",
             f"s_add_u32 s20, s16, 0x{VF_OFF:x}\ns_addc_u32 s21, s17, 0", f"s_add_u32 s16, s16, 0x{KF_OFF:x}\ns_addc_u32 s17, s17, 0",
             "s_and_b32 s17, s17, 0xffff", "s_and_b32 s21, s21, 0xffff", "s_lshl_b32 s31, s29, 20", "s_sub_u32 s18, 0xf84000, s31",
             "s_mov_b32 s22, s18",
             f"s_add_u32 s24, s6, 0x{KVC_OFF:x}\ns_addc_u32 s25, s7, 0", "s_and_b32 s25, s25, 0xffff", "s_mov_b32 s26, 4096"]

    def kdma():
        return ("s_mov_b32 m0, s34", [f"buffer_load_dwordx4 v{V_LANE16}, s[16:19], s32 offen offset:{i*1024}{LDF} lds" for i in range(4)],
                "s_add_u32 s32, s32, 0x80000\ns_add_u32 s34, s34, 0x4000")

    def vdma():
        return ("s_mov_b32 m0, s35", [f"buffer_load_dwordx4 v{V_LANE16}, s[20:23], s33 offen offset:{i*1024}{LDF} lds" for i in range(4)],
                "s_add_u32 s33, s33, 0x80000\ns_add_u32 s35, s35, 0x4000")

    NL = ENV('NL', 29)
    NE0 = (NS * NR) // NL
    sn, sl_, nx, nw = NE0, 0, 4, 2
    assert NL <= PPOLL + 2
    S0 = ENV("S0", 0)
    for ks in range(32):
        st, sp = ks // 2, ks % 2
        ops = []
        rd = []
        if ks < 31:
            rd = spread(wreads(st, 1, 1) if sp == 0 else wreads(st + 1, 0, 0), "M", 1, 22)
        ops += rd
        grps, tags = [], []
        while nw < 16 and ((sp == 1 and nw <= st + DW) or (ks == 0 and nw < DW)):
            grps.append(wdma(nw)); tags.append(f"W{nw}"); nw += 1
        for _ in range(2):
            if nx < 32 and nx <= ks + DX:
                grps.append(xloads(nx)); tags.append(f"X{nx}"); nx += 1
        while sl_ < NR and sl_ < ((ks + 1) * NR) // NL:
            grps.append(kvstore(REST[sl_], "s[48:51]")); tags.append("L"); sl_ += 1
        early = []
        while ks < NS and sn < NR and sn < NE0 + ((ks + 1) * (NR - NE0) + NS - 1) // NS:
            m_, l_, _ = kvstore(REST[sn], "s[48:51]")
            early += [m_, l_[0]]
            sn += 1
        head = []
        if ks == 0:
            ops += spread(kvsrd, "S", 6, 30)
        if ks == PSIG:
            head = [when("s_cmp_eq_u32 s56, 0", one_lane(f"buffer_atomic_add v{ONE}, v{ZERO}, s[24:27], s54 offen sc1"), 0)]
            ops += spread(k2.kv_first(), "S", 8, 20)
        if ks == 24:
            ops.append(Op("v_add_co_u32 v2, vcc, 0x4000, v2\ns_nop 1\nv_addc_co_u32 v3, vcc, 0, v3, vcc\n" + cpf, "B", 29))
        if ks == PPOLL:
            head = [when("s_cmp_eq_u32 s30, 0", f"buffer_load_dword v{VPOLL}, v{ZERO}, s[24:27], s55 offen sc1", 0)]
            qpoll = len(queue)
        if ks == PPOLL + 2:
            grps += [kdma(), kdma()]; tags += ["K0", "K1"]
        if ks == PPOLL + 3:
            grps += [vdma(), kdma()]; tags += ["V0", "K2"]
        if ks == PPOLL + 4:
            grps += [vdma()]; tags += ["V1"]
        ops += head
        if grps:
            g, gl_ = grp_sched(grps, 1, 27, after=head)
            ops += g
        if ks == NS - 1:
            early.append("s_mov_b32 s50, 0")
        if early:
            ops.append(when("s_cmp_eq_u32 s45, 0", "\n".join(early), 29, after=gl_))
        for gr, tg in zip(grps, tags):
            queue += [tg] * len(gr[1])
        if ks == NS - 1:
            assert sn == NR and sl_ == NE0
            qearly = len(queue)
        if ks < 31:
            nk = ks + 1
            wv = younger(f"W{nk // 2 + 1}") if nk % 2 else younger(f"X{nk + 1}")
            if nk == PSIG:
                wv = min(wv, len(queue) - qearly)
            wv = min(wv, 63)
            prevw = wv
            wtxt = f"s_waitcnt vmcnt({wv}) lgkmcnt(0)"
            if ks == PPOLL + 1:
                ops.append(when("s_cmp_eq_u32 s30, 0", f"s_waitcnt vmcnt({len(queue) - qpoll})\n" + spin_text(a, "s55", 2), 29, lo=28, after=[o for o in ops if o.cls == "V"]))
            if nk % 2:
                wtxt = tr_wrap(wtxt + "\ns_barrier") if nk % 4 == 1 else wtxt + "\ns_barrier"
            ops.append(Op(wtxt, "S", 31, lo=31, hard=31, after=[o for o in ops if o.cls in "MVB"]))
        mf = []
        for db, qb, k2_, f_ in snake(range(4 * sp, 4 * sp + 4), range(4), 2):
            k, c = qacc(db, qb)
            r = f"{k}[{c}:{c+3}]"
            mf.append(mfma16(r, aq(fw(db, k2_)), aq(XS(2 * st + k2_) + 4 * qb), "0" if (st == 0 and f_) else r))
        schedule(a, mf, ops)
    assert PPOLL + 4 <= 31
    stamp(a, 3)
    assert younger("L") >= 8
    a("s_add_u32 s3, s54, 64")
    a("s_add_u32 s5, s55, 64")
    a("s_mov_b32 s63, s57")
    late = dict(
        sig=when("s_cmp_eq_u32 s63, 0", one_lane(f"buffer_atomic_add v{ONE}, v{ZERO}, s[24:27], s3 offen sc1"), 0).text,
        poll=lambda: when("s_cmp_eq_u32 s30, 0", "buffer_load_dword v58, v59, s[24:27], s5 offen sc1", 2),
        gate=lambda **kw: when("s_cmp_eq_u32 s30, 0", "s_waitcnt vmcnt(0)\n" + spin_text(a, "s5", 14, 58, 59), 29, **kw))
    attention_phase(a, end, 0, qacc, late, stubs=stubs, next_code='op_head' if fuse else (None if os.environ.get('WHICH') == 'k12' else 'k3_kernel'), when=when if fuse else None, ffn=ffn)
    a.end_kernel(name, 256, 256)
    a.launch(name, 256, 256, 163840)
```

```python
from common import *
import common, os
from sched import Op, spread, schedule
import k2
from k2 import vq, aq, V_LANE16, V_VV, V_NINF, attention_phase, LDF

SPIN_MAX = 1 << 20
KO = set(os.environ.get('KO', '').split(','))
NT = ' nt' if 'nt' in KO else ''
ENV = lambda k, d: int(os.environ.get(k, str(d)))

ZERO, ONE = 8, 9
XD, WD, XRD, WRD = 10, 18, 26, 28
QX, QWD, QWR = 36, 38, 42
VPF, VDUM, VPOLL, VXST, VLW, VLR = 50, 51, 52, 53, 54, 55
PT = 56
PK = 64
WRING = 98304


def spin_text(a, soff, target, VPOLL=VPOLL, ZERO=ZERO):
    ok, lp = a.uid("spin_ok"), a.uid("spin")
    return "\n".join([
        f"v_readfirstlane_b32 s31, v{VPOLL}", f"s_cmp_ge_u32 s31, {target}", f"s_cbranch_scc1 {ok}",
        f"s_mov_b32 s40, {SPIN_MAX}", f"{lp}:", "s_sleep 8",
        f"buffer_load_dword v{VPOLL}, v{ZERO}, s[24:27], {soff} offen sc1", "s_waitcnt vmcnt(0)",
        f"v_readfirstlane_b32 s31, v{VPOLL}", "s_sub_u32 s40, s40, 1", "s_cselect_b32 s31, -1, s31",
        f"s_cmp_lt_u32 s31, {target}", f"s_cbranch_scc1 {lp}", f"{ok}:"])


def one_lane(text):
    return f"s_mov_b64 exec, 1\n{text}\ns_mov_b64 exec, -1"


def gen_k12(a, name="k12_kernel", fuse=False, ffn=None):
    a.begin_kernel(name)
    end = a.uid("k12_end")
    stubs = []
    pst = (lambda i: stamp(a, i)) if "ptrace" in KO else (lambda i: None)

    def when(cmp_text, body, want, **kw):
        l, r = a.uid("k12_ool"), a.uid("k12_oolret")
        if "nosig" in KO and "s[24:27]" in body:
            body = "s_nop 0"
        stubs.append((l, body, r))
        return Op(f"{cmp_text}\ns_cbranch_scc1 {l}\n{r}:", "B", want, **kw)

    a("s_cmp_ge_u32 s2, 256")
    a(f"s_cbranch_scc1 {end}")
    stamp(a, 0)
    a(f"s_load_dwordx4 s[36:39], s[0:1], {ARG['x']}")
    a(f"s_load_dwordx4 s[40:43], s[0:1], {ARG['wuk']}")
    a(f"s_load_dwordx2 s[4:5], s[0:1], {ARG['wq']}")
    a(f"s_load_dwordx4 s[60:63], s[0:1], {ARG['dbg']}")
    CE = ENV("CE", 48)
    a("s_lshr_b32 s59, s2, 3")
    a("s_lshl_b32 s58, s59, 4")
    a("v_add_u32 v6, s58, v0")
    a(f"v_cmp_gt_u32 vcc, {CE}, v0")
    a(f"v_cmp_gt_u32 s[56:57], {CE + 16}, v0")
    a("s_nop 0")
    a("v_cndmask_b32 v6, v6, v0, vcc")
    code_addr(a, "k12_code0", 58, 6, 52)
    a.label("k12_code0")
    a("s_mov_b64 exec, s[56:57]")
    cs = a.uid("k12_nocode")
    a(f"s_cbranch_execz {cs}")
    a(f"global_load_dword v{VDUM}, v[58:59], off")
    a.label(cs)
    a("s_mov_b64 exec, -1")
    a("s_and_b32 s58, s2, 7")
    a("s_lshr_b32 s59, s2, 3")
    a("s_and_b32 s45, s59, 7")
    a("s_lshr_b32 s57, s59, 3")
    a("s_and_b32 s44, s57, 1")
    a("s_lshl_b32 s52, s58, 1")
    a("s_add_u32 s44, s44, s52")
    a("s_lshr_b32 s57, s57, 1")
    W, LN_ = 2, 3
    a(f"v_lshrrev_b32 v{W}, 6, v0")
    a(f"v_and_b32 v{LN_}, 63, v0")
    a(f"v_readfirstlane_b32 s30, v{W}")
    a(f"v_lshlrev_b32 v{V_LANE16}, 4, v{LN_}")
    VX, VT = 64, 80
    TOK, L32 = 60, 61
    a(f"v_lshrrev_b32 v{TOK}, 5, v{LN_}")
    a(f"v_lshl_add_u32 v{TOK}, v{W}, 1, v{TOK}")
    a(f"v_and_b32 v{L32}, 31, v{LN_}")
    a(f"v_lshlrev_b32 v6, 11, v{TOK}")
    a(f"v_lshl_add_u32 v62, v{L32}, 4, v6")
    a("s_lshl_b32 s52, s2, 14")
    a(f"v_lshrrev_b32 v56, 3, v{LN_}")
    a(f"v_and_b32 v57, 7, v{LN_}")
    a("v_lshrrev_b32 v58, 1, v56")
    a("v_xor_b32 v6, v57, v58")
    a("v_xor_b32 v7, 4, v6")
    a(f"v_lshl_add_u32 v58, v{W}, 6, v56")
    a("v_lshlrev_b32 v58, 10, v58")
    a("s_lshl_b32 s47, s45, 18")
    a("v_add_u32 v58, s47, v58")
    a(f"v_lshl_add_u32 v{XD}, v6, 4, v58")
    a(f"v_lshl_add_u32 v{XD+1}, v7, 4, v58")
    for i in range(7, -1, -1):
        a(f"v_add_u32 v{XD+i}, {i*8*1024 - (i%4)*1024}, v{XD + (i%2)}")
    a(f"v_lshrrev_b32 v6, 5, v{LN_}")
    a(f"v_bfe_u32 v7, v{LN_}, 1, 4")
    a(f"v_and_b32 v59, 1, v{LN_}")
    a(f"v_lshl_add_u32 v58, v{W}, 4, v6")
    a("v_lshlrev_b32 v58, 13, v58")
    a("v_lshl_add_u32 v58, v59, 4, v58")
    a("s_lshl_b32 s47, s44, 9")
    a("v_add_u32 v58, s47, v58")
    a("v_xor_b32 v7, v7, v6")
    for i in range(8):
        fx = ((2 * i) & 3) | ((((2 * i) >> 3) & 1) << 2)
        a(f"v_xor_b32 v6, {fx}, v7")
        a(f"v_lshl_add_u32 v6, v6, 5, v58")
        a(f"v_add_u32 v{WD+i}, {2*i*8192 - (i%4)*1024}, v6")
    XB, WB = 0, 65536
    a("s_lshl_b32 s48, s30, 13")
    a("s_mov_b32 s49, 0")
    a("s_mov_b32 s50, 0")
    pst(1)
    a("s_waitcnt lgkmcnt(0)")
    a.srd(24, 36, 4 << 20)
    XP = ENV("XP", 1)

    def xrows():
        for i in range(4):
            a(f"buffer_load_dwordx4 v[{VX+4*i}:{VX+4*i+3}], v62, s[24:27], s52 offen offset:{i*512}{NT}")
    if XP == 0:
        xrows()
    a.srd(16, 38, 2 << 20)
    a("s_cmp_eq_u32 s57, 0")
    a("s_cselect_b32 s20, s40, s42")
    a("s_cselect_b32 s21, s41, s43")
    a("s_and_b32 s21, s21, 0xffff")
    a("s_mov_b32 s22, 0x400000")
    a("s_mov_b32 s23, 0x00020000")

    def dma_grp(stage, g):
        op, i0 = g // 2, (g % 2) * 4
        m = f"s_add_u32 m0, s48, {(XB if op == 0 else WB) + stage*32768 + i0*1024}"
        if op == 0:
            ld = [f"buffer_load_dwordx4 v{XD+i0+i}, s[16:19], s49 offen offset:{i*1024} lds" for i in range(4)]
        else:
            ld = [f"buffer_load_dwordx4 v{WD+i0+i}, s[20:23], s50 offen offset:{i*1024}{NT} lds" for i in range(4)]
        tr = {1: "s_add_u32 s49, s49, 128", 3: "s_add_u32 s50, s50, 0x80000"}.get(g)
        return m, ld, tr

    def emit_grp(m, ld, tr):
        a(m)
        a("s_nop 0")
        for t in ld:
            a(t)
        if tr:
            a(tr)

    def grp_sched(grps, lo, hi, after=()):
        ops, prev = [], list(after)
        tot = sum(len(g[1]) for g in grps)
        step = (hi - lo) / float(tot)
        k = 0
        for (m, ld, tr) in grps:
            mo = None
            if m:
                mo = Op(m, "S", lo + step * k - 1, lo=lo, after=prev)
                ops.append(mo)
            for t in ld:
                o = Op(t, "V", lo + 1 + step * k, lo=lo, after=prev, prev_gap=[mo] if mo else [])
                ops.append(o)
                prev = [o]
                k += 1
            if tr:
                for t in tr.split("\n"):
                    o = Op(t, "S", lo + step * k, after=prev)
                    ops.append(o)
                    prev = [o]
        return ops, prev

    if "touch" in KO:
        a("s_mov_b64 exec, 1")
        a(f"buffer_load_dword v{VDUM}, v{WD}, s[20:23], 0 offen")
        a(f"buffer_load_dword v{VDUM}, v62, s[24:27], s52 offen")
        a("v_mov_b32 v6, 0")
        a(f"global_load_dword v{VDUM}, v6, s[62:63]")
        a(f"global_load_dword v{VDUM}, v6, s[60:61]")
        a(f"global_load_dword v{VDUM}, v6, s[4:5]")
        a("s_mov_b64 exec, -1")
    PG = ENV("PG", 2)
    order0 = [0, 2, 1, 3]
    for k_, g in enumerate(order0[:PG]):
        emit_grp(*dma_grp(0, g))
        if k_ + 1 == XP:
            xrows()
    pst(2)
    a("s_mov_b64 s[6:7], s[62:63]")
    a.srd_off(8, 6, XN_OFF, 4 << 20)
    a.srd(12, 4, 8 << 20)
    a.srd_off(32, 6, KF_OFF, 32 << 20)
    a.srd(24, 60, 256)
    a("s_lshl_b32 s28, s58, 2")
    a("s_and_b32 s31, s59, 3")
    a("s_add_u32 s28, s28, s31")
    a("s_lshr_b32 s29, s59, 2")
    a("s_lshl_b32 s42, s29, 7")
    a("s_sub_u32 s43, 1920, s42")
    a("s_lshl_b32 s31, s30, 4")
    a("s_add_u32 s38, s42, s31")
    a("s_add_u32 s39, s43, s31")
    a("s_lshl_b32 s60, s30, 12")
    a("s_mov_b32 s61, 0")
    a("s_mov_b32 s62, 0")
    a("s_lshl_b32 s47, s44, 1")
    a("s_lshr_b32 s52, s30, 1")
    a("s_add_u32 s47, s47, s52")
    a("s_lshl_b32 s47, s47, 14")
    a("s_lshl_b32 s52, s45, 1")
    a("s_and_b32 s53, s30, 1")
    a("s_add_u32 s52, s52, s53")
    a("s_lshl_b32 s52, s52, 20")
    a("s_add_u32 s47, s47, s52")
    a("s_lshl_b32 s52, s57, 24")
    a("s_add_u32 s47, s47, s52")
    assert VF_OFF - KF_OFF == 1 << 24
    a("s_lshl_b32 s54, s44, 8")
    a("s_lshr_b32 s55, s28, 1")
    a("s_lshl_b32 s55, s55, 8")
    a(f"s_and_b32 s53, s59, {ENV('XSM', 3)}")
    a("s_add_u32 s53, s53, 1")
    a("s_cmp_eq_u32 s30, 0")
    a("s_cselect_b32 s53, s53, -1")
    a("s_cselect_b32 s46, 6, -1")
    a("v_lshlrev_b32 v6, 13, v56")
    a(f"v_lshl_add_u32 v{VPF}, v57, 7, v6")
    a("s_lshl_b32 s56, s30, 5")
    a("s_add_u32 s56, s56, s59")
    a("s_lshl_b32 s56, s56, 16")
    a("s_lshl_b32 s52, s58, 10")
    a("s_add_u32 s56, s56, s52")
    a(f"s_add_u32 s63, s30, {ENV('PF0', 1)}")
    pf = f"buffer_load_dword v{VDUM}, v{VPF}, s[12:15], s56 offen" if "nowq" not in KO else "s_nop 0"
    for g in order0[PG:2]:
        emit_grp(*dma_grp(0, g))
    XL = 131072
    a(f"v_mul_u32_u24 v6, 2064, v{TOK}")
    a(f"v_lshl_add_u32 v6, v{L32}, 4, v6")
    a(f"v_add_u32 v{VLW}, {XL}, v6")
    a("v_mul_u32_u24 v7, 2064, v57")
    a("v_lshl_add_u32 v7, v56, 4, v7")
    a(f"v_lshl_add_u32 v7, v{W}, 9, v7")
    a(f"v_add_u32 v{VLR}, {XL}, v7")
    a("v_lshrrev_b32 v7, 2, v56")
    a(f"v_lshl_add_u32 v7, v{W}, 3, v7")
    a("v_lshlrev_b32 v7, 17, v7")
    a("v_and_b32 v6, 3, v56")
    a("v_lshl_add_u32 v7, v6, 8, v7")
    a("v_lshl_add_u32 v7, v57, 4, v7")
    a("s_lshr_b32 s52, s2, 1")
    a("s_lshl_b32 s52, s52, 10")
    a("s_and_b32 s31, s2, 1")
    a("s_lshl_b32 s31, s31, 7")
    a("s_add_u32 s52, s52, s31")
    a(f"v_add_u32 v{VXST}, s52, v7")
    a(f"v_and_b32 v56, 15, v{LN_}")
    a(f"v_lshrrev_b32 v57, 4, v{LN_}")
    a("v_lshrrev_b32 v6, 1, v56")
    a("v_xor_b32 v6, v6, v57")
    a(f"v_and_b32 v7, 1, v{W}")
    a("v_lshl_add_u32 v7, v7, 7, v56")
    a("v_lshlrev_b32 v7, 7, v7")
    a(f"v_lshl_add_u32 v{XRD}, v6, 4, v7")
    a(f"v_xor_b32 v{XRD+1}, 64, v{XRD}")
    a("v_lshrrev_b32 v6, 2, v56")
    a("v_and_b32 v58, 1, v57")
    a("v_lshl_add_u32 v58, v58, 2, v6")
    a("v_lshl_add_u32 v59, v57, 3, v6")
    a(f"v_and_b32 v63, 3, v{LN_}")
    a("v_lshlrev_b32 v7, 9, v59")
    a(f"v_lshrrev_b32 v6, 1, v{W}")
    a("v_lshl_add_u32 v7, v6, 8, v7")
    a("v_lshl_add_u32 v7, v63, 3, v7")
    a(f"v_add_u32 v7, {WB}, v7")
    a("v_lshlrev_b32 v59, 8, v59")
    a("v_lshl_add_u32 v59, v63, 3, v59")
    a(f"v_add_u32 v59, {WRING}, v59")
    for j in range(8):
        a(f"v_xor_b32 v6, {j}, v58")
        a(f"v_lshl_add_u32 v{WRD+j}, v6, 5, v7")
        a(f"v_lshl_add_u32 v{QWR+j}, v6, 5, v59")
    a("s_lshl_b32 s31, s38, 6")
    a(f"v_add_u32 v{QX}, s31, v{V_LANE16}")
    a("s_lshl_b32 s31, s39, 6")
    a(f"v_add_u32 v{QX+1}, s31, v{V_LANE16}")
    a(f"v_bfe_u32 v6, v{LN_}, 1, 3")
    a(f"v_and_b32 v7, 1, v{LN_}")
    a(f"v_lshl_add_u32 v58, v{W}, 4, v57")
    a("v_lshlrev_b32 v58, 13, v58")
    a("v_lshl_add_u32 v58, v7, 4, v58")
    a("s_lshl_b32 s31, s28, 8")
    a("v_add_u32 v58, s31, v58")
    a("v_xor_b32 v6, v6, v57")
    for i in range(4):
        a(f"v_xor_b32 v7, {(i // 2) << 2}, v6")
        a(f"v_lshl_add_u32 v7, v7, 5, v58")
        a(f"v_add_u32 v{QWD+i}, {4*i*8192 - i*1024}, v7")
    a("v_lshlrev_b32 v6, 2, v57")
    a(f"v_sub_u32 v{V_VV}, v56, v6")
    a(f"v_mov_b32 v{V_NINF}, 0xff800000")
    a(f"v_mov_b32 v{ZERO}, 0")
    a(f"v_mov_b32 v{ONE}, 1")
    a("s_lshl_b32 s52, s59, 2")
    a("s_add_u32 s52, s52, s30")
    a(f"v_and_b32 v6, 1, v{LN_}")
    a("v_lshl_add_u32 v6, s52, 1, v6")
    code_addr(a, "k12_qcode", 2, 6, 40)
    cpf = f"global_load_dword v{VDUM}, v[2:3], off" if "nocpf" not in KO else "s_nop 0"
    zero_acc(a, 128, 64, 56)
    zero_acc(a, 128, 128, 56, "v", init=False)
    for g in order0[max(PG, 2):]:
        emit_grp(*dma_grp(0, g))
    pst(3)
    a(f"s_waitcnt vmcnt({16 - 4 * XP})")
    pst(4)
    t_ = Asm()
    ln_rows_half_wave(t_, VX, VT)
    nl_ = len(t_.lines)
    for i, ln in enumerate(t_.lines):
        a.lines.append(ln)
        for g in range(4):
            if i == (nl_ * (g + 1) // 5 if not ENV("S1L", 0) else nl_ - 1):
                emit_grp(*dma_grp(1, order0[g]))
    pst(5)
    for i in range(4):
        a(f"ds_write_b128 v{VLW}, v[{VX+4*i}:{VX+4*i+3}] offset:{i*512}")
    pst(6)
    a("s_waitcnt vmcnt(16) lgkmcnt(0)")
    a("s_barrier")
    if "ptrace" in KO:
        stamp_dump(a, 0, 7, 6)
        a("s_endpgm")
    XT = 64
    for i in range(4):
        a(f"ds_read_b128 {aq(XT+4*i)}, v{VLR} offset:{i*128}")
    a(f"v_add_u32 v{VLW}, 4096, v{QX}")
    a(f"v_add_u32 v{VLR}, 4096, v{QX+1}")
    zero_acc(a, 64, 64, 56, "v", init=False)

    FXS = [192, 64]
    fw = lambda o, ks: (o * 2 + ks) * 4
    fx = lambda st, j, ks: FXS[st] + (j * 2 + ks) * 4

    def xreads(st):
        return [f"ds_read_b128 {aq(fx(st, j, ks))}, v{XRD+ks} offset:{XB + st*32768 + j*2048}" for j in range(8) for ks in range(2)]

    def wrd(st, os_):
        out = []
        for o in os_:
            for ks in range(2):
                b = fw(o, ks)
                out.append(f"ds_read_b64_tr_b16 a[{b}:{b+1}], v{WRD+o} offset:{st*32768 + ks*16384}")
                out.append(f"ds_read_b64_tr_b16 a[{b+2}:{b+3}], v{WRD+o} offset:{st*32768 + ks*16384 + 2048}")
        return out

    def mix(x, y):
        return [t for p in zip(x, y) for t in p]

    def pair_n(c, j, isv):
        return (c * 8 + j) if isv else (j * 4 + c)

    def acc(i, j, isv):
        n = pair_n(i // 2, j, isv)
        if n < 24:
            return ("v", (64 if i % 2 == 0 else 160) + 4 * n)
        return ("a", 128 + 8 * (n - 24) + 4 * (i % 2))

    def mf2(o, x, st, isv, kss=(0, 1)):
        k, c = acc(x, o, isv) if isv else acc(o, x, isv)
        r = f"{k}[{c}:{c+3}]"
        return [mfma16(r, *((aq(fx(st, x, ks)), aq(fw(o, ks))) if isv else (aq(fw(o, ks)), aq(fx(st, x, ks)))), r) for ks in kss]

    def mfmas(st, half, isv):
        return [mf2(o, x, st, isv, [k])[0] for o, x, k, _ in snake(range(4 * half, 4 * half + 4), range(8), 2)]

    skip = a.uid("k12_nostat")
    a(f"s_cmp_ge_u32 s2, {ZERO_BYTES // 4096}")
    a(f"s_cbranch_scc1 {skip}")
    a("s_lshl_b32 s52, s2, 12")
    a(f"s_add_u32 s52, s52, 0x{STATS_OFF - KF_OFF:x}")
    a("s_mov_b32 s34, -1")
    a("v_lshlrev_b32 v6, 4, v0")
    a("buffer_store_dwordx4 v[56:59], v6, s[32:35], s52 offen sc1")
    a(f"s_mov_b32 s34, 0x{32 << 20:x}")
    a.label(skip)
    stamp(a, 1)
    tr_init(a)
    for t in mix(xreads(0), wrd(0, range(4))):
        a(t)
    a("s_mov_b32 s51, 0")
    a("s_waitcnt lgkmcnt(15)")
    for i in range(4):
        a(f"s_mov_b32 s52, {i*2*131072}")
        a(f"buffer_store_dwordx4 {aq(XT+4*i)}, v{VXST}, s[8:11], s52 offen sc1")
    a("s_waitcnt lgkmcnt(0)")
    lv, joined = a.uid("k12_v"), a.uid("k12_join")
    a("s_cmp_lg_u32 s57, 0")
    a(f"s_cbranch_scc1 {lv}")

    DX, DW = ENV("QDX", 4), ENV("QDW", 2)
    XS = lambda ks: 128 + ((ks + 4) % 8) * 16
    QF = [0, 32]

    def wdma(stage):
        return (f"s_add_u32 m0, s60, {WRING + ((stage + 2) % 4)*16384}",
                [f"buffer_load_dwordx4 v{QWD+i}, s[12:15], s61 offen offset:{i*1024} lds" for i in range(4)], "s_add_u32 s61, s61, 0x80000")

    def xloads(ks):
        return (None, [f"buffer_load_dwordx4 {aq(XS(ks) + 4*qb)}, v{(QX, VLW, QX+1, VLR)[qb]}, s[8:11], s62 offen sc1" for qb in range(4)],
                "s_add_u32 s62, s62, 0x20000")

    def kvstore(n, srd):
        return (f"s_add_u32 s52, s47, {(n // 16) * 0x80000 + (((n % 16) * 1024) & ~4095)}",
                [f"buffer_store_dwordx4 v[{PK+n*4}:{PK+3+n*4}], v{V_LANE16}, {srd}, s52 offen offset:{(n*1024) & 4095} sc1"], None)

    PRE = [0, 1, 8, 9, 16, 17, 24, 25, 2, 4, 10, 12, 18, 20, 5, 13][:ENV("NPRE", 8)]
    REST = [n for n in range(32) if n not in PRE]
    NR = len(REST)

    def wreads(stage, half, buf=None):
        out = []
        for j in range(4 * half, 4 * half + 4):
            for sp in range(2):
                b = fw(j, sp)
                out.append(f"ds_read_b64_tr_b16 a[{b}:{b+1}], v{QWR+j} offset:{((stage + 2) % 4)*16384 + sp*8192}")
                out.append(f"ds_read_b64_tr_b16 a[{b+2}:{b+3}], v{QWR+j} offset:{((stage + 2) % 4)*16384 + sp*8192 + 1024}")
        return out

    def qacc(db, qb):
        return ("v", 192 + (db * 2 + qb) * 4) if qb < 2 else ("a", 64 + (db * 2 + qb - 2) * 4)

    for isv in range(2):
        if isv:
            a.label(lv)
        loop, last = a.uid("k12_loop"), a.uid("k12_last")
        a.label(loop)
        for st in range(2):
            if st == 1:
                a("s_cmp_eq_u32 s51, 7")
                a(f"s_cbranch_scc1 {last}")
            ops = spread(wrd(st, range(4, 8)), "M", 1, 48)
            if st == 0:
                ops.append(when("s_cmp_eq_u32 s51, s46", f"buffer_load_dword v{VPOLL}, v{ZERO}, s[24:27], 0 offen sc1", 4))
            gt = (when("s_cmp_eq_u32 s51, s46", spin_text(a, 0, 256), 0).text + "\n") if st == 0 else ""
            ops.append(Op(tr_wrap("s_waitcnt vmcnt(0) lgkmcnt(0)\n" + gt + "s_barrier"), "S", 63, lo=63, hard=63, after=list(ops)))
            schedule(a, mfmas(st, 0, isv), ops)
            rd = spread(mix(xreads(1 - st), wrd(1 - st, range(4))), "M", 1, 54)
            pre = []
            if st == 0:
                pre = [Op("s_cmp_ge_u32 s49, 1024\ns_cselect_b32 s18, 0, s18\ns_cselect_b32 s22, 0, s22", "S", 0, hard=0)]
            dm, dl = grp_sched([dma_grp(st, g) for g in range(4)], 1, ENV("GD1", 56), after=pre)
            sig = when("s_cmp_eq_u32 s51, s53", one_lane(f"buffer_atomic_add v{ONE}, v{ZERO}, s[24:27], 0 offen sc1"), 58, after=dl)
            ops = rd + pre + dm + [sig]
            cnt_after = [sig]
            p_ = when("s_cmp_eq_u32 s51, s63", pf, 59, after=dl)
            ops.append(p_)
            cnt_after.append(p_)
            if st == 1:
                p_ = when("s_cmp_eq_u32 s51, 5", cpf, 60, after=dl)
            else:
                p_ = when("s_cmp_eq_u32 s51, 6", "\n".join(g[0] + "\ns_nop 0\n" + "\n".join(g[1]) + "\n" + g[2] for g in (wdma(0), wdma(1))), 60, after=dl)
            ops.append(p_)
            cnt_after.append(p_)
            ops.append(Op("s_add_u32 s51, s51, 1", "S", 62, after=cnt_after))
            ops.append(Op("s_waitcnt lgkmcnt(0)", "S", 63, lo=63, hard=63, after=rd))
            schedule(a, mfmas(st, 1, isv), ops)
        a(f"s_branch {loop}")
        a.label(last)
        stamp(a, 2)
        seq = [(c, j) for j in range(8) for c in range(4)] if isv else [(c, j) for c in range(4) for j in range(8)]
        mf, ops = [], []
        done = {}
        tuse = []
        for pos, (c, j) in enumerate(seq):
            n = pair_n(c, j, isv)
            for i in (2 * c, 2 * c + 1):
                kss = (1, 0) if i % 2 else (0, 1)
                mf += mf2(j, i, 1, isv, kss) if isv else mf2(i, j, 1, isv, kss)
            g0 = 4 * pos + 3 + 6
            d = PK + 4 * n
            if n < 24:
                x, y = 64 + 4 * n, 160 + 4 * n
                tx = [f"v_cvt_pk_bf16_f32 v{d}, v{x}, v{x+1}", f"v_cvt_pk_bf16_f32 v{d+1}, v{x+2}, v{x+3}",
                      f"v_cvt_pk_bf16_f32 v{d+2}, v{y}, v{y+1}", f"v_cvt_pk_bf16_f32 v{d+3}, v{y+2}, v{y+3}"]
                o = spread(tx, "A", g0, g0 + 2)
            else:
                x = 128 + 8 * (n - 24)
                tx = [f"v_accvgpr_read_b32 v{PT+r}, a{x+r}" for r in range(8)]
                tx += [f"v_cvt_pk_bf16_f32 v{d+r}, v{PT+2*r}, v{PT+2*r+1}" for r in range(4)]
                o = spread(tx, "A", g0, g0 + 5)
                o[0].after += tuse + [done[n - 24]]
                tuse = [o[-1]]
            done[n] = o[-1]
            ops += o
        w47 = spread(wrd(1, range(4, 8)), "M", 1, 40)
        ld, ll = grp_sched([xloads(0), xloads(1), xloads(2), xloads(3)], 0, 30)
        ops += w47 + ld + [Op("s_waitcnt lgkmcnt(0)", "S", 60, lo=60, hard=62, after=w47)]
        prev_ = list(ll)
        for k_, n_ in enumerate(sorted(PRE, key=lambda n: done[n].want)):
            m_, l_, _ = kvstore(n_, "s[32:35]")
            w_ = ENV("PS0", 34) + k_ * (126 - ENV("PS0", 34)) / max(1, len(PRE))
            o1 = Op(m_, "S", w_ - 1, after=prev_)
            o2 = Op(l_[0], "V", w_, after=[o1, done[n_]])
            ops += [o1, o2]
            prev_ = [o2]
        bar = Op("s_waitcnt vmcnt(16)\ns_barrier", "S", 96, lo=96, after=ll)
        rd = spread(wreads(0, 0, 0), "M", 97, 120)
        rd[0].after.append(bar)
        ops += [bar] + rd
        schedule(a, mf, ops)
        if not isv:
            a(f"s_branch {joined}")
    a.label(joined)
    a.label("k12_qcode")
    a("s_mov_b64 s[48:49], s[32:33]")
    a("s_mov_b32 s51, 0x00020000")
    a("s_cmp_eq_u32 s45, 0")
    a("s_mov_b32 s50, s34")
    a("s_cselect_b32 s56, s30, -1")
    a("s_cselect_b32 s57, -1, s30")
    a(tr_wrap(f"s_waitcnt vmcnt({8 + len(PRE)}) lgkmcnt(0)"))

    NS = ENV("NS", 20)
    PSIG = ENV('PSIG', NS + 3)
    PPOLL = ENV("PPOLL", 27)
    assert PSIG % 2 == 1 and PPOLL % 2 == 1 and PSIG < PPOLL
    queue = ["W0"] * 4 + ["W1"] * 4 + ["X0"] * 4 + ["X1"] * 4 + ["X2"] * 4 + ["X3"] * 4 + ["L"] * len(PRE)

    def younger(tag):
        if tag not in queue:
            return 63
        return len(queue) - 1 - max(i for i, t in enumerate(queue) if t == tag)

    kvsrd = ["s_lshl_b32 s31, s28, 14", "s_add_u32 s16, s6, s31\ns_addc_u32 s17, s7, 0",
             f"s_add_u32 s20, s16, 0x{VF_OFF:x}\ns_addc_u32 s21, s17, 0", f"s_add_u32 s16, s16, 0x{KF_OFF:x}\ns_addc_u32 s17, s17, 0",
             "s_and_b32 s17, s17, 0xffff", "s_and_b32 s21, s21, 0xffff", "s_lshl_b32 s31, s29, 20", "s_sub_u32 s18, 0xf84000, s31",
             "s_mov_b32 s22, s18",
             f"s_add_u32 s24, s6, 0x{KVC_OFF:x}\ns_addc_u32 s25, s7, 0", "s_and_b32 s25, s25, 0xffff", "s_mov_b32 s26, 4096"]

    def kdma():
        return ("s_mov_b32 m0, s34", [f"buffer_load_dwordx4 v{V_LANE16}, s[16:19], s32 offen offset:{i*1024}{LDF} lds" for i in range(4)],
                "s_add_u32 s32, s32, 0x80000\ns_add_u32 s34, s34, 0x4000")

    def vdma():
        return ("s_mov_b32 m0, s35", [f"buffer_load_dwordx4 v{V_LANE16}, s[20:23], s33 offen offset:{i*1024}{LDF} lds" for i in range(4)],
                "s_add_u32 s33, s33, 0x80000\ns_add_u32 s35, s35, 0x4000")

    NL = ENV('NL', 29)
    NE0 = (NS * NR) // NL
    sn, sl_, nx, nw = NE0, 0, 4, 2
    assert NL <= PPOLL + 2
    S0 = ENV("S0", 0)
    for ks in range(32):
        st, sp = ks // 2, ks % 2
        ops = []
        rd = []
        if ks < 31:
            rd = spread(wreads(st, 1, 1) if sp == 0 else wreads(st + 1, 0, 0), "M", 1, 22)
        ops += rd
        grps, tags = [], []
        while nw < 16 and ((sp == 1 and nw <= st + DW) or (ks == 0 and nw < DW)):
            grps.append(wdma(nw)); tags.append(f"W{nw}"); nw += 1
        for _ in range(2):
            if nx < 32 and nx <= ks + DX:
                grps.append(xloads(nx)); tags.append(f"X{nx}"); nx += 1
        while sl_ < NR and sl_ < ((ks + 1) * NR) // NL:
            grps.append(kvstore(REST[sl_], "s[48:51]")); tags.append("L"); sl_ += 1
        early = []
        while ks < NS and sn < NR and sn < NE0 + ((ks + 1) * (NR - NE0) + NS - 1) // NS:
            m_, l_, _ = kvstore(REST[sn], "s[48:51]")
            early += [m_, l_[0]]
            sn += 1
        head = []
        if ks == 0:
            ops += spread(kvsrd, "S", 6, 30)
        if ks == PSIG:
            head = [when("s_cmp_eq_u32 s56, 0", one_lane(f"buffer_atomic_add v{ONE}, v{ZERO}, s[24:27], s54 offen sc1"), 0)]
            ops += spread(k2.kv_first(), "S", 8, 20)
        if ks == 24:
            ops.append(Op("v_add_co_u32 v2, vcc, 0x4000, v2\ns_nop 1\nv_addc_co_u32 v3, vcc, 0, v3, vcc\n" + cpf, "B", 29))
        if ks == PPOLL:
            head = [when("s_cmp_eq_u32 s30, 0", f"buffer_load_dword v{VPOLL}, v{ZERO}, s[24:27], s55 offen sc1", 0)]
            qpoll = len(queue)
        if ks == PPOLL + 2:
            grps += [kdma(), kdma()]; tags += ["K0", "K1"]
        if ks == PPOLL + 3:
            grps += [vdma(), kdma()]; tags += ["V0", "K2"]
        if ks == PPOLL + 4:
            grps += [vdma()]; tags += ["V1"]
        ops += head
        if grps:
            g, gl_ = grp_sched(grps, 1, 27, after=head)
            ops += g
        if ks == NS - 1:
            early.append("s_mov_b32 s50, 0")
        if early:
            ops.append(when("s_cmp_eq_u32 s45, 0", "\n".join(early), 29, after=gl_))
        for gr, tg in zip(grps, tags):
            queue += [tg] * len(gr[1])
        if ks == NS - 1:
            assert sn == NR and sl_ == NE0
            qearly = len(queue)
        if ks < 31:
            nk = ks + 1
            wv = younger(f"W{nk // 2 + 1}") if nk % 2 else younger(f"X{nk + 1}")
            if nk == PSIG:
                wv = min(wv, len(queue) - qearly)
            wv = min(wv, 63)
            prevw = wv
            wtxt = f"s_waitcnt vmcnt({wv}) lgkmcnt(0)"
            if ks == PPOLL + 1:
                ops.append(when("s_cmp_eq_u32 s30, 0", f"s_waitcnt vmcnt({len(queue) - qpoll})\n" + spin_text(a, "s55", 2), 29, lo=28, after=[o for o in ops if o.cls == "V"]))
            if nk % 2:
                wtxt = tr_wrap(wtxt + "\ns_barrier") if nk % 4 == 1 else wtxt + "\ns_barrier"
            ops.append(Op(wtxt, "S", 31, lo=31, hard=31, after=[o for o in ops if o.cls in "MVB"]))
        mf = []
        for db, qb, k2_, f_ in snake(range(4 * sp, 4 * sp + 4), range(4), 2):
            k, c = qacc(db, qb)
            r = f"{k}[{c}:{c+3}]"
            mf.append(mfma16(r, aq(fw(db, k2_)), aq(XS(2 * st + k2_) + 4 * qb), "0" if (st == 0 and f_) else r))
        schedule(a, mf, ops)
    assert PPOLL + 4 <= 31
    stamp(a, 3)
    assert younger("L") >= 8
    a("s_add_u32 s3, s54, 64")
    a("s_add_u32 s5, s55, 64")
    a("s_mov_b32 s63, s57")
    late = dict(
        sig=when("s_cmp_eq_u32 s63, 0", one_lane(f"buffer_atomic_add v{ONE}, v{ZERO}, s[24:27], s3 offen sc1"), 0).text,
        poll=lambda: when("s_cmp_eq_u32 s30, 0", "buffer_load_dword v58, v59, s[24:27], s5 offen sc1", 2),
        gate=lambda **kw: when("s_cmp_eq_u32 s30, 0", "s_waitcnt vmcnt(0)\n" + spin_text(a, "s5", 14, 58, 59), 29, **kw))
    attention_phase(a, end, 0, qacc, late, stubs=stubs, next_code='op_head' if fuse else (None if os.environ.get('WHICH') == 'k12' else 'k3_kernel'), when=when if fuse else None, ffn=ffn)
    a.end_kernel(name, 256, 256)
    a.launch(name, 256, 256, 163840)
```

```python
from common import *
import common, os
from sched import Op, spread, schedule
import k2
from k2 import vq, aq, V_LANE16, V_VV, V_NINF, attention_phase, LDF

SPIN_MAX = 1 << 20
KO = set(os.environ.get('KO', '').split(','))
NT = ' nt' if 'nt' in KO else ''
ENV = lambda k, d: int(os.environ.get(k, str(d)))

ZERO, ONE = 8, 9
XD, WD, XRD, WRD = 10, 18, 26, 28
QX, QWD, QWR = 36, 38, 42
VPF, VDUM, VPOLL, VXST, VLW, VLR = 50, 51, 52, 53, 54, 55
PT = 56
PK = 64
WRING = 98304


def spin_text(a, soff, target, VPOLL=VPOLL, ZERO=ZERO):
    ok, lp = a.uid("spin_ok"), a.uid("spin")
    return "\n".join([
        f"v_readfirstlane_b32 s31, v{VPOLL}", f"s_cmp_ge_u32 s31, {target}", f"s_cbranch_scc1 {ok}",
        f"s_mov_b32 s40, {SPIN_MAX}", f"{lp}:", "s_sleep 8",
        f"buffer_load_dword v{VPOLL}, v{ZERO}, s[24:27], {soff} offen sc1", "s_waitcnt vmcnt(0)",
        f"v_readfirstlane_b32 s31, v{VPOLL}", "s_sub_u32 s40, s40, 1", "s_cselect_b32 s31, -1, s31",
        f"s_cmp_lt_u32 s31, {target}", f"s_cbranch_scc1 {lp}", f"{ok}:"])


def one_lane(text):
    return f"s_mov_b64 exec, 1\n{text}\ns_mov_b64 exec, -1"


def gen_k12(a, name="k12_kernel", fuse=False, ffn=None):
    a.begin_kernel(name)
    end = a.uid("k12_end")
    stubs = []
    pst = (lambda i: stamp(a, i)) if "ptrace" in KO else (lambda i: None)

    def when(cmp_text, body, want, **kw):
        l, r = a.uid("k12_ool"), a.uid("k12_oolret")
        if "nosig" in KO and "s[24:27]" in body:
            body = "s_nop 0"
        stubs.append((l, body, r))
        return Op(f"{cmp_text}\ns_cbranch_scc1 {l}\n{r}:", "B", want, **kw)

    a("s_cmp_ge_u32 s2, 256")
    a(f"s_cbranch_scc1 {end}")
    stamp(a, 0)
    a(f"s_load_dwordx4 s[36:39], s[0:1], {ARG['x']}")
    a(f"s_load_dwordx4 s[40:43], s[0:1], {ARG['wuk']}")
    a(f"s_load_dwordx2 s[4:5], s[0:1], {ARG['wq']}")
    a(f"s_load_dwordx4 s[60:63], s[0:1], {ARG['dbg']}")
    CE = ENV("CE", 48)
    a("s_lshr_b32 s59, s2, 3")
    a("s_lshl_b32 s58, s59, 4")
    a("v_add_u32 v6, s58, v0")
    a(f"v_cmp_gt_u32 vcc, {CE}, v0")
    a(f"v_cmp_gt_u32 s[56:57], {CE + 16}, v0")
    a("s_nop 0")
    a("v_cndmask_b32 v6, v6, v0, vcc")
    code_addr(a, "k12_code0", 58, 6, 52)
    a.label("k12_code0")
    a("s_mov_b64 exec, s[56:57]")
    cs = a.uid("k12_nocode")
    a(f"s_cbranch_execz {cs}")
    a(f"global_load_dword v{VDUM}, v[58:59], off")
    a.label(cs)
    a("s_mov_b64 exec, -1")
    a("s_and_b32 s58, s2, 7")
    a("s_lshr_b32 s59, s2, 3")
    a("s_and_b32 s45, s59, 7")
    a("s_lshr_b32 s57, s59, 3")
    a("s_and_b32 s44, s57, 1")
    a("s_lshl_b32 s52, s58, 1")
    a("s_add_u32 s44, s44, s52")
    a("s_lshr_b32 s57, s57, 1")
    W, LN_ = 2, 3
    a(f"v_lshrrev_b32 v{W}, 6, v0")
    a(f"v_and_b32 v{LN_}, 63, v0")
    a(f"v_readfirstlane_b32 s30, v{W}")
    a(f"v_lshlrev_b32 v{V_LANE16}, 4, v{LN_}")
    VX, VT = 64, 80
    TOK, L32 = 60, 61
    a(f"v_lshrrev_b32 v{TOK}, 5, v{LN_}")
    a(f"v_lshl_add_u32 v{TOK}, v{W}, 1, v{TOK}")
    a(f"v_and_b32 v{L32}, 31, v{LN_}")
    a(f"v_lshlrev_b32 v6, 11, v{TOK}")
    a(f"v_lshl_add_u32 v62, v{L32}, 4, v6")
    a("s_lshl_b32 s52, s2, 14")
    a(f"v_lshrrev_b32 v56, 3, v{LN_}")
    a(f"v_and_b32 v57, 7, v{LN_}")
    a("v_lshrrev_b32 v58, 1, v56")
    a("v_xor_b32 v6, v57, v58")
    a("v_xor_b32 v7, 4, v6")
    a(f"v_lshl_add_u32 v58, v{W}, 6, v56")
    a("v_lshlrev_b32 v58, 10, v58")
    a("s_lshl_b32 s47, s45, 18")
    a("v_add_u32 v58, s47, v58")
    a(f"v_lshl_add_u32 v{XD}, v6, 4, v58")
    a(f"v_lshl_add_u32 v{XD+1}, v7, 4, v58")
    for i in range(7, -1, -1):
        a(f"v_add_u32 v{XD+i}, {i*8*1024 - (i%4)*1024}, v{XD + (i%2)}")
    a(f"v_lshrrev_b32 v6, 5, v{LN_}")
    a(f"v_bfe_u32 v7, v{LN_}, 1, 4")
    a(f"v_and_b32 v59, 1, v{LN_}")
    a(f"v_lshl_add_u32 v58, v{W}, 4, v6")
    a("v_lshlrev_b32 v58, 13, v58")
    a("v_lshl_add_u32 v58, v59, 4, v58")
    a("s_lshl_b32 s47, s44, 9")
    a("v_add_u32 v58, s47, v58")
    a("v_xor_b32 v7, v7, v6")
    for i in range(8):
        fx = ((2 * i) & 3) | ((((2 * i) >> 3) & 1) << 2)
        a(f"v_xor_b32 v6, {fx}, v7")
        a(f"v_lshl_add_u32 v6, v6, 5, v58")
        a(f"v_add_u32 v{WD+i}, {2*i*8192 - (i%4)*1024}, v6")
    XB, WB = 0, 65536
    a("s_lshl_b32 s48, s30, 13")
    a("s_mov_b32 s49, 0")
    a("s_mov_b32 s50, 0")
    pst(1)
    a("s_waitcnt lgkmcnt(0)")
    a.srd(24, 36, 4 << 20)
    XP = ENV("XP", 1)

    def xrows():
        for i in range(4):
            a(f"buffer_load_dwordx4 v[{VX+4*i}:{VX+4*i+3}], v62, s[24:27], s52 offen offset:{i*512}{NT}")
    if XP == 0:
        xrows()
    a.srd(16, 38, 2 << 20)
    a("s_cmp_eq_u32 s57, 0")
    a("s_cselect_b32 s20, s40, s42")
    a("s_cselect_b32 s21, s41, s43")
    a("s_and_b32 s21, s21, 0xffff")
    a("s_mov_b32 s22, 0x400000")
    a("s_mov_b32 s23, 0x00020000")

    def dma_grp(stage, g):
        op, i0 = g // 2, (g % 2) * 4
        m = f"s_add_u32 m0, s48, {(XB if op == 0 else WB) + stage*32768 + i0*1024}"
        if op == 0:
            ld = [f"buffer_load_dwordx4 v{XD+i0+i}, s[16:19], s49 offen offset:{i*1024} lds" for i in range(4)]
        else:
            ld = [f"buffer_load_dwordx4 v{WD+i0+i}, s[20:23], s50 offen offset:{i*1024}{NT} lds" for i in range(4)]
        tr = {1: "s_add_u32 s49, s49, 128", 3: "s_add_u32 s50, s50, 0x80000"}.get(g)
        return m, ld, tr

    def emit_grp(m, ld, tr):
        a(m)
        a("s_nop 0")
        for t in ld:
            a(t)
        if tr:
            a(tr)

    def grp_sched(grps, lo, hi, after=()):
        ops, prev = [], list(after)
        tot = sum(len(g[1]) for g in grps)
        step = (hi - lo) / float(tot)
        k = 0
        for (m, ld, tr) in grps:
            mo = None
            if m:
                mo = Op(m, "S", lo + step * k - 1, lo=lo, after=prev)
                ops.append(mo)
            for t in ld:
                o = Op(t, "V", lo + 1 + step * k, lo=lo, after=prev, prev_gap=[mo] if mo else [])
                ops.append(o)
                prev = [o]
                k += 1
            if tr:
                for t in tr.split("\n"):
                    o = Op(t, "S", lo + step * k, after=prev)
                    ops.append(o)
                    prev = [o]
        return ops, prev

    TL = ENV("TOUCH", 1)
    if TL:
        a(f"v_lshlrev_b32 v6, 17, v{V_LANE16}")
        a("s_mov_b64 exec, 1")
        a(f"buffer_load_dword v{VDUM}, v62, s[24:27], s52 offen")
        a(f"global_load_dword v{VDUM}, v6, s[60:61]")
        if TL >= 2:
            a("s_mov_b64 exec, 3")
        a(f"buffer_load_dword v{VDUM}, v6, s[20:23], 0 offen")
        a(f"global_load_dword v{VDUM}, v6, s[62:63]")
        if TL >= 2:
            a("s_mov_b64 exec, 15")
        a(f"global_load_dword v{VDUM}, v6, s[4:5]")
        if TL == 3:
            a("s_mul_i32 s31, s30, 14")
            a("s_lshl_b32 s31, s31, 21")
            a("s_mov_b64 exec, 0x3fff")
            a("v_add_u32 v6, s31, v6")
            a(f"global_load_dword v{VDUM}, v6, s[62:63]")
        if TL == 4:
            a("s_lshl_b32 s31, s59, 2")
            a("s_add_u32 s31, s31, s30")
            a("s_min_u32 s31, s31, 55")
            a("s_lshl_b32 s31, s31, 21")
            a("s_mov_b64 exec, 1")
            a("v_mov_b32 v6, s31")
            a(f"global_load_dword v{VDUM}, v6, s[62:63]")
        a("s_mov_b64 exec, -1")
    PG = ENV("PG", 2)
    order0 = [0, 2, 1, 3]
    for k_, g in enumerate(order0[:PG]):
        emit_grp(*dma_grp(0, g))
        if k_ + 1 == XP:
            xrows()
    pst(2)
    a("s_mov_b64 s[6:7], s[62:63]")
    a.srd_off(8, 6, XN_OFF, 4 << 20)
    a.srd(12, 4, 8 << 20)
    a.srd_off(32, 6, KF_OFF, 32 << 20)
    a.srd(24, 60, 256)
    a("s_lshl_b32 s28, s58, 2")
    a("s_and_b32 s31, s59, 3")
    a("s_add_u32 s28, s28, s31")
    a("s_lshr_b32 s29, s59, 2")
    a("s_lshl_b32 s42, s29, 7")
    a("s_sub_u32 s43, 1920, s42")
    a("s_lshl_b32 s31, s30, 4")
    a("s_add_u32 s38, s42, s31")
    a("s_add_u32 s39, s43, s31")
    a("s_lshl_b32 s60, s30, 12")
    a("s_mov_b32 s61, 0")
    a("s_mov_b32 s62, 0")
    a("s_lshl_b32 s47, s44, 1")
    a("s_lshr_b32 s52, s30, 1")
    a("s_add_u32 s47, s47, s52")
    a("s_lshl_b32 s47, s47, 14")
    a("s_lshl_b32 s52, s45, 1")
    a("s_and_b32 s53, s30, 1")
    a("s_add_u32 s52, s52, s53")
    a("s_lshl_b32 s52, s52, 20")
    a("s_add_u32 s47, s47, s52")
    a("s_lshl_b32 s52, s57, 24")
    a("s_add_u32 s47, s47, s52")
    assert VF_OFF - KF_OFF == 1 << 24
    a("s_lshl_b32 s54, s44, 8")
    a("s_lshr_b32 s55, s28, 1")
    a("s_lshl_b32 s55, s55, 8")
    a(f"s_and_b32 s53, s59, {ENV('XSM', 3)}")
    a("s_add_u32 s53, s53, 1")
    a("s_cmp_eq_u32 s30, 0")
    a("s_cselect_b32 s53, s53, -1")
    a("s_cselect_b32 s46, 6, -1")
    a("v_lshlrev_b32 v6, 13, v56")
    a(f"v_lshl_add_u32 v{VPF}, v57, 7, v6")
    a("s_lshl_b32 s56, s30, 5")
    a("s_add_u32 s56, s56, s59")
    a("s_lshl_b32 s56, s56, 16")
    a("s_lshl_b32 s52, s58, 10")
    a("s_add_u32 s56, s56, s52")
    a(f"s_add_u32 s63, s30, {ENV('PF0', 1)}")
    pf = f"buffer_load_dword v{VDUM}, v{VPF}, s[12:15], s56 offen" if "nowq" not in KO else "s_nop 0"
    for g in order0[PG:2]:
        emit_grp(*dma_grp(0, g))
    XL = 131072
    a(f"v_mul_u32_u24 v6, 2064, v{TOK}")
    a(f"v_lshl_add_u32 v6, v{L32}, 4, v6")
    a(f"v_add_u32 v{VLW}, {XL}, v6")
    a("v_mul_u32_u24 v7, 2064, v57")
    a("v_lshl_add_u32 v7, v56, 4, v7")
    a(f"v_lshl_add_u32 v7, v{W}, 9, v7")
    a(f"v_add_u32 v{VLR}, {XL}, v7")
    a("v_lshrrev_b32 v7, 2, v56")
    a(f"v_lshl_add_u32 v7, v{W}, 3, v7")
    a("v_lshlrev_b32 v7, 17, v7")
    a("v_and_b32 v6, 3, v56")
    a("v_lshl_add_u32 v7, v6, 8, v7")
    a("v_lshl_add_u32 v7, v57, 4, v7")
    a("s_lshr_b32 s52, s2, 1")
    a("s_lshl_b32 s52, s52, 10")
    a("s_and_b32 s31, s2, 1")
    a("s_lshl_b32 s31, s31, 7")
    a("s_add_u32 s52, s52, s31")
    a(f"v_add_u32 v{VXST}, s52, v7")
    a(f"v_and_b32 v56, 15, v{LN_}")
    a(f"v_lshrrev_b32 v57, 4, v{LN_}")
    a("v_lshrrev_b32 v6, 1, v56")
    a("v_xor_b32 v6, v6, v57")
    a(f"v_and_b32 v7, 1, v{W}")
    a("v_lshl_add_u32 v7, v7, 7, v56")
    a("v_lshlrev_b32 v7, 7, v7")
    a(f"v_lshl_add_u32 v{XRD}, v6, 4, v7")
    a(f"v_xor_b32 v{XRD+1}, 64, v{XRD}")
    a("v_lshrrev_b32 v6, 2, v56")
    a("v_and_b32 v58, 1, v57")
    a("v_lshl_add_u32 v58, v58, 2, v6")
    a("v_lshl_add_u32 v59, v57, 3, v6")
    a(f"v_and_b32 v63, 3, v{LN_}")
    a("v_lshlrev_b32 v7, 9, v59")
    a(f"v_lshrrev_b32 v6, 1, v{W}")
    a("v_lshl_add_u32 v7, v6, 8, v7")
    a("v_lshl_add_u32 v7, v63, 3, v7")
    a(f"v_add_u32 v7, {WB}, v7")
    a("v_lshlrev_b32 v59, 8, v59")
    a("v_lshl_add_u32 v59, v63, 3, v59")
    a(f"v_add_u32 v59, {WRING}, v59")
    for j in range(8):
        a(f"v_xor_b32 v6, {j}, v58")
        a(f"v_lshl_add_u32 v{WRD+j}, v6, 5, v7")
        a(f"v_lshl_add_u32 v{QWR+j}, v6, 5, v59")
    a("s_lshl_b32 s31, s38, 6")
    a(f"v_add_u32 v{QX}, s31, v{V_LANE16}")
    a("s_lshl_b32 s31, s39, 6")
    a(f"v_add_u32 v{QX+1}, s31, v{V_LANE16}")
    a(f"v_bfe_u32 v6, v{LN_}, 1, 3")
    a(f"v_and_b32 v7, 1, v{LN_}")
    a(f"v_lshl_add_u32 v58, v{W}, 4, v57")
    a("v_lshlrev_b32 v58, 13, v58")
    a("v_lshl_add_u32 v58, v7, 4, v58")
    a("s_lshl_b32 s31, s28, 8")
    a("v_add_u32 v58, s31, v58")
    a("v_xor_b32 v6, v6, v57")
    for i in range(4):
        a(f"v_xor_b32 v7, {(i // 2) << 2}, v6")
        a(f"v_lshl_add_u32 v7, v7, 5, v58")
        a(f"v_add_u32 v{QWD+i}, {4*i*8192 - i*1024}, v7")
    a("v_lshlrev_b32 v6, 2, v57")
    a(f"v_sub_u32 v{V_VV}, v56, v6")
    a(f"v_mov_b32 v{V_NINF}, 0xff800000")
    a(f"v_mov_b32 v{ZERO}, 0")
    a(f"v_mov_b32 v{ONE}, 1")
    a("s_lshl_b32 s52, s59, 2")
    a("s_add_u32 s52, s52, s30")
    a(f"v_and_b32 v6, 1, v{LN_}")
    a("v_lshl_add_u32 v6, s52, 1, v6")
    code_addr(a, "k12_qcode", 2, 6, 40)
    cpf = f"global_load_dword v{VDUM}, v[2:3], off" if "nocpf" not in KO else "s_nop 0"
    zero_acc(a, 128, 64, 56)
    zero_acc(a, 128, 128, 56, "v", init=False)
    for g in order0[max(PG, 2):]:
        emit_grp(*dma_grp(0, g))
    pst(3)
    a(f"s_waitcnt vmcnt({16 - 4 * XP})")
    pst(4)
    t_ = Asm()
    ln_rows_half_wave(t_, VX, VT)
    nl_ = len(t_.lines)
    for i, ln in enumerate(t_.lines):
        a.lines.append(ln)
        for g in range(4):
            if i == (nl_ * (g + 1) // 5 if not ENV("S1L", 0) else nl_ - 1):
                emit_grp(*dma_grp(1, order0[g]))
    pst(5)
    for i in range(4):
        a(f"ds_write_b128 v{VLW}, v[{VX+4*i}:{VX+4*i+3}] offset:{i*512}")
    pst(6)
    a("s_waitcnt vmcnt(16) lgkmcnt(0)")
    a("s_barrier")
    if "ptrace" in KO:
        stamp_dump(a, 0, 7, 6)
        a("s_endpgm")
    XT = 64
    for i in range(4):
        a(f"ds_read_b128 {aq(XT+4*i)}, v{VLR} offset:{i*128}")
    a(f"v_add_u32 v{VLW}, 4096, v{QX}")
    a(f"v_add_u32 v{VLR}, 4096, v{QX+1}")
    zero_acc(a, 64, 64, 56, "v", init=False)

    FXS = [192, 64]
    fw = lambda o, ks: (o * 2 + ks) * 4
    fx = lambda st, j, ks: FXS[st] + (j * 2 + ks) * 4

    def xreads(st):
        return [f"ds_read_b128 {aq(fx(st, j, ks))}, v{XRD+ks} offset:{XB + st*32768 + j*2048}" for j in range(8) for ks in range(2)]

    def wrd(st, os_):
        out = []
        for o in os_:
            for ks in range(2):
                b = fw(o, ks)
                out.append(f"ds_read_b64_tr_b16 a[{b}:{b+1}], v{WRD+o} offset:{st*32768 + ks*16384}")
                out.append(f"ds_read_b64_tr_b16 a[{b+2}:{b+3}], v{WRD+o} offset:{st*32768 + ks*16384 + 2048}")
        return out

    def mix(x, y):
        return [t for p in zip(x, y) for t in p]

    def pair_n(c, j, isv):
        return (c * 8 + j) if isv else (j * 4 + c)

    def acc(i, j, isv):
        n = pair_n(i // 2, j, isv)
        if n < 24:
            return ("v", (64 if i % 2 == 0 else 160) + 4 * n)
        return ("a", 128 + 8 * (n - 24) + 4 * (i % 2))

    def mf2(o, x, st, isv, kss=(0, 1)):
        k, c = acc(x, o, isv) if isv else acc(o, x, isv)
        r = f"{k}[{c}:{c+3}]"
        return [mfma16(r, *((aq(fx(st, x, ks)), aq(fw(o, ks))) if isv else (aq(fw(o, ks)), aq(fx(st, x, ks)))), r) for ks in kss]

    def mfmas(st, half, isv):
        return [mf2(o, x, st, isv, [k])[0] for o, x, k, _ in snake(range(4 * half, 4 * half + 4), range(8), 2)]

    skip = a.uid("k12_nostat")
    a(f"s_cmp_ge_u32 s2, {ZERO_BYTES // 4096}")
    a(f"s_cbranch_scc1 {skip}")
    a("s_lshl_b32 s52, s2, 12")
    a(f"s_add_u32 s52, s52, 0x{STATS_OFF - KF_OFF:x}")
    a("s_mov_b32 s34, -1")
    a("v_lshlrev_b32 v6, 4, v0")
    a("buffer_store_dwordx4 v[56:59], v6, s[32:35], s52 offen sc1")
    a(f"s_mov_b32 s34, 0x{32 << 20:x}")
    a.label(skip)
    stamp(a, 1)
    tr_init(a)
    for t in mix(xreads(0), wrd(0, range(4))):
        a(t)
    a("s_mov_b32 s51, 0")
    a("s_waitcnt lgkmcnt(15)")
    for i in range(4):
        a(f"s_mov_b32 s52, {i*2*131072}")
        a(f"buffer_store_dwordx4 {aq(XT+4*i)}, v{VXST}, s[8:11], s52 offen sc1")
    a("s_waitcnt lgkmcnt(0)")
    lv, joined = a.uid("k12_v"), a.uid("k12_join")
    a("s_cmp_lg_u32 s57, 0")
    a(f"s_cbranch_scc1 {lv}")

    DX, DW = ENV("QDX", 4), ENV("QDW", 2)
    XS = lambda ks: 128 + ((ks + 4) % 8) * 16
    QF = [0, 32]

    def wdma(stage):
        return (f"s_add_u32 m0, s60, {WRING + ((stage + 2) % 4)*16384}",
                [f"buffer_load_dwordx4 v{QWD+i}, s[12:15], s61 offen offset:{i*1024} lds" for i in range(4)], "s_add_u32 s61, s61, 0x80000")

    def xloads(ks):
        return (None, [f"buffer_load_dwordx4 {aq(XS(ks) + 4*qb)}, v{(QX, VLW, QX+1, VLR)[qb]}, s[8:11], s62 offen sc1" for qb in range(4)],
                "s_add_u32 s62, s62, 0x20000")

    def kvstore(n, srd):
        return (f"s_add_u32 s52, s47, {(n // 16) * 0x80000 + (((n % 16) * 1024) & ~4095)}",
                [f"buffer_store_dwordx4 v[{PK+n*4}:{PK+3+n*4}], v{V_LANE16}, {srd}, s52 offen offset:{(n*1024) & 4095} sc1"], None)

    PRE = [0, 1, 8, 9, 16, 17, 24, 25, 2, 4, 10, 12, 18, 20, 5, 13][:ENV("NPRE", 8)]
    REST = [n for n in range(32) if n not in PRE]
    NR = len(REST)

    def wreads(stage, half, buf=None):
        out = []
        for j in range(4 * half, 4 * half + 4):
            for sp in range(2):
                b = fw(j, sp)
                out.append(f"ds_read_b64_tr_b16 a[{b}:{b+1}], v{QWR+j} offset:{((stage + 2) % 4)*16384 + sp*8192}")
                out.append(f"ds_read_b64_tr_b16 a[{b+2}:{b+3}], v{QWR+j} offset:{((stage + 2) % 4)*16384 + sp*8192 + 1024}")
        return out

    def qacc(db, qb):
        return ("v", 192 + (db * 2 + qb) * 4) if qb < 2 else ("a", 64 + (db * 2 + qb - 2) * 4)

    for isv in range(2):
        if isv:
            a.label(lv)
        loop, last = a.uid("k12_loop"), a.uid("k12_last")
        a.label(loop)
        for st in range(2):
            if st == 1:
                a("s_cmp_eq_u32 s51, 7")
                a(f"s_cbranch_scc1 {last}")
            ops = spread(wrd(st, range(4, 8)), "M", 1, 48)
            if st == 0:
                ops.append(when("s_cmp_eq_u32 s51, s46", f"buffer_load_dword v{VPOLL}, v{ZERO}, s[24:27], 0 offen sc1", 4))
            gt = (when("s_cmp_eq_u32 s51, s46", spin_text(a, 0, 256), 0).text + "\n") if st == 0 else ""
            ops.append(Op(tr_wrap("s_waitcnt vmcnt(0) lgkmcnt(0)\n" + gt + "s_barrier"), "S", 63, lo=63, hard=63, after=list(ops)))
            schedule(a, mfmas(st, 0, isv), ops)
            rd = spread(mix(xreads(1 - st), wrd(1 - st, range(4))), "M", 1, 54)
            pre = []
            if st == 0:
                pre = [Op("s_cmp_ge_u32 s49, 1024\ns_cselect_b32 s18, 0, s18\ns_cselect_b32 s22, 0, s22", "S", 0, hard=0)]
            dm, dl = grp_sched([dma_grp(st, g) for g in range(4)], 1, ENV("GD1", 56), after=pre)
            sig = when("s_cmp_eq_u32 s51, s53", one_lane(f"buffer_atomic_add v{ONE}, v{ZERO}, s[24:27], 0 offen sc1"), 58, after=dl)
            ops = rd + pre + dm + [sig]
            cnt_after = [sig]
            p_ = when("s_cmp_eq_u32 s51, s63", pf, 59, after=dl)
            ops.append(p_)
            cnt_after.append(p_)
            if st == 1:
                p_ = when("s_cmp_eq_u32 s51, 5", cpf, 60, after=dl)
            else:
                p_ = when("s_cmp_eq_u32 s51, 6", "\n".join(g[0] + "\ns_nop 0\n" + "\n".join(g[1]) + "\n" + g[2] for g in (wdma(0), wdma(1))), 60, after=dl)
            ops.append(p_)
            cnt_after.append(p_)
            ops.append(Op("s_add_u32 s51, s51, 1", "S", 62, after=cnt_after))
            ops.append(Op("s_waitcnt lgkmcnt(0)", "S", 63, lo=63, hard=63, after=rd))
            schedule(a, mfmas(st, 1, isv), ops)
        a(f"s_branch {loop}")
        a.label(last)
        stamp(a, 2)
        seq = [(c, j) for j in range(8) for c in range(4)] if isv else [(c, j) for c in range(4) for j in range(8)]
        mf, ops = [], []
        done = {}
        tuse = []
        for pos, (c, j) in enumerate(seq):
            n = pair_n(c, j, isv)
            for i in (2 * c, 2 * c + 1):
                kss = (1, 0) if i % 2 else (0, 1)
                mf += mf2(j, i, 1, isv, kss) if isv else mf2(i, j, 1, isv, kss)
            g0 = 4 * pos + 3 + 6
            d = PK + 4 * n
            if n < 24:
                x, y = 64 + 4 * n, 160 + 4 * n
                tx = [f"v_cvt_pk_bf16_f32 v{d}, v{x}, v{x+1}", f"v_cvt_pk_bf16_f32 v{d+1}, v{x+2}, v{x+3}",
                      f"v_cvt_pk_bf16_f32 v{d+2}, v{y}, v{y+1}", f"v_cvt_pk_bf16_f32 v{d+3}, v{y+2}, v{y+3}"]
                o = spread(tx, "A", g0, g0 + 2)
            else:
                x = 128 + 8 * (n - 24)
                tx = [f"v_accvgpr_read_b32 v{PT+r}, a{x+r}" for r in range(8)]
                tx += [f"v_cvt_pk_bf16_f32 v{d+r}, v{PT+2*r}, v{PT+2*r+1}" for r in range(4)]
                o = spread(tx, "A", g0, g0 + 5)
                o[0].after += tuse + [done[n - 24]]
                tuse = [o[-1]]
            done[n] = o[-1]
            ops += o
        w47 = spread(wrd(1, range(4, 8)), "M", 1, 40)
        ld, ll = grp_sched([xloads(0), xloads(1), xloads(2), xloads(3)], 0, 30)
        ops += w47 + ld + [Op("s_waitcnt lgkmcnt(0)", "S", 60, lo=60, hard=62, after=w47)]
        prev_ = list(ll)
        for k_, n_ in enumerate(sorted(PRE, key=lambda n: done[n].want)):
            m_, l_, _ = kvstore(n_, "s[32:35]")
            w_ = ENV("PS0", 34) + k_ * (126 - ENV("PS0", 34)) / max(1, len(PRE))
            o1 = Op(m_, "S", w_ - 1, after=prev_)
            o2 = Op(l_[0], "V", w_, after=[o1, done[n_]])
            ops += [o1, o2]
            prev_ = [o2]
        bar = Op("s_waitcnt vmcnt(16)\ns_barrier", "S", 96, lo=96, after=ll)
        rd = spread(wreads(0, 0, 0), "M", 97, 120)
        rd[0].after.append(bar)
        ops += [bar] + rd
        schedule(a, mf, ops)
        if not isv:
            a(f"s_branch {joined}")
    a.label(joined)
    a.label("k12_qcode")
    a("s_mov_b64 s[48:49], s[32:33]")
    a("s_mov_b32 s51, 0x00020000")
    a("s_cmp_eq_u32 s45, 0")
    a("s_mov_b32 s50, s34")
    a("s_cselect_b32 s56, s30, -1")
    a("s_cselect_b32 s57, -1, s30")
    a(tr_wrap(f"s_waitcnt vmcnt({8 + len(PRE)}) lgkmcnt(0)"))

    NS = ENV("NS", 20)
    PSIG = ENV('PSIG', NS + 3)
    PPOLL = ENV("PPOLL", 27)
    assert PSIG % 2 == 1 and PPOLL % 2 == 1 and PSIG < PPOLL
    queue = ["W0"] * 4 + ["W1"] * 4 + ["X0"] * 4 + ["X1"] * 4 + ["X2"] * 4 + ["X3"] * 4 + ["L"] * len(PRE)

    def younger(tag):
        if tag not in queue:
            return 63
        return len(queue) - 1 - max(i for i, t in enumerate(queue) if t == tag)

    kvsrd = ["s_lshl_b32 s31, s28, 14", "s_add_u32 s16, s6, s31\ns_addc_u32 s17, s7, 0",
             f"s_add_u32 s20, s16, 0x{VF_OFF:x}\ns_addc_u32 s21, s17, 0", f"s_add_u32 s16, s16, 0x{KF_OFF:x}\ns_addc_u32 s17, s17, 0",
             "s_and_b32 s17, s17, 0xffff", "s_and_b32 s21, s21, 0xffff", "s_lshl_b32 s31, s29, 20", "s_sub_u32 s18, 0xf84000, s31",
             "s_mov_b32 s22, s18",
             f"s_add_u32 s24, s6, 0x{KVC_OFF:x}\ns_addc_u32 s25, s7, 0", "s_and_b32 s25, s25, 0xffff", "s_mov_b32 s26, 4096"]

    def kdma():
        return ("s_mov_b32 m0, s34", [f"buffer_load_dwordx4 v{V_LANE16}, s[16:19], s32 offen offset:{i*1024}{LDF} lds" for i in range(4)],
                "s_add_u32 s32, s32, 0x80000\ns_add_u32 s34, s34, 0x4000")

    def vdma():
        return ("s_mov_b32 m0, s35", [f"buffer_load_dwordx4 v{V_LANE16}, s[20:23], s33 offen offset:{i*1024}{LDF} lds" for i in range(4)],
                "s_add_u32 s33, s33, 0x80000\ns_add_u32 s35, s35, 0x4000")

    NL = ENV('NL', 29)
    NE0 = (NS * NR) // NL
    sn, sl_, nx, nw = NE0, 0, 4, 2
    assert NL <= PPOLL + 2
    S0 = ENV("S0", 0)
    for ks in range(32):
        st, sp = ks // 2, ks % 2
        ops = []
        rd = []
        if ks < 31:
            rd = spread(wreads(st, 1, 1) if sp == 0 else wreads(st + 1, 0, 0), "M", 1, 22)
        ops += rd
        grps, tags = [], []
        while nw < 16 and ((sp == 1 and nw <= st + DW) or (ks == 0 and nw < DW)):
            grps.append(wdma(nw)); tags.append(f"W{nw}"); nw += 1
        for _ in range(2):
            if nx < 32 and nx <= ks + DX:
                grps.append(xloads(nx)); tags.append(f"X{nx}"); nx += 1
        while sl_ < NR and sl_ < ((ks + 1) * NR) // NL:
            grps.append(kvstore(REST[sl_], "s[48:51]")); tags.append("L"); sl_ += 1
        early = []
        while ks < NS and sn < NR and sn < NE0 + ((ks + 1) * (NR - NE0) + NS - 1) // NS:
            m_, l_, _ = kvstore(REST[sn], "s[48:51]")
            early += [m_, l_[0]]
            sn += 1
        head = []
        if ks == 0:
            ops += spread(kvsrd, "S", 6, 30)
        if ks == PSIG:
            head = [when("s_cmp_eq_u32 s56, 0", one_lane(f"buffer_atomic_add v{ONE}, v{ZERO}, s[24:27], s54 offen sc1"), 0)]
            ops += spread(k2.kv_first(), "S", 8, 20)
        if ks == 24:
            ops.append(Op("v_add_co_u32 v2, vcc, 0x4000, v2\ns_nop 1\nv_addc_co_u32 v3, vcc, 0, v3, vcc\n" + cpf, "B", 29))
        if ks == PPOLL:
            head = [when("s_cmp_eq_u32 s30, 0", f"buffer_load_dword v{VPOLL}, v{ZERO}, s[24:27], s55 offen sc1", 0)]
            qpoll = len(queue)
        if ks == PPOLL + 2:
            grps += [kdma(), kdma()]; tags += ["K0", "K1"]
        if ks == PPOLL + 3:
            grps += [vdma(), kdma()]; tags += ["V0", "K2"]
        if ks == PPOLL + 4:
            grps += [vdma()]; tags += ["V1"]
        ops += head
        if grps:
            g, gl_ = grp_sched(grps, 1, 27, after=head)
            ops += g
        if ks == NS - 1:
            early.append("s_mov_b32 s50, 0")
        if early:
            ops.append(when("s_cmp_eq_u32 s45, 0", "\n".join(early), 29, after=gl_))
        for gr, tg in zip(grps, tags):
            queue += [tg] * len(gr[1])
        if ks == NS - 1:
            assert sn == NR and sl_ == NE0
            qearly = len(queue)
        if ks < 31:
            nk = ks + 1
            wv = younger(f"W{nk // 2 + 1}") if nk % 2 else younger(f"X{nk + 1}")
            if nk == PSIG:
                wv = min(wv, len(queue) - qearly)
            wv = min(wv, 63)
            prevw = wv
            wtxt = f"s_waitcnt vmcnt({wv}) lgkmcnt(0)"
            if ks == PPOLL + 1:
                ops.append(when("s_cmp_eq_u32 s30, 0", f"s_waitcnt vmcnt({len(queue) - qpoll})\n" + spin_text(a, "s55", 2), 29, lo=28, after=[o for o in ops if o.cls == "V"]))
            if nk % 2:
                wtxt = tr_wrap(wtxt + "\ns_barrier") if nk % 4 == 1 else wtxt + "\ns_barrier"
            ops.append(Op(wtxt, "S", 31, lo=31, hard=31, after=[o for o in ops if o.cls in "MVB"]))
        mf = []
        for db, qb, k2_, f_ in snake(range(4 * sp, 4 * sp + 4), range(4), 2):
            k, c = qacc(db, qb)
            r = f"{k}[{c}:{c+3}]"
            mf.append(mfma16(r, aq(fw(db, k2_)), aq(XS(2 * st + k2_) + 4 * qb), "0" if (st == 0 and f_) else r))
        schedule(a, mf, ops)
    assert PPOLL + 4 <= 31
    stamp(a, 3)
    assert younger("L") >= 8
    a("s_add_u32 s3, s54, 64")
    a("s_add_u32 s5, s55, 64")
    a("s_mov_b32 s63, s57")
    late = dict(
        sig=when("s_cmp_eq_u32 s63, 0", one_lane(f"buffer_atomic_add v{ONE}, v{ZERO}, s[24:27], s3 offen sc1"), 0).text,
        poll=lambda: when("s_cmp_eq_u32 s30, 0", "buffer_load_dword v58, v59, s[24:27], s5 offen sc1", 2),
        gate=lambda **kw: when("s_cmp_eq_u32 s30, 0", "s_waitcnt vmcnt(0)\n" + spin_text(a, "s5", 14, 58, 59), 29, **kw))
    attention_phase(a, end, 0, qacc, late, stubs=stubs, next_code='op_head' if fuse else (None if os.environ.get('WHICH') == 'k12' else 'k3_kernel'), when=when if fuse else None, ffn=ffn)
    a.end_kernel(name, 256, 256)
    a.launch(name, 256, 256, 163840)
```

```python
from common import *
import common, os
from sched import Op, spread, schedule
import k2
from k2 import vq, aq, V_LANE16, V_VV, V_NINF, attention_phase, LDF

SPIN_MAX = 1 << 20
KO = set(os.environ.get('KO', '').split(','))
NT = ' nt' if 'nt' in KO else ''
ENV = lambda k, d: int(os.environ.get(k, str(d)))

ZERO, ONE = 8, 9
XD, WD, XRD, WRD = 10, 18, 26, 28
QX, QWD, QWR = 36, 38, 42
VPF, VDUM, VPOLL, VXST, VLW, VLR = 50, 51, 52, 53, 54, 55
PT = 56
PK = 64
WRING = 98304


def spin_text(a, soff, target, VPOLL=VPOLL, ZERO=ZERO):
    ok, lp = a.uid("spin_ok"), a.uid("spin")
    return "\n".join([
        f"v_readfirstlane_b32 s31, v{VPOLL}", f"s_cmp_ge_u32 s31, {target}", f"s_cbranch_scc1 {ok}",
        f"s_mov_b32 s40, {SPIN_MAX}", f"{lp}:", "s_sleep 8",
        f"buffer_load_dword v{VPOLL}, v{ZERO}, s[24:27], {soff} offen sc1", "s_waitcnt vmcnt(0)",
        f"v_readfirstlane_b32 s31, v{VPOLL}", "s_sub_u32 s40, s40, 1", "s_cselect_b32 s31, -1, s31",
        f"s_cmp_lt_u32 s31, {target}", f"s_cbranch_scc1 {lp}", f"{ok}:"])


def one_lane(text):
    return f"s_mov_b64 exec, 1\n{text}\ns_mov_b64 exec, -1"


def gen_k12(a, name="k12_kernel", fuse=False, ffn=None):
    a.begin_kernel(name)
    end = a.uid("k12_end")
    stubs = []
    pst = (lambda i: stamp(a, i)) if "ptrace" in KO else (lambda i: None)

    def when(cmp_text, body, want, **kw):
        l, r = a.uid("k12_ool"), a.uid("k12_oolret")
        if "nosig" in KO and "s[24:27]" in body:
            body = "s_nop 0"
        stubs.append((l, body, r))
        return Op(f"{cmp_text}\ns_cbranch_scc1 {l}\n{r}:", "B", want, **kw)

    a("s_cmp_ge_u32 s2, 256")
    a(f"s_cbranch_scc1 {end}")
    stamp(a, 0)
    a(f"s_load_dwordx4 s[36:39], s[0:1], {ARG['x']}")
    a(f"s_load_dwordx4 s[40:43], s[0:1], {ARG['wuk']}")
    a(f"s_load_dwordx2 s[4:5], s[0:1], {ARG['wq']}")
    a(f"s_load_dwordx4 s[60:63], s[0:1], {ARG['dbg']}")
    if ENV("TOUCH", 1) >= 2:
        a(f"s_load_dwordx8 s[8:15], s[0:1], {ARG['wo']}")
        a(f"s_load_dwordx4 s[32:35], s[0:1], {ARG['wu']}")
        a(f"s_load_dwordx2 s[28:29], s[0:1], {ARG['out']}")
    CE = ENV("CE", 48)
    a("s_lshr_b32 s59, s2, 3")
    a("s_lshl_b32 s58, s59, 4")
    a("v_add_u32 v6, s58, v0")
    a(f"v_cmp_gt_u32 vcc, {CE}, v0")
    a(f"v_cmp_gt_u32 s[56:57], {CE + 16}, v0")
    a("s_nop 0")
    a("v_cndmask_b32 v6, v6, v0, vcc")
    code_addr(a, "k12_code0", 58, 6, 52)
    a.label("k12_code0")
    a("s_mov_b64 exec, s[56:57]")
    cs = a.uid("k12_nocode")
    a(f"s_cbranch_execz {cs}")
    a(f"global_load_dword v{VDUM}, v[58:59], off")
    a.label(cs)
    a("s_mov_b64 exec, -1")
    if ENV("ET", 0):
        a("v_mov_b32 v6, 0")
        a("s_mov_b64 exec, 1")
        a("s_waitcnt lgkmcnt(0)")
        for pr in (38, 40, 42, 36, 62, 60, 4):
            a(f"global_load_dword v{VDUM}, v6, s[{pr}:{pr+1}]")
        a("s_mov_b64 exec, -1")
    a("s_and_b32 s58, s2, 7")
    a("s_lshr_b32 s59, s2, 3")
    a("s_and_b32 s45, s59, 7")
    a("s_lshr_b32 s57, s59, 3")
    a("s_and_b32 s44, s57, 1")
    a("s_lshl_b32 s52, s58, 1")
    a("s_add_u32 s44, s44, s52")
    a("s_lshr_b32 s57, s57, 1")
    W, LN_ = 2, 3
    a(f"v_lshrrev_b32 v{W}, 6, v0")
    a(f"v_and_b32 v{LN_}, 63, v0")
    a(f"v_readfirstlane_b32 s30, v{W}")
    a(f"v_lshlrev_b32 v{V_LANE16}, 4, v{LN_}")
    VX, VT = 64, 80
    TOK, L32 = 60, 61
    a(f"v_lshrrev_b32 v{TOK}, 5, v{LN_}")
    a(f"v_lshl_add_u32 v{TOK}, v{W}, 1, v{TOK}")
    a(f"v_and_b32 v{L32}, 31, v{LN_}")
    a(f"v_lshlrev_b32 v6, 11, v{TOK}")
    a(f"v_lshl_add_u32 v62, v{L32}, 4, v6")
    a("s_lshl_b32 s52, s2, 14")
    a(f"v_lshrrev_b32 v56, 3, v{LN_}")
    a(f"v_and_b32 v57, 7, v{LN_}")
    a("v_lshrrev_b32 v58, 1, v56")
    a("v_xor_b32 v6, v57, v58")
    a("v_xor_b32 v7, 4, v6")
    a(f"v_lshl_add_u32 v58, v{W}, 6, v56")
    a("v_lshlrev_b32 v58, 10, v58")
    a("s_lshl_b32 s47, s45, 18")
    a("v_add_u32 v58, s47, v58")
    a(f"v_lshl_add_u32 v{XD}, v6, 4, v58")
    a(f"v_lshl_add_u32 v{XD+1}, v7, 4, v58")
    for i in range(7, -1, -1):
        a(f"v_add_u32 v{XD+i}, {i*8*1024 - (i%4)*1024}, v{XD + (i%2)}")
    a(f"v_lshrrev_b32 v6, 5, v{LN_}")
    a(f"v_bfe_u32 v7, v{LN_}, 1, 4")
    a(f"v_and_b32 v59, 1, v{LN_}")
    a(f"v_lshl_add_u32 v58, v{W}, 4, v6")
    a("v_lshlrev_b32 v58, 13, v58")
    a("v_lshl_add_u32 v58, v59, 4, v58")
    a("s_lshl_b32 s47, s44, 9")
    a("v_add_u32 v58, s47, v58")
    a("v_xor_b32 v7, v7, v6")
    for i in range(8):
        fx = ((2 * i) & 3) | ((((2 * i) >> 3) & 1) << 2)
        a(f"v_xor_b32 v6, {fx}, v7")
        a(f"v_lshl_add_u32 v6, v6, 5, v58")
        a(f"v_add_u32 v{WD+i}, {2*i*8192 - (i%4)*1024}, v6")
    XB, WB = 0, 65536
    a("s_lshl_b32 s48, s30, 13")
    a("s_mov_b32 s49, 0")
    a("s_mov_b32 s50, 0")
    pst(1)
    a("s_waitcnt lgkmcnt(0)")
    a.srd(24, 36, 4 << 20)
    XP = ENV("XP", 1)

    def xrows():
        for i in range(4):
            a(f"buffer_load_dwordx4 v[{VX+4*i}:{VX+4*i+3}], v62, s[24:27], s52 offen offset:{i*512}{NT}")
    if XP == 0:
        xrows()
    a.srd(16, 38, 2 << 20)
    a("s_cmp_eq_u32 s57, 0")
    a("s_cselect_b32 s20, s40, s42")
    a("s_cselect_b32 s21, s41, s43")
    a("s_and_b32 s21, s21, 0xffff")
    a("s_mov_b32 s22, 0x400000")
    a("s_mov_b32 s23, 0x00020000")

    def dma_grp(stage, g):
        op, i0 = g // 2, (g % 2) * 4
        m = f"s_add_u32 m0, s48, {(XB if op == 0 else WB) + stage*32768 + i0*1024}"
        if op == 0:
            ld = [f"buffer_load_dwordx4 v{XD+i0+i}, s[16:19], s49 offen offset:{i*1024} lds" for i in range(4)]
        else:
            ld = [f"buffer_load_dwordx4 v{WD+i0+i}, s[20:23], s50 offen offset:{i*1024}{NT} lds" for i in range(4)]
        tr = {1: "s_add_u32 s49, s49, 128", 3: "s_add_u32 s50, s50, 0x80000"}.get(g)
        return m, ld, tr

    def emit_grp(m, ld, tr):
        a(m)
        a("s_nop 0")
        for t in ld:
            a(t)
        if tr:
            a(tr)

    def grp_sched(grps, lo, hi, after=()):
        ops, prev = [], list(after)
        tot = sum(len(g[1]) for g in grps)
        step = (hi - lo) / float(tot)
        k = 0
        for (m, ld, tr) in grps:
            mo = None
            if m:
                mo = Op(m, "S", lo + step * k - 1, lo=lo, after=prev)
                ops.append(mo)
            for t in ld:
                o = Op(t, "V", lo + 1 + step * k, lo=lo, after=prev, prev_gap=[mo] if mo else [])
                ops.append(o)
                prev = [o]
                k += 1
            if tr:
                for t in tr.split("\n"):
                    o = Op(t, "S", lo + step * k, after=prev)
                    ops.append(o)
                    prev = [o]
        return ops, prev

    TL = ENV("TOUCH", 1)

    def late_touch():
        for pr in (8, 12, 14, 32, 34, 28):
            a(f"global_load_dword v{VDUM}, v6, s[{pr}:{pr+1}]")
    if TL:
        a(f"v_lshlrev_b32 v6, 17, v{V_LANE16}")
        a("s_mov_b64 exec, 1")
        a(f"buffer_load_dword v{VDUM}, v62, s[24:27], s52 offen")
        a(f"global_load_dword v{VDUM}, v6, s[60:61]")
        a(f"buffer_load_dword v{VDUM}, v6, s[20:23], 0 offen")
        a(f"global_load_dword v{VDUM}, v6, s[62:63]")
        a(f"global_load_dword v{VDUM}, v6, s[4:5]")
        if TL == 2:
            late_touch()
        a("s_mov_b64 exec, -1")
    PG = ENV("PG", 2)
    order0 = [0, 2, 1, 3]
    for k_, g in enumerate(order0[:PG]):
        emit_grp(*dma_grp(0, g))
        if k_ + 1 == XP:
            xrows()
    if TL == 3:
        a("s_mov_b64 exec, 1")
        late_touch()
        a("s_mov_b64 exec, -1")
    pst(2)
    a("s_mov_b64 s[6:7], s[62:63]")
    a.srd_off(8, 6, XN_OFF, 4 << 20)
    a.srd(12, 4, 8 << 20)
    a.srd_off(32, 6, KF_OFF, 32 << 20)
    a.srd(24, 60, 256)
    a("s_lshl_b32 s28, s58, 2")
    a("s_and_b32 s31, s59, 3")
    a("s_add_u32 s28, s28, s31")
    a("s_lshr_b32 s29, s59, 2")
    a("s_lshl_b32 s42, s29, 7")
    a("s_sub_u32 s43, 1920, s42")
    a("s_lshl_b32 s31, s30, 4")
    a("s_add_u32 s38, s42, s31")
    a("s_add_u32 s39, s43, s31")
    a("s_lshl_b32 s60, s30, 12")
    a("s_mov_b32 s61, 0")
    a("s_mov_b32 s62, 0")
    a("s_lshl_b32 s47, s44, 1")
    a("s_lshr_b32 s52, s30, 1")
    a("s_add_u32 s47, s47, s52")
    a("s_lshl_b32 s47, s47, 14")
    a("s_lshl_b32 s52, s45, 1")
    a("s_and_b32 s53, s30, 1")
    a("s_add_u32 s52, s52, s53")
    a("s_lshl_b32 s52, s52, 20")
    a("s_add_u32 s47, s47, s52")
    a("s_lshl_b32 s52, s57, 24")
    a("s_add_u32 s47, s47, s52")
    assert VF_OFF - KF_OFF == 1 << 24
    a("s_lshl_b32 s54, s44, 8")
    a("s_lshr_b32 s55, s28, 1")
    a("s_lshl_b32 s55, s55, 8")
    a(f"s_and_b32 s53, s59, {ENV('XSM', 3)}")
    a("s_add_u32 s53, s53, 1")
    a("s_cmp_eq_u32 s30, 0")
    a("s_cselect_b32 s53, s53, -1")
    a("s_cselect_b32 s46, 6, -1")
    a("v_lshlrev_b32 v6, 13, v56")
    a(f"v_lshl_add_u32 v{VPF}, v57, 7, v6")
    a("s_lshl_b32 s56, s30, 5")
    a("s_add_u32 s56, s56, s59")
    a("s_lshl_b32 s56, s56, 16")
    a("s_lshl_b32 s52, s58, 10")
    a("s_add_u32 s56, s56, s52")
    a(f"s_add_u32 s63, s30, {ENV('PF0', 1)}")
    pf = f"buffer_load_dword v{VDUM}, v{VPF}, s[12:15], s56 offen" if "nowq" not in KO else "s_nop 0"
    for g in order0[PG:2]:
        emit_grp(*dma_grp(0, g))
    XL = 131072
    a(f"v_mul_u32_u24 v6, 2064, v{TOK}")
    a(f"v_lshl_add_u32 v6, v{L32}, 4, v6")
    a(f"v_add_u32 v{VLW}, {XL}, v6")
    a("v_mul_u32_u24 v7, 2064, v57")
    a("v_lshl_add_u32 v7, v56, 4, v7")
    a(f"v_lshl_add_u32 v7, v{W}, 9, v7")
    a(f"v_add_u32 v{VLR}, {XL}, v7")
    a("v_lshrrev_b32 v7, 2, v56")
    a(f"v_lshl_add_u32 v7, v{W}, 3, v7")
    a("v_lshlrev_b32 v7, 17, v7")
    a("v_and_b32 v6, 3, v56")
    a("v_lshl_add_u32 v7, v6, 8, v7")
    a("v_lshl_add_u32 v7, v57, 4, v7")
    a("s_lshr_b32 s52, s2, 1")
    a("s_lshl_b32 s52, s52, 10")
    a("s_and_b32 s31, s2, 1")
    a("s_lshl_b32 s31, s31, 7")
    a("s_add_u32 s52, s52, s31")
    a(f"v_add_u32 v{VXST}, s52, v7")
    a(f"v_and_b32 v56, 15, v{LN_}")
    a(f"v_lshrrev_b32 v57, 4, v{LN_}")
    a("v_lshrrev_b32 v6, 1, v56")
    a("v_xor_b32 v6, v6, v57")
    a(f"v_and_b32 v7, 1, v{W}")
    a("v_lshl_add_u32 v7, v7, 7, v56")
    a("v_lshlrev_b32 v7, 7, v7")
    a(f"v_lshl_add_u32 v{XRD}, v6, 4, v7")
    a(f"v_xor_b32 v{XRD+1}, 64, v{XRD}")
    a("v_lshrrev_b32 v6, 2, v56")
    a("v_and_b32 v58, 1, v57")
    a("v_lshl_add_u32 v58, v58, 2, v6")
    a("v_lshl_add_u32 v59, v57, 3, v6")
    a(f"v_and_b32 v63, 3, v{LN_}")
    a("v_lshlrev_b32 v7, 9, v59")
    a(f"v_lshrrev_b32 v6, 1, v{W}")
    a("v_lshl_add_u32 v7, v6, 8, v7")
    a("v_lshl_add_u32 v7, v63, 3, v7")
    a(f"v_add_u32 v7, {WB}, v7")
    a("v_lshlrev_b32 v59, 8, v59")
    a("v_lshl_add_u32 v59, v63, 3, v59")
    a(f"v_add_u32 v59, {WRING}, v59")
    for j in range(8):
        a(f"v_xor_b32 v6, {j}, v58")
        a(f"v_lshl_add_u32 v{WRD+j}, v6, 5, v7")
        a(f"v_lshl_add_u32 v{QWR+j}, v6, 5, v59")
    a("s_lshl_b32 s31, s38, 6")
    a(f"v_add_u32 v{QX}, s31, v{V_LANE16}")
    a("s_lshl_b32 s31, s39, 6")
    a(f"v_add_u32 v{QX+1}, s31, v{V_LANE16}")
    a(f"v_bfe_u32 v6, v{LN_}, 1, 3")
    a(f"v_and_b32 v7, 1, v{LN_}")
    a(f"v_lshl_add_u32 v58, v{W}, 4, v57")
    a("v_lshlrev_b32 v58, 13, v58")
    a("v_lshl_add_u32 v58, v7, 4, v58")
    a("s_lshl_b32 s31, s28, 8")
    a("v_add_u32 v58, s31, v58")
    a("v_xor_b32 v6, v6, v57")
    for i in range(4):
        a(f"v_xor_b32 v7, {(i // 2) << 2}, v6")
        a(f"v_lshl_add_u32 v7, v7, 5, v58")
        a(f"v_add_u32 v{QWD+i}, {4*i*8192 - i*1024}, v7")
    a("v_lshlrev_b32 v6, 2, v57")
    a(f"v_sub_u32 v{V_VV}, v56, v6")
    a(f"v_mov_b32 v{V_NINF}, 0xff800000")
    a(f"v_mov_b32 v{ZERO}, 0")
    a(f"v_mov_b32 v{ONE}, 1")
    a("s_lshl_b32 s52, s59, 2")
    a("s_add_u32 s52, s52, s30")
    a(f"v_and_b32 v6, 1, v{LN_}")
    a("v_lshl_add_u32 v6, s52, 1, v6")
    code_addr(a, "k12_qcode", 2, 6, 40)
    cpf = f"global_load_dword v{VDUM}, v[2:3], off" if "nocpf" not in KO else "s_nop 0"
    zero_acc(a, 128, 64, 56)
    zero_acc(a, 128, 128, 56, "v", init=False)
    for g in order0[max(PG, 2):]:
        emit_grp(*dma_grp(0, g))
    pst(3)
    a(f"s_waitcnt vmcnt({16 - 4 * XP + (6 if TL == 3 else 0)})")
    pst(4)
    t_ = Asm()
    ln_rows_half_wave(t_, VX, VT)
    nl_ = len(t_.lines)
    for i, ln in enumerate(t_.lines):
        a.lines.append(ln)
        for g in range(4):
            if i == (nl_ * (g + 1) // 5 if not ENV("S1L", 0) else nl_ - 1):
                emit_grp(*dma_grp(1, order0[g]))
    pst(5)
    for i in range(4):
        a(f"ds_write_b128 v{VLW}, v[{VX+4*i}:{VX+4*i+3}] offset:{i*512}")
    pst(6)
    a("s_waitcnt vmcnt(16) lgkmcnt(0)")
    a("s_barrier")
    if "ptrace" in KO:
        stamp_dump(a, 0, 7, 6)
        a("s_endpgm")
    XT = 64
    for i in range(4):
        a(f"ds_read_b128 {aq(XT+4*i)}, v{VLR} offset:{i*128}")
    a(f"v_add_u32 v{VLW}, 4096, v{QX}")
    a(f"v_add_u32 v{VLR}, 4096, v{QX+1}")
    zero_acc(a, 64, 64, 56, "v", init=False)

    FXS = [192, 64]
    fw = lambda o, ks: (o * 2 + ks) * 4
    fx = lambda st, j, ks: FXS[st] + (j * 2 + ks) * 4

    def xreads(st):
        return [f"ds_read_b128 {aq(fx(st, j, ks))}, v{XRD+ks} offset:{XB + st*32768 + j*2048}" for j in range(8) for ks in range(2)]

    def wrd(st, os_):
        out = []
        for o in os_:
            for ks in range(2):
                b = fw(o, ks)
                out.append(f"ds_read_b64_tr_b16 a[{b}:{b+1}], v{WRD+o} offset:{st*32768 + ks*16384}")
                out.append(f"ds_read_b64_tr_b16 a[{b+2}:{b+3}], v{WRD+o} offset:{st*32768 + ks*16384 + 2048}")
        return out

    def mix(x, y):
        return [t for p in zip(x, y) for t in p]

    def pair_n(c, j, isv):
        return (c * 8 + j) if isv else (j * 4 + c)

    def acc(i, j, isv):
        n = pair_n(i // 2, j, isv)
        if n < 24:
            return ("v", (64 if i % 2 == 0 else 160) + 4 * n)
        return ("a", 128 + 8 * (n - 24) + 4 * (i % 2))

    def mf2(o, x, st, isv, kss=(0, 1)):
        k, c = acc(x, o, isv) if isv else acc(o, x, isv)
        r = f"{k}[{c}:{c+3}]"
        return [mfma16(r, *((aq(fx(st, x, ks)), aq(fw(o, ks))) if isv else (aq(fw(o, ks)), aq(fx(st, x, ks)))), r) for ks in kss]

    def mfmas(st, half, isv):
        return [mf2(o, x, st, isv, [k])[0] for o, x, k, _ in snake(range(4 * half, 4 * half + 4), range(8), 2)]

    skip = a.uid("k12_nostat")
    a(f"s_cmp_ge_u32 s2, {ZERO_BYTES // 4096}")
    a(f"s_cbranch_scc1 {skip}")
    a("s_lshl_b32 s52, s2, 12")
    a(f"s_add_u32 s52, s52, 0x{STATS_OFF - KF_OFF:x}")
    a("s_mov_b32 s34, -1")
    a("v_lshlrev_b32 v6, 4, v0")
    a("buffer_store_dwordx4 v[56:59], v6, s[32:35], s52 offen sc1")
    a(f"s_mov_b32 s34, 0x{32 << 20:x}")
    a.label(skip)
    stamp(a, 1)
    tr_init(a)
    for t in mix(xreads(0), wrd(0, range(4))):
        a(t)
    a("s_mov_b32 s51, 0")
    a("s_waitcnt lgkmcnt(15)")
    for i in range(4):
        a(f"s_mov_b32 s52, {i*2*131072}")
        a(f"buffer_store_dwordx4 {aq(XT+4*i)}, v{VXST}, s[8:11], s52 offen sc1")
    a("s_waitcnt lgkmcnt(0)")
    lv, joined = a.uid("k12_v"), a.uid("k12_join")
    a("s_cmp_lg_u32 s57, 0")
    a(f"s_cbranch_scc1 {lv}")

    DX, DW = ENV("QDX", 4), ENV("QDW", 2)
    XS = lambda ks: 128 + ((ks + 4) % 8) * 16
    QF = [0, 32]

    def wdma(stage):
        return (f"s_add_u32 m0, s60, {WRING + ((stage + 2) % 4)*16384}",
                [f"buffer_load_dwordx4 v{QWD+i}, s[12:15], s61 offen offset:{i*1024} lds" for i in range(4)], "s_add_u32 s61, s61, 0x80000")

    def xloads(ks):
        return (None, [f"buffer_load_dwordx4 {aq(XS(ks) + 4*qb)}, v{(QX, VLW, QX+1, VLR)[qb]}, s[8:11], s62 offen sc1" for qb in range(4)],
                "s_add_u32 s62, s62, 0x20000")

    def kvstore(n, srd):
        return (f"s_add_u32 s52, s47, {(n // 16) * 0x80000 + (((n % 16) * 1024) & ~4095)}",
                [f"buffer_store_dwordx4 v[{PK+n*4}:{PK+3+n*4}], v{V_LANE16}, {srd}, s52 offen offset:{(n*1024) & 4095} sc1"], None)

    PRE = [0, 1, 8, 9, 16, 17, 24, 25, 2, 4, 10, 12, 18, 20, 5, 13][:ENV("NPRE", 8)]
    REST = [n for n in range(32) if n not in PRE]
    NR = len(REST)

    def wreads(stage, half, buf=None):
        out = []
        for j in range(4 * half, 4 * half + 4):
            for sp in range(2):
                b = fw(j, sp)
                out.append(f"ds_read_b64_tr_b16 a[{b}:{b+1}], v{QWR+j} offset:{((stage + 2) % 4)*16384 + sp*8192}")
                out.append(f"ds_read_b64_tr_b16 a[{b+2}:{b+3}], v{QWR+j} offset:{((stage + 2) % 4)*16384 + sp*8192 + 1024}")
        return out

    def qacc(db, qb):
        return ("v", 192 + (db * 2 + qb) * 4) if qb < 2 else ("a", 64 + (db * 2 + qb - 2) * 4)

    for isv in range(2):
        if isv:
            a.label(lv)
        loop, last = a.uid("k12_loop"), a.uid("k12_last")
        a.label(loop)
        for st in range(2):
            if st == 1:
                a("s_cmp_eq_u32 s51, 7")
                a(f"s_cbranch_scc1 {last}")
            ops = spread(wrd(st, range(4, 8)), "M", 1, 48)
            if st == 0:
                ops.append(when("s_cmp_eq_u32 s51, s46", f"buffer_load_dword v{VPOLL}, v{ZERO}, s[24:27], 0 offen sc1", 4))
            gt = (when("s_cmp_eq_u32 s51, s46", spin_text(a, 0, 256), 0).text + "\n") if st == 0 else ""
            ops.append(Op(tr_wrap("s_waitcnt vmcnt(0) lgkmcnt(0)\n" + gt + "s_barrier"), "S", 63, lo=63, hard=63, after=list(ops)))
            schedule(a, mfmas(st, 0, isv), ops)
            rd = spread(mix(xreads(1 - st), wrd(1 - st, range(4))), "M", 1, 54)
            pre = []
            if st == 0:
                pre = [Op("s_cmp_ge_u32 s49, 1024\ns_cselect_b32 s18, 0, s18\ns_cselect_b32 s22, 0, s22", "S", 0, hard=0)]
            dm, dl = grp_sched([dma_grp(st, g) for g in range(4)], 1, ENV("GD1", 56), after=pre)
            sig = when("s_cmp_eq_u32 s51, s53", one_lane(f"buffer_atomic_add v{ONE}, v{ZERO}, s[24:27], 0 offen sc1"), 58, after=dl)
            ops = rd + pre + dm + [sig]
            cnt_after = [sig]
            p_ = when("s_cmp_eq_u32 s51, s63", pf, 59, after=dl)
            ops.append(p_)
            cnt_after.append(p_)
            if st == 1:
                p_ = when("s_cmp_eq_u32 s51, 5", cpf, 60, after=dl)
            else:
                p_ = when("s_cmp_eq_u32 s51, 6", "\n".join(g[0] + "\ns_nop 0\n" + "\n".join(g[1]) + "\n" + g[2] for g in (wdma(0), wdma(1))), 60, after=dl)
            ops.append(p_)
            cnt_after.append(p_)
            ops.append(Op("s_add_u32 s51, s51, 1", "S", 62, after=cnt_after))
            ops.append(Op("s_waitcnt lgkmcnt(0)", "S", 63, lo=63, hard=63, after=rd))
            schedule(a, mfmas(st, 1, isv), ops)
        a(f"s_branch {loop}")
        a.label(last)
        stamp(a, 2)
        seq = [(c, j) for j in range(8) for c in range(4)] if isv else [(c, j) for c in range(4) for j in range(8)]
        mf, ops = [], []
        done = {}
        tuse = []
        for pos, (c, j) in enumerate(seq):
            n = pair_n(c, j, isv)
            for i in (2 * c, 2 * c + 1):
                kss = (1, 0) if i % 2 else (0, 1)
                mf += mf2(j, i, 1, isv, kss) if isv else mf2(i, j, 1, isv, kss)
            g0 = 4 * pos + 3 + 6
            d = PK + 4 * n
            if n < 24:
                x, y = 64 + 4 * n, 160 + 4 * n
                tx = [f"v_cvt_pk_bf16_f32 v{d}, v{x}, v{x+1}", f"v_cvt_pk_bf16_f32 v{d+1}, v{x+2}, v{x+3}",
                      f"v_cvt_pk_bf16_f32 v{d+2}, v{y}, v{y+1}", f"v_cvt_pk_bf16_f32 v{d+3}, v{y+2}, v{y+3}"]
                o = spread(tx, "A", g0, g0 + 2)
            else:
                x = 128 + 8 * (n - 24)
                tx = [f"v_accvgpr_read_b32 v{PT+r}, a{x+r}" for r in range(8)]
                tx += [f"v_cvt_pk_bf16_f32 v{d+r}, v{PT+2*r}, v{PT+2*r+1}" for r in range(4)]
                o = spread(tx, "A", g0, g0 + 5)
                o[0].after += tuse + [done[n - 24]]
                tuse = [o[-1]]
            done[n] = o[-1]
            ops += o
        w47 = spread(wrd(1, range(4, 8)), "M", 1, 40)
        ld, ll = grp_sched([xloads(0), xloads(1), xloads(2), xloads(3)], 0, 30)
        ops += w47 + ld + [Op("s_waitcnt lgkmcnt(0)", "S", 60, lo=60, hard=62, after=w47)]
        prev_ = list(ll)
        for k_, n_ in enumerate(sorted(PRE, key=lambda n: done[n].want)):
            m_, l_, _ = kvstore(n_, "s[32:35]")
            w_ = ENV("PS0", 34) + k_ * (126 - ENV("PS0", 34)) / max(1, len(PRE))
            o1 = Op(m_, "S", w_ - 1, after=prev_)
            o2 = Op(l_[0], "V", w_, after=[o1, done[n_]])
            ops += [o1, o2]
            prev_ = [o2]
        bar = Op("s_waitcnt vmcnt(16)\ns_barrier", "S", 96, lo=96, after=ll)
        rd = spread(wreads(0, 0, 0), "M", 97, 120)
        rd[0].after.append(bar)
        ops += [bar] + rd
        schedule(a, mf, ops)
        if not isv:
            a(f"s_branch {joined}")
    a.label(joined)
    a.label("k12_qcode")
    a("s_mov_b64 s[48:49], s[32:33]")
    a("s_mov_b32 s51, 0x00020000")
    a("s_cmp_eq_u32 s45, 0")
    a("s_mov_b32 s50, s34")
    a("s_cselect_b32 s56, s30, -1")
    a("s_cselect_b32 s57, -1, s30")
    a(tr_wrap(f"s_waitcnt vmcnt({8 + len(PRE)}) lgkmcnt(0)"))

    NS = ENV("NS", 20)
    PSIG = ENV('PSIG', NS + 3)
    PPOLL = ENV("PPOLL", 27)
    assert PSIG % 2 == 1 and PPOLL % 2 == 1 and PSIG < PPOLL
    queue = ["W0"] * 4 + ["W1"] * 4 + ["X0"] * 4 + ["X1"] * 4 + ["X2"] * 4 + ["X3"] * 4 + ["L"] * len(PRE)

    def younger(tag):
        if tag not in queue:
            return 63
        return len(queue) - 1 - max(i for i, t in enumerate(queue) if t == tag)

    kvsrd = ["s_lshl_b32 s31, s28, 14", "s_add_u32 s16, s6, s31\ns_addc_u32 s17, s7, 0",
             f"s_add_u32 s20, s16, 0x{VF_OFF:x}\ns_addc_u32 s21, s17, 0", f"s_add_u32 s16, s16, 0x{KF_OFF:x}\ns_addc_u32 s17, s17, 0",
             "s_and_b32 s17, s17, 0xffff", "s_and_b32 s21, s21, 0xffff", "s_lshl_b32 s31, s29, 20", "s_sub_u32 s18, 0xf84000, s31",
             "s_mov_b32 s22, s18",
             f"s_add_u32 s24, s6, 0x{KVC_OFF:x}\ns_addc_u32 s25, s7, 0", "s_and_b32 s25, s25, 0xffff", "s_mov_b32 s26, 4096"]

    def kdma():
        return ("s_mov_b32 m0, s34", [f"buffer_load_dwordx4 v{V_LANE16}, s[16:19], s32 offen offset:{i*1024}{LDF} lds" for i in range(4)],
                "s_add_u32 s32, s32, 0x80000\ns_add_u32 s34, s34, 0x4000")

    def vdma():
        return ("s_mov_b32 m0, s35", [f"buffer_load_dwordx4 v{V_LANE16}, s[20:23], s33 offen offset:{i*1024}{LDF} lds" for i in range(4)],
                "s_add_u32 s33, s33, 0x80000\ns_add_u32 s35, s35, 0x4000")

    NL = ENV('NL', 29)
    NE0 = (NS * NR) // NL
    sn, sl_, nx, nw = NE0, 0, 4, 2
    assert NL <= PPOLL + 2
    S0 = ENV("S0", 0)
    for ks in range(32):
        st, sp = ks // 2, ks % 2
        ops = []
        rd = []
        if ks < 31:
            rd = spread(wreads(st, 1, 1) if sp == 0 else wreads(st + 1, 0, 0), "M", 1, 22)
        ops += rd
        grps, tags = [], []
        while nw < 16 and ((sp == 1 and nw <= st + DW) or (ks == 0 and nw < DW)):
            grps.append(wdma(nw)); tags.append(f"W{nw}"); nw += 1
        for _ in range(2):
            if nx < 32 and nx <= ks + DX:
                grps.append(xloads(nx)); tags.append(f"X{nx}"); nx += 1
        while sl_ < NR and sl_ < ((ks + 1) * NR) // NL:
            grps.append(kvstore(REST[sl_], "s[48:51]")); tags.append("L"); sl_ += 1
        early = []
        while ks < NS and sn < NR and sn < NE0 + ((ks + 1) * (NR - NE0) + NS - 1) // NS:
            m_, l_, _ = kvstore(REST[sn], "s[48:51]")
            early += [m_, l_[0]]
            sn += 1
        head = []
        if ks == 0:
            ops += spread(kvsrd, "S", 6, 30)
        if ks == PSIG:
            head = [when("s_cmp_eq_u32 s56, 0", one_lane(f"buffer_atomic_add v{ONE}, v{ZERO}, s[24:27], s54 offen sc1"), 0)]
            ops += spread(k2.kv_first(), "S", 8, 20)
        if ks == 24:
            ops.append(Op("v_add_co_u32 v2, vcc, 0x4000, v2\ns_nop 1\nv_addc_co_u32 v3, vcc, 0, v3, vcc\n" + cpf, "B", 29))
        if ks == PPOLL:
            head = [when("s_cmp_eq_u32 s30, 0", f"buffer_load_dword v{VPOLL}, v{ZERO}, s[24:27], s55 offen sc1", 0)]
            qpoll = len(queue)
        if ks == PPOLL + 2:
            grps += [kdma(), kdma()]; tags += ["K0", "K1"]
        if ks == PPOLL + 3:
            grps += [vdma(), kdma()]; tags += ["V0", "K2"]
        if ks == PPOLL + 4:
            grps += [vdma()]; tags += ["V1"]
        ops += head
        if grps:
            g, gl_ = grp_sched(grps, 1, 27, after=head)
            ops += g
        if ks == NS - 1:
            early.append("s_mov_b32 s50, 0")
        if early:
            ops.append(when("s_cmp_eq_u32 s45, 0", "\n".join(early), 29, after=gl_))
        for gr, tg in zip(grps, tags):
            queue += [tg] * len(gr[1])
        if ks == NS - 1:
            assert sn == NR and sl_ == NE0
            qearly = len(queue)
        if ks < 31:
            nk = ks + 1
            wv = younger(f"W{nk // 2 + 1}") if nk % 2 else younger(f"X{nk + 1}")
            if nk == PSIG:
                wv = min(wv, len(queue) - qearly)
            wv = min(wv, 63)
            prevw = wv
            wtxt = f"s_waitcnt vmcnt({wv}) lgkmcnt(0)"
            if ks == PPOLL + 1:
                ops.append(when("s_cmp_eq_u32 s30, 0", f"s_waitcnt vmcnt({len(queue) - qpoll})\n" + spin_text(a, "s55", 2), 29, lo=28, after=[o for o in ops if o.cls == "V"]))
            if nk % 2:
                wtxt = tr_wrap(wtxt + "\ns_barrier") if nk % 4 == 1 else wtxt + "\ns_barrier"
            ops.append(Op(wtxt, "S", 31, lo=31, hard=31, after=[o for o in ops if o.cls in "MVB"]))
        mf = []
        for db, qb, k2_, f_ in snake(range(4 * sp, 4 * sp + 4), range(4), 2):
            k, c = qacc(db, qb)
            r = f"{k}[{c}:{c+3}]"
            mf.append(mfma16(r, aq(fw(db, k2_)), aq(XS(2 * st + k2_) + 4 * qb), "0" if (st == 0 and f_) else r))
        schedule(a, mf, ops)
    assert PPOLL + 4 <= 31
    stamp(a, 3)
    assert younger("L") >= 8
    a("s_add_u32 s3, s54, 64")
    a("s_add_u32 s5, s55, 64")
    a("s_mov_b32 s63, s57")
    late = dict(
        sig=when("s_cmp_eq_u32 s63, 0", one_lane(f"buffer_atomic_add v{ONE}, v{ZERO}, s[24:27], s3 offen sc1"), 0).text,
        poll=lambda: when("s_cmp_eq_u32 s30, 0", "buffer_load_dword v58, v59, s[24:27], s5 offen sc1", 2),
        gate=lambda **kw: when("s_cmp_eq_u32 s30, 0", "s_waitcnt vmcnt(0)\n" + spin_text(a, "s5", 14, 58, 59), 29, **kw))
    attention_phase(a, end, 0, qacc, late, stubs=stubs, next_code='op_head' if fuse else (None if os.environ.get('WHICH') == 'k12' else 'k3_kernel'), when=when if fuse else None, ffn=ffn)
    a.end_kernel(name, 256, 256)
    a.launch(name, 256, 256, 163840)
```

```python
from common import *
import common, os
import oproj
from oproj import Z, ONE, one_lane

NSL = 224
SPIN_MAX = 1 << 20
GL = 65536
DL_ = 131072
XL = 4096
MISC = XL + 4096
P64, PV64 = 94, 95
NEARLY = int(os.environ.get("FNE", "0"))
POLL64 = f"buffer_load_dword v{PV64}, v{P64}, s[16:19], 0 offen sc1"


def wgrp(k):
    m, hf = k // 2, k % 2
    t = [f"s_lshl_b32 s40, s30, 13", f"s_add_u32 m0, s40, {GL + m*32768 + hf*4096}", f"s_add_u32 s41, s3, {m*(8 << 20) + hf*4096}"]
    t += [f"buffer_load_dwordx4 v1, s[44:47], s41 offen offset:{i*1024} sc1 lds" for i in range(4)]
    return "\n".join(t)


def setup(a):
    a(f"v_lshlrev_b32 v{P64}, 3, v1")
    a("s_and_b32 s35, s2, 7")
    a("s_mul_i32 s35, s35, 28")
    a("s_lshr_b32 s31, s2, 3")
    a("s_add_u32 s55, s35, s31")
    a("s_lshl_b32 s3, s55, 15")
    a("s_lshl_b32 s31, s30, 13")
    a("s_add_u32 s3, s3, s31")
    a(f"s_add_u32 s35, s31, {GL}")


def gate_text(a):
    lp, ok = a.uid("ff_spin"), a.uid("ff_ok")
    return "\n".join([f"s_mov_b32 s34, {SPIN_MAX}", f"{lp}:", f"v_cmp_gt_u32 vcc, 4, v{PV64}", f"s_cbranch_vccz {ok}",
                      "s_sub_u32 s34, s34, 1", f"s_cbranch_scc1 {ok}", "s_sleep 4", POLL64, "s_waitcnt vmcnt(0)", f"s_branch {lp}", f"{ok}:",
                      f"s_add_u32 s44, s6, 0x{RPK_OFF:x}", "s_addc_u32 s45, s7, 0", "s_and_b32 s45, s45, 0xffff",
                      "s_cmp_ge_u32 s2, 224", f"s_cselect_b32 s46, 0, 0x{16 << 20:x}"])


THIN = int(os.environ.get("THIN", "0"))
THIN_TEXT = "\n".join(["s_mov_b32 m0, s35", "s_add_u32 s35, s35, 1024", "buffer_load_dwordx4 v1, s[44:47], s3 offen sc1 lds", "s_add_u32 s3, s3, 1024"])
THIN_FLIP = "\n".join([f"s_add_u32 s35, s35, {32768 - 8192}", f"s_add_u32 s3, s3, {(8 << 20) - 8192}"])


def early_text(p):
    return wgrp(p - 1) if p - 1 < NEARLY else ""


def wdown_loads(a):
    a(f"s_load_dwordx2 s[4:5], s[0:1], {ARG['wd']}")
    for r in range(4):
        a(f"v_mov_b32 v{12+r}, -1")
    a("s_waitcnt lgkmcnt(0)")


def wdown_seq(A, B, D):
    q = [("S", t) for t in ("s_and_b32 s32, s2, 7", "s_mul_i32 s32, s32, 28", "s_lshr_b32 s34, s2, 3", "s_add_u32 s32, s32, s34",
                            "s_lshl_b32 s32, s32, 15", "s_lshl_b32 s34, s30, 13", "s_add_u32 s32, s32, s34", f"s_mov_b32 s{D}, s4", f"s_mov_b32 s{D+3}, 0x00020000",
                            f"s_and_b32 s{D+1}, s5, 0xffff", f"s_cmp_ge_u32 s2, 224\ns_cselect_b32 s{D+2}, 0, 7340032")]
    for hf in range(2):
        q.append(("M0", f"s_add_u32 m0, s34, {DL_ + hf*4096}"))
        q += [("V", f"buffer_load_dwordx4 v1, s[{D}:{D+3}], s32 offen offset:{i*1024} lds") for i in range(4)]
        q.append(("S", "s_add_u32 s32, s32, 4096"))
    return [(c, t.replace('s32', A).replace('s34', B)) for c, t in q]


def poison_seq(A, B):
    q = [("S", t) for t in ("s_mov_b32 s26, -1", "s_lshl_b32 s32, s2, 14", "s_add_u32 s32, s32, s60", f"s_add_u32 s34, s32, 0x{XCH_OFF - CTX_OFF:x}")]
    q += [("V", f"buffer_store_dwordx4 v[12:15], v1, s[24:27], s34 offen offset:{i*1024} sc1") for i in range(4)]
    q += [("S", "s_lshr_b32 s32, s32, 2"), ("S", f"s_add_u32 s34, s32, 0x{PART_OFF - CTX_OFF:x}")]
    q += [("V", "buffer_store_dwordx4 v[12:15], v1, s[24:27], s34 offen sc1")]
    q.append(("S", f"s_mov_b32 s26, 0x{16 << 20:x}"))
    return [(c, t.replace('s32', A).replace('s34', B)) for c, t in q]


def seq_ops(q, lo, hi, after=()):
    from sched import Op
    ops, prev, m0 = [], list(after), None
    for k, (c, t) in enumerate(q):
        w = lo + (hi - lo) * k / len(q)
        o = Op(t, "S" if c == "M0" else c, w, lo=lo, after=prev, prev_gap=[m0] if (c == "V" and m0) else [])
        if c == "M0":
            m0 = o
        ops.append(o)
        prev = [o]
    return ops


def seq_text(q):
    return "\n".join(t + ("\ns_nop 0" if c == "M0" else "") for c, t in q)


def rest(a):
    WD = 96
    a("s_lshl_b32 s41, s30, 9")
    a(f"s_add_u32 s41, s41, {DL_}")
    a("v_lshrrev_b32 v9, 1, v1")
    a("v_add_u32 v9, s41, v9")
    for i in range(16):
        a(f"ds_read_b64 v[{WD+2*i}:{WD+2*i+1}], v9 offset:{i*2048}")
    a("s_mov_b32 s54, 0x05040100")
    a("s_mov_b32 s53, 0x07060302")
    a("s_waitcnt lgkmcnt(0)")
    WP = 144
    for j in range(8):
        r0, r1 = WD + 4 * j, WD + 4 * j + 2
        for h in range(2):
            a(f"v_perm_b32 v{WP+4*j+2*h}, v{r1+h}, v{r0+h}, s54")
            a(f"v_perm_b32 v{WP+4*j+2*h+1}, v{r1+h}, v{r0+h}, s53")


def top2_merge(a, m1, m2, t1, t2):
    a(f"v_max_f32 v{t2}, v{t2}, v{m2}")
    a(f"v_med3_f32 v{m2}, v{m1}, v{t1}, v{t2}")
    a(f"v_max_f32 v{m1}, v{m1}, v{t1}")


def tail(a):
    P = lambda r: f"v[{r}:{r+1}]"
    fst = (lambda i: stamp(a, i)) if os.environ.get("FST") else (lambda i: None)
    ST, VX, VO, WD, WP, T2, KP = 16, 40, 128, 96, 144, 176, 216
    TID, LANE, L32, HALF, L16B = 2, 3, 4, 5, 7
    a(f"s_load_dwordx2 s[42:43], s[0:1], {ARG['out']}")
    a(f"s_load_dwordx2 s[56:57], s[0:1], {ARG['wr']}")
    a.srd_off(16, 6, GBC_OFF, 4096)
    a(f"v_lshrrev_b32 v{LANE}, 4, v1")
    a(f"v_lshl_add_u32 v{TID}, s30, 6, v{LANE}")
    a(f"v_and_b32 v{L32}, 31, v{LANE}")
    a(f"v_lshrrev_b32 v{HALF}, 5, v{LANE}")
    a(f"v_lshlrev_b32 v{L16B}, 4, v{L32}")
    a(f"v_and_b32 v8, 15, v{LANE}")
    a("v_lshlrev_b32 v6, 7, v8")
    a("s_bfe_u32 s31, s2, 0x20003")
    a("s_lshl_b32 s31, s31, 7")
    a(f"v_lshlrev_b32 v12, 9, v{LANE}")
    a(f"v_and_b32 v14, 3, v{LANE}")
    a("v_lshlrev_b32 v14, 7, v14")
    a("s_and_b32 s59, s2, 7")
    a("s_lshl_b32 s59, s59, 9")
    a("s_setreg_imm32_b32 hwreg(HW_REG_MODE, 4, 2), 3")
    a("s_waitcnt vmcnt(0) lgkmcnt(0)")
    a("s_barrier")
    ns = a.uid("ff_nosig")
    a("s_cmp_lg_u32 s30, 0")
    a(f"s_cbranch_scc1 {ns}")
    a(f"s_mov_b64 exec, 0xff\nbuffer_atomic_add v{ONE}, v12, s[16:19], s31 offen sc1\ns_mov_b64 exec, -1")
    a.label(ns)
    if not os.environ.get('LST'):
        stamp(a, 1)
    for k in range(4):
        if k:
            a("s_waitcnt vmcnt(0)")
        a(wgrp(k))
        if k == 0:
            rest(a)
    a(f"s_mov_b32 s34, {WRSUM_OFF - STATS_OFF + 4}")
    a.srd(36, 42, 4 << 20)
    a.srd_off(48, 6, PART_OFF, NSL * 4096)
    a(f"v_lshlrev_b32 v10, 5, v{TID}")
    a(f"v_lshl_add_u32 v11, s30, 1, v{HALF}")
    a("s_lshl_b32 s31, s2, 3")
    a("v_add_u32 v11, s31, v11")
    a(f"v_lshl_add_u32 v0, v11, 11, v{L16B}" if not common.TRACE else "s_nop 0")
    go, lp = a.uid("ff_go"), a.uid("ff_poll")
    a("s_cmp_lg_u32 s30, 0")
    a(f"s_cbranch_scc1 {go}")
    a(f"s_mov_b32 s52, {SPIN_MAX}")
    a.label(lp)
    a("buffer_load_dword v13, v14, s[16:19], s59 offen sc1")
    a("s_sub_u32 s52, s52, 1")
    a(f"s_cbranch_scc1 {go}")
    a("s_waitcnt vmcnt(0)")
    a("v_cmp_gt_u32 vcc, 64, v13")
    a(f"s_cbranch_vccz {go}")
    a(f"s_sleep {os.environ.get('FSL', '4')}")
    a(f"s_branch {lp}")
    a.label(go)
    a("s_barrier")
    if not os.environ.get('LST'):
        stamp(a, 2)
    for j in range(3):
        a(f"s_mov_b32 s31, {j*8192}")
        a(f"buffer_load_dwordx4 v[{ST+8*j}:{ST+8*j+3}], v10, s[32:35], s31 offen sc1")
        a(f"buffer_load_dwordx4 v[{ST+8*j+4}:{ST+8*j+7}], v10, s[32:35], s31 offen offset:16 sc1")
    a(f"s_mov_b32 s31, {WRSUM_OFF - STATS_OFF}")
    a(f"buffer_load_dword v10, v{Z}, s[32:35], s31 offen sc1")
    a("s_mov_b32 s52, 0x3a800000")
    a("s_mov_b32 s53, 0x3a800000")
    a("s_mov_b32 s54, 0x7ff")
    a("v_mov_b32 v14, 0x3727c5ac")
    a("v_mov_b32 v15, v14")
    a("v_mov_b32 v12, 0xff800000")
    a("v_mov_b32 v13, v12")
    a("s_waitcnt vmcnt(0)")
    a("v_sub_f32 v56, 0, v10")
    a("v_sub_f32 v57, 0, v10")
    for i in range(0, 8, 2):
        s1, s2, s3 = ST + i, ST + 8 + i, ST + 16 + i
        a(f"v_pk_mul_f32 {P(s1)}, {P(s1)}, s[52:53]")
        a(f"v_pk_fma_f32 {P(s2)}, {P(s2)}, s[52:53], {P(14)}")
        a(f"v_pk_fma_f32 {P(s3)}, {P(s1)}, {P(56)}, {P(s3)}")
        a(f"v_pk_fma_f32 {P(s2)}, {P(s1)}, {P(s1)}, {P(s2)} neg_lo:[1,0,0] neg_hi:[1,0,0]")
    for i in range(8):
        a(f"v_max_f32 v{ST+8+i}, v14, v{ST+8+i}")
    for i in range(8):
        a(f"v_rsq_f32 v{ST+8+i}, v{ST+8+i}")
    for i in range(0, 8, 2):
        a(f"v_pk_mul_f32 {P(ST+16+i)}, {P(ST+16+i)}, {P(ST+8+i)}")
    for i in range(8):
        a(f"v_bfi_b32 v{ST+16+i}, s54, {i}, v{ST+16+i}")
        a(f"v_med3_f32 v13, v12, v13, v{ST+16+i}")
        a(f"v_max_f32 v12, v12, v{ST+16+i}")
    a(f"v_lshl_or_b32 v12, v{TID}, 3, v12")
    a(f"v_lshl_or_b32 v13, v{TID}, 3, v13")
    for dpp in ("quad_perm:[1,0,3,2]", "quad_perm:[2,3,0,1]", "row_half_mirror", "row_mirror"):
        a("s_nop 1")
        a(f"v_mov_b32_dpp v14, v12 {dpp} row_mask:0xf bank_mask:0xf")
        a(f"v_mov_b32_dpp v15, v13 {dpp} row_mask:0xf bank_mask:0xf")
        top2_merge(a, 12, 13, 14, 15)
    for sw in ("v_permlane16_swap_b32", "v_permlane32_swap_b32"):
        a("v_mov_b32 v14, v12")
        a("v_mov_b32 v15, v13")
        a("s_nop 1")
        a(f"{sw} v12, v14")
        a(f"{sw} v13, v15")
        a("s_nop 1")
        top2_merge(a, 12, 13, 14, 15)
    a("s_lshl_b32 s31, s30, 3")
    a(f"s_add_u32 s31, s31, {MISC}")
    a("v_mov_b32 v14, s31")
    a("ds_write_b64 v14, v[12:13]")
    a(f"v_mov_b32 v14, {MISC}")
    a("s_waitcnt lgkmcnt(0)")
    a("s_barrier")
    a(f"ds_read_b128 v[{ST}:{ST+3}], v14")
    a(f"ds_read_b128 v[{ST+4}:{ST+7}], v14 offset:16")
    a(f"v_cmp_eq_u32 vcc, 0, v{HALF}")
    a("s_waitcnt lgkmcnt(0)")
    top2_merge(a, ST, ST + 1, ST + 2, ST + 3)
    top2_merge(a, ST + 4, ST + 5, ST + 6, ST + 7)
    top2_merge(a, ST, ST + 1, ST + 4, ST + 5)
    a(f"v_and_b32 v{ST}, 0x7ff, v{ST}")
    a(f"v_and_b32 v{ST+1}, 0x7ff, v{ST+1}")
    a(f"v_cndmask_b32 v15, v{ST+1}, v{ST}, vcc")
    a(f"v_lshl_add_u32 v12, v15, 11, v{L16B}")
    for i in range(4):
        a(f"buffer_load_dwordx4 v[{VX+4*i}:{VX+4*i+3}], v12, s[24:27], 0 offen offset:{i*512} sc1")
    for i in range(4):
        a(f"buffer_load_dwordx4 v[{VO+4*i}:{VO+4*i+3}], v0, s[24:27], 0 offen offset:{i*512} sc1")
    a(f"v_cmp_eq_u32 vcc, v{ST}, v11")
    a(f"v_cmp_eq_u32 s[52:53], v{ST+1}, v11")
    a("v_mov_b32 v13, 0x7fffffff")
    a("s_or_b64 vcc, vcc, s[52:53]")
    a("v_cndmask_b32 v0, v0, v13, vcc")
    a(f"v_lshl_add_u32 v12, v{HALF}, 11, v{L16B}")
    a(f"v_add_u32 v12, {XL}, v12")
    if not os.environ.get('LST'):
        stamp(a, 3)
    a("s_mov_b32 s58, 0")
    a("s_waitcnt vmcnt(8)")
    a(f"v_lshlrev_b32 v14, 3, v{LANE}")
    a("s_lshl_b32 s54, s30, 13")
    a(f"s_add_u32 s54, s54, {GL}")
    a("v_add_u32 v14, s54, v14")
    for m in range(2):
        for s in range(8):
            b = (m * 8 + s) * 4
            a(f"ds_read_b64_tr_b16 a[{b}:{b+1}], v14 offset:{m*32768 + s*1024}")
            a(f"ds_read_b64_tr_b16 a[{b+2}:{b+3}], v14 offset:{m*32768 + s*1024 + 512}")
    a("s_waitcnt vmcnt(4)")
    lln, lown, lred, lred2, fin = (a.uid(x) for x in ("ff_ln", "ff_own", "ff_red", "ff_red2", "ff_fin"))
    a.label(lln)
    ln_rows_half_wave(a, VX, T2, keep=KP)
    a("s_cmp_lg_u32 s58, 0")
    a(f"s_cbranch_scc1 {lown}")
    for i in range(4):
        a(f"ds_write_b128 v12, v[{VX+4*i}:{VX+4*i+3}] offset:{i*512}")
    a("s_cmp_ge_u32 s2, 224")
    a(f"s_cbranch_scc1 {lred}")
    fst(4)
    a(f"v_lshrrev_b32 v12, 4, v{LANE}")
    a(f"v_and_b32 v13, 1, v{LANE}")
    a("v_lshlrev_b32 v13, 11, v13")
    a("v_lshl_add_u32 v13, v12, 3, v13")
    a("s_lshl_b32 s54, s30, 9")
    a(f"s_add_u32 s54, s54, {XL}")
    a("v_add_u32 v13, s54, v13")
    for s in range(8):
        a(f"ds_read_b64 a[{64+4*s}:{65+4*s}], v13 offset:{s*64}")
        a(f"ds_read_b64 a[{66+4*s}:{67+4*s}], v13 offset:{s*64+32}")
    a("v_lshlrev_b32 v13, 6, v8")
    a("v_lshl_add_u32 v13, v12, 4, v13")
    a("s_lshl_b32 s54, s30, 11")
    a(f"s_add_u32 s54, s54, {MISC + 256}")
    a("v_add_u32 v13, s54, v13")
    a("s_waitcnt lgkmcnt(0)")
    for s in range(8):
        for m in range(2):
            b = (m * 8 + s) * 4
            c = f"v[{16+4*m}:{19+4*m}]"
            a(mfma16(c, f"a[{b}:{b+3}]", f"a[{64+4*s}:{67+4*s}]", "0" if s == 0 else c))
    a("s_nop 7")
    a("ds_write_b128 v13, v[16:19]")
    a("ds_write_b128 v13, v[20:23] offset:1024")
    a(f"v_lshlrev_b32 v13, 2, v{L32}")
    a(f"v_add_u32 v13, {MISC + 256}, v13")
    a("s_waitcnt lgkmcnt(0)")
    a("s_barrier")
    for w in range(4):
        a(f"ds_read2st64_b32 v[{16+2*w}:{17+2*w}], v13 offset0:{w*8} offset1:{w*8 + 4}")
    a("s_waitcnt lgkmcnt(0)")
    a(f"v_pk_add_f32 {P(16)}, {P(16)}, {P(20)}")
    a(f"v_pk_add_f32 {P(18)}, {P(18)}, {P(22)}")
    a(f"v_pk_add_f32 {P(16)}, {P(16)}, {P(18)}")
    a("v_cvt_pk_bf16_f32 v16, v16, v17")
    a("v_and_b32 v20, 0xffff0000, v16")
    a("v_lshlrev_b32 v16, 16, v16")
    a("v_mul_f32 v17, 0xbfb8aa3b, v16")
    a("v_exp_f32 v17, v17")
    a("s_lshl_b32 s54, s55, 12")
    a("v_add_f32 v17, 1.0, v17")
    a("v_rcp_f32 v17, v17")
    a("s_add_u32 s53, s54, 4096")
    a("v_mul_f32 v16, v16, v17")
    a("v_cvt_pk_bf16_f32 v16, v16, v16")
    a("v_and_b32 v16, 0xffff0000, v16")
    a("v_mul_f32 v16, v16, v20")
    a("s_nop 1")
    a("v_mov_b32_dpp v17, v16 quad_perm:[1,0,3,2] row_mask:0xf bank_mask:0xf")
    a("v_cvt_pk_bf16_f32 v16, v16, v17")
    a(f"v_lshlrev_b32 v13, 4, v{TID}")
    for t in range(2):
        for j in range(8):
            a(f"v_readlane_b32 s{8 + t*8 + j}, v16, {t*16 + 2*j}")
    ACC = 24
    for t in range(2):
        for j in range(8):
            for e in range(4):
                d = ACC + t * 4 + e
                a(f"v_dot2_f32_bf16 v{d}, v{WP+4*j+e}, s{8 + t*8 + j}, {'0' if j == 0 else 'v%d' % d}")
    a("s_nop 2")
    for r in range(4):
        a(f"v_cvt_pk_bf16_f32 v{ACC+r}, v{ACC+2*r}, v{ACC+2*r+1}")
    for r in range(4):
        a(f"v_min_u32 v{ACC+r}, -2, v{ACC+r}")
    a(f"buffer_store_dwordx4 v[{ACC}:{ACC+3}], v13, s[48:51], s54 offen sc1")
    fst(5)
    a("s_waitcnt vmcnt(1)")
    for i in range(16):
        a(f"v_mov_b32 v{VX+i}, v{VO+i}")
    a("s_mov_b32 s58, 1")
    a(f"s_branch {lln}")
    a.label(lown)
    for i in range(16):
        a(f"v_lshlrev_b32 v{T2+2*i}, 16, v{VX+i}")
        a(f"v_and_b32 v{T2+2*i+1}, 0xffff0000, v{VX+i}")
    for i in range(0, 32, 2):
        a(f"v_pk_add_f32 v[{T2+i}:{T2+i+1}], v[{T2+i}:{T2+i+1}], v[{KP+i}:{KP+i+1}]")
    for i in range(16):
        a(f"v_cvt_pk_bf16_f32 v{VX+i}, v{T2+2*i}, v{T2+2*i+1}")
    for i in range(4):
        a(f"buffer_store_dwordx4 v[{VX+4*i}:{VX+4*i+3}], v0, s[36:39], 0 offen offset:{i*512} sc1")
    a("s_cmp_ge_u32 s2, 224")
    a(f"s_cbranch_scc1 {lred2}")
    a(f"s_branch {fin}")
    a.label(lred)
    a("s_sub_u32 s40, s2, 224")
    a.srd(8, 56, 2048)
    for i in range(4):
        a(f"buffer_load_dwordx4 v[{WD+4*i}:{WD+3+4*i}], v{L16B}, s[8:11], 0 offen offset:{i*512}")
    a(f"v_and_b32 v8, 7, v{LANE}")
    a("s_lshl_b32 s47, s40, 6")
    a("v_lshl_add_u32 v9, v8, 3, s47")
    a(f"v_lshl_add_u32 v12, v{HALF}, 11, v9")
    a(f"v_add_u32 v12, {XL}, v12")
    a("v_lshl_add_u32 v9, v15, 11, v9")
    a("s_waitcnt lgkmcnt(0)")
    a("ds_read_b64 v[32:33], v12")
    a("buffer_load_dwordx2 v[34:35], v9, s[24:27], 0 offen sc1")
    a(f"v_lshrrev_b32 v10, 3, v{TID}")
    a("v_lshlrev_b32 v10, 12, v10")
    a("v_lshl_add_u32 v10, v8, 4, v10")
    a("s_lshl_b32 s47, s40, 7")
    a("s_waitcnt vmcnt(1)")
    a(f"v_dot2_f32_bf16 v36, v{VX}, v{WD}, 0")
    for i in range(1, 16):
        a(f"v_dot2_f32_bf16 v36, v{VX+i}, v{WD+i}, v36")
    a("s_nop 2")
    half_wave_sum(a, 36, 13)
    a("v_cvt_pk_bf16_f32 v36, v36, v36")
    a("v_and_b32 v36, 0xffff0000, v36")
    a("v_mul_f32 v36, 0xbfb8aa3b, v36")
    a("v_exp_f32 v36, v36")
    a("s_nop 0")
    a("v_add_f32 v36, 1.0, v36")
    a("v_rcp_f32 v36, v36")
    a("s_nop 0")
    a("v_cvt_pk_bf16_f32 v36, v36, v36")
    a("v_and_b32 v36, 0xffff0000, v36")
    for i in range(16):
        a(f"v_mov_b32 v{VX+i}, v{VO+i}")
    a("s_mov_b32 s58, 1")
    a(f"s_branch {lln}")
    a.label(lred2)
    fst(4)
    go, lp = a.uid("ff_rgo"), a.uid("ff_rpoll")
    R0, A0 = 96, 128
    a(f"s_mov_b32 s52, {SPIN_MAX}")
    a.label(lp)
    a("s_mov_b32 s53, s47")
    for i in range(7):
        a(f"buffer_load_dwordx4 v[{R0+4*i}:{R0+3+4*i}], v10, s[48:51], s53 offen sc1")
        a("s_add_u32 s53, s53, 0x20000")
    a("v_mov_b32 v13, 0")
    for i in range(7):
        a(f"s_waitcnt vmcnt({6 - i})")
        a(f"v_max3_u32 v13, v13, v{R0+4*i}, v{R0+4*i+1}")
        a(f"v_max3_u32 v13, v13, v{R0+4*i+2}, v{R0+4*i+3}")
    a("s_sub_u32 s52, s52, 1")
    a(f"s_cbranch_scc1 {go}")
    a("v_cmp_eq_u32 vcc, -1, v13")
    a(f"s_cbranch_vccnz {lp}")
    a.label(go)
    fst(5)
    a("s_mov_b32 s52, 0x00003f80")
    a("s_mov_b32 s53, 0x3f800000")
    for i in range(7):
        for r in range(4):
            for e in range(2):
                d = A0 + 2 * r + e
                a(f"v_dot2_f32_bf16 v{d}, v{R0+4*i+r}, s{52+e}, {'0' if i == 0 else 'v%d' % d}")
    a("s_nop 2")
    for r in range(4):
        a(f"v_permlane32_swap_b32 v{A0+r}, v{A0+4+r}")
    a("s_nop 1")
    for r in range(4):
        a(f"v_add_f32 v{A0+r}, v{A0+r}, v{A0+4+r}")
    a("s_nop 1")
    for r in range(4):
        a(f"v_add_f32_dpp v{A0+r}, v{A0+r}, v{A0+r} row_ror:8 row_mask:0xf bank_mask:0xf")
    for r in range(4):
        a(f"v_mov_b32 v{A0+4+r}, v{A0+r}")
    a("s_nop 1")
    for r in range(4):
        a(f"v_permlane16_swap_b32 v{A0+r}, v{A0+4+r}")
    a("s_nop 1")
    for r in range(4):
        a(f"v_add_f32 v{A0+r}, v{A0+r}, v{A0+4+r}")
    fst(6)
    a("v_lshlrev_b32 v14, 4, v8")
    a(f"v_lshl_add_u32 v14, v{HALF}, 7, v14")
    a("s_lshl_b32 s31, s30, 8")
    a("v_add_u32 v13, s31, v14")
    a(f"ds_write_b128 v13, v[{A0}:{A0+3}]")
    a("s_waitcnt lgkmcnt(0)")
    a("s_barrier")
    for w in range(4):
        a(f"ds_read_b128 v[{R0+4*w}:{R0+3+4*w}], v14 offset:{w*256}")
    a("s_waitcnt lgkmcnt(0)")
    for w in range(1, 4):
        a(f"v_pk_add_f32 {P(R0)}, {P(R0)}, {P(R0+4*w)}")
        a(f"v_pk_add_f32 {P(R0+2)}, {P(R0+2)}, {P(R0+2+4*w)}")
    for h in range(2):
        y = R0 + 2 * h
        a(f"v_cvt_pk_bf16_f32 v20, v{y}, v{y+1}")
        a("v_lshlrev_b32 v21, 16, v20\nv_and_b32 v22, 0xffff0000, v20")
        a("v_mul_f32 v21, v36, v21\nv_mul_f32 v22, v36, v22")
        a("v_cvt_pk_bf16_f32 v20, v21, v22")
        a("v_lshlrev_b32 v21, 16, v20\nv_and_b32 v22, 0xffff0000, v20")
        a(f"v_lshlrev_b32 v23, 16, v{32+h}\nv_and_b32 v24, 0xffff0000, v{32+h}")
        a("v_add_f32 v21, v21, v23\nv_add_f32 v22, v22, v24")
        a("v_cvt_pk_bf16_f32 v20, v21, v22")
        a("v_lshlrev_b32 v21, 16, v20\nv_and_b32 v22, 0xffff0000, v20")
        a(f"v_lshlrev_b32 v23, 16, v{34+h}\nv_and_b32 v24, 0xffff0000, v{34+h}")
        a("v_add_f32 v21, v21, v23\nv_add_f32 v22, v22, v24")
        a(f"v_cvt_pk_bf16_f32 v{26+h}, v21, v22")
    a("s_cmp_lg_u32 s30, 0")
    a(f"s_cbranch_scc1 {fin}")
    a("s_mov_b32 exec_lo, 0xff")
    a("s_mov_b32 exec_hi, 0xff")
    a("buffer_store_dwordx2 v[26:27], v9, s[36:39], 0 offen sc1")
    a.label(fin)
    a("s_mov_b64 exec, -1")
```

```python
from common import *
import common, os
from sched import Op, spread, schedule
import k2
from k2 import vq, aq, V_LANE16, V_VV, V_NINF, attention_phase, LDF

SPIN_MAX = 1 << 20
KO = set(os.environ.get('KO', '').split(','))
NT = ' nt' if 'nt' in KO else ''
ENV = lambda k, d: int(os.environ.get(k, str(d)))

ZERO, ONE = 8, 9
XD, WD, XRD, WRD = 10, 18, 26, 28
QX, QWD, QWR = 36, 38, 42
VPF, VDUM, VPOLL, VXST, VLW, VLR = 50, 51, 52, 53, 54, 55
PT = 56
PK = 64
WRING = 98304


def spin_text(a, soff, target, VPOLL=VPOLL, ZERO=ZERO):
    ok, lp = a.uid("spin_ok"), a.uid("spin")
    return "\n".join([
        f"v_readfirstlane_b32 s31, v{VPOLL}", f"s_cmp_ge_u32 s31, {target}", f"s_cbranch_scc1 {ok}",
        f"s_mov_b32 s40, {SPIN_MAX}", f"{lp}:", "s_sleep 8",
        f"buffer_load_dword v{VPOLL}, v{ZERO}, s[24:27], {soff} offen sc1", "s_waitcnt vmcnt(0)",
        f"v_readfirstlane_b32 s31, v{VPOLL}", "s_sub_u32 s40, s40, 1", "s_cselect_b32 s31, -1, s31",
        f"s_cmp_lt_u32 s31, {target}", f"s_cbranch_scc1 {lp}", f"{ok}:"])


def one_lane(text):
    return f"s_mov_b64 exec, 1\n{text}\ns_mov_b64 exec, -1"


def gen_k12(a, name="k12_kernel", fuse=False, ffn=None):
    a.begin_kernel(name)
    end = a.uid("k12_end")
    stubs = []
    pst = (lambda i: stamp(a, i)) if "ptrace" in KO else (lambda i: None)

    def when(cmp_text, body, want, **kw):
        l, r = a.uid("k12_ool"), a.uid("k12_oolret")
        if "nosig" in KO and "s[24:27]" in body:
            body = "s_nop 0"
        stubs.append((l, body, r))
        return Op(f"{cmp_text}\ns_cbranch_scc1 {l}\n{r}:", "B", want, **kw)

    a("s_cmp_ge_u32 s2, 256")
    a(f"s_cbranch_scc1 {end}")
    stamp(a, 0)
    a(f"s_load_dwordx4 s[36:39], s[0:1], {ARG['x']}")
    a(f"s_load_dwordx4 s[40:43], s[0:1], {ARG['wuk']}")
    a(f"s_load_dwordx2 s[4:5], s[0:1], {ARG['wq']}")
    a(f"s_load_dwordx4 s[60:63], s[0:1], {ARG['dbg']}")
    if ENV("TOUCH", 1) >= 2:
        a(f"s_load_dwordx8 s[8:15], s[0:1], {ARG['wo']}")
        a(f"s_load_dwordx4 s[32:35], s[0:1], {ARG['wu']}")
        a(f"s_load_dwordx2 s[28:29], s[0:1], {ARG['out']}")
    CE = ENV("CE", 48)
    a("s_lshr_b32 s59, s2, 3")
    a("s_lshl_b32 s58, s59, 4")
    a("v_add_u32 v6, s58, v0")
    a(f"v_cmp_gt_u32 vcc, {CE}, v0")
    a(f"v_cmp_gt_u32 s[56:57], {CE + 16}, v0")
    a("s_nop 0")
    a("v_cndmask_b32 v6, v6, v0, vcc")
    code_addr(a, "k12_code0", 58, 6, 52)
    a.label("k12_code0")
    a("s_mov_b64 exec, s[56:57]")
    cs = a.uid("k12_nocode")
    a(f"s_cbranch_execz {cs}")
    a(f"global_load_dword v{VDUM}, v[58:59], off")
    a.label(cs)
    a("s_mov_b64 exec, -1")
    a("s_and_b32 s58, s2, 7")
    a("s_lshr_b32 s59, s2, 3")
    a("s_and_b32 s45, s59, 7")
    a("s_lshr_b32 s57, s59, 3")
    a("s_and_b32 s44, s57, 1")
    a("s_lshl_b32 s52, s58, 1")
    a("s_add_u32 s44, s44, s52")
    a("s_lshr_b32 s57, s57, 1")
    W, LN_ = 2, 3
    a(f"v_lshrrev_b32 v{W}, 6, v0")
    a(f"v_and_b32 v{LN_}, 63, v0")
    a(f"v_readfirstlane_b32 s30, v{W}")
    a(f"v_lshlrev_b32 v{V_LANE16}, 4, v{LN_}")
    VX, VT = 64, 80
    TOK, L32 = 60, 61
    a(f"v_lshrrev_b32 v{TOK}, 5, v{LN_}")
    a(f"v_lshl_add_u32 v{TOK}, v{W}, 1, v{TOK}")
    a(f"v_and_b32 v{L32}, 31, v{LN_}")
    a(f"v_lshlrev_b32 v6, 11, v{TOK}")
    a(f"v_lshl_add_u32 v62, v{L32}, 4, v6")
    a("s_lshl_b32 s52, s2, 14")
    a(f"v_lshrrev_b32 v56, 3, v{LN_}")
    a(f"v_and_b32 v57, 7, v{LN_}")
    a("v_lshrrev_b32 v58, 1, v56")
    a("v_xor_b32 v6, v57, v58")
    a("v_xor_b32 v7, 4, v6")
    a(f"v_lshl_add_u32 v58, v{W}, 6, v56")
    a("v_lshlrev_b32 v58, 10, v58")
    a("s_lshl_b32 s47, s45, 18")
    a("v_add_u32 v58, s47, v58")
    a(f"v_lshl_add_u32 v{XD}, v6, 4, v58")
    a(f"v_lshl_add_u32 v{XD+1}, v7, 4, v58")
    for i in range(7, -1, -1):
        a(f"v_add_u32 v{XD+i}, {i*8*1024 - (i%4)*1024}, v{XD + (i%2)}")
    a(f"v_lshrrev_b32 v6, 5, v{LN_}")
    a(f"v_bfe_u32 v7, v{LN_}, 1, 4")
    a(f"v_and_b32 v59, 1, v{LN_}")
    a(f"v_lshl_add_u32 v58, v{W}, 4, v6")
    a("v_lshlrev_b32 v58, 13, v58")
    a("v_lshl_add_u32 v58, v59, 4, v58")
    a("s_lshl_b32 s47, s44, 9")
    a("v_add_u32 v58, s47, v58")
    a("v_xor_b32 v7, v7, v6")
    for i in range(8):
        fx = ((2 * i) & 3) | ((((2 * i) >> 3) & 1) << 2)
        a(f"v_xor_b32 v6, {fx}, v7")
        a(f"v_lshl_add_u32 v6, v6, 5, v58")
        a(f"v_add_u32 v{WD+i}, {2*i*8192 - (i%4)*1024}, v6")
    XB, WB = 0, 65536
    a("s_lshl_b32 s48, s30, 13")
    a("s_mov_b32 s49, 0")
    a("s_mov_b32 s50, 0")
    pst(1)
    a("s_waitcnt lgkmcnt(0)")
    a.srd(24, 36, 4 << 20)
    XP = ENV("XP", 1)

    def xrows():
        for i in range(4):
            a(f"buffer_load_dwordx4 v[{VX+4*i}:{VX+4*i+3}], v62, s[24:27], s52 offen offset:{i*512}{NT}")
    if XP == 0:
        xrows()
    a.srd(16, 38, 2 << 20)
    a("s_cmp_eq_u32 s57, 0")
    a("s_cselect_b32 s20, s40, s42")
    a("s_cselect_b32 s21, s41, s43")
    a("s_and_b32 s21, s21, 0xffff")
    a("s_mov_b32 s22, 0x400000")
    a("s_mov_b32 s23, 0x00020000")

    def dma_grp(stage, g):
        op, i0 = g // 2, (g % 2) * 4
        m = f"s_add_u32 m0, s48, {(XB if op == 0 else WB) + stage*32768 + i0*1024}"
        if op == 0:
            ld = [f"buffer_load_dwordx4 v{XD+i0+i}, s[16:19], s49 offen offset:{i*1024} lds" for i in range(4)]
        else:
            ld = [f"buffer_load_dwordx4 v{WD+i0+i}, s[20:23], s50 offen offset:{i*1024}{NT} lds" for i in range(4)]
        tr = {1: "s_add_u32 s49, s49, 128", 3: "s_add_u32 s50, s50, 0x80000"}.get(g)
        return m, ld, tr

    def emit_grp(m, ld, tr):
        a(m)
        a("s_nop 0")
        for t in ld:
            a(t)
        if tr:
            a(tr)

    def grp_sched(grps, lo, hi, after=()):
        ops, prev = [], list(after)
        tot = sum(len(g[1]) for g in grps)
        step = (hi - lo) / float(tot)
        k = 0
        for (m, ld, tr) in grps:
            mo = None
            if m:
                mo = Op(m, "S", lo + step * k - 1, lo=lo, after=prev)
                ops.append(mo)
            for t in ld:
                o = Op(t, "V", lo + 1 + step * k, lo=lo, after=prev, prev_gap=[mo] if mo else [])
                ops.append(o)
                prev = [o]
                k += 1
            if tr:
                for t in tr.split("\n"):
                    o = Op(t, "S", lo + step * k, after=prev)
                    ops.append(o)
                    prev = [o]
        return ops, prev

    TL = ENV("TOUCH", 1)

    def late_touch():
        for pr in (8, 12, 14, 32, 34, 28):
            a(f"global_load_dword v{VDUM}, v6, s[{pr}:{pr+1}]")
    if TL:
        a(f"v_lshlrev_b32 v6, 17, v{V_LANE16}")
        a("s_mov_b64 exec, 1")
        a(f"buffer_load_dword v{VDUM}, v62, s[24:27], s52 offen")
        a(f"global_load_dword v{VDUM}, v6, s[60:61]")
        a(f"buffer_load_dword v{VDUM}, v6, s[20:23], 0 offen")
        a(f"global_load_dword v{VDUM}, v6, s[62:63]")
        a(f"global_load_dword v{VDUM}, v6, s[4:5]")
        if TL == 2:
            late_touch()
        a("s_mov_b64 exec, -1")
    PG = ENV("PG", 2)
    order0 = [0, 2, 1, 3]
    for k_, g in enumerate(order0[:PG]):
        emit_grp(*dma_grp(0, g))
        if k_ + 1 == XP:
            xrows()
    if TL == 3:
        a("s_mov_b64 exec, 1")
        late_touch()
        a("s_mov_b64 exec, -1")
    pst(2)
    a("s_mov_b64 s[6:7], s[62:63]")
    a.srd_off(8, 6, XN_OFF, 4 << 20)
    a.srd(12, 4, 8 << 20)
    a.srd_off(32, 6, KF_OFF, 32 << 20)
    a.srd(24, 60, 256)
    a("s_lshl_b32 s28, s58, 2")
    a("s_and_b32 s31, s59, 3")
    a("s_add_u32 s28, s28, s31")
    a("s_lshr_b32 s29, s59, 2")
    a("s_lshl_b32 s42, s29, 7")
    a("s_sub_u32 s43, 1920, s42")
    a("s_lshl_b32 s31, s30, 4")
    a("s_add_u32 s38, s42, s31")
    a("s_add_u32 s39, s43, s31")
    a("s_lshl_b32 s60, s30, 12")
    a("s_mov_b32 s61, 0")
    a("s_mov_b32 s62, 0")
    a("s_lshl_b32 s47, s44, 1")
    a("s_lshr_b32 s52, s30, 1")
    a("s_add_u32 s47, s47, s52")
    a("s_lshl_b32 s47, s47, 14")
    a("s_lshl_b32 s52, s45, 1")
    a("s_and_b32 s53, s30, 1")
    a("s_add_u32 s52, s52, s53")
    a("s_lshl_b32 s52, s52, 20")
    a("s_add_u32 s47, s47, s52")
    a("s_lshl_b32 s52, s57, 24")
    a("s_add_u32 s47, s47, s52")
    assert VF_OFF - KF_OFF == 1 << 24
    a("s_lshl_b32 s54, s44, 8")
    a("s_lshr_b32 s55, s28, 1")
    a("s_lshl_b32 s55, s55, 8")
    a(f"s_and_b32 s53, s59, {ENV('XSM', 3)}")
    a("s_add_u32 s53, s53, 1")
    a("s_cmp_eq_u32 s30, 0")
    a("s_cselect_b32 s53, s53, -1")
    a("s_cselect_b32 s46, 6, -1")
    a("v_lshlrev_b32 v6, 13, v56")
    a(f"v_lshl_add_u32 v{VPF}, v57, 7, v6")
    a("s_lshl_b32 s56, s30, 5")
    a("s_add_u32 s56, s56, s59")
    a("s_lshl_b32 s56, s56, 16")
    a("s_lshl_b32 s52, s58, 10")
    a("s_add_u32 s56, s56, s52")
    a(f"s_add_u32 s63, s30, {ENV('PF0', 1)}")
    pf = f"buffer_load_dword v{VDUM}, v{VPF}, s[12:15], s56 offen" if "nowq" not in KO else "s_nop 0"
    for g in order0[PG:2]:
        emit_grp(*dma_grp(0, g))
    XL = 131072
    a(f"v_mul_u32_u24 v6, 2064, v{TOK}")
    a(f"v_lshl_add_u32 v6, v{L32}, 4, v6")
    a(f"v_add_u32 v{VLW}, {XL}, v6")
    a("v_mul_u32_u24 v7, 2064, v57")
    a("v_lshl_add_u32 v7, v56, 4, v7")
    a(f"v_lshl_add_u32 v7, v{W}, 9, v7")
    a(f"v_add_u32 v{VLR}, {XL}, v7")
    a("v_lshrrev_b32 v7, 2, v56")
    a(f"v_lshl_add_u32 v7, v{W}, 3, v7")
    a("v_lshlrev_b32 v7, 17, v7")
    a("v_and_b32 v6, 3, v56")
    a("v_lshl_add_u32 v7, v6, 8, v7")
    a("v_lshl_add_u32 v7, v57, 4, v7")
    a("s_lshr_b32 s52, s2, 1")
    a("s_lshl_b32 s52, s52, 10")
    a("s_and_b32 s31, s2, 1")
    a("s_lshl_b32 s31, s31, 7")
    a("s_add_u32 s52, s52, s31")
    a(f"v_add_u32 v{VXST}, s52, v7")
    a(f"v_and_b32 v56, 15, v{LN_}")
    a(f"v_lshrrev_b32 v57, 4, v{LN_}")
    a("v_lshrrev_b32 v6, 1, v56")
    a("v_xor_b32 v6, v6, v57")
    a(f"v_and_b32 v7, 1, v{W}")
    a("v_lshl_add_u32 v7, v7, 7, v56")
    a("v_lshlrev_b32 v7, 7, v7")
    a(f"v_lshl_add_u32 v{XRD}, v6, 4, v7")
    a(f"v_xor_b32 v{XRD+1}, 64, v{XRD}")
    a("v_lshrrev_b32 v6, 2, v56")
    a("v_and_b32 v58, 1, v57")
    a("v_lshl_add_u32 v58, v58, 2, v6")
    a("v_lshl_add_u32 v59, v57, 3, v6")
    a(f"v_and_b32 v63, 3, v{LN_}")
    a("v_lshlrev_b32 v7, 9, v59")
    a(f"v_lshrrev_b32 v6, 1, v{W}")
    a("v_lshl_add_u32 v7, v6, 8, v7")
    a("v_lshl_add_u32 v7, v63, 3, v7")
    a(f"v_add_u32 v7, {WB}, v7")
    a("v_lshlrev_b32 v59, 8, v59")
    a("v_lshl_add_u32 v59, v63, 3, v59")
    a(f"v_add_u32 v59, {WRING}, v59")
    for j in range(8):
        a(f"v_xor_b32 v6, {j}, v58")
        a(f"v_lshl_add_u32 v{WRD+j}, v6, 5, v7")
        a(f"v_lshl_add_u32 v{QWR+j}, v6, 5, v59")
    a("s_lshl_b32 s31, s38, 6")
    a(f"v_add_u32 v{QX}, s31, v{V_LANE16}")
    a("s_lshl_b32 s31, s39, 6")
    a(f"v_add_u32 v{QX+1}, s31, v{V_LANE16}")
    a(f"v_bfe_u32 v6, v{LN_}, 1, 3")
    a(f"v_and_b32 v7, 1, v{LN_}")
    a(f"v_lshl_add_u32 v58, v{W}, 4, v57")
    a("v_lshlrev_b32 v58, 13, v58")
    a("v_lshl_add_u32 v58, v7, 4, v58")
    a("s_lshl_b32 s31, s28, 8")
    a("v_add_u32 v58, s31, v58")
    a("v_xor_b32 v6, v6, v57")
    for i in range(4):
        a(f"v_xor_b32 v7, {(i // 2) << 2}, v6")
        a(f"v_lshl_add_u32 v7, v7, 5, v58")
        a(f"v_add_u32 v{QWD+i}, {4*i*8192 - i*1024}, v7")
    a("v_lshlrev_b32 v6, 2, v57")
    a(f"v_sub_u32 v{V_VV}, v56, v6")
    a(f"v_mov_b32 v{V_NINF}, 0xff800000")
    a(f"v_mov_b32 v{ZERO}, 0")
    a(f"v_mov_b32 v{ONE}, 1")
    a("s_lshl_b32 s52, s59, 2")
    a("s_add_u32 s52, s52, s30")
    a(f"v_and_b32 v6, 1, v{LN_}")
    a("v_lshl_add_u32 v6, s52, 1, v6")
    code_addr(a, "k12_qcode", 2, 6, 40)
    cpf = f"global_load_dword v{VDUM}, v[2:3], off" if "nocpf" not in KO else "s_nop 0"
    zero_acc(a, 128, 64, 56)
    zero_acc(a, 128, 128, 56, "v", init=False)
    for g in order0[max(PG, 2):]:
        emit_grp(*dma_grp(0, g))
    pst(3)
    a(f"s_waitcnt vmcnt({16 - 4 * XP + (6 if TL == 3 else 0)})")
    pst(4)
    t_ = Asm()
    ln_rows_half_wave(t_, VX, VT)
    nl_ = len(t_.lines)
    for i, ln in enumerate(t_.lines):
        a.lines.append(ln)
        for g in range(4):
            if i == (nl_ * (g + 1) // 5 if not ENV("S1L", 0) else nl_ - 1):
                emit_grp(*dma_grp(1, order0[g]))
    pst(5)
    for i in range(4):
        a(f"ds_write_b128 v{VLW}, v[{VX+4*i}:{VX+4*i+3}] offset:{i*512}")
    pst(6)
    a("s_waitcnt vmcnt(16) lgkmcnt(0)")
    a("s_barrier")
    if "ptrace" in KO:
        stamp_dump(a, 0, 7, 6)
        a("s_endpgm")
    XT = 64
    for i in range(4):
        a(f"ds_read_b128 {aq(XT+4*i)}, v{VLR} offset:{i*128}")
    a(f"v_add_u32 v{VLW}, 4096, v{QX}")
    a(f"v_add_u32 v{VLR}, 4096, v{QX+1}")
    zero_acc(a, 64, 64, 56, "v", init=False)

    FXS = [192, 64]
    fw = lambda o, ks: (o * 2 + ks) * 4
    fx = lambda st, j, ks: FXS[st] + (j * 2 + ks) * 4

    def xreads(st):
        return [f"ds_read_b128 {aq(fx(st, j, ks))}, v{XRD+ks} offset:{XB + st*32768 + j*2048}" for j in range(8) for ks in range(2)]

    def wrd(st, os_):
        out = []
        for o in os_:
            for ks in range(2):
                b = fw(o, ks)
                out.append(f"ds_read_b64_tr_b16 a[{b}:{b+1}], v{WRD+o} offset:{st*32768 + ks*16384}")
                out.append(f"ds_read_b64_tr_b16 a[{b+2}:{b+3}], v{WRD+o} offset:{st*32768 + ks*16384 + 2048}")
        return out

    def mix(x, y):
        return [t for p in zip(x, y) for t in p]

    def pair_n(c, j, isv):
        return (c * 8 + j) if isv else (j * 4 + c)

    def acc(i, j, isv):
        n = pair_n(i // 2, j, isv)
        if n < 24:
            return ("v", (64 if i % 2 == 0 else 160) + 4 * n)
        return ("a", 128 + 8 * (n - 24) + 4 * (i % 2))

    def mf2(o, x, st, isv, kss=(0, 1)):
        k, c = acc(x, o, isv) if isv else acc(o, x, isv)
        r = f"{k}[{c}:{c+3}]"
        return [mfma16(r, *((aq(fx(st, x, ks)), aq(fw(o, ks))) if isv else (aq(fw(o, ks)), aq(fx(st, x, ks)))), r) for ks in kss]

    def mfmas(st, half, isv):
        return [mf2(o, x, st, isv, [k])[0] for o, x, k, _ in snake(range(4 * half, 4 * half + 4), range(8), 2)]

    skip = a.uid("k12_nostat")
    a(f"s_cmp_ge_u32 s2, {ZERO_BYTES // 4096}")
    a(f"s_cbranch_scc1 {skip}")
    a("s_lshl_b32 s52, s2, 12")
    a(f"s_add_u32 s52, s52, 0x{STATS_OFF - KF_OFF:x}")
    a("s_mov_b32 s34, -1")
    a("v_lshlrev_b32 v6, 4, v0")
    a("buffer_store_dwordx4 v[56:59], v6, s[32:35], s52 offen sc1")
    a(f"s_mov_b32 s34, 0x{32 << 20:x}")
    a.label(skip)
    stamp(a, 1)
    tr_init(a)
    for t in mix(xreads(0), wrd(0, range(4))):
        a(t)
    a("s_mov_b32 s51, 0")
    a("s_waitcnt lgkmcnt(15)")
    for i in range(4):
        a(f"s_mov_b32 s52, {i*2*131072}")
        a(f"buffer_store_dwordx4 {aq(XT+4*i)}, v{VXST}, s[8:11], s52 offen sc1")
    a("s_waitcnt lgkmcnt(0)")
    lv, joined = a.uid("k12_v"), a.uid("k12_join")
    a("s_cmp_lg_u32 s57, 0")
    a(f"s_cbranch_scc1 {lv}")

    DX, DW = ENV("QDX", 4), ENV("QDW", 2)
    XS = lambda ks: 128 + ((ks + 4) % 8) * 16
    QF = [0, 32]

    def wdma(stage):
        return (f"s_add_u32 m0, s60, {WRING + ((stage + 2) % 4)*16384}",
                [f"buffer_load_dwordx4 v{QWD+i}, s[12:15], s61 offen offset:{i*1024} lds" for i in range(4)], "s_add_u32 s61, s61, 0x80000")

    def xloads(ks):
        return (None, [f"buffer_load_dwordx4 {aq(XS(ks) + 4*qb)}, v{(QX, VLW, QX+1, VLR)[qb]}, s[8:11], s62 offen sc1" for qb in range(4)],
                "s_add_u32 s62, s62, 0x20000")

    def kvstore(n, srd):
        return (f"s_add_u32 s52, s47, {(n // 16) * 0x80000 + (((n % 16) * 1024) & ~4095)}",
                [f"buffer_store_dwordx4 v[{PK+n*4}:{PK+3+n*4}], v{V_LANE16}, {srd}, s52 offen offset:{(n*1024) & 4095} sc1"], None)

    PRE = [0, 1, 8, 9, 16, 17, 24, 25, 2, 4, 10, 12, 18, 20, 5, 13][:ENV("NPRE", 8)]
    REST = [n for n in range(32) if n not in PRE]
    NR = len(REST)

    def wreads(stage, half, buf=None):
        out = []
        for j in range(4 * half, 4 * half + 4):
            for sp in range(2):
                b = fw(j, sp)
                out.append(f"ds_read_b64_tr_b16 a[{b}:{b+1}], v{QWR+j} offset:{((stage + 2) % 4)*16384 + sp*8192}")
                out.append(f"ds_read_b64_tr_b16 a[{b+2}:{b+3}], v{QWR+j} offset:{((stage + 2) % 4)*16384 + sp*8192 + 1024}")
        return out

    def qacc(db, qb):
        return ("v", 192 + (db * 2 + qb) * 4) if qb < 2 else ("a", 64 + (db * 2 + qb - 2) * 4)

    for isv in range(2):
        if isv:
            a.label(lv)
        loop, last = a.uid("k12_loop"), a.uid("k12_last")
        a.label(loop)
        for st in range(2):
            if st == 1:
                a("s_cmp_eq_u32 s51, 7")
                a(f"s_cbranch_scc1 {last}")
            ops = spread(wrd(st, range(4, 8)), "M", 1, 48)
            if st == 0:
                ops.append(when("s_cmp_eq_u32 s51, s46", f"buffer_load_dword v{VPOLL}, v{ZERO}, s[24:27], 0 offen sc1", 4))
            gt = (when("s_cmp_eq_u32 s51, s46", spin_text(a, 0, 256), 0).text + "\n") if st == 0 else ""
            ops.append(Op(tr_wrap("s_waitcnt vmcnt(0) lgkmcnt(0)\n" + gt + "s_barrier"), "S", 63, lo=63, hard=63, after=list(ops)))
            schedule(a, mfmas(st, 0, isv), ops)
            rd = spread(mix(xreads(1 - st), wrd(1 - st, range(4))), "M", 1, 54)
            pre = []
            if st == 0:
                pre = [Op("s_cmp_ge_u32 s49, 1024\ns_cselect_b32 s18, 0, s18\ns_cselect_b32 s22, 0, s22", "S", 0, hard=0)]
            dm, dl = grp_sched([dma_grp(st, g) for g in range(4)], 1, ENV("GD1", 56), after=pre)
            sig = when("s_cmp_eq_u32 s51, s53", one_lane(f"buffer_atomic_add v{ONE}, v{ZERO}, s[24:27], 0 offen sc1"), 58, after=dl)
            ops = rd + pre + dm + [sig]
            cnt_after = [sig]
            p_ = when("s_cmp_eq_u32 s51, s63", pf, 59, after=dl)
            ops.append(p_)
            cnt_after.append(p_)
            if st == 1:
                p_ = when("s_cmp_eq_u32 s51, 5", cpf, 60, after=dl)
            else:
                p_ = when("s_cmp_eq_u32 s51, 6", "\n".join(g[0] + "\ns_nop 0\n" + "\n".join(g[1]) + "\n" + g[2] for g in (wdma(0), wdma(1))), 60, after=dl)
            ops.append(p_)
            cnt_after.append(p_)
            ops.append(Op("s_add_u32 s51, s51, 1", "S", 62, after=cnt_after))
            ops.append(Op("s_waitcnt lgkmcnt(0)", "S", 63, lo=63, hard=63, after=rd))
            schedule(a, mfmas(st, 1, isv), ops)
        a(f"s_branch {loop}")
        a.label(last)
        stamp(a, 2)
        seq = [(c, j) for j in range(8) for c in range(4)] if isv else [(c, j) for c in range(4) for j in range(8)]
        mf, ops = [], []
        done = {}
        tuse = []
        for pos, (c, j) in enumerate(seq):
            n = pair_n(c, j, isv)
            for i in (2 * c, 2 * c + 1):
                kss = (1, 0) if i % 2 else (0, 1)
                mf += mf2(j, i, 1, isv, kss) if isv else mf2(i, j, 1, isv, kss)
            g0 = 4 * pos + 3 + 6
            d = PK + 4 * n
            if n < 24:
                x, y = 64 + 4 * n, 160 + 4 * n
                tx = [f"v_cvt_pk_bf16_f32 v{d}, v{x}, v{x+1}", f"v_cvt_pk_bf16_f32 v{d+1}, v{x+2}, v{x+3}",
                      f"v_cvt_pk_bf16_f32 v{d+2}, v{y}, v{y+1}", f"v_cvt_pk_bf16_f32 v{d+3}, v{y+2}, v{y+3}"]
                o = spread(tx, "A", g0, g0 + 2)
            else:
                x = 128 + 8 * (n - 24)
                tx = [f"v_accvgpr_read_b32 v{PT+r}, a{x+r}" for r in range(8)]
                tx += [f"v_cvt_pk_bf16_f32 v{d+r}, v{PT+2*r}, v{PT+2*r+1}" for r in range(4)]
                o = spread(tx, "A", g0, g0 + 5)
                o[0].after += tuse + [done[n - 24]]
                tuse = [o[-1]]
            done[n] = o[-1]
            ops += o
        w47 = spread(wrd(1, range(4, 8)), "M", 1, 40)
        ld, ll = grp_sched([xloads(0), xloads(1), xloads(2), xloads(3)], 0, 30)
        ops += w47 + ld + [Op("s_waitcnt lgkmcnt(0)", "S", 60, lo=60, hard=62, after=w47)]
        prev_ = list(ll)
        for k_, n_ in enumerate(sorted(PRE, key=lambda n: done[n].want)):
            m_, l_, _ = kvstore(n_, "s[32:35]")
            w_ = ENV("PS0", 34) + k_ * (126 - ENV("PS0", 34)) / max(1, len(PRE))
            o1 = Op(m_, "S", w_ - 1, after=prev_)
            o2 = Op(l_[0], "V", w_, after=[o1, done[n_]])
            ops += [o1, o2]
            prev_ = [o2]
        bar = Op("s_waitcnt vmcnt(16)\ns_barrier", "S", 96, lo=96, after=ll)
        rd = spread(wreads(0, 0, 0), "M", 97, 120)
        rd[0].after.append(bar)
        ops += [bar] + rd
        schedule(a, mf, ops)
        if not isv:
            a(f"s_branch {joined}")
    a.label(joined)
    a.label("k12_qcode")
    a("s_mov_b64 s[48:49], s[32:33]")
    a("s_mov_b32 s51, 0x00020000")
    a("s_cmp_eq_u32 s45, 0")
    a("s_mov_b32 s50, s34")
    a("s_cselect_b32 s56, s30, -1")
    a("s_cselect_b32 s57, -1, s30")
    a(tr_wrap(f"s_waitcnt vmcnt({8 + len(PRE)}) lgkmcnt(0)"))

    NS = ENV("NS", 20)
    PSIG = ENV('PSIG', NS + 3)
    PPOLL = ENV("PPOLL", 27)
    assert PSIG % 2 == 1 and PPOLL % 2 == 1 and PSIG < PPOLL
    queue = ["W0"] * 4 + ["W1"] * 4 + ["X0"] * 4 + ["X1"] * 4 + ["X2"] * 4 + ["X3"] * 4 + ["L"] * len(PRE)

    def younger(tag):
        if tag not in queue:
            return 63
        return len(queue) - 1 - max(i for i, t in enumerate(queue) if t == tag)

    kvsrd = ["s_lshl_b32 s31, s28, 14", "s_add_u32 s16, s6, s31\ns_addc_u32 s17, s7, 0",
             f"s_add_u32 s20, s16, 0x{VF_OFF:x}\ns_addc_u32 s21, s17, 0", f"s_add_u32 s16, s16, 0x{KF_OFF:x}\ns_addc_u32 s17, s17, 0",
             "s_and_b32 s17, s17, 0xffff", "s_and_b32 s21, s21, 0xffff", "s_lshl_b32 s31, s29, 20", "s_sub_u32 s18, 0xf84000, s31",
             "s_mov_b32 s22, s18",
             f"s_add_u32 s24, s6, 0x{KVC_OFF:x}\ns_addc_u32 s25, s7, 0", "s_and_b32 s25, s25, 0xffff", "s_mov_b32 s26, 4096"]

    def kdma():
        return ("s_mov_b32 m0, s34", [f"buffer_load_dwordx4 v{V_LANE16}, s[16:19], s32 offen offset:{i*1024}{LDF} lds" for i in range(4)],
                "s_add_u32 s32, s32, 0x80000\ns_add_u32 s34, s34, 0x4000")

    def vdma():
        return ("s_mov_b32 m0, s35", [f"buffer_load_dwordx4 v{V_LANE16}, s[20:23], s33 offen offset:{i*1024}{LDF} lds" for i in range(4)],
                "s_add_u32 s33, s33, 0x80000\ns_add_u32 s35, s35, 0x4000")

    NL = ENV('NL', 29)
    NE0 = (NS * NR) // NL
    sn, sl_, nx, nw = NE0, 0, 4, 2
    assert NL <= PPOLL + 2
    S0 = ENV("S0", 0)
    for ks in range(32):
        st, sp = ks // 2, ks % 2
        ops = []
        rd = []
        if ks < 31:
            rd = spread(wreads(st, 1, 1) if sp == 0 else wreads(st + 1, 0, 0), "M", 1, 22)
        ops += rd
        grps, tags = [], []
        while nw < 16 and ((sp == 1 and nw <= st + DW) or (ks == 0 and nw < DW)):
            grps.append(wdma(nw)); tags.append(f"W{nw}"); nw += 1
        for _ in range(2):
            if nx < 32 and nx <= ks + DX:
                grps.append(xloads(nx)); tags.append(f"X{nx}"); nx += 1
        while sl_ < NR and sl_ < ((ks + 1) * NR) // NL:
            grps.append(kvstore(REST[sl_], "s[48:51]")); tags.append("L"); sl_ += 1
        early = []
        while ks < NS and sn < NR and sn < NE0 + ((ks + 1) * (NR - NE0) + NS - 1) // NS:
            m_, l_, _ = kvstore(REST[sn], "s[48:51]")
            early += [m_, l_[0]]
            sn += 1
        head = []
        if ks == 0:
            ops += spread(kvsrd, "S", 6, 30)
        if ks == PSIG:
            head = [when("s_cmp_eq_u32 s56, 0", one_lane(f"buffer_atomic_add v{ONE}, v{ZERO}, s[24:27], s54 offen sc1"), 0)]
            ops += spread(k2.kv_first(), "S", 8, 20)
        if ks == 24:
            ops.append(Op("v_add_co_u32 v2, vcc, 0x4000, v2\ns_nop 1\nv_addc_co_u32 v3, vcc, 0, v3, vcc\n" + cpf, "B", 29))
        if ks == PPOLL:
            head = [when("s_cmp_eq_u32 s30, 0", f"buffer_load_dword v{VPOLL}, v{ZERO}, s[24:27], s55 offen sc1", 0)]
            qpoll = len(queue)
        if ks == PPOLL + 2:
            grps += [kdma(), kdma()]; tags += ["K0", "K1"]
        if ks == PPOLL + 3:
            grps += [vdma(), kdma()]; tags += ["V0", "K2"]
        if ks == PPOLL + 4:
            grps += [vdma()]; tags += ["V1"]
        ops += head
        if grps:
            g, gl_ = grp_sched(grps, 1, 27, after=head)
            ops += g
        if ks == NS - 1:
            early.append("s_mov_b32 s50, 0")
        if early:
            ops.append(when("s_cmp_eq_u32 s45, 0", "\n".join(early), 29, after=gl_))
        for gr, tg in zip(grps, tags):
            queue += [tg] * len(gr[1])
        if ks == NS - 1:
            assert sn == NR and sl_ == NE0
            qearly = len(queue)
        if ks < 31:
            nk = ks + 1
            wv = younger(f"W{nk // 2 + 1}") if nk % 2 else younger(f"X{nk + 1}")
            if nk == PSIG:
                wv = min(wv, len(queue) - qearly)
            wv = min(wv, 63)
            prevw = wv
            wtxt = f"s_waitcnt vmcnt({wv}) lgkmcnt(0)"
            if ks == PPOLL + 1:
                ops.append(when("s_cmp_eq_u32 s30, 0", f"s_waitcnt vmcnt({len(queue) - qpoll})\n" + spin_text(a, "s55", 2), 29, lo=28, after=[o for o in ops if o.cls == "V"]))
            if nk % 2:
                wtxt = tr_wrap(wtxt + "\ns_barrier") if nk % 4 == 1 else wtxt + "\ns_barrier"
            ops.append(Op(wtxt, "S", 31, lo=31, hard=31, after=[o for o in ops if o.cls in "MVB"]))
        mf = []
        for db, qb, k2_, f_ in snake(range(4 * sp, 4 * sp + 4), range(4), 2):
            k, c = qacc(db, qb)
            r = f"{k}[{c}:{c+3}]"
            mf.append(mfma16(r, aq(fw(db, k2_)), aq(XS(2 * st + k2_) + 4 * qb), "0" if (st == 0 and f_) else r))
        schedule(a, mf, ops)
    assert PPOLL + 4 <= 31
    stamp(a, 3)
    assert younger("L") >= 8
    a("s_add_u32 s3, s54, 64")
    a("s_add_u32 s5, s55, 64")
    a("s_mov_b32 s63, s57")
    late = dict(
        sig=when("s_cmp_eq_u32 s63, 0", one_lane(f"buffer_atomic_add v{ONE}, v{ZERO}, s[24:27], s3 offen sc1"), 0).text,
        poll=lambda: when("s_cmp_eq_u32 s30, 0", "buffer_load_dword v58, v59, s[24:27], s5 offen sc1", 2),
        gate=lambda **kw: when("s_cmp_eq_u32 s30, 0", "s_waitcnt vmcnt(0)\n" + spin_text(a, "s5", 14, 58, 59), 29, **kw))
    attention_phase(a, end, 0, qacc, late, stubs=stubs, next_code='op_head' if fuse else (None if os.environ.get('WHICH') == 'k12' else 'k3_kernel'), when=when if fuse else None, ffn=ffn)
    a.end_kernel(name, 256, 256)
    a.launch(name, 256, 256, 163840)
```

```python
from common import *
import common, os
from sched import Op, spread, schedule
import k2
from k2 import vq, aq, V_LANE16, V_VV, V_NINF, attention_phase, LDF

SPIN_MAX = 1 << 20
KO = set(os.environ.get('KO', '').split(','))
NT = ' nt' if 'nt' in KO else ''
ENV = lambda k, d: int(os.environ.get(k, str(d)))

ZERO, ONE = 8, 9
XD, WD, XRD, WRD = 10, 18, 26, 28
QX, QWD, QWR = 36, 38, 42
VPF, VDUM, VPOLL, VXST, VLW, VLR = 50, 51, 52, 53, 54, 55
PT = 56
PK = 64
WRING = 98304


def spin_text(a, soff, target, VPOLL=VPOLL, ZERO=ZERO):
    ok, lp = a.uid("spin_ok"), a.uid("spin")
    return "\n".join([
        f"v_readfirstlane_b32 s31, v{VPOLL}", f"s_cmp_ge_u32 s31, {target}", f"s_cbranch_scc1 {ok}",
        f"s_mov_b32 s40, {SPIN_MAX}", f"{lp}:", "s_sleep 8",
        f"buffer_load_dword v{VPOLL}, v{ZERO}, s[24:27], {soff} offen sc1", "s_waitcnt vmcnt(0)",
        f"v_readfirstlane_b32 s31, v{VPOLL}", "s_sub_u32 s40, s40, 1", "s_cselect_b32 s31, -1, s31",
        f"s_cmp_lt_u32 s31, {target}", f"s_cbranch_scc1 {lp}", f"{ok}:"])


def one_lane(text):
    return f"s_mov_b64 exec, 1\n{text}\ns_mov_b64 exec, -1"


def gen_k12(a, name="k12_kernel", fuse=False, ffn=None):
    a.begin_kernel(name)
    end = a.uid("k12_end")
    stubs = []
    pst = (lambda i: stamp(a, i)) if "ptrace" in KO else (lambda i: None)

    def when(cmp_text, body, want, **kw):
        l, r = a.uid("k12_ool"), a.uid("k12_oolret")
        if "nosig" in KO and "s[24:27]" in body:
            body = "s_nop 0"
        stubs.append((l, body, r))
        return Op(f"{cmp_text}\ns_cbranch_scc1 {l}\n{r}:", "B", want, **kw)

    a("s_cmp_ge_u32 s2, 256")
    a(f"s_cbranch_scc1 {end}")
    stamp(a, 0)
    a(f"s_load_dwordx4 s[36:39], s[0:1], {ARG['x']}")
    a(f"s_load_dwordx4 s[40:43], s[0:1], {ARG['wuk']}")
    a(f"s_load_dwordx2 s[4:5], s[0:1], {ARG['wq']}")
    a(f"s_load_dwordx4 s[60:63], s[0:1], {ARG['dbg']}")
    if ENV("TOUCH", 1) >= 2:
        a(f"s_load_dwordx8 s[8:15], s[0:1], {ARG['wo']}")
        a(f"s_load_dwordx4 s[32:35], s[0:1], {ARG['wu']}")
        a(f"s_load_dwordx2 s[28:29], s[0:1], {ARG['out']}")
    CE = ENV("CE", 48)
    a("s_lshr_b32 s59, s2, 3")
    a("s_lshl_b32 s58, s59, 4")
    a("v_add_u32 v6, s58, v0")
    a(f"v_cmp_gt_u32 vcc, {CE}, v0")
    a(f"v_cmp_gt_u32 s[56:57], {CE + 16}, v0")
    a("s_nop 0")
    a("v_cndmask_b32 v6, v6, v0, vcc")
    code_addr(a, "k12_code0", 58, 6, 52)
    a.label("k12_code0")
    a("s_mov_b64 exec, s[56:57]")
    cs = a.uid("k12_nocode")
    a(f"s_cbranch_execz {cs}")
    a(f"global_load_dword v{VDUM}, v[58:59], off")
    a.label(cs)
    a("s_mov_b64 exec, -1")
    a("s_and_b32 s58, s2, 7")
    a("s_lshr_b32 s59, s2, 3")
    a("s_and_b32 s45, s59, 7")
    a("s_lshr_b32 s57, s59, 3")
    a("s_and_b32 s44, s57, 1")
    a("s_lshl_b32 s52, s58, 1")
    a("s_add_u32 s44, s44, s52")
    a("s_lshr_b32 s57, s57, 1")
    W, LN_ = 2, 3
    a(f"v_lshrrev_b32 v{W}, 6, v0")
    a(f"v_and_b32 v{LN_}, 63, v0")
    a(f"v_readfirstlane_b32 s30, v{W}")
    a(f"v_lshlrev_b32 v{V_LANE16}, 4, v{LN_}")
    VX, VT = 64, 80
    TOK, L32 = 60, 61
    a(f"v_lshrrev_b32 v{TOK}, 5, v{LN_}")
    a(f"v_lshl_add_u32 v{TOK}, v{W}, 1, v{TOK}")
    a(f"v_and_b32 v{L32}, 31, v{LN_}")
    a(f"v_lshlrev_b32 v6, 11, v{TOK}")
    a(f"v_lshl_add_u32 v62, v{L32}, 4, v6")
    a("s_lshl_b32 s52, s2, 14")
    a(f"v_lshrrev_b32 v56, 3, v{LN_}")
    a(f"v_and_b32 v57, 7, v{LN_}")
    a("v_lshrrev_b32 v58, 1, v56")
    a("v_xor_b32 v6, v57, v58")
    a("v_xor_b32 v7, 4, v6")
    a(f"v_lshl_add_u32 v58, v{W}, 6, v56")
    a("v_lshlrev_b32 v58, 10, v58")
    a("s_lshl_b32 s47, s45, 18")
    a("v_add_u32 v58, s47, v58")
    a(f"v_lshl_add_u32 v{XD}, v6, 4, v58")
    a(f"v_lshl_add_u32 v{XD+1}, v7, 4, v58")
    for i in range(7, -1, -1):
        a(f"v_add_u32 v{XD+i}, {i*8*1024 - (i%4)*1024}, v{XD + (i%2)}")
    def wd_addr():
        a(f"v_lshrrev_b32 v6, 5, v{LN_}")
        a(f"v_bfe_u32 v7, v{LN_}, 1, 4")
        a(f"v_and_b32 v59, 1, v{LN_}")
        a(f"v_lshl_add_u32 v58, v{W}, 4, v6")
        a("v_lshlrev_b32 v58, 13, v58")
        a("v_lshl_add_u32 v58, v59, 4, v58")
        a("s_lshl_b32 s47, s44, 9")
        a("v_add_u32 v58, s47, v58")
        a("v_xor_b32 v7, v7, v6")
        for i in range(8):
            fx = ((2 * i) & 3) | ((((2 * i) >> 3) & 1) << 2)
            a(f"v_xor_b32 v6, {fx}, v7")
            a(f"v_lshl_add_u32 v6, v6, 5, v58")
            a(f"v_add_u32 v{WD+i}, {2*i*8192 - (i%4)*1024}, v6")
    if not ENV('WDL', 1):
        wd_addr()
    XB, WB = 0, 65536
    a("s_lshl_b32 s48, s30, 13")
    a("s_mov_b32 s49, 0")
    a("s_mov_b32 s50, 0")
    pst(1)
    a("s_waitcnt lgkmcnt(0)")
    a.srd(24, 36, 4 << 20)
    XP = ENV("XP", 1)

    def xrows():
        for i in range(4):
            a(f"buffer_load_dwordx4 v[{VX+4*i}:{VX+4*i+3}], v62, s[24:27], s52 offen offset:{i*512}{NT}")
    if XP == 0:
        xrows()
    a.srd(16, 38, 2 << 20)
    a("s_cmp_eq_u32 s57, 0")
    a("s_cselect_b32 s20, s40, s42")
    a("s_cselect_b32 s21, s41, s43")
    a("s_and_b32 s21, s21, 0xffff")
    a("s_mov_b32 s22, 0x400000")
    a("s_mov_b32 s23, 0x00020000")

    def dma_grp(stage, g):
        op, i0 = g // 2, (g % 2) * 4
        m = f"s_add_u32 m0, s48, {(XB if op == 0 else WB) + stage*32768 + i0*1024}"
        if op == 0:
            ld = [f"buffer_load_dwordx4 v{XD+i0+i}, s[16:19], s49 offen offset:{i*1024} lds" for i in range(4)]
        else:
            ld = [f"buffer_load_dwordx4 v{WD+i0+i}, s[20:23], s50 offen offset:{i*1024}{NT} lds" for i in range(4)]
        tr = {1: "s_add_u32 s49, s49, 128", 3: "s_add_u32 s50, s50, 0x80000"}.get(g)
        return m, ld, tr

    def emit_grp(m, ld, tr):
        a(m)
        a("s_nop 0")
        for t in ld:
            a(t)
        if tr:
            a(tr)

    def grp_sched(grps, lo, hi, after=()):
        ops, prev = [], list(after)
        tot = sum(len(g[1]) for g in grps)
        step = (hi - lo) / float(tot)
        k = 0
        for (m, ld, tr) in grps:
            mo = None
            if m:
                mo = Op(m, "S", lo + step * k - 1, lo=lo, after=prev)
                ops.append(mo)
            for t in ld:
                o = Op(t, "V", lo + 1 + step * k, lo=lo, after=prev, prev_gap=[mo] if mo else [])
                ops.append(o)
                prev = [o]
                k += 1
            if tr:
                for t in tr.split("\n"):
                    o = Op(t, "S", lo + step * k, after=prev)
                    ops.append(o)
                    prev = [o]
        return ops, prev

    TL = ENV("TOUCH", 1)

    def late_touch():
        for pr in (8, 12, 14, 32, 34, 28):
            a(f"global_load_dword v{VDUM}, v6, s[{pr}:{pr+1}]")
    if TL:
        a(f"v_lshlrev_b32 v6, 17, v{V_LANE16}")
        a("s_mov_b64 exec, 1")
        a(f"buffer_load_dword v{VDUM}, v62, s[24:27], s52 offen")
        a(f"global_load_dword v{VDUM}, v6, s[60:61]")
        a(f"buffer_load_dword v{VDUM}, v6, s[20:23], 0 offen")
        a(f"global_load_dword v{VDUM}, v6, s[62:63]")
        a(f"global_load_dword v{VDUM}, v6, s[4:5]")
        if TL == 2:
            late_touch()
        a("s_mov_b64 exec, -1")
    PG = ENV("PG", 2)
    order0 = [0, 2, 1, 3]
    for k_, g in enumerate(order0[:PG]):
        emit_grp(*dma_grp(0, g))
        if k_ + 1 == XP:
            xrows()
        if k_ == 0 and ENV('WDL', 1):
            wd_addr()
    if TL == 3:
        a("s_mov_b64 exec, 1")
        late_touch()
        a("s_mov_b64 exec, -1")
    for _ in range(ENV("PAD", 0)):
        a("s_nop 0")
    pst(2)
    a("s_mov_b64 s[6:7], s[62:63]")
    a.srd_off(8, 6, XN_OFF, 4 << 20)
    a.srd(12, 4, 8 << 20)
    a.srd_off(32, 6, KF_OFF, 32 << 20)
    a.srd(24, 60, 256)
    a("s_lshl_b32 s28, s58, 2")
    a("s_and_b32 s31, s59, 3")
    a("s_add_u32 s28, s28, s31")
    a("s_lshr_b32 s29, s59, 2")
    a("s_lshl_b32 s42, s29, 7")
    a("s_sub_u32 s43, 1920, s42")
    a("s_lshl_b32 s31, s30, 4")
    a("s_add_u32 s38, s42, s31")
    a("s_add_u32 s39, s43, s31")
    a("s_lshl_b32 s60, s30, 12")
    a("s_mov_b32 s61, 0")
    a("s_mov_b32 s62, 0")
    a("s_lshl_b32 s47, s44, 1")
    a("s_lshr_b32 s52, s30, 1")
    a("s_add_u32 s47, s47, s52")
    a("s_lshl_b32 s47, s47, 14")
    a("s_lshl_b32 s52, s45, 1")
    a("s_and_b32 s53, s30, 1")
    a("s_add_u32 s52, s52, s53")
    a("s_lshl_b32 s52, s52, 20")
    a("s_add_u32 s47, s47, s52")
    a("s_lshl_b32 s52, s57, 24")
    a("s_add_u32 s47, s47, s52")
    assert VF_OFF - KF_OFF == 1 << 24
    a("s_lshl_b32 s54, s44, 8")
    a("s_lshr_b32 s55, s28, 1")
    a("s_lshl_b32 s55, s55, 8")
    a(f"s_and_b32 s53, s59, {ENV('XSM', 3)}")
    a("s_add_u32 s53, s53, 1")
    a("s_cmp_eq_u32 s30, 0")
    a("s_cselect_b32 s53, s53, -1")
    a("s_cselect_b32 s46, 6, -1")
    a("v_lshlrev_b32 v6, 13, v56")
    a(f"v_lshl_add_u32 v{VPF}, v57, 7, v6")
    a("s_lshl_b32 s56, s30, 5")
    a("s_add_u32 s56, s56, s59")
    a("s_lshl_b32 s56, s56, 16")
    a("s_lshl_b32 s52, s58, 10")
    a("s_add_u32 s56, s56, s52")
    a(f"s_add_u32 s63, s30, {ENV('PF0', 1)}")
    pf = f"buffer_load_dword v{VDUM}, v{VPF}, s[12:15], s56 offen" if "nowq" not in KO else "s_nop 0"
    for g in order0[PG:2]:
        emit_grp(*dma_grp(0, g))
    XL = 131072
    a(f"v_mul_u32_u24 v6, 2064, v{TOK}")
    a(f"v_lshl_add_u32 v6, v{L32}, 4, v6")
    a(f"v_add_u32 v{VLW}, {XL}, v6")
    a("v_mul_u32_u24 v7, 2064, v57")
    a("v_lshl_add_u32 v7, v56, 4, v7")
    a(f"v_lshl_add_u32 v7, v{W}, 9, v7")
    a(f"v_add_u32 v{VLR}, {XL}, v7")
    a("v_lshrrev_b32 v7, 2, v56")
    a(f"v_lshl_add_u32 v7, v{W}, 3, v7")
    a("v_lshlrev_b32 v7, 17, v7")
    a("v_and_b32 v6, 3, v56")
    a("v_lshl_add_u32 v7, v6, 8, v7")
    a("v_lshl_add_u32 v7, v57, 4, v7")
    a("s_lshr_b32 s52, s2, 1")
    a("s_lshl_b32 s52, s52, 10")
    a("s_and_b32 s31, s2, 1")
    a("s_lshl_b32 s31, s31, 7")
    a("s_add_u32 s52, s52, s31")
    a(f"v_add_u32 v{VXST}, s52, v7")
    a(f"v_and_b32 v56, 15, v{LN_}")
    a(f"v_lshrrev_b32 v57, 4, v{LN_}")
    a("v_lshrrev_b32 v6, 1, v56")
    a("v_xor_b32 v6, v6, v57")
    a(f"v_and_b32 v7, 1, v{W}")
    a("v_lshl_add_u32 v7, v7, 7, v56")
    a("v_lshlrev_b32 v7, 7, v7")
    a(f"v_lshl_add_u32 v{XRD}, v6, 4, v7")
    a(f"v_xor_b32 v{XRD+1}, 64, v{XRD}")
    a("v_lshrrev_b32 v6, 2, v56")
    a("v_and_b32 v58, 1, v57")
    a("v_lshl_add_u32 v58, v58, 2, v6")
    a("v_lshl_add_u32 v59, v57, 3, v6")
    a(f"v_and_b32 v63, 3, v{LN_}")
    a("v_lshlrev_b32 v7, 9, v59")
    a(f"v_lshrrev_b32 v6, 1, v{W}")
    a("v_lshl_add_u32 v7, v6, 8, v7")
    a("v_lshl_add_u32 v7, v63, 3, v7")
    a(f"v_add_u32 v7, {WB}, v7")
    a("v_lshlrev_b32 v59, 8, v59")
    a("v_lshl_add_u32 v59, v63, 3, v59")
    a(f"v_add_u32 v59, {WRING}, v59")
    for j in range(8):
        a(f"v_xor_b32 v6, {j}, v58")
        a(f"v_lshl_add_u32 v{WRD+j}, v6, 5, v7")
        a(f"v_lshl_add_u32 v{QWR+j}, v6, 5, v59")
    a("s_lshl_b32 s31, s38, 6")
    a(f"v_add_u32 v{QX}, s31, v{V_LANE16}")
    a("s_lshl_b32 s31, s39, 6")
    a(f"v_add_u32 v{QX+1}, s31, v{V_LANE16}")
    a(f"v_bfe_u32 v6, v{LN_}, 1, 3")
    a(f"v_and_b32 v7, 1, v{LN_}")
    a(f"v_lshl_add_u32 v58, v{W}, 4, v57")
    a("v_lshlrev_b32 v58, 13, v58")
    a("v_lshl_add_u32 v58, v7, 4, v58")
    a("s_lshl_b32 s31, s28, 8")
    a("v_add_u32 v58, s31, v58")
    a("v_xor_b32 v6, v6, v57")
    for i in range(4):
        a(f"v_xor_b32 v7, {(i // 2) << 2}, v6")
        a(f"v_lshl_add_u32 v7, v7, 5, v58")
        a(f"v_add_u32 v{QWD+i}, {4*i*8192 - i*1024}, v7")
    a("v_lshlrev_b32 v6, 2, v57")
    a(f"v_sub_u32 v{V_VV}, v56, v6")
    a(f"v_mov_b32 v{V_NINF}, 0xff800000")
    a(f"v_mov_b32 v{ZERO}, 0")
    a(f"v_mov_b32 v{ONE}, 1")
    a("s_lshl_b32 s52, s59, 2")
    a("s_add_u32 s52, s52, s30")
    a(f"v_and_b32 v6, 1, v{LN_}")
    a("v_lshl_add_u32 v6, s52, 1, v6")
    code_addr(a, "k12_qcode", 2, 6, 40)
    cpf = f"global_load_dword v{VDUM}, v[2:3], off" if "nocpf" not in KO else "s_nop 0"
    zero_acc(a, 128, 64, 56)
    zero_acc(a, 128, 128, 56, "v", init=False)
    for g in order0[max(PG, 2):]:
        emit_grp(*dma_grp(0, g))
    pst(3)
    a(f"s_waitcnt vmcnt({16 - 4 * XP + (6 if TL == 3 else 0)})")
    pst(4)
    t_ = Asm()
    ln_rows_half_wave(t_, VX, VT)
    nl_ = len(t_.lines)
    for i, ln in enumerate(t_.lines):
        a.lines.append(ln)
        for g in range(4):
            if i == (nl_ * (g + 1) // 5 if not ENV("S1L", 0) else nl_ - 1):
                emit_grp(*dma_grp(1, order0[g]))
    pst(5)
    for i in range(4):
        a(f"ds_write_b128 v{VLW}, v[{VX+4*i}:{VX+4*i+3}] offset:{i*512}")
    pst(6)
    a("s_waitcnt vmcnt(16) lgkmcnt(0)")
    a("s_barrier")
    if "ptrace" in KO:
        stamp_dump(a, 0, 7, 6)
        a("s_endpgm")
    XT = 64
    for i in range(4):
        a(f"ds_read_b128 {aq(XT+4*i)}, v{VLR} offset:{i*128}")
    a(f"v_add_u32 v{VLW}, 4096, v{QX}")
    a(f"v_add_u32 v{VLR}, 4096, v{QX+1}")
    zero_acc(a, 64, 64, 56, "v", init=False)

    FXS = [192, 64]
    fw = lambda o, ks: (o * 2 + ks) * 4
    fx = lambda st, j, ks: FXS[st] + (j * 2 + ks) * 4

    def xreads(st):
        return [f"ds_read_b128 {aq(fx(st, j, ks))}, v{XRD+ks} offset:{XB + st*32768 + j*2048}" for j in range(8) for ks in range(2)]

    def wrd(st, os_):
        out = []
        for o in os_:
            for ks in range(2):
                b = fw(o, ks)
                out.append(f"ds_read_b64_tr_b16 a[{b}:{b+1}], v{WRD+o} offset:{st*32768 + ks*16384}")
                out.append(f"ds_read_b64_tr_b16 a[{b+2}:{b+3}], v{WRD+o} offset:{st*32768 + ks*16384 + 2048}")
        return out

    def mix(x, y):
        return [t for p in zip(x, y) for t in p]

    def pair_n(c, j, isv):
        return (c * 8 + j) if isv else (j * 4 + c)

    def acc(i, j, isv):
        n = pair_n(i // 2, j, isv)
        if n < 24:
            return ("v", (64 if i % 2 == 0 else 160) + 4 * n)
        return ("a", 128 + 8 * (n - 24) + 4 * (i % 2))

    def mf2(o, x, st, isv, kss=(0, 1)):
        k, c = acc(x, o, isv) if isv else acc(o, x, isv)
        r = f"{k}[{c}:{c+3}]"
        return [mfma16(r, *((aq(fx(st, x, ks)), aq(fw(o, ks))) if isv else (aq(fw(o, ks)), aq(fx(st, x, ks)))), r) for ks in kss]

    def mfmas(st, half, isv):
        return [mf2(o, x, st, isv, [k])[0] for o, x, k, _ in snake(range(4 * half, 4 * half + 4), range(8), 2)]

    skip = a.uid("k12_nostat")
    a(f"s_cmp_ge_u32 s2, {ZERO_BYTES // 4096}")
    a(f"s_cbranch_scc1 {skip}")
    a("s_lshl_b32 s52, s2, 12")
    a(f"s_add_u32 s52, s52, 0x{STATS_OFF - KF_OFF:x}")
    a("s_mov_b32 s34, -1")
    a("v_lshlrev_b32 v6, 4, v0")
    a("buffer_store_dwordx4 v[56:59], v6, s[32:35], s52 offen sc1")
    a(f"s_mov_b32 s34, 0x{32 << 20:x}")
    a.label(skip)
    stamp(a, 1)
    tr_init(a)
    for t in mix(xreads(0), wrd(0, range(4))):
        a(t)
    a("s_mov_b32 s51, 0")
    a("s_waitcnt lgkmcnt(15)")
    for i in range(4):
        a(f"s_mov_b32 s52, {i*2*131072}")
        a(f"buffer_store_dwordx4 {aq(XT+4*i)}, v{VXST}, s[8:11], s52 offen sc1")
    a("s_waitcnt lgkmcnt(0)")
    lv, joined = a.uid("k12_v"), a.uid("k12_join")
    a("s_cmp_lg_u32 s57, 0")
    a(f"s_cbranch_scc1 {lv}")

    DX, DW = ENV("QDX", 4), ENV("QDW", 2)
    XS = lambda ks: 128 + ((ks + 4) % 8) * 16
    QF = [0, 32]

    def wdma(stage):
        return (f"s_add_u32 m0, s60, {WRING + ((stage + 2) % 4)*16384}",
                [f"buffer_load_dwordx4 v{QWD+i}, s[12:15], s61 offen offset:{i*1024} lds" for i in range(4)], "s_add_u32 s61, s61, 0x80000")

    def xloads(ks):
        return (None, [f"buffer_load_dwordx4 {aq(XS(ks) + 4*qb)}, v{(QX, VLW, QX+1, VLR)[qb]}, s[8:11], s62 offen sc1" for qb in range(4)],
                "s_add_u32 s62, s62, 0x20000")

    def kvstore(n, srd):
        return (f"s_add_u32 s52, s47, {(n // 16) * 0x80000 + (((n % 16) * 1024) & ~4095)}",
                [f"buffer_store_dwordx4 v[{PK+n*4}:{PK+3+n*4}], v{V_LANE16}, {srd}, s52 offen offset:{(n*1024) & 4095} sc1"], None)

    PRE = [0, 1, 8, 9, 16, 17, 24, 25, 2, 4, 10, 12, 18, 20, 5, 13][:ENV("NPRE", 8)]
    REST = [n for n in range(32) if n not in PRE]
    NR = len(REST)

    def wreads(stage, half, buf=None):
        out = []
        for j in range(4 * half, 4 * half + 4):
            for sp in range(2):
                b = fw(j, sp)
                out.append(f"ds_read_b64_tr_b16 a[{b}:{b+1}], v{QWR+j} offset:{((stage + 2) % 4)*16384 + sp*8192}")
                out.append(f"ds_read_b64_tr_b16 a[{b+2}:{b+3}], v{QWR+j} offset:{((stage + 2) % 4)*16384 + sp*8192 + 1024}")
        return out

    def qacc(db, qb):
        return ("v", 192 + (db * 2 + qb) * 4) if qb < 2 else ("a", 64 + (db * 2 + qb - 2) * 4)

    for isv in range(2):
        if isv:
            a.label(lv)
        loop, last = a.uid("k12_loop"), a.uid("k12_last")
        a.label(loop)
        for st in range(2):
            if st == 1:
                a("s_cmp_eq_u32 s51, 7")
                a(f"s_cbranch_scc1 {last}")
            ops = spread(wrd(st, range(4, 8)), "M", 1, 48)
            if st == 0:
                ops.append(when("s_cmp_eq_u32 s51, s46", f"buffer_load_dword v{VPOLL}, v{ZERO}, s[24:27], 0 offen sc1", 4))
            gt = (when("s_cmp_eq_u32 s51, s46", spin_text(a, 0, 256), 0).text + "\n") if st == 0 else ""
            ops.append(Op(tr_wrap("s_waitcnt vmcnt(0) lgkmcnt(0)\n" + gt + "s_barrier"), "S", 63, lo=63, hard=63, after=list(ops)))
            schedule(a, mfmas(st, 0, isv), ops)
            rd = spread(mix(xreads(1 - st), wrd(1 - st, range(4))), "M", 1, 54)
            pre = []
            if st == 0:
                pre = [Op("s_cmp_ge_u32 s49, 1024\ns_cselect_b32 s18, 0, s18\ns_cselect_b32 s22, 0, s22", "S", 0, hard=0)]
            dm, dl = grp_sched([dma_grp(st, g) for g in range(4)], 1, ENV("GD1", 56), after=pre)
            sig = when("s_cmp_eq_u32 s51, s53", one_lane(f"buffer_atomic_add v{ONE}, v{ZERO}, s[24:27], 0 offen sc1"), 58, after=dl)
            ops = rd + pre + dm + [sig]
            cnt_after = [sig]
            p_ = when("s_cmp_eq_u32 s51, s63", pf, 59, after=dl)
            ops.append(p_)
            cnt_after.append(p_)
            if st == 1:
                p_ = when("s_cmp_eq_u32 s51, 5", cpf, 60, after=dl)
            else:
                p_ = when("s_cmp_eq_u32 s51, 6", "\n".join(g[0] + "\ns_nop 0\n" + "\n".join(g[1]) + "\n" + g[2] for g in (wdma(0), wdma(1))), 60, after=dl)
            ops.append(p_)
            cnt_after.append(p_)
            ops.append(Op("s_add_u32 s51, s51, 1", "S", 62, after=cnt_after))
            ops.append(Op("s_waitcnt lgkmcnt(0)", "S", 63, lo=63, hard=63, after=rd))
            schedule(a, mfmas(st, 1, isv), ops)
        a(f"s_branch {loop}")
        a.label(last)
        stamp(a, 2)
        seq = [(c, j) for j in range(8) for c in range(4)] if isv else [(c, j) for c in range(4) for j in range(8)]
        mf, ops = [], []
        done = {}
        tuse = []
        for pos, (c, j) in enumerate(seq):
            n = pair_n(c, j, isv)
            for i in (2 * c, 2 * c + 1):
                kss = (1, 0) if i % 2 else (0, 1)
                mf += mf2(j, i, 1, isv, kss) if isv else mf2(i, j, 1, isv, kss)
            g0 = 4 * pos + 3 + 6
            d = PK + 4 * n
            if n < 24:
                x, y = 64 + 4 * n, 160 + 4 * n
                tx = [f"v_cvt_pk_bf16_f32 v{d}, v{x}, v{x+1}", f"v_cvt_pk_bf16_f32 v{d+1}, v{x+2}, v{x+3}",
                      f"v_cvt_pk_bf16_f32 v{d+2}, v{y}, v{y+1}", f"v_cvt_pk_bf16_f32 v{d+3}, v{y+2}, v{y+3}"]
                o = spread(tx, "A", g0, g0 + 2)
            else:
                x = 128 + 8 * (n - 24)
                tx = [f"v_accvgpr_read_b32 v{PT+r}, a{x+r}" for r in range(8)]
                tx += [f"v_cvt_pk_bf16_f32 v{d+r}, v{PT+2*r}, v{PT+2*r+1}" for r in range(4)]
                o = spread(tx, "A", g0, g0 + 5)
                o[0].after += tuse + [done[n - 24]]
                tuse = [o[-1]]
            done[n] = o[-1]
            ops += o
        w47 = spread(wrd(1, range(4, 8)), "M", 1, 40)
        ld, ll = grp_sched([xloads(0), xloads(1), xloads(2), xloads(3)], 0, 30)
        ops += w47 + ld + [Op("s_waitcnt lgkmcnt(0)", "S", 60, lo=60, hard=62, after=w47)]
        prev_ = list(ll)
        for k_, n_ in enumerate(sorted(PRE, key=lambda n: done[n].want)):
            m_, l_, _ = kvstore(n_, "s[32:35]")
            w_ = ENV("PS0", 34) + k_ * (126 - ENV("PS0", 34)) / max(1, len(PRE))
            o1 = Op(m_, "S", w_ - 1, after=prev_)
            o2 = Op(l_[0], "V", w_, after=[o1, done[n_]])
            ops += [o1, o2]
            prev_ = [o2]
        bar = Op("s_waitcnt vmcnt(16)\ns_barrier", "S", 96, lo=96, after=ll)
        rd = spread(wreads(0, 0, 0), "M", 97, 120)
        rd[0].after.append(bar)
        ops += [bar] + rd
        schedule(a, mf, ops)
        if not isv:
            a(f"s_branch {joined}")
    a.label(joined)
    a.label("k12_qcode")
    a("s_mov_b64 s[48:49], s[32:33]")
    a("s_mov_b32 s51, 0x00020000")
    a("s_cmp_eq_u32 s45, 0")
    a("s_mov_b32 s50, s34")
    a("s_cselect_b32 s56, s30, -1")
    a("s_cselect_b32 s57, -1, s30")
    a(tr_wrap(f"s_waitcnt vmcnt({8 + len(PRE)}) lgkmcnt(0)"))

    NS = ENV("NS", 20)
    PSIG = ENV('PSIG', NS + 3)
    PPOLL = ENV("PPOLL", 27)
    assert PSIG % 2 == 1 and PPOLL % 2 == 1 and PSIG < PPOLL
    queue = ["W0"] * 4 + ["W1"] * 4 + ["X0"] * 4 + ["X1"] * 4 + ["X2"] * 4 + ["X3"] * 4 + ["L"] * len(PRE)

    def younger(tag):
        if tag not in queue:
            return 63
        return len(queue) - 1 - max(i for i, t in enumerate(queue) if t == tag)

    kvsrd = ["s_lshl_b32 s31, s28, 14", "s_add_u32 s16, s6, s31\ns_addc_u32 s17, s7, 0",
             f"s_add_u32 s20, s16, 0x{VF_OFF:x}\ns_addc_u32 s21, s17, 0", f"s_add_u32 s16, s16, 0x{KF_OFF:x}\ns_addc_u32 s17, s17, 0",
             "s_and_b32 s17, s17, 0xffff", "s_and_b32 s21, s21, 0xffff", "s_lshl_b32 s31, s29, 20", "s_sub_u32 s18, 0xf84000, s31",
             "s_mov_b32 s22, s18",
             f"s_add_u32 s24, s6, 0x{KVC_OFF:x}\ns_addc_u32 s25, s7, 0", "s_and_b32 s25, s25, 0xffff", "s_mov_b32 s26, 4096"]

    def kdma():
        return ("s_mov_b32 m0, s34", [f"buffer_load_dwordx4 v{V_LANE16}, s[16:19], s32 offen offset:{i*1024}{LDF} lds" for i in range(4)],
                "s_add_u32 s32, s32, 0x80000\ns_add_u32 s34, s34, 0x4000")

    def vdma():
        return ("s_mov_b32 m0, s35", [f"buffer_load_dwordx4 v{V_LANE16}, s[20:23], s33 offen offset:{i*1024}{LDF} lds" for i in range(4)],
                "s_add_u32 s33, s33, 0x80000\ns_add_u32 s35, s35, 0x4000")

    NL = ENV('NL', 29)
    NE0 = (NS * NR) // NL
    sn, sl_, nx, nw = NE0, 0, 4, 2
    assert NL <= PPOLL + 2
    S0 = ENV("S0", 0)
    for ks in range(32):
        st, sp = ks // 2, ks % 2
        ops = []
        rd = []
        if ks < 31:
            rd = spread(wreads(st, 1, 1) if sp == 0 else wreads(st + 1, 0, 0), "M", 1, 22)
        ops += rd
        grps, tags = [], []
        while nw < 16 and ((sp == 1 and nw <= st + DW) or (ks == 0 and nw < DW)):
            grps.append(wdma(nw)); tags.append(f"W{nw}"); nw += 1
        for _ in range(2):
            if nx < 32 and nx <= ks + DX:
                grps.append(xloads(nx)); tags.append(f"X{nx}"); nx += 1
        while sl_ < NR and sl_ < ((ks + 1) * NR) // NL:
            grps.append(kvstore(REST[sl_], "s[48:51]")); tags.append("L"); sl_ += 1
        early = []
        while ks < NS and sn < NR and sn < NE0 + ((ks + 1) * (NR - NE0) + NS - 1) // NS:
            m_, l_, _ = kvstore(REST[sn], "s[48:51]")
            early += [m_, l_[0]]
            sn += 1
        head = []
        if ks == 0:
            ops += spread(kvsrd, "S", 6, 30)
        if ks == PSIG:
            head = [when("s_cmp_eq_u32 s56, 0", one_lane(f"buffer_atomic_add v{ONE}, v{ZERO}, s[24:27], s54 offen sc1"), 0)]
            ops += spread(k2.kv_first(), "S", 8, 20)
        if ks == 24:
            ops.append(Op("v_add_co_u32 v2, vcc, 0x4000, v2\ns_nop 1\nv_addc_co_u32 v3, vcc, 0, v3, vcc\n" + cpf, "B", 29))
        if ks == PPOLL:
            head = [when("s_cmp_eq_u32 s30, 0", f"buffer_load_dword v{VPOLL}, v{ZERO}, s[24:27], s55 offen sc1", 0)]
            qpoll = len(queue)
        if ks == PPOLL + 2:
            grps += [kdma(), kdma()]; tags += ["K0", "K1"]
        if ks == PPOLL + 3:
            grps += [vdma(), kdma()]; tags += ["V0", "K2"]
        if ks == PPOLL + 4:
            grps += [vdma()]; tags += ["V1"]
        ops += head
        if grps:
            g, gl_ = grp_sched(grps, 1, 27, after=head)
            ops += g
        if ks == NS - 1:
            early.append("s_mov_b32 s50, 0")
        if early:
            ops.append(when("s_cmp_eq_u32 s45, 0", "\n".join(early), 29, after=gl_))
        for gr, tg in zip(grps, tags):
            queue += [tg] * len(gr[1])
        if ks == NS - 1:
            assert sn == NR and sl_ == NE0
            qearly = len(queue)
        if ks < 31:
            nk = ks + 1
            wv = younger(f"W{nk // 2 + 1}") if nk % 2 else younger(f"X{nk + 1}")
            if nk == PSIG:
                wv = min(wv, len(queue) - qearly)
            wv = min(wv, 63)
            prevw = wv
            wtxt = f"s_waitcnt vmcnt({wv}) lgkmcnt(0)"
            if ks == PPOLL + 1:
                ops.append(when("s_cmp_eq_u32 s30, 0", f"s_waitcnt vmcnt({len(queue) - qpoll})\n" + spin_text(a, "s55", 2), 29, lo=28, after=[o for o in ops if o.cls == "V"]))
            if nk % 2:
                wtxt = tr_wrap(wtxt + "\ns_barrier") if nk % 4 == 1 else wtxt + "\ns_barrier"
            ops.append(Op(wtxt, "S", 31, lo=31, hard=31, after=[o for o in ops if o.cls in "MVB"]))
        mf = []
        for db, qb, k2_, f_ in snake(range(4 * sp, 4 * sp + 4), range(4), 2):
            k, c = qacc(db, qb)
            r = f"{k}[{c}:{c+3}]"
            mf.append(mfma16(r, aq(fw(db, k2_)), aq(XS(2 * st + k2_) + 4 * qb), "0" if (st == 0 and f_) else r))
        schedule(a, mf, ops)
    assert PPOLL + 4 <= 31
    stamp(a, 3)
    assert younger("L") >= 8
    a("s_add_u32 s3, s54, 64")
    a("s_add_u32 s5, s55, 64")
    a("s_mov_b32 s63, s57")
    late = dict(
        sig=when("s_cmp_eq_u32 s63, 0", one_lane(f"buffer_atomic_add v{ONE}, v{ZERO}, s[24:27], s3 offen sc1"), 0).text,
        poll=lambda: when("s_cmp_eq_u32 s30, 0", "buffer_load_dword v58, v59, s[24:27], s5 offen sc1", 2),
        gate=lambda **kw: when("s_cmp_eq_u32 s30, 0", "s_waitcnt vmcnt(0)\n" + spin_text(a, "s5", 14, 58, 59), 29, **kw))
    attention_phase(a, end, 0, qacc, late, stubs=stubs, next_code='op_head' if fuse else (None if os.environ.get('WHICH') == 'k12' else 'k3_kernel'), when=when if fuse else None, ffn=ffn)
    a.end_kernel(name, 256, 256)
    a.launch(name, 256, 256, 163840)
```

```python
from common import *
import common, os
from sched import Op, spread, schedule
import k2
from k2 import vq, aq, V_LANE16, V_VV, V_NINF, attention_phase, LDF

SPIN_MAX = 1 << 20
KO = set(os.environ.get('KO', '').split(','))
NT = ' nt' if 'nt' in KO else ''
ENV = lambda k, d: int(os.environ.get(k, str(d)))

ZERO, ONE = 8, 9
XD, WD, XRD, WRD = 10, 18, 26, 28
QX, QWD, QWR = 36, 38, 42
VPF, VDUM, VPOLL, VXST, VLW, VLR = 50, 51, 52, 53, 54, 55
PT = 56
PK = 64
WRING = 98304


def spin_text(a, soff, target, VPOLL=VPOLL, ZERO=ZERO):
    ok, lp = a.uid("spin_ok"), a.uid("spin")
    return "\n".join([
        f"v_readfirstlane_b32 s31, v{VPOLL}", f"s_cmp_ge_u32 s31, {target}", f"s_cbranch_scc1 {ok}",
        f"s_mov_b32 s40, {SPIN_MAX}", f"{lp}:", "s_sleep 8",
        f"buffer_load_dword v{VPOLL}, v{ZERO}, s[24:27], {soff} offen sc1", "s_waitcnt vmcnt(0)",
        f"v_readfirstlane_b32 s31, v{VPOLL}", "s_sub_u32 s40, s40, 1", "s_cselect_b32 s31, -1, s31",
        f"s_cmp_lt_u32 s31, {target}", f"s_cbranch_scc1 {lp}", f"{ok}:"])


def one_lane(text):
    return f"s_mov_b64 exec, 1\n{text}\ns_mov_b64 exec, -1"


def gen_k12(a, name="k12_kernel", fuse=False, ffn=None):
    a.begin_kernel(name)
    end = a.uid("k12_end")
    stubs = []
    pst = (lambda i: stamp(a, i)) if "ptrace" in KO else (lambda i: None)

    def when(cmp_text, body, want, **kw):
        l, r = a.uid("k12_ool"), a.uid("k12_oolret")
        if "nosig" in KO and "s[24:27]" in body:
            body = "s_nop 0"
        stubs.append((l, body, r))
        return Op(f"{cmp_text}\ns_cbranch_scc1 {l}\n{r}:", "B", want, **kw)

    a("s_cmp_ge_u32 s2, 256")
    a(f"s_cbranch_scc1 {end}")
    stamp(a, 0)
    a(f"s_load_dwordx4 s[36:39], s[0:1], {ARG['x']}")
    a(f"s_load_dwordx4 s[40:43], s[0:1], {ARG['wuk']}")
    a(f"s_load_dwordx2 s[4:5], s[0:1], {ARG['wq']}")
    a(f"s_load_dwordx4 s[60:63], s[0:1], {ARG['dbg']}")
    if ENV("TOUCH", 1) >= 2:
        a(f"s_load_dwordx8 s[8:15], s[0:1], {ARG['wo']}")
        a(f"s_load_dwordx4 s[32:35], s[0:1], {ARG['wu']}")
        a(f"s_load_dwordx2 s[28:29], s[0:1], {ARG['out']}")
    CE = ENV("CE", 48)
    a("s_lshr_b32 s59, s2, 3")
    a("s_lshl_b32 s58, s59, 4")
    a("v_add_u32 v6, s58, v0")
    a(f"v_cmp_gt_u32 vcc, {CE}, v0")
    a(f"v_cmp_gt_u32 s[56:57], {CE + 16}, v0")
    a("s_nop 0")
    a("v_cndmask_b32 v6, v6, v0, vcc")
    code_addr(a, "k12_code0", 58, 6, 52)
    a.label("k12_code0")
    a("s_mov_b64 exec, s[56:57]")
    cs = a.uid("k12_nocode")
    a(f"s_cbranch_execz {cs}")
    a(f"global_load_dword v{VDUM}, v[58:59], off")
    a.label(cs)
    a("s_mov_b64 exec, -1")
    a("s_and_b32 s58, s2, 7")
    a("s_lshr_b32 s59, s2, 3")
    a("s_and_b32 s45, s59, 7")
    a("s_lshr_b32 s57, s59, 3")
    a("s_and_b32 s44, s57, 1")
    a("s_lshl_b32 s52, s58, 1")
    a("s_add_u32 s44, s44, s52")
    a("s_lshr_b32 s57, s57, 1")
    W, LN_ = 2, 3
    a(f"v_lshrrev_b32 v{W}, 6, v0")
    a(f"v_and_b32 v{LN_}, 63, v0")
    a(f"v_readfirstlane_b32 s30, v{W}")
    a(f"v_lshlrev_b32 v{V_LANE16}, 4, v{LN_}")
    VX, VT = 64, 80
    TOK, L32 = 60, 61
    a(f"v_lshrrev_b32 v{TOK}, 5, v{LN_}")
    a(f"v_lshl_add_u32 v{TOK}, v{W}, 1, v{TOK}")
    a(f"v_and_b32 v{L32}, 31, v{LN_}")
    a(f"v_lshlrev_b32 v6, 11, v{TOK}")
    a(f"v_lshl_add_u32 v62, v{L32}, 4, v6")
    a("s_lshl_b32 s52, s2, 14")
    a(f"v_lshrrev_b32 v56, 3, v{LN_}")
    a(f"v_and_b32 v57, 7, v{LN_}")
    a("v_lshrrev_b32 v58, 1, v56")
    a("v_xor_b32 v6, v57, v58")
    a("v_xor_b32 v7, 4, v6")
    a(f"v_lshl_add_u32 v58, v{W}, 6, v56")
    a("v_lshlrev_b32 v58, 10, v58")
    a("s_lshl_b32 s47, s45, 18")
    a("v_add_u32 v58, s47, v58")
    a(f"v_lshl_add_u32 v{XD}, v6, 4, v58")
    a(f"v_lshl_add_u32 v{XD+1}, v7, 4, v58")
    for i in range(7, -1, -1):
        a(f"v_add_u32 v{XD+i}, {i*8*1024 - (i%4)*1024}, v{XD + (i%2)}")
    def wd_addr():
        a(f"v_lshrrev_b32 v6, 5, v{LN_}")
        a(f"v_bfe_u32 v7, v{LN_}, 1, 4")
        a(f"v_and_b32 v59, 1, v{LN_}")
        a(f"v_lshl_add_u32 v58, v{W}, 4, v6")
        a("v_lshlrev_b32 v58, 13, v58")
        a("v_lshl_add_u32 v58, v59, 4, v58")
        a("s_lshl_b32 s47, s44, 9")
        a("v_add_u32 v58, s47, v58")
        a("v_xor_b32 v7, v7, v6")
        for i in range(8):
            fx = ((2 * i) & 3) | ((((2 * i) >> 3) & 1) << 2)
            a(f"v_xor_b32 v6, {fx}, v7")
            a(f"v_lshl_add_u32 v6, v6, 5, v58")
            a(f"v_add_u32 v{WD+i}, {2*i*8192 - (i%4)*1024}, v6")
    if not ENV('WDL', 1):
        wd_addr()
    XB, WB = 0, 65536
    a("s_lshl_b32 s48, s30, 13")
    a("s_mov_b32 s49, 0")
    a("s_mov_b32 s50, 0")
    pst(1)
    a("s_waitcnt lgkmcnt(0)")
    a.srd(24, 36, 4 << 20)
    XP = ENV("XP", 1)

    def xrows():
        for i in range(4):
            a(f"buffer_load_dwordx4 v[{VX+4*i}:{VX+4*i+3}], v62, s[24:27], s52 offen offset:{i*512}{NT}")
    if XP == 0:
        xrows()
    a.srd(16, 38, 2 << 20)
    a("s_cmp_eq_u32 s57, 0")
    a("s_cselect_b32 s20, s40, s42")
    a("s_cselect_b32 s21, s41, s43")
    a("s_and_b32 s21, s21, 0xffff")
    a("s_mov_b32 s22, 0x400000")
    a("s_mov_b32 s23, 0x00020000")

    def dma_grp(stage, g):
        op, i0 = g // 2, (g % 2) * 4
        m = f"s_add_u32 m0, s48, {(XB if op == 0 else WB) + stage*32768 + i0*1024}"
        if op == 0:
            ld = [f"buffer_load_dwordx4 v{XD+i0+i}, s[16:19], s49 offen offset:{i*1024} lds" for i in range(4)]
        else:
            ld = [f"buffer_load_dwordx4 v{WD+i0+i}, s[20:23], s50 offen offset:{i*1024}{NT} lds" for i in range(4)]
        tr = {1: "s_add_u32 s49, s49, 128", 3: "s_add_u32 s50, s50, 0x80000"}.get(g)
        return m, ld, tr

    def emit_grp(m, ld, tr):
        a(m)
        a("s_nop 0")
        for t in ld:
            a(t)
        if tr:
            a(tr)

    def grp_sched(grps, lo, hi, after=()):
        ops, prev = [], list(after)
        tot = sum(len(g[1]) for g in grps)
        step = (hi - lo) / float(tot)
        k = 0
        for (m, ld, tr) in grps:
            mo = None
            if m:
                mo = Op(m, "S", lo + step * k - 1, lo=lo, after=prev)
                ops.append(mo)
            for t in ld:
                o = Op(t, "V", lo + 1 + step * k, lo=lo, after=prev, prev_gap=[mo] if mo else [])
                ops.append(o)
                prev = [o]
                k += 1
            if tr:
                for t in tr.split("\n"):
                    o = Op(t, "S", lo + step * k, after=prev)
                    ops.append(o)
                    prev = [o]
        return ops, prev

    TL = ENV("TOUCH", 1)

    def late_touch():
        for pr in (8, 12, 14, 32, 34, 28):
            a(f"global_load_dword v{VDUM}, v6, s[{pr}:{pr+1}]")
    if TL:
        a(f"v_lshlrev_b32 v6, 17, v{V_LANE16}")
        a("s_mov_b64 exec, 1")
        a(f"buffer_load_dword v{VDUM}, v62, s[24:27], s52 offen")
        a(f"global_load_dword v{VDUM}, v6, s[60:61]")
        a(f"buffer_load_dword v{VDUM}, v6, s[20:23], 0 offen")
        a(f"global_load_dword v{VDUM}, v6, s[62:63]")
        a(f"global_load_dword v{VDUM}, v6, s[4:5]")
        if TL == 2:
            late_touch()
        a("s_mov_b64 exec, -1")
    PG = ENV("PG", 2)
    order0 = [0, 2, 1, 3]
    for k_, g in enumerate(order0[:PG]):
        emit_grp(*dma_grp(0, g))
        if k_ + 1 == XP:
            xrows()
        if k_ == 0 and ENV('WDL', 1):
            wd_addr()
    if TL == 3:
        a("s_mov_b64 exec, 1")
        late_touch()
        a("s_mov_b64 exec, -1")
    pst(2)
    a("s_mov_b64 s[6:7], s[62:63]")
    a.srd_off(8, 6, XN_OFF, 4 << 20)
    a.srd_off(32, 6, KF_OFF, 32 << 20)
    a("s_mov_b32 s46, -1")
    pf = f"buffer_load_dword v{VDUM}, v{VPF}, s[12:15], s56 offen"
    cpf = f"global_load_dword v{VDUM}, v[2:3], off"

    def deferred(a):
        a.srd(12, 4, 8 << 20)
        a.srd(24, 60, 256)
        a("s_lshl_b32 s28, s58, 2")
        a("s_and_b32 s31, s59, 3")
        a("s_add_u32 s28, s28, s31")
        a("s_lshr_b32 s29, s59, 2")
        a("s_lshl_b32 s42, s29, 7")
        a("s_sub_u32 s43, 1920, s42")
        a("s_lshl_b32 s31, s30, 4")
        a("s_add_u32 s38, s42, s31")
        a("s_add_u32 s39, s43, s31")
        a("s_lshl_b32 s60, s30, 12")
        a("s_mov_b32 s61, 0")
        a("s_mov_b32 s62, 0")
        a("s_lshl_b32 s47, s44, 1")
        a("s_lshr_b32 s52, s30, 1")
        a("s_add_u32 s47, s47, s52")
        a("s_lshl_b32 s47, s47, 14")
        a("s_lshl_b32 s52, s45, 1")
        a("s_and_b32 s53, s30, 1")
        a("s_add_u32 s52, s52, s53")
        a("s_lshl_b32 s52, s52, 20")
        a("s_add_u32 s47, s47, s52")
        a("s_lshl_b32 s52, s57, 24")
        a("s_add_u32 s47, s47, s52")
        assert VF_OFF - KF_OFF == 1 << 24
        a("s_lshl_b32 s54, s44, 8")
        a("s_lshr_b32 s55, s28, 1")
        a("s_lshl_b32 s55, s55, 8")
        a("s_and_b32 s53, s59, 3")
        a("s_add_u32 s53, s53, 1")
        a("s_cmp_eq_u32 s30, 0")
        a("s_cselect_b32 s53, s53, -1")
        a("s_cselect_b32 s46, 6, -1")
        a(f"v_lshrrev_b32 v6, 3, v{LN_}")
        a(f"v_and_b32 v7, 7, v{LN_}")
        a("v_lshlrev_b32 v6, 13, v6")
        a(f"v_lshl_add_u32 v{VPF}, v7, 7, v6")
        a("s_lshl_b32 s56, s30, 5")
        a("s_add_u32 s56, s56, s59")
        a("s_lshl_b32 s56, s56, 16")
        a("s_lshl_b32 s52, s58, 10")
        a("s_add_u32 s56, s56, s52")
        a("s_add_u32 s63, s30, 1")
        a(f"v_and_b32 v56, 15, v{LN_}")
        a(f"v_lshrrev_b32 v57, 4, v{LN_}")
        a("v_lshrrev_b32 v6, 2, v56")
        a("v_and_b32 v58, 1, v57")
        a("v_lshl_add_u32 v58, v58, 2, v6")
        a("v_lshl_add_u32 v59, v57, 3, v6")
        a(f"v_and_b32 v63, 3, v{LN_}")
        a("v_lshlrev_b32 v59, 8, v59")
        a("v_lshl_add_u32 v59, v63, 3, v59")
        a(f"v_add_u32 v59, {WRING}, v59")
        for j in range(8):
            a(f"v_xor_b32 v6, {j}, v58")
            a(f"v_lshl_add_u32 v{QWR+j}, v6, 5, v59")
        a("s_lshl_b32 s31, s38, 6")
        a(f"v_add_u32 v{QX}, s31, v{V_LANE16}")
        a("s_lshl_b32 s31, s39, 6")
        a(f"v_add_u32 v{QX+1}, s31, v{V_LANE16}")
        a(f"v_add_u32 v{VLW}, 4096, v{QX}")
        a(f"v_add_u32 v{VLR}, 4096, v{QX+1}")
        a(f"v_bfe_u32 v6, v{LN_}, 1, 3")
        a(f"v_and_b32 v7, 1, v{LN_}")
        a(f"v_lshl_add_u32 v58, v{W}, 4, v57")
        a("v_lshlrev_b32 v58, 13, v58")
        a("v_lshl_add_u32 v58, v7, 4, v58")
        a("s_lshl_b32 s31, s28, 8")
        a("v_add_u32 v58, s31, v58")
        a("v_xor_b32 v6, v6, v57")
        for i in range(4):
            a(f"v_xor_b32 v7, {(i // 2) << 2}, v6")
            a(f"v_lshl_add_u32 v7, v7, 5, v58")
            a(f"v_add_u32 v{QWD+i}, {4*i*8192 - i*1024}, v7")
        a("v_lshlrev_b32 v6, 2, v57")
        a(f"v_sub_u32 v{V_VV}, v56, v6")
        a(f"v_mov_b32 v{V_NINF}, 0xff800000")
        a(f"v_mov_b32 v{ZERO}, 0")
        a(f"v_mov_b32 v{ONE}, 1")
        a("s_lshl_b32 s52, s59, 2")
        a("s_add_u32 s52, s52, s30")
        a(f"v_and_b32 v6, 1, v{LN_}")
        a("v_lshl_add_u32 v6, s52, 1, v6")
        code_addr(a, "k12_qcode", 2, 6, 40)

    XL = 131072
    a(f"v_mul_u32_u24 v6, 2064, v{TOK}")
    a(f"v_lshl_add_u32 v6, v{L32}, 4, v6")
    a(f"v_add_u32 v{VLW}, {XL}, v6")
    a("v_mul_u32_u24 v7, 2064, v57")
    a("v_lshl_add_u32 v7, v56, 4, v7")
    a(f"v_lshl_add_u32 v7, v{W}, 9, v7")
    a(f"v_add_u32 v{VLR}, {XL}, v7")
    a("v_lshrrev_b32 v7, 2, v56")
    a(f"v_lshl_add_u32 v7, v{W}, 3, v7")
    a("v_lshlrev_b32 v7, 17, v7")
    a("v_and_b32 v6, 3, v56")
    a("v_lshl_add_u32 v7, v6, 8, v7")
    a("v_lshl_add_u32 v7, v57, 4, v7")
    a("s_lshr_b32 s52, s2, 1")
    a("s_lshl_b32 s52, s52, 10")
    a("s_and_b32 s31, s2, 1")
    a("s_lshl_b32 s31, s31, 7")
    a("s_add_u32 s52, s52, s31")
    a(f"v_add_u32 v{VXST}, s52, v7")
    a(f"v_and_b32 v56, 15, v{LN_}")
    a(f"v_lshrrev_b32 v57, 4, v{LN_}")
    a("v_lshrrev_b32 v6, 1, v56")
    a("v_xor_b32 v6, v6, v57")
    a(f"v_and_b32 v7, 1, v{W}")
    a("v_lshl_add_u32 v7, v7, 7, v56")
    a("v_lshlrev_b32 v7, 7, v7")
    a(f"v_lshl_add_u32 v{XRD}, v6, 4, v7")
    a(f"v_xor_b32 v{XRD+1}, 64, v{XRD}")
    a("v_lshrrev_b32 v6, 2, v56")
    a("v_and_b32 v58, 1, v57")
    a("v_lshl_add_u32 v58, v58, 2, v6")
    a("v_lshl_add_u32 v59, v57, 3, v6")
    a(f"v_and_b32 v63, 3, v{LN_}")
    a("v_lshlrev_b32 v7, 9, v59")
    a(f"v_lshrrev_b32 v6, 1, v{W}")
    a("v_lshl_add_u32 v7, v6, 8, v7")
    a("v_lshl_add_u32 v7, v63, 3, v7")
    a(f"v_add_u32 v7, {WB}, v7")
    for j in range(8):
        a(f"v_xor_b32 v6, {j}, v58")
        a(f"v_lshl_add_u32 v{WRD+j}, v6, 5, v7")
    zero_acc(a, 128, 64, 56)
    zero_acc(a, 128, 128, 56, "v", init=False)
    for g in order0[max(PG, 2):]:
        emit_grp(*dma_grp(0, g))
    pst(3)
    a(f"s_waitcnt vmcnt({16 - 4 * XP + (6 if TL == 3 else 0)})")
    pst(4)
    t_ = Asm()
    ln_rows_half_wave(t_, VX, VT)
    nl_ = len(t_.lines)
    for i, ln in enumerate(t_.lines):
        a.lines.append(ln)
        for g in range(4):
            if i == (nl_ * (g + 1) // 5 if not ENV("S1L", 0) else nl_ - 1):
                emit_grp(*dma_grp(1, order0[g]))
    pst(5)
    for i in range(4):
        a(f"ds_write_b128 v{VLW}, v[{VX+4*i}:{VX+4*i+3}] offset:{i*512}")
    pst(6)
    a("s_waitcnt vmcnt(16) lgkmcnt(0)")
    a("s_barrier")
    if "ptrace" in KO:
        stamp_dump(a, 0, 7, 6)
        a("s_endpgm")
    XT = 64
    for i in range(4):
        a(f"ds_read_b128 {aq(XT+4*i)}, v{VLR} offset:{i*128}")
    zero_acc(a, 64, 64, 56, "v", init=False)

    FXS = [192, 64]
    fw = lambda o, ks: (o * 2 + ks) * 4
    fx = lambda st, j, ks: FXS[st] + (j * 2 + ks) * 4

    def xreads(st):
        return [f"ds_read_b128 {aq(fx(st, j, ks))}, v{XRD+ks} offset:{XB + st*32768 + j*2048}" for j in range(8) for ks in range(2)]

    def wrd(st, os_):
        out = []
        for o in os_:
            for ks in range(2):
                b = fw(o, ks)
                out.append(f"ds_read_b64_tr_b16 a[{b}:{b+1}], v{WRD+o} offset:{st*32768 + ks*16384}")
                out.append(f"ds_read_b64_tr_b16 a[{b+2}:{b+3}], v{WRD+o} offset:{st*32768 + ks*16384 + 2048}")
        return out

    def mix(x, y):
        return [t for p in zip(x, y) for t in p]

    def pair_n(c, j, isv):
        return (c * 8 + j) if isv else (j * 4 + c)

    def acc(i, j, isv):
        n = pair_n(i // 2, j, isv)
        if n < 24:
            return ("v", (64 if i % 2 == 0 else 160) + 4 * n)
        return ("a", 128 + 8 * (n - 24) + 4 * (i % 2))

    def mf2(o, x, st, isv, kss=(0, 1)):
        k, c = acc(x, o, isv) if isv else acc(o, x, isv)
        r = f"{k}[{c}:{c+3}]"
        return [mfma16(r, *((aq(fx(st, x, ks)), aq(fw(o, ks))) if isv else (aq(fw(o, ks)), aq(fx(st, x, ks)))), r) for ks in kss]

    def mfmas(st, half, isv):
        return [mf2(o, x, st, isv, [k])[0] for o, x, k, _ in snake(range(4 * half, 4 * half + 4), range(8), 2)]

    skip = a.uid("k12_nostat")
    a(f"s_cmp_ge_u32 s2, {ZERO_BYTES // 4096}")
    a(f"s_cbranch_scc1 {skip}")
    a("s_lshl_b32 s52, s2, 12")
    a(f"s_add_u32 s52, s52, 0x{STATS_OFF - KF_OFF:x}")
    a("s_mov_b32 s34, -1")
    a("v_lshlrev_b32 v6, 4, v0")
    a("buffer_store_dwordx4 v[56:59], v6, s[32:35], s52 offen sc1")
    a(f"s_mov_b32 s34, 0x{32 << 20:x}")
    a.label(skip)
    stamp(a, 1)
    tr_init(a)
    for t in mix(xreads(0), wrd(0, range(4))):
        a(t)
    a("s_mov_b32 s51, 0")
    a("s_waitcnt lgkmcnt(15)")
    for i in range(4):
        a(f"s_mov_b32 s52, {i*2*131072}")
        a(f"buffer_store_dwordx4 {aq(XT+4*i)}, v{VXST}, s[8:11], s52 offen sc1")
    a("s_waitcnt lgkmcnt(0)")
    lv, joined = a.uid("k12_v"), a.uid("k12_join")
    lk = a.uid("k12_k")
    a("s_cmp_lg_u32 s57, 0")
    a(f"s_cbranch_scc1 {lv}")
    a(f"s_branch {lk}")
    a.label("k12_deferred")
    deferred(a)
    a("s_setpc_b64 s[36:37]")
    a.label(lk)

    DX, DW = ENV("QDX", 4), ENV("QDW", 2)
    XS = lambda ks: 128 + ((ks + 4) % 8) * 16
    QF = [0, 32]

    def wdma(stage):
        return (f"s_add_u32 m0, s60, {WRING + ((stage + 2) % 4)*16384}",
                [f"buffer_load_dwordx4 v{QWD+i}, s[12:15], s61 offen offset:{i*1024} lds" for i in range(4)], "s_add_u32 s61, s61, 0x80000")

    def xloads(ks):
        return (None, [f"buffer_load_dwordx4 {aq(XS(ks) + 4*qb)}, v{(QX, VLW, QX+1, VLR)[qb]}, s[8:11], s62 offen sc1" for qb in range(4)],
                "s_add_u32 s62, s62, 0x20000")

    def kvstore(n, srd):
        return (f"s_add_u32 s52, s47, {(n // 16) * 0x80000 + (((n % 16) * 1024) & ~4095)}",
                [f"buffer_store_dwordx4 v[{PK+n*4}:{PK+3+n*4}], v{V_LANE16}, {srd}, s52 offen offset:{(n*1024) & 4095} sc1"], None)

    PRE = [0, 1, 8, 9, 16, 17, 24, 25, 2, 4, 10, 12, 18, 20, 5, 13][:ENV("NPRE", 8)]
    REST = [n for n in range(32) if n not in PRE]
    NR = len(REST)

    def wreads(stage, half, buf=None):
        out = []
        for j in range(4 * half, 4 * half + 4):
            for sp in range(2):
                b = fw(j, sp)
                out.append(f"ds_read_b64_tr_b16 a[{b}:{b+1}], v{QWR+j} offset:{((stage + 2) % 4)*16384 + sp*8192}")
                out.append(f"ds_read_b64_tr_b16 a[{b+2}:{b+3}], v{QWR+j} offset:{((stage + 2) % 4)*16384 + sp*8192 + 1024}")
        return out

    def qacc(db, qb):
        return ("v", 192 + (db * 2 + qb) * 4) if qb < 2 else ("a", 64 + (db * 2 + qb - 2) * 4)

    for isv in range(2):
        if isv:
            a.label(lv)
        loop, last = a.uid("k12_loop"), a.uid("k12_last")
        a.label(loop)
        for st in range(2):
            if st == 1:
                a("s_cmp_eq_u32 s51, 7")
                a(f"s_cbranch_scc1 {last}")
            ops = spread(wrd(st, range(4, 8)), "M", 1, 48)
            if st == 0:
                ops.append(when("s_cmp_eq_u32 s51, s46", f"buffer_load_dword v{VPOLL}, v{ZERO}, s[24:27], 0 offen sc1", 4))
                ld_ = a.uid("k12_nodef")
                ops.append(Op(f"s_cmp_lg_u32 s51, 0\ns_cbranch_scc1 {ld_}\ns_call_b64 s[36:37], k12_deferred\n{ld_}:", "B", 62, lo=60, after=list(ops)))
            gt = (when("s_cmp_eq_u32 s51, s46", spin_text(a, 0, 256), 0).text + "\n") if st == 0 else ""
            ops.append(Op(tr_wrap("s_waitcnt vmcnt(0) lgkmcnt(0)\n" + gt + "s_barrier"), "S", 63, lo=63, hard=63, after=list(ops)))
            schedule(a, mfmas(st, 0, isv), ops)
            rd = spread(mix(xreads(1 - st), wrd(1 - st, range(4))), "M", 1, 54)
            pre = []
            if st == 0:
                pre = [Op("s_cmp_ge_u32 s49, 1024\ns_cselect_b32 s18, 0, s18\ns_cselect_b32 s22, 0, s22", "S", 0, hard=0)]
            dm, dl = grp_sched([dma_grp(st, g) for g in range(4)], 1, ENV("GD1", 56), after=pre)
            sig = when("s_cmp_eq_u32 s51, s53", one_lane(f"buffer_atomic_add v{ONE}, v{ZERO}, s[24:27], 0 offen sc1"), 58, after=dl)
            ops = rd + pre + dm + [sig]
            cnt_after = [sig]
            p_ = when("s_cmp_eq_u32 s51, s63", pf, 59, after=dl)
            ops.append(p_)
            cnt_after.append(p_)
            if st == 1:
                p_ = when("s_cmp_eq_u32 s51, 5", cpf, 60, after=dl)
            else:
                p_ = when("s_cmp_eq_u32 s51, 6", "\n".join(g[0] + "\ns_nop 0\n" + "\n".join(g[1]) + "\n" + g[2] for g in (wdma(0), wdma(1))), 60, after=dl)
            ops.append(p_)
            cnt_after.append(p_)
            ops.append(Op("s_add_u32 s51, s51, 1", "S", 62, after=cnt_after))
            ops.append(Op("s_waitcnt lgkmcnt(0)", "S", 63, lo=63, hard=63, after=rd))
            schedule(a, mfmas(st, 1, isv), ops)
        a(f"s_branch {loop}")
        a.label(last)
        stamp(a, 2)
        seq = [(c, j) for j in range(8) for c in range(4)] if isv else [(c, j) for c in range(4) for j in range(8)]
        mf, ops = [], []
        done = {}
        tuse = []
        for pos, (c, j) in enumerate(seq):
            n = pair_n(c, j, isv)
            for i in (2 * c, 2 * c + 1):
                kss = (1, 0) if i % 2 else (0, 1)
                mf += mf2(j, i, 1, isv, kss) if isv else mf2(i, j, 1, isv, kss)
            g0 = 4 * pos + 3 + 6
            d = PK + 4 * n
            if n < 24:
                x, y = 64 + 4 * n, 160 + 4 * n
                tx = [f"v_cvt_pk_bf16_f32 v{d}, v{x}, v{x+1}", f"v_cvt_pk_bf16_f32 v{d+1}, v{x+2}, v{x+3}",
                      f"v_cvt_pk_bf16_f32 v{d+2}, v{y}, v{y+1}", f"v_cvt_pk_bf16_f32 v{d+3}, v{y+2}, v{y+3}"]
                o = spread(tx, "A", g0, g0 + 2)
            else:
                x = 128 + 8 * (n - 24)
                tx = [f"v_accvgpr_read_b32 v{PT+r}, a{x+r}" for r in range(8)]
                tx += [f"v_cvt_pk_bf16_f32 v{d+r}, v{PT+2*r}, v{PT+2*r+1}" for r in range(4)]
                o = spread(tx, "A", g0, g0 + 5)
                o[0].after += tuse + [done[n - 24]]
                tuse = [o[-1]]
            done[n] = o[-1]
            ops += o
        w47 = spread(wrd(1, range(4, 8)), "M", 1, 40)
        ld, ll = grp_sched([xloads(0), xloads(1), xloads(2), xloads(3)], 0, 30)
        ops += w47 + ld + [Op("s_waitcnt lgkmcnt(0)", "S", 60, lo=60, hard=62, after=w47)]
        prev_ = list(ll)
        for k_, n_ in enumerate(sorted(PRE, key=lambda n: done[n].want)):
            m_, l_, _ = kvstore(n_, "s[32:35]")
            w_ = ENV("PS0", 34) + k_ * (126 - ENV("PS0", 34)) / max(1, len(PRE))
            o1 = Op(m_, "S", w_ - 1, after=prev_)
            o2 = Op(l_[0], "V", w_, after=[o1, done[n_]])
            ops += [o1, o2]
            prev_ = [o2]
        bar = Op("s_waitcnt vmcnt(16)\ns_barrier", "S", 96, lo=96, after=ll)
        rd = spread(wreads(0, 0, 0), "M", 97, 120)
        rd[0].after.append(bar)
        ops += [bar] + rd
        schedule(a, mf, ops)
        if not isv:
            a(f"s_branch {joined}")
    a.label(joined)
    a.label("k12_qcode")
    a("s_mov_b64 s[48:49], s[32:33]")
    a("s_mov_b32 s51, 0x00020000")
    a("s_cmp_eq_u32 s45, 0")
    a("s_mov_b32 s50, s34")
    a("s_cselect_b32 s56, s30, -1")
    a("s_cselect_b32 s57, -1, s30")
    a(tr_wrap(f"s_waitcnt vmcnt({8 + len(PRE)}) lgkmcnt(0)"))

    NS = ENV("NS", 20)
    PSIG = ENV('PSIG', NS + 3)
    PPOLL = ENV("PPOLL", 27)
    assert PSIG % 2 == 1 and PPOLL % 2 == 1 and PSIG < PPOLL
    queue = ["W0"] * 4 + ["W1"] * 4 + ["X0"] * 4 + ["X1"] * 4 + ["X2"] * 4 + ["X3"] * 4 + ["L"] * len(PRE)

    def younger(tag):
        if tag not in queue:
            return 63
        return len(queue) - 1 - max(i for i, t in enumerate(queue) if t == tag)

    kvsrd = ["s_lshl_b32 s31, s28, 14", "s_add_u32 s16, s6, s31\ns_addc_u32 s17, s7, 0",
             f"s_add_u32 s20, s16, 0x{VF_OFF:x}\ns_addc_u32 s21, s17, 0", f"s_add_u32 s16, s16, 0x{KF_OFF:x}\ns_addc_u32 s17, s17, 0",
             "s_and_b32 s17, s17, 0xffff", "s_and_b32 s21, s21, 0xffff", "s_lshl_b32 s31, s29, 20", "s_sub_u32 s18, 0xf84000, s31",
             "s_mov_b32 s22, s18",
             f"s_add_u32 s24, s6, 0x{KVC_OFF:x}\ns_addc_u32 s25, s7, 0", "s_and_b32 s25, s25, 0xffff", "s_mov_b32 s26, 4096"]

    def kdma():
        return ("s_mov_b32 m0, s34", [f"buffer_load_dwordx4 v{V_LANE16}, s[16:19], s32 offen offset:{i*1024}{LDF} lds" for i in range(4)],
                "s_add_u32 s32, s32, 0x80000\ns_add_u32 s34, s34, 0x4000")

    def vdma():
        return ("s_mov_b32 m0, s35", [f"buffer_load_dwordx4 v{V_LANE16}, s[20:23], s33 offen offset:{i*1024}{LDF} lds" for i in range(4)],
                "s_add_u32 s33, s33, 0x80000\ns_add_u32 s35, s35, 0x4000")

    NL = ENV('NL', 29)
    NE0 = (NS * NR) // NL
    sn, sl_, nx, nw = NE0, 0, 4, 2
    assert NL <= PPOLL + 2
    S0 = ENV("S0", 0)
    for ks in range(32):
        st, sp = ks // 2, ks % 2
        ops = []
        rd = []
        if ks < 31:
            rd = spread(wreads(st, 1, 1) if sp == 0 else wreads(st + 1, 0, 0), "M", 1, 22)
        ops += rd
        grps, tags = [], []
        while nw < 16 and ((sp == 1 and nw <= st + DW) or (ks == 0 and nw < DW)):
            grps.append(wdma(nw)); tags.append(f"W{nw}"); nw += 1
        for _ in range(2):
            if nx < 32 and nx <= ks + DX:
                grps.append(xloads(nx)); tags.append(f"X{nx}"); nx += 1
        while sl_ < NR and sl_ < ((ks + 1) * NR) // NL:
            grps.append(kvstore(REST[sl_], "s[48:51]")); tags.append("L"); sl_ += 1
        early = []
        while ks < NS and sn < NR and sn < NE0 + ((ks + 1) * (NR - NE0) + NS - 1) // NS:
            m_, l_, _ = kvstore(REST[sn], "s[48:51]")
            early += [m_, l_[0]]
            sn += 1
        head = []
        if ks == 0:
            ops += spread(kvsrd, "S", 6, 30)
        if ks == PSIG:
            head = [when("s_cmp_eq_u32 s56, 0", one_lane(f"buffer_atomic_add v{ONE}, v{ZERO}, s[24:27], s54 offen sc1"), 0)]
            ops += spread(k2.kv_first(), "S", 8, 20)
        if ks == 24:
            ops.append(Op("v_add_co_u32 v2, vcc, 0x4000, v2\ns_nop 1\nv_addc_co_u32 v3, vcc, 0, v3, vcc\n" + cpf, "B", 29))
        if ks == PPOLL:
            head = [when("s_cmp_eq_u32 s30, 0", f"buffer_load_dword v{VPOLL}, v{ZERO}, s[24:27], s55 offen sc1", 0)]
            qpoll = len(queue)
        if ks == PPOLL + 2:
            grps += [kdma(), kdma()]; tags += ["K0", "K1"]
        if ks == PPOLL + 3:
            grps += [vdma(), kdma()]; tags += ["V0", "K2"]
        if ks == PPOLL + 4:
            grps += [vdma()]; tags += ["V1"]
        ops += head
        if grps:
            g, gl_ = grp_sched(grps, 1, 27, after=head)
            ops += g
        if ks == NS - 1:
            early.append("s_mov_b32 s50, 0")
        if early:
            ops.append(when("s_cmp_eq_u32 s45, 0", "\n".join(early), 29, after=gl_))
        for gr, tg in zip(grps, tags):
            queue += [tg] * len(gr[1])
        if ks == NS - 1:
            assert sn == NR and sl_ == NE0
            qearly = len(queue)
        if ks < 31:
            nk = ks + 1
            wv = younger(f"W{nk // 2 + 1}") if nk % 2 else younger(f"X{nk + 1}")
            if nk == PSIG:
                wv = min(wv, len(queue) - qearly)
            wv = min(wv, 63)
            prevw = wv
            wtxt = f"s_waitcnt vmcnt({wv}) lgkmcnt(0)"
            if ks == PPOLL + 1:
                ops.append(when("s_cmp_eq_u32 s30, 0", f"s_waitcnt vmcnt({len(queue) - qpoll})\n" + spin_text(a, "s55", 2), 29, lo=28, after=[o for o in ops if o.cls == "V"]))
            if nk % 2:
                wtxt = tr_wrap(wtxt + "\ns_barrier") if nk % 4 == 1 else wtxt + "\ns_barrier"
            ops.append(Op(wtxt, "S", 31, lo=31, hard=31, after=[o for o in ops if o.cls in "MVB"]))
        mf = []
        for db, qb, k2_, f_ in snake(range(4 * sp, 4 * sp + 4), range(4), 2):
            k, c = qacc(db, qb)
            r = f"{k}[{c}:{c+3}]"
            mf.append(mfma16(r, aq(fw(db, k2_)), aq(XS(2 * st + k2_) + 4 * qb), "0" if (st == 0 and f_) else r))
        schedule(a, mf, ops)
    assert PPOLL + 4 <= 31
    stamp(a, 3)
    assert younger("L") >= 8
    a("s_add_u32 s3, s54, 64")
    a("s_add_u32 s5, s55, 64")
    a("s_mov_b32 s63, s57")
    late = dict(
        sig=when("s_cmp_eq_u32 s63, 0", one_lane(f"buffer_atomic_add v{ONE}, v{ZERO}, s[24:27], s3 offen sc1"), 0).text,
        poll=lambda: when("s_cmp_eq_u32 s30, 0", "buffer_load_dword v58, v59, s[24:27], s5 offen sc1", 2),
        gate=lambda **kw: when("s_cmp_eq_u32 s30, 0", "s_waitcnt vmcnt(0)\n" + spin_text(a, "s5", 14, 58, 59), 29, **kw))
    attention_phase(a, end, 0, qacc, late, stubs=stubs, next_code='op_head' if fuse else (None if os.environ.get('WHICH') == 'k12' else 'k3_kernel'), when=when if fuse else None, ffn=ffn)
    a.end_kernel(name, 256, 256)
    a.launch(name, 256, 256, 163840)
```

```python
from common import *
import common, os
from sched import Op, spread, schedule

SPIN_MAX = 1 << 20
R = 64
XO, WDM, WRD = R + 24, R + 26, R + 0
G, PO, PV_, Z, ONE = R + 8, R + 9, R + 10, R + 11, R + 12
STO, HO, WO, CA = R + 13, R + 14, R + 16, R + 18
DUM = R + 20
ACC, XE, WR, SA = 128, 192, 208, 208
XR = 128
FW = [0, 64]


def vq(b):
    return f"v[{b}:{b+3}]"


def aq(b):
    return f"a[{b}:{b+3}]"


def one_lane(text):
    return f"s_mov_b64 exec, 1\n{text}\ns_mov_b64 exec, -1"


def wdma(p):
    return (f"s_add_u32 m0, s60, {(p % 4)*16384}",
            [f"buffer_load_dwordx4 v{WDM+i}, s[12:15], s61 offen offset:{i*1024} lds" for i in range(4)],
            "s_add_u32 s61, s61, 0x20000\ns_and_b32 s61, s61, 0x3fffff")


def xloads(p):
    return (None, [f"buffer_load_dwordx4 {aq(XR + (p % 4)*16 + 8*ks + 4*tb)}, v{XO+ks}, s[8:11], s62 offen offset:{tb*1024} sc1" for ks in range(2) for tb in range(2)],
            "s_add_u32 s62, s62, 0x40000\ns_and_b32 s62, s62, 0x7fffff")


def early_loads(a):
    a(f"s_load_dwordx2 s[4:5], s[0:1], {ARG['wo']}")


def early(a):
    T0, T1, T2, LN = R + 20, R + 21, R + 22, R + 23
    a("s_lshr_b32 s31, s2, 3")
    a("s_bfe_u32 s56, s2, 0x10002")
    a("s_and_b32 s54, s2, 1")
    a("s_and_b32 s55, s31, 7")
    if os.environ.get("TMIX", "0") == "1":
        a("s_lshl_b32 s55, s55, 1")
    else:
        a("s_lshl_b32 s54, s54, 3")
    a("s_add_u32 s54, s54, s55")
    a("s_and_b32 s55, s2, 2")
    a("s_lshl_b32 s55, s55, 1")
    a("s_lshr_b32 s31, s31, 3")
    a("s_add_u32 s55, s55, s31")
    a(f"v_lshrrev_b32 v{LN}, 4, v1")
    a(f"v_lshrrev_b32 v{G}, 4, v{LN}")
    a("s_lshl_b32 s57, s54, 7")
    a("s_lshl_b32 s31, s30, 5")
    a("s_add_u32 s57, s57, s31")
    a("s_lshl_b32 s31, s57, 6")
    a(f"v_add_u32 v{XO}, s31, v1")
    a(f"v_add_u32 v{XO+1}, 0x20000, v{XO}")
    a(f"v_bfe_u32 v{T0}, v{LN}, 1, 3")
    a(f"v_xor_b32 v{T0}, v{T0}, v{G}")
    a(f"v_and_b32 v{T1}, 16, v1")
    a(f"v_lshl_add_u32 v{T1}, v{G}, 11, v{T1}")
    a("s_lshl_b32 s31, s30, 15")
    a("s_lshl_b32 s58, s55, 8")
    a("s_add_u32 s31, s31, s58")
    a(f"v_add_u32 v{T1}, s31, v{T1}")
    for i in range(4):
        a(f"v_xor_b32 v{T2}, {(i % 2) * 4}, v{T0}")
        a(f"v_lshl_add_u32 v{T2}, v{T2}, 5, v{T1}")
        a(f"v_add_u32 v{WDM+i}, {4*i*2048 - i*1024}, v{T2}")
        if os.environ.get("WLIN"):
            a("s_lshl_b32 s31, s55, 14")
            a("s_lshl_b32 s40, s30, 12")
            a("s_add_u32 s31, s31, s40")
            a(f"v_add_u32 v{WDM+i}, s31, v1")
    a(f"v_and_b32 v{T0}, 15, v{LN}")
    a(f"v_add_u32 v{T1}, s57, v{T0}")
    a(f"v_lshlrev_b32 v{STO}, 2, v{T1}")
    a(f"v_lshl_add_u32 v{STO}, v{G}, 13, v{STO}")
    a("s_lshl_b32 s31, s56, 7")
    a("s_add_u32 s58, s58, s31")
    a(f"v_lshl_add_u32 v{WO}, v{G}, 3, s58")
    a(f"v_lshl_add_u32 v{HO}, v{T1}, 11, v{WO}")
    a(f"v_add_u32 v{HO+1}, 0x8000, v{HO}")
    a(f"v_lshrrev_b32 v{T1}, 2, v{T0}")
    a(f"v_lshl_add_u32 v{T1}, v{G}, 2, v{T1}")
    a(f"v_and_b32 v{T0}, 7, v{T1}")
    a("s_lshl_b32 s31, s56, 2")
    a(f"v_xor_b32 v{T0}, s31, v{T0}")
    a(f"v_lshlrev_b32 v{T1}, 8, v{T1}")
    a(f"v_and_b32 v{T2}, 3, v{LN}")
    a(f"v_lshl_add_u32 v{T1}, v{T2}, 3, v{T1}")
    a(f"s_add_u32 s31, s2, {os.environ.get('OQ0', '1')}")
    a("s_and_b32 s31, s31, 3")
    a(f"v_add_u32 v{PO}, s31, v{T2}")
    a(f"v_and_b32 v{PO}, 3, v{PO}")
    a(f"v_lshlrev_b32 v{PO}, 7, v{PO}")
    for j in range(8):
        a(f"v_xor_b32 v{T2}, {j}, v{T0}")
        a(f"v_lshl_add_u32 v{WRD+j}, v{T2}, 5, v{T1}")
    a("s_lshl_b32 s61, s31, 20")
    a("s_lshl_b32 s62, s31, 21")
    a("s_lshl_b32 s60, s30, 12")
    a("s_lshl_b32 s59, s54, 10")
    a("s_lshl_b32 s31, s56, 9")
    a("s_add_u32 s59, s59, s31")
    a("s_lshr_b32 s31, s28, 2")
    a("s_lshl_b32 s31, s31, 7")
    a("s_lshl_b32 s57, s29, 10")
    a("s_sub_u32 s58, 0x3c00, s57")
    a("s_add_u32 s57, s57, s31")
    a("s_add_u32 s58, s58, s31")
    a(f"v_mov_b32 v{Z}, 0")
    a(f"v_mov_b32 v{ONE}, 1")
    a("s_lshl_b32 s31, s56, 23")
    a(f"s_add_u32 s31, s31, 0x{CTX_OFF:x}")
    a("s_add_u32 s8, s6, s31")
    a("s_addc_u32 s9, s7, 0")
    a("s_and_b32 s9, s9, 0xffff")
    a("s_mov_b32 s10, 0x800000")
    a("s_lshl_b32 s31, s56, 22")
    a("s_waitcnt lgkmcnt(0)")
    a("s_add_u32 s12, s4, s31")
    a("s_addc_u32 s13, s5, 0")
    a("s_and_b32 s13, s13, 0xffff")
    a("s_mov_b32 s14, 0x400000")


POLL = f"buffer_load_dword v{PV_}, v{PO}, s[16:19], s59 offen sc1"


def e1_ops(a, when, bar, n):
    a.srd_off(16, 6, CTC_OFF, 16384)
    sig = when("s_cmp_eq_u32 s30, 0", one_lane(f"buffer_atomic_add v{ONE}, v{Z}, s[16:19], s57 offen sc1"), 1, after=[bar])
    ops, prev = [sig], [sig]
    k = 0
    for p in range(3):
        m, ld, tr = wdma(p)
        mo = Op(m, "S", 2 + 2.5 * k, after=prev)
        ops.append(mo)
        for t in ld:
            o = Op(t, "V", 3 + 2.5 * k, after=prev, prev_gap=[mo])
            ops.append(o)
            prev = [o]
            k += 1
        o = Op(tr, "S", 3 + 2.5 * k, after=prev)
        ops.append(o)
        prev = [o]
    ops.append(Op(POLL, "V", n - 1, after=prev))
    return ops


def spin(a, bit):
    lp, ok = a.uid("op_spin"), a.uid("op_ok")
    return "\n".join([f"s_mov_b32 s34, {SPIN_MAX}", f"{lp}:", POLL, "s_waitcnt vmcnt(0)", f"v_cmp_le_u32 vcc, 4, v{PV_}",
                      "s_sub_u32 s34, s34, 1", f"s_cbranch_scc1 {ok}", "s_mov_b32 s33, vcc_lo", f"s_bitcmp1_b32 s33, {bit}",
                      f"s_cbranch_scc1 {ok}", f"s_sleep {os.environ.get('OSL', '4')}", f"s_branch {lp}", f"{ok}:"])


def finish(a, when, ffn=None):
    def now(g):
        for t in g[1] + [g[2]]:
            a(t)
    a.label("op_head")
    a(f"s_load_dwordx2 s[28:29], s[0:1], {ARG['x']}")
    a(f"s_load_dwordx2 s[42:43], s[0:1], {ARG['wr']}")
    late, join = a.uid("op_late"), a.uid("op_join")
    a("s_waitcnt vmcnt(8)")
    a(f"v_cmp_le_u32 vcc, 4, v{PV_}")
    zero_acc(a, ACC, 64, 56, "v")
    a("s_mov_b32 s33, vcc_lo")
    a("s_bitcmp1_b32 s33, 0")
    a(f"s_cbranch_scc0 {late}")
    for p in range(3):
        now(xloads(p))
    a("s_waitcnt vmcnt(12)")
    a(f"s_branch {join}")
    a.label(late)
    a("s_waitcnt vmcnt(0)")
    a.label(join)
    a("s_barrier")
    a(when("s_cmp_eq_u32 s30, 0", one_lane(f"buffer_atomic_add v{ONE}, v{Z}, s[16:19], s58 offen sc1"), 0).text)
    a(when("s_bitcmp0_b32 s33, 0", spin(a, 0) + "\n" + "\n".join("\n".join(xloads(p)[1] + [xloads(p)[2]]) for p in range(3)), 0).text)

    def wreads(p):
        out = []
        for ks in range(2):
            for cb in range(8):
                b = FW[p % 2] + (ks * 8 + cb) * 4
                off = (p % 4) * 16384 + ks * 8192
                out.append(f"ds_read_b64_tr_b16 a[{b}:{b+1}], v{WRD+cb} offset:{off}")
                out.append(f"ds_read_b64_tr_b16 a[{b+2}:{b+3}], v{WRD+cb} offset:{off + 4096}")
        return out

    def mf(p):
        out = []
        for cb, tb, ks, _ in snake((4, 5, 6, 7, 0, 1, 2, 3), range(2), 2):
            c = vq(ACC + (cb * 2 + tb) * 4)
            out.append(mfma16(c, aq(FW[p % 2] + (ks * 8 + cb) * 4), aq(XR + (p % 4) * 16 + 8 * ks + 4 * tb), c))
        return out

    for t in wreads(0):
        a(t)
    a.srd_off(24, 6, H_OFF, 4 << 20)
    a.srd_off(36, 6, XCH_OFF, 8 << 20)
    a.srd_off(48, 6, XFL_OFF, 32768)
    a("s_lshl_b32 s52, s2, 14")
    a("s_add_u32 s52, s52, s60")
    a("s_xor_b32 s53, s52, 0x10000")
    a("s_lshl_b32 s57, s2, 7")
    a("s_xor_b32 s58, s57, 0x200")
    a("v_lshrrev_b32 v56, 4, v1")
    a("s_lshl_b32 s31, s30, 6")
    if not ffn:
        a("s_add_u32 s31, s31, (op_tail2-op_tail)/128-64")
        a("s_cmp_eq_u32 s30, 0")
        a("s_cselect_b32 s31, 0, s31")
    else:
        a("s_and_b32 s31, s31, 64")
    a("v_add_u32 v56, s31, v56")
    a("s_mov_b32 s31, (code_end-op_tail)/128")
    a("v_min_u32 v56, s31, v56")
    code_addr(a, "op_tail", CA, 56, 40)
    if ffn:
        ffn.setup(a)
    a("s_mov_b32 s63, 0")
    a("s_waitcnt vmcnt(8) lgkmcnt(0)")
    a.srd(20, 28, 4 << 20)
    a.srd(44, 42, 2048)
    epi = []
    for tb in range(2):
        for cb in range(4):
            b = XE + (tb * 4 + cb) * 2
            epi.append(f"buffer_load_dwordx2 v[{b}:{b+1}], v{HO+tb}, s[20:23], 0 offen offset:{cb*32}")
    for cb in range(4):
        epi.append(f"buffer_load_dwordx2 v[{WR+2*cb}:{WR+2*cb+1}], v{WO}, s[44:47], 0 offen offset:{cb*32}")
    epi += [f"global_load_dword v{DUM}, v[{CA}:{CA+1}], off", "s_mov_b32 s10, 0", "s_mov_b32 s14, 0"]
    stamp(a, 5)
    loop = a.uid("op_loop")
    a.label(loop)
    for p in range(4):
        rd = spread(wreads(p + 1), "M", 0, 25)
        ops = list(rd)
        prev = []
        if p == 1:
            c1 = Op(f"v_cmp_le_u32 vcc, 4, v{PV_}", "A", 0)
            c2 = Op("s_add_u32 s32, s63, 1\ns_lshr_b32 s32, s32, 1", "S", 0)
            c3 = Op("s_or_b32 s33, vcc_lo, 16", "S", 3, after=[c1], prev_gap=[c1])
            gate = when("s_bitcmp0_b32 s33, s32", spin(a, "s32"), 6, after=[c2, c3])
            ops += [c1, c2, c3, gate]
        k = 0
        for (m, ld, tr) in (wdma(p + 3), xloads(p + 3)):
            mo = None
            if m:
                mo = Op(m, "S", 0)
                ops.append(mo)
            elif p == 1:
                prev = prev + [gate]
            for t in ld:
                o = Op(t, "V", 1 + 3.5 * k, after=prev, prev_gap=[mo] if mo else [])
                ops.append(o)
                prev = [o]
                k += 1
            ops.append(Op(tr, "S", 2 + 3.5 * k, after=prev))
        if ffn and ffn.THIN:
            T0 = int(os.environ.get("THIN0", "3"))
            if p == 0:
                wr = "s_mov_b32 s44, s42\ns_and_b32 s45, s43, 0xffff\ns_mov_b32 s46, 2048\n"
                ops.append(when("s_cmp_eq_u32 s63, 7", wr + "\n".join(epi), 29, lo=26, after=prev + rd))
                ops.append(when(f"s_cmp_eq_u32 s63, {T0 - 1}", ffn.POLL64, 25, after=prev))
            if p == 3:
                g1 = when(f"s_cmp_eq_u32 s63, {T0 - 1}", ffn.gate_text(a), 24, after=prev)
                ops.append(g1)
                prev = prev + [g1]
            th = when(f"s_sub_u32 s40, s63, {T0}\ns_cmp_lt_u32 s40, 4", ffn.THIN_TEXT, 27, after=prev)
            ops.append(th)
            prev = prev + [th]
            if p == 3:
                g2 = when(f"s_cmp_eq_u32 s63, {T0 + 1}", ffn.THIN_FLIP, 29, after=prev)
                ops.append(g2)
                prev = prev + [g2]
        elif p == 0:
            ops.append(when("s_cmp_eq_u32 s63, 7", "\n".join(epi) + ("\n" + ffn.gate_text(a) if ffn else ""), 29, lo=26, after=prev + rd))
        elif ffn:
            if p == 1:
                ops.append(when("s_cmp_eq_u32 s63, 6", ffn.POLL64, 27, after=prev))
        if p == 2:
            pl = Op(POLL, "V", 0.5)
            ops.append(pl)
            for o in ops:
                if o.cls == "V" and o is not pl and not [d for d in o.after if d.cls == "V"]:
                    o.after.append(pl)
        if p == 3:
            ops.append(Op("s_add_u32 s63, s63, 1", "S", 30, after=prev))
        ops.append(Op(f"s_waitcnt vmcnt(12) lgkmcnt(0)\ns_barrier", "S", 31, lo=31, hard=31, after=[o for o in ops if o.cls in "MVB"]))
        schedule(a, mf(p), ops)
    a("s_cmp_lt_u32 s63, 8")
    a(f"s_cbranch_scc1 {loop}")
    a.label("op_tail")
    stamp(a, 6)
    a("s_nop 1")
    for q in range(4):
        c = ACC + 32 + 8 * q
        for r in range(4):
            a(f"v_cvt_pk_bf16_f32 v{c+r}, v{c+2*r}, v{c+2*r+1}")
        if ffn:
            for r in range(4):
                a(f"v_min_u32 v{c+r}, -2, v{c+r}")
        a(f"buffer_store_dwordx4 {vq(c)}, v1, s[36:39], s52 offen offset:{q*1024} sc1")
    a.srd_off(32, 6, STATS_OFF, 3 * 8192)
    a("s_waitcnt vmcnt(4) lgkmcnt(0)")
    for cb in range(4):
        for tb in range(2):
            c, xb = ACC + (cb * 2 + tb) * 4, XE + (tb * 4 + cb) * 2
            for h in range(2):
                a(f"v_lshlrev_b32 v58, 16, v{xb+h}")
                a(f"v_and_b32 v59, 0xffff0000, v{xb+h}")
                a(f"v_pk_add_f32 v[{c+2*h}:{c+2*h+1}], v[{c+2*h}:{c+2*h+1}], v[58:59]")
    a(f"v_and_b32 v58, 1, v{G}")
    a(f"v_lshrrev_b32 v59, 1, v{G}")
    a("v_lshlrev_b32 v58, 5, v58")
    a("v_lshl_add_u32 v58, v59, 4, v58")
    a(f"v_lshlrev_b32 v59, 3, v{G}")
    a("v_sub_u32 v58, v58, v59")
    a(f"v_add_u32 v{HO}, v{HO}, v58")
    a(f"v_add_u32 v{HO+1}, v{HO+1}, v58")
    a("s_mov_b32 s42, 0x00003f80")
    a("s_mov_b32 s43, 0x3f800000")
    a("s_mov_b32 s41, 0x3f803f80")
    nw = a.uid("op_nowr")
    a("s_or_b32 s31, s54, s30")
    a(f"s_cbranch_scc1 {nw}")
    for i in range(8):
        a(f"v_dot2_f32_bf16 v56, v{WR+i}, s41, {'0' if i == 0 else 'v56'}")
    a("s_nop 2")
    for sw in ("v_permlane16_swap_b32", "v_permlane32_swap_b32"):
        a("v_mov_b32 v57, v56")
        a("s_nop 1")
        a(f"{sw} v56, v57")
        a("s_nop 1")
        a("v_add_f32 v56, v56, v57")
    a(f"s_mov_b32 s31, {WRSUM_OFF - STATS_OFF}")
    a(f"s_mov_b32 s34, {WRSUM_OFF - STATS_OFF + 4}")
    a(one_lane(f"buffer_atomic_add_f32 v56, v{Z}, s[32:35], s31 offen"))
    a(f"s_mov_b32 s34, {3 * 8192}")
    a.label(nw)
    XI = ACC + 32
    if ffn:
        XI = 224
        lp, ok = a.uid("op_xspin"), a.uid("op_xok")
        a(f"s_mov_b32 s40, {SPIN_MAX}")
        a.label(lp)
        for q in range(4):
            a(f"buffer_load_dwordx4 {vq(XI + 4*q)}, v1, s[36:39], s53 offen offset:{q*1024} sc1")
        a("s_sub_u32 s40, s40, 1")
        a("s_waitcnt vmcnt(0)")
        a(f"s_cbranch_scc1 {ok}")
        a(f"v_max3_u32 v56, v{XI}, v{XI+1}, v{XI+2}")
        for r in range(3, 15, 2):
            a(f"v_max3_u32 v56, v56, v{XI+r}, v{XI+r+1}")
        a(f"v_max_u32 v56, v56, v{XI+15}")
        a("v_cmp_eq_u32 vcc, -1, v56")
        a(f"s_cbranch_vccz {ok}")
        a(f"s_sleep {os.environ.get('XSL', '2')}")
        a(f"s_branch {lp}")
        a.label(ok)
    else:
        a("s_waitcnt vmcnt(0)")
        a("s_barrier")
        sk, lp = a.uid("op_nopoll"), a.uid("op_xspin")
        a("s_cmp_lg_u32 s30, 0")
        a(f"s_cbranch_scc1 {sk}")
        a(one_lane(f"buffer_store_dword v{ONE}, v{Z}, s[48:51], s57 offen sc1"))
        a(f"s_mov_b32 s40, {SPIN_MAX}")
        a.label(lp)
        a(f"buffer_load_dword v{DUM}, v{Z}, s[48:51], s58 offen sc1")
        a("s_waitcnt vmcnt(0)")
        a(f"v_readfirstlane_b32 s41, v{DUM}")
        a("s_sub_u32 s40, s40, 1")
        a("s_cselect_b32 s41, 1, s41")
        a("s_cmp_eq_u32 s41, 0")
        a(f"s_cbranch_scc1 {lp}")
        a.label(sk)
        a("s_barrier")
        for q in range(4):
            a(f"buffer_load_dwordx4 {vq(ACC + 32 + 4*q)}, v1, s[36:39], s53 offen offset:{q*1024} sc1")
    P2 = lambda r: f"v[{r}:{r+1}]"
    nst = 0
    for cb in range(4):
        if not ffn:
            a(f"s_waitcnt vmcnt({3 - cb + nst})")
        for tb in range(2):
            c = ACC + (cb * 2 + tb) * 4
            xb = XE + (tb * 4 + cb) * 2
            for h in range(2):
                src = XI + 4 * cb + 2 * tb + h
                for e in range(2):
                    a(f"v_dot2_f32_bf16 v{c+2*h+e}, v{src}, s{42+e}, v{c+2*h+e}")
        a("s_nop 0")
        for tb in range(2):
            c = ACC + (cb * 2 + tb) * 4
            xb = XE + (tb * 4 + cb) * 2
            for h in range(2):
                a(f"v_cvt_pk_bf16_f32 v{xb+h}, v{c+2*h}, v{c+2*h+1}")
        for tb in range(2):
            xb = XE + (tb * 4 + cb) * 2
            S = 48 + tb * 4
            for h in range(2):
                z = cb == 0 and h == 0
                a(f"v_dot2_f32_bf16 v{S}, v{xb+h}, s41, {'0' if z else 'v%d' % S}")
                a(f"v_dot2_f32_bf16 v{S+1}, v{xb+h}, v{xb+h}, {'0' if z else 'v%d' % (S+1)}")
                a(f"v_dot2_f32_bf16 v{S+2}, v{xb+h}, v{WR+2*cb+h}, {'0' if z else 'v%d' % (S+2)}")
            if cb % 2:
                a(f"v_permlane16_swap_b32 v{xb-2}, v{xb}")
                a(f"v_permlane16_swap_b32 v{xb-1}, v{xb+1}")
                a(f"buffer_store_dwordx4 {vq(xb-2)}, v{HO+tb}, s[24:27], 0 offen offset:{(cb//2)*64} sc1")
                nst += 1
    a("s_nop 2")
    regs = [48, 49, 50, 52, 53, 54]
    for sw in ("v_permlane16_swap_b32", "v_permlane32_swap_b32"):
        for i, r in enumerate(regs):
            a(f"v_mov_b32 v{56+i}, v{r}")
        a("s_nop 1")
        for i, r in enumerate(regs):
            a(f"{sw} v{r}, v{56+i}")
        a("s_nop 1")
        for i, r in enumerate(regs):
            a(f"v_add_f32 v{r}, v{r}, v{56+i}")
    a(f"v_cmp_eq_u32 s[40:41], 1, v{G}")
    a(f"v_cmp_eq_u32 s[42:43], 2, v{G}")
    a("s_nop 1")
    for tb in range(2):
        b = 48 + tb * 4
        a(f"v_cndmask_b32 v{b}, v{b}, v{b+1}, s[40:41]")
        a(f"v_cndmask_b32 v{b}, v{b}, v{b+2}, s[42:43]")
        a(f"buffer_atomic_add_f32 v{b}, v{STO}, s[32:35], 0 offen offset:{tb*64}")
    if ffn:
        ffn.tail(a)
        return
    a("s_and_b32 s56, s2, 7")
    a("s_mul_i32 s56, s56, 28")
    a("s_lshr_b32 s31, s2, 3")
    a("s_add_u32 s56, s56, s31")
    a("s_lshl_b32 s56, s56, 15")
    a("s_lshl_b32 s57, s30, 13")
    a("s_add_u32 s56, s56, s57")
    a.srd_off(8, 6, RPK_OFF, 16 << 20)
    a("s_cmp_ge_u32 s2, 224")
    a("s_cselect_b32 s10, 0, s10")
    a("v_lshlrev_b32 v8, 3, v1")
    for m in range(int(os.environ.get("K3NPF", "1"))):
        a("buffer_load_dword v9, v8, s[8:11], s56 offen")
        a("s_add_u32 s56, s56, 0x800000")
```
